```python
import torch

def _softmax(x, axis=-1):
    return torch.softmax(x, dim=axis)

def _gelu(x):
    return torch.nn.functional.gelu(x, approximate='tanh')

def _silu(x):
    return torch.nn.functional.silu(x)

def _sigmoid(x):
    return torch.sigmoid(x)

def _layernorm(x, axis=-1, eps=1e-05):
    m = x.mean(dim=axis, keepdim=True)
    v = x.var(dim=axis, keepdim=True, unbiased=False)
    return (x - m) / torch.sqrt(v + eps)

def _scatter_add(tgt, idx, src, axis=0):
    return tgt.clone().index_add_(axis, idx, src)

def _segment_sum(src, seg, n):
    out = torch.zeros((n,) + src.shape[1:], dtype=src.dtype)
    return out.index_add_(0, seg, src)

def _pad(x, pw):
    flat = tuple((v for pair in reversed(pw) for v in pair))
    return torch.nn.functional.pad(x, flat)
kernel_name = 'standalone__pixart__diffusion'

def setup_inputs():

    _w = lambda a: (lambda t: t.to(torch.bfloat16) if t.is_floating_point() else t)(torch.as_tensor(a))
    B, N, D, M = (2, 1024, 1152, 77)
    return {'x': _w((lambda *s: torch.randn(*s, dtype=torch.bfloat16) * 0.05)(B, N, D)), 'c': _w((lambda *s: torch.randn(*s, dtype=torch.bfloat16) * 0.05)(B, D)), 'y': _w((lambda *s: torch.randn(*s, dtype=torch.bfloat16) * 0.1)(B, M, D)), 'wqkv': _w((lambda *s: torch.randn(*s, dtype=torch.bfloat16) * 0.05)(D, 3 * D)), 'wo': _w((lambda *s: torch.randn(*s, dtype=torch.bfloat16) * 0.05)(D, D)), 'wq_c': _w((lambda *s: torch.randn(*s, dtype=torch.bfloat16) * 0.1)(D, D)), 'wkv_c': _w((lambda *s: torch.randn(*s, dtype=torch.bfloat16) * 0.1)(D, 2 * D)), 'wo_c': _w((lambda *s: torch.randn(*s, dtype=torch.bfloat16) * 0.05)(D, D)), 'w_mod': _w((lambda *s: torch.randn(*s, dtype=torch.bfloat16) * 0.05)(D, 6 * D))}

def reference(x, c, y, wqkv, wo, wq_c, wkv_c, wo_c, w_mod):
    B, N, D = x.shape
    mod = (_silu(c) @ w_mod).reshape(B, 6, 1, D)
    shift_a, scale_a, gate_a, shift_m, scale_m, gate_m = [mod[:, i] for i in range(6)]
    h = _layernorm(x, axis=-1) * (1 + scale_a) + shift_a
    qkv = h @ wqkv
    q, k, v = (qkv[..., :D].clone(), qkv[..., D:2 * D].clone(), qkv[..., 2 * D:].clone())
    p = _softmax(torch.einsum('bqd,bkd->bqk', q, k) * D ** (-0.5), axis=-1)
    x = x + gate_a * (torch.einsum('bqk,bkd->bqd', p, v) @ wo)
    hc = _layernorm(x, axis=-1)
    qc = hc @ wq_c
    kvc = y @ wkv_c
    kc, vc = (kvc[..., :D].clone(), kvc[..., D:].clone())
    pc = _softmax(torch.einsum('bqd,bkd->bqk', qc, kc) * D ** (-0.5), axis=-1)
    return x + torch.einsum('bqk,bkd->bqd', pc, vc) @ wo_c
```

```python
from dataclasses import dataclass, field

class K:
    def __init__(self):
        self.L = []
        self.uid = 0
    def __call__(self, s):
        for line in s.split('\n'):
            line = line.strip()
            if line:
                self.L.append('    ' + line)
    def label(self, n):
        self.L.append(n + ':')
    def c(self, s):
        self.L.append('    ; ' + s)
    def newlabel(self, p='L'):
        self.uid += 1
        return f'{p}_{self.uid}'
    def text(self):
        return '\n'.join(self.L) + '\n'

def vr(a, n=1):
    return f'v{a}' if n == 1 else f'v[{a}:{a+n-1}]'
def sr(a, n=1):
    return f's{a}' if n == 1 else f's[{a}:{a+n-1}]'

S_WG = 2
S_WAVE = 3
SRD_A = 4
SRD_B = 8
SRD_O = 12
SRD_X = 16
SRD_Y = 20
S_ABASE = 24
S_BBASE = 25
S_OBASE = 26
S_T0 = 27
S_T1 = 28
S_T2 = 29
S_T3 = 30
S_G = 31
S_LDS = 32
S_SLOT = 33
S_CNT = 34
S_DELTA = 35
S_W2 = 36
S_WA = 37
S_WB = 38
S_P0 = 40
S_X0 = 64

@dataclass
class Opnd:
    mode: str
    nblk: int
    srd: int
    base: int
    rbtot: int = 0
    stride: int = 0
    perm: bool = False
    region: int = 0
    aux: str = ''

@dataclass
class Gemm:
    name: str
    A: Opnd
    B: Opnd
    WA: int
    WB: int
    KT: int
    NS: int
    lds0: int = 0
    def __post_init__(self):
        self.A.region = 0
        self.B.region = self.A.nblk * 2048
        self.stage = (self.A.nblk + self.B.nblk) * 2048
        assert self.A.nblk % self.WA == 0 and self.B.nblk % self.WB == 0
        self.ma = self.A.nblk // self.WA
        self.nb = self.B.nblk // self.WB
        assert self.WA * self.WB == 4
        self.lds_bytes = self.lds0 + self.NS * self.stage

def make_srd(k, srd, plo, nbytes, off=0):
    if off:
        k(f's_add_u32 s{srd}, s{plo}, {off}')
        k(f's_addc_u32 s{srd+1}, s{plo+1}, 0')
    else:
        k(f's_mov_b32 s{srd}, s{plo}')
        k(f's_mov_b32 s{srd+1}, s{plo+1}')
    if isinstance(nbytes, int):
        k(f's_mov_b32 s{srd+2}, {nbytes}')
    else:
        k(f's_mov_b32 s{srd+2}, {nbytes}')
    k(f's_mov_b32 s{srd+3}, 0x00020000')

def loader_setup(k, g, X, VL, VOFF, VT):
    if X.mode == 'frag':
        k(f'v_lshlrev_b32 v{VOFF}, 4, v{VL}')
        k(f's_mul_i32 s{S_G}, s{S_W2}, {X.rbtot*1024}')
        k(f's_add_u32 s{S_G}, s{S_G}, s{X.base}')
        k(f's_mul_i32 s{S_LDS}, s{S_W2}, {X.nblk*1024}')
        k(f's_add_u32 s{S_LDS}, s{S_LDS}, {g.lds0 + X.region}')
    elif X.mode == 'row':
        k(f's_lshl_b32 s{S_T0}, s{S_W2}, 2')
        k(f'v_lshrrev_b32 v{VT}, 4, v{VL}')
        k(f'v_add_u32 v{VT}, s{S_T0}, v{VT}')
        k(f'v_and_b32 v{VOFF}, 7, v{VL}')
        k(f'v_xor_b32 v{VOFF}, v{VOFF}, v{VT}')
        k(f'v_lshlrev_b32 v{VOFF}, 4, v{VOFF}')
        if X.perm:
            k(f's_lshl_b32 s{S_T0}, s{S_W2}, 4')
            k(f'v_lshrrev_b32 v{VT}, 5, v{VL}')
            k(f'v_lshlrev_b32 v{VT}, 3, v{VT}')
            k(f'v_add_u32 v{VT}, s{S_T0}, v{VT}')
            k(f'v_bfe_u32 v{VT+1}, v{VL}, 3, 2')
            k(f'v_add_u32 v{VT}, v{VT}, v{VT+1}')
        else:
            k(f's_lshl_b32 s{S_T0}, s{S_W2}, 3')
            k(f'v_lshrrev_b32 v{VT}, 3, v{VL}')
            k(f'v_add_u32 v{VT}, s{S_T0}, v{VT}')
        k(f's_mov_b32 s{S_T0}, {X.stride}')
        k(f'v_mad_u32_u24 v{VOFF}, v{VT}, s{S_T0}, v{VOFF}')
        k(f's_mov_b32 s{S_G}, s{X.base}')
        k(f's_lshl_b32 s{S_LDS}, s{S_W2}, 10')
        k(f's_add_u32 s{S_LDS}, s{S_LDS}, {g.lds0 + X.region}')
    elif X.mode == 'col':
        k(f's_lshl_b32 s{S_T0}, s{S_W2}, 2')
        k(f'v_bfe_u32 v{VT}, v{VL}, 4, 1')
        k(f'v_lshlrev_b32 v{VT}, 1, v{VT}')
        k(f'v_or_b32 v{VT}, s{S_T0}, v{VT}')
        k(f'v_and_b32 v{VOFF}, 7, v{VL}')
        k(f'v_xor_b32 v{VOFF}, v{VOFF}, v{VT}')
        k(f'v_lshlrev_b32 v{VOFF}, 4, v{VOFF}')
        k(f's_lshl_b32 s{S_T0}, s{S_W2}, 3')
        k(f'v_lshrrev_b32 v{VT}, 3, v{VL}')
        k(f'v_add_u32 v{VT}, s{S_T0}, v{VT}')
        k(f's_mov_b32 s{S_T0}, {X.stride}')
        k(f'v_mad_u32_u24 v{VOFF}, v{VT}, s{S_T0}, v{VOFF}')
        k(f's_mov_b32 s{S_G}, s{X.base}')
        k(f's_lshl_b32 s{S_LDS}, s{S_W2}, 10')
        k(f's_add_u32 s{S_LDS}, s{S_LDS}, {g.lds0 + X.region}')

def loader_issue(k, g, X, VOFF, slot_const=None):
    groups = []
    if X.mode == 'frag':
        for g0 in range(0, X.nblk, 4):
            groups.append((g0*1024, g0*1024, [i*1024 for i in range(min(4, X.nblk-g0))]))
        step = 2 * X.rbtot * 1024
    elif X.mode == 'row':
        for i in range(X.nblk):
            r = (32*(i >> 1) + 4*(i & 1)) if X.perm else 16*i
            groups.append((i*2048, r*X.stride, [0]))
        step = 128
    else:
        for cg in range(X.nblk // 4):
            for i in range(4):
                groups.append((cg*8192 + i*2048, 16*i*X.stride + cg*128, [0]))
        step = 64 * X.stride
    if slot_const is None:
        k(f's_add_u32 s{S_T1}, s{S_LDS}, s{S_SLOT}')
        lb, lc = S_T1, 0
    else:
        lb, lc = S_LDS, slot_const
    for (lo, go, imms) in groups:
        if lo + lc:
            k(f's_add_u32 m0, s{lb}, {lo+lc}')
        else:
            k(f's_mov_b32 m0, s{lb}')
        if go:
            k(f's_add_u32 s{S_T0}, s{S_G}, {go}')
            so = S_T0
        else:
            k('s_nop 0')
            so = S_G
        for im in imms:
            o = f' offset:{im}' if im else ''
            k(f'buffer_load_dwordx4 v{VOFF}, {sr(X.srd,4)}, s{so} offen{o}{X.aux} lds')
    k(f's_add_u32 s{S_G}, s{S_G}, {step}')

def loader_body(k, g, X, VL, VOFF, VT, pre_hook=None, mid_hook=None, npre=None):
    n = X.nblk
    NS, KT = g.NS, g.KT
    loader_setup(k, g, X, VL, VOFF, VT)
    if pre_hook: pre_hook(k)
    npro = min(NS, KT)
    if npre is None: npre = npro
    for s in range(npre):
        loader_issue(k, g, X, VOFF, slot_const=s*g.stage)
    if mid_hook: mid_hook(k, npre*n)
    assert (NS-1)*n <= 63
    k(f's_waitcnt vmcnt({(npre-1)*n})')
    k('s_barrier')
    for s in range(npre, npro):
        loader_issue(k, g, X, VOFF, slot_const=s*g.stage)
    nmain = max(0, KT - NS)
    if nmain > 0:
        k(f's_mov_b32 s{S_SLOT}, 0')
        k(f's_mov_b32 s{S_CNT}, {nmain}')
        lp = k.newlabel(g.name + '_ld')
        k.label(lp)
        k(f's_waitcnt vmcnt({(NS-2)*n})')
        k('s_barrier')
        loader_issue(k, g, X, VOFF)
        k(f's_add_u32 s{S_SLOT}, s{S_SLOT}, {g.stage}')
        k(f's_cmp_eq_u32 s{S_SLOT}, {NS*g.stage}')
        k(f's_cselect_b32 s{S_SLOT}, 0, s{S_SLOT}')
        k(f's_sub_u32 s{S_CNT}, s{S_CNT}, 1')
        k(f's_cmp_lg_u32 s{S_CNT}, 0')
        k(f's_cbranch_scc1 {lp}')
    for t in range(nmain, KT-1):
        k(f's_waitcnt vmcnt({(KT-1-(t+1))*n})')
        k('s_barrier')

class ConsRegs:
    pass

def cons_addr_setup(k, g, X, nw, swave, VL, VA, VT):
    base = g.lds0 + X.region
    if X.mode == 'frag':
        k(f's_mul_i32 s{S_T0}, s{swave}, {nw*1024}')
        k(f's_add_u32 s{S_T0}, s{S_T0}, {base}')
        k(f'v_lshlrev_b32 v{VA}, 4, v{VL}')
        k(f'v_add_u32 v{VA}, s{S_T0}, v{VA}')
        return [VA]
    if X.mode == 'row':
        k(f's_mul_i32 s{S_T0}, s{swave}, {nw*2048}')
        k(f's_add_u32 s{S_T0}, s{S_T0}, {base}')
        k(f'v_bfe_u32 v{VT}, v{VL}, 1, 3')
        k(f'v_lshrrev_b32 v{VT+1}, 4, v{VL}')
        k(f'v_xor_b32 v{VT}, v{VT}, v{VT+1}')
        k(f'v_lshlrev_b32 v{VT}, 4, v{VT}')
        k(f'v_and_b32 v{VT+1}, 15, v{VL}')
        k(f'v_lshl_add_u32 v{VA}, v{VT+1}, 7, v{VT}')
        k(f'v_add_u32 v{VA}, s{S_T0}, v{VA}')
        k(f'v_xor_b32 v{VA+1}, 64, v{VA}')
        return [VA, VA+1]
    k(f'v_lshrrev_b32 v{VT}, 4, v{VL}')
    k(f'v_lshlrev_b32 v{VT}, 3, v{VT}')
    k(f'v_bfe_u32 v{VT+1}, v{VL}, 2, 2')
    k(f'v_add_u32 v{VT}, v{VT}, v{VT+1}')
    k(f'v_lshlrev_b32 v{VT}, 7, v{VT}')
    k(f'v_and_b32 v{VT+1}, 3, v{VL}')
    k(f'v_lshl_add_u32 v{VT}, v{VT+1}, 3, v{VT}')
    k(f'v_bfe_u32 v{VT+1}, v{VL}, 3, 2')
    k(f'v_lshl_add_u32 v{VT}, v{VT+1}, 5, v{VT}')
    for i in range(nw):
        k(f's_mul_i32 s{S_T0}, s{swave}, {nw}')
        k(f's_add_u32 s{S_T0}, s{S_T0}, {i}')
        k(f's_and_b32 s{S_T1}, s{S_T0}, 3')
        k(f's_lshl_b32 s{S_T1}, s{S_T1}, 5')
        k(f's_lshr_b32 s{S_T0}, s{S_T0}, 2')
        k(f's_lshl_b32 s{S_T0}, s{S_T0}, 13')
        k(f's_add_u32 s{S_T0}, s{S_T0}, {base}')
        k(f'v_xor_b32 v{VA+i}, s{S_T1}, v{VT}')
        k(f'v_add_u32 v{VA+i}, s{S_T0}, v{VA+i}')
    return [VA+i for i in range(nw)]

def cons_reads(g, X, nw, addrs, s, dst):
    out = []
    for i in range(nw):
        d = dst + 4*i
        if X.mode == 'frag':
            out.append(f'ds_read_b128 {vr(d,4)}, v{addrs[0]} offset:{s*X.nblk*1024 + i*1024}')
        elif X.mode == 'row':
            out.append(f'ds_read_b128 {vr(d,4)}, v{addrs[s]} offset:{i*2048}')
        else:
            out.append(f'ds_read_b64_tr_b16 {vr(d,2)}, v{addrs[i]} offset:{s*4096}')
            out.append(f'ds_read_b64_tr_b16 {vr(d+2,2)}, v{addrs[i]} offset:{s*4096+512}')
    return out

def interleave(k, mfmas, fill, start=0, per=1):
    fill = list(fill)
    for i, m in enumerate(mfmas):
        k(m)
        if i >= start:
            for _ in range(per):
                if fill: k(fill.pop(0))
    for f in fill: k(f)

def consumer_body(k, g, VL, VACC, VF, VA, VT, pre_hook=None, nomfma=False, noread=False, post_bar0=None):
    ma, nb = g.ma, g.nb
    aA = cons_addr_setup(k, g, g.A, ma, S_WA, VL, VA, VT)
    aB = cons_addr_setup(k, g, g.B, nb, S_WB, VL, VA + len(aA), VT)
    addrs = aA + aB
    setsz = (ma + nb) * 4
    def fa(st, a): return VF + st*setsz + 4*a
    def fb(st, b): return VF + st*setsz + 4*ma + 4*b
    def reads(s, st):
        if noread: return []
        ra = cons_reads(g, g.A, ma, aA, s, fa(st, 0))
        rb = cons_reads(g, g.B, nb, aB, s, fb(st, 0))
        return rb + ra if nb <= ma else ra + rb
    def mf(st):
        if nomfma: return ['s_nop 0']
        out = []
        for a in range(ma):
            for b in range(nb):
                c = VACC + (a*nb + b)*4
                out.append(f'v_mfma_f32_16x16x32_bf16 {vr(c,4)}, {vr(fa(st,a),4)}, {vr(fb(st,b),4)}, {vr(c,4)}')
        return out
    for i in range(ma*nb*4):
        k(f'v_mov_b32 v{VACC+i}, 0')
    if pre_hook: pre_hook(k)
    k(f's_mov_b32 s{S_SLOT}, 0')
    k(f's_mov_b32 s{S_CNT}, {g.KT-1}')
    k(f's_mov_b32 s{S_T3}, {g.stage}')
    k('s_barrier')
    if post_bar0: post_bar0(k)
    for r in reads(0, 0): k(r)
    k('s_waitcnt lgkmcnt(0)')
    lp = k.newlabel(g.name + '_mm')
    k.label(lp)
    adv = [f's_add_u32 s{S_SLOT}, s{S_SLOT}, {g.stage}',
           f's_cmp_eq_u32 s{S_SLOT}, {g.NS*g.stage}',
           f's_cselect_b32 s{S_DELTA}, {-(g.NS-1)*g.stage & 0xffffffff}, s{S_T3}',
           f's_cselect_b32 s{S_SLOT}, 0, s{S_SLOT}'] + [f'v_add_u32 v{a}, s{S_DELTA}, v{a}' for a in addrs]
    interleave(k, mf(0), reads(1, 1) + adv)
    k('s_waitcnt lgkmcnt(0)')
    k('s_barrier')
    interleave(k, mf(1), reads(0, 0) + [f's_sub_u32 s{S_CNT}, s{S_CNT}, 1', f's_cmp_lg_u32 s{S_CNT}, 0'])
    k('s_waitcnt lgkmcnt(0)')
    k(f's_cbranch_scc1 {lp}')
    interleave(k, mf(0), reads(1, 1))
    k('s_waitcnt lgkmcnt(0)')
    for m in mf(1): k(m)

def kernel_header(k, name):
    k.L.append(f'.globl {name}')
    k.L.append('.p2align 8')
    k.L.append(f'.type {name},@function')
    k.label(name)

def kernel_desc(name, vgpr, sgpr=96):
    acc = (vgpr + 3) // 4 * 4
    return f""".amdhsa_kernel {name}
  .amdhsa_next_free_vgpr {vgpr}
  .amdhsa_next_free_sgpr {sgpr}
  .amdhsa_accum_offset {acc}
  .amdhsa_group_segment_fixed_size 0
  .amdhsa_kernarg_size 96
  .amdhsa_user_sgpr_count 2
  .amdhsa_user_sgpr_kernarg_segment_ptr 1
  .amdhsa_system_sgpr_workgroup_id_x 1
.end_amdhsa_kernel
"""
```

```python
import sys, math
from lib import *

D = 1152; NR = 2048
P_X, P_C, P_Y, P_WQKV, P_WO, P_WQC, P_WKVC, P_WOC, P_WMOD, P_OUT, P_DBG, P_WS = range(40, 64, 2)
def al(x): return (x + 4095) // 4096 * 4096
WS = {}
_o = 0
for nm, sz in [('MOD', 2*3456*4), ('ST', 2048*64), ('H', NR*D*2), ('WQK', D*D*2), ('WVO', D*D*2), ('T', NR*D*2),
               ('VT', NR*D*2), ('P', 2*1024*1024*2), ('KVC', 72*10*1024), ('AT', 36*10*1024), ('BT', 2*3*72*1024),
               ('X1', NR*D*2)]:
    WS[nm] = (_o, sz); _o = al(_o + sz)
WS_END = _o
ST = ' sc1'
CSC = (D ** -0.5) * math.log2(math.e)
def f32(x):
    import struct
    return '0x%08x' % struct.unpack('<I', struct.pack('<f', x))[0]

def ws_srd(k, srd, nm):
    make_srd(k, srd, P_WS, WS[nm][1], WS[nm][0])

def prologue(k, name, nwg):
    kernel_header(k, name)
    k('s_load_dwordx16 s[40:55], s[0:1], 0')
    k('s_load_dwordx8 s[56:63], s[0:1], 64')
    k(f's_cmp_ge_u32 s2, {nwg}')
    k(f's_cbranch_scc1 {name}_end')
    k('v_lshrrev_b32 v1, 6, v0')
    k('v_and_b32 v0, 63, v0')
    k(f'v_readfirstlane_b32 s{S_WAVE}, v1')
    k('s_and_b32 s64, s2, 7')
    k('s_lshr_b32 s65, s2, 3')

def div_const(k, dst, src, d, maxv):
    for sh in range(4, 20):
        m = -(-(1 << sh) // d)
        if all((v*m) >> sh == v // d for v in range(maxv+1)):
            k(f's_mul_i32 s{dst}, s{src}, {m}')
            k(f's_lshr_b32 s{dst}, s{dst}, {sh}')
            return
    raise Exception('no magic')

VL = 0; VT = 2; VA = 4; VACC = 16

def gemm_role(k, g, epilogue, cons_pre=None, npre=2, custom_consumer=None):
    ll, lb = k.newlabel(g.name + '_loader'), k.newlabel(g.name + '_loaderB')
    k(f's_cmp_ge_u32 s{S_WAVE}, 4')
    k(f's_cbranch_scc1 {ll}')
    k(f's_and_b32 s{S_WB}, s{S_WAVE}, {g.WB-1}')
    k(f's_lshr_b32 s{S_WA}, s{S_WAVE}, {g.WB.bit_length()-1}')
    VF = VACC + g.ma*g.nb*4
    g.VF = VF
    g.VX = VF + 2*(g.ma+g.nb)*4
    if custom_consumer:
        custom_consumer(k, g)
    else:
        consumer_body(k, g, VL, VACC, VF, VA, VT, pre_hook=cons_pre)
    epilogue(k, g)
    k('s_endpgm')
    k.label(ll)
    k(f's_and_b32 s{S_W2}, s{S_WAVE}, 1')
    k(f's_cmp_ge_u32 s{S_WAVE}, 6')
    k(f's_cbranch_scc1 {lb}')
    loader_body(k, g, g.A, VL, 1, VT, npre=npre)
    k('s_endpgm')
    k.label(lb)
    loader_body(k, g, g.B, VL, 1, VT, npre=npre)
    k('s_endpgm')

def acc(g, a, b): return VACC + (a*g.nb + b)*4

def epi_frag16(rbtot, s_kb0, s_rb0, rowperm=False, extra_off=None):
    def f(k, g):
        npair = (g.ma + 1) // 2
        k(f's_mul_i32 s{S_T0}, s{S_WA}, {g.ma//2}')
        k(f's_add_u32 s{S_T0}, s{S_T0}, s{s_kb0}')
        k(f's_mul_i32 s{S_T0}, s{S_T0}, {rbtot}')
        k(f's_mul_i32 s{S_T1}, s{S_WB}, {g.nb}')
        k(f's_add_u32 s{S_T0}, s{S_T0}, s{S_T1}')
        k(f's_add_u32 s{S_T0}, s{S_T0}, s{s_rb0}')
        k(f's_lshl_b32 s{S_OBASE}, s{S_T0}, 10')
        if extra_off is not None:
            k(f's_add_u32 s{S_OBASE}, s{S_OBASE}, s{extra_off}')
        if rowperm:
            assert g.nb % 2 == 0
            k(f'v_bfe_u32 v{VT}, v{VL}, 2, 1')
            k(f'v_lshlrev_b32 v1, 10, v{VT}')
            k(f'v_bfe_u32 v{VT}, v{VL}, 3, 1')
            k(f'v_lshl_add_u32 v1, v{VT}, 6, v1')
            k(f'v_and_b32 v{VT}, 0x33, v{VL}')
            k(f'v_lshl_add_u32 v1, v{VT}, 4, v1')
        else:
            k(f'v_lshlrev_b32 v1, 4, v{VL}')
        k('s_nop 7')
        t = g.VF
        for ap in range(npair):
            for b in range(g.nb):
                c0 = acc(g, 2*ap, b)
                k(f'v_cvt_pk_bf16_f32 v{t}, v{c0}, v{c0+1}')
                k(f'v_cvt_pk_bf16_f32 v{t+1}, v{c0+2}, v{c0+3}')
                if 2*ap+1 < g.ma:
                    c1 = acc(g, 2*ap+1, b)
                    k(f'v_cvt_pk_bf16_f32 v{t+2}, v{c1}, v{c1+1}')
                    k(f'v_cvt_pk_bf16_f32 v{t+3}, v{c1+2}, v{c1+3}')
                else:
                    k(f'v_mov_b32 v{t+2}, 0')
                    k(f'v_mov_b32 v{t+3}, 0')
                off = (b & ~1)*1024 + (b & 1)*128 if rowperm else b*1024
                hi, lo = off // 4096 * 4096, off % 4096
                if rowperm and lo + 2048 > 4096: pass
                k(f's_add_u32 s{S_T0}, s{S_OBASE}, {ap*rbtot*1024 + hi}')
                k(f'buffer_store_dwordx4 {vr(t,4)}, v1, {sr(SRD_O,4)}, s{S_T0} offen offset:{lo}{ST}')
                t += 4
        g.vmax = max(g.VX, t)
    return f

def kernel_A(k):
    name = 'pa_kernel'
    prologue(k, name, 256)
    k('s_and_b32 s66, s64, 1')
    k('s_lshr_b32 s67, s64, 1')
    k('s_sub_u32 s68, 5, s66')
    k('s_cmp_lt_u32 s67, 2')
    k('s_cselect_b32 s69, 5, 4')
    k('s_mul_i32 s70, s68, s69')
    k('s_cmp_ge_u32 s65, s70')
    k('s_cbranch_scc1 pa_aux')
    div_const(k, 71, 65, 5, 31)
    k('s_lshr_b32 s72, s65, 2')
    k('s_cmp_eq_u32 s66, 0')
    k('s_cselect_b32 s71, s71, s72')
    k('s_mul_i32 s72, s71, s68')
    k('s_sub_u32 s72, s65, s72')
    k('s_mul_i32 s73, s66, 5')
    k('s_add_u32 s72, s72, s73')
    k('s_mul_i32 s73, s67, 5')
    k('s_cmp_eq_u32 s67, 3')
    k('s_cselect_b32 s74, 1, 0')
    k('s_sub_u32 s73, s73, s74')
    k('s_add_u32 s71, s71, s73')
    k(f's_mul_i32 s{S_ABASE}, s72, {128*6912}')
    k(f's_mul_i32 s{S_BBASE}, s71, {64*6912}')
    k(f's_add_u32 s{S_BBASE}, s{S_BBASE}, {D*2}')
    k('s_lshl_b32 s75, s72, 2')
    k('s_lshl_b32 s76, s71, 2')
    k('s_waitcnt lgkmcnt(0)')
    make_srd(k, SRD_A, P_WQKV, D*3*D*2)
    ws_srd(k, SRD_O, 'WQK')
    A = Opnd('row', 8, SRD_A, S_ABASE, stride=6912, perm=True)
    B = Opnd('row', 4, SRD_A, S_BBASE, stride=6912, perm=True)
    g = Gemm('wqk', A, B, 2, 2, 18, 6)
    gemm_role(k, g, epi_frag16(72, 75, 76), npre=6)
    vmax = g.vmax
    k.label('pa_aux')
    spare = [7, 12, 7, 12, 12, 16, 12, 16]
    pre = [sum(spare[:i]) for i in range(8)]
    lo = sum(pre[i] << (8*i) for i in range(4)); hi = sum(pre[i+4] << (8*i) for i in range(4))
    k(f's_mov_b32 s72, {lo}')
    k(f's_mov_b32 s73, {hi}')
    k('s_lshl_b32 s74, s64, 3')
    k('s_lshr_b64 s[72:73], s[72:73], s74')
    k('s_and_b32 s72, s72, 0xff')
    k('s_sub_u32 s73, s65, s70')
    k('s_add_u32 s72, s72, s73')
    k('s_cmp_ge_u32 s72, 90')
    k(f's_cbranch_scc1 {name}_end')
    k('s_lshl_b32 s73, s72, 1')
    k('s_sub_u32 s73, s73, 72')
    k('s_cmp_lt_u32 s72, 72')
    k('s_cselect_b32 s73, s72, s73')
    k('s_cselect_b32 s74, 1, 2')
    k('s_waitcnt lgkmcnt(0)')
    make_srd(k, SRD_A, P_WMOD, D*6*D*2)
    make_srd(k, SRD_B, P_C, 2*D*2)
    ws_srd(k, SRD_O, 'MOD')
    make_srd(k, SRD_X, P_X, NR*D*2)
    make_srd(k, SRD_Y, P_DBG, 256)
    L_SILU, L_RED, L_STAT, L_MOD = 0, 9216, 11264, 12288
    VW = 16
    VXD = 52
    VS = 88
    VAC = 106
    VU = 122
    VC = 130
    k(f's_lshl_b32 s{S_T0}, s{S_WAVE}, 10')
    k(f'v_lshl_add_u32 v3, v{VL}, 4, s{S_T0}')
    k(f'buffer_load_dwordx4 {vr(VC,4)}, v3, {sr(SRD_B,4)}, 0 offen')
    k(f's_lshl_b32 s{S_T0}, s{S_WAVE}, 4')
    k(f'v_lshrrev_b32 v4, 2, v{VL}')
    k(f'v_add_u32 v4, s{S_T0}, v4')
    k(f'v_and_b32 v5, 3, v{VL}')
    k(f'v_lshlrev_b32 v5, 4, v5')
    k(f's_mov_b32 s{S_T0}, 13824')
    k(f'v_mad_u32_u24 v5, v4, s{S_T0}, v5')
    k(f'v_lshlrev_b32 v4, 2, v4')
    def issue_w():
        k(f's_lshl_b32 s{S_G}, s73, 6')
        for i in range(9):
            if i: k(f's_add_u32 s{S_G}, s{S_G}, {128*13824}')
            k(f'buffer_load_dwordx4 {vr(VW+4*i,4)}, v5, {sr(SRD_A,4)}, s{S_G} offen')
    issue_w()
    k(f'v_and_b32 v6, 15, v{VL}')
    k(f's_mov_b32 s{S_T0}, 2304')
    k(f'v_mul_u32_u24 v6, s{S_T0}, v6')
    k(f'v_lshrrev_b32 v7, 4, v{VL}')
    k(f'v_lshl_add_u32 v6, v7, 4, v6')
    k(f's_lshr_b32 s75, s{S_WAVE}, 2')
    k('s_lshl_b32 s76, s72, 1')
    k('s_add_u32 s75, s75, s76')
    k('s_min_u32 s75, s75, 127')
    k(f's_and_b32 s76, s{S_WAVE}, 3')
    k(f's_mul_i32 s77, s75, {16*2304}')
    k('s_mul_i32 s78, s76, 576')
    k('s_add_u32 s77, s77, s78')
    for i in range(9):
        k(f'buffer_load_dwordx4 {vr(VXD+4*i,4)}, v6, {sr(SRD_X,4)}, s77 offen offset:{64*i}')
    k('s_waitcnt vmcnt(18)')
    for j in range(4):
        k(f'v_lshlrev_b32 v{VC+4+2*j}, 16, v{VC+j}')
        k(f'v_and_b32 v{VC+5+2*j}, 0xffff0000, v{VC+j}')
    for j in range(8):
        k(f'v_mul_f32 v{VU+j}, {f32(-math.log2(math.e))}, v{VC+4+j}')
    for j in range(8):
        k(f'v_exp_f32 v{VU+j}, v{VU+j}')
    for j in range(8):
        k(f'v_add_f32 v{VU+j}, 1.0, v{VU+j}')
    for j in range(8):
        k(f'v_rcp_f32 v{VU+j}, v{VU+j}')
    for j in range(8):
        k(f'v_mul_f32 v{VC+4+j}, v{VU+j}, v{VC+4+j}')
    k('v_lshlrev_b32 v8, 1, v3')
    k('v_cmp_gt_u32 vcc, 9216, v8')
    k('s_and_saveexec_b64 s[80:81], vcc')
    k(f'ds_write_b128 v8, {vr(VC+4,4)} offset:{L_SILU}')
    k(f'ds_write_b128 v8, {vr(VC+8,4)} offset:{L_SILU+16}')
    k('s_mov_b64 exec, s[80:81]')
    k('s_waitcnt lgkmcnt(0)')
    k('s_barrier')
    for i in range(9):
        k(f'ds_read2st64_b32 {vr(VS+2*i,2)}, v4 offset0:{2*i} offset1:{2*i+18}')
    k.label('pa_pass')
    for j in range(16):
        k(f'v_mov_b32 v{VAC+j}, 0')
    k('s_waitcnt lgkmcnt(0)')
    k('s_cmp_eq_u32 s74, 3')
    k('s_cbranch_scc0 pa_p1')
    k('s_waitcnt vmcnt(0)')
    k.label('pa_p1')
    for i in range(9):
        k(f's_waitcnt vmcnt({9 + 8 - i})')
        for j in range(4):
            k(f'v_lshlrev_b32 v{VU+2*j}, 16, v{VW+4*i+j}')
            k(f'v_and_b32 v{VU+2*j+1}, 0xffff0000, v{VW+4*i+j}')
        for j in range(4):
            k(f'v_pk_fma_f32 {vr(VAC+4*j,2)}, {vr(VS+2*i,2)}, {vr(VU+2*j,2)}, {vr(VAC+4*j,2)} op_sel:[0,0,0] op_sel_hi:[1,0,1]')
            k(f'v_pk_fma_f32 {vr(VAC+4*j+2,2)}, {vr(VS+2*i,2)}, {vr(VU+2*j,2)}, {vr(VAC+4*j+2,2)} op_sel:[0,1,0] op_sel_hi:[1,1,1]')
    k('s_nop 1')
    for j in range(8):
        k(f'v_permlane32_swap_b32 v{VAC+j}, v{VAC+8+j}')
    k('s_nop 1')
    for j in range(8):
        k(f'v_add_f32 v{VAC+j}, v{VAC+j}, v{VAC+8+j}')
    k('s_nop 1')
    for j in range(4):
        k(f'v_permlane16_swap_b32 v{VAC+j}, v{VAC+4+j}')
    k('s_nop 1')
    for j in range(4):
        k(f'v_add_f32 v{VAC+j}, v{VAC+j}, v{VAC+4+j}')
    k('s_nop 1')
    for j in range(4):
        k(f'v_add_f32_dpp v{VAC+4+j}, v{VAC+j}, v{VAC+j} row_ror:4 row_mask:0xf bank_mask:0xf')
    k('s_nop 1')
    for j in range(4):
        k(f'v_add_f32_dpp v{VAC+j}, v{VAC+4+j}, v{VAC+4+j} row_ror:8 row_mask:0xf bank_mask:0xf')
    k(f'v_lshrrev_b32 v8, 4, v{VL}')
    k(f'v_and_b32 v9, 3, v{VL}')
    k('v_lshl_add_u32 v8, v8, 2, v9')
    k(f's_lshl_b32 s{S_T0}, s{S_WAVE}, 8')
    k(f'v_lshl_add_u32 v8, v8, 4, s{S_T0}')
    k(f'ds_write_b128 v8, {vr(VAC,4)} offset:{L_RED}')
    k('s_waitcnt lgkmcnt(0)')
    k('s_barrier')
    k(f's_cmp_lg_u32 s{S_WAVE}, 0')
    k('s_cbranch_scc1 pa_nored')
    k(f'v_lshlrev_b32 v8, 2, v{VL}')
    for w in range(8):
        k(f'ds_read_b32 v{VU+w}, v8 offset:{L_RED + 256*w}')
    k(f'v_bfe_u32 v9, v{VL}, 2, 2')
    k('v_lshlrev_b32 v9, 3, v9')
    k(f'v_lshrrev_b32 v10, 4, v{VL}')
    k('v_lshl_add_u32 v9, v10, 1, v9')
    k(f'v_bfe_u32 v10, v{VL}, 1, 1')
    k('v_add_u32 v9, v9, v10')
    k('v_lshlrev_b32 v9, 2, v9')
    k(f'v_and_b32 v10, 1, v{VL}')
    k(f's_mov_b32 s{S_T0}, 13824')
    k(f'v_mad_u32_u24 v9, v10, s{S_T0}, v9')
    k(f's_lshl_b32 s{S_T1}, s73, 7')
    k('s_cmp_ge_u32 s73, 36')
    k(f's_cselect_b32 s{S_T2}, 1.0, 0')
    k('s_cmp_ge_u32 s73, 72')
    k(f's_cselect_b32 s{S_T2}, 0, s{S_T2}')
    k('s_waitcnt lgkmcnt(0)')
    k(f'v_add_f32 v{VU}, v{VU}, v{VU+1}\nv_add_f32 v{VU+2}, v{VU+2}, v{VU+3}\nv_add_f32 v{VU+4}, v{VU+4}, v{VU+5}\nv_add_f32 v{VU+6}, v{VU+6}, v{VU+7}')
    k(f'v_add_f32 v{VU}, v{VU}, v{VU+2}\nv_add_f32 v{VU+4}, v{VU+4}, v{VU+6}\nv_add_f32 v{VU}, v{VU}, v{VU+4}')
    k(f'v_add_f32 v{VU}, s{S_T2}, v{VU}')
    k(f'buffer_store_dword v{VU}, v9, {sr(SRD_O,4)}, s{S_T1} offen sc1')
    k('s_cmp_ge_u32 s72, 72')
    k('s_cbranch_scc1 pa_nored')
    k('s_waitcnt vmcnt(0)')
    k('v_mov_b32 v9, s72')
    k('v_mov_b32 v10, 1')
    k(f'v_cmp_eq_u32 vcc, 0, v{VL}')
    k('s_and_saveexec_b64 s[80:81], vcc')
    k(f'buffer_store_byte v10, v9, {sr(SRD_Y,4)}, 0 offen sc1')
    k('s_mov_b64 exec, s[80:81]')
    k.label('pa_nored')
    k('s_cmp_eq_u32 s74, 2')
    k('s_cbranch_scc0 pa_onepass')
    k('s_mov_b32 s74, 3')
    k('s_add_u32 s73, s73, 1')
    k('s_barrier')
    issue_w()
    k('s_branch pa_pass')
    k.label('pa_onepass')
    k('s_cmp_ge_u32 s72, 64')
    k(f's_cbranch_scc1 {name}_end')
    VN = 136
    VM = 16
    k('s_waitcnt vmcnt(0)')
    k('v_mov_b32 v10, 0\nv_mov_b32 v11, 0\nv_mov_b32 v12, 0\nv_mov_b32 v13, 0')
    k(f's_mov_b32 s{S_T0}, 0x3f803f80')
    for j in range(36):
        k(f'v_dot2_f32_bf16 v{10+(j&1)}, v{VXD+j}, s{S_T0}, v{10+(j&1)}')
        k(f'v_dot2_f32_bf16 v{12+(j&1)}, v{VXD+j}, v{VXD+j}, v{12+(j&1)}')
    k('s_nop 3')
    k('v_add_f32 v10, v10, v11\nv_add_f32 v12, v12, v13')
    k('s_nop 1')
    k('v_permlane32_swap_b32 v10, v12')
    k('s_nop 1')
    k('v_add_f32 v10, v10, v12')
    k('v_mov_b32 v11, v10')
    k('s_nop 1')
    k('v_permlane16_swap_b32 v10, v11')
    k('s_nop 1')
    k('v_add_f32 v10, v10, v11')
    k(f'v_lshrrev_b32 v8, 5, v{VL}')
    k('v_lshlrev_b32 v8, 6, v8')
    k(f'v_and_b32 v9, 15, v{VL}')
    k('v_lshl_add_u32 v8, v9, 2, v8')
    k(f's_lshl_b32 s{S_T0}, s{S_WAVE}, 7')
    k(f'v_add_u32 v8, s{S_T0}, v8')
    k(f'ds_write_b32 v8, v10 offset:{L_STAT}')
    k('s_waitcnt lgkmcnt(0)')
    k('s_barrier')
    k(f's_lshr_b32 s{S_T0}, s{S_WAVE}, 2')
    k(f's_lshl_b32 s{S_T0}, s{S_T0}, 9')
    k(f'v_lshl_add_u32 v8, v9, 2, s{S_T0}')
    for q in range(4):
        k(f'ds_read2_b32 {vr(VU+2*q,2)}, v8 offset0:{(L_STAT-11264)//4 + q*32} offset1:{(L_STAT-11264)//4 + q*32 + 16}'.replace('v8 ', 'v14 ') if False else
          f'ds_read_b32 v{VU+2*q}, v8 offset:{L_STAT + q*128}\nds_read_b32 v{VU+2*q+1}, v8 offset:{L_STAT + q*128 + 64}')
    k('s_waitcnt lgkmcnt(0)')
    k(f'v_add_f32 v10, v{VU}, v{VU+2}\nv_add_f32 v11, v{VU+4}, v{VU+6}\nv_add_f32 v12, v{VU+1}, v{VU+3}\nv_add_f32 v13, v{VU+5}, v{VU+7}')
    k('v_add_f32 v10, v10, v11\nv_add_f32 v12, v12, v13')
    k(f'v_mul_f32 v10, {f32(1.0/D)}, v10')
    k(f'v_mul_f32 v12, {f32(1.0/D)}, v12')
    k('v_fma_f32 v12, -v10, v10, v12')
    k('v_max_f32 v12, 0, v12')
    k(f'v_add_f32 v12, {f32(1e-5)}, v12')
    k('v_rsq_f32 v12, v12')
    k('s_nop 0')
    k('v_mul_f32 v10, v10, v12')
    k('v_sub_f32 v10, 0, v10')
    for j in range(36):
        k(f'v_lshlrev_b32 v{VN+2*j}, 16, v{VXD+j}')
        k(f'v_and_b32 v{VN+2*j+1}, 0xffff0000, v{VXD+j}')
        k(f'v_fma_f32 v{VN+2*j}, v{VN+2*j}, v12, v10')
        k(f'v_fma_f32 v{VN+2*j+1}, v{VN+2*j+1}, v12, v10')
    k(f's_cmp_lg_u32 s{S_WAVE}, 0')
    k('s_cbranch_scc1 pa_hwait')
    k(f'v_lshlrev_b32 v8, 2, v{VL}')
    k(f'v_cmp_gt_u32 s[82:83], 18, v{VL}')
    k(f's_mov_b32 s{S_CNT}, 0x40000')
    k(f's_mov_b32 s{S_T2}, 0x01010101')
    k.label('pa_poll')
    k(f'buffer_load_dword v9, v8, {sr(SRD_Y,4)}, 0 offen sc1')
    k('s_waitcnt vmcnt(0)')
    k(f'v_cmp_ne_u32 vcc, s{S_T2}, v9')
    k('s_nop 1')
    k('s_and_b64 s[84:85], vcc, s[82:83]')
    k('s_cbranch_scc0 pa_polled')
    k('s_sleep 2')
    k(f's_sub_u32 s{S_CNT}, s{S_CNT}, 1')
    k(f's_cmp_lg_u32 s{S_CNT}, 0')
    k('s_cbranch_scc1 pa_poll')
    k.label('pa_polled')
    k(f'v_lshlrev_b32 v8, 4, v{VL}')
    k('s_lshr_b32 s79, s72, 5')
    k('s_mul_i32 s79, s79, 13824')
    for c in range(9):
        if c % 4 == 0:
            k(f's_mov_b32 m0, {L_MOD + c*1024}')
            k(f's_add_u32 s{S_T0}, s79, {c*1024}')
        k(f'buffer_load_dwordx4 v8, {sr(SRD_O,4)}, s{S_T0} offen offset:{(c%4)*1024} sc1 lds')
    k('s_waitcnt vmcnt(0)')
    k.label('pa_hwait')
    k('s_barrier')
    ws_srd(k, SRD_A, 'H')
    k(f'v_lshrrev_b32 v8, 4, v{VL}')
    k('v_lshlrev_b32 v8, 5, v8')
    k(f's_mul_i32 s{S_T0}, s76, 1152')
    k(f'v_add_u32 v8, s{S_T0}, v8')
    k(f'v_lshlrev_b32 v9, 4, v{VL}')
    k(f's_mul_i32 s{S_G}, s76, {9*128}')
    k(f's_add_u32 s{S_G}, s{S_G}, s75')
    k(f's_lshl_b32 s{S_G}, s{S_G}, 10')
    def rd(i):
        m = VM + (i & 1)*16
        return [f'ds_read_b128 {vr(m,4)}, v8 offset:{L_MOD + i*128}', f'ds_read_b128 {vr(m+4,4)}, v8 offset:{L_MOD + i*128 + 16}',
                f'ds_read_b128 {vr(m+8,4)}, v8 offset:{L_MOD + 4608 + i*128}', f'ds_read_b128 {vr(m+12,4)}, v8 offset:{L_MOD + 4608 + i*128 + 16}']
    for r in rd(0): k(r)
    for i in range(9):
        if i < 8:
            for r in rd(i+1): k(r)
            k('s_waitcnt lgkmcnt(4)')
        else:
            k('s_waitcnt lgkmcnt(0)')
        m = VM + (i & 1)*16
        for j in range(8):
            k(f'v_fma_f32 v{VN+8*i+j}, v{VN+8*i+j}, v{m+8+j}, v{m+j}')
        for j in range(4):
            k(f'v_cvt_pk_bf16_f32 v{VXD+4*i+j}, v{VN+8*i+2*j}, v{VN+8*i+2*j+1}')
        k(f'buffer_store_dwordx4 {vr(VXD+4*i,4)}, v9, {sr(SRD_A,4)}, s{S_G} offen{ST}')
        if i < 8: k(f's_add_u32 s{S_G}, s{S_G}, {128*1024}')
    k.label(f'{name}_end')
    k('s_endpgm')
    return name, 256, 512, g.lds_bytes, max(vmax, VN+72)

def kernel_B(k):
    name = 'pb_kernel'
    prologue(k, name, 256)
    k('s_lshl_b32 s66, s64, 5')
    k('s_add_u32 s66, s66, s65')
    k('s_cmp_ge_u32 s66, 144')
    k('s_cbranch_scc1 pb_wvo')
    div_const(k, 67, 66, 9, 255)
    k('s_mul_i32 s68, s67, 9')
    k('s_sub_u32 s68, s66, s68')
    k(f's_lshl_b32 s{S_ABASE}, s68, 13')
    k(f's_lshl_b32 s{S_BBASE}, s67, 13')
    k('s_lshl_b32 s75, s68, 2')
    k('s_lshl_b32 s76, s67, 3')
    k('s_waitcnt lgkmcnt(0)')
    ws_srd(k, SRD_A, 'WQK'); ws_srd(k, SRD_B, 'H'); ws_srd(k, SRD_O, 'T')
    g1 = Gemm('tt', Opnd('frag', 8, SRD_A, S_ABASE, rbtot=72), Opnd('frag', 8, SRD_B, S_BBASE, rbtot=128), 2, 2, 18, 4)
    gemm_role(k, g1, epi_frag16(128, 75, 76))
    k.label('pb_wvo')
    k('s_cmp_ge_u32 s66, 225')
    k('s_cbranch_scc1 pb_kvc')
    k('s_sub_u32 s66, s66, 144')
    div_const(k, 67, 66, 9, 255)
    k('s_mul_i32 s68, s67, 9')
    k('s_sub_u32 s68, s66, s68')
    k(f's_mul_i32 s{S_ABASE}, s68, {128*6912}')
    k(f's_add_u32 s{S_ABASE}, s{S_ABASE}, {2*D*2}')
    k(f's_lshl_b32 s{S_BBASE}, s67, 8')
    k('s_lshl_b32 s75, s68, 2')
    k('s_lshl_b32 s76, s67, 3')
    k('s_waitcnt lgkmcnt(0)')
    make_srd(k, SRD_A, P_WQKV, D*3*D*2); make_srd(k, SRD_B, P_WO, D*D*2); ws_srd(k, SRD_O, 'WVO')
    g2 = Gemm('wvo', Opnd('row', 8, SRD_A, S_ABASE, stride=6912, perm=True), Opnd('col', 8, SRD_B, S_BBASE, stride=2304), 2, 2, 18, 4)
    gemm_role(k, g2, epi_frag16(72, 75, 76, rowperm=True), npre=4)
    k.label('pb_kvc')
    k('s_cmp_ge_u32 s66, 249')
    k(f's_cbranch_scc1 {name}_end')
    k('s_sub_u32 s66, s66, 225')
    k('s_and_b32 s67, s66, 1')
    k('s_lshr_b32 s68, s66, 1')
    k(f's_mul_i32 s{S_ABASE}, s68, 384')
    k(f's_mul_i32 s{S_BBASE}, s67, {77*2304}')
    k(f's_add_u32 s69, s{S_BBASE}, {77*2304}')
    k('s_waitcnt lgkmcnt(0)')
    make_srd(k, SRD_A, P_WKVC, D*2*D*2); make_srd(k, SRD_B, P_Y, 's69'); ws_srd(k, SRD_O, 'KVC')
    g3 = Gemm('kvc', Opnd('col', 12, SRD_A, S_ABASE, stride=4608), Opnd('row', 5, SRD_B, S_BBASE, stride=2304), 4, 1, 18, 4)
    def epi_kvc(k, g):
        k(f'v_and_b32 v1, 15, v{VL}')
        k('v_lshlrev_b32 v1, 4, v1')
        k(f'v_lshrrev_b32 v{VT}, 5, v{VL}')
        k(f'v_lshl_add_u32 v1, v{VT}, 8, v1')
        k(f'v_bfe_u32 v{VT}, v{VL}, 4, 1')
        k(f'v_lshl_add_u32 v1, v{VT}, 3, v1')
        k('s_mul_i32 s70, s68, 12')
        k(f's_mul_i32 s71, s{S_WA}, 3')
        k('s_add_u32 s70, s70, s71')
        k('s_mul_i32 s72, s67, 5120')
        k('s_nop 7')
        t = g.VF
        for i in range(3):
            k(f's_add_u32 s71, s70, {i}')
            k(f's_lshr_b32 s{S_T0}, s71, 1')
            k(f's_mul_i32 s{S_T0}, s{S_T0}, 10240')
            k('s_and_b32 s71, s71, 1')
            k('s_lshl_b32 s71, s71, 9')
            k(f's_add_u32 s{S_T0}, s{S_T0}, s71')
            k(f's_add_u32 s{S_T0}, s{S_T0}, s72')
            k(f's_add_u32 s{S_T1}, s{S_T0}, 4096')
            for b in range(5):
                c0 = acc(g, i, b)
                k(f'v_cvt_pk_bf16_f32 v{t}, v{c0}, v{c0+1}')
                k(f'v_cvt_pk_bf16_f32 v{t+1}, v{c0+2}, v{c0+3}')
                k(f'buffer_store_dwordx2 {vr(t,2)}, v1, {sr(SRD_O,4)}, s{S_T0 if b < 4 else S_T1} offen offset:{(b%4)*1024}{ST}')
                t += 2
        g.vmax = g.VX
    gemm_role(k, g3, epi_kvc, npre=4)
    k.label(f'{name}_end')
    k('s_endpgm')
    return name, 256, 512, max(g1.lds_bytes, g2.lds_bytes, g3.lds_bytes), max(g1.vmax, g2.vmax, g3.vmax)

def xlane_reduce(k, op, v, t):
    k(f'v_mov_b32 v{t}, v{v}')
    k('s_nop 1')
    k(f'v_permlane32_swap_b32 v{v}, v{t}')
    k('s_nop 1')
    k(f'{op} v{v}, v{v}, v{t}')
    k(f'v_mov_b32 v{t}, v{v}')
    k('s_nop 1')
    k(f'v_permlane16_swap_b32 v{v}, v{t}')
    k('s_nop 1')
    k(f'{op} v{v}, v{v}, v{t}')

def kernel_C(k):
    name = 'pc_kernel'
    prologue(k, name, 256)
    k('s_cmp_ge_u32 s64, 4')
    k('s_cbranch_scc1 pc_v')
    k('s_lshr_b32 s66, s64, 1')
    k('s_and_b32 s67, s64, 1')
    k('s_lshl_b32 s67, s67, 2')
    k('s_lshr_b32 s68, s65, 3')
    k('s_add_u32 s67, s67, s68')
    k('s_and_b32 s68, s65, 7')
    k('s_lshl_b32 s69, s66, 3')
    k('s_add_u32 s70, s69, s68')
    k(f's_lshl_b32 s{S_ABASE}, s70, 13')
    k('s_add_u32 s70, s69, s67')
    k(f's_lshl_b32 s{S_BBASE}, s70, 13')
    k('s_lshl_b32 s75, s68, 2')
    k('s_lshl_b32 s76, s67, 3')
    k('s_lshl_b32 s77, s66, 21')
    k('s_waitcnt lgkmcnt(0)')
    ws_srd(k, SRD_A, 'H'); ws_srd(k, SRD_B, 'T'); ws_srd(k, SRD_O, 'P'); ws_srd(k, SRD_X, 'ST')
    g1 = Gemm('ss', Opnd('frag', 8, SRD_A, S_ABASE, rbtot=128), Opnd('frag', 8, SRD_B, S_BBASE, rbtot=128), 1, 4, 18, 4)
    def epi_s(k, g):
        k('s_nop 7')
        k(f's_mov_b32 s78, {f32(CSC)}')
        VM = g.VX
        for b in range(2):
            regs = [acc(g, a, b) + r for a in range(8) for r in range(4)]
            m = VM + b
            k(f'v_max3_f32 v{m}, v{regs[0]}, v{regs[1]}, v{regs[2]}')
            k(f'v_max3_f32 v{VM+4}, v{regs[3]}, v{regs[4]}, v{regs[5]}')
            i = 6
            tog = 0
            while i < 32:
                d = m if tog == 0 else VM+4
                k(f'v_max3_f32 v{d}, v{d}, v{regs[i]}, v{regs[i+1]}')
                i += 2; tog ^= 1
            k(f'v_max_f32 v{m}, v{m}, v{VM+4}')
            xlane_reduce(k, 'v_max_f32', m, VM+4)
            k(f'v_mul_f32 v{m}, s78, v{m}')
            for r in regs: k(f'v_fma_f32 v{r}, v{r}, s78, -v{m}')
            for r in regs: k(f'v_exp_f32 v{r}, v{r}')
            l = VM + 2 + b
            k(f'v_add_f32 v{l}, v{regs[0]}, v{regs[1]}')
            k(f'v_add_f32 v{VM+4}, v{regs[2]}, v{regs[3]}')
            for i in range(4, 32, 2):
                k(f'v_add_f32 v{l}, v{l}, v{regs[i]}')
                k(f'v_add_f32 v{VM+4}, v{VM+4}, v{regs[i+1]}')
            k(f'v_add_f32 v{l}, v{l}, v{VM+4}')
            xlane_reduce(k, 'v_add_f32', l, VM+4)
        epi_frag16(64, 75, 76, extra_off=77)(k, g)
        k(f'v_and_b32 v{VT}, 15, v{VL}')
        k(f'v_lshlrev_b32 v{VT}, 6, v{VT}')
        k(f's_lshl_b32 s{S_T0}, s70, 13')
        k(f's_lshl_b32 s{S_T1}, s{S_WB}, 11')
        k(f's_add_u32 s{S_T0}, s{S_T0}, s{S_T1}')
        k(f's_lshl_b32 s{S_T1}, s68, 2')
        k(f's_add_u32 s{S_T0}, s{S_T0}, s{S_T1}')
        k(f'v_cmp_gt_u32 vcc, 16, v{VL}')
        k('s_and_saveexec_b64 s[80:81], vcc')
        for b in range(2):
            k(f'buffer_store_dword v{VM+b}, v{VT}, {sr(SRD_X,4)}, s{S_T0} offen offset:{b*1024}{ST}')
            k(f'buffer_store_dword v{VM+2+b}, v{VT}, {sr(SRD_X,4)}, s{S_T0} offen offset:{b*1024+32}{ST}')
        g.vmax = max(g.vmax, VM+5)
    gemm_role(k, g1, epi_s)
    k.label('pc_v')
    k('s_sub_u32 s66, s64, 4')
    k('s_lshl_b32 s66, s66, 2')
    k('s_lshr_b32 s67, s65, 3')
    k('s_add_u32 s66, s66, s67')
    k('s_and_b32 s67, s65, 7')
    k(f's_lshl_b32 s{S_ABASE}, s66, 13')
    k(f's_mul_i32 s{S_BBASE}, s67, {9*1024}')
    k('s_lshl_b32 s75, s66, 2')
    k('s_mul_i32 s76, s67, 9')
    k('s_waitcnt lgkmcnt(0)')
    ws_srd(k, SRD_A, 'H'); ws_srd(k, SRD_B, 'WVO'); ws_srd(k, SRD_O, 'VT')
    g2 = Gemm('vv', Opnd('frag', 8, SRD_A, S_ABASE, rbtot=128), Opnd('frag', 9, SRD_B, S_BBASE, rbtot=72), 4, 1, 18, 4)
    gemm_role(k, g2, epi_frag16(72, 75, 76))
    k.label(f'{name}_end')
    k('s_endpgm')
    return name, 256, 512, max(g1.lds_bytes, g2.lds_bytes), max(g1.vmax, g2.vmax)

def kernel_D(k):
    name = 'pd_kernel'
    prologue(k, name, 256)
    k('s_cmp_ge_u32 s65, 24')
    k('s_cbranch_scc1 pd_aux')
    k('s_lshr_b32 s66, s64, 2')
    k('s_and_b32 s67, s64, 1')
    k('s_lshl_b32 s67, s67, 2')
    k('s_and_b32 s68, s65, 3')
    k('s_add_u32 s67, s67, s68')
    k('s_bfe_u32 s68, s64, 0x10001')
    k('s_mul_i32 s68, s68, 6')
    k('s_lshr_b32 s69, s65, 2')
    k('s_add_u32 s68, s68, s69')
    k(f's_mul_i32 s{S_ABASE}, s66, {32*72*1024}')
    k('s_mul_i32 s69, s68, 6144')
    k(f's_add_u32 s{S_ABASE}, s{S_ABASE}, s69')
    k(f's_lshl_b32 s{S_BBASE}, s66, 21')
    k('s_lshl_b32 s69, s67, 13')
    k(f's_add_u32 s{S_BBASE}, s{S_BBASE}, s69')
    k('s_lshl_b32 s70, s66, 3')
    k('s_add_u32 s70, s70, s67')
    k('s_mul_i32 s75, s68, 3')
    k('s_lshl_b32 s76, s70, 3')
    k('s_waitcnt lgkmcnt(0)')
    ws_srd(k, SRD_A, 'VT'); ws_srd(k, SRD_B, 'P'); ws_srd(k, SRD_O, 'X1')
    LT = 4096
    g1 = Gemm('pv', Opnd('frag', 6, SRD_A, S_ABASE, rbtot=72), Opnd('frag', 8, SRD_B, S_BBASE, rbtot=64), 1, 4, 16, 5, lds0=4*LT)
    def pv_consumer(k, g):
        ma, nb = 6, 2
        VF = g.VF
        VX = g.VX
        VGT = VX
        VXR = VX + 24
        VR = VX + 48
        VS_ = VF
        ws_srd(k, SRD_X, 'ST')
        k(f'v_and_b32 v{VT}, 15, v{VL}')
        k(f'v_lshlrev_b32 v1, 6, v{VT}')
        k(f's_lshl_b32 s{S_T0}, s70, 13')
        k(f's_lshl_b32 s{S_T1}, s{S_WB}, 11')
        k(f's_add_u32 s{S_T0}, s{S_T0}, s{S_T1}')
        for b in range(2):
            for q in range(4):
                k(f'buffer_load_dwordx4 {vr(VS_+16*b+4*q,4)}, v1, {sr(SRD_X,4)}, s{S_T0} offen offset:{b*1024+16*q}')
        ws_srd(k, SRD_Y, 'MOD')
        k(f'v_lshrrev_b32 v{VT+1}, 4, v{VL}')
        k(f'v_lshlrev_b32 v1, 5, v{VT+1}')
        k(f's_mul_i32 s{S_T0}, s66, 13824')
        k(f's_mul_i32 s{S_T1}, s68, 384')
        k(f's_add_u32 s{S_T0}, s{S_T0}, s{S_T1}')
        k(f's_add_u32 s{S_T0}, s{S_T0}, 9216')
        for ap in range(3):
            for h in range(2):
                k(f'buffer_load_dwordx4 {vr(VGT+8*ap+4*h,4)}, v1, {sr(SRD_Y,4)}, s{S_T0} offen offset:{ap*128+16*h}')
        make_srd(k, SRD_X, P_X, NR*D*2)
        k(f's_mov_b32 s{S_T0}, 2304')
        k(f'v_mul_u32_u24 v1, s{S_T0}, v{VT}')
        k(f'v_lshl_add_u32 v1, v{VT+1}, 4, v1')
        k(f's_lshl_b32 s{S_T0}, s70, 2')
        k(f's_add_u32 s{S_T0}, s{S_T0}, s{S_WB}')
        k(f's_mul_i32 s{S_T0}, s{S_T0}, {32*2304}')
        k(f's_mul_i32 s{S_T1}, s68, 192')
        k(f's_add_u32 s{S_T0}, s{S_T0}, s{S_T1}')
        k(f's_add_u32 s{S_T1}, s{S_T0}, {16*2304}')
        for ap in range(3):
            for b in range(2):
                k(f'buffer_load_dwordx4 {vr(VXR+(ap*2+b)*4,4)}, v1, {sr(SRD_X,4)}, s{S_T0 if b == 0 else S_T1} offen offset:{ap*64}')
        aA = cons_addr_setup(k, g, g.A, ma, S_WA, VL, VA, VT)
        aB = cons_addr_setup(k, g, g.B, nb, S_WB, VL, VA + len(aA), VT)
        addrs = aA + aB
        for i in range(ma*nb*4):
            k(f'v_mov_b32 v{VACC+i}, 0')
        k(f's_lshl_b32 s{S_T0}, s{S_WAVE}, 12')
        k(f'v_lshl_add_u32 v{VR+4}, v{VL}, 3, s{S_T0}')
        k('s_waitcnt vmcnt(12)')
        T = VF + 32
        k(f's_mov_b32 s78, {f32(-64.0)}')
        for b in range(2):
            m = VS_ + 16*b; l = m + 8
            k(f'v_max3_f32 v{T}, v{m}, v{m+1}, v{m+2}')
            k(f'v_max3_f32 v{T}, v{T}, v{m+3}, v{m+4}')
            k(f'v_max3_f32 v{T}, v{T}, v{m+5}, v{m+6}')
            k(f'v_max_f32 v{T}, v{T}, v{m+7}')
            for c in range(8):
                k(f'v_sub_f32 v{m+c}, v{m+c}, v{T}')
                k(f'v_max_f32 v{m+c}, s78, v{m+c}')
            for c in range(8):
                k(f'v_exp_f32 v{T+1+c}, v{m+c}')
            k('s_nop 0')
            k(f'v_mul_f32 v{T}, v{T+1}, v{l}')
            for c in range(1, 8):
                k(f'v_fma_f32 v{T}, v{T+1+c}, v{l+c}, v{T}')
            k(f'v_rcp_f32 v{T}, v{T}')
            k('s_nop 0')
            k(f'v_mul_f32 v{VR+2+b}, v{T}, v{T+8}')
            k(f'v_mov_b32 v{l}, 1.0')
            for c in range(1, 8):
                k(f'v_sub_f32 v{l+c}, v{m+c-1}, v{m+c}')
            for c in range(1, 8):
                k(f'v_exp_f32 v{l+c}, v{l+c}')
        k('s_nop 0')
        for c in range(8):
            k(f'ds_write2_b32 v{VR+4}, v{VS_+8+c}, v{VS_+24+c} offset0:{c*128} offset1:{c*128+1}' if c < 2 else
              f'ds_write_b32 v{VR+4}, v{VS_+8+c} offset:{c*512}\nds_write_b32 v{VR+4}, v{VS_+24+c} offset:{c*512+4}')
        k('s_waitcnt lgkmcnt(0)')
        setsz = (ma + nb) * 4
        def fa(st, a): return VF + st*setsz + 4*a
        def fb(st, b): return VF + st*setsz + 4*ma + 4*b
        def reads(s, st):
            return cons_reads(g, g.B, nb, aB, s, fb(st, 0)) + cons_reads(g, g.A, ma, aA, s, fa(st, 0))
        def mf(st):
            return [f'v_mfma_f32_16x16x32_bf16 {vr(acc(g,a,b),4)}, {vr(fa(st,a),4)}, {vr(fb(st,b),4)}, {vr(acc(g,a,b),4)}'
                    for a in range(ma) for b in range(nb)]
        def muls(i):
            a, b = divmod(i, nb)
            c = acc(g, a, b)
            return [f'v_mul_f32 v{c+r}, v{VR+b}, v{c+r}' for r in range(4)]
        adv = [f's_add_u32 s{S_SLOT}, s{S_SLOT}, {g.stage}',
               f's_cmp_eq_u32 s{S_SLOT}, {g.NS*g.stage}',
               f's_cselect_b32 s{S_DELTA}, {-(g.NS-1)*g.stage & 0xffffffff}, s{S_T3}',
               f's_cselect_b32 s{S_SLOT}, 0, s{S_SLOT}'] + [f'v_add_u32 v{a}, s{S_DELTA}, v{a}' for a in addrs]
        k(f's_mov_b32 s{S_SLOT}, 0')
        k(f's_mov_b32 s{S_CNT}, 8')
        k(f's_mov_b32 s{S_T3}, {g.stage}')
        k('s_barrier')
        for r in reads(0, 0): k(r)
        k(f'ds_read_b64 {vr(VR,2)}, v{VR+4}')
        k('s_waitcnt lgkmcnt(0)')
        lp = k.newlabel('pv_mm'); le = k.newlabel('pv_last')
        k.label(lp)
        M = mf(0); fill = reads(1, 1) + adv
        for x in muls(0): k(x)
        for i in range(12):
            if i + 1 < 12:
                for x in muls(i+1): k(x)
            else:
                k('s_nop 1')
            k(M[i])
            if fill: k(fill.pop(0))
        for f in fill: k(f)
        k('s_waitcnt lgkmcnt(0)')
        k('s_barrier')
        interleave(k, mf(1), reads(0, 0) + [f'v_add_u32 v{VR+4}, 512, v{VR+4}', f's_sub_u32 s{S_CNT}, s{S_CNT}, 1'])
        k('s_waitcnt lgkmcnt(0)')
        interleave(k, mf(0), reads(1, 1) + adv)
        k('s_waitcnt lgkmcnt(0)')
        k(f's_cmp_eq_u32 s{S_CNT}, 0')
        k(f's_cbranch_scc1 {le}')
        k('s_barrier')
        interleave(k, mf(1), reads(0, 0) + [f'ds_read_b64 {vr(VR,2)}, v{VR+4}'])
        k('s_waitcnt lgkmcnt(0)')
        k(f's_branch {lp}')
        k.label(le)
        for m in mf(1): k(m)
        g.VGT, g.VXR, g.VR = VGT, VXR, VR
    def epi_pv(k, g):
        k('s_waitcnt vmcnt(0)')
        k('s_nop 7')
        T = g.VR + 6
        for ap in range(3):
            for b in range(2):
                xr = g.VXR + (ap*2+b)*4
                for h in range(2):
                    c = acc(g, 2*ap+h, b)
                    for r in range(4):
                        e = h*4 + r
                        k(f'v_mul_f32 v{c+r}, v{g.VR+2+b}, v{c+r}')
                        if e % 2 == 0: k(f'v_lshlrev_b32 v{T}, 16, v{xr+e//2}')
                        else: k(f'v_and_b32 v{T}, 0xffff0000, v{xr+e//2}')
                        k(f'v_fma_f32 v{c+r}, v{c+r}, v{g.VGT+8*ap+e}, v{T}')
        epi_frag16(128, 75, 76)(k, g)
        g.vmax = max(g.vmax, T+1)
    gemm_role(k, g1, epi_pv, custom_consumer=pv_consumer)
    k.label('pd_aux')
    k('s_sub_u32 s66, s65, 24')
    k('s_lshl_b32 s66, s66, 3')
    k('s_add_u32 s66, s66, s64')
    k('s_cmp_ge_u32 s66, 18')
    k('s_cbranch_scc1 pd_bt')
    k('s_and_b32 s67, s66, 1')
    k('s_lshr_b32 s68, s66, 1')
    k(f's_mul_i32 s{S_ABASE}, s68, {128*2304}')
    k(f's_mul_i32 s{S_BBASE}, s67, 5120')
    k('s_lshl_b32 s75, s68, 2')
    k('s_mul_i32 s76, s67, 5')
    k('s_waitcnt lgkmcnt(0)')
    make_srd(k, SRD_A, P_WQC, D*D*2); ws_srd(k, SRD_B, 'KVC'); ws_srd(k, SRD_O, 'AT')
    g2 = Gemm('at', Opnd('row', 8, SRD_A, S_ABASE, stride=2304, perm=True), Opnd('frag', 5, SRD_B, S_BBASE, rbtot=10), 4, 1, 18, 6)
    gemm_role(k, g2, epi_frag16(10, 75, 76), npre=6)
    k.label('pd_bt')
    k('s_cmp_ge_u32 s66, 36')
    k(f's_cbranch_scc1 {name}_end')
    k('s_sub_u32 s66, s66, 18')
    k('s_and_b32 s67, s66, 1')
    k('s_lshr_b32 s68, s66, 1')
    k(f's_mul_i32 s{S_ABASE}, s67, 5120')
    k(f's_add_u32 s{S_ABASE}, s{S_ABASE}, {36*10*1024}')
    k(f's_lshl_b32 s{S_BBASE}, s68, 8')
    k('s_mul_i32 s75, s67, 3')
    k('s_lshl_b32 s76, s68, 3')
    k('s_waitcnt lgkmcnt(0)')
    ws_srd(k, SRD_A, 'KVC'); make_srd(k, SRD_B, P_WOC, D*D*2); ws_srd(k, SRD_O, 'BT')
    g3 = Gemm('bt', Opnd('frag', 5, SRD_A, S_ABASE, rbtot=10), Opnd('col', 8, SRD_B, S_BBASE, stride=2304), 1, 4, 18, 6)
    gemm_role(k, g3, epi_frag16(72, 75, 76, rowperm=True), npre=6)
    k.label(f'{name}_end')
    k('s_endpgm')
    return name, 256, 512, max(g1.lds_bytes, g2.lds_bytes, g3.lds_bytes), max(g1.vmax, g2.vmax, g3.vmax)

def kernel_E(k):
    name = 'pe_kernel'
    prologue(k, name, 256)
    k('s_lshr_b32 s66, s64, 2')
    k('s_bfe_u32 s67, s64, 0x10001')
    k('s_and_b32 s68, s64, 1')
    k('s_lshl_b32 s68, s68, 5')
    k('s_add_u32 s68, s68, s65')
    k('s_lshl_b32 s69, s66, 6')
    k('s_add_u32 s68, s68, s69')
    k(f'v_lshlrev_b32 v1, 4, v{VL}')
    L_ST, L_Z, L_BT = 0, 1024, 32768
    VX_, VAT, VZ, VRS, VB = 8, 32, 152, 172, 184
    k(f's_mul_i32 s70, s{S_WAVE}, {6*128}')
    k('s_add_u32 s70, s70, s68')
    k('s_lshl_b32 s70, s70, 10')
    k(f's_mul_i32 s71, s{S_WAVE}, {6*10}')
    k('s_mul_i32 s72, s66, 5')
    k('s_add_u32 s71, s71, s72')
    k('s_lshl_b32 s71, s71, 10')
    k('s_waitcnt lgkmcnt(0)')
    ws_srd(k, SRD_A, 'X1'); ws_srd(k, SRD_B, 'AT'); ws_srd(k, SRD_X, 'BT'); make_srd(k, SRD_O, P_OUT, NR*D*2)
    for i in range(6):
        k(f'buffer_load_dwordx4 {vr(VX_+4*i,4)}, v1, {sr(SRD_A,4)}, s70 offen')
        if i < 5: k(f's_add_u32 s70, s70, {128*1024}')
    for i in range(6):
        k('s_add_u32 s72, s71, 4096')
        for mb in range(5):
            k(f'buffer_load_dwordx4 {vr(VAT+20*i+4*mb,4)}, v1, {sr(SRD_B,4)}, s{71 if mb < 4 else 72} offen offset:{(mb%4)*1024}')
        if i < 5: k('s_add_u32 s71, s71, 10240')
    k('s_mul_i32 s73, s67, 18')
    k(f's_mul_i32 s74, s{S_WAVE}, 3')
    k('s_add_u32 s73, s73, s74')
    k('s_lshl_b32 s74, s73, 7')
    k('s_add_u32 s74, s74, s68')
    k('s_lshl_b32 s74, s74, 10')
    for i in range(3):
        k(f'buffer_load_dwordx4 {vr(VRS+4*i,4)}, v1, {sr(SRD_A,4)}, s74 offen')
        if i < 2: k(f's_add_u32 s74, s74, {128*1024}')
    k('s_mul_i32 s75, s66, 216')
    k('s_lshl_b32 s76, s73, 1')
    k('s_add_u32 s75, s75, s76')
    k('s_lshl_b32 s75, s75, 10')
    k(f's_mul_i32 s76, s{S_WAVE}, {18*1024}')
    k(f's_add_u32 s76, s76, {L_BT}')
    for kb in range(3):
        for g0 in (0, 4):
            k(f's_add_u32 m0, s76, {kb*6144 + g0*1024}')
            k(f's_add_u32 s77, s75, {kb*72*1024 + g0*1024}')
            for i in range(4 if g0 == 0 else 2):
                k(f'buffer_load_dwordx4 v1, {sr(SRD_X,4)}, s77 offen offset:{i*1024} lds')
    for i in range(20): k(f'v_mov_b32 v{VZ+i}, 0')
    k('v_mov_b32 v2, 0\nv_mov_b32 v3, 0\nv_mov_b32 v4, 0\nv_mov_b32 v5, 0')
    k(f's_mov_b32 s{S_T0}, 0x3f803f80')
    k('s_waitcnt vmcnt(51)')
    for j in range(24):
        k(f'v_dot2_f32_bf16 v{2+(j&1)}, v{VX_+j}, s{S_T0}, v{2+(j&1)}')
        k(f'v_dot2_f32_bf16 v{4+(j&1)}, v{VX_+j}, v{VX_+j}, v{4+(j&1)}')
    k('s_nop 3')
    k('v_add_f32 v2, v2, v3\nv_add_f32 v4, v4, v5')
    k('s_nop 1')
    k('v_permlane32_swap_b32 v2, v4')
    k('s_nop 1')
    k('v_add_f32 v2, v2, v4')
    k('v_mov_b32 v3, v2')
    k('s_nop 1')
    k('v_permlane16_swap_b32 v2, v3')
    k('s_nop 1')
    k('v_add_f32 v2, v2, v3')
    k(f'v_lshrrev_b32 v6, 5, v{VL}')
    k('v_lshlrev_b32 v6, 6, v6')
    k(f'v_and_b32 v7, 15, v{VL}')
    k('v_lshl_add_u32 v6, v7, 2, v6')
    k(f's_lshl_b32 s{S_T0}, s{S_WAVE}, 7')
    k(f'v_add_u32 v6, s{S_T0}, v6')
    k(f'ds_write_b32 v6, v2 offset:{L_ST}')
    k('s_waitcnt lgkmcnt(0)')
    k('s_barrier')
    k('v_lshlrev_b32 v6, 2, v7')
    for w in range(6):
        k(f'ds_read2_b32 {vr(VB+2*w,2)}, v6 offset0:{w*32} offset1:{w*32+16}')
    k('s_waitcnt lgkmcnt(0)')
    k(f'v_add_f32 v2, v{VB}, v{VB+2}\nv_add_f32 v4, v{VB+1}, v{VB+3}')
    for w in range(2, 6):
        k(f'v_add_f32 v2, v2, v{VB+2*w}\nv_add_f32 v4, v4, v{VB+2*w+1}')
    k(f'v_mul_f32 v2, {f32(1.0/D)}, v2')
    k(f'v_mul_f32 v4, {f32(1.0/D)}, v4')
    k('v_fma_f32 v4, -v2, v2, v4')
    k('v_max_f32 v4, 0, v4')
    k(f'v_add_f32 v4, {f32(1e-5)}, v4')
    k('v_rsq_f32 v4, v4')
    k('s_nop 0')
    k('v_mul_f32 v2, v2, v4')
    k('v_sub_f32 v2, 0, v2')
    for j in range(24):
        k(f'v_lshlrev_b32 v{VB}, 16, v{VX_+j}')
        k(f'v_and_b32 v{VB+1}, 0xffff0000, v{VX_+j}')
        k(f'v_fma_f32 v{VB}, v{VB}, v4, v2')
        k(f'v_fma_f32 v{VB+1}, v{VB+1}, v4, v2')
        k(f'v_cvt_pk_bf16_f32 v{VX_+j}, v{VB}, v{VB+1}')
    k('s_nop 1')
    for i in range(6):
        k(f's_waitcnt vmcnt({21 + 5*(5-i)})')
        for mb in range(5):
            k(f'v_mfma_f32_16x16x32_bf16 {vr(VZ+4*mb,4)}, {vr(VAT+20*i+4*mb,4)}, {vr(VX_+4*i,4)}, {vr(VZ+4*mb,4)}')
    k(f's_mul_i32 s{S_T0}, s{S_WAVE}, 5120')
    k(f'v_add_u32 v6, s{S_T0}, v1')
    k('s_nop 7')
    for mb in range(5):
        k(f'ds_write_b128 v6, {vr(VZ+4*mb,4)} offset:{L_Z + mb*1024}')
    k('s_waitcnt lgkmcnt(0)')
    k('s_barrier')
    for w in range(6):
        for mb in range(5):
            k(f'ds_read_b128 {vr(VAT+20*w+4*mb,4)}, v1 offset:{L_Z + w*5120 + mb*1024}')
        if w == 2: k('s_waitcnt lgkmcnt(0)')
    k('s_waitcnt lgkmcnt(0)')
    k('s_waitcnt vmcnt(0)')
    k(f'v_add_u32 v6, s76, v1')
    for kb in range(3):
        for jb in range(6):
            k(f'ds_read_b128 {vr(VB+(kb*6+jb)*4,4)}, v6 offset:{kb*6144 + jb*1024}')
    for i in range(20):
        k(f'v_add_f32 v{VZ+i}, v{VAT+i}, v{VAT+20+i}')
        k(f'v_add_f32 v{VAT+40+i}, v{VAT+40+i}, v{VAT+60+i}')
        k(f'v_add_f32 v{VAT+80+i}, v{VAT+80+i}, v{VAT+100+i}')
        k(f'v_add3_f32 v{VZ+i}, v{VZ+i}, v{VAT+40+i}, v{VAT+80+i}' if False else
          f'v_add_f32 v{VZ+i}, v{VZ+i}, v{VAT+40+i}\nv_add_f32 v{VZ+i}, v{VZ+i}, v{VAT+80+i}')
    k(f'v_cmp_le_u32 vcc, 48, v{VL}')
    k(f'v_mov_b32 v2, {f32(-3.0e38)}')
    k('s_nop 0')
    for r in (17, 18, 19):
        k(f'v_cndmask_b32 v{VZ+r}, v{VZ+r}, v2, vcc')
    k(f'v_max3_f32 v2, v{VZ}, v{VZ+1}, v{VZ+2}')
    for i in range(3, 19, 2):
        k(f'v_max3_f32 v2, v2, v{VZ+i}, v{VZ+i+1}')
    k(f'v_max_f32 v2, v2, v{VZ+19}')
    xlane_reduce(k, 'v_max_f32', 2, 3)
    k(f's_mov_b32 s78, {f32(CSC)}')
    for i in range(20): k(f'v_sub_f32 v{VZ+i}, v{VZ+i}, v2')
    for i in range(20): k(f'v_mul_f32 v{VZ+i}, s78, v{VZ+i}')
    for i in range(20): k(f'v_exp_f32 v{VZ+i}, v{VZ+i}')
    k('s_nop 0')
    k(f'v_add_f32 v2, v{VZ}, v{VZ+1}')
    for i in range(2, 20): k(f'v_add_f32 v2, v2, v{VZ+i}')
    xlane_reduce(k, 'v_add_f32', 2, 3)
    k('v_rcp_f32 v2, v2')
    VP = VX_
    for i in range(10):
        k(f'v_cvt_pk_bf16_f32 v{VP+i}, v{VZ+2*i}, v{VZ+2*i+1}')
    k(f'v_mov_b32 v{VP+10}, 0\nv_mov_b32 v{VP+11}, 0')
    VO = VAT
    k('s_waitcnt lgkmcnt(0)')
    k('s_nop 0')
    for kb in range(3):
        for jb in range(6):
            c = '0' if kb == 0 else vr(VO+4*jb, 4)
            k(f'v_mfma_f32_16x16x32_bf16 {vr(VO+4*jb,4)}, {vr(VB+(kb*6+jb)*4,4)}, {vr(VP+4*kb,4)}, {c}')
    k(f's_mov_b32 s{S_T0}, 2304')
    k(f'v_mul_u32_u24 v6, s{S_T0}, v7')
    k(f'v_lshrrev_b32 v5, 4, v{VL}')
    k('v_lshl_add_u32 v6, v5, 4, v6')
    k(f's_mul_i32 s{S_T0}, s68, {16*2304}')
    k(f's_lshl_b32 s{S_T1}, s73, 6')
    k(f's_add_u32 s{S_T0}, s{S_T0}, s{S_T1}')
    k('s_nop 7')
    for i in range(3):
        for e in range(8):
            c = VO + 8*i + e
            if e % 2 == 0: k(f'v_lshlrev_b32 v3, 16, v{VRS+4*i+e//2}')
            else: k(f'v_and_b32 v3, 0xffff0000, v{VRS+4*i+e//2}')
            k(f'v_fma_f32 v{c}, v{c}, v2, v3')
        for j in range(4):
            k(f'v_cvt_pk_bf16_f32 v{VZ+4*i+j}, v{VO+8*i+2*j}, v{VO+8*i+2*j+1}')
        k(f'buffer_store_dwordx4 {vr(VZ+4*i,4)}, v6, {sr(SRD_O,4)}, s{S_T0} offen offset:{64*i}')
    k.label(f'{name}_end')
    k('s_endpgm')
    return name, 256, 384, L_BT + 6*18*1024, VB + 72

def build(fn):
    k = K()
    ks = [f(k) for f in (kernel_A, kernel_B, kernel_C, kernel_D, kernel_E)]
    ref = open('standalone__pixart__diffusion.s.ref').read()
    hdr = ref.split('; Override launch geometry')[0]
    for (n, g, b, l, v) in ks:
        assert l <= 163840, (n, l)
        assert v <= 256, (n, v)
        hdr += f'; @launch kernel={n} grid=({g},1,1) block=({b},1,1) lds={l}\n'
    hdr += '.amdgcn_target "amdgcn-amd-amdhsa--gfx950"\n.text\n'
    desc = '.section .rodata,"a"\n'
    for (n, g, b, l, v) in ks:
        desc += '.p2align 6\n' + kernel_desc(n, v)
    open(fn, 'w').write(hdr + k.text() + desc)
    print(ks)

if __name__ == '__main__':
    build(sys.argv[1] if len(sys.argv) > 1 else 'standalone__pixart__diffusion.s')
    import json
    json.dump(WS, open('ws.json', 'w'))
```

```python
from dataclasses import dataclass, field

class K:
    def __init__(self):
        self.L = []
        self.uid = 0
    def __call__(self, s):
        for line in s.split('\n'):
            line = line.strip()
            if line:
                self.L.append('    ' + line)
    def label(self, n):
        self.L.append(n + ':')
    def c(self, s):
        self.L.append('    ; ' + s)
    def newlabel(self, p='L'):
        self.uid += 1
        return f'{p}_{self.uid}'
    def text(self):
        return '\n'.join(self.L) + '\n'

def vr(a, n=1):
    return f'v{a}' if n == 1 else f'v[{a}:{a+n-1}]'
def sr(a, n=1):
    return f's{a}' if n == 1 else f's[{a}:{a+n-1}]'

S_WG = 2
S_WAVE = 3
SRD_A = 4
SRD_B = 8
SRD_O = 12
SRD_X = 16
SRD_Y = 20
S_ABASE = 24
S_BBASE = 25
S_OBASE = 26
S_T0 = 27
S_T1 = 28
S_T2 = 29
S_T3 = 30
S_G = 31
S_LDS = 32
S_SLOT = 33
S_CNT = 34
S_DELTA = 35
S_W2 = 36
S_WA = 37
S_WB = 38
S_P0 = 40
S_X0 = 64

@dataclass
class Opnd:
    mode: str
    nblk: int
    srd: int
    base: int
    rbtot: int = 0
    stride: int = 0
    perm: bool = False
    region: int = 0
    aux: str = ''

@dataclass
class Gemm:
    name: str
    A: Opnd
    B: Opnd
    WA: int
    WB: int
    KT: int
    NS: int
    lds0: int = 0
    def __post_init__(self):
        self.A.region = 0
        self.B.region = self.A.nblk * 2048
        self.stage = (self.A.nblk + self.B.nblk) * 2048
        assert self.A.nblk % self.WA == 0 and self.B.nblk % self.WB == 0
        self.ma = self.A.nblk // self.WA
        self.nb = self.B.nblk // self.WB
        assert self.WA * self.WB == 4
        self.lds_bytes = self.lds0 + self.NS * self.stage

def make_srd(k, srd, plo, nbytes, off=0):
    if off:
        k(f's_add_u32 s{srd}, s{plo}, {off}')
        k(f's_addc_u32 s{srd+1}, s{plo+1}, 0')
    else:
        k(f's_mov_b32 s{srd}, s{plo}')
        k(f's_mov_b32 s{srd+1}, s{plo+1}')
    if isinstance(nbytes, int):
        k(f's_mov_b32 s{srd+2}, {nbytes}')
    else:
        k(f's_mov_b32 s{srd+2}, {nbytes}')
    k(f's_mov_b32 s{srd+3}, 0x00020000')

def loader_setup(k, g, X, VL, VOFF, VT):
    if X.mode == 'frag':
        k(f'v_lshlrev_b32 v{VOFF}, 4, v{VL}')
        k(f's_mul_i32 s{S_G}, s{S_W2}, {X.rbtot*1024}')
        k(f's_add_u32 s{S_G}, s{S_G}, s{X.base}')
        k(f's_mul_i32 s{S_LDS}, s{S_W2}, {X.nblk*1024}')
        k(f's_add_u32 s{S_LDS}, s{S_LDS}, {g.lds0 + X.region}')
    elif X.mode == 'row':
        k(f's_lshl_b32 s{S_T0}, s{S_W2}, 2')
        k(f'v_lshrrev_b32 v{VT}, 4, v{VL}')
        k(f'v_add_u32 v{VT}, s{S_T0}, v{VT}')
        k(f'v_and_b32 v{VOFF}, 7, v{VL}')
        k(f'v_xor_b32 v{VOFF}, v{VOFF}, v{VT}')
        k(f'v_lshlrev_b32 v{VOFF}, 4, v{VOFF}')
        if X.perm:
            k(f's_lshl_b32 s{S_T0}, s{S_W2}, 4')
            k(f'v_lshrrev_b32 v{VT}, 5, v{VL}')
            k(f'v_lshlrev_b32 v{VT}, 3, v{VT}')
            k(f'v_add_u32 v{VT}, s{S_T0}, v{VT}')
            k(f'v_bfe_u32 v{VT+1}, v{VL}, 3, 2')
            k(f'v_add_u32 v{VT}, v{VT}, v{VT+1}')
        else:
            k(f's_lshl_b32 s{S_T0}, s{S_W2}, 3')
            k(f'v_lshrrev_b32 v{VT}, 3, v{VL}')
            k(f'v_add_u32 v{VT}, s{S_T0}, v{VT}')
        k(f's_mov_b32 s{S_T0}, {X.stride}')
        k(f'v_mad_u32_u24 v{VOFF}, v{VT}, s{S_T0}, v{VOFF}')
        k(f's_mov_b32 s{S_G}, s{X.base}')
        k(f's_lshl_b32 s{S_LDS}, s{S_W2}, 10')
        k(f's_add_u32 s{S_LDS}, s{S_LDS}, {g.lds0 + X.region}')
    elif X.mode == 'col':
        k(f's_lshl_b32 s{S_T0}, s{S_W2}, 2')
        k(f'v_bfe_u32 v{VT}, v{VL}, 4, 1')
        k(f'v_lshlrev_b32 v{VT}, 1, v{VT}')
        k(f'v_or_b32 v{VT}, s{S_T0}, v{VT}')
        k(f'v_and_b32 v{VOFF}, 7, v{VL}')
        k(f'v_xor_b32 v{VOFF}, v{VOFF}, v{VT}')
        k(f'v_lshlrev_b32 v{VOFF}, 4, v{VOFF}')
        k(f's_lshl_b32 s{S_T0}, s{S_W2}, 3')
        k(f'v_lshrrev_b32 v{VT}, 3, v{VL}')
        k(f'v_add_u32 v{VT}, s{S_T0}, v{VT}')
        k(f's_mov_b32 s{S_T0}, {X.stride}')
        k(f'v_mad_u32_u24 v{VOFF}, v{VT}, s{S_T0}, v{VOFF}')
        k(f's_mov_b32 s{S_G}, s{X.base}')
        k(f's_lshl_b32 s{S_LDS}, s{S_W2}, 10')
        k(f's_add_u32 s{S_LDS}, s{S_LDS}, {g.lds0 + X.region}')

def loader_issue(k, g, X, VOFF, slot_const=None):
    groups = []
    if X.mode == 'frag':
        for g0 in range(0, X.nblk, 4):
            groups.append((g0*1024, g0*1024, [i*1024 for i in range(min(4, X.nblk-g0))]))
        step = 2 * X.rbtot * 1024
    elif X.mode == 'row':
        for i in range(X.nblk):
            r = (32*(i >> 1) + 4*(i & 1)) if X.perm else 16*i
            groups.append((i*2048, r*X.stride, [0]))
        step = 128
    else:
        for cg in range(X.nblk // 4):
            for i in range(4):
                groups.append((cg*8192 + i*2048, 16*i*X.stride + cg*128, [0]))
        step = 64 * X.stride
    if slot_const is None:
        k(f's_add_u32 s{S_T1}, s{S_LDS}, s{S_SLOT}')
        lb, lc = S_T1, 0
    else:
        lb, lc = S_LDS, slot_const
    for (lo, go, imms) in groups:
        if lo + lc:
            k(f's_add_u32 m0, s{lb}, {lo+lc}')
        else:
            k(f's_mov_b32 m0, s{lb}')
        if go:
            k(f's_add_u32 s{S_T0}, s{S_G}, {go}')
            so = S_T0
        else:
            k('s_nop 0')
            so = S_G
        for im in imms:
            o = f' offset:{im}' if im else ''
            k(f'buffer_load_dwordx4 v{VOFF}, {sr(X.srd,4)}, s{so} offen{o}{X.aux} lds')
    k(f's_add_u32 s{S_G}, s{S_G}, {step}')

def loader_body(k, g, X, VL, VOFF, VT, pre_hook=None, mid_hook=None, npre=None, tail_hook=None):
    n = X.nblk
    NS, KT = g.NS, g.KT
    loader_setup(k, g, X, VL, VOFF, VT)
    if pre_hook: pre_hook(k)
    npro = min(NS, KT)
    if npre is None: npre = npro
    for s in range(npre):
        loader_issue(k, g, X, VOFF, slot_const=s*g.stage)
    if mid_hook: mid_hook(k, npre*n)
    assert (NS-1)*n <= 63
    k(f's_waitcnt vmcnt({(npre-1)*n})')
    k('s_barrier')
    for s in range(npre, npro):
        loader_issue(k, g, X, VOFF, slot_const=s*g.stage)
    nmain = max(0, KT - NS)
    if nmain > 0:
        k(f's_mov_b32 s{S_SLOT}, 0')
        k(f's_mov_b32 s{S_CNT}, {nmain}')
        lp = k.newlabel(g.name + '_ld')
        k.label(lp)
        k(f's_waitcnt vmcnt({(NS-2)*n})')
        k('s_barrier')
        loader_issue(k, g, X, VOFF)
        k(f's_add_u32 s{S_SLOT}, s{S_SLOT}, {g.stage}')
        k(f's_cmp_eq_u32 s{S_SLOT}, {NS*g.stage}')
        k(f's_cselect_b32 s{S_SLOT}, 0, s{S_SLOT}')
        k(f's_sub_u32 s{S_CNT}, s{S_CNT}, 1')
        k(f's_cmp_lg_u32 s{S_CNT}, 0')
        k(f's_cbranch_scc1 {lp}')
    extra = tail_hook(k) if tail_hook else 0
    for t in range(nmain, KT-1):
        k(f's_waitcnt vmcnt({(KT-1-(t+1))*n + extra})')
        k('s_barrier')

class ConsRegs:
    pass

def cons_addr_setup(k, g, X, nw, swave, VL, VA, VT):
    base = g.lds0 + X.region
    if X.mode == 'frag':
        k(f's_mul_i32 s{S_T0}, s{swave}, {nw*1024}')
        k(f's_add_u32 s{S_T0}, s{S_T0}, {base}')
        k(f'v_lshlrev_b32 v{VA}, 4, v{VL}')
        k(f'v_add_u32 v{VA}, s{S_T0}, v{VA}')
        return [VA]
    if X.mode == 'row':
        k(f's_mul_i32 s{S_T0}, s{swave}, {nw*2048}')
        k(f's_add_u32 s{S_T0}, s{S_T0}, {base}')
        k(f'v_bfe_u32 v{VT}, v{VL}, 1, 3')
        k(f'v_lshrrev_b32 v{VT+1}, 4, v{VL}')
        k(f'v_xor_b32 v{VT}, v{VT}, v{VT+1}')
        k(f'v_lshlrev_b32 v{VT}, 4, v{VT}')
        k(f'v_and_b32 v{VT+1}, 15, v{VL}')
        k(f'v_lshl_add_u32 v{VA}, v{VT+1}, 7, v{VT}')
        k(f'v_add_u32 v{VA}, s{S_T0}, v{VA}')
        k(f'v_xor_b32 v{VA+1}, 64, v{VA}')
        return [VA, VA+1]
    k(f'v_lshrrev_b32 v{VT}, 4, v{VL}')
    k(f'v_lshlrev_b32 v{VT}, 3, v{VT}')
    k(f'v_bfe_u32 v{VT+1}, v{VL}, 2, 2')
    k(f'v_add_u32 v{VT}, v{VT}, v{VT+1}')
    k(f'v_lshlrev_b32 v{VT}, 7, v{VT}')
    k(f'v_and_b32 v{VT+1}, 3, v{VL}')
    k(f'v_lshl_add_u32 v{VT}, v{VT+1}, 3, v{VT}')
    k(f'v_bfe_u32 v{VT+1}, v{VL}, 3, 2')
    k(f'v_lshl_add_u32 v{VT}, v{VT+1}, 5, v{VT}')
    for i in range(nw):
        k(f's_mul_i32 s{S_T0}, s{swave}, {nw}')
        k(f's_add_u32 s{S_T0}, s{S_T0}, {i}')
        k(f's_and_b32 s{S_T1}, s{S_T0}, 3')
        k(f's_lshl_b32 s{S_T1}, s{S_T1}, 5')
        k(f's_lshr_b32 s{S_T0}, s{S_T0}, 2')
        k(f's_lshl_b32 s{S_T0}, s{S_T0}, 13')
        k(f's_add_u32 s{S_T0}, s{S_T0}, {base}')
        k(f'v_xor_b32 v{VA+i}, s{S_T1}, v{VT}')
        k(f'v_add_u32 v{VA+i}, s{S_T0}, v{VA+i}')
    return [VA+i for i in range(nw)]

def cons_reads(g, X, nw, addrs, s, dst):
    out = []
    for i in range(nw):
        d = dst + 4*i
        if X.mode == 'frag':
            out.append(f'ds_read_b128 {vr(d,4)}, v{addrs[0]} offset:{s*X.nblk*1024 + i*1024}')
        elif X.mode == 'row':
            out.append(f'ds_read_b128 {vr(d,4)}, v{addrs[s]} offset:{i*2048}')
        else:
            out.append(f'ds_read_b64_tr_b16 {vr(d,2)}, v{addrs[i]} offset:{s*4096}')
            out.append(f'ds_read_b64_tr_b16 {vr(d+2,2)}, v{addrs[i]} offset:{s*4096+512}')
    return out

def interleave(k, mfmas, fill, start=0, per=1):
    fill = list(fill)
    for i, m in enumerate(mfmas):
        k(m)
        if i >= start:
            for _ in range(per):
                if fill: k(fill.pop(0))
    for f in fill: k(f)

def consumer_body(k, g, VL, VACC, VF, VA, VT, pre_hook=None, nomfma=False, noread=False, post_bar0=None):
    ma, nb = g.ma, g.nb
    aA = cons_addr_setup(k, g, g.A, ma, S_WA, VL, VA, VT)
    aB = cons_addr_setup(k, g, g.B, nb, S_WB, VL, VA + len(aA), VT)
    addrs = aA + aB
    setsz = (ma + nb) * 4
    def fa(st, a): return VF + st*setsz + 4*a
    def fb(st, b): return VF + st*setsz + 4*ma + 4*b
    def reads(s, st):
        if noread: return []
        ra = cons_reads(g, g.A, ma, aA, s, fa(st, 0))
        rb = cons_reads(g, g.B, nb, aB, s, fb(st, 0))
        return rb + ra if nb <= ma else ra + rb
    def mf(st):
        if nomfma: return ['s_nop 0']
        out = []
        for a in range(ma):
            for b in range(nb):
                c = VACC + (a*nb + b)*4
                out.append(f'v_mfma_f32_16x16x32_bf16 {vr(c,4)}, {vr(fa(st,a),4)}, {vr(fb(st,b),4)}, {vr(c,4)}')
        return out
    for i in range(ma*nb*4):
        k(f'v_mov_b32 v{VACC+i}, 0')
    if pre_hook: pre_hook(k)
    k(f's_mov_b32 s{S_SLOT}, 0')
    k(f's_mov_b32 s{S_CNT}, {g.KT-1}')
    k(f's_mov_b32 s{S_T3}, {g.stage}')
    k('s_barrier')
    if post_bar0: post_bar0(k)
    for r in reads(0, 0): k(r)
    k('s_waitcnt lgkmcnt(0)')
    lp = k.newlabel(g.name + '_mm')
    k.label(lp)
    adv = [f's_add_u32 s{S_SLOT}, s{S_SLOT}, {g.stage}',
           f's_cmp_eq_u32 s{S_SLOT}, {g.NS*g.stage}',
           f's_cselect_b32 s{S_DELTA}, {-(g.NS-1)*g.stage & 0xffffffff}, s{S_T3}',
           f's_cselect_b32 s{S_SLOT}, 0, s{S_SLOT}'] + [f'v_add_u32 v{a}, s{S_DELTA}, v{a}' for a in addrs]
    interleave(k, mf(0), reads(1, 1) + adv)
    k('s_waitcnt lgkmcnt(0)')
    k('s_barrier')
    interleave(k, mf(1), reads(0, 0) + [f's_sub_u32 s{S_CNT}, s{S_CNT}, 1', f's_cmp_lg_u32 s{S_CNT}, 0'])
    k('s_waitcnt lgkmcnt(0)')
    k(f's_cbranch_scc1 {lp}')
    interleave(k, mf(0), reads(1, 1))
    k('s_waitcnt lgkmcnt(0)')
    for m in mf(1): k(m)

def kernel_header(k, name):
    k.L.append(f'.globl {name}')
    k.L.append('.p2align 8')
    k.L.append(f'.type {name},@function')
    k.label(name)

def kernel_desc(name, vgpr, sgpr=96):
    acc = (vgpr + 3) // 4 * 4
    return f""".amdhsa_kernel {name}
  .amdhsa_next_free_vgpr {vgpr}
  .amdhsa_next_free_sgpr {sgpr}
  .amdhsa_accum_offset {acc}
  .amdhsa_group_segment_fixed_size 0
  .amdhsa_kernarg_size 96
  .amdhsa_user_sgpr_count 2
  .amdhsa_user_sgpr_kernarg_segment_ptr 1
  .amdhsa_system_sgpr_workgroup_id_x 1
.end_amdhsa_kernel
"""
```

```python
import sys, math
from lib import *

D = 1152; NR = 2048
P_X, P_C, P_Y, P_WQKV, P_WO, P_WQC, P_WKVC, P_WOC, P_WMOD, P_OUT, P_DBG, P_WS = range(40, 64, 2)
def al(x): return (x + 4095) // 4096 * 4096
WS = {}
_o = 0
for nm, sz in [('MOD', 2*3456*4), ('ST', 2048*64), ('H', NR*D*2), ('WQK', D*D*2), ('WVO', D*D*2), ('T', NR*D*2),
               ('VT', NR*D*2), ('P', 2*1024*1024*2), ('KVC', 72*10*1024), ('AT', 36*10*1024), ('BT', 2*3*72*1024),
               ('X1', NR*D*2)]:
    WS[nm] = (_o, sz); _o = al(_o + sz)
WS_END = _o
ST = ' sc1'
CSC = (D ** -0.5) * math.log2(math.e)
def f32(x):
    import struct
    return '0x%08x' % struct.unpack('<I', struct.pack('<f', x))[0]

STAMP = False
STAMP_OFF = 128 << 20
KIDX = [0]
def endpgm(k):
    if STAMP:
        k('s_mov_b64 exec, -1')
        k('s_waitcnt vmcnt(0)')
        k('s_memrealtime s[92:93]')
        k(f's_lshl_b32 s94, s2, 7')
        k(f's_lshl_b32 s95, s{S_WAVE}, 4')
        k('s_add_u32 s94, s94, s95')
        k(f's_add_u32 s94, s94, {STAMP_OFF + KIDX[0]*65536}')
        k('s_waitcnt lgkmcnt(0)')
        k('v_mov_b32 v1, s94\nv_mov_b32 v4, s90\nv_mov_b32 v5, s92\nv_mov_b32 v6, s86\nv_mov_b32 v7, s88')
        k('s_mov_b64 exec, 1')
        k('global_store_dwordx4 v1, v[4:7], s[62:63]')
    k('s_endpgm')
def stamp(k, i):
    if STAMP: k(f's_memrealtime s[{86+2*i}:{87+2*i}]')

def ws_srd(k, srd, nm):
    make_srd(k, srd, P_WS, WS[nm][1], WS[nm][0])

def prologue(k, name, nwg):
    kernel_header(k, name)
    if STAMP: k('s_memrealtime s[90:91]\ns_mov_b32 s86, 0\ns_mov_b32 s88, 0')
    k('s_load_dwordx16 s[40:55], s[0:1], 0')
    k('s_load_dwordx8 s[56:63], s[0:1], 64')
    k(f's_cmp_ge_u32 s2, {nwg}')
    k(f's_cbranch_scc1 {name}_end')
    k('v_lshrrev_b32 v1, 6, v0')
    k('v_and_b32 v0, 63, v0')
    k(f'v_readfirstlane_b32 s{S_WAVE}, v1')
    k('s_and_b32 s64, s2, 7')
    k('s_lshr_b32 s65, s2, 3')

def div_const(k, dst, src, d, maxv):
    for sh in range(4, 20):
        m = -(-(1 << sh) // d)
        if all((v*m) >> sh == v // d for v in range(maxv+1)):
            k(f's_mul_i32 s{dst}, s{src}, {m}')
            k(f's_lshr_b32 s{dst}, s{dst}, {sh}')
            return
    raise Exception('no magic')

VL = 0; VT = 2; VA = 4; VACC = 16

def gemm_role(k, g, epilogue, cons_pre=None, npre=2, custom_consumer=None):
    ll, lb = k.newlabel(g.name + '_loader'), k.newlabel(g.name + '_loaderB')
    k(f's_cmp_ge_u32 s{S_WAVE}, 4')
    k(f's_cbranch_scc1 {ll}')
    k(f's_and_b32 s{S_WB}, s{S_WAVE}, {g.WB-1}')
    k(f's_lshr_b32 s{S_WA}, s{S_WAVE}, {g.WB.bit_length()-1}')
    VF = VACC + g.ma*g.nb*4
    g.VF = VF
    g.VX = VF + 2*(g.ma+g.nb)*4
    if custom_consumer:
        custom_consumer(k, g)
    else:
        consumer_body(k, g, VL, VACC, VF, VA, VT, pre_hook=cons_pre, post_bar0=lambda k: stamp(k, 0))
    stamp(k, 1)
    epilogue(k, g)
    endpgm(k)
    k.label(ll)
    k(f's_and_b32 s{S_W2}, s{S_WAVE}, 1')
    k(f's_cmp_ge_u32 s{S_WAVE}, 6')
    k(f's_cbranch_scc1 {lb}')
    loader_body(k, g, g.A, VL, 1, VT, npre=npre)
    endpgm(k)
    k.label(lb)
    loader_body(k, g, g.B, VL, 1, VT, npre=npre)
    endpgm(k)

def acc(g, a, b): return VACC + (a*g.nb + b)*4

def epi_frag16(rbtot, s_kb0, s_rb0, rowperm=False, extra_off=None):
    def f(k, g):
        npair = (g.ma + 1) // 2
        k(f's_mul_i32 s{S_T0}, s{S_WA}, {g.ma//2}')
        k(f's_add_u32 s{S_T0}, s{S_T0}, s{s_kb0}')
        k(f's_mul_i32 s{S_T0}, s{S_T0}, {rbtot}')
        k(f's_mul_i32 s{S_T1}, s{S_WB}, {g.nb}')
        k(f's_add_u32 s{S_T0}, s{S_T0}, s{S_T1}')
        k(f's_add_u32 s{S_T0}, s{S_T0}, s{s_rb0}')
        k(f's_lshl_b32 s{S_OBASE}, s{S_T0}, 10')
        if extra_off is not None:
            k(f's_add_u32 s{S_OBASE}, s{S_OBASE}, s{extra_off}')
        if rowperm:
            assert g.nb % 2 == 0
            k(f'v_bfe_u32 v{VT}, v{VL}, 2, 1')
            k(f'v_lshlrev_b32 v1, 10, v{VT}')
            k(f'v_bfe_u32 v{VT}, v{VL}, 3, 1')
            k(f'v_lshl_add_u32 v1, v{VT}, 6, v1')
            k(f'v_and_b32 v{VT}, 0x33, v{VL}')
            k(f'v_lshl_add_u32 v1, v{VT}, 4, v1')
        else:
            k(f'v_lshlrev_b32 v1, 4, v{VL}')
        k('s_nop 7')
        t = g.VF
        for ap in range(npair):
            for b in range(g.nb):
                c0 = acc(g, 2*ap, b)
                k(f'v_cvt_pk_bf16_f32 v{t}, v{c0}, v{c0+1}')
                k(f'v_cvt_pk_bf16_f32 v{t+1}, v{c0+2}, v{c0+3}')
                if 2*ap+1 < g.ma:
                    c1 = acc(g, 2*ap+1, b)
                    k(f'v_cvt_pk_bf16_f32 v{t+2}, v{c1}, v{c1+1}')
                    k(f'v_cvt_pk_bf16_f32 v{t+3}, v{c1+2}, v{c1+3}')
                else:
                    k(f'v_mov_b32 v{t+2}, 0')
                    k(f'v_mov_b32 v{t+3}, 0')
                off = (b & ~1)*1024 + (b & 1)*128 if rowperm else b*1024
                hi, lo = off // 4096 * 4096, off % 4096
                if rowperm and lo + 2048 > 4096: pass
                k(f's_add_u32 s{S_T0}, s{S_OBASE}, {ap*rbtot*1024 + hi}')
                k(f'buffer_store_dwordx4 {vr(t,4)}, v1, {sr(SRD_O,4)}, s{S_T0} offen offset:{lo}{ST}')
                t += 4
        g.vmax = max(g.VX, t)
    return f

def kernel_A(k):
    name = 'pa_kernel'
    prologue(k, name, 256)
    k('s_and_b32 s66, s64, 1')
    k('s_lshr_b32 s67, s64, 1')
    k('s_sub_u32 s68, 5, s66')
    k('s_cmp_lt_u32 s67, 2')
    k('s_cselect_b32 s69, 5, 4')
    k('s_mul_i32 s70, s68, s69')
    k('s_cmp_ge_u32 s65, s70')
    k('s_cbranch_scc1 pa_aux')
    div_const(k, 71, 65, 5, 31)
    k('s_lshr_b32 s72, s65, 2')
    k('s_cmp_eq_u32 s66, 0')
    k('s_cselect_b32 s71, s71, s72')
    k('s_mul_i32 s72, s71, s68')
    k('s_sub_u32 s72, s65, s72')
    k('s_mul_i32 s73, s66, 5')
    k('s_add_u32 s72, s72, s73')
    k('s_mul_i32 s73, s67, 5')
    k('s_cmp_eq_u32 s67, 3')
    k('s_cselect_b32 s74, 1, 0')
    k('s_sub_u32 s73, s73, s74')
    k('s_add_u32 s71, s71, s73')
    k(f's_mul_i32 s{S_ABASE}, s72, {128*6912}')
    k(f's_mul_i32 s{S_BBASE}, s71, {64*6912}')
    k(f's_add_u32 s{S_BBASE}, s{S_BBASE}, {D*2}')
    k('s_lshl_b32 s75, s72, 2')
    k('s_lshl_b32 s76, s71, 2')
    k('s_waitcnt lgkmcnt(0)')
    make_srd(k, SRD_A, P_WQKV, D*3*D*2)
    ws_srd(k, SRD_O, 'WQK')
    A = Opnd('row', 8, SRD_A, S_ABASE, stride=6912, perm=True)
    B = Opnd('row', 4, SRD_A, S_BBASE, stride=6912, perm=True)
    g = Gemm('wqk', A, B, 2, 2, 18, 6)
    gemm_role(k, g, epi_frag16(72, 75, 76), npre=6)
    vmax = g.vmax
    k.label('pa_aux')
    spare = [7, 12, 7, 12, 12, 16, 12, 16]
    pre = [sum(spare[:i]) for i in range(8)]
    lo = sum(pre[i] << (8*i) for i in range(4)); hi = sum(pre[i+4] << (8*i) for i in range(4))
    k(f's_mov_b32 s72, {lo}')
    k(f's_mov_b32 s73, {hi}')
    k('s_lshl_b32 s74, s64, 3')
    k('s_lshr_b64 s[72:73], s[72:73], s74')
    k('s_and_b32 s72, s72, 0xff')
    k('s_sub_u32 s73, s65, s70')
    k('s_add_u32 s72, s72, s73')
    k('s_cmp_ge_u32 s72, 90')
    k(f's_cbranch_scc1 {name}_end')
    k('s_lshl_b32 s73, s72, 1')
    k('s_sub_u32 s73, s73, 72')
    k('s_cmp_lt_u32 s72, 72')
    k('s_cselect_b32 s73, s72, s73')
    k('s_cselect_b32 s74, 1, 2')
    k('s_waitcnt lgkmcnt(0)')
    make_srd(k, SRD_A, P_WMOD, D*6*D*2)
    make_srd(k, SRD_B, P_C, 2*D*2)
    ws_srd(k, SRD_O, 'MOD')
    make_srd(k, SRD_X, P_X, NR*D*2)
    make_srd(k, SRD_Y, P_DBG, 256)
    L_SILU, L_RED, L_STAT, L_MOD = 0, 9216, 11264, 12288
    VW = 16
    VXD = 52
    VS = 88
    VAC = 106
    VU = 122
    VC = 130
    k(f's_lshl_b32 s{S_T0}, s{S_WAVE}, 10')
    k(f'v_lshl_add_u32 v3, v{VL}, 4, s{S_T0}')
    k(f'buffer_load_dwordx4 {vr(VC,4)}, v3, {sr(SRD_B,4)}, 0 offen')
    k(f's_lshl_b32 s{S_T0}, s{S_WAVE}, 4')
    k(f'v_lshrrev_b32 v4, 2, v{VL}')
    k(f'v_add_u32 v4, s{S_T0}, v4')
    k(f'v_and_b32 v5, 3, v{VL}')
    k(f'v_lshlrev_b32 v5, 4, v5')
    k(f's_mov_b32 s{S_T0}, 13824')
    k(f'v_mad_u32_u24 v5, v4, s{S_T0}, v5')
    k(f'v_lshlrev_b32 v4, 2, v4')
    def issue_w():
        k(f's_lshl_b32 s{S_G}, s73, 6')
        for i in range(9):
            if i: k(f's_add_u32 s{S_G}, s{S_G}, {128*13824}')
            k(f'buffer_load_dwordx4 {vr(VW+4*i,4)}, v5, {sr(SRD_A,4)}, s{S_G} offen')
    issue_w()
    k(f'v_and_b32 v6, 15, v{VL}')
    k(f's_mov_b32 s{S_T0}, 2304')
    k(f'v_mul_u32_u24 v6, s{S_T0}, v6')
    k(f'v_lshrrev_b32 v7, 4, v{VL}')
    k(f'v_lshl_add_u32 v6, v7, 4, v6')
    k(f's_lshr_b32 s75, s{S_WAVE}, 2')
    k('s_lshl_b32 s76, s72, 1')
    k('s_add_u32 s75, s75, s76')
    k('s_min_u32 s75, s75, 127')
    k(f's_and_b32 s76, s{S_WAVE}, 3')
    k(f's_mul_i32 s77, s75, {16*2304}')
    k('s_mul_i32 s78, s76, 576')
    k('s_add_u32 s77, s77, s78')
    for i in range(9):
        k(f'buffer_load_dwordx4 {vr(VXD+4*i,4)}, v6, {sr(SRD_X,4)}, s77 offen offset:{64*i}')
    k('s_waitcnt vmcnt(18)')
    for j in range(4):
        k(f'v_lshlrev_b32 v{VC+4+2*j}, 16, v{VC+j}')
        k(f'v_and_b32 v{VC+5+2*j}, 0xffff0000, v{VC+j}')
    for j in range(8):
        k(f'v_mul_f32 v{VU+j}, {f32(-math.log2(math.e))}, v{VC+4+j}')
    for j in range(8):
        k(f'v_exp_f32 v{VU+j}, v{VU+j}')
    for j in range(8):
        k(f'v_add_f32 v{VU+j}, 1.0, v{VU+j}')
    for j in range(8):
        k(f'v_rcp_f32 v{VU+j}, v{VU+j}')
    for j in range(8):
        k(f'v_mul_f32 v{VC+4+j}, v{VU+j}, v{VC+4+j}')
    k('v_lshlrev_b32 v8, 1, v3')
    k('v_cmp_gt_u32 vcc, 9216, v8')
    k('s_and_saveexec_b64 s[80:81], vcc')
    k(f'ds_write_b128 v8, {vr(VC+4,4)} offset:{L_SILU}')
    k(f'ds_write_b128 v8, {vr(VC+8,4)} offset:{L_SILU+16}')
    k('s_mov_b64 exec, s[80:81]')
    k('s_waitcnt lgkmcnt(0)')
    k('s_barrier')
    for i in range(9):
        k(f'ds_read2st64_b32 {vr(VS+2*i,2)}, v4 offset0:{2*i} offset1:{2*i+18}')
    k.label('pa_pass')
    for j in range(16):
        k(f'v_mov_b32 v{VAC+j}, 0')
    k('s_waitcnt lgkmcnt(0)')
    k('s_cmp_eq_u32 s74, 3')
    k('s_cbranch_scc0 pa_p1')
    k('s_waitcnt vmcnt(0)')
    k.label('pa_p1')
    for i in range(9):
        k(f's_waitcnt vmcnt({9 + 8 - i})')
        for j in range(4):
            k(f'v_lshlrev_b32 v{VU+2*j}, 16, v{VW+4*i+j}')
            k(f'v_and_b32 v{VU+2*j+1}, 0xffff0000, v{VW+4*i+j}')
        for j in range(4):
            k(f'v_pk_fma_f32 {vr(VAC+4*j,2)}, {vr(VS+2*i,2)}, {vr(VU+2*j,2)}, {vr(VAC+4*j,2)} op_sel:[0,0,0] op_sel_hi:[1,0,1]')
            k(f'v_pk_fma_f32 {vr(VAC+4*j+2,2)}, {vr(VS+2*i,2)}, {vr(VU+2*j,2)}, {vr(VAC+4*j+2,2)} op_sel:[0,1,0] op_sel_hi:[1,1,1]')
    k('s_nop 1')
    for j in range(8):
        k(f'v_permlane32_swap_b32 v{VAC+j}, v{VAC+8+j}')
    k('s_nop 1')
    for j in range(8):
        k(f'v_add_f32 v{VAC+j}, v{VAC+j}, v{VAC+8+j}')
    k('s_nop 1')
    for j in range(4):
        k(f'v_permlane16_swap_b32 v{VAC+j}, v{VAC+4+j}')
    k('s_nop 1')
    for j in range(4):
        k(f'v_add_f32 v{VAC+j}, v{VAC+j}, v{VAC+4+j}')
    k('s_nop 1')
    for j in range(4):
        k(f'v_add_f32_dpp v{VAC+4+j}, v{VAC+j}, v{VAC+j} row_ror:4 row_mask:0xf bank_mask:0xf')
    k('s_nop 1')
    for j in range(4):
        k(f'v_add_f32_dpp v{VAC+j}, v{VAC+4+j}, v{VAC+4+j} row_ror:8 row_mask:0xf bank_mask:0xf')
    k(f'v_lshrrev_b32 v8, 4, v{VL}')
    k(f'v_and_b32 v9, 3, v{VL}')
    k('v_lshl_add_u32 v8, v8, 2, v9')
    k(f's_lshl_b32 s{S_T0}, s{S_WAVE}, 8')
    k(f'v_lshl_add_u32 v8, v8, 4, s{S_T0}')
    k(f'ds_write_b128 v8, {vr(VAC,4)} offset:{L_RED}')
    k('s_waitcnt lgkmcnt(0)')
    k('s_barrier')
    k(f's_cmp_lg_u32 s{S_WAVE}, 0')
    k('s_cbranch_scc1 pa_nored')
    k(f'v_lshlrev_b32 v8, 2, v{VL}')
    for w in range(8):
        k(f'ds_read_b32 v{VU+w}, v8 offset:{L_RED + 256*w}')
    k(f'v_bfe_u32 v9, v{VL}, 2, 2')
    k('v_lshlrev_b32 v9, 3, v9')
    k(f'v_lshrrev_b32 v10, 4, v{VL}')
    k('v_lshl_add_u32 v9, v10, 1, v9')
    k(f'v_bfe_u32 v10, v{VL}, 1, 1')
    k('v_add_u32 v9, v9, v10')
    k('v_lshlrev_b32 v9, 2, v9')
    k(f'v_and_b32 v10, 1, v{VL}')
    k(f's_mov_b32 s{S_T0}, 13824')
    k(f'v_mad_u32_u24 v9, v10, s{S_T0}, v9')
    k(f's_lshl_b32 s{S_T1}, s73, 7')
    k('s_cmp_ge_u32 s73, 36')
    k(f's_cselect_b32 s{S_T2}, 1.0, 0')
    k('s_cmp_ge_u32 s73, 72')
    k(f's_cselect_b32 s{S_T2}, 0, s{S_T2}')
    k('s_waitcnt lgkmcnt(0)')
    k(f'v_add_f32 v{VU}, v{VU}, v{VU+1}\nv_add_f32 v{VU+2}, v{VU+2}, v{VU+3}\nv_add_f32 v{VU+4}, v{VU+4}, v{VU+5}\nv_add_f32 v{VU+6}, v{VU+6}, v{VU+7}')
    k(f'v_add_f32 v{VU}, v{VU}, v{VU+2}\nv_add_f32 v{VU+4}, v{VU+4}, v{VU+6}\nv_add_f32 v{VU}, v{VU}, v{VU+4}')
    k(f'v_add_f32 v{VU}, s{S_T2}, v{VU}')
    k(f'buffer_store_dword v{VU}, v9, {sr(SRD_O,4)}, s{S_T1} offen sc1')
    k('s_cmp_ge_u32 s72, 72')
    k('s_cbranch_scc1 pa_nored')
    k('s_waitcnt vmcnt(0)')
    k('v_mov_b32 v9, s72')
    k('v_mov_b32 v10, 1')
    k(f'v_cmp_eq_u32 vcc, 0, v{VL}')
    k('s_and_saveexec_b64 s[80:81], vcc')
    k(f'buffer_store_byte v10, v9, {sr(SRD_Y,4)}, 0 offen sc1')
    k('s_mov_b64 exec, s[80:81]')
    k.label('pa_nored')
    stamp(k, 0)
    k('s_cmp_eq_u32 s74, 2')
    k('s_cbranch_scc0 pa_onepass')
    k('s_mov_b32 s74, 3')
    k('s_add_u32 s73, s73, 1')
    k('s_barrier')
    issue_w()
    k('s_branch pa_pass')
    k.label('pa_onepass')
    k('s_cmp_ge_u32 s72, 64')
    k(f's_cbranch_scc1 {name}_end')
    VN = 136
    VM = 16
    k('s_waitcnt vmcnt(0)')
    k('v_mov_b32 v10, 0\nv_mov_b32 v11, 0\nv_mov_b32 v12, 0\nv_mov_b32 v13, 0')
    k(f's_mov_b32 s{S_T0}, 0x3f803f80')
    for j in range(36):
        k(f'v_dot2_f32_bf16 v{10+(j&1)}, v{VXD+j}, s{S_T0}, v{10+(j&1)}')
        k(f'v_dot2_f32_bf16 v{12+(j&1)}, v{VXD+j}, v{VXD+j}, v{12+(j&1)}')
    k('s_nop 3')
    k('v_add_f32 v10, v10, v11\nv_add_f32 v12, v12, v13')
    k('s_nop 1')
    k('v_permlane32_swap_b32 v10, v12')
    k('s_nop 1')
    k('v_add_f32 v10, v10, v12')
    k('v_mov_b32 v11, v10')
    k('s_nop 1')
    k('v_permlane16_swap_b32 v10, v11')
    k('s_nop 1')
    k('v_add_f32 v10, v10, v11')
    k(f'v_lshrrev_b32 v8, 5, v{VL}')
    k('v_lshlrev_b32 v8, 6, v8')
    k(f'v_and_b32 v9, 15, v{VL}')
    k('v_lshl_add_u32 v8, v9, 2, v8')
    k(f's_lshl_b32 s{S_T0}, s{S_WAVE}, 7')
    k(f'v_add_u32 v8, s{S_T0}, v8')
    k(f'ds_write_b32 v8, v10 offset:{L_STAT}')
    k('s_waitcnt lgkmcnt(0)')
    k('s_barrier')
    k(f's_lshr_b32 s{S_T0}, s{S_WAVE}, 2')
    k(f's_lshl_b32 s{S_T0}, s{S_T0}, 9')
    k(f'v_lshl_add_u32 v8, v9, 2, s{S_T0}')
    for q in range(4):
        k(f'ds_read2_b32 {vr(VU+2*q,2)}, v8 offset0:{(L_STAT-11264)//4 + q*32} offset1:{(L_STAT-11264)//4 + q*32 + 16}'.replace('v8 ', 'v14 ') if False else
          f'ds_read_b32 v{VU+2*q}, v8 offset:{L_STAT + q*128}\nds_read_b32 v{VU+2*q+1}, v8 offset:{L_STAT + q*128 + 64}')
    k('s_waitcnt lgkmcnt(0)')
    k(f'v_add_f32 v10, v{VU}, v{VU+2}\nv_add_f32 v11, v{VU+4}, v{VU+6}\nv_add_f32 v12, v{VU+1}, v{VU+3}\nv_add_f32 v13, v{VU+5}, v{VU+7}')
    k('v_add_f32 v10, v10, v11\nv_add_f32 v12, v12, v13')
    k(f'v_mul_f32 v10, {f32(1.0/D)}, v10')
    k(f'v_mul_f32 v12, {f32(1.0/D)}, v12')
    k('v_fma_f32 v12, -v10, v10, v12')
    k('v_max_f32 v12, 0, v12')
    k(f'v_add_f32 v12, {f32(1e-5)}, v12')
    k('v_rsq_f32 v12, v12')
    k('s_nop 0')
    k('v_mul_f32 v10, v10, v12')
    k('v_sub_f32 v10, 0, v10')
    for j in range(36):
        k(f'v_lshlrev_b32 v{VN+2*j}, 16, v{VXD+j}')
        k(f'v_and_b32 v{VN+2*j+1}, 0xffff0000, v{VXD+j}')
        k(f'v_fma_f32 v{VN+2*j}, v{VN+2*j}, v12, v10')
        k(f'v_fma_f32 v{VN+2*j+1}, v{VN+2*j+1}, v12, v10')
    k(f's_cmp_lg_u32 s{S_WAVE}, 0')
    k('s_cbranch_scc1 pa_hwait')
    k(f'v_lshlrev_b32 v8, 2, v{VL}')
    k(f'v_cmp_gt_u32 s[82:83], 18, v{VL}')
    k(f's_mov_b32 s{S_CNT}, 0x40000')
    k(f's_mov_b32 s{S_T2}, 0x01010101')
    k.label('pa_poll')
    k(f'buffer_load_dword v9, v8, {sr(SRD_Y,4)}, 0 offen sc1')
    k('s_waitcnt vmcnt(0)')
    k(f'v_cmp_ne_u32 vcc, s{S_T2}, v9')
    k('s_nop 1')
    k('s_and_b64 s[84:85], vcc, s[82:83]')
    k('s_cbranch_scc0 pa_polled')
    k('s_sleep 2')
    k(f's_sub_u32 s{S_CNT}, s{S_CNT}, 1')
    k(f's_cmp_lg_u32 s{S_CNT}, 0')
    k('s_cbranch_scc1 pa_poll')
    k.label('pa_polled')
    k(f'v_lshlrev_b32 v8, 4, v{VL}')
    k('s_lshr_b32 s79, s72, 5')
    k('s_mul_i32 s79, s79, 13824')
    for c in range(9):
        if c % 4 == 0:
            k(f's_mov_b32 m0, {L_MOD + c*1024}')
            k(f's_add_u32 s{S_T0}, s79, {c*1024}')
        k(f'buffer_load_dwordx4 v8, {sr(SRD_O,4)}, s{S_T0} offen offset:{(c%4)*1024} sc1 lds')
    k('s_waitcnt vmcnt(0)')
    k.label('pa_hwait')
    k('s_barrier')
    stamp(k, 1)
    ws_srd(k, SRD_A, 'H')
    k(f'v_lshrrev_b32 v8, 4, v{VL}')
    k('v_lshlrev_b32 v8, 5, v8')
    k(f's_mul_i32 s{S_T0}, s76, 1152')
    k(f'v_add_u32 v8, s{S_T0}, v8')
    k(f'v_lshlrev_b32 v9, 4, v{VL}')
    k(f's_mul_i32 s{S_G}, s76, {9*128}')
    k(f's_add_u32 s{S_G}, s{S_G}, s75')
    k(f's_lshl_b32 s{S_G}, s{S_G}, 10')
    def rd(i):
        m = VM + (i & 1)*16
        return [f'ds_read_b128 {vr(m,4)}, v8 offset:{L_MOD + i*128}', f'ds_read_b128 {vr(m+4,4)}, v8 offset:{L_MOD + i*128 + 16}',
                f'ds_read_b128 {vr(m+8,4)}, v8 offset:{L_MOD + 4608 + i*128}', f'ds_read_b128 {vr(m+12,4)}, v8 offset:{L_MOD + 4608 + i*128 + 16}']
    for r in rd(0): k(r)
    for i in range(9):
        if i < 8:
            for r in rd(i+1): k(r)
            k('s_waitcnt lgkmcnt(4)')
        else:
            k('s_waitcnt lgkmcnt(0)')
        m = VM + (i & 1)*16
        for j in range(8):
            k(f'v_fma_f32 v{VN+8*i+j}, v{VN+8*i+j}, v{m+8+j}, v{m+j}')
        for j in range(4):
            k(f'v_cvt_pk_bf16_f32 v{VXD+4*i+j}, v{VN+8*i+2*j}, v{VN+8*i+2*j+1}')
        k(f'buffer_store_dwordx4 {vr(VXD+4*i,4)}, v9, {sr(SRD_A,4)}, s{S_G} offen{ST}')
        if i < 8: k(f's_add_u32 s{S_G}, s{S_G}, {128*1024}')
    endpgm(k)
    k.label(f'{name}_end')
    k('s_endpgm')
    return name, 256, 512, g.lds_bytes, max(vmax, VN+72)

def kernel_B(k):
    name = 'pb_kernel'
    prologue(k, name, 256)
    k('s_lshl_b32 s66, s64, 5')
    k('s_add_u32 s66, s66, s65')
    k('s_cmp_ge_u32 s66, 144')
    k('s_cbranch_scc1 pb_wvo')
    div_const(k, 67, 66, 9, 255)
    k('s_mul_i32 s68, s67, 9')
    k('s_sub_u32 s68, s66, s68')
    k(f's_lshl_b32 s{S_ABASE}, s68, 13')
    k(f's_lshl_b32 s{S_BBASE}, s67, 13')
    k('s_lshl_b32 s75, s68, 2')
    k('s_lshl_b32 s76, s67, 3')
    k('s_waitcnt lgkmcnt(0)')
    ws_srd(k, SRD_A, 'WQK'); ws_srd(k, SRD_B, 'H'); ws_srd(k, SRD_O, 'T')
    g1 = Gemm('tt', Opnd('frag', 8, SRD_A, S_ABASE, rbtot=72), Opnd('frag', 8, SRD_B, S_BBASE, rbtot=128), 2, 2, 18, 4)
    gemm_role(k, g1, epi_frag16(128, 75, 76))
    k.label('pb_wvo')
    k('s_cmp_ge_u32 s66, 225')
    k('s_cbranch_scc1 pb_kvc')
    k('s_sub_u32 s66, s66, 144')
    div_const(k, 67, 66, 9, 255)
    k('s_mul_i32 s68, s67, 9')
    k('s_sub_u32 s68, s66, s68')
    k(f's_mul_i32 s{S_ABASE}, s68, {128*6912}')
    k(f's_add_u32 s{S_ABASE}, s{S_ABASE}, {2*D*2}')
    k(f's_lshl_b32 s{S_BBASE}, s67, 8')
    k('s_lshl_b32 s75, s68, 2')
    k('s_lshl_b32 s76, s67, 3')
    k('s_waitcnt lgkmcnt(0)')
    make_srd(k, SRD_A, P_WQKV, D*3*D*2); make_srd(k, SRD_B, P_WO, D*D*2); ws_srd(k, SRD_O, 'WVO')
    g2 = Gemm('wvo', Opnd('row', 8, SRD_A, S_ABASE, stride=6912, perm=True), Opnd('col', 8, SRD_B, S_BBASE, stride=2304), 2, 2, 18, 4)
    gemm_role(k, g2, epi_frag16(72, 75, 76, rowperm=True), npre=4)
    k.label('pb_kvc')
    k('s_cmp_ge_u32 s66, 249')
    k(f's_cbranch_scc1 {name}_end')
    k('s_sub_u32 s66, s66, 225')
    k('s_and_b32 s67, s66, 1')
    k('s_lshr_b32 s68, s66, 1')
    k(f's_mul_i32 s{S_ABASE}, s68, 384')
    k(f's_mul_i32 s{S_BBASE}, s67, {77*2304}')
    k(f's_add_u32 s69, s{S_BBASE}, {77*2304}')
    k('s_waitcnt lgkmcnt(0)')
    make_srd(k, SRD_A, P_WKVC, D*2*D*2); make_srd(k, SRD_B, P_Y, 's69'); ws_srd(k, SRD_O, 'KVC')
    g3 = Gemm('kvc', Opnd('col', 12, SRD_A, S_ABASE, stride=4608), Opnd('row', 5, SRD_B, S_BBASE, stride=2304), 4, 1, 18, 4)
    def epi_kvc(k, g):
        k(f'v_and_b32 v1, 15, v{VL}')
        k('v_lshlrev_b32 v1, 4, v1')
        k(f'v_lshrrev_b32 v{VT}, 5, v{VL}')
        k(f'v_lshl_add_u32 v1, v{VT}, 8, v1')
        k(f'v_bfe_u32 v{VT}, v{VL}, 4, 1')
        k(f'v_lshl_add_u32 v1, v{VT}, 3, v1')
        k('s_mul_i32 s70, s68, 12')
        k(f's_mul_i32 s71, s{S_WA}, 3')
        k('s_add_u32 s70, s70, s71')
        k('s_mul_i32 s72, s67, 5120')
        k('s_nop 7')
        t = g.VF
        for i in range(3):
            k(f's_add_u32 s71, s70, {i}')
            k(f's_lshr_b32 s{S_T0}, s71, 1')
            k(f's_mul_i32 s{S_T0}, s{S_T0}, 10240')
            k('s_and_b32 s71, s71, 1')
            k('s_lshl_b32 s71, s71, 9')
            k(f's_add_u32 s{S_T0}, s{S_T0}, s71')
            k(f's_add_u32 s{S_T0}, s{S_T0}, s72')
            k(f's_add_u32 s{S_T1}, s{S_T0}, 4096')
            for b in range(5):
                c0 = acc(g, i, b)
                k(f'v_cvt_pk_bf16_f32 v{t}, v{c0}, v{c0+1}')
                k(f'v_cvt_pk_bf16_f32 v{t+1}, v{c0+2}, v{c0+3}')
                k(f'buffer_store_dwordx2 {vr(t,2)}, v1, {sr(SRD_O,4)}, s{S_T0 if b < 4 else S_T1} offen offset:{(b%4)*1024}{ST}')
                t += 2
        g.vmax = g.VX
    gemm_role(k, g3, epi_kvc, npre=4)
    k.label(f'{name}_end')
    k('s_endpgm')
    return name, 256, 512, max(g1.lds_bytes, g2.lds_bytes, g3.lds_bytes), max(g1.vmax, g2.vmax, g3.vmax)

def xlane_reduce(k, op, v, t):
    k(f'v_mov_b32 v{t}, v{v}')
    k('s_nop 1')
    k(f'v_permlane32_swap_b32 v{v}, v{t}')
    k('s_nop 1')
    k(f'{op} v{v}, v{v}, v{t}')
    k(f'v_mov_b32 v{t}, v{v}')
    k('s_nop 1')
    k(f'v_permlane16_swap_b32 v{v}, v{t}')
    k('s_nop 1')
    k(f'{op} v{v}, v{v}, v{t}')

def kernel_C(k):
    name = 'pc_kernel'
    prologue(k, name, 256)
    k('s_cmp_ge_u32 s64, 4')
    k('s_cbranch_scc1 pc_v')
    k('s_lshr_b32 s66, s64, 1')
    k('s_and_b32 s67, s64, 1')
    k('s_lshl_b32 s67, s67, 2')
    k('s_lshr_b32 s68, s65, 3')
    k('s_add_u32 s67, s67, s68')
    k('s_and_b32 s68, s65, 7')
    k('s_lshl_b32 s69, s66, 3')
    k('s_add_u32 s70, s69, s68')
    k(f's_lshl_b32 s{S_ABASE}, s70, 13')
    k('s_add_u32 s70, s69, s67')
    k(f's_lshl_b32 s{S_BBASE}, s70, 13')
    k('s_lshl_b32 s75, s68, 2')
    k('s_lshl_b32 s76, s67, 3')
    k('s_lshl_b32 s77, s66, 21')
    k('s_waitcnt lgkmcnt(0)')
    ws_srd(k, SRD_A, 'H'); ws_srd(k, SRD_B, 'T'); ws_srd(k, SRD_O, 'P'); ws_srd(k, SRD_X, 'ST')
    g1 = Gemm('ss', Opnd('frag', 8, SRD_A, S_ABASE, rbtot=128), Opnd('frag', 8, SRD_B, S_BBASE, rbtot=128), 1, 4, 18, 4)
    def epi_s(k, g):
        k('s_nop 7')
        k(f's_mov_b32 s78, {f32(CSC)}')
        VM = g.VX
        for b in range(2):
            regs = [acc(g, a, b) + r for a in range(8) for r in range(4)]
            m = VM + b
            k(f'v_max3_f32 v{m}, v{regs[0]}, v{regs[1]}, v{regs[2]}')
            k(f'v_max3_f32 v{VM+4}, v{regs[3]}, v{regs[4]}, v{regs[5]}')
            i = 6
            tog = 0
            while i < 32:
                d = m if tog == 0 else VM+4
                k(f'v_max3_f32 v{d}, v{d}, v{regs[i]}, v{regs[i+1]}')
                i += 2; tog ^= 1
            k(f'v_max_f32 v{m}, v{m}, v{VM+4}')
            xlane_reduce(k, 'v_max_f32', m, VM+4)
            k(f'v_mul_f32 v{m}, s78, v{m}')
            for r in regs: k(f'v_fma_f32 v{r}, v{r}, s78, -v{m}')
            for r in regs: k(f'v_exp_f32 v{r}, v{r}')
            l = VM + 2 + b
            k(f'v_add_f32 v{l}, v{regs[0]}, v{regs[1]}')
            k(f'v_add_f32 v{VM+4}, v{regs[2]}, v{regs[3]}')
            for i in range(4, 32, 2):
                k(f'v_add_f32 v{l}, v{l}, v{regs[i]}')
                k(f'v_add_f32 v{VM+4}, v{VM+4}, v{regs[i+1]}')
            k(f'v_add_f32 v{l}, v{l}, v{VM+4}')
            xlane_reduce(k, 'v_add_f32', l, VM+4)
        epi_frag16(64, 75, 76, extra_off=77)(k, g)
        k(f'v_and_b32 v{VT}, 15, v{VL}')
        k(f'v_lshlrev_b32 v{VT}, 6, v{VT}')
        k(f's_lshl_b32 s{S_T0}, s70, 13')
        k(f's_lshl_b32 s{S_T1}, s{S_WB}, 11')
        k(f's_add_u32 s{S_T0}, s{S_T0}, s{S_T1}')
        k(f's_lshl_b32 s{S_T1}, s68, 2')
        k(f's_add_u32 s{S_T0}, s{S_T0}, s{S_T1}')
        k(f'v_cmp_gt_u32 vcc, 16, v{VL}')
        k('s_and_saveexec_b64 s[80:81], vcc')
        for b in range(2):
            k(f'buffer_store_dword v{VM+b}, v{VT}, {sr(SRD_X,4)}, s{S_T0} offen offset:{b*1024}{ST}')
            k(f'buffer_store_dword v{VM+2+b}, v{VT}, {sr(SRD_X,4)}, s{S_T0} offen offset:{b*1024+32}{ST}')
        g.vmax = max(g.vmax, VM+5)
    gemm_role(k, g1, epi_s)
    k.label('pc_v')
    k('s_sub_u32 s66, s64, 4')
    k('s_lshl_b32 s66, s66, 2')
    k('s_lshr_b32 s67, s65, 3')
    k('s_add_u32 s66, s66, s67')
    k('s_and_b32 s67, s65, 7')
    k(f's_lshl_b32 s{S_ABASE}, s66, 13')
    k(f's_mul_i32 s{S_BBASE}, s67, {9*1024}')
    k('s_lshl_b32 s75, s66, 2')
    k('s_mul_i32 s76, s67, 9')
    k('s_waitcnt lgkmcnt(0)')
    ws_srd(k, SRD_A, 'H'); ws_srd(k, SRD_B, 'WVO'); ws_srd(k, SRD_O, 'VT')
    g2 = Gemm('vv', Opnd('frag', 8, SRD_A, S_ABASE, rbtot=128), Opnd('frag', 9, SRD_B, S_BBASE, rbtot=72), 4, 1, 18, 4)
    gemm_role(k, g2, epi_frag16(72, 75, 76))
    k.label(f'{name}_end')
    k('s_endpgm')
    return name, 256, 512, max(g1.lds_bytes, g2.lds_bytes), max(g1.vmax, g2.vmax)

def kernel_D(k):
    name = 'pd_kernel'
    prologue(k, name, 256)
    k('s_cmp_ge_u32 s65, 24')
    k('s_cbranch_scc1 pd_aux')
    k('s_lshr_b32 s66, s64, 2')
    k('s_and_b32 s67, s64, 1')
    k('s_lshl_b32 s67, s67, 2')
    k('s_and_b32 s68, s65, 3')
    k('s_add_u32 s67, s67, s68')
    k('s_bfe_u32 s68, s64, 0x10001')
    k('s_mul_i32 s68, s68, 6')
    k('s_lshr_b32 s69, s65, 2')
    k('s_add_u32 s68, s68, s69')
    k(f's_mul_i32 s{S_ABASE}, s66, {32*72*1024}')
    k('s_mul_i32 s69, s68, 6144')
    k(f's_add_u32 s{S_ABASE}, s{S_ABASE}, s69')
    k(f's_lshl_b32 s{S_BBASE}, s66, 21')
    k('s_lshl_b32 s69, s67, 13')
    k(f's_add_u32 s{S_BBASE}, s{S_BBASE}, s69')
    k('s_lshl_b32 s70, s66, 3')
    k('s_add_u32 s70, s70, s67')
    k('s_mul_i32 s75, s68, 3')
    k('s_lshl_b32 s76, s70, 3')
    k('s_waitcnt lgkmcnt(0)')
    ws_srd(k, SRD_A, 'VT'); ws_srd(k, SRD_B, 'P'); ws_srd(k, SRD_O, 'X1')
    LT = 4096
    g1 = Gemm('pv', Opnd('frag', 6, SRD_A, S_ABASE, rbtot=72), Opnd('frag', 8, SRD_B, S_BBASE, rbtot=64), 1, 4, 16, 5, lds0=4*LT)
    def pv_consumer(k, g):
        ma, nb = 6, 2
        VF = g.VF
        VX = g.VX
        VGT = VX
        VXR = VX + 24
        VR = VX + 48
        VS_ = VF
        ws_srd(k, SRD_X, 'ST')
        k(f'v_and_b32 v{VT}, 15, v{VL}')
        k(f'v_lshlrev_b32 v1, 6, v{VT}')
        k(f's_lshl_b32 s{S_T0}, s70, 13')
        k(f's_lshl_b32 s{S_T1}, s{S_WB}, 11')
        k(f's_add_u32 s{S_T0}, s{S_T0}, s{S_T1}')
        for b in range(2):
            for q in range(4):
                k(f'buffer_load_dwordx4 {vr(VS_+16*b+4*q,4)}, v1, {sr(SRD_X,4)}, s{S_T0} offen offset:{b*1024+16*q}')
        ws_srd(k, SRD_Y, 'MOD')
        k(f'v_lshrrev_b32 v{VT+1}, 4, v{VL}')
        k(f'v_lshlrev_b32 v1, 5, v{VT+1}')
        k(f's_mul_i32 s{S_T0}, s66, 13824')
        k(f's_mul_i32 s{S_T1}, s68, 384')
        k(f's_add_u32 s{S_T0}, s{S_T0}, s{S_T1}')
        k(f's_add_u32 s{S_T0}, s{S_T0}, 9216')
        for ap in range(3):
            for h in range(2):
                k(f'buffer_load_dwordx4 {vr(VGT+8*ap+4*h,4)}, v1, {sr(SRD_Y,4)}, s{S_T0} offen offset:{ap*128+16*h}')
        make_srd(k, SRD_X, P_X, NR*D*2)
        k(f's_mov_b32 s{S_T0}, 2304')
        k(f'v_mul_u32_u24 v1, s{S_T0}, v{VT}')
        k(f'v_lshl_add_u32 v1, v{VT+1}, 4, v1')
        k(f's_lshl_b32 s{S_T0}, s70, 2')
        k(f's_add_u32 s{S_T0}, s{S_T0}, s{S_WB}')
        k(f's_mul_i32 s{S_T0}, s{S_T0}, {32*2304}')
        k(f's_mul_i32 s{S_T1}, s68, 192')
        k(f's_add_u32 s{S_T0}, s{S_T0}, s{S_T1}')
        k(f's_add_u32 s{S_T1}, s{S_T0}, {16*2304}')
        for ap in range(3):
            for b in range(2):
                k(f'buffer_load_dwordx4 {vr(VXR+(ap*2+b)*4,4)}, v1, {sr(SRD_X,4)}, s{S_T0 if b == 0 else S_T1} offen offset:{ap*64}')
        aA = cons_addr_setup(k, g, g.A, ma, S_WA, VL, VA, VT)
        aB = cons_addr_setup(k, g, g.B, nb, S_WB, VL, VA + len(aA), VT)
        addrs = aA + aB
        for i in range(ma*nb*4):
            k(f'v_mov_b32 v{VACC+i}, 0')
        k(f's_lshl_b32 s{S_T0}, s{S_WAVE}, 12')
        k(f'v_lshl_add_u32 v{VR+4}, v{VL}, 3, s{S_T0}')
        k('s_waitcnt vmcnt(12)')
        T = VF + 32
        k(f's_mov_b32 s78, {f32(-64.0)}')
        for b in range(2):
            m = VS_ + 16*b; l = m + 8
            k(f'v_max3_f32 v{T}, v{m}, v{m+1}, v{m+2}')
            k(f'v_max3_f32 v{T}, v{T}, v{m+3}, v{m+4}')
            k(f'v_max3_f32 v{T}, v{T}, v{m+5}, v{m+6}')
            k(f'v_max_f32 v{T}, v{T}, v{m+7}')
            for c in range(8):
                k(f'v_sub_f32 v{m+c}, v{m+c}, v{T}')
                k(f'v_max_f32 v{m+c}, s78, v{m+c}')
            for c in range(8):
                k(f'v_exp_f32 v{T+1+c}, v{m+c}')
            k('s_nop 0')
            k(f'v_mul_f32 v{T}, v{T+1}, v{l}')
            for c in range(1, 8):
                k(f'v_fma_f32 v{T}, v{T+1+c}, v{l+c}, v{T}')
            k(f'v_rcp_f32 v{T}, v{T}')
            k('s_nop 0')
            k(f'v_mul_f32 v{VR+2+b}, v{T}, v{T+8}')
            k(f'v_mov_b32 v{l}, 1.0')
            for c in range(1, 8):
                k(f'v_sub_f32 v{l+c}, v{m+c-1}, v{m+c}')
            for c in range(1, 8):
                k(f'v_exp_f32 v{l+c}, v{l+c}')
        k('s_nop 0')
        for c in range(8):
            k(f'ds_write2_b32 v{VR+4}, v{VS_+8+c}, v{VS_+24+c} offset0:{c*128} offset1:{c*128+1}' if c < 2 else
              f'ds_write_b32 v{VR+4}, v{VS_+8+c} offset:{c*512}\nds_write_b32 v{VR+4}, v{VS_+24+c} offset:{c*512+4}')
        k('s_waitcnt lgkmcnt(0)')
        setsz = (ma + nb) * 4
        def fa(st, a): return VF + st*setsz + 4*a
        def fb(st, b): return VF + st*setsz + 4*ma + 4*b
        def reads(s, st):
            return cons_reads(g, g.B, nb, aB, s, fb(st, 0)) + cons_reads(g, g.A, ma, aA, s, fa(st, 0))
        def mf(st):
            return [f'v_mfma_f32_16x16x32_bf16 {vr(acc(g,a,b),4)}, {vr(fa(st,a),4)}, {vr(fb(st,b),4)}, {vr(acc(g,a,b),4)}'
                    for a in range(ma) for b in range(nb)]
        def muls(i):
            a, b = divmod(i, nb)
            c = acc(g, a, b)
            return [f'v_mul_f32 v{c+r}, v{VR+b}, v{c+r}' for r in range(4)]
        adv = [f's_add_u32 s{S_SLOT}, s{S_SLOT}, {g.stage}',
               f's_cmp_eq_u32 s{S_SLOT}, {g.NS*g.stage}',
               f's_cselect_b32 s{S_DELTA}, {-(g.NS-1)*g.stage & 0xffffffff}, s{S_T3}',
               f's_cselect_b32 s{S_SLOT}, 0, s{S_SLOT}'] + [f'v_add_u32 v{a}, s{S_DELTA}, v{a}' for a in addrs]
        k(f's_mov_b32 s{S_SLOT}, 0')
        k(f's_mov_b32 s{S_CNT}, 8')
        k(f's_mov_b32 s{S_T3}, {g.stage}')
        k('s_barrier')
        stamp(k, 0)
        for r in reads(0, 0): k(r)
        k(f'ds_read_b64 {vr(VR,2)}, v{VR+4}')
        k('s_waitcnt lgkmcnt(0)')
        lp = k.newlabel('pv_mm'); le = k.newlabel('pv_last')
        k.label(lp)
        M = mf(0); fill = reads(1, 1) + adv
        for x in muls(0): k(x)
        for i in range(12):
            if i + 1 < 12:
                for x in muls(i+1): k(x)
            else:
                k('s_nop 1')
            k(M[i])
            if fill: k(fill.pop(0))
        for f in fill: k(f)
        k('s_waitcnt lgkmcnt(0)')
        k('s_barrier')
        interleave(k, mf(1), reads(0, 0) + [f'v_add_u32 v{VR+4}, 512, v{VR+4}', f's_sub_u32 s{S_CNT}, s{S_CNT}, 1'])
        k('s_waitcnt lgkmcnt(0)')
        interleave(k, mf(0), reads(1, 1) + adv)
        k('s_waitcnt lgkmcnt(0)')
        k(f's_cmp_eq_u32 s{S_CNT}, 0')
        k(f's_cbranch_scc1 {le}')
        k('s_barrier')
        interleave(k, mf(1), reads(0, 0) + [f'ds_read_b64 {vr(VR,2)}, v{VR+4}'])
        k('s_waitcnt lgkmcnt(0)')
        k(f's_branch {lp}')
        k.label(le)
        for m in mf(1): k(m)
        g.VGT, g.VXR, g.VR = VGT, VXR, VR
    def epi_pv(k, g):
        k('s_waitcnt vmcnt(0)')
        k('s_nop 7')
        T = g.VR + 6
        for ap in range(3):
            for b in range(2):
                xr = g.VXR + (ap*2+b)*4
                for h in range(2):
                    c = acc(g, 2*ap+h, b)
                    for r in range(4):
                        e = h*4 + r
                        k(f'v_mul_f32 v{c+r}, v{g.VR+2+b}, v{c+r}')
                        if e % 2 == 0: k(f'v_lshlrev_b32 v{T}, 16, v{xr+e//2}')
                        else: k(f'v_and_b32 v{T}, 0xffff0000, v{xr+e//2}')
                        k(f'v_fma_f32 v{c+r}, v{c+r}, v{g.VGT+8*ap+e}, v{T}')
        epi_frag16(128, 75, 76)(k, g)
        g.vmax = max(g.vmax, T+1)
    gemm_role(k, g1, epi_pv, custom_consumer=pv_consumer)
    k.label('pd_aux')
    k('s_sub_u32 s66, s65, 24')
    k('s_lshl_b32 s66, s66, 3')
    k('s_add_u32 s66, s66, s64')
    k('s_cmp_ge_u32 s66, 18')
    k('s_cbranch_scc1 pd_bt')
    k('s_and_b32 s67, s66, 1')
    k('s_lshr_b32 s68, s66, 1')
    k(f's_mul_i32 s{S_ABASE}, s68, {128*2304}')
    k(f's_mul_i32 s{S_BBASE}, s67, 5120')
    k('s_lshl_b32 s75, s68, 2')
    k('s_mul_i32 s76, s67, 5')
    k('s_waitcnt lgkmcnt(0)')
    make_srd(k, SRD_A, P_WQC, D*D*2); ws_srd(k, SRD_B, 'KVC'); ws_srd(k, SRD_O, 'AT')
    g2 = Gemm('at', Opnd('row', 8, SRD_A, S_ABASE, stride=2304, perm=True), Opnd('frag', 5, SRD_B, S_BBASE, rbtot=10), 4, 1, 18, 6)
    gemm_role(k, g2, epi_frag16(10, 75, 76), npre=6)
    k.label('pd_bt')
    k('s_cmp_ge_u32 s66, 36')
    k(f's_cbranch_scc1 {name}_end')
    k('s_sub_u32 s66, s66, 18')
    k('s_and_b32 s67, s66, 1')
    k('s_lshr_b32 s68, s66, 1')
    k(f's_mul_i32 s{S_ABASE}, s67, 5120')
    k(f's_add_u32 s{S_ABASE}, s{S_ABASE}, {36*10*1024}')
    k(f's_lshl_b32 s{S_BBASE}, s68, 8')
    k('s_mul_i32 s75, s67, 3')
    k('s_lshl_b32 s76, s68, 3')
    k('s_waitcnt lgkmcnt(0)')
    ws_srd(k, SRD_A, 'KVC'); make_srd(k, SRD_B, P_WOC, D*D*2); ws_srd(k, SRD_O, 'BT')
    g3 = Gemm('bt', Opnd('frag', 5, SRD_A, S_ABASE, rbtot=10), Opnd('col', 8, SRD_B, S_BBASE, stride=2304), 1, 4, 18, 6)
    gemm_role(k, g3, epi_frag16(72, 75, 76, rowperm=True), npre=6)
    k.label(f'{name}_end')
    k('s_endpgm')
    return name, 256, 512, max(g1.lds_bytes, g2.lds_bytes, g3.lds_bytes), max(g1.vmax, g2.vmax, g3.vmax)

def kernel_E(k):
    name = 'pe_kernel'
    prologue(k, name, 256)
    k('s_lshr_b32 s66, s64, 2')
    k('s_bfe_u32 s67, s64, 0x10001')
    k('s_and_b32 s68, s64, 1')
    k('s_lshl_b32 s68, s68, 5')
    k('s_add_u32 s68, s68, s65')
    k('s_lshl_b32 s69, s66, 6')
    k('s_add_u32 s68, s68, s69')
    k(f'v_lshlrev_b32 v1, 4, v{VL}')
    L_ST, L_Z, L_BT = 0, 1024, 32768
    VX_, VAT, VZ, VRS, VB = 8, 32, 152, 172, 184
    k(f's_mul_i32 s70, s{S_WAVE}, {6*128}')
    k('s_add_u32 s70, s70, s68')
    k('s_lshl_b32 s70, s70, 10')
    k(f's_mul_i32 s71, s{S_WAVE}, {6*10}')
    k('s_mul_i32 s72, s66, 5')
    k('s_add_u32 s71, s71, s72')
    k('s_lshl_b32 s71, s71, 10')
    k('s_waitcnt lgkmcnt(0)')
    ws_srd(k, SRD_A, 'X1'); ws_srd(k, SRD_B, 'AT'); ws_srd(k, SRD_X, 'BT'); make_srd(k, SRD_O, P_OUT, NR*D*2)
    for i in range(6):
        k(f'buffer_load_dwordx4 {vr(VX_+4*i,4)}, v1, {sr(SRD_A,4)}, s70 offen')
        if i < 5: k(f's_add_u32 s70, s70, {128*1024}')
    for i in range(6):
        k('s_add_u32 s72, s71, 4096')
        for mb in range(5):
            k(f'buffer_load_dwordx4 {vr(VAT+20*i+4*mb,4)}, v1, {sr(SRD_B,4)}, s{71 if mb < 4 else 72} offen offset:{(mb%4)*1024}')
        if i < 5: k('s_add_u32 s71, s71, 10240')
    k('s_mul_i32 s73, s67, 18')
    k(f's_mul_i32 s74, s{S_WAVE}, 3')
    k('s_add_u32 s73, s73, s74')
    k('s_lshl_b32 s74, s73, 7')
    k('s_add_u32 s74, s74, s68')
    k('s_lshl_b32 s74, s74, 10')
    for i in range(3):
        k(f'buffer_load_dwordx4 {vr(VRS+4*i,4)}, v1, {sr(SRD_A,4)}, s74 offen')
        if i < 2: k(f's_add_u32 s74, s74, {128*1024}')
    k('s_mul_i32 s75, s66, 216')
    k('s_lshl_b32 s76, s73, 1')
    k('s_add_u32 s75, s75, s76')
    k('s_lshl_b32 s75, s75, 10')
    k(f's_mul_i32 s76, s{S_WAVE}, {18*1024}')
    k(f's_add_u32 s76, s76, {L_BT}')
    for kb in range(3):
        for g0 in (0, 4):
            k(f's_add_u32 m0, s76, {kb*6144 + g0*1024}')
            k(f's_add_u32 s77, s75, {kb*72*1024 + g0*1024}')
            for i in range(4 if g0 == 0 else 2):
                k(f'buffer_load_dwordx4 v1, {sr(SRD_X,4)}, s77 offen offset:{i*1024} lds')
    for i in range(20): k(f'v_mov_b32 v{VZ+i}, 0')
    k('v_mov_b32 v2, 0\nv_mov_b32 v3, 0\nv_mov_b32 v4, 0\nv_mov_b32 v5, 0')
    k(f's_mov_b32 s{S_T0}, 0x3f803f80')
    k('s_waitcnt vmcnt(51)')
    stamp(k, 0)
    for j in range(24):
        k(f'v_dot2_f32_bf16 v{2+(j&1)}, v{VX_+j}, s{S_T0}, v{2+(j&1)}')
        k(f'v_dot2_f32_bf16 v{4+(j&1)}, v{VX_+j}, v{VX_+j}, v{4+(j&1)}')
    k('s_nop 3')
    k('v_add_f32 v2, v2, v3\nv_add_f32 v4, v4, v5')
    k('s_nop 1')
    k('v_permlane32_swap_b32 v2, v4')
    k('s_nop 1')
    k('v_add_f32 v2, v2, v4')
    k('v_mov_b32 v3, v2')
    k('s_nop 1')
    k('v_permlane16_swap_b32 v2, v3')
    k('s_nop 1')
    k('v_add_f32 v2, v2, v3')
    k(f'v_lshrrev_b32 v6, 5, v{VL}')
    k('v_lshlrev_b32 v6, 6, v6')
    k(f'v_and_b32 v7, 15, v{VL}')
    k('v_lshl_add_u32 v6, v7, 2, v6')
    k(f's_lshl_b32 s{S_T0}, s{S_WAVE}, 7')
    k(f'v_add_u32 v6, s{S_T0}, v6')
    k(f'ds_write_b32 v6, v2 offset:{L_ST}')
    k('s_waitcnt lgkmcnt(0)')
    k('s_barrier')
    k('v_lshlrev_b32 v6, 2, v7')
    for w in range(6):
        k(f'ds_read2_b32 {vr(VB+2*w,2)}, v6 offset0:{w*32} offset1:{w*32+16}')
    k('s_waitcnt lgkmcnt(0)')
    k(f'v_add_f32 v2, v{VB}, v{VB+2}\nv_add_f32 v4, v{VB+1}, v{VB+3}')
    for w in range(2, 6):
        k(f'v_add_f32 v2, v2, v{VB+2*w}\nv_add_f32 v4, v4, v{VB+2*w+1}')
    k(f'v_mul_f32 v2, {f32(1.0/D)}, v2')
    k(f'v_mul_f32 v4, {f32(1.0/D)}, v4')
    k('v_fma_f32 v4, -v2, v2, v4')
    k('v_max_f32 v4, 0, v4')
    k(f'v_add_f32 v4, {f32(1e-5)}, v4')
    k('v_rsq_f32 v4, v4')
    k('s_nop 0')
    k('v_mul_f32 v2, v2, v4')
    k('v_sub_f32 v2, 0, v2')
    for j in range(24):
        k(f'v_lshlrev_b32 v{VB}, 16, v{VX_+j}')
        k(f'v_and_b32 v{VB+1}, 0xffff0000, v{VX_+j}')
        k(f'v_fma_f32 v{VB}, v{VB}, v4, v2')
        k(f'v_fma_f32 v{VB+1}, v{VB+1}, v4, v2')
        k(f'v_cvt_pk_bf16_f32 v{VX_+j}, v{VB}, v{VB+1}')
    k('s_nop 1')
    for i in range(6):
        k(f's_waitcnt vmcnt({21 + 5*(5-i)})')
        for mb in range(5):
            k(f'v_mfma_f32_16x16x32_bf16 {vr(VZ+4*mb,4)}, {vr(VAT+20*i+4*mb,4)}, {vr(VX_+4*i,4)}, {vr(VZ+4*mb,4)}')
    stamp(k, 1)
    k(f's_mul_i32 s{S_T0}, s{S_WAVE}, 5120')
    k(f'v_add_u32 v6, s{S_T0}, v1')
    k('s_nop 7')
    for mb in range(5):
        k(f'ds_write_b128 v6, {vr(VZ+4*mb,4)} offset:{L_Z + mb*1024}')
    k('s_waitcnt lgkmcnt(0)')
    k('s_barrier')
    for w in range(6):
        for mb in range(5):
            k(f'ds_read_b128 {vr(VAT+20*w+4*mb,4)}, v1 offset:{L_Z + w*5120 + mb*1024}')
        if w == 2: k('s_waitcnt lgkmcnt(0)')
    k('s_waitcnt lgkmcnt(0)')
    k('s_waitcnt vmcnt(0)')
    k(f'v_add_u32 v6, s76, v1')
    for kb in range(3):
        for jb in range(6):
            k(f'ds_read_b128 {vr(VB+(kb*6+jb)*4,4)}, v6 offset:{kb*6144 + jb*1024}')
    for i in range(20):
        k(f'v_add_f32 v{VZ+i}, v{VAT+i}, v{VAT+20+i}')
        k(f'v_add_f32 v{VAT+40+i}, v{VAT+40+i}, v{VAT+60+i}')
        k(f'v_add_f32 v{VAT+80+i}, v{VAT+80+i}, v{VAT+100+i}')
        k(f'v_add3_f32 v{VZ+i}, v{VZ+i}, v{VAT+40+i}, v{VAT+80+i}' if False else
          f'v_add_f32 v{VZ+i}, v{VZ+i}, v{VAT+40+i}\nv_add_f32 v{VZ+i}, v{VZ+i}, v{VAT+80+i}')
    k(f'v_cmp_le_u32 vcc, 48, v{VL}')
    k(f'v_mov_b32 v2, {f32(-3.0e38)}')
    k('s_nop 0')
    for r in (17, 18, 19):
        k(f'v_cndmask_b32 v{VZ+r}, v{VZ+r}, v2, vcc')
    k(f'v_max3_f32 v2, v{VZ}, v{VZ+1}, v{VZ+2}')
    for i in range(3, 19, 2):
        k(f'v_max3_f32 v2, v2, v{VZ+i}, v{VZ+i+1}')
    k(f'v_max_f32 v2, v2, v{VZ+19}')
    xlane_reduce(k, 'v_max_f32', 2, 3)
    k(f's_mov_b32 s78, {f32(CSC)}')
    for i in range(20): k(f'v_sub_f32 v{VZ+i}, v{VZ+i}, v2')
    for i in range(20): k(f'v_mul_f32 v{VZ+i}, s78, v{VZ+i}')
    for i in range(20): k(f'v_exp_f32 v{VZ+i}, v{VZ+i}')
    k('s_nop 0')
    k(f'v_add_f32 v2, v{VZ}, v{VZ+1}')
    for i in range(2, 20): k(f'v_add_f32 v2, v2, v{VZ+i}')
    xlane_reduce(k, 'v_add_f32', 2, 3)
    k('v_rcp_f32 v2, v2')
    VP = VX_
    for i in range(10):
        k(f'v_cvt_pk_bf16_f32 v{VP+i}, v{VZ+2*i}, v{VZ+2*i+1}')
    k(f'v_mov_b32 v{VP+10}, 0\nv_mov_b32 v{VP+11}, 0')
    VO = VAT
    k('s_waitcnt lgkmcnt(0)')
    k('s_nop 0')
    for kb in range(3):
        for jb in range(6):
            c = '0' if kb == 0 else vr(VO+4*jb, 4)
            k(f'v_mfma_f32_16x16x32_bf16 {vr(VO+4*jb,4)}, {vr(VB+(kb*6+jb)*4,4)}, {vr(VP+4*kb,4)}, {c}')
    k(f's_mov_b32 s{S_T0}, 2304')
    k(f'v_mul_u32_u24 v6, s{S_T0}, v7')
    k(f'v_lshrrev_b32 v5, 4, v{VL}')
    k('v_lshl_add_u32 v6, v5, 4, v6')
    k(f's_mul_i32 s{S_T0}, s68, {16*2304}')
    k(f's_lshl_b32 s{S_T1}, s73, 6')
    k(f's_add_u32 s{S_T0}, s{S_T0}, s{S_T1}')
    k('s_nop 7')
    for i in range(3):
        for e in range(8):
            c = VO + 8*i + e
            if e % 2 == 0: k(f'v_lshlrev_b32 v3, 16, v{VRS+4*i+e//2}')
            else: k(f'v_and_b32 v3, 0xffff0000, v{VRS+4*i+e//2}')
            k(f'v_fma_f32 v{c}, v{c}, v2, v3')
        for j in range(4):
            k(f'v_cvt_pk_bf16_f32 v{VZ+4*i+j}, v{VO+8*i+2*j}, v{VO+8*i+2*j+1}')
        k(f'buffer_store_dwordx4 {vr(VZ+4*i,4)}, v6, {sr(SRD_O,4)}, s{S_T0} offen offset:{64*i}')
    endpgm(k)
    k.label(f'{name}_end')
    k('s_endpgm')
    return name, 256, 384, L_BT + 6*18*1024, VB + 72

def build(fn):
    k = K()
    ks = []
    for i, f in enumerate((kernel_A, kernel_B, kernel_C, kernel_D, kernel_E)):
        KIDX[0] = i
        ks.append(f(k))
    ref = open('standalone__pixart__diffusion.s.ref').read()
    hdr = ref.split('; Override launch geometry')[0]
    for (n, g, b, l, v) in ks:
        assert l <= 163840, (n, l)
        assert v <= 256, (n, v)
        hdr += f'; @launch kernel={n} grid=({g},1,1) block=({b},1,1) lds={l}\n'
    hdr += '.amdgcn_target "amdgcn-amd-amdhsa--gfx950"\n.text\n'
    desc = '.section .rodata,"a"\n'
    for (n, g, b, l, v) in ks:
        desc += '.p2align 6\n' + kernel_desc(n, v)
    open(fn, 'w').write(hdr + k.text() + desc)
    print(ks)

if __name__ == '__main__':
    STAMP = True
    build('stamped_v1.s')
    STAMP = False
    build(sys.argv[1] if len(sys.argv) > 1 else 'standalone__pixart__diffusion.s')
    import json
    pass
```

```python
from lib import *
base = open('v2.s').read()
def variant(fn, kind):
    k = K()
    kernel_header(k, 'pz_kernel')
    k('s_load_dwordx2 s[40:41], s[0:1], 64')
    k('s_cmp_ge_u32 s2, 256')
    k('s_cbranch_scc1 pz_end')
    k('s_waitcnt lgkmcnt(0)')
    make_srd(k, SRD_A, 40, 1152*13824)
    if kind in ('def', 'nt'):
        k('v_lshlrev_b32 v1, 4, v0')
        k('v_cmp_gt_u32 vcc, 6912, v1')
        k('s_and_saveexec_b64 s[80:81], vcc')
        k('s_cbranch_execz pz_end')
        k(f's_mul_i32 s{S_G}, s2, 13824')
        k(f's_add_u32 s{S_G}, s{S_G}, 6912')
        for i in range(5):
            k(f'buffer_load_dwordx4 {vr(4+4*i,4)}, v1, {sr(SRD_A,4)}, s{S_G} offen' + (' nt' if kind == 'nt' else ''))
            k(f's_add_u32 s{S_G}, s{S_G}, {256*13824}')
        k('s_waitcnt vmcnt(0)')
    elif kind == 'lat':
        k('s_cmp_lg_u32 s2, 0')
        k('s_cbranch_scc1 pz_end')
        k('v_mov_b32 v1, 6912')
        for i in range(32):
            k(f'buffer_load_dword v2, v1, {sr(SRD_A,4)}, 0 offen')
            k('s_waitcnt vmcnt(0)')
            k('v_and_b32 v2, 0, v2')
            k(f'v_add3_u32 v1, v1, v2, 64')
            k(f'v_add_u32 v1, {13824*33}, v1')
    k.label('pz_end')
    k('s_endpgm')
    s = base.replace('; @launch kernel=pa_kernel', '; @launch kernel=pz_kernel grid=(256,1,1) block=(512,1,1) lds=0\n; @launch kernel=pa_kernel', 1)
    s = s.replace('.section .rodata,"a"\n', k.text() + '.section .rodata,"a"\n.p2align 6\n' + kernel_desc('pz_kernel', 32), 1)
    open(fn, 'w').write(s)
for kd in ['empty', 'def', 'nt', 'lat']:
    variant(f'pz_{kd}.s', kd)
```

```python
from dataclasses import dataclass, field

class K:
    def __init__(self):
        self.L = []
        self.uid = 0
    def __call__(self, s):
        for line in s.split('\n'):
            line = line.strip()
            if line:
                self.L.append('    ' + line)
    def label(self, n):
        self.L.append(n + ':')
    def c(self, s):
        self.L.append('    ; ' + s)
    def newlabel(self, p='L'):
        self.uid += 1
        return f'{p}_{self.uid}'
    def text(self):
        return '\n'.join(self.L) + '\n'

def vr(a, n=1):
    return f'v{a}' if n == 1 else f'v[{a}:{a+n-1}]'
def sr(a, n=1):
    return f's{a}' if n == 1 else f's[{a}:{a+n-1}]'

S_WG = 2
S_WAVE = 3
SRD_A = 4
SRD_B = 8
SRD_O = 12
SRD_X = 16
SRD_Y = 20
S_ABASE = 24
S_BBASE = 25
S_OBASE = 26
S_T0 = 27
S_T1 = 28
S_T2 = 29
S_T3 = 30
S_G = 31
S_LDS = 32
S_SLOT = 33
S_CNT = 34
S_DELTA = 35
SRD_F = 36
S_W2 = 82
S_WA = 83
S_WB = 84
S_P0 = 40
S_X0 = 64
S_GEND = 29

@dataclass
class Opnd:
    mode: str
    nblk: int
    srd: int
    base: int
    rbtot: int = 0
    stride: int = 0
    perm: bool = False
    region: int = 0
    aux: str = ''

@dataclass
class Gemm:
    name: str
    A: Opnd
    B: Opnd
    WA: int
    WB: int
    KT: int
    NS: int
    lds0: int = 0
    nb_ov: tuple = None
    rot: int = None
    def __post_init__(self):
        self.A.region = 0
        self.B.region = self.A.nblk * 2048
        self.stage = (self.A.nblk + self.B.nblk) * 2048
        assert self.A.nblk % self.WA == 0 and (self.nb_ov or self.B.nblk % self.WB == 0)
        self.ma = self.A.nblk // self.WA
        self.nb = self.B.nblk // self.WB
        self.nbstep = self.nb
        if self.nb_ov: self.nb, self.nbstep = self.nb_ov
        assert self.WA * self.WB == 4
        self.lds_bytes = self.lds0 + self.NS * self.stage

def make_srd(k, srd, plo, nbytes, off=0):
    if off:
        k(f's_add_u32 s{srd}, s{plo}, {off}')
        k(f's_addc_u32 s{srd+1}, s{plo+1}, 0')
    else:
        k(f's_mov_b32 s{srd}, s{plo}')
        k(f's_mov_b32 s{srd+1}, s{plo+1}')
    if isinstance(nbytes, int):
        k(f's_mov_b32 s{srd+2}, {nbytes}')
    else:
        k(f's_mov_b32 s{srd+2}, {nbytes}')
    k(f's_mov_b32 s{srd+3}, 0x00020000')

def loader_setup(k, g, X, VL, VOFF, VT):
    if X.mode == 'frag':
        k(f'v_lshlrev_b32 v{VOFF}, 4, v{VL}')
        k(f's_mul_i32 s{S_G}, s{S_W2}, {X.rbtot*1024}')
        k(f's_add_u32 s{S_G}, s{S_G}, s{X.base}')
        k(f's_mul_i32 s{S_LDS}, s{S_W2}, {X.nblk*1024}')
        k(f's_add_u32 s{S_LDS}, s{S_LDS}, {g.lds0 + X.region}')
    elif X.mode == 'row':
        k(f's_lshl_b32 s{S_T0}, s{S_W2}, 2')
        k(f'v_lshrrev_b32 v{VT}, 4, v{VL}')
        k(f'v_add_u32 v{VT}, s{S_T0}, v{VT}')
        k(f'v_and_b32 v{VOFF}, 7, v{VL}')
        k(f'v_xor_b32 v{VOFF}, v{VOFF}, v{VT}')
        k(f'v_lshlrev_b32 v{VOFF}, 4, v{VOFF}')
        if X.perm:
            k(f's_lshl_b32 s{S_T0}, s{S_W2}, 4')
            k(f'v_lshrrev_b32 v{VT}, 5, v{VL}')
            k(f'v_lshlrev_b32 v{VT}, 3, v{VT}')
            k(f'v_add_u32 v{VT}, s{S_T0}, v{VT}')
            k(f'v_bfe_u32 v{VT+1}, v{VL}, 3, 2')
            k(f'v_add_u32 v{VT}, v{VT}, v{VT+1}')
        else:
            k(f's_lshl_b32 s{S_T0}, s{S_W2}, 3')
            k(f'v_lshrrev_b32 v{VT}, 3, v{VL}')
            k(f'v_add_u32 v{VT}, s{S_T0}, v{VT}')
        k(f's_mov_b32 s{S_T0}, {X.stride}')
        k(f'v_mad_u32_u24 v{VOFF}, v{VT}, s{S_T0}, v{VOFF}')
        k(f's_mov_b32 s{S_G}, s{X.base}')
        k(f's_lshl_b32 s{S_LDS}, s{S_W2}, 10')
        k(f's_add_u32 s{S_LDS}, s{S_LDS}, {g.lds0 + X.region}')
    elif X.mode == 'col':
        k(f's_lshl_b32 s{S_T0}, s{S_W2}, 2')
        k(f'v_bfe_u32 v{VT}, v{VL}, 4, 1')
        k(f'v_lshlrev_b32 v{VT}, 1, v{VT}')
        k(f'v_or_b32 v{VT}, s{S_T0}, v{VT}')
        k(f'v_and_b32 v{VOFF}, 7, v{VL}')
        k(f'v_xor_b32 v{VOFF}, v{VOFF}, v{VT}')
        k(f'v_lshlrev_b32 v{VOFF}, 4, v{VOFF}')
        k(f's_lshl_b32 s{S_T0}, s{S_W2}, 3')
        k(f'v_lshrrev_b32 v{VT}, 3, v{VL}')
        k(f'v_add_u32 v{VT}, s{S_T0}, v{VT}')
        k(f's_mov_b32 s{S_T0}, {X.stride}')
        k(f'v_mad_u32_u24 v{VOFF}, v{VT}, s{S_T0}, v{VOFF}')
        k(f's_mov_b32 s{S_G}, s{X.base}')
        k(f's_lshl_b32 s{S_LDS}, s{S_W2}, 10')
        k(f's_add_u32 s{S_LDS}, s{S_LDS}, {g.lds0 + X.region}')

def op_step(X):
    return {'frag': 2*X.rbtot*1024, 'row': 128, 'col': 64*X.stride}[X.mode]

def loader_issue(k, g, X, VOFF, slot_const=None):
    groups = []
    if X.mode == 'frag':
        for g0 in range(0, X.nblk, 4):
            groups.append((g0*1024, g0*1024, [i*1024 for i in range(min(4, X.nblk-g0))]))
        step = 2 * X.rbtot * 1024
    elif X.mode == 'row':
        for i in range(X.nblk):
            r = (32*(i >> 1) + 4*(i & 1)) if X.perm else 16*i
            groups.append((i*2048, r*X.stride, [0]))
        step = 128
    else:
        for cg in range(X.nblk // 4):
            for i in range(4):
                groups.append((cg*8192 + i*2048, 16*i*X.stride + cg*128, [0]))
        step = 64 * X.stride
    if slot_const is None:
        k(f's_add_u32 s{S_T1}, s{S_LDS}, s{S_SLOT}')
        lb, lc = S_T1, 0
    else:
        lb, lc = S_LDS, slot_const
    for (lo, go, imms) in groups:
        if lo + lc:
            k(f's_add_u32 m0, s{lb}, {lo+lc}')
        else:
            k(f's_mov_b32 m0, s{lb}')
        if go:
            k(f's_add_u32 s{S_T0}, s{S_G}, {go}')
            so = S_T0
        else:
            k('s_nop 0')
            so = S_G
        for im in imms:
            o = f' offset:{im}' if im else ''
            k(f'buffer_load_dwordx4 v{VOFF}, {sr(X.srd,4)}, s{so} offen{o}{X.aux} lds')
    k(f's_add_u32 s{S_G}, s{S_G}, {step}')
    if g.rot is not None:
        k(f's_cmp_ge_u32 s{S_G}, s{S_GEND}')
        k(f's_cselect_b32 s{S_T0}, {g.KT*step}, 0')
        k(f's_sub_u32 s{S_G}, s{S_G}, s{S_T0}')

def loader_body(k, g, X, VL, VOFF, VT, pre_hook=None, mid_hook=None, npre=None, tail_hook=None, end_barrier=False, end_hook=None):
    n = X.nblk
    NS, KT = g.NS, g.KT
    loader_setup(k, g, X, VL, VOFF, VT)
    if g.rot is not None:
        k(f's_add_u32 s{S_GEND}, s{S_G}, {g.KT*op_step(X)}')
        k(f's_mul_i32 s{S_T0}, s{g.rot}, {op_step(X)}')
        k(f's_add_u32 s{S_G}, s{S_G}, s{S_T0}')
    if pre_hook: pre_hook(k)
    npro = min(NS, KT)
    if npre is None: npre = npro
    for s in range(npre):
        loader_issue(k, g, X, VOFF, slot_const=s*g.stage)
    if mid_hook: mid_hook(k, npre*n)
    assert (NS-1)*n <= 63
    k(f's_waitcnt vmcnt({(npre-1)*n})')
    k('s_barrier')
    for s in range(npre, npro):
        loader_issue(k, g, X, VOFF, slot_const=s*g.stage)
    nmain = max(0, KT - NS)
    if nmain > 0:
        k(f's_mov_b32 s{S_SLOT}, 0')
        k(f's_mov_b32 s{S_CNT}, {nmain}')
        lp = k.newlabel(g.name + '_ld')
        k.label(lp)
        k(f's_waitcnt vmcnt({(NS-2)*n})')
        k('s_barrier')
        loader_issue(k, g, X, VOFF)
        k(f's_add_u32 s{S_SLOT}, s{S_SLOT}, {g.stage}')
        k(f's_cmp_eq_u32 s{S_SLOT}, {NS*g.stage}')
        k(f's_cselect_b32 s{S_SLOT}, 0, s{S_SLOT}')
        k(f's_sub_u32 s{S_CNT}, s{S_CNT}, 1')
        k(f's_cmp_lg_u32 s{S_CNT}, 0')
        k(f's_cbranch_scc1 {lp}')
    extra = tail_hook(k) if tail_hook else 0
    for t in range(nmain, KT-1):
        k(f's_waitcnt vmcnt({(KT-1-(t+1))*n + extra})')
        k('s_barrier')
    if end_hook: end_hook(k)
    if end_barrier: k('s_barrier')

class ConsRegs:
    pass

def cons_addr_setup(k, g, X, nw, swave, VL, VA, VT, step=None):
    base = g.lds0 + X.region
    if X.mode == 'frag':
        k(f's_mul_i32 s{S_T0}, s{swave}, {(step or nw)*1024}')
        k(f's_add_u32 s{S_T0}, s{S_T0}, {base}')
        k(f'v_lshlrev_b32 v{VA}, 4, v{VL}')
        k(f'v_add_u32 v{VA}, s{S_T0}, v{VA}')
        return [VA]
    if X.mode == 'row':
        k(f's_mul_i32 s{S_T0}, s{swave}, {nw*2048}')
        k(f's_add_u32 s{S_T0}, s{S_T0}, {base}')
        k(f'v_bfe_u32 v{VT}, v{VL}, 1, 3')
        k(f'v_lshrrev_b32 v{VT+1}, 4, v{VL}')
        k(f'v_xor_b32 v{VT}, v{VT}, v{VT+1}')
        k(f'v_lshlrev_b32 v{VT}, 4, v{VT}')
        k(f'v_and_b32 v{VT+1}, 15, v{VL}')
        k(f'v_lshl_add_u32 v{VA}, v{VT+1}, 7, v{VT}')
        k(f'v_add_u32 v{VA}, s{S_T0}, v{VA}')
        k(f'v_xor_b32 v{VA+1}, 64, v{VA}')
        return [VA, VA+1]
    k(f'v_lshrrev_b32 v{VT}, 4, v{VL}')
    k(f'v_lshlrev_b32 v{VT}, 3, v{VT}')
    k(f'v_bfe_u32 v{VT+1}, v{VL}, 2, 2')
    k(f'v_add_u32 v{VT}, v{VT}, v{VT+1}')
    k(f'v_lshlrev_b32 v{VT}, 7, v{VT}')
    k(f'v_and_b32 v{VT+1}, 3, v{VL}')
    k(f'v_lshl_add_u32 v{VT}, v{VT+1}, 3, v{VT}')
    k(f'v_bfe_u32 v{VT+1}, v{VL}, 3, 2')
    k(f'v_lshl_add_u32 v{VT}, v{VT+1}, 5, v{VT}')
    for i in range(nw):
        k(f's_mul_i32 s{S_T0}, s{swave}, {nw}')
        k(f's_add_u32 s{S_T0}, s{S_T0}, {i}')
        k(f's_and_b32 s{S_T1}, s{S_T0}, 3')
        k(f's_lshl_b32 s{S_T1}, s{S_T1}, 5')
        k(f's_lshr_b32 s{S_T0}, s{S_T0}, 2')
        k(f's_lshl_b32 s{S_T0}, s{S_T0}, 13')
        k(f's_add_u32 s{S_T0}, s{S_T0}, {base}')
        k(f'v_xor_b32 v{VA+i}, s{S_T1}, v{VT}')
        k(f'v_add_u32 v{VA+i}, s{S_T0}, v{VA+i}')
    return [VA+i for i in range(nw)]

def cons_reads(g, X, nw, addrs, s, dst):
    out = []
    for i in range(nw):
        d = dst + 4*i
        if X.mode == 'frag':
            out.append(f'ds_read_b128 {vr(d,4)}, v{addrs[0]} offset:{s*X.nblk*1024 + i*1024}')
        elif X.mode == 'row':
            out.append(f'ds_read_b128 {vr(d,4)}, v{addrs[s]} offset:{i*2048}')
        else:
            out.append(f'ds_read_b64_tr_b16 {vr(d,2)}, v{addrs[i]} offset:{s*4096}')
            out.append(f'ds_read_b64_tr_b16 {vr(d+2,2)}, v{addrs[i]} offset:{s*4096+512}')
    return out

def interleave(k, mfmas, fill, start=0, per=1):
    fill = list(fill)
    for i, m in enumerate(mfmas):
        k(m)
        if i >= start:
            for _ in range(per):
                if fill: k(fill.pop(0))
    for f in fill: k(f)

def consumer_body(k, g, VL, VACC, VF, VA, VT, pre_hook=None, nomfma=False, noread=False, post_bar0=None, end_barrier=False):
    ma, nb = g.ma, g.nb
    aA = cons_addr_setup(k, g, g.A, ma, S_WA, VL, VA, VT)
    aB = cons_addr_setup(k, g, g.B, nb, S_WB, VL, VA + len(aA), VT, step=g.nbstep)
    addrs = aA + aB
    setsz = (ma + nb) * 4
    def fa(st, a): return VF + st*setsz + 4*a
    def fb(st, b): return VF + st*setsz + 4*ma + 4*b
    def reads(s, st):
        if noread: return []
        ra = cons_reads(g, g.A, ma, aA, s, fa(st, 0))
        rb = cons_reads(g, g.B, nb, aB, s, fb(st, 0))
        return rb + ra if nb <= ma else ra + rb
    def mf(st):
        if nomfma: return ['s_nop 0']
        out = []
        for a in range(ma):
            for b in range(nb):
                c = VACC + (a*nb + b)*4
                out.append(f'v_mfma_f32_16x16x32_bf16 {vr(c,4)}, {vr(fa(st,a),4)}, {vr(fb(st,b),4)}, {vr(c,4)}')
        return out
    for i in range(ma*nb*4):
        k(f'v_mov_b32 v{VACC+i}, 0')
    if pre_hook: pre_hook(k)
    k(f's_mov_b32 s{S_SLOT}, 0')
    k(f's_mov_b32 s{S_CNT}, {g.KT-1}')
    k(f's_mov_b32 s{S_T3}, {g.stage}')
    k('s_barrier')
    if post_bar0: post_bar0(k)
    for r in reads(0, 0): k(r)
    k('s_waitcnt lgkmcnt(0)')
    lp = k.newlabel(g.name + '_mm')
    k.label(lp)
    adv = [f's_add_u32 s{S_SLOT}, s{S_SLOT}, {g.stage}',
           f's_cmp_eq_u32 s{S_SLOT}, {g.NS*g.stage}',
           f's_cselect_b32 s{S_DELTA}, {-(g.NS-1)*g.stage & 0xffffffff}, s{S_T3}',
           f's_cselect_b32 s{S_SLOT}, 0, s{S_SLOT}'] + [f'v_add_u32 v{a}, s{S_DELTA}, v{a}' for a in addrs]
    interleave(k, mf(0), reads(1, 1) + adv)
    k('s_waitcnt lgkmcnt(0)')
    k('s_barrier')
    interleave(k, mf(1), reads(0, 0) + [f's_sub_u32 s{S_CNT}, s{S_CNT}, 1', f's_cmp_lg_u32 s{S_CNT}, 0'])
    k('s_waitcnt lgkmcnt(0)')
    k(f's_cbranch_scc1 {lp}')
    interleave(k, mf(0), reads(1, 1))
    k('s_waitcnt lgkmcnt(0)')
    if end_barrier: k('s_barrier')
    for m in mf(1): k(m)

def kernel_header(k, name):
    k.L.append(f'.globl {name}')
    k.L.append('.p2align 8')
    k.L.append(f'.type {name},@function')
    k.label(name)

def kernel_desc(name, vgpr, sgpr=96):
    acc = (vgpr + 3) // 4 * 4
    return f""".amdhsa_kernel {name}
  .amdhsa_next_free_vgpr {vgpr}
  .amdhsa_next_free_sgpr {sgpr}
  .amdhsa_accum_offset {acc}
  .amdhsa_group_segment_fixed_size 0
  .amdhsa_kernarg_size 96
  .amdhsa_user_sgpr_count 2
  .amdhsa_user_sgpr_kernarg_segment_ptr 1
  .amdhsa_system_sgpr_workgroup_id_x 1
.end_amdhsa_kernel
"""
```

```python
import sys, math, struct, json
from lib import *

D = 1152; NR = 2048
P_X, P_C, P_Y, P_WQKV, P_WO, P_WQC, P_WKVC, P_WOC, P_WMOD, P_OUT, P_DBG, P_WS = range(40, 64, 2)
def al(x): return (x + 4095) // 4096 * 4096
FL = {}
_f = 0
for nm, n in [('MOD', 72), ('GATE', 18), ('H', 64), ('WQK', 108), ('T', 144), ('WVO', 81), ('KVC', 24), ('P', 128), ('V', 128),
              ('X1', 192), ('AT', 18), ('BT', 18)]:
    FL[nm] = _f; _f += n
NFLAG = 1024
assert _f <= NFLAG
WS = {}
_o = 0
for nm, sz in [('FLAG', NFLAG*128), ('MODP', 2*2*2304*4), ('GATE', 2*1152*4), ('ST', 64*8*256), ('H', NR*D*2), ('WQK', D*D*2), ('WVO', D*D*2),
               ('T', NR*D*2), ('VT', NR*D*2), ('P', 2*1024*1024*2), ('KVC', 72*10*1024), ('AT', 36*10*1024), ('BT', 2*3*72*1024),
               ('X1', NR*D*2)]:
    WS[nm] = (_o, sz); _o = al(_o + sz)
ST = ' sc1'
CSC = (D ** -0.5) * math.log2(math.e)
def f32(x): return '0x%08x' % struct.unpack('<I', struct.pack('<f', x))[0]
LDS_MAX = 163840
L_CNT = LDS_MAX - 64

class Cfg:
    ROT = set('wqk tt wvo kvc ss vv pv at bt'.split())
    APRE = False
    SKIP = set()
    WQK_NS = 5
    WQK_NPRE = 3
    STAMP = False
    PERSIST = False
C = Cfg()
STAMP_OFF = 128 << 20
PH = [0]
NAMES = ['pa_kernel', 'pb_kernel', 'pc_kernel', 'pd_kernel', 'pe_kernel']
VL = 0; VT = 2; VA = 4; VACC = 16
S_ROT = 74
def R(name): return S_ROT if name in C.ROT else None
def mod_const(k, s, m, maxv):
    div_const(k, S_T0, s, m, maxv)
    k(f's_mul_i32 s{S_T0}, s{S_T0}, {m}')
    k(f's_sub_u32 s{s}, s{s}, s{S_T0}')
def LD(): return ' sc1' if C.PERSIST else ''

def stamp(k, i):
    if C.STAMP: k(f's_memrealtime s[{86+2*i}:{87+2*i}]')
def stamp_begin(k):
    if C.STAMP: k('s_memrealtime s[98:99]\n' + '\n'.join(f's_mov_b32 s{86+2*i}, 0' for i in range(6)))

def phase_exit(k, drain=True):
    p = PH[0]
    k('s_mov_b64 exec, -1')
    if C.STAMP:
        if drain: k('s_waitcnt vmcnt(0)')
        k('s_memrealtime s[100:101]')
        k(f's_lshl_b32 s{S_T0}, s2, 8')
        k(f's_lshl_b32 s{S_T1}, s{S_WAVE}, 5')
        k(f's_add_u32 s{S_T0}, s{S_T0}, s{S_T1}')
        k(f's_add_u32 s{S_T0}, s{S_T0}, {STAMP_OFF + p*65536}')
        k('s_waitcnt lgkmcnt(0)')
        k(f'v_mov_b32 v1, s{S_T0}\nv_mov_b32 v4, s98\nv_mov_b32 v5, s100')
        for i in range(6): k(f'v_mov_b32 v{6+i}, s{86+2*i}')
        k('s_mov_b64 exec, 1')
        k('global_store_dwordx4 v1, v[4:7], s[62:63]')
        k('global_store_dwordx4 v1, v[8:11], s[62:63] offset:16')
        k('s_mov_b64 exec, -1')
        k('s_nop 1')
    if C.PERSIST and p < 4:
        k(f's_branch ph{p+1}')
    else:
        k('s_endpgm')

def ws_srd(k, srd, nm):
    make_srd(k, srd, P_WS, WS[nm][1], WS[nm][0])

def phase_entry(k):
    p = PH[0]
    if C.PERSIST and p > 0:
        k.label(f'ph{p}')
        stamp_begin(k)
        return
    name = NAMES[p] if not C.PERSIST else 'standalone__pixart__diffusion_kernel'
    kernel_header(k, name)
    if p == 0:
        k('s_getpc_b64 s[76:77]')
        k('s_load_dwordx16 s[40:55], s[0:1], 0')
        k('s_load_dwordx8 s[56:63], s[0:1], 64')
        k('s_lshr_b32 s65, s2, 3')
        k('s_lshl_b32 s78, s65, 11')
        k('v_lshrrev_b32 v1, 6, v0')
        k('v_and_b32 v2, 1, v0')
        k('v_lshl_add_u32 v2, v1, 1, v2')
        k('v_lshl_add_u32 v2, v2, 7, s78')
        k('v_min_u32 v2, code_end - code_start - 8, v2')
        k('s_mov_b64 exec, 3')
        k('global_load_dword v15, v2, s[76:77]')
        k('s_mov_b64 exec, -1')
        stamp_begin(k)
    else:
        stamp_begin(k)
        k('s_load_dwordx16 s[40:55], s[0:1], 0')
        k('s_load_dwordx8 s[56:63], s[0:1], 64')
    k('s_cmp_ge_u32 s2, 256')
    k(f's_cbranch_scc1 quit{p}')
    k('v_lshrrev_b32 v1, 6, v0')
    k('v_and_b32 v0, 63, v0')
    k(f'v_readfirstlane_b32 s{S_WAVE}, v1')
    k('s_and_b32 s64, s2, 7')
    k('s_lshr_b32 s65, s2, 3')
def args_ready(k):
    p = PH[0]
    if (not C.PERSIST) or p == 0:
        k('s_waitcnt lgkmcnt(0)')
        ws_srd(k, SRD_F, 'FLAG')

def div_const(k, dst, src, d, maxv):
    for sh in range(4, 20):
        m = -(-(1 << sh) // d)
        if all((v*m) >> sh == v // d for v in range(maxv+1)):
            k(f's_mul_i32 s{dst}, s{src}, {m}')
            k(f's_lshr_b32 s{dst}, s{dst}, {sh}')
            return
    raise Exception('no magic')

SPIN = 0x20000
def poll(k, s_line, n, vt=8, force=False):
    if not (C.PERSIST or force): return
    lp, done = k.newlabel('poll'), k.newlabel('polled')
    k(f'v_min_u32 v{vt}, {n-1}, v{VL}')
    k(f'v_lshlrev_b32 v{vt}, 7, v{vt}')
    k(f's_lshl_b32 s{S_T0}, s{s_line}, 7')
    k(f's_mov_b32 s{S_CNT}, {SPIN}')
    if n < 64: k(f's_mov_b64 exec, {hex((1 << n) - 1)}' if n <= 31 else f's_mov_b32 exec_hi, {hex((1 << (n-32)) - 1)}')
    k.label(lp)
    k(f'buffer_load_dword v{vt+1}, v{vt}, {sr(SRD_F,4)}, s{S_T0} offen sc1')
    k(f's_sub_u32 s{S_CNT}, s{S_CNT}, 1')
    k('s_waitcnt vmcnt(0)')
    k(f'v_cmp_ne_u32 vcc, 1, v{vt+1}')
    k(f's_cmp_eq_u32 s{S_CNT}, 0')
    k(f's_cbranch_scc1 {done}')
    k('s_cmp_eq_u64 vcc, 0')
    k(f's_cbranch_scc1 {done}')
    k('s_sleep 3')
    k(f's_branch {lp}')
    k.label(done)
    k('s_mov_b64 exec, -1')

def wait_init(k, vt=8):
    lp, done = k.newlabel('wi'), k.newlabel('wid')
    k(f'v_min_u32 v{vt}, 11, v{VL}')
    k(f'v_and_b32 v{vt+1}, 1, v{vt}')
    k(f'v_lshlrev_b32 v{vt+1}, 7, v{vt+1}')
    k(f'v_lshl_add_u32 v{vt}, v{vt}, 2, v{vt+1}')
    k(f's_mov_b32 s{S_CNT}, {SPIN}')
    k.label(lp)
    k(f'global_load_dword v{vt+1}, v{vt}, s[{P_DBG}:{P_DBG+1}] sc1')
    k(f's_sub_u32 s{S_CNT}, s{S_CNT}, 1')
    k('s_waitcnt vmcnt(0)')
    k(f'v_cmp_ne_u32 vcc, 1, v{vt+1}')
    k(f's_cmp_eq_u32 s{S_CNT}, 0')
    k(f's_cbranch_scc1 {done}')
    k('s_cmp_eq_u64 vcc, 0')
    k(f's_cbranch_scc1 {done}')
    k('s_sleep 3')
    k(f's_branch {lp}')
    k.label(done)

def set_flag(k, s_line, vt=8):
    k(f's_lshl_b32 s{S_T0}, s{s_line}, 7')
    k(f'v_mov_b32 v{vt}, 0\nv_mov_b32 v{vt+1}, 1')
    k('s_mov_b64 exec, 1')
    k(f'buffer_store_dword v{vt+1}, v{vt}, {sr(SRD_F,4)}, s{S_T0} offen sc1')
    k('s_mov_b64 exec, -1')

def signal(k, s_line, nwaves, vt=8):
    if not C.PERSIST: return
    skip = k.newlabel('sig')
    k('s_mov_b64 exec, -1')
    k(f's_lshl_b32 s{S_T0}, s{s_line}, 7')
    k(f'v_mov_b32 v{vt}, 0\nv_mov_b32 v{vt+1}, 1')
    k(f's_cmp_lg_u32 s{S_WAVE}, 0')
    k('s_waitcnt vmcnt(0)')
    k('s_barrier')
    k(f's_cbranch_scc1 {skip}')
    k('s_mov_b64 exec, 1')
    k(f'buffer_store_dword v{vt+1}, v{vt}, {sr(SRD_F,4)}, s{S_T0} offen sc1')
    k('s_mov_b64 exec, -1')
    k.label(skip)

def q2f_addr(k, v):
    k(f'v_and_b32 v{v}, 15, v{VL}\nv_lshlrev_b32 v{v}, 4, v{v}\nv_lshrrev_b32 v{VT}, 4, v{VL}\nv_lshl_add_u32 v{v}, v{VT}, 2, v{v}')
def f2q_addr(k, v):
    k(f'v_and_b32 v{v}, 3, v{VL}\nv_lshlrev_b32 v{v}, 6, v{v}\nv_and_b32 v{VT}, 0x3c, v{VL}\nv_add_u32 v{v}, v{v}, v{VT}')
def quad_voff(k, v, stride):
    k(f'v_lshrrev_b32 v{v}, 2, v{VL}\ns_mov_b32 s{S_T0}, {stride}\nv_mul_u32_u24 v{v}, s{S_T0}, v{v}\nv_and_b32 v{VT}, 3, v{VL}\nv_lshl_add_u32 v{v}, v{VT}, 4, v{v}')

def prefetch_flat(k, ptr, nbytes, s_worker, nworkers, vdst, maxper=99, srd=SRD_Y, vtmp=1):
    make_srd(k, srd, ptr, nbytes)
    k(f'v_lshlrev_b32 v{vtmp}, 7, v{VL}')
    per = min(maxper, -(-(-(-nbytes // 8192)) // nworkers))
    k(f's_lshl_b32 s{S_T0}, s{s_worker}, 13')
    for i in range(per):
        k(f'buffer_load_dword v{vdst}, v{vtmp}, {sr(srd,4)}, s{S_T0} offen')
        if i + 1 < per: k(f's_add_u32 s{S_T0}, s{S_T0}, {nworkers*8192}')
def prefetch_cols(k, srd, lines_per_row, colbyte, s_worker, nworkers, vdst, v0, v1, stride=6912):
    tot = 1152 * lines_per_row
    per = -(-(tot // 64) // nworkers)
    sh = {18: 20, 36: 21}[lines_per_row]
    assert all((n*58255) >> sh == n // lines_per_row for n in range(per*nworkers*64)) and per*nworkers*64*58255 < 2**32
    k(f's_lshl_b32 s{S_T1}, s{s_worker}, 6')
    for i in range(per):
        k(f'v_add_u32 v{v0}, s{S_T1}, v{VL}')
        k(f's_mov_b32 s{S_T0}, 58255')
        k(f'v_mul_lo_u32 v{v1}, v{v0}, s{S_T0}')
        k(f'v_lshrrev_b32 v{v1}, {sh}, v{v1}')
        k(f's_mov_b32 s{S_T0}, {stride - lines_per_row*128}')
        k(f'v_mul_u32_u24 v{v1}, s{S_T0}, v{v1}')
        k(f'v_lshl_add_u32 v{v0}, v{v0}, 7, v{v1}')
        k(f's_mov_b32 s{S_T0}, {colbyte}')
        k(f'buffer_load_dword v{vdst}, v{v0}, {sr(srd,4)}, s{S_T0} offen')
        if i + 1 < per: k(f's_add_u32 s{S_T1}, s{S_T1}, {nworkers*64}')

VMAX = [0]
LMAX = [0]
def gemm_role(k, g, epilogue, s_flag=None, npre=2, custom_consumer=None, cons_first=None, depA=None, depB=None, end_hookA=None, end_hookB=None, exit_hook=None):
    ll, lb = k.newlabel(g.name + '_loader'), k.newlabel(g.name + '_loaderB')
    k(f's_cmp_ge_u32 s{S_WAVE}, 4')
    k(f's_cbranch_scc1 {ll}')
    if cons_first: cons_first(k)
    k(f's_and_b32 s{S_WB}, s{S_WAVE}, {g.WB-1}')
    k(f's_lshr_b32 s{S_WA}, s{S_WAVE}, {g.WB.bit_length()-1}')
    VF = VACC + g.ma*g.nb*4
    g.VF = VF
    g.VX = VF + 2*(g.ma+g.nb)*4
    g.vmax = g.VX
    if custom_consumer: custom_consumer(k, g)
    else: consumer_body(k, g, VL, VACC, VF, VA, VT, post_bar0=lambda k: stamp(k, 0))
    stamp(k, 1)
    epilogue(k, g)
    stamp(k, 2)
    if s_flag is not None: signal(k, s_flag, 4)
    lx = k.newlabel(g.name + '_exit')
    k.label(lx)
    if exit_hook: exit_hook(k)
    phase_exit(k, drain=not C.PERSIST)
    k.label(ll)
    k(f's_and_b32 s{S_W2}, s{S_WAVE}, 1')
    k(f's_cmp_ge_u32 s{S_WAVE}, 6')
    k(f's_cbranch_scc1 {lb}')
    def wrap(dep):
        def f(k):
            if dep: dep(k)
            stamp(k, 0)
        return f
    loader_body(k, g, g.A, VL, 1, VT, npre=npre, pre_hook=wrap(depA), end_barrier=C.PERSIST, end_hook=end_hookA)
    k(f's_branch {lx}')
    k.label(lb)
    loader_body(k, g, g.B, VL, 1, VT, npre=npre, pre_hook=wrap(depB), end_barrier=C.PERSIST, end_hook=end_hookB)
    k(f's_branch {lx}')
    VMAX[0] = max(VMAX[0], g.vmax); LMAX[0] = max(LMAX[0], g.lds_bytes)
    assert g.lds_bytes <= L_CNT

def acc(g, a, b): return VACC + (a*g.nb + b)*4

def epi_frag16(rbtot, s_kb0, s_rb0, rowperm=False):
    def f(k, g):
        npair = (g.ma + 1) // 2
        k(f's_mul_i32 s{S_T0}, s{S_WA}, {g.ma//2}')
        k(f's_add_u32 s{S_T0}, s{S_T0}, s{s_kb0}')
        k(f's_mul_i32 s{S_T0}, s{S_T0}, {rbtot}')
        k(f's_mul_i32 s{S_T1}, s{S_WB}, {g.nbstep}')
        k(f's_add_u32 s{S_T0}, s{S_T0}, s{S_T1}')
        k(f's_add_u32 s{S_T0}, s{S_T0}, s{s_rb0}')
        k(f's_lshl_b32 s{S_OBASE}, s{S_T0}, 10')
        if rowperm:
            assert g.nb % 2 == 0
            k(f'v_bfe_u32 v{VT}, v{VL}, 2, 1\nv_lshlrev_b32 v1, 10, v{VT}\nv_bfe_u32 v{VT}, v{VL}, 3, 1\nv_lshl_add_u32 v1, v{VT}, 6, v1')
            k(f'v_and_b32 v{VT}, 0x33, v{VL}\nv_lshl_add_u32 v1, v{VT}, 4, v1')
        else:
            k(f'v_lshlrev_b32 v1, 4, v{VL}')
        k('s_nop 1')
        t = g.VF
        for ap in range(npair):
            for b in range(g.nb):
                c0 = acc(g, 2*ap, b)
                k(f'v_cvt_pk_bf16_f32 v{t}, v{c0}, v{c0+1}')
                k(f'v_cvt_pk_bf16_f32 v{t+1}, v{c0+2}, v{c0+3}')
                if 2*ap+1 < g.ma:
                    c1 = acc(g, 2*ap+1, b)
                    k(f'v_cvt_pk_bf16_f32 v{t+2}, v{c1}, v{c1+1}')
                    k(f'v_cvt_pk_bf16_f32 v{t+3}, v{c1+2}, v{c1+3}')
                else:
                    k(f'v_mov_b32 v{t+2}, 0\nv_mov_b32 v{t+3}, 0')
                off = (b & ~1)*1024 + (b & 1)*128 if rowperm else b*1024
                hi, lo = off // 4096 * 4096, off % 4096
                k(f's_add_u32 s{S_T0}, s{S_OBASE}, {ap*rbtot*1024 + hi}')
                k(f'buffer_store_dwordx4 {vr(t,4)}, v1, {sr(SRD_O,4)}, s{S_T0} offen offset:{lo}{ST}')
                t += 4
        g.vmax = max(g.vmax, t)
    return f

def dep(*items):
    def f(k):
        for (s, mul, const, n) in items:
            if not C.PERSIST: continue
            if s is None: k(f's_mov_b32 s85, {const}')
            else:
                k(f's_mul_i32 s85, s{s}, {mul}')
                k(f's_add_u32 s85, s85, {const}')
            poll(k, 85, n)
    return f

def gemv_job(k, n, tag, s_goff, s_ldsrow, finish):
    make_srd(k, SRD_A, P_WMOD, D*6*D*2)
    make_srd(k, SRD_B, P_C, 2*D*2)
    L_SILU, L_RED = 0, 9216
    VW, VS, VAC, VU, VC = 16, 88, 124, 140, 148
    k(f's_lshl_b32 s{S_T0}, s{S_WAVE}, 10')
    k(f'v_lshl_add_u32 v3, v{VL}, 4, s{S_T0}')
    k(f'buffer_load_dwordx4 {vr(VC,4)}, v3, {sr(SRD_B,4)}, 0 offen')
    k(f's_lshl_b32 s{S_T0}, s{S_WAVE}, 3')
    k(f'v_lshrrev_b32 v4, 3, v{VL}')
    k(f'v_add_u32 v4, s{S_T0}, v4')
    k(f'v_and_b32 v5, 7, v{VL}')
    k('v_lshlrev_b32 v5, 4, v5')
    k(f's_mov_b32 s{S_T0}, 13824')
    k(f'v_mad_u32_u24 v5, v4, s{S_T0}, v5')
    def issue_w(i0, i1):
        for i in range(i0, i1):
            if i: k(f's_add_u32 s{s_goff}, s{s_goff}, {64*13824}')
            k(f'buffer_load_dwordx4 {vr(VW+4*i,4)}, v5, {sr(SRD_A,4)}, s{s_goff} offen')
    issue_w(0, 6)
    k('v_lshlrev_b32 v4, 2, v4')
    if s_ldsrow is not None: k(f'v_add_u32 v4, s{s_ldsrow}, v4')
    k('s_waitcnt vmcnt(6)')
    for j in range(4):
        k(f'v_lshlrev_b32 v{VC+4+2*j}, 16, v{VC+j}')
        k(f'v_and_b32 v{VC+5+2*j}, 0xffff0000, v{VC+j}')
    for j in range(8): k(f'v_mul_f32 v{VU+j}, {f32(-math.log2(math.e))}, v{VC+4+j}')
    for j in range(8): k(f'v_exp_f32 v{VU+j}, v{VU+j}')
    for j in range(8): k(f'v_add_f32 v{VU+j}, 1.0, v{VU+j}')
    for j in range(8): k(f'v_rcp_f32 v{VU+j}, v{VU+j}')
    for j in range(8): k(f'v_mul_f32 v{VC+4+j}, v{VU+j}, v{VC+4+j}')
    k('v_lshlrev_b32 v8, 1, v3')
    k('v_cmp_gt_u32 vcc, 9216, v8')
    k('s_and_saveexec_b64 s[80:81], vcc')
    k(f'ds_write_b128 v8, {vr(VC+4,4)} offset:{L_SILU}')
    k(f'ds_write_b128 v8, {vr(VC+8,4)} offset:{L_SILU+16}')
    k('s_mov_b64 exec, s[80:81]')
    k('s_waitcnt lgkmcnt(0)')
    k('s_barrier')
    stamp(k, 0)
    for i in range(n):
        k(f'ds_read2st64_b32 {vr(VS+2*i,2)}, v4 offset0:{i} offset1:{i+18}')
    issue_w(6, n)
    k(f'v_bfe_u32 v6, v{VL}, 1, 2\nv_lshlrev_b32 v6, 7, v6\nv_lshrrev_b32 v7, 3, v{VL}\nv_lshl_add_u32 v6, v7, 4, v6\nv_and_b32 v7, 1, v{VL}\nv_lshl_add_u32 v6, v7, 3, v6')
    k(f'v_lshrrev_b32 v7, 4, v{VL}\nv_lshlrev_b32 v7, 7, v7\nv_and_b32 v9, 7, v{VL}\nv_lshl_add_u32 v7, v9, 4, v7')
    k(f's_lshl_b32 s{S_T0}, s{S_WAVE}, 9')
    k(f'v_add_u32 v7, s{S_T0}, v7')
    k(f'v_lshlrev_b32 v9, 2, v{VL}')
    for j in range(16): k(f'v_mov_b32 v{VAC+j}, 0')
    k('s_waitcnt lgkmcnt(0)')
    for i in range(n):
        k(f's_waitcnt vmcnt({n - 1 - i})')
        for j in range(4):
            k(f'v_lshlrev_b32 v{VU+2*j}, 16, v{VW+4*i+j}')
            k(f'v_and_b32 v{VU+2*j+1}, 0xffff0000, v{VW+4*i+j}')
        for j in range(4):
            k(f'v_pk_fma_f32 {vr(VAC+4*j,2)}, {vr(VS+2*i,2)}, {vr(VU+2*j,2)}, {vr(VAC+4*j,2)} op_sel:[0,0,0] op_sel_hi:[1,0,1]')
            k(f'v_pk_fma_f32 {vr(VAC+4*j+2,2)}, {vr(VS+2*i,2)}, {vr(VU+2*j,2)}, {vr(VAC+4*j+2,2)} op_sel:[0,1,0] op_sel_hi:[1,1,1]')
    stamp(k, 1)
    k('s_nop 1')
    for j in range(8): k(f'v_permlane32_swap_b32 v{VAC+j}, v{VAC+8+j}')
    for j in range(8): k(f'v_add_f32 v{VAC+j}, v{VAC+j}, v{VAC+8+j}')
    k('s_nop 1')
    for j in range(4): k(f'v_permlane16_swap_b32 v{VAC+j}, v{VAC+4+j}')
    for j in range(4): k(f'v_add_f32 v{VAC+4+j}, v{VAC+j}, v{VAC+4+j}')
    k('s_nop 1')
    for j in range(4): k(f'v_add_f32_dpp v{VAC+j}, v{VAC+4+j}, v{VAC+4+j} row_ror:8 row_mask:0xf bank_mask:0xf')
    k(f'ds_write_b128 v7, {vr(VAC,4)} offset:{L_RED}')
    k('s_waitcnt lgkmcnt(0)')
    k('s_barrier')
    k(f's_cmp_lg_u32 s{S_WAVE}, 0')
    k(f's_cbranch_scc1 gv_nored{tag}')
    for w in range(8): k(f'ds_read_b64 {vr(VAC+2*w,2)}, v6 offset:{L_RED + 512*w}')
    k('s_waitcnt lgkmcnt(0)')
    for st in (8, 4, 2):
        for j in range(0, st, 2):
            k(f'v_pk_add_f32 {vr(VAC+j,2)}, {vr(VAC+j,2)}, {vr(VAC+st+j,2)}')
    stamp(k, 2)
    finish(k, VAC)
    stamp(k, 3)
    k.label(f'gv_nored{tag}')
    k('s_barrier')
    VMAX[0] = max(VMAX[0], 160); LMAX[0] = max(LMAX[0], 16384)

def gate_job(k, s_idx):
    k(f's_lshl_b32 s{S_G}, s{s_idx}, 7')
    k(f's_add_u32 s{S_G}, s{S_G}, 4608')
    def fin(k, VAC):
        ws_srd(k, SRD_O, 'GATE')
        k(f's_lshl_b32 s{S_T1}, s{s_idx}, 8')
        k(f's_add_u32 s{S_T2}, s{S_T1}, 4608')
        k(f'buffer_store_dword v{VAC}, v9, {sr(SRD_O,4)}, s{S_T1} offen sc1')
        k(f'buffer_store_dword v{VAC+1}, v9, {sr(SRD_O,4)}, s{S_T2} offen sc1')
        if C.PERSIST:
            k('s_waitcnt vmcnt(0)')
            k(f's_add_u32 s85, s{s_idx}, {FL["GATE"]}')
            set_flag(k, 85, 12)
    gemv_job(k, 18, 'g', S_G, None, fin)

def phase_A(k):
    phase_entry(k)
    k('s_cmp_ge_u32 s65, 23')
    k('s_cbranch_scc1 pa_mod')
    k('s_cmp_lt_u32 s65, 8')
    k('s_cbranch_scc1 pa_h')
    k('s_and_b32 s66, s64, 1')
    k('s_lshr_b32 s67, s64, 1')
    k('s_sub_u32 s68, 5, s66')
    k('s_mul_i32 s70, s68, 3')
    k('s_sub_u32 s69, s65, 8')
    k('s_cmp_ge_u32 s69, s70')
    k('s_cbranch_scc1 pa_spare')
    div_const(k, 71, 69, 5, 31)
    k('s_lshr_b32 s72, s69, 2')
    k('s_cmp_eq_u32 s66, 0')
    k('s_cselect_b32 s71, s71, s72')
    k('s_mul_i32 s72, s71, s68')
    k('s_sub_u32 s72, s69, s72')
    k('s_lshl_b32 s74, s71, 1')
    k('s_add_u32 s74, s74, s72')
    mod_const(k, 74, 6, 16)
    k('s_mul_i32 s74, s74, 3')
    k('s_mul_i32 s73, s66, 5')
    k('s_add_u32 s72, s72, s73')
    k('s_mul_i32 s73, s67, 3')
    k('s_add_u32 s71, s71, s73')
    k(f's_mul_i32 s{S_ABASE}, s72, {128*6912}')
    k(f's_mul_i32 s{S_BBASE}, s71, {96*6912}')
    k(f's_add_u32 s{S_BBASE}, s{S_BBASE}, {D*2}')
    k('s_lshl_b32 s75, s72, 2')
    k('s_mul_i32 s76, s71, 6')
    k('s_mul_i32 s77, s71, 9')
    k('s_add_u32 s77, s77, s72')
    k(f's_add_u32 s78, s77, {FL["WQK"]}')
    args_ready(k)
    make_srd(k, SRD_A, P_WQKV, D*3*D*2)
    ws_srd(k, SRD_O, 'WQK')
    g = Gemm('wqk', Opnd('row', 8, SRD_A, S_ABASE, stride=6912, perm=True), Opnd('row', 6, SRD_A, S_BBASE, stride=6912, perm=True), 2, 2, 18, C.WQK_NS, rot=R('wqk'))
    def a_pre(k):
        k('s_lshl_b32 s79, s77, 2')
        k(f's_add_u32 s79, s79, s{S_WAVE}')
        prefetch_cols(k, SRD_A, 36, 0, 79, 432, 12, 1, 2)
    def a_end(k):
        if C.PERSIST: wait_init(k)
    gemm_role(k, g, epi_frag16(72, 75, 76), s_flag=78, npre=C.WQK_NPRE, cons_first=(a_pre if C.APRE else None), end_hookA=a_end)
    k.label('pa_mod')
    if 'mod' in C.SKIP: k('s_endpgm')
    k('s_mul_i32 s73, s64, 9')
    k('s_add_u32 s73, s73, s65')
    k('s_sub_u32 s73, s73, 23')
    k('s_cmp_ge_u32 s73, 36')
    k('s_cselect_b32 s74, 1, 0')
    k('s_mul_i32 s75, s74, 36')
    k('s_sub_u32 s75, s73, s75')
    k(f's_mul_i32 s{S_G}, s74, {576*13824}')
    k(f's_lshl_b32 s{S_T0}, s75, 7')
    k(f's_add_u32 s{S_G}, s{S_G}, s{S_T0}')
    k('s_mul_i32 s76, s74, 2304')
    args_ready(k)
    def fin(k, VAC):
        ws_srd(k, SRD_O, 'MODP')
        k('s_cmp_ge_u32 s75, 18')
        k(f's_cselect_b32 s{S_T2}, 1.0, 0')
        k('s_cmp_eq_u32 s74, 0')
        k(f's_cselect_b32 s{S_T2}, s{S_T2}, 0')
        k(f'v_add_f32 v{VAC}, s{S_T2}, v{VAC}\nv_add_f32 v{VAC+1}, s{S_T2}, v{VAC+1}')
        k(f's_mul_i32 s{S_T1}, s74, 18432')
        k(f's_lshl_b32 s{S_T0}, s75, 8')
        k(f's_add_u32 s{S_T1}, s{S_T1}, s{S_T0}')
        k(f's_add_u32 s{S_T2}, s{S_T1}, 9216')
        k(f'buffer_store_dword v{VAC}, v9, {sr(SRD_O,4)}, s{S_T1} offen sc1')
        k(f'buffer_store_dword v{VAC+1}, v9, {sr(SRD_O,4)}, s{S_T2} offen sc1')
        wait_init(k, 12)
        k(f's_add_u32 s85, s73, {FL["MOD"]}')
        set_flag(k, 85, 12)
    gemv_job(k, 9, 'm', S_G, 76, fin)
    if not C.PERSIST:
        k('s_sub_u32 s73, s2, 184')
        k('s_cmp_ge_u32 s73, 18')
        k('s_cbranch_scc1 pa_modpf')
        gate_job(k, 73)
        phase_exit(k)
        k.label('pa_modpf')
        k('s_sub_u32 s79, s73, 18')
        k('s_lshl_b32 s79, s79, 3')
        k(f's_add_u32 s79, s79, s{S_WAVE}')
        make_srd(k, SRD_A, P_WQKV, D*3*D*2)
        prefetch_cols(k, SRD_A, 18, 4608, 79, 432, 14, 8, 9)
        prefetch_flat(k, P_WKVC, D*2*D*2, 79, 432, 14, vtmp=8)
    phase_exit(k, drain=False)
    k.label('pa_spare')
    k('s_mul_i32 s73, s67, 3')
    k('s_add_u32 s73, s73, s65')
    k('s_sub_u32 s73, s73, 20')
    args_ready(k)
    k(f'v_lshlrev_b32 v8, 4, v{VL}')
    k('v_mov_b32 v4, 0\nv_mov_b32 v5, 0\nv_mov_b32 v6, 0\nv_mov_b32 v7, 0')
    k('s_lshl_b32 s79, s73, 3')
    k(f's_add_u32 s79, s79, s{S_WAVE}')
    k(f's_lshl_b32 s{S_T0}, s79, 10')
    k(f'buffer_store_dwordx4 v[4:7], v8, {sr(SRD_F,4)}, s{S_T0} offen sc1')
    k(f's_add_u32 s{S_T0}, s{S_T0}, {96*1024}')
    k(f'buffer_store_dwordx4 v[4:7], v8, {sr(SRD_F,4)}, s{S_T0} offen sc1')
    k('s_waitcnt vmcnt(0)')
    k('s_barrier')
    k(f's_cmp_lg_u32 s{S_WAVE}, 0')
    k('s_cbranch_scc1 pa_noinit')
    k(f's_and_b32 s{S_T0}, s73, 1')
    k(f's_lshl_b32 s{S_T0}, s{S_T0}, 7')
    k(f's_lshl_b32 s{S_T1}, s73, 2')
    k(f's_add_u32 s{S_T0}, s{S_T0}, s{S_T1}')
    k(f'v_mov_b32 v8, 1\nv_mov_b32 v9, s{S_T0}')
    k('s_mov_b64 exec, 1')
    k(f'global_store_dword v9, v8, s[{P_DBG}:{P_DBG+1}] sc1')
    k('s_mov_b64 exec, -1')
    k.label('pa_noinit')
    k('s_lshl_b32 s79, s73, 3')
    k(f's_add_u32 s79, s79, s{S_WAVE}')
    if not C.PERSIST and 'pf' not in C.SKIP:
        prefetch_flat(k, P_WO, D*D*2, 79, 96, 14, vtmp=8)
        prefetch_flat(k, P_Y, 2*77*D*2, 79, 96, 14, vtmp=8)
    phase_exit(k, drain=False)
    k.label('pa_h')
    if 'h' in C.SKIP: k('s_endpgm')
    k('s_lshl_b32 s73, s64, 3')
    k('s_add_u32 s73, s73, s65')
    args_ready(k)
    def h_pf(k):
        if not C.PERSIST: return
        k('s_lshl_b32 s79, s73, 3')
        k(f's_add_u32 s79, s79, s{S_WAVE}')
        prefetch_flat(k, P_WKVC, D*2*D*2, 79, 512, 14, maxper=1, vtmp=8)
        l1 = k.newlabel('hpf')
        k('s_cmp_ge_u32 s79, 180')
        k(f's_cbranch_scc1 {l1}')
        k('s_cmp_ge_u32 s79, 136')
        k(f's_cselect_b32 s{SRD_Y}, s{P_Y}, s{P_WKVC}')
        k(f's_cselect_b32 s{SRD_Y+1}, s{P_Y+1}, s{P_WKVC+1}')
        k(f's_mov_b32 s{S_T1}, {D*2*D*2}')
        k(f's_cselect_b32 s{SRD_Y+2}, {2*77*D*2}, s{S_T1}')
        k(f's_mov_b32 s{S_T1}, {512*8192}')
        k(f's_cselect_b32 s{S_T1}, {(-136*8192) & 0xffffffff}, s{S_T1}')
        k(f's_add_u32 s{S_T0}, s{S_T0}, s{S_T1}')
        k(f'buffer_load_dword v14, v8, {sr(SRD_Y,4)}, s{S_T0} offen')
        k.label(l1)
    L_STAT, L_MOD = 0, 2048
    VN, VM, VXD = 16, 112, 208
    k(f's_cmp_ge_u32 s{S_WAVE}, 6')
    k('s_cbranch_scc1 pa_hhelp')
    make_srd(k, SRD_X, P_X, NR*D*2)
    k(f'v_lshrrev_b32 v6, 3, v{VL}\ns_mov_b32 s{S_T0}, 2304\nv_mul_u32_u24 v6, s{S_T0}, v6\nv_and_b32 v7, 7, v{VL}\nv_lshl_add_u32 v6, v7, 4, v6')
    k(f's_mul_i32 s75, s73, {32*2304}')
    k(f's_mul_i32 s76, s{S_WAVE}, 384')
    k('s_add_u32 s75, s75, s76')
    for rg in range(4):
        for sg in range(3):
            k(f'buffer_load_dwordx4 {vr(VM+(rg*3+sg)*4,4)}, v6, {sr(SRD_X,4)}, s75 offen offset:{128*sg}')
        if rg < 3: k(f's_add_u32 s75, s75, {8*2304}')
    k(f'v_lshlrev_b32 v7, 5, v7\nv_lshrrev_b32 v8, 3, v{VL}\nv_lshl_add_u32 v7, v8, 2, v7')
    k(f's_mov_b32 s77, 0x3f803f80')
    for rg in range(4):
        k(f's_waitcnt vmcnt({9 - 3*rg})')
        for j in range(12): k(f'ds_bpermute_b32 v{VXD+12*rg+j}, v7, v{VM+12*rg+j}')
    stamp(k, 0)
    for rg in range(4):
        k(f'v_mov_b32 v{VN+2*rg}, 0\nv_mov_b32 v{VN+2*rg+1}, 0')
    k('s_waitcnt lgkmcnt(0)')
    for j in range(12):
        for rg in range(4):
            k(f'v_dot2_f32_bf16 v{VN+rg}, v{VXD+12*rg+j}, s77, v{VN+rg}')
            k(f'v_dot2_f32_bf16 v{VN+4+rg}, v{VXD+12*rg+j}, v{VXD+12*rg+j}, v{VN+4+rg}')
    k('s_nop 3')
    for j in range(4): k(f'v_permlane32_swap_b32 v{VN+j}, v{VN+4+j}')
    for j in range(4): k(f'v_add_f32 v{VN+j}, v{VN+j}, v{VN+4+j}')
    k('s_nop 1')
    for j in range(2): k(f'v_permlane16_swap_b32 v{VN+j}, v{VN+2+j}')
    for j in range(2): k(f'v_add_f32 v{VN+2+j}, v{VN+j}, v{VN+2+j}')
    k('s_nop 1')
    for j in range(2): k(f'v_add_f32_dpp v{VN+j}, v{VN+2+j}, v{VN+2+j} row_ror:8 row_mask:0xf bank_mask:0xf')
    k(f'v_and_b32 v9, 7, v{VL}\nv_mul_u32_u24 v9, 192, v9\nv_lshrrev_b32 v10, 4, v{VL}\nv_lshl_add_u32 v10, v10, 3, v9')
    k(f's_lshl_b32 s{S_T0}, s{S_WAVE}, 5')
    k(f'v_add_u32 v10, s{S_T0}, v10')
    k(f'ds_write_b64 v10, {vr(VN,2)} offset:{L_STAT}')
    k('s_waitcnt lgkmcnt(0)')
    k('s_barrier')
    for w in range(6):
        k(f'ds_read_b128 {vr(VM+8*w,4)}, v9 offset:{L_STAT + 32*w}')
        k(f'ds_read_b128 {vr(VM+8*w+4,4)}, v9 offset:{L_STAT + 32*w + 16}')
    k('s_waitcnt lgkmcnt(0)')
    for w in range(1, 6):
        for j in range(0, 8, 2): k(f'v_pk_add_f32 {vr(VM+j,2)}, {vr(VM+j,2)}, {vr(VM+8*w+j,2)}')
    for rg in range(4):
        k(f'v_mul_f32 v{VM+rg}, {f32(1.0/D)}, v{VM+rg}')
        k(f'v_mul_f32 v{VM+4+rg}, {f32(1.0/D)}, v{VM+4+rg}')
        k(f'v_fma_f32 v{VM+4+rg}, -v{VM+rg}, v{VM+rg}, v{VM+4+rg}')
        k(f'v_max_f32 v{VM+4+rg}, 0, v{VM+4+rg}')
        k(f'v_add_f32 v{VM+4+rg}, {f32(1e-5)}, v{VM+4+rg}')
        k(f'v_rsq_f32 v{VM+4+rg}, v{VM+4+rg}')
        k('s_nop 0')
        k(f'v_mul_f32 v{VM+rg}, v{VM+rg}, v{VM+4+rg}')
    for rg in range(4):
        for j in range(12):
            n = VN + 24*rg + 2*j
            k(f'v_lshlrev_b32 v{n}, 16, v{VXD+12*rg+j}')
            k(f'v_and_b32 v{n+1}, 0xffff0000, v{VXD+12*rg+j}')
            k(f'v_fma_f32 v{n}, v{n}, v{VM+4+rg}, -v{VM+rg}')
            k(f'v_fma_f32 v{n+1}, v{n+1}, v{VM+4+rg}, -v{VM+rg}')
    ws_srd(k, SRD_A, 'H')
    k(f'v_lshrrev_b32 v8, 3, v{VL}\nv_lshlrev_b32 v8, 5, v8')
    k(f's_mul_i32 s{S_T0}, s{S_WAVE}, 768')
    k(f'v_add_u32 v8, s{S_T0}, v8')
    k(f'v_lshrrev_b32 v9, 5, v{VL}\nv_lshlrev_b32 v9, 17, v9\nv_bfe_u32 v10, v{VL}, 3, 2\nv_lshl_add_u32 v9, v10, 8, v9\nv_and_b32 v10, 7, v{VL}\nv_lshl_add_u32 v9, v10, 4, v9')
    k(f's_mul_i32 s{S_G}, s{S_WAVE}, {6*128}')
    k('s_lshl_b32 s76, s73, 1')
    k(f's_add_u32 s{S_G}, s{S_G}, s76')
    k(f's_lshl_b32 s{S_G}, s{S_G}, 10')
    stamp(k, 1)
    k('s_barrier')
    stamp(k, 2)
    for sg in range(3):
        m = VM + 32*sg
        for ks in range(2):
            for kind in range(2):
                for h in range(2):
                    k(f'ds_read_b128 {vr(m+16*ks+8*kind+4*h,4)}, v8 offset:{L_MOD + ks*9216 + kind*4608 + sg*256 + 16*h}')
    for sg in range(3):
        m = VM + 32*sg
        k(f's_waitcnt lgkmcnt({min(15, 8*(2-sg))})')
        for j in range(0, 16, 2): k(f'v_pk_add_f32 {vr(m+j,2)}, {vr(m+j,2)}, {vr(m+16+j,2)}')
        k(f's_add_u32 s{S_T0}, s{S_G}, {sg*2*128*1024}')
        for rg in range(4):
            n = VN + 24*rg + 8*sg
            o = VXD + 12*rg + 4*sg
            for j in range(0, 8, 2): k(f'v_pk_fma_f32 {vr(n+j,2)}, {vr(n+j,2)}, {vr(m+8+j,2)}, {vr(m+j,2)}')
            for j in range(4): k(f'v_cvt_pk_bf16_f32 v{o+j}, v{n+2*j}, v{n+2*j+1}')
            k(f'buffer_store_dwordx4 {vr(o,4)}, v9, {sr(SRD_A,4)}, s{S_T0} offen offset:{(rg>>1)*1024 + (rg&1)*128}{ST}')
    stamp(k, 3)
    k(f's_add_u32 s85, s73, {FL["H"]}')
    signal(k, 85, 6, 12)
    k.label('pa_hout')
    h_pf(k)
    phase_exit(k, drain=not C.PERSIST)
    k.label('pa_hhelp')
    k(f's_cmp_eq_u32 s{S_WAVE}, 7')
    k('s_cbranch_scc1 pa_hpoll')
    k.label('pa_hidle')
    k('s_waitcnt lgkmcnt(0)')
    k('s_barrier')
    k('s_barrier')
    if C.PERSIST: k('s_barrier')
    k('s_branch pa_hout')
    k.label('pa_hpoll')
    wait_init(k)
    k('s_barrier')
    k(f'v_min_u32 v8, 35, v{VL}')
    k('v_lshlrev_b32 v8, 7, v8')
    k(f's_mov_b32 s{S_T0}, {FL["MOD"]*128}')
    k(f's_mov_b32 s{S_T1}, {(FL["MOD"]+36)*128}')
    k(f's_mov_b32 s{S_CNT}, {SPIN}')
    k('s_mov_b32 exec_hi, 15')
    k.label('pa_mp')
    k(f'buffer_load_dword v9, v8, {sr(SRD_F,4)}, s{S_T0} offen sc1')
    k(f'buffer_load_dword v10, v8, {sr(SRD_F,4)}, s{S_T1} offen sc1')
    k(f's_sub_u32 s{S_CNT}, s{S_CNT}, 1')
    k('s_waitcnt vmcnt(0)')
    k('v_add_u32 v9, v9, v10')
    k('v_cmp_ne_u32 vcc, 2, v9')
    k(f's_cmp_eq_u32 s{S_CNT}, 0')
    k('s_cbranch_scc1 pa_mpd')
    k('s_cmp_eq_u64 vcc, 0')
    k('s_cbranch_scc1 pa_mpd')
    k('s_sleep 2')
    k('s_branch pa_mp')
    k.label('pa_mpd')
    k('s_mov_b64 exec, -1')
    stamp(k, 0)
    ws_srd(k, SRD_O, 'MODP')
    k(f'v_lshlrev_b32 v8, 4, v{VL}')
    k('s_lshr_b32 s79, s73, 5')
    k('s_mul_i32 s79, s79, 9216')
    for ks in range(2):
        for c in range(9):
            if c % 4 == 0:
                k(f's_mov_b32 m0, {L_MOD + ks*9216 + c*1024}')
                k(f's_add_u32 s{S_T0}, s79, {ks*18432 + c*1024}')
            k(f'buffer_load_dwordx4 v8, {sr(SRD_O,4)}, s{S_T0} offen offset:{(c%4)*1024} sc1 lds')
    k('s_waitcnt vmcnt(0)')
    k('s_barrier')
    if C.PERSIST: k('s_barrier')
    k('s_branch pa_hout')
    VMAX[0] = 256

def phase_B(k):
    phase_entry(k)
    k('s_cmp_ge_u32 s65, 18')
    k('s_cbranch_scc1 pb_wvo')
    k('s_mul_i32 s66, s64, 18')
    k('s_add_u32 s66, s66, s65')
    div_const(k, 69, 66, 48, 255)
    k('s_mul_i32 s70, s69, 48')
    k('s_sub_u32 s70, s66, s70')
    div_const(k, 67, 70, 3, 63)
    k('s_mul_i32 s71, s67, 3')
    k('s_sub_u32 s71, s70, s71')
    k('s_mul_i32 s68, s69, 3')
    k('s_add_u32 s68, s68, s71')
    k('s_lshl_b32 s74, s71, 1')
    k('s_add_u32 s74, s74, s67')
    mod_const(k, 74, 6, 31)
    k('s_mul_i32 s74, s74, 3')
    k('s_mul_i32 s66, s67, 9')
    k('s_add_u32 s66, s66, s68')
    k(f's_lshl_b32 s{S_ABASE}, s68, 13')
    k(f's_lshl_b32 s{S_BBASE}, s67, 13')
    k('s_lshl_b32 s75, s68, 2')
    k('s_lshl_b32 s76, s67, 3')
    k(f's_add_u32 s78, s66, {FL["T"]}')
    k('s_lshl_b32 s69, s68, 2')
    div_const(k, 69, 69, 3, 40)
    args_ready(k)
    ws_srd(k, SRD_A, 'WQK'); ws_srd(k, SRD_B, 'H'); ws_srd(k, SRD_O, 'T')
    g1 = Gemm('tt', Opnd('frag', 8, SRD_A, S_ABASE, rbtot=72, aux=LD()), Opnd('frag', 8, SRD_B, S_BBASE, rbtot=128, aux=LD()), 2, 2, 18, 4, rot=R('tt'))
    gemm_role(k, g1, epi_frag16(128, 75, 76), s_flag=78, depA=dep((69, 9, FL['WQK'], 18)), depB=dep((67, 4, FL['H'], 4)))
    k.label('pb_wvo')
    k('s_mul_i32 s66, s64, 9')
    k('s_add_u32 s66, s66, s65')
    k('s_sub_u32 s66, s66, 23')
    k('s_cmp_ge_u32 s65, 23')
    k('s_cbranch_scc1 pb_wvo2')
    k('s_bitcmp1_b32 s64, 0')
    k('s_cbranch_scc0 pb_kvc_e')
    k('s_cmp_lt_u32 s65, 20')
    k('s_cbranch_scc1 pb_kvc_o')
    k('s_cmp_eq_u32 s64, 7')
    k('s_cbranch_scc1 pb_idle')
    k('s_lshr_b32 s66, s64, 1')
    k('s_mul_i32 s66, s66, 3')
    k('s_add_u32 s66, s66, s65')
    k('s_add_u32 s66, s66, 52')
    k.label('pb_wvo2')
    div_const(k, 69, 66, 9, 255)
    k('s_mul_i32 s70, s69, 9')
    k('s_sub_u32 s70, s66, s70')
    div_const(k, 67, 69, 3, 15)
    k('s_mul_i32 s68, s67, 3')
    k('s_sub_u32 s68, s69, s68')
    div_const(k, 71, 70, 3, 15)
    k('s_mul_i32 s67, s67, 3')
    k('s_add_u32 s67, s67, s71')
    k('s_mul_i32 s71, s71, 3')
    k('s_sub_u32 s71, s70, s71')
    k('s_mul_i32 s68, s68, 3')
    k('s_add_u32 s68, s68, s71')
    k('s_mul_i32 s66, s67, 9')
    k('s_add_u32 s66, s66, s68')
    k('s_add_u32 s74, s67, s68')
    mod_const(k, 74, 3, 31)
    k('s_mul_i32 s74, s74, 6')
    k(f's_mul_i32 s{S_ABASE}, s68, {128*6912}')
    k(f's_add_u32 s{S_ABASE}, s{S_ABASE}, {2*D*2}')
    k(f's_lshl_b32 s{S_BBASE}, s67, 8')
    k('s_lshl_b32 s75, s68, 2')
    k('s_lshl_b32 s76, s67, 3')
    k(f's_add_u32 s78, s66, {FL["WVO"]}')
    args_ready(k)
    make_srd(k, SRD_A, P_WQKV, D*3*D*2); make_srd(k, SRD_B, P_WO, D*D*2); ws_srd(k, SRD_O, 'WVO')
    g2 = Gemm('wvo', Opnd('row', 8, SRD_A, S_ABASE, stride=6912, perm=True), Opnd('col', 8, SRD_B, S_BBASE, stride=2304), 2, 2, 18, 4, rot=R('wvo'))
    def wvo_exit(k):
        if not C.PERSIST: return
        k('s_lshl_b32 s79, s66, 2')
        k(f's_and_b32 s{S_T1}, s{S_WAVE}, 3')
        k(f's_add_u32 s79, s79, s{S_T1}')
        k(f's_cmp_ge_u32 s{S_WAVE}, 4')
        k(f's_cselect_b32 s{SRD_Y}, s{P_WQC}, s{P_WOC}')
        k(f's_cselect_b32 s{SRD_Y+1}, s{P_WQC+1}, s{P_WOC+1}')
        k(f's_mov_b32 s{SRD_Y+2}, {D*D*2}')
        k(f's_mov_b32 s{SRD_Y+3}, 0x00020000')
        k(f'v_lshlrev_b32 v8, 7, v{VL}')
        k(f's_lshl_b32 s{S_T0}, s79, 13')
        k(f'buffer_load_dword v14, v8, {sr(SRD_Y,4)}, s{S_T0} offen')
    gemm_role(k, g2, epi_frag16(72, 75, 76, rowperm=True), s_flag=78, end_hookA=(wait_init if C.PERSIST else None), exit_hook=wvo_exit)
    k.label('pb_kvc_o')
    k('s_add_u32 s66, s64, s65')
    k('s_sub_u32 s66, s66, 3')
    k('s_branch pb_kvc')
    k.label('pb_kvc_e')
    k('s_cmp_eq_u32 s65, 22')
    k('s_cbranch_scc1 pb_idle')
    k('s_lshl_b32 s66, s64, 1')
    k('s_add_u32 s66, s66, s65')
    k('s_sub_u32 s66, s66, 18')
    k.label('pb_kvc')
    k('s_and_b32 s74, s66, 1')
    k('s_mul_i32 s74, s74, 9')
    k('s_and_b32 s67, s66, 1')
    k('s_lshr_b32 s68, s66, 1')
    k(f's_mul_i32 s{S_ABASE}, s68, 384')
    k(f's_mul_i32 s{S_BBASE}, s67, {77*2304}')
    k(f's_add_u32 s69, s{S_BBASE}, {77*2304}')
    k('s_mul_i32 s78, s67, 12')
    k('s_add_u32 s78, s78, s68')
    k(f's_add_u32 s78, s78, {FL["KVC"]}')
    args_ready(k)
    make_srd(k, SRD_A, P_WKVC, D*2*D*2); make_srd(k, SRD_B, P_Y, 's69'); ws_srd(k, SRD_O, 'KVC')
    g3 = Gemm('kvc', Opnd('col', 12, SRD_A, S_ABASE, stride=4608), Opnd('row', 5, SRD_B, S_BBASE, stride=2304), 4, 1, 18, 4, rot=R('kvc'))
    def epi_kvc(k, g):
        k(f'v_and_b32 v1, 15, v{VL}\nv_lshlrev_b32 v1, 4, v1\nv_lshrrev_b32 v{VT}, 5, v{VL}\nv_lshl_add_u32 v1, v{VT}, 8, v1')
        k(f'v_bfe_u32 v{VT}, v{VL}, 4, 1\nv_lshl_add_u32 v1, v{VT}, 3, v1')
        k('s_mul_i32 s70, s68, 12')
        k(f's_mul_i32 s71, s{S_WA}, 3')
        k('s_add_u32 s70, s70, s71')
        k('s_mul_i32 s72, s67, 5120')
        t = g.VF
        for i in range(3):
            k(f's_add_u32 s71, s70, {i}')
            k(f's_lshr_b32 s{S_T0}, s71, 1')
            k(f's_mul_i32 s{S_T0}, s{S_T0}, 10240')
            k('s_and_b32 s71, s71, 1')
            k('s_lshl_b32 s71, s71, 9')
            k(f's_add_u32 s{S_T0}, s{S_T0}, s71')
            k(f's_add_u32 s{S_T0}, s{S_T0}, s72')
            k(f's_add_u32 s{S_T1}, s{S_T0}, 4096')
            for b in range(5):
                c0 = acc(g, i, b)
                k(f'v_cvt_pk_bf16_f32 v{t}, v{c0}, v{c0+1}')
                k(f'v_cvt_pk_bf16_f32 v{t+1}, v{c0+2}, v{c0+3}')
                k(f'buffer_store_dwordx2 {vr(t,2)}, v1, {sr(SRD_O,4)}, s{S_T0 if b < 4 else S_T1} offen offset:{(b%4)*1024}{ST}')
                t += 2
    gemm_role(k, g3, epi_kvc, s_flag=78)
    k.label('pb_idle')
    args_ready(k)
    if C.PERSIST: wait_init(k)
    k('s_lshr_b32 s79, s64, 1')
    k('s_sub_u32 s78, s65, 16')
    k('s_cmp_eq_u32 s64, 7')
    k('s_cselect_b32 s79, s78, s79')
    k('s_lshl_b32 s79, s79, 3')
    k(f's_add_u32 s79, s79, s{S_WAVE}')
    if C.PERSIST:
        make_srd(k, SRD_Y, P_WMOD, D*6*D*2)
        prefetch_cols(k, SRD_Y, 18, 4608, 79, 56, 14, 8, 9, stride=13824)
    phase_exit(k, drain=False)

def phase_C(k):
    phase_entry(k)
    k('s_lshr_b32 s74, s65, 2')
    k('s_add_u32 s74, s74, s65')
    k('s_and_b32 s74, s74, 3')
    k('s_mul_i32 s74, s74, 9')
    k('s_lshr_b32 s74, s74, 1')
    k('s_cmp_ge_u32 s65, 16')
    k('s_cbranch_scc1 pc_v')
    k('s_lshr_b32 s66, s64, 2')
    k('s_and_b32 s67, s64, 1')
    k('s_lshl_b32 s67, s67, 2')
    k('s_lshr_b32 s68, s65, 2')
    k('s_add_u32 s67, s67, s68')
    k('s_bfe_u32 s68, s64, 0x10001')
    k('s_lshl_b32 s68, s68, 2')
    k('s_and_b32 s69, s65, 3')
    k('s_add_u32 s68, s68, s69')
    k('s_lshl_b32 s69, s66, 3')
    k('s_add_u32 s71, s69, s68')
    k(f's_lshl_b32 s{S_ABASE}, s71, 13')
    k('s_add_u32 s70, s69, s67')
    k(f's_lshl_b32 s{S_BBASE}, s70, 13')
    k('s_lshl_b32 s75, s68, 2')
    k('s_lshl_b32 s76, s67, 3')
    k('s_lshl_b32 s77, s66, 21')
    k('s_lshl_b32 s72, s70, 3')
    k('s_add_u32 s72, s72, s68')
    k(f's_add_u32 s72, s72, {FL["P"]}')
    args_ready(k)
    ws_srd(k, SRD_A, 'H'); ws_srd(k, SRD_B, 'T'); ws_srd(k, SRD_O, 'P'); ws_srd(k, SRD_X, 'ST')
    g1 = Gemm('ss', Opnd('frag', 8, SRD_A, S_ABASE, rbtot=128, aux=LD()), Opnd('frag', 8, SRD_B, S_BBASE, rbtot=128, aux=LD()), 1, 4, 18, 4, rot=R('ss'))
    def epi_s(k, g):
        k(f's_mov_b32 s78, {f32(CSC)}')
        k(f's_mov_b32 s79, 0x3f803f80')
        VM = (g.VX + 3) // 4 * 4
        k(f's_lshl_b32 s{S_T0}, s75, 6')
        k(f's_add_u32 s{S_T0}, s{S_T0}, s76')
        k(f's_lshl_b32 s{S_T1}, s{S_WB}, 1')
        k(f's_add_u32 s{S_T0}, s{S_T0}, s{S_T1}')
        k(f's_lshl_b32 s{S_OBASE}, s{S_T0}, 10')
        k(f's_add_u32 s{S_OBASE}, s{S_OBASE}, s77')
        k(f'v_lshlrev_b32 v1, 4, v{VL}')
        t = g.VF
        for b in range(2):
            regs = [acc(g, a, b) + r for a in range(8) for r in range(4)]
            m = VM + b; m2 = VM + 4 + b
            k(f'v_max3_f32 v{m}, v{regs[0]}, v{regs[1]}, v{regs[2]}')
            k(f'v_max3_f32 v{m2}, v{regs[3]}, v{regs[4]}, v{regs[5]}')
            i = 6; tog = 0
            while i < 32:
                d = m if tog == 0 else m2
                k(f'v_max3_f32 v{d}, v{d}, v{regs[i]}, v{regs[i+1]}')
                i += 2; tog ^= 1
            k(f'v_max_f32 v{m}, v{m}, v{m2}')
        for sw in ('v_permlane32_swap_b32', 'v_permlane16_swap_b32'):
            k(f'v_mov_b32 v{VM+4}, v{VM}\nv_mov_b32 v{VM+5}, v{VM+1}')
            k('s_nop 0')
            k(f'{sw} v{VM}, v{VM+4}')
            k(f'{sw} v{VM+1}, v{VM+5}')
            k('s_nop 0')
            k(f'v_max_f32 v{VM}, v{VM}, v{VM+4}\nv_max_f32 v{VM+1}, v{VM+1}, v{VM+5}')
        k(f'v_mul_f32 v{VM}, s78, v{VM}\nv_mul_f32 v{VM+1}, s78, v{VM+1}')
        k(f'v_mov_b32 v{VM+2}, 0\nv_mov_b32 v{VM+3}, 0')
        for ap in range(4):
            for b in range(2):
                regs = [acc(g, 2*ap+h, b) + r for h in range(2) for r in range(4)]
                for r in regs: k(f'v_fma_f32 v{r}, v{r}, s78, -v{VM+b}')
                for r in regs: k(f'v_exp_f32 v{r}, v{r}')
                k(f's_add_u32 s{S_T0}, s{S_OBASE}, {ap*64*1024}')
                for j in range(4): k(f'v_cvt_pk_bf16_f32 v{t+j}, v{regs[2*j]}, v{regs[2*j+1]}')
                k(f'buffer_store_dwordx4 {vr(t,4)}, v1, {sr(SRD_O,4)}, s{S_T0} offen offset:{b*1024}{ST}')
                for j in range(4): k(f'v_dot2_f32_bf16 v{VM+2+b}, v{t+j}, s79, v{VM+2+b}')
                t += 4
        k('s_nop 2')
        for sw in ('v_permlane32_swap_b32', 'v_permlane16_swap_b32'):
            k(f'v_mov_b32 v{VM+4}, v{VM+2}\nv_mov_b32 v{VM+5}, v{VM+3}')
            k('s_nop 0')
            k(f'{sw} v{VM+2}, v{VM+4}')
            k(f'{sw} v{VM+3}, v{VM+5}')
            k('s_nop 0')
            k(f'v_add_f32 v{VM+2}, v{VM+2}, v{VM+4}\nv_add_f32 v{VM+3}, v{VM+3}, v{VM+5}')
        k(f's_lshl_b32 s{S_T0}, s70, 2')
        k(f's_add_u32 s{S_T0}, s{S_T0}, s{S_WB}')
        k(f's_lshl_b32 s{S_T0}, s{S_T0}, 3')
        k(f's_add_u32 s{S_T0}, s{S_T0}, s68')
        k(f's_lshl_b32 s{S_T0}, s{S_T0}, 8')
        k('s_mov_b64 exec, 0xffff')
        k(f'buffer_store_dwordx4 {vr(VM,4)}, v1, {sr(SRD_X,4)}, s{S_T0} offen{ST}')
        k('s_mov_b64 exec, -1')
        g.vmax = VM + 6
    gemm_role(k, g1, epi_s, s_flag=72, depA=dep((71, 4, FL['H'], 4)), depB=dep((70, 9, FL['T'], 9)))
    k.label('pc_v')
    k('s_lshr_b32 s66, s64, 1')
    k('s_lshl_b32 s66, s66, 2')
    k('s_and_b32 s67, s65, 3')
    k('s_add_u32 s66, s66, s67')
    k('s_and_b32 s67, s64, 1')
    k('s_lshl_b32 s67, s67, 2')
    k('s_bfe_u32 s68, s65, 0x20002')
    k('s_add_u32 s67, s67, s68')
    k(f's_lshl_b32 s{S_ABASE}, s66, 13')
    k(f's_mul_i32 s{S_BBASE}, s67, {9*1024}')
    k('s_lshl_b32 s75, s66, 2')
    k('s_mul_i32 s76, s67, 9')
    k('s_lshr_b32 s72, s66, 3')
    k('s_lshl_b32 s72, s72, 3')
    k('s_add_u32 s72, s72, s67')
    k('s_lshl_b32 s72, s72, 3')
    k('s_and_b32 s73, s66, 7')
    k('s_add_u32 s72, s72, s73')
    k(f's_add_u32 s72, s72, {FL["V"]}')
    args_ready(k)
    ws_srd(k, SRD_A, 'H'); ws_srd(k, SRD_B, 'WVO'); ws_srd(k, SRD_O, 'VT')
    g2 = Gemm('vv', Opnd('frag', 8, SRD_A, S_ABASE, rbtot=128, aux=LD()), Opnd('frag', 9, SRD_B, S_BBASE, rbtot=72, aux=LD()), 4, 1, 18, 4, rot=R('vv'))
    gemm_role(k, g2, epi_frag16(72, 75, 76), s_flag=72, depA=dep((66, 4, FL['H'], 4)), depB=dep((67, 9, FL['WVO'], 18)))

E_VAT, E_VX, E_VZ = 16, 196, 232
def e_at_loads(k):
    ws_srd(k, SRD_B, 'AT')
    k(f's_sub_u32 s71, s{S_WAVE}, 4')
    k(f's_mul_i32 s72, s71, {9*10}')
    k('s_mul_i32 s73, s66, 5')
    k('s_add_u32 s72, s72, s73')
    k('s_lshl_b32 s72, s72, 10')
    for i in range(9):
        k('s_add_u32 s73, s72, 4096')
        for mb in range(5):
            k(f'buffer_load_dwordx4 {vr(E_VAT+20*i+4*mb,4)}, v1, {sr(SRD_B,4)}, s{72 if mb < 4 else 73} offen offset:{(mb%4)*1024}{LD()}')
        if i < 8: k('s_add_u32 s72, s72, 10240')

def e_preload_hook(k):
    if not C.PERSIST: return
    k(f'v_lshlrev_b32 v8, 7, v{VL}')
    k('s_mul_i32 s85, s66, 9')
    k(f's_add_u32 s85, s85, {FL["AT"]}')
    k('s_lshl_b32 s85, s85, 7')
    k('s_mov_b64 exec, 0x1ff')
    k(f'buffer_load_dword v9, v8, {sr(SRD_F,4)}, s85 offen sc1')
    k('s_waitcnt vmcnt(0)')
    k('v_cmp_ne_u32 vcc, 1, v9')
    k('s_mov_b64 exec, -1')
    k('s_cmp_eq_u64 vcc, 0')
    k('s_cbranch_scc1 pe_early')

def phase_D(k):
    phase_entry(k)
    k('s_cmp_ge_u32 s65, 24')
    k('s_cbranch_scc1 pd_aux')
    k('s_lshr_b32 s66, s64, 2')
    k('s_and_b32 s67, s64, 1')
    k('s_lshl_b32 s67, s67, 2')
    k('s_and_b32 s68, s65, 3')
    k('s_add_u32 s67, s67, s68')
    k('s_bfe_u32 s68, s64, 0x10001')
    k('s_mul_i32 s68, s68, 6')
    k('s_lshr_b32 s69, s65, 2')
    k('s_add_u32 s68, s68, s69')
    k(f's_mul_i32 s{S_ABASE}, s66, {32*72*1024}')
    k('s_mul_i32 s69, s68, 6144')
    k(f's_add_u32 s{S_ABASE}, s{S_ABASE}, s69')
    k(f's_lshl_b32 s{S_BBASE}, s66, 21')
    k('s_lshl_b32 s69, s67, 13')
    k(f's_add_u32 s{S_BBASE}, s{S_BBASE}, s69')
    k('s_lshl_b32 s70, s66, 3')
    k('s_add_u32 s70, s70, s67')
    k('s_mul_i32 s75, s68, 3')
    k('s_lshl_b32 s76, s70, 3')
    k('s_mul_i32 s72, s70, 12')
    k('s_add_u32 s72, s72, s68')
    k(f's_add_u32 s72, s72, {FL["X1"]}')
    k('s_lshl_b32 s71, s68, 1')
    div_const(k, 71, 71, 3, 24)
    k('s_min_u32 s71, s71, 6')
    k('s_lshl_b32 s73, s66, 3')
    k('s_add_u32 s71, s71, s73')
    k('s_and_b32 s74, s65, 3')
    k('s_lshl_b32 s74, s74, 1')
    k('s_lshr_b32 s73, s65, 2')
    k('s_add_u32 s74, s74, s73')
    k('s_and_b32 s74, s74, 7')
    k('s_lshl_b32 s74, s74, 1')
    args_ready(k)
    ws_srd(k, SRD_A, 'VT'); ws_srd(k, SRD_B, 'P'); ws_srd(k, SRD_O, 'X1')
    g1 = Gemm('pv', Opnd('frag', 6, SRD_A, S_ABASE, rbtot=72, aux=LD()), Opnd('frag', 8, SRD_B, S_BBASE, rbtot=64, aux=LD()), 1, 4, 16, 5, lds0=8192, rot=R('pv'))
    def depB_pv(k):
        dep((70, 8, FL['P'], 8))(k)
        ws_srd(k, SRD_X, 'ST')
        k(f's_lshl_b32 s{S_T1}, s{S_W2}, 12')
        k(f's_mov_b32 m0, s{S_T1}')
        k(f's_lshl_b32 s{S_T0}, s70, 13')
        k(f's_add_u32 s{S_T0}, s{S_T0}, s{S_T1}')
        for i in range(4): k(f'buffer_load_dwordx4 v1, {sr(SRD_X,4)}, s{S_T0} offen offset:{i*1024}{LD()} lds')
    def pv_consumer(k, g):
        ma, nb = 6, 2
        VF, VX = g.VF, g.VX
        VGT, VXR, VXF, VS, VR, VMX, VRF, VLS, VSA, VE, VBP = VX, VX+24, VX+48, VX+72, VX+76, VX+78, VX+80, VX+82, VX+84, VX+85, VX+87
        def side_loads():
            ws_srd(k, SRD_Y, 'GATE')
            k(f'v_lshrrev_b32 v1, 4, v{VL}\nv_lshlrev_b32 v1, 5, v1')
            k(f's_mul_i32 s{S_T0}, s66, 4608')
            k(f's_mul_i32 s{S_T1}, s68, 384')
            k(f's_add_u32 s{S_T0}, s{S_T0}, s{S_T1}')
            for ap in range(3):
                for h in range(2):
                    k(f'buffer_load_dwordx4 {vr(VGT+8*ap+4*h,4)}, v1, {sr(SRD_Y,4)}, s{S_T0} offen offset:{ap*128+16*h}{LD()}')
        make_srd(k, SRD_Y, P_X, NR*D*2)
        quad_voff(k, 1, 2304)
        k('s_lshl_b32 s79, s70, 2')
        k(f's_add_u32 s79, s79, s{S_WB}')
        k(f's_mul_i32 s{S_T0}, s79, {32*2304}')
        k(f's_mul_i32 s{S_T1}, s68, 192')
        k(f's_add_u32 s{S_T0}, s{S_T0}, s{S_T1}')
        k(f's_add_u32 s{S_T1}, s{S_T0}, {16*2304}')
        for ap in range(3):
            for b in range(2):
                k(f'buffer_load_dwordx4 {vr(VXR+(ap*2+b)*4,4)}, v1, {sr(SRD_Y,4)}, s{S_T0 if b == 0 else S_T1} offen offset:{ap*64}')
        if not C.PERSIST: side_loads()
        k(f'v_and_b32 v{VSA}, 15, v{VL}\nv_lshlrev_b32 v{VSA}, 4, v{VSA}')
        k(f's_lshl_b32 s77, s{S_WB}, 11')
        if g.rot is not None:
            k(f's_lshl_b32 s{S_T0}, s74, 7')
            k(f'v_add_u32 v{VSA}, s{S_T0}, v{VSA}')
        aA = cons_addr_setup(k, g, g.A, ma, S_WA, VL, VA, VT)
        aB = cons_addr_setup(k, g, g.B, nb, S_WB, VL, VA + len(aA), VT)
        addrs = aA + aB
        for i in range(ma*nb*4): k(f'v_mov_b32 v{VACC+i}, 0')
        q2f_addr(k, VBP)
        k(f'v_mov_b32 v{VMX}, {f32(-3.0e38)}\nv_mov_b32 v{VMX+1}, {f32(-3.0e38)}')
        k(f'v_mov_b32 v{VRF}, {f32(-3.0e38)}\nv_mov_b32 v{VRF+1}, {f32(-3.0e38)}')
        k(f'v_mov_b32 v{VLS}, 0\nv_mov_b32 v{VLS+1}, 0')
        k(f's_mov_b32 s78, {f32(-64.0)}')
        setsz = (ma + nb) * 4
        def fa(st, a): return VF + st*setsz + 4*a
        def fb(st, b): return VF + st*setsz + 4*ma + 4*b
        def reads(s, st):
            return cons_reads(g, g.B, nb, aB, s, fb(st, 0)) + cons_reads(g, g.A, ma, aA, s, fa(st, 0))
        def mf(st):
            return [f'v_mfma_f32_16x16x32_bf16 {vr(acc(g,a,b),4)}, {vr(fa(st,a),4)}, {vr(fb(st,b),4)}, {vr(acc(g,a,b),4)}'
                    for a in range(ma) for b in range(nb)]
        def muls(i):
            a, b = divmod(i, nb)
            c = acc(g, a, b)
            return [f'v_mul_f32 v{c+r}, v{VR+b}, v{c+r}' for r in range(4)]
        def upd():
            o = []
            for b in range(2): o.append(f'v_max_f32 v{VMX+b}, v{VMX+b}, v{VS+b}')
            for b in range(2): o.append(f'v_add_f32 v{VE+b}, s78, v{VMX+b}')
            for b in range(2): o.append(f'v_max_f32 v{VE+b}, v{VE+b}, v{VS+b}')
            for b in range(2): o.append(f'v_sub_f32 v{VR+b}, v{VRF+b}, v{VE+b}')
            for b in range(2): o.append(f'v_exp_f32 v{VR+b}, v{VR+b}')
            for b in range(2): o.append(f'v_mov_b32 v{VRF+b}, v{VE+b}')
            for b in range(2): o.append(f'v_fma_f32 v{VLS+b}, v{VLS+b}, v{VR+b}, v{VS+2+b}')
            return o
        srd_ = [f'v_add_u32 v{VE}, s77, v{VSA}', f'ds_read_b128 {vr(VS,4)}, v{VE}', f'v_add_u32 v{VSA}, 256, v{VSA}', f'v_and_b32 v{VSA}, 2047, v{VSA}']
        adv = [f's_add_u32 s{S_SLOT}, s{S_SLOT}, {g.stage}',
               f's_cmp_eq_u32 s{S_SLOT}, {g.NS*g.stage}',
               f's_cselect_b32 s{S_DELTA}, {-(g.NS-1)*g.stage & 0xffffffff}, s{S_T3}',
               f's_cselect_b32 s{S_SLOT}, 0, s{S_SLOT}'] + [f'v_add_u32 v{a}, s{S_DELTA}, v{a}' for a in addrs]
        k(f's_mov_b32 s{S_SLOT}, 0')
        k(f's_mov_b32 s{S_CNT}, 8')
        k(f's_mov_b32 s{S_T3}, {g.stage}')
        k('s_barrier')
        stamp(k, 0)
        for x in srd_: k(x)
        for r in reads(0, 0): k(r)
        k('s_waitcnt lgkmcnt(8)')
        for x in upd(): k(x)
        k('s_waitcnt lgkmcnt(0)')
        lp = k.newlabel('pv_mm'); le = k.newlabel('pv_last')
        k.label(lp)
        M = mf(0); fill = reads(1, 1) + adv
        for x in muls(0): k(x)
        for i in range(12):
            if i + 1 < 12:
                for x in muls(i+1): k(x)
            else:
                k('s_nop 1')
            k(M[i])
            if fill: k(fill.pop(0))
        for f in fill: k(f)
        k('s_waitcnt lgkmcnt(0)')
        k('s_barrier')
        interleave(k, mf(1), reads(0, 0) + srd_ + [f's_sub_u32 s{S_CNT}, s{S_CNT}, 1'])
        k('s_waitcnt lgkmcnt(0)')
        interleave(k, mf(0), reads(1, 1) + adv)
        k('s_waitcnt lgkmcnt(0)')
        k(f's_cmp_eq_u32 s{S_CNT}, 0')
        k(f's_cbranch_scc1 {le}')
        k('s_barrier')
        interleave(k, mf(1), reads(0, 0) + upd(), per=2)
        if C.PERSIST:
            k(f's_cmp_eq_u32 s{S_CNT}, 4')
            k('s_cbranch_scc1 pv_g1')
            k(f's_cmp_eq_u32 s{S_CNT}, 2')
            k('s_cbranch_scc1 pv_g2')
            k.label('pv_gback')
        k('s_waitcnt lgkmcnt(0)')
        k(f's_branch {lp}')
        if C.PERSIST:
            k.label('pv_g1')
            k(f'v_lshlrev_b32 v1, 7, v{VL}')
            k(f's_mov_b32 s{S_T0}, {FL["GATE"]*128}')
            k('s_mov_b64 exec, 0x3ffff')
            k(f'buffer_load_dword v{VGT}, v1, {sr(SRD_F,4)}, s{S_T0} offen sc1')
            k('s_mov_b64 exec, -1')
            k('s_branch pv_gback')
            k.label('pv_g2')
            k('s_mov_b64 exec, 0x3ffff')
            k('s_waitcnt vmcnt(0)')
            k(f'v_cmp_ne_u32 vcc, 1, v{VGT}')
            k('s_mov_b64 exec, -1')
            k('s_cmp_eq_u64 vcc, 0')
            k('s_cbranch_scc1 pv_g3')
            k(f's_mov_b32 s85, {FL["GATE"]}')
            poll(k, 85, 18, vt=VGT)
            k(f's_mov_b32 s{S_CNT}, 2')
            k.label('pv_g3')
            side_loads()
            k('s_branch pv_gback')
        k.label(le)
        k('s_waitcnt vmcnt(0)')
        bp = [f'ds_bpermute_b32 v{VXF+j}, v{VBP}, v{VXR+j}' for j in range(24)]
        interleave(k, mf(1), bp + [f'v_rcp_f32 v{VLS}, v{VLS}', f'v_rcp_f32 v{VLS+1}, v{VLS+1}'], per=2)
        g.VGT, g.VXF, g.VLS, g.VE = VGT, VXF, VLS, VE
        g.vmax = VBP + 1
    def epi_pv(k, g):
        k(f's_lshl_b32 s{S_T0}, s75, 7')
        k(f's_add_u32 s{S_T0}, s{S_T0}, s76')
        k(f's_lshl_b32 s{S_T1}, s{S_WB}, 1')
        k(f's_add_u32 s{S_T0}, s{S_T0}, s{S_T1}')
        k(f's_lshl_b32 s{S_OBASE}, s{S_T0}, 10')
        k(f'v_lshlrev_b32 v1, 4, v{VL}')
        k('s_waitcnt lgkmcnt(0)')
        T = g.VE
        t = g.VF
        for ap in range(3):
            for b in range(2):
                xr = g.VXF + (ap*2+b)*4
                regs = [acc(g, 2*ap+h, b) + r for h in range(2) for r in range(4)]
                for e in range(8):
                    k(f'v_mul_f32 v{regs[e]}, v{g.VLS+b}, v{regs[e]}')
                    if e % 2 == 0: k(f'v_lshlrev_b32 v{T}, 16, v{xr+e//2}')
                    else: k(f'v_and_b32 v{T}, 0xffff0000, v{xr+e//2}')
                    k(f'v_fma_f32 v{regs[e]}, v{regs[e]}, v{g.VGT+8*ap+e}, v{T}')
                for j in range(4): k(f'v_cvt_pk_bf16_f32 v{t+j}, v{regs[2*j]}, v{regs[2*j+1]}')
                k(f's_add_u32 s{S_T0}, s{S_OBASE}, {ap*128*1024}')
                k(f'buffer_store_dwordx4 {vr(t,4)}, v1, {sr(SRD_O,4)}, s{S_T0} offen offset:{b*1024}{ST}')
                t += 4
    gemm_role(k, g1, epi_pv, s_flag=72, custom_consumer=pv_consumer, depA=dep((71, 8, FL['V'], 16)), depB=depB_pv, end_hookA=e_preload_hook, end_hookB=e_preload_hook)
    k.label('pd_aux')
    k('s_sub_u32 s66, s65, 24')
    k('s_lshl_b32 s66, s66, 3')
    k('s_add_u32 s66, s66, s64')
    k('s_cmp_ge_u32 s66, 18')
    k('s_cbranch_scc1 pd_bt')
    k('s_and_b32 s67, s66, 1')
    k('s_lshr_b32 s68, s66, 1')
    k(f's_mul_i32 s{S_ABASE}, s68, {128*2304}')
    k(f's_mul_i32 s{S_BBASE}, s67, 5120')
    k('s_lshl_b32 s75, s68, 2')
    k('s_mul_i32 s76, s67, 5')
    k('s_mul_i32 s72, s67, 9')
    k('s_add_u32 s72, s72, s68')
    k(f's_add_u32 s72, s72, {FL["AT"]}')
    k('s_mul_i32 s74, s67, 9')
    args_ready(k)
    make_srd(k, SRD_A, P_WQC, D*D*2); ws_srd(k, SRD_B, 'KVC'); ws_srd(k, SRD_O, 'AT')
    g2 = Gemm('at', Opnd('row', 8, SRD_A, S_ABASE, stride=2304, perm=True), Opnd('frag', 5, SRD_B, S_BBASE, rbtot=10, aux=LD()), 4, 1, 18, 6, rot=R('at'))
    gemm_role(k, g2, epi_frag16(10, 75, 76), s_flag=72, depB=dep((67, 12, FL['KVC'], 6)))
    k.label('pd_bt')
    k('s_cmp_ge_u32 s66, 36')
    k('s_cbranch_scc1 pd_idle')
    k('s_sub_u32 s66, s66, 18')
    k('s_and_b32 s67, s66, 1')
    k('s_lshr_b32 s68, s66, 1')
    k(f's_mul_i32 s{S_ABASE}, s67, 5120')
    k(f's_add_u32 s{S_ABASE}, s{S_ABASE}, {36*10*1024}')
    k(f's_lshl_b32 s{S_BBASE}, s68, 8')
    k('s_mul_i32 s75, s67, 3')
    k('s_lshl_b32 s76, s68, 3')
    k('s_mul_i32 s72, s67, 9')
    k('s_add_u32 s72, s72, s68')
    k(f's_add_u32 s72, s72, {FL["BT"]}')
    k('s_mul_i32 s74, s67, 9')
    args_ready(k)
    ws_srd(k, SRD_A, 'KVC'); make_srd(k, SRD_B, P_WOC, D*D*2); ws_srd(k, SRD_O, 'BT')
    g3 = Gemm('bt', Opnd('frag', 5, SRD_A, S_ABASE, rbtot=10, aux=LD()), Opnd('col', 8, SRD_B, S_BBASE, stride=2304), 1, 4, 18, 6, rot=R('bt'))
    gemm_role(k, g3, epi_frag16(72, 75, 76, rowperm=True), s_flag=72, depA=dep((67, 12, FL['KVC'] + 6, 6)))
    k.label('pd_idle')
    args_ready(k)
    k('s_sub_u32 s73, s66, 36')
    if C.PERSIST:
        k('s_cmp_ge_u32 s73, 18')
        k('s_cbranch_scc1 pd_idle2')
        gate_job(k, 73)
        phase_exit(k)
        k.label('pd_idle2')
        k('s_sub_u32 s73, s73, 18')
    if not C.PERSIST:
        k('s_lshl_b32 s79, s73, 3')
        k(f's_add_u32 s79, s79, s{S_WAVE}')
        prefetch_flat(k, P_WOC, D*D*2, 79, 224, 14, vtmp=8)
        prefetch_flat(k, P_WQC, D*D*2, 79, 224, 14, vtmp=8)
    phase_exit(k, drain=False)

def phase_E(k):
    if C.PERSIST:
        k.label('pe_early')
        k('s_mov_b32 s81, 1')
        k('s_branch pe_at')
    phase_entry(k)
    L_ST, L_Z, L_CS, L_CS2, L_BT = 0, 1024, 21504, 41984, 47104
    VAT, VX_, VZ = E_VAT, E_VX, E_VZ
    k('s_lshr_b32 s66, s64, 2')
    k(f'v_lshlrev_b32 v1, 4, v{VL}')
    k('s_mov_b32 s81, 0')
    args_ready(k)
    k(f's_cmp_lt_u32 s{S_WAVE}, 4')
    k('s_cbranch_scc1 pe_common')
    dep((66, 9, FL['AT'], 9))(k)
    if C.PERSIST:
        k.label('pe_at')
        e_at_loads(k)
        k('s_cmp_eq_u32 s81, 0')
        k('s_cbranch_scc1 pe_common')
        k('s_barrier')
        stamp_begin(k)
    k.label('pe_common')
    k('s_bfe_u32 s67, s64, 0x10001')
    k('s_and_b32 s68, s64, 1')
    k('s_lshl_b32 s68, s68, 5')
    k('s_add_u32 s68, s68, s65')
    k('s_lshl_b32 s69, s66, 6')
    k('s_add_u32 s68, s68, s69')
    k('s_lshr_b32 s70, s68, 3')
    ws_srd(k, SRD_A, 'X1'); make_srd(k, SRD_O, P_OUT, NR*D*2)
    k(f's_cmp_lt_u32 s{S_WAVE}, 4')
    k('s_cbranch_scc1 pe_l')
    k(f's_sub_u32 s71, s{S_WAVE}, 4')
    k(f's_mul_i32 s74, s71, {9*128}')
    k('s_add_u32 s74, s74, s68')
    k('s_lshl_b32 s74, s74, 10')
    def load_x():
        for i in range(9):
            k(f'buffer_load_dwordx4 {vr(VX_+4*i,4)}, v1, {sr(SRD_A,4)}, s74 offen{LD()}')
            if i < 8: k(f's_add_u32 s74, s74, {128*1024}')
    if not C.PERSIST:
        e_at_loads(k)
        load_x()
    k('s_mov_b32 s77, 0x3f803f80')
    for j in range(4): k(f'v_mov_b32 v{12+j}, s77')
    k(f's_mul_i32 s{S_T1}, s71, 5120')
    k(f'v_add_u32 v6, s{S_T1}, v1')
    k(f'v_lshrrev_b32 v7, 5, v{VL}\nv_lshlrev_b32 v7, 6, v7\nv_and_b32 v10, 15, v{VL}\nv_lshl_add_u32 v7, v10, 2, v7')
    k(f's_lshl_b32 s{S_T0}, s71, 7')
    k(f'v_add_u32 v7, s{S_T0}, v7')
    ex = 0 if C.PERSIST else 9
    for i in range(9):
        k(f's_waitcnt vmcnt({5*(8-i) + ex})')
        for mb in range(5):
            c = '0' if i == 0 else vr(VZ+4*mb, 4)
            k(f'v_mfma_f32_16x16x32_bf16 {vr(VZ+4*mb,4)}, {vr(VAT+20*i+4*mb,4)}, v[12:15], {c}')
    k('v_mov_b32 v2, 0\nv_mov_b32 v3, 0\nv_mov_b32 v4, 0\nv_mov_b32 v5, 0')
    k('s_nop 4')
    for mb in range(5): k(f'ds_write_b128 v6, {vr(VZ+4*mb,4)} offset:{L_CS + mb*1024}')
    stamp(k, 0)
    if C.PERSIST:
        dep((70, 12, FL['X1'], 12))(k)
        stamp(k, 1)
        load_x()
    k('s_waitcnt lgkmcnt(0)')
    k('s_barrier')
    for i in range(9):
        k(f's_waitcnt vmcnt({8-i})')
        mm = []
        for mb in range(5):
            c = '0' if i == 0 else vr(VZ+4*mb, 4)
            mm.append(f'v_mfma_f32_16x16x32_bf16 {vr(VZ+4*mb,4)}, {vr(VAT+20*i+4*mb,4)}, {vr(VX_+4*i,4)}, {c}')
        dd = []
        for j in range(4*i, 4*i+4):
            dd.append(f'v_dot2_f32_bf16 v{2+(j&1)}, v{VX_+j}, s77, v{2+(j&1)}')
            dd.append(f'v_dot2_f32_bf16 v{4+(j&1)}, v{VX_+j}, v{VX_+j}, v{4+(j&1)}')
        interleave(k, mm, dd, per=2)
    k('s_nop 2')
    k('v_add_f32 v2, v2, v3\nv_add_f32 v4, v4, v5')
    k('s_nop 1')
    k('v_permlane32_swap_b32 v2, v4')
    k('s_nop 0')
    k('v_add_f32 v2, v2, v4')
    k('v_mov_b32 v3, v2')
    for mb in range(5): k(f'ds_write_b128 v6, {vr(VZ+4*mb,4)} offset:{L_Z + mb*1024}')
    k('v_permlane16_swap_b32 v2, v3')
    k('s_nop 0')
    k('v_add_f32 v2, v2, v3')
    k(f'ds_write_b32 v7, v2 offset:{L_ST}')
    stamp(k, 2)
    k(f's_cmp_ge_u32 s{S_WAVE}, 6')
    k('s_cbranch_scc0 pe_g2pre')
    k('s_waitcnt lgkmcnt(0)')
    k('s_barrier')
    phase_exit(k)
    k.label('pe_l')
    VRS, VP, VB, VZ2, VO, VQ, VCS = 16, 28, 40, 112, 192, 216, 232
    ws_srd(k, SRD_X, 'BT')
    dep((66, 9, FL['BT'], 9))(k)
    k('s_mul_i32 s75, s66, 216')
    k('s_mul_i32 s76, s67, 36')
    k('s_add_u32 s75, s75, s76')
    k(f's_mul_i32 s76, s{S_WAVE}, 9')
    k('s_add_u32 s75, s75, s76')
    k('s_lshl_b32 s75, s75, 10')
    k('s_lshl_b32 s76, s76, 10')
    k(f's_add_u32 s76, s76, {L_BT}')
    if not C.PERSIST: k('s_barrier')
    for kb in range(3):
        for g0 in (0, 4, 8):
            k(f's_add_u32 m0, s76, {kb*36864 + g0*1024}')
            k(f's_add_u32 s77, s75, {kb*72*1024 + g0*1024}')
            for i in range(4 if g0 < 8 else 1):
                k(f'buffer_load_dwordx4 v1, {sr(SRD_X,4)}, s77 offen offset:{i*1024}{LD()} lds')
    stamp(k, 0)
    if C.PERSIST: k('s_barrier')
    stamp(k, 1)
    def sum4(base, pre=()):
        for mb in range(5):
            for w in range(4):
                k(f'ds_read_b128 {vr(VZ2+20*w+4*mb,4)}, v1 offset:{base + w*5120 + mb*1024}')
        for x in pre: k(x)
        for mb in range(5):
            k(f's_waitcnt lgkmcnt({min(15, 4*(4-mb))})')
            for j in (0, 2):
                z = VZ2 + 4*mb + j
                k(f'v_pk_add_f32 {vr(z,2)}, {vr(z,2)}, {vr(z+20,2)}')
                k(f'v_pk_add_f32 {vr(z+40,2)}, {vr(z+40,2)}, {vr(z+60,2)}')
                k(f'v_pk_add_f32 {vr(z,2)}, {vr(z,2)}, {vr(z+40,2)}')
    k(f's_cmp_lg_u32 s{S_WAVE}, 3')
    k('s_cbranch_scc1 pe_g2pre')
    sum4(L_CS)
    for mb in range(5): k(f'ds_write_b128 v1, {vr(VZ2+4*mb,4)} offset:{L_CS2 + mb*1024}')
    k.label('pe_g2pre')
    k('s_mul_i32 s73, s67, 18')
    k(f's_mul_i32 s74, s{S_WAVE}, 3')
    k('s_add_u32 s73, s73, s74')
    k('s_lshl_b32 s74, s73, 7')
    k('s_add_u32 s74, s74, s68')
    k('s_lshl_b32 s74, s74, 10')
    for i in range(3):
        k(f'buffer_load_dwordx4 {vr(VRS+4*i,4)}, v1, {sr(SRD_A,4)}, s74 offen{LD()}')
        if i < 2: k(f's_add_u32 s74, s74, {128*1024}')
    f2q_addr(k, 5)
    quad_voff(k, 6, 2304)
    k(f's_mul_i32 s{S_T0}, s{S_WAVE}, 6144')
    k(f's_add_u32 s{S_T0}, s{S_T0}, {L_BT}')
    k(f'v_add_u32 v7, s{S_T0}, v1')
    k('v_add_u32 v8, 36864, v7')
    k(f'v_and_b32 v9, 15, v{VL}\nv_lshlrev_b32 v9, 2, v9')
    k(f'v_cmp_le_u32 vcc, 48, v{VL}')
    k(f's_mul_i32 s{S_T2}, s68, {16*2304}')
    k(f's_lshl_b32 s{S_T1}, s73, 6')
    k(f's_add_u32 s{S_T2}, s{S_T2}, s{S_T1}')
    k('s_mov_b32 s77, 0x3f803f80')
    k(f'v_mov_b32 v{VP+10}, 0\nv_mov_b32 v{VP+11}, 0\nv_mov_b32 v4, {f32(-3.0e38)}')
    k('s_waitcnt vmcnt(3) lgkmcnt(0)')
    k('s_barrier')
    stamp(k, 3)
    for w in range(4): k(f'ds_read2_b32 {vr(VO+2*w,2)}, v9 offset0:{w*32} offset1:{w*32+16}')
    for mb in range(5): k(f'ds_read_b128 {vr(VCS+4*mb,4)}, v1 offset:{L_CS2 + mb*1024}')
    st = [f'v_pk_add_f32 {vr(VO,2)}, {vr(VO,2)}, {vr(VO+2,2)}', f'v_pk_add_f32 {vr(VO+4,2)}, {vr(VO+4,2)}, {vr(VO+6,2)}',
          f'v_pk_add_f32 {vr(VO,2)}, {vr(VO,2)}, {vr(VO+4,2)}',
          f'v_mul_f32 v10, {f32(-1.0/D)}, v{VO}', f'v_mul_f32 v12, {f32(1.0/D)}, v{VO+1}', 'v_fma_f32 v12, -v10, v10, v12', 'v_max_f32 v12, 0, v12',
          f'v_add_f32 v12, {f32(1e-5)}, v12', 'v_rsq_f32 v12, v12', 'v_mov_b32 v11, v10', f'v_mul_f32 v12, {f32(CSC)}, v12']
    sum4(L_Z, pre=['s_waitcnt lgkmcnt(15)'] + st)
    for kb in range(3):
        for jb in range(6):
            k(f'ds_read_b128 {vr(VB+(kb*6+jb)*4,4)}, v{7 if kb == 0 else 8} offset:{(kb-1 if kb else 0)*36864 + jb*1024}')
    for i in range(0, 20, 2): k(f'v_pk_fma_f32 {vr(VZ2+i,2)}, {vr(VCS+i,2)}, v[10:11], {vr(VZ2+i,2)}')
    for r in (17, 18, 19): k(f'v_cndmask_b32 v{VZ2+r}, v{VZ2+r}, v4, vcc')
    k(f'v_max3_f32 v2, v{VZ2}, v{VZ2+1}, v{VZ2+2}')
    k(f'v_max3_f32 v3, v{VZ2+3}, v{VZ2+4}, v{VZ2+5}')
    for i in range(6, 20, 2): k(f'v_max3_f32 v{2 + (i//2)%2}, v{2 + (i//2)%2}, v{VZ2+i}, v{VZ2+i+1}')
    k('v_max_f32 v2, v2, v3')
    for sw in ('v_permlane32_swap_b32', 'v_permlane16_swap_b32'):
        k(f'v_mov_b32 v3, v2\ns_nop 1\n{sw} v2, v3\ns_nop 0\nv_max_f32 v2, v2, v3')
    k('v_sub_f32 v2, 0, v2\nv_mov_b32 v13, v12\nv_mov_b32 v3, v2')
    for i in range(0, 20, 2): k(f'v_pk_add_f32 {vr(VZ2+i,2)}, {vr(VZ2+i,2)}, v[2:3]')
    for i in range(0, 20, 2): k(f'v_pk_mul_f32 {vr(VZ2+i,2)}, {vr(VZ2+i,2)}, v[12:13]')
    for i in range(20): k(f'v_exp_f32 v{VZ2+i}, v{VZ2+i}')
    k('v_mov_b32 v2, 0')
    for i in range(10): k(f'v_cvt_pk_bf16_f32 v{VP+i}, v{VZ2+2*i}, v{VZ2+2*i+1}')
    k('s_waitcnt lgkmcnt(0)')
    k('s_nop 0')
    mmx = []
    for kb in range(3):
        for jb in range(6):
            c = '0' if kb == 0 else vr(VO+4*jb, 4)
            mmx.append(f'v_mfma_f32_16x16x32_bf16 {vr(VO+4*jb,4)}, {vr(VB+(kb*6+jb)*4,4)}, {vr(VP+4*kb,4)}, {c}')
    sm = [f'v_dot2_f32_bf16 v2, v{VP+i}, s77, v2' for i in range(10)] + ['s_nop 2']
    for sw in ('v_permlane32_swap_b32', 'v_permlane16_swap_b32'):
        sm += ['v_mov_b32 v3, v2', 's_nop 1', f'{sw} v2, v3', 's_nop 0', 'v_add_f32 v2, v2, v3']
    sm += ['v_rcp_f32 v2, v2', 's_waitcnt vmcnt(0)', 'v_mov_b32 v3, v2']
    for j in range(12):
        sm += [f'v_lshlrev_b32 v{VZ2+2*j}, 16, v{VRS+j}', f'v_and_b32 v{VZ2+2*j+1}, 0xffff0000, v{VRS+j}']
    interleave(k, mmx, sm, per=2)
    for i in range(3):
        for e in range(0, 8, 2):
            k(f'v_pk_fma_f32 {vr(VO+8*i+e,2)}, {vr(VO+8*i+e,2)}, v[2:3], {vr(VZ2+8*i+e,2)}')
        for j in range(4): k(f'v_cvt_pk_bf16_f32 v{VRS+4*i+j}, v{VO+8*i+2*j}, v{VO+8*i+2*j+1}')
        for j in range(4): k(f'ds_bpermute_b32 v{VQ+4*i+j}, v5, v{VRS+4*i+j}')
    for i in range(3):
        k(f's_waitcnt lgkmcnt({4*(2-i)})')
        k(f'buffer_store_dwordx4 {vr(VQ+4*i,4)}, v6, {sr(SRD_O,4)}, s{S_T2} offen offset:{64*i}')
    stamp(k, 4)
    phase_exit(k)
    VMAX[0] = 256; LMAX[0] = max(LMAX[0], L_BT + 108*1024)

def build(fn, persist, stampf):
    C.PERSIST, C.STAMP = persist, stampf
    k = K()
    k.L.append('.p2align 8'); k.label('code_start')
    info = []
    for i, f in enumerate((phase_A, phase_B, phase_C, phase_D, phase_E)):
        PH[0] = i
        if not persist: VMAX[0] = 0; LMAX[0] = 0
        f(k)
        if (not persist) or i == 0:
            k.label(f'quit{i}'); k('s_endpgm')
        info.append((NAMES[i], VMAX[0], LDS_MAX if i == 0 else LMAX[0]))
    k.label('code_end')
    k('s_endpgm')
    ref = open('standalone__pixart__diffusion.s.ref').read()
    hdr = ref.split('; Override launch geometry')[0]
    desc = '.section .rodata,"a"\n'
    if persist:
        n = 'standalone__pixart__diffusion_kernel'
        hdr += f'; @launch kernel={n} grid=(256,1,1) block=(512,1,1) lds={LDS_MAX}\n'
        desc += '.p2align 6\n' + kernel_desc(n, 256, 102)
    else:
        for (n, v, l) in info:
            assert v <= 256
            hdr += f'; @launch kernel={n} grid=(256,1,1) block=(512,1,1) lds={l}\n'
            desc += '.p2align 6\n' + kernel_desc(n, v, 102)
    hdr += '.amdgcn_target "amdgcn-amd-amdhsa--gfx950"\n.text\n'
    open(fn, 'w').write(hdr + k.text() + desc)

if __name__ == '__main__':
    C.ROT = set('wvo kvc at bt'.split()); C.APRE = True
    build('m3.s', False, False)
    build('m3_stamped.s', False, True)
    build('p3.s', True, False)
    build('p3_stamped.s', True, True)
    json.dump(WS, open('ws.json', 'w'))
```

```python
import sys, math, struct, json
from lib import *

D = 1152; NR = 2048
P_X, P_C, P_Y, P_WQKV, P_WO, P_WQC, P_WKVC, P_WOC, P_WMOD, P_OUT, P_DBG, P_WS = range(40, 64, 2)
def al(x): return (x + 4095) // 4096 * 4096
FL = {}
_f = 0
for nm, n in [('MOD', 72), ('GATE', 18), ('H', 64), ('WQK', 108), ('T', 144), ('WVO', 81), ('KVC', 24), ('P', 128), ('V', 128),
              ('X1', 192), ('AT', 18), ('BT', 18)]:
    FL[nm] = _f; _f += n
NFLAG = 1024
assert _f <= NFLAG
WS = {}
_o = 0
for nm, sz in [('FLAG', NFLAG*128), ('MODP', 2*2*2304*4), ('GATE', 2*1152*4), ('ST', 64*8*256), ('H', NR*D*2), ('WQK', D*D*2), ('WVO', D*D*2),
               ('T', NR*D*2), ('VT', NR*D*2), ('P', 2*1024*1024*2), ('KVC', 72*10*1024), ('AT', 36*10*1024), ('BT', 2*3*72*1024),
               ('X1', NR*D*2)]:
    WS[nm] = (_o, sz); _o = al(_o + sz)
ST = ' sc1'
CSC = (D ** -0.5) * math.log2(math.e)
def f32(x): return '0x%08x' % struct.unpack('<I', struct.pack('<f', x))[0]
LDS_MAX = 163840
L_CNT = LDS_MAX - 64

class Cfg:
    ROT = set('wqk tt wvo kvc ss vv pv at bt'.split())
    APRE = False
    SKIP = set()
    WQK_NS = 5
    WQK_NPRE = 3
    STAMP = False
    DBGT = False
    PERSIST = False
C = Cfg()
STAMP_OFF = 128 << 20
PH = [0]
NAMES = ['pa_kernel', 'pb_kernel', 'pc_kernel', 'pd_kernel', 'pe_kernel']
VL = 0; VT = 2; VA = 4; VACC = 16
S_ROT = 74
def R(name): return S_ROT if name in C.ROT else None
def mod_const(k, s, m, maxv):
    div_const(k, S_T0, s, m, maxv)
    k(f's_mul_i32 s{S_T0}, s{S_T0}, {m}')
    k(f's_sub_u32 s{s}, s{s}, s{S_T0}')
def LD(): return ' sc1' if C.PERSIST else ''

def stamp(k, i):
    if C.STAMP: k(f's_memrealtime s[{86+2*i}:{87+2*i}]')
def stamp_begin(k):
    if C.STAMP: k('s_memrealtime s[98:99]\n' + '\n'.join(f's_mov_b32 s{86+2*i}, 0' for i in range(6)))

def phase_exit(k, drain=True):
    p = PH[0]
    k('s_mov_b64 exec, -1')
    if C.STAMP:
        if drain: k('s_waitcnt vmcnt(0)')
        k('s_memrealtime s[100:101]')
        k(f's_lshl_b32 s{S_T0}, s2, 8')
        k(f's_lshl_b32 s{S_T1}, s{S_WAVE}, 5')
        k(f's_add_u32 s{S_T0}, s{S_T0}, s{S_T1}')
        k(f's_add_u32 s{S_T0}, s{S_T0}, {STAMP_OFF + p*65536}')
        k('s_waitcnt lgkmcnt(0)')
        k(f'v_mov_b32 v1, s{S_T0}\nv_mov_b32 v4, s98\nv_mov_b32 v5, s100')
        for i in range(6): k(f'v_mov_b32 v{6+i}, s{86+2*i}')
        k('s_mov_b64 exec, 1')
        k('global_store_dwordx4 v1, v[4:7], s[62:63]')
        k('global_store_dwordx4 v1, v[8:11], s[62:63] offset:16')
        k('s_mov_b64 exec, -1')
        k('s_nop 1')
    if C.DBGT and p in (0, 1, 2, 3, 4):
        lq = k.newlabel('dbgt')
        k(f's_cmp_lg_u32 s{S_WAVE}, 0')
        k(f's_cbranch_scc1 {lq}')
        k('s_and_b32 s97, s65, 7')
        k('s_cmp_lg_u32 s97, 0')
        k(f's_cbranch_scc1 {lq}')
        if p == 4: k('s_waitcnt vmcnt(0)')
        k('s_memrealtime s[100:101]')
        k('s_waitcnt lgkmcnt(0)')
        k(f'v_mov_b32 v1, 0\nv_mov_b32 v4, s100\ns_not_b32 s97, s98\nv_mov_b32 v5, s97')
        k('s_mov_b64 exec, 1')
        k(f'global_atomic_umax v1, v4, s[60:61] offset:{[4,12,20,28,52][p]}')
        if p == 4: k('global_atomic_umax v1, v5, s[60:61] offset:48')
        k('s_mov_b64 exec, -1')
        k.label(lq)
    if C.PERSIST and p < 4:
        k(f's_branch ph{p+1}')
    else:
        k('s_endpgm')

def ws_srd(k, srd, nm):
    make_srd(k, srd, P_WS, WS[nm][1], WS[nm][0])

def phase_entry(k):
    p = PH[0]
    if C.PERSIST and p > 0:
        k.label(f'ph{p}')
        stamp_begin(k)
        return
    name = NAMES[p] if not C.PERSIST else 'standalone__pixart__diffusion_kernel'
    kernel_header(k, name)
    if p == 0:
        k('s_getpc_b64 s[76:77]')
        k('s_load_dwordx16 s[40:55], s[0:1], 0')
        k('s_load_dwordx8 s[56:63], s[0:1], 64')
        k('s_lshr_b32 s65, s2, 3')
        k('s_lshl_b32 s78, s65, 11')
        k('v_lshrrev_b32 v1, 6, v0')
        k('v_and_b32 v2, 1, v0')
        k('v_lshl_add_u32 v2, v1, 1, v2')
        k('v_lshl_add_u32 v2, v2, 7, s78')
        k('v_min_u32 v2, code_end - code_start - 8, v2')
        k('s_mov_b64 exec, 3')
        k('global_load_dword v15, v2, s[76:77]')
        k('s_mov_b64 exec, -1')
        stamp_begin(k)
        if C.DBGT: k('s_memrealtime s[98:99]')
    else:
        stamp_begin(k)
        k('s_load_dwordx16 s[40:55], s[0:1], 0')
        k('s_load_dwordx8 s[56:63], s[0:1], 64')
    k('s_cmp_ge_u32 s2, 256')
    k(f's_cbranch_scc1 quit{p}')
    k('v_lshrrev_b32 v1, 6, v0')
    k('v_and_b32 v0, 63, v0')
    k(f'v_readfirstlane_b32 s{S_WAVE}, v1')
    k('s_and_b32 s64, s2, 7')
    k('s_lshr_b32 s65, s2, 3')
def args_ready(k):
    p = PH[0]
    if (not C.PERSIST) or p == 0:
        k('s_waitcnt lgkmcnt(0)')
        ws_srd(k, SRD_F, 'FLAG')

def div_const(k, dst, src, d, maxv):
    for sh in range(4, 20):
        m = -(-(1 << sh) // d)
        if all((v*m) >> sh == v // d for v in range(maxv+1)):
            k(f's_mul_i32 s{dst}, s{src}, {m}')
            k(f's_lshr_b32 s{dst}, s{dst}, {sh}')
            return
    raise Exception('no magic')

SPIN = 0x20000
def poll(k, s_line, n, vt=8, force=False):
    if not (C.PERSIST or force): return
    lp, done = k.newlabel('poll'), k.newlabel('polled')
    k(f'v_min_u32 v{vt}, {n-1}, v{VL}')
    k(f'v_lshlrev_b32 v{vt}, 7, v{vt}')
    k(f's_lshl_b32 s{S_T0}, s{s_line}, 7')
    k(f's_mov_b32 s{S_CNT}, {SPIN}')
    if n < 64: k(f's_mov_b64 exec, {hex((1 << n) - 1)}' if n <= 31 else f's_mov_b32 exec_hi, {hex((1 << (n-32)) - 1)}')
    k.label(lp)
    k(f'buffer_load_dword v{vt+1}, v{vt}, {sr(SRD_F,4)}, s{S_T0} offen sc1')
    k(f's_sub_u32 s{S_CNT}, s{S_CNT}, 1')
    k('s_waitcnt vmcnt(0)')
    k(f'v_cmp_ne_u32 vcc, 1, v{vt+1}')
    k(f's_cmp_eq_u32 s{S_CNT}, 0')
    k(f's_cbranch_scc1 {done}')
    k('s_cmp_eq_u64 vcc, 0')
    k(f's_cbranch_scc1 {done}')
    k('s_sleep 3')
    k(f's_branch {lp}')
    k.label(done)
    k('s_mov_b64 exec, -1')

def wait_init(k, vt=8):
    lp, done = k.newlabel('wi'), k.newlabel('wid')
    k(f'v_min_u32 v{vt}, 11, v{VL}')
    k(f'v_and_b32 v{vt+1}, 1, v{vt}')
    k(f'v_lshlrev_b32 v{vt+1}, 7, v{vt+1}')
    k(f'v_lshl_add_u32 v{vt}, v{vt}, 2, v{vt+1}')
    k(f's_mov_b32 s{S_CNT}, {SPIN}')
    k.label(lp)
    k(f'global_load_dword v{vt+1}, v{vt}, s[{P_DBG}:{P_DBG+1}] sc1')
    k(f's_sub_u32 s{S_CNT}, s{S_CNT}, 1')
    k('s_waitcnt vmcnt(0)')
    k(f'v_cmp_ne_u32 vcc, 1, v{vt+1}')
    k(f's_cmp_eq_u32 s{S_CNT}, 0')
    k(f's_cbranch_scc1 {done}')
    k('s_cmp_eq_u64 vcc, 0')
    k(f's_cbranch_scc1 {done}')
    k('s_sleep 3')
    k(f's_branch {lp}')
    k.label(done)

def set_flag(k, s_line, vt=8):
    k(f's_lshl_b32 s{S_T0}, s{s_line}, 7')
    k(f'v_mov_b32 v{vt}, 0\nv_mov_b32 v{vt+1}, 1')
    k('s_mov_b64 exec, 1')
    k(f'buffer_store_dword v{vt+1}, v{vt}, {sr(SRD_F,4)}, s{S_T0} offen sc1')
    k('s_mov_b64 exec, -1')

def signal(k, s_line, nwaves, vt=8):
    if not C.PERSIST: return
    skip = k.newlabel('sig')
    k('s_mov_b64 exec, -1')
    k(f's_lshl_b32 s{S_T0}, s{s_line}, 7')
    k(f'v_mov_b32 v{vt}, 0\nv_mov_b32 v{vt+1}, 1')
    k(f's_cmp_lg_u32 s{S_WAVE}, 0')
    k('s_waitcnt vmcnt(0)')
    k('s_barrier')
    k(f's_cbranch_scc1 {skip}')
    k('s_mov_b64 exec, 1')
    k(f'buffer_store_dword v{vt+1}, v{vt}, {sr(SRD_F,4)}, s{S_T0} offen sc1')
    k('s_mov_b64 exec, -1')
    k.label(skip)

def q2f_addr(k, v):
    k(f'v_and_b32 v{v}, 15, v{VL}\nv_lshlrev_b32 v{v}, 4, v{v}\nv_lshrrev_b32 v{VT}, 4, v{VL}\nv_lshl_add_u32 v{v}, v{VT}, 2, v{v}')
def f2q_addr(k, v):
    k(f'v_and_b32 v{v}, 3, v{VL}\nv_lshlrev_b32 v{v}, 6, v{v}\nv_and_b32 v{VT}, 0x3c, v{VL}\nv_add_u32 v{v}, v{v}, v{VT}')
def quad_voff(k, v, stride):
    k(f'v_lshrrev_b32 v{v}, 2, v{VL}\ns_mov_b32 s{S_T0}, {stride}\nv_mul_u32_u24 v{v}, s{S_T0}, v{v}\nv_and_b32 v{VT}, 3, v{VL}\nv_lshl_add_u32 v{v}, v{VT}, 4, v{v}')

def prefetch_flat(k, ptr, nbytes, s_worker, nworkers, vdst, maxper=99, srd=SRD_Y, vtmp=1):
    make_srd(k, srd, ptr, nbytes)
    k(f'v_lshlrev_b32 v{vtmp}, 7, v{VL}')
    per = min(maxper, -(-(-(-nbytes // 8192)) // nworkers))
    k(f's_lshl_b32 s{S_T0}, s{s_worker}, 13')
    for i in range(per):
        k(f'buffer_load_dword v{vdst}, v{vtmp}, {sr(srd,4)}, s{S_T0} offen')
        if i + 1 < per: k(f's_add_u32 s{S_T0}, s{S_T0}, {nworkers*8192}')
def prefetch_cols(k, srd, lines_per_row, colbyte, s_worker, nworkers, vdst, v0, v1, stride=6912):
    tot = 1152 * lines_per_row
    per = -(-(tot // 64) // nworkers)
    sh = {18: 20, 36: 21}[lines_per_row]
    assert all((n*58255) >> sh == n // lines_per_row for n in range(per*nworkers*64)) and per*nworkers*64*58255 < 2**32
    k(f's_lshl_b32 s{S_T1}, s{s_worker}, 6')
    for i in range(per):
        k(f'v_add_u32 v{v0}, s{S_T1}, v{VL}')
        k(f's_mov_b32 s{S_T0}, 58255')
        k(f'v_mul_lo_u32 v{v1}, v{v0}, s{S_T0}')
        k(f'v_lshrrev_b32 v{v1}, {sh}, v{v1}')
        k(f's_mov_b32 s{S_T0}, {stride - lines_per_row*128}')
        k(f'v_mul_u32_u24 v{v1}, s{S_T0}, v{v1}')
        k(f'v_lshl_add_u32 v{v0}, v{v0}, 7, v{v1}')
        k(f's_mov_b32 s{S_T0}, {colbyte}')
        k(f'buffer_load_dword v{vdst}, v{v0}, {sr(srd,4)}, s{S_T0} offen')
        if i + 1 < per: k(f's_add_u32 s{S_T1}, s{S_T1}, {nworkers*64}')

VMAX = [0]
LMAX = [0]
def gemm_role(k, g, epilogue, s_flag=None, npre=2, custom_consumer=None, cons_first=None, depA=None, depB=None, end_hookA=None, end_hookB=None, exit_hook=None):
    ll, lb = k.newlabel(g.name + '_loader'), k.newlabel(g.name + '_loaderB')
    k(f's_cmp_ge_u32 s{S_WAVE}, 4')
    k(f's_cbranch_scc1 {ll}')
    if cons_first: cons_first(k)
    k(f's_and_b32 s{S_WB}, s{S_WAVE}, {g.WB-1}')
    k(f's_lshr_b32 s{S_WA}, s{S_WAVE}, {g.WB.bit_length()-1}')
    VF = VACC + g.ma*g.nb*4
    g.VF = VF
    g.VX = VF + 2*(g.ma+g.nb)*4
    g.vmax = g.VX
    if custom_consumer: custom_consumer(k, g)
    else: consumer_body(k, g, VL, VACC, VF, VA, VT, post_bar0=lambda k: stamp(k, 0))
    stamp(k, 1)
    epilogue(k, g)
    stamp(k, 2)
    if s_flag is not None: signal(k, s_flag, 4)
    lx = k.newlabel(g.name + '_exit')
    k.label(lx)
    if exit_hook: exit_hook(k)
    phase_exit(k, drain=not C.PERSIST)
    k.label(ll)
    k(f's_and_b32 s{S_W2}, s{S_WAVE}, 1')
    k(f's_cmp_ge_u32 s{S_WAVE}, 6')
    k(f's_cbranch_scc1 {lb}')
    def wrap(dep):
        def f(k):
            if dep: dep(k)
            stamp(k, 0)
        return f
    loader_body(k, g, g.A, VL, 1, VT, npre=npre, pre_hook=wrap(depA), end_barrier=C.PERSIST, end_hook=end_hookA)
    k(f's_branch {lx}')
    k.label(lb)
    loader_body(k, g, g.B, VL, 1, VT, npre=npre, pre_hook=wrap(depB), end_barrier=C.PERSIST, end_hook=end_hookB)
    k(f's_branch {lx}')
    VMAX[0] = max(VMAX[0], g.vmax); LMAX[0] = max(LMAX[0], g.lds_bytes)
    assert g.lds_bytes <= L_CNT

def acc(g, a, b): return VACC + (a*g.nb + b)*4

def epi_frag16(rbtot, s_kb0, s_rb0, rowperm=False):
    def f(k, g):
        npair = (g.ma + 1) // 2
        k(f's_mul_i32 s{S_T0}, s{S_WA}, {g.ma//2}')
        k(f's_add_u32 s{S_T0}, s{S_T0}, s{s_kb0}')
        k(f's_mul_i32 s{S_T0}, s{S_T0}, {rbtot}')
        k(f's_mul_i32 s{S_T1}, s{S_WB}, {g.nbstep}')
        k(f's_add_u32 s{S_T0}, s{S_T0}, s{S_T1}')
        k(f's_add_u32 s{S_T0}, s{S_T0}, s{s_rb0}')
        k(f's_lshl_b32 s{S_OBASE}, s{S_T0}, 10')
        if rowperm:
            assert g.nb % 2 == 0
            k(f'v_bfe_u32 v{VT}, v{VL}, 2, 1\nv_lshlrev_b32 v1, 10, v{VT}\nv_bfe_u32 v{VT}, v{VL}, 3, 1\nv_lshl_add_u32 v1, v{VT}, 6, v1')
            k(f'v_and_b32 v{VT}, 0x33, v{VL}\nv_lshl_add_u32 v1, v{VT}, 4, v1')
        else:
            k(f'v_lshlrev_b32 v1, 4, v{VL}')
        k('s_nop 1')
        t = g.VF
        for ap in range(npair):
            for b in range(g.nb):
                c0 = acc(g, 2*ap, b)
                k(f'v_cvt_pk_bf16_f32 v{t}, v{c0}, v{c0+1}')
                k(f'v_cvt_pk_bf16_f32 v{t+1}, v{c0+2}, v{c0+3}')
                if 2*ap+1 < g.ma:
                    c1 = acc(g, 2*ap+1, b)
                    k(f'v_cvt_pk_bf16_f32 v{t+2}, v{c1}, v{c1+1}')
                    k(f'v_cvt_pk_bf16_f32 v{t+3}, v{c1+2}, v{c1+3}')
                else:
                    k(f'v_mov_b32 v{t+2}, 0\nv_mov_b32 v{t+3}, 0')
                off = (b & ~1)*1024 + (b & 1)*128 if rowperm else b*1024
                hi, lo = off // 4096 * 4096, off % 4096
                k(f's_add_u32 s{S_T0}, s{S_OBASE}, {ap*rbtot*1024 + hi}')
                k(f'buffer_store_dwordx4 {vr(t,4)}, v1, {sr(SRD_O,4)}, s{S_T0} offen offset:{lo}{ST}')
                t += 4
        g.vmax = max(g.vmax, t)
    return f

def dep(*items):
    def f(k):
        for (s, mul, const, n) in items:
            if not C.PERSIST: continue
            if s is None: k(f's_mov_b32 s85, {const}')
            else:
                k(f's_mul_i32 s85, s{s}, {mul}')
                k(f's_add_u32 s85, s85, {const}')
            poll(k, 85, n)
    return f

def gemv_job(k, n, tag, s_goff, s_ldsrow, finish):
    make_srd(k, SRD_A, P_WMOD, D*6*D*2)
    make_srd(k, SRD_B, P_C, 2*D*2)
    L_SILU, L_RED = 0, 9216
    VW, VS, VAC, VU, VC = 16, 88, 124, 140, 148
    k(f's_lshl_b32 s{S_T0}, s{S_WAVE}, 10')
    k(f'v_lshl_add_u32 v3, v{VL}, 4, s{S_T0}')
    k(f'buffer_load_dwordx4 {vr(VC,4)}, v3, {sr(SRD_B,4)}, 0 offen')
    k(f's_lshl_b32 s{S_T0}, s{S_WAVE}, 3')
    k(f'v_lshrrev_b32 v4, 3, v{VL}')
    k(f'v_add_u32 v4, s{S_T0}, v4')
    k(f'v_and_b32 v5, 7, v{VL}')
    k('v_lshlrev_b32 v5, 4, v5')
    k(f's_mov_b32 s{S_T0}, 13824')
    k(f'v_mad_u32_u24 v5, v4, s{S_T0}, v5')
    def issue_w(i0, i1):
        for i in range(i0, i1):
            if i: k(f's_add_u32 s{s_goff}, s{s_goff}, {64*13824}')
            k(f'buffer_load_dwordx4 {vr(VW+4*i,4)}, v5, {sr(SRD_A,4)}, s{s_goff} offen')
    issue_w(0, 6)
    k('v_lshlrev_b32 v4, 2, v4')
    if s_ldsrow is not None: k(f'v_add_u32 v4, s{s_ldsrow}, v4')
    k('s_waitcnt vmcnt(6)')
    for j in range(4):
        k(f'v_lshlrev_b32 v{VC+4+2*j}, 16, v{VC+j}')
        k(f'v_and_b32 v{VC+5+2*j}, 0xffff0000, v{VC+j}')
    for j in range(8): k(f'v_mul_f32 v{VU+j}, {f32(-math.log2(math.e))}, v{VC+4+j}')
    for j in range(8): k(f'v_exp_f32 v{VU+j}, v{VU+j}')
    for j in range(8): k(f'v_add_f32 v{VU+j}, 1.0, v{VU+j}')
    for j in range(8): k(f'v_rcp_f32 v{VU+j}, v{VU+j}')
    for j in range(8): k(f'v_mul_f32 v{VC+4+j}, v{VU+j}, v{VC+4+j}')
    k('v_lshlrev_b32 v8, 1, v3')
    k('v_cmp_gt_u32 vcc, 9216, v8')
    k('s_and_saveexec_b64 s[80:81], vcc')
    k(f'ds_write_b128 v8, {vr(VC+4,4)} offset:{L_SILU}')
    k(f'ds_write_b128 v8, {vr(VC+8,4)} offset:{L_SILU+16}')
    k('s_mov_b64 exec, s[80:81]')
    k('s_waitcnt lgkmcnt(0)')
    k('s_barrier')
    stamp(k, 0)
    for i in range(n):
        k(f'ds_read2st64_b32 {vr(VS+2*i,2)}, v4 offset0:{i} offset1:{i+18}')
    issue_w(6, n)
    k(f'v_bfe_u32 v6, v{VL}, 1, 2\nv_lshlrev_b32 v6, 7, v6\nv_lshrrev_b32 v7, 3, v{VL}\nv_lshl_add_u32 v6, v7, 4, v6\nv_and_b32 v7, 1, v{VL}\nv_lshl_add_u32 v6, v7, 3, v6')
    k(f'v_lshrrev_b32 v7, 4, v{VL}\nv_lshlrev_b32 v7, 7, v7\nv_and_b32 v9, 7, v{VL}\nv_lshl_add_u32 v7, v9, 4, v7')
    k(f's_lshl_b32 s{S_T0}, s{S_WAVE}, 9')
    k(f'v_add_u32 v7, s{S_T0}, v7')
    k(f'v_lshlrev_b32 v9, 2, v{VL}')
    for j in range(16): k(f'v_mov_b32 v{VAC+j}, 0')
    k('s_waitcnt lgkmcnt(0)')
    for i in range(n):
        k(f's_waitcnt vmcnt({n - 1 - i})')
        for j in range(4):
            k(f'v_lshlrev_b32 v{VU+2*j}, 16, v{VW+4*i+j}')
            k(f'v_and_b32 v{VU+2*j+1}, 0xffff0000, v{VW+4*i+j}')
        for j in range(4):
            k(f'v_pk_fma_f32 {vr(VAC+4*j,2)}, {vr(VS+2*i,2)}, {vr(VU+2*j,2)}, {vr(VAC+4*j,2)} op_sel:[0,0,0] op_sel_hi:[1,0,1]')
            k(f'v_pk_fma_f32 {vr(VAC+4*j+2,2)}, {vr(VS+2*i,2)}, {vr(VU+2*j,2)}, {vr(VAC+4*j+2,2)} op_sel:[0,1,0] op_sel_hi:[1,1,1]')
    stamp(k, 1)
    k('s_nop 1')
    for j in range(8): k(f'v_permlane32_swap_b32 v{VAC+j}, v{VAC+8+j}')
    for j in range(8): k(f'v_add_f32 v{VAC+j}, v{VAC+j}, v{VAC+8+j}')
    k('s_nop 1')
    for j in range(4): k(f'v_permlane16_swap_b32 v{VAC+j}, v{VAC+4+j}')
    for j in range(4): k(f'v_add_f32 v{VAC+4+j}, v{VAC+j}, v{VAC+4+j}')
    k('s_nop 1')
    for j in range(4): k(f'v_add_f32_dpp v{VAC+j}, v{VAC+4+j}, v{VAC+4+j} row_ror:8 row_mask:0xf bank_mask:0xf')
    k(f'ds_write_b128 v7, {vr(VAC,4)} offset:{L_RED}')
    k('s_waitcnt lgkmcnt(0)')
    k('s_barrier')
    k(f's_cmp_lg_u32 s{S_WAVE}, 0')
    k(f's_cbranch_scc1 gv_nored{tag}')
    for w in range(8): k(f'ds_read_b64 {vr(VAC+2*w,2)}, v6 offset:{L_RED + 512*w}')
    k('s_waitcnt lgkmcnt(0)')
    for st in (8, 4, 2):
        for j in range(0, st, 2):
            k(f'v_pk_add_f32 {vr(VAC+j,2)}, {vr(VAC+j,2)}, {vr(VAC+st+j,2)}')
    stamp(k, 2)
    finish(k, VAC)
    stamp(k, 3)
    k.label(f'gv_nored{tag}')
    k('s_barrier')
    VMAX[0] = max(VMAX[0], 160); LMAX[0] = max(LMAX[0], 16384)

def gate_job(k, s_idx):
    k(f's_lshl_b32 s{S_G}, s{s_idx}, 7')
    k(f's_add_u32 s{S_G}, s{S_G}, 4608')
    def fin(k, VAC):
        ws_srd(k, SRD_O, 'GATE')
        k(f's_lshl_b32 s{S_T1}, s{s_idx}, 8')
        k(f's_add_u32 s{S_T2}, s{S_T1}, 4608')
        k(f'buffer_store_dword v{VAC}, v9, {sr(SRD_O,4)}, s{S_T1} offen sc1')
        k(f'buffer_store_dword v{VAC+1}, v9, {sr(SRD_O,4)}, s{S_T2} offen sc1')
        if C.PERSIST:
            k('s_waitcnt vmcnt(0)')
            k(f's_add_u32 s85, s{s_idx}, {FL["GATE"]}')
            set_flag(k, 85, 12)
    gemv_job(k, 18, 'g', S_G, None, fin)

def phase_A(k):
    phase_entry(k)
    k('s_cmp_ge_u32 s65, 23')
    k('s_cbranch_scc1 pa_mod')
    k('s_cmp_lt_u32 s65, 8')
    k('s_cbranch_scc1 pa_h')
    k('s_and_b32 s66, s64, 1')
    k('s_lshr_b32 s67, s64, 1')
    k('s_sub_u32 s68, 5, s66')
    k('s_mul_i32 s70, s68, 3')
    k('s_sub_u32 s69, s65, 8')
    k('s_cmp_ge_u32 s69, s70')
    k('s_cbranch_scc1 pa_spare')
    div_const(k, 71, 69, 5, 31)
    k('s_lshr_b32 s72, s69, 2')
    k('s_cmp_eq_u32 s66, 0')
    k('s_cselect_b32 s71, s71, s72')
    k('s_mul_i32 s72, s71, s68')
    k('s_sub_u32 s72, s69, s72')
    k('s_lshl_b32 s74, s71, 1')
    k('s_add_u32 s74, s74, s72')
    mod_const(k, 74, 6, 16)
    k('s_mul_i32 s74, s74, 3')
    k('s_mul_i32 s73, s66, 5')
    k('s_add_u32 s72, s72, s73')
    k('s_mul_i32 s73, s67, 3')
    k('s_add_u32 s71, s71, s73')
    k(f's_mul_i32 s{S_ABASE}, s72, {128*6912}')
    k(f's_mul_i32 s{S_BBASE}, s71, {96*6912}')
    k(f's_add_u32 s{S_BBASE}, s{S_BBASE}, {D*2}')
    k('s_lshl_b32 s75, s72, 2')
    k('s_mul_i32 s76, s71, 6')
    k('s_mul_i32 s77, s71, 9')
    k('s_add_u32 s77, s77, s72')
    k(f's_add_u32 s78, s77, {FL["WQK"]}')
    args_ready(k)
    make_srd(k, SRD_A, P_WQKV, D*3*D*2)
    ws_srd(k, SRD_O, 'WQK')
    g = Gemm('wqk', Opnd('row', 8, SRD_A, S_ABASE, stride=6912, perm=True), Opnd('row', 6, SRD_A, S_BBASE, stride=6912, perm=True), 2, 2, 18, C.WQK_NS, rot=R('wqk'))
    def a_pre(k):
        k('s_lshl_b32 s79, s77, 2')
        k(f's_add_u32 s79, s79, s{S_WAVE}')
        prefetch_cols(k, SRD_A, 36, 0, 79, 432, 12, 1, 2)
    def a_end(k):
        if C.PERSIST: wait_init(k)
    gemm_role(k, g, epi_frag16(72, 75, 76), s_flag=78, npre=C.WQK_NPRE, cons_first=(a_pre if C.APRE else None), end_hookA=a_end)
    k.label('pa_mod')
    if 'mod' in C.SKIP: k('s_endpgm')
    k('s_mul_i32 s73, s64, 9')
    k('s_add_u32 s73, s73, s65')
    k('s_sub_u32 s73, s73, 23')
    k('s_cmp_ge_u32 s73, 36')
    k('s_cselect_b32 s74, 1, 0')
    k('s_mul_i32 s75, s74, 36')
    k('s_sub_u32 s75, s73, s75')
    k(f's_mul_i32 s{S_G}, s74, {576*13824}')
    k(f's_lshl_b32 s{S_T0}, s75, 7')
    k(f's_add_u32 s{S_G}, s{S_G}, s{S_T0}')
    k('s_mul_i32 s76, s74, 2304')
    args_ready(k)
    def fin(k, VAC):
        ws_srd(k, SRD_O, 'MODP')
        k('s_cmp_ge_u32 s75, 18')
        k(f's_cselect_b32 s{S_T2}, 1.0, 0')
        k('s_cmp_eq_u32 s74, 0')
        k(f's_cselect_b32 s{S_T2}, s{S_T2}, 0')
        k(f'v_add_f32 v{VAC}, s{S_T2}, v{VAC}\nv_add_f32 v{VAC+1}, s{S_T2}, v{VAC+1}')
        k(f's_mul_i32 s{S_T1}, s74, 18432')
        k(f's_lshl_b32 s{S_T0}, s75, 8')
        k(f's_add_u32 s{S_T1}, s{S_T1}, s{S_T0}')
        k(f's_add_u32 s{S_T2}, s{S_T1}, 9216')
        k(f'buffer_store_dword v{VAC}, v9, {sr(SRD_O,4)}, s{S_T1} offen sc1')
        k(f'buffer_store_dword v{VAC+1}, v9, {sr(SRD_O,4)}, s{S_T2} offen sc1')
        wait_init(k, 12)
        k(f's_add_u32 s85, s73, {FL["MOD"]}')
        set_flag(k, 85, 12)
    gemv_job(k, 9, 'm', S_G, 76, fin)
    if not C.PERSIST:
        k('s_sub_u32 s73, s2, 184')
        k('s_cmp_ge_u32 s73, 18')
        k('s_cbranch_scc1 pa_modpf')
        gate_job(k, 73)
        phase_exit(k)
        k.label('pa_modpf')
        k('s_sub_u32 s79, s73, 18')
        k('s_lshl_b32 s79, s79, 3')
        k(f's_add_u32 s79, s79, s{S_WAVE}')
        make_srd(k, SRD_A, P_WQKV, D*3*D*2)
        prefetch_cols(k, SRD_A, 18, 4608, 79, 432, 14, 8, 9)
        prefetch_flat(k, P_WKVC, D*2*D*2, 79, 432, 14, vtmp=8)
    phase_exit(k, drain=False)
    k.label('pa_spare')
    k('s_mul_i32 s73, s67, 3')
    k('s_add_u32 s73, s73, s65')
    k('s_sub_u32 s73, s73, 20')
    args_ready(k)
    k(f'v_lshlrev_b32 v8, 4, v{VL}')
    k('v_mov_b32 v4, 0\nv_mov_b32 v5, 0\nv_mov_b32 v6, 0\nv_mov_b32 v7, 0')
    k('s_lshl_b32 s79, s73, 3')
    k(f's_add_u32 s79, s79, s{S_WAVE}')
    k(f's_lshl_b32 s{S_T0}, s79, 10')
    k(f'buffer_store_dwordx4 v[4:7], v8, {sr(SRD_F,4)}, s{S_T0} offen sc1')
    k(f's_add_u32 s{S_T0}, s{S_T0}, {96*1024}')
    k(f'buffer_store_dwordx4 v[4:7], v8, {sr(SRD_F,4)}, s{S_T0} offen sc1')
    k('s_waitcnt vmcnt(0)')
    k('s_barrier')
    k(f's_cmp_lg_u32 s{S_WAVE}, 0')
    k('s_cbranch_scc1 pa_noinit')
    k(f's_and_b32 s{S_T0}, s73, 1')
    k(f's_lshl_b32 s{S_T0}, s{S_T0}, 7')
    k(f's_lshl_b32 s{S_T1}, s73, 2')
    k(f's_add_u32 s{S_T0}, s{S_T0}, s{S_T1}')
    k(f'v_mov_b32 v8, 1\nv_mov_b32 v9, s{S_T0}')
    k('s_mov_b64 exec, 1')
    k(f'global_store_dword v9, v8, s[{P_DBG}:{P_DBG+1}] sc1')
    k('s_mov_b64 exec, -1')
    k.label('pa_noinit')
    k('s_lshl_b32 s79, s73, 3')
    k(f's_add_u32 s79, s79, s{S_WAVE}')
    if not C.PERSIST and 'pf' not in C.SKIP:
        prefetch_flat(k, P_WO, D*D*2, 79, 96, 14, vtmp=8)
        prefetch_flat(k, P_Y, 2*77*D*2, 79, 96, 14, vtmp=8)
    phase_exit(k, drain=False)
    k.label('pa_h')
    if 'h' in C.SKIP: k('s_endpgm')
    k('s_lshl_b32 s73, s64, 3')
    k('s_add_u32 s73, s73, s65')
    args_ready(k)
    def h_pf(k):
        if not C.PERSIST: return
        k('s_lshl_b32 s79, s73, 3')
        k(f's_add_u32 s79, s79, s{S_WAVE}')
        prefetch_flat(k, P_WKVC, D*2*D*2, 79, 512, 14, maxper=1, vtmp=8)
        l1 = k.newlabel('hpf')
        k('s_cmp_ge_u32 s79, 180')
        k(f's_cbranch_scc1 {l1}')
        k('s_cmp_ge_u32 s79, 136')
        k(f's_cselect_b32 s{SRD_Y}, s{P_Y}, s{P_WKVC}')
        k(f's_cselect_b32 s{SRD_Y+1}, s{P_Y+1}, s{P_WKVC+1}')
        k(f's_mov_b32 s{S_T1}, {D*2*D*2}')
        k(f's_cselect_b32 s{SRD_Y+2}, {2*77*D*2}, s{S_T1}')
        k(f's_mov_b32 s{S_T1}, {512*8192}')
        k(f's_cselect_b32 s{S_T1}, {(-136*8192) & 0xffffffff}, s{S_T1}')
        k(f's_add_u32 s{S_T0}, s{S_T0}, s{S_T1}')
        k(f'buffer_load_dword v14, v8, {sr(SRD_Y,4)}, s{S_T0} offen')
        k.label(l1)
    L_STAT, L_MOD = 0, 2048
    VN, VM, VXD = 16, 112, 208
    k(f's_cmp_ge_u32 s{S_WAVE}, 6')
    k('s_cbranch_scc1 pa_hhelp')
    make_srd(k, SRD_X, P_X, NR*D*2)
    k(f'v_lshrrev_b32 v6, 3, v{VL}\ns_mov_b32 s{S_T0}, 2304\nv_mul_u32_u24 v6, s{S_T0}, v6\nv_and_b32 v7, 7, v{VL}\nv_lshl_add_u32 v6, v7, 4, v6')
    k(f's_mul_i32 s75, s73, {32*2304}')
    k(f's_mul_i32 s76, s{S_WAVE}, 384')
    k('s_add_u32 s75, s75, s76')
    for rg in range(4):
        for sg in range(3):
            k(f'buffer_load_dwordx4 {vr(VM+(rg*3+sg)*4,4)}, v6, {sr(SRD_X,4)}, s75 offen offset:{128*sg}')
        if rg < 3: k(f's_add_u32 s75, s75, {8*2304}')
    k(f'v_lshlrev_b32 v7, 5, v7\nv_lshrrev_b32 v8, 3, v{VL}\nv_lshl_add_u32 v7, v8, 2, v7')
    k(f's_mov_b32 s77, 0x3f803f80')
    for rg in range(4):
        k(f's_waitcnt vmcnt({9 - 3*rg})')
        for j in range(12): k(f'ds_bpermute_b32 v{VXD+12*rg+j}, v7, v{VM+12*rg+j}')
    stamp(k, 0)
    for rg in range(4):
        k(f'v_mov_b32 v{VN+2*rg}, 0\nv_mov_b32 v{VN+2*rg+1}, 0')
    k('s_waitcnt lgkmcnt(0)')
    for j in range(12):
        for rg in range(4):
            k(f'v_dot2_f32_bf16 v{VN+rg}, v{VXD+12*rg+j}, s77, v{VN+rg}')
            k(f'v_dot2_f32_bf16 v{VN+4+rg}, v{VXD+12*rg+j}, v{VXD+12*rg+j}, v{VN+4+rg}')
    k('s_nop 3')
    for j in range(4): k(f'v_permlane32_swap_b32 v{VN+j}, v{VN+4+j}')
    for j in range(4): k(f'v_add_f32 v{VN+j}, v{VN+j}, v{VN+4+j}')
    k('s_nop 1')
    for j in range(2): k(f'v_permlane16_swap_b32 v{VN+j}, v{VN+2+j}')
    for j in range(2): k(f'v_add_f32 v{VN+2+j}, v{VN+j}, v{VN+2+j}')
    k('s_nop 1')
    for j in range(2): k(f'v_add_f32_dpp v{VN+j}, v{VN+2+j}, v{VN+2+j} row_ror:8 row_mask:0xf bank_mask:0xf')
    k(f'v_and_b32 v9, 7, v{VL}\nv_mul_u32_u24 v9, 192, v9\nv_lshrrev_b32 v10, 4, v{VL}\nv_lshl_add_u32 v10, v10, 3, v9')
    k(f's_lshl_b32 s{S_T0}, s{S_WAVE}, 5')
    k(f'v_add_u32 v10, s{S_T0}, v10')
    k(f'ds_write_b64 v10, {vr(VN,2)} offset:{L_STAT}')
    k('s_waitcnt lgkmcnt(0)')
    k('s_barrier')
    for w in range(6):
        k(f'ds_read_b128 {vr(VM+8*w,4)}, v9 offset:{L_STAT + 32*w}')
        k(f'ds_read_b128 {vr(VM+8*w+4,4)}, v9 offset:{L_STAT + 32*w + 16}')
    k('s_waitcnt lgkmcnt(0)')
    for w in range(1, 6):
        for j in range(0, 8, 2): k(f'v_pk_add_f32 {vr(VM+j,2)}, {vr(VM+j,2)}, {vr(VM+8*w+j,2)}')
    for rg in range(4):
        k(f'v_mul_f32 v{VM+rg}, {f32(1.0/D)}, v{VM+rg}')
        k(f'v_mul_f32 v{VM+4+rg}, {f32(1.0/D)}, v{VM+4+rg}')
        k(f'v_fma_f32 v{VM+4+rg}, -v{VM+rg}, v{VM+rg}, v{VM+4+rg}')
        k(f'v_max_f32 v{VM+4+rg}, 0, v{VM+4+rg}')
        k(f'v_add_f32 v{VM+4+rg}, {f32(1e-5)}, v{VM+4+rg}')
        k(f'v_rsq_f32 v{VM+4+rg}, v{VM+4+rg}')
        k('s_nop 0')
        k(f'v_mul_f32 v{VM+rg}, v{VM+rg}, v{VM+4+rg}')
    for rg in range(4):
        for j in range(12):
            n = VN + 24*rg + 2*j
            k(f'v_lshlrev_b32 v{n}, 16, v{VXD+12*rg+j}')
            k(f'v_and_b32 v{n+1}, 0xffff0000, v{VXD+12*rg+j}')
            k(f'v_fma_f32 v{n}, v{n}, v{VM+4+rg}, -v{VM+rg}')
            k(f'v_fma_f32 v{n+1}, v{n+1}, v{VM+4+rg}, -v{VM+rg}')
    ws_srd(k, SRD_A, 'H')
    k(f'v_lshrrev_b32 v8, 3, v{VL}\nv_lshlrev_b32 v8, 5, v8')
    k(f's_mul_i32 s{S_T0}, s{S_WAVE}, 768')
    k(f'v_add_u32 v8, s{S_T0}, v8')
    k(f'v_lshrrev_b32 v9, 5, v{VL}\nv_lshlrev_b32 v9, 17, v9\nv_bfe_u32 v10, v{VL}, 3, 2\nv_lshl_add_u32 v9, v10, 8, v9\nv_and_b32 v10, 7, v{VL}\nv_lshl_add_u32 v9, v10, 4, v9')
    k(f's_mul_i32 s{S_G}, s{S_WAVE}, {6*128}')
    k('s_lshl_b32 s76, s73, 1')
    k(f's_add_u32 s{S_G}, s{S_G}, s76')
    k(f's_lshl_b32 s{S_G}, s{S_G}, 10')
    stamp(k, 1)
    k('s_barrier')
    stamp(k, 2)
    for sg in range(3):
        m = VM + 32*sg
        for ks in range(2):
            for kind in range(2):
                for h in range(2):
                    k(f'ds_read_b128 {vr(m+16*ks+8*kind+4*h,4)}, v8 offset:{L_MOD + ks*9216 + kind*4608 + sg*256 + 16*h}')
    for sg in range(3):
        m = VM + 32*sg
        k(f's_waitcnt lgkmcnt({min(15, 8*(2-sg))})')
        for j in range(0, 16, 2): k(f'v_pk_add_f32 {vr(m+j,2)}, {vr(m+j,2)}, {vr(m+16+j,2)}')
        k(f's_add_u32 s{S_T0}, s{S_G}, {sg*2*128*1024}')
        for rg in range(4):
            n = VN + 24*rg + 8*sg
            o = VXD + 12*rg + 4*sg
            for j in range(0, 8, 2): k(f'v_pk_fma_f32 {vr(n+j,2)}, {vr(n+j,2)}, {vr(m+8+j,2)}, {vr(m+j,2)}')
            for j in range(4): k(f'v_cvt_pk_bf16_f32 v{o+j}, v{n+2*j}, v{n+2*j+1}')
            k(f'buffer_store_dwordx4 {vr(o,4)}, v9, {sr(SRD_A,4)}, s{S_T0} offen offset:{(rg>>1)*1024 + (rg&1)*128}{ST}')
    stamp(k, 3)
    k(f's_add_u32 s85, s73, {FL["H"]}')
    signal(k, 85, 6, 12)
    k.label('pa_hout')
    h_pf(k)
    phase_exit(k, drain=not C.PERSIST)
    k.label('pa_hhelp')
    k(f's_cmp_eq_u32 s{S_WAVE}, 7')
    k('s_cbranch_scc1 pa_hpoll')
    k.label('pa_hidle')
    k('s_waitcnt lgkmcnt(0)')
    k('s_barrier')
    k('s_barrier')
    if C.PERSIST: k('s_barrier')
    k('s_branch pa_hout')
    k.label('pa_hpoll')
    wait_init(k)
    k('s_barrier')
    k(f'v_min_u32 v8, 35, v{VL}')
    k('v_lshlrev_b32 v8, 7, v8')
    k(f's_mov_b32 s{S_T0}, {FL["MOD"]*128}')
    k(f's_mov_b32 s{S_T1}, {(FL["MOD"]+36)*128}')
    k(f's_mov_b32 s{S_CNT}, {SPIN}')
    k('s_mov_b32 exec_hi, 15')
    k.label('pa_mp')
    k(f'buffer_load_dword v9, v8, {sr(SRD_F,4)}, s{S_T0} offen sc1')
    k(f'buffer_load_dword v10, v8, {sr(SRD_F,4)}, s{S_T1} offen sc1')
    k(f's_sub_u32 s{S_CNT}, s{S_CNT}, 1')
    k('s_waitcnt vmcnt(0)')
    k('v_add_u32 v9, v9, v10')
    k('v_cmp_ne_u32 vcc, 2, v9')
    k(f's_cmp_eq_u32 s{S_CNT}, 0')
    k('s_cbranch_scc1 pa_mpd')
    k('s_cmp_eq_u64 vcc, 0')
    k('s_cbranch_scc1 pa_mpd')
    k('s_sleep 2')
    k('s_branch pa_mp')
    k.label('pa_mpd')
    k('s_mov_b64 exec, -1')
    stamp(k, 0)
    ws_srd(k, SRD_O, 'MODP')
    k(f'v_lshlrev_b32 v8, 4, v{VL}')
    k('s_lshr_b32 s79, s73, 5')
    k('s_mul_i32 s79, s79, 9216')
    for ks in range(2):
        for c in range(9):
            if c % 4 == 0:
                k(f's_mov_b32 m0, {L_MOD + ks*9216 + c*1024}')
                k(f's_add_u32 s{S_T0}, s79, {ks*18432 + c*1024}')
            k(f'buffer_load_dwordx4 v8, {sr(SRD_O,4)}, s{S_T0} offen offset:{(c%4)*1024} sc1 lds')
    k('s_waitcnt vmcnt(0)')
    k('s_barrier')
    if C.PERSIST: k('s_barrier')
    k('s_branch pa_hout')
    VMAX[0] = 256

def phase_B(k):
    phase_entry(k)
    k('s_cmp_ge_u32 s65, 18')
    k('s_cbranch_scc1 pb_wvo')
    k('s_mul_i32 s66, s64, 18')
    k('s_add_u32 s66, s66, s65')
    div_const(k, 69, 66, 48, 255)
    k('s_mul_i32 s70, s69, 48')
    k('s_sub_u32 s70, s66, s70')
    div_const(k, 67, 70, 3, 63)
    k('s_mul_i32 s71, s67, 3')
    k('s_sub_u32 s71, s70, s71')
    k('s_mul_i32 s68, s69, 3')
    k('s_add_u32 s68, s68, s71')
    k('s_lshl_b32 s74, s71, 1')
    k('s_add_u32 s74, s74, s67')
    mod_const(k, 74, 6, 31)
    k('s_mul_i32 s74, s74, 3')
    k('s_mul_i32 s66, s67, 9')
    k('s_add_u32 s66, s66, s68')
    k(f's_lshl_b32 s{S_ABASE}, s68, 13')
    k(f's_lshl_b32 s{S_BBASE}, s67, 13')
    k('s_lshl_b32 s75, s68, 2')
    k('s_lshl_b32 s76, s67, 3')
    k(f's_add_u32 s78, s66, {FL["T"]}')
    k('s_lshl_b32 s69, s68, 2')
    div_const(k, 69, 69, 3, 40)
    args_ready(k)
    ws_srd(k, SRD_A, 'WQK'); ws_srd(k, SRD_B, 'H'); ws_srd(k, SRD_O, 'T')
    g1 = Gemm('tt', Opnd('frag', 8, SRD_A, S_ABASE, rbtot=72, aux=LD()), Opnd('frag', 8, SRD_B, S_BBASE, rbtot=128, aux=LD()), 2, 2, 18, 4, rot=R('tt'))
    gemm_role(k, g1, epi_frag16(128, 75, 76), s_flag=78, depA=dep((69, 9, FL['WQK'], 18)), depB=dep((67, 4, FL['H'], 4)))
    k.label('pb_wvo')
    k('s_mul_i32 s66, s64, 9')
    k('s_add_u32 s66, s66, s65')
    k('s_sub_u32 s66, s66, 23')
    k('s_cmp_ge_u32 s65, 23')
    k('s_cbranch_scc1 pb_wvo2')
    k('s_bitcmp1_b32 s64, 0')
    k('s_cbranch_scc0 pb_kvc_e')
    k('s_cmp_lt_u32 s65, 20')
    k('s_cbranch_scc1 pb_kvc_o')
    k('s_cmp_eq_u32 s64, 7')
    k('s_cbranch_scc1 pb_idle')
    k('s_lshr_b32 s66, s64, 1')
    k('s_mul_i32 s66, s66, 3')
    k('s_add_u32 s66, s66, s65')
    k('s_add_u32 s66, s66, 52')
    k.label('pb_wvo2')
    div_const(k, 69, 66, 9, 255)
    k('s_mul_i32 s70, s69, 9')
    k('s_sub_u32 s70, s66, s70')
    div_const(k, 67, 69, 3, 15)
    k('s_mul_i32 s68, s67, 3')
    k('s_sub_u32 s68, s69, s68')
    div_const(k, 71, 70, 3, 15)
    k('s_mul_i32 s67, s67, 3')
    k('s_add_u32 s67, s67, s71')
    k('s_mul_i32 s71, s71, 3')
    k('s_sub_u32 s71, s70, s71')
    k('s_mul_i32 s68, s68, 3')
    k('s_add_u32 s68, s68, s71')
    k('s_mul_i32 s66, s67, 9')
    k('s_add_u32 s66, s66, s68')
    k('s_add_u32 s74, s67, s68')
    mod_const(k, 74, 3, 31)
    k('s_mul_i32 s74, s74, 6')
    k(f's_mul_i32 s{S_ABASE}, s68, {128*6912}')
    k(f's_add_u32 s{S_ABASE}, s{S_ABASE}, {2*D*2}')
    k(f's_lshl_b32 s{S_BBASE}, s67, 8')
    k('s_lshl_b32 s75, s68, 2')
    k('s_lshl_b32 s76, s67, 3')
    k(f's_add_u32 s78, s66, {FL["WVO"]}')
    args_ready(k)
    make_srd(k, SRD_A, P_WQKV, D*3*D*2); make_srd(k, SRD_B, P_WO, D*D*2); ws_srd(k, SRD_O, 'WVO')
    g2 = Gemm('wvo', Opnd('row', 8, SRD_A, S_ABASE, stride=6912, perm=True), Opnd('col', 8, SRD_B, S_BBASE, stride=2304), 2, 2, 18, 4, rot=R('wvo'))
    def wvo_exit(k):
        if not C.PERSIST: return
        k('s_lshl_b32 s79, s66, 2')
        k(f's_and_b32 s{S_T1}, s{S_WAVE}, 3')
        k(f's_add_u32 s79, s79, s{S_T1}')
        k(f's_cmp_ge_u32 s{S_WAVE}, 4')
        k(f's_cselect_b32 s{SRD_Y}, s{P_WQC}, s{P_WOC}')
        k(f's_cselect_b32 s{SRD_Y+1}, s{P_WQC+1}, s{P_WOC+1}')
        k(f's_mov_b32 s{SRD_Y+2}, {D*D*2}')
        k(f's_mov_b32 s{SRD_Y+3}, 0x00020000')
        k(f'v_lshlrev_b32 v8, 7, v{VL}')
        k(f's_lshl_b32 s{S_T0}, s79, 13')
        k(f'buffer_load_dword v14, v8, {sr(SRD_Y,4)}, s{S_T0} offen')
    gemm_role(k, g2, epi_frag16(72, 75, 76, rowperm=True), s_flag=78, end_hookA=(wait_init if C.PERSIST else None), exit_hook=wvo_exit)
    k.label('pb_kvc_o')
    k('s_add_u32 s66, s64, s65')
    k('s_sub_u32 s66, s66, 3')
    k('s_branch pb_kvc')
    k.label('pb_kvc_e')
    k('s_cmp_eq_u32 s65, 22')
    k('s_cbranch_scc1 pb_idle')
    k('s_lshl_b32 s66, s64, 1')
    k('s_add_u32 s66, s66, s65')
    k('s_sub_u32 s66, s66, 18')
    k.label('pb_kvc')
    k('s_and_b32 s74, s66, 1')
    k('s_mul_i32 s74, s74, 9')
    k('s_and_b32 s67, s66, 1')
    k('s_lshr_b32 s68, s66, 1')
    k(f's_mul_i32 s{S_ABASE}, s68, 384')
    k(f's_mul_i32 s{S_BBASE}, s67, {77*2304}')
    k(f's_add_u32 s69, s{S_BBASE}, {77*2304}')
    k('s_mul_i32 s78, s67, 12')
    k('s_add_u32 s78, s78, s68')
    k(f's_add_u32 s78, s78, {FL["KVC"]}')
    args_ready(k)
    make_srd(k, SRD_A, P_WKVC, D*2*D*2); make_srd(k, SRD_B, P_Y, 's69'); ws_srd(k, SRD_O, 'KVC')
    g3 = Gemm('kvc', Opnd('col', 12, SRD_A, S_ABASE, stride=4608), Opnd('row', 5, SRD_B, S_BBASE, stride=2304), 4, 1, 18, 4, rot=R('kvc'))
    def epi_kvc(k, g):
        k(f'v_and_b32 v1, 15, v{VL}\nv_lshlrev_b32 v1, 4, v1\nv_lshrrev_b32 v{VT}, 5, v{VL}\nv_lshl_add_u32 v1, v{VT}, 8, v1')
        k(f'v_bfe_u32 v{VT}, v{VL}, 4, 1\nv_lshl_add_u32 v1, v{VT}, 3, v1')
        k('s_mul_i32 s70, s68, 12')
        k(f's_mul_i32 s71, s{S_WA}, 3')
        k('s_add_u32 s70, s70, s71')
        k('s_mul_i32 s72, s67, 5120')
        t = g.VF
        for i in range(3):
            k(f's_add_u32 s71, s70, {i}')
            k(f's_lshr_b32 s{S_T0}, s71, 1')
            k(f's_mul_i32 s{S_T0}, s{S_T0}, 10240')
            k('s_and_b32 s71, s71, 1')
            k('s_lshl_b32 s71, s71, 9')
            k(f's_add_u32 s{S_T0}, s{S_T0}, s71')
            k(f's_add_u32 s{S_T0}, s{S_T0}, s72')
            k(f's_add_u32 s{S_T1}, s{S_T0}, 4096')
            for b in range(5):
                c0 = acc(g, i, b)
                k(f'v_cvt_pk_bf16_f32 v{t}, v{c0}, v{c0+1}')
                k(f'v_cvt_pk_bf16_f32 v{t+1}, v{c0+2}, v{c0+3}')
                k(f'buffer_store_dwordx2 {vr(t,2)}, v1, {sr(SRD_O,4)}, s{S_T0 if b < 4 else S_T1} offen offset:{(b%4)*1024}{ST}')
                t += 2
    gemm_role(k, g3, epi_kvc, s_flag=78)
    k.label('pb_idle')
    args_ready(k)
    if C.PERSIST: wait_init(k)
    k('s_lshr_b32 s79, s64, 1')
    k('s_sub_u32 s78, s65, 16')
    k('s_cmp_eq_u32 s64, 7')
    k('s_cselect_b32 s79, s78, s79')
    k('s_lshl_b32 s79, s79, 3')
    k(f's_add_u32 s79, s79, s{S_WAVE}')
    if C.PERSIST:
        make_srd(k, SRD_Y, P_WMOD, D*6*D*2)
        prefetch_cols(k, SRD_Y, 18, 4608, 79, 56, 14, 8, 9, stride=13824)
    phase_exit(k, drain=False)

def phase_C(k):
    phase_entry(k)
    k('s_lshr_b32 s74, s65, 2')
    k('s_add_u32 s74, s74, s65')
    k('s_and_b32 s74, s74, 3')
    k('s_mul_i32 s74, s74, 9')
    k('s_lshr_b32 s74, s74, 1')
    k('s_cmp_ge_u32 s65, 16')
    k('s_cbranch_scc1 pc_v')
    k('s_lshr_b32 s66, s64, 2')
    k('s_and_b32 s67, s64, 1')
    k('s_lshl_b32 s67, s67, 2')
    k('s_lshr_b32 s68, s65, 2')
    k('s_add_u32 s67, s67, s68')
    k('s_bfe_u32 s68, s64, 0x10001')
    k('s_lshl_b32 s68, s68, 2')
    k('s_and_b32 s69, s65, 3')
    k('s_add_u32 s68, s68, s69')
    k('s_lshl_b32 s69, s66, 3')
    k('s_add_u32 s71, s69, s68')
    k(f's_lshl_b32 s{S_ABASE}, s71, 13')
    k('s_add_u32 s70, s69, s67')
    k(f's_lshl_b32 s{S_BBASE}, s70, 13')
    k('s_lshl_b32 s75, s68, 2')
    k('s_lshl_b32 s76, s67, 3')
    k('s_lshl_b32 s77, s66, 21')
    k('s_lshl_b32 s72, s70, 3')
    k('s_add_u32 s72, s72, s68')
    k(f's_add_u32 s72, s72, {FL["P"]}')
    args_ready(k)
    ws_srd(k, SRD_A, 'H'); ws_srd(k, SRD_B, 'T'); ws_srd(k, SRD_O, 'P'); ws_srd(k, SRD_X, 'ST')
    g1 = Gemm('ss', Opnd('frag', 8, SRD_A, S_ABASE, rbtot=128, aux=LD()), Opnd('frag', 8, SRD_B, S_BBASE, rbtot=128, aux=LD()), 1, 4, 18, 4, rot=R('ss'))
    def epi_s(k, g):
        k(f's_mov_b32 s78, {f32(CSC)}')
        k(f's_mov_b32 s79, 0x3f803f80')
        VM = (g.VX + 3) // 4 * 4
        k(f's_lshl_b32 s{S_T0}, s75, 6')
        k(f's_add_u32 s{S_T0}, s{S_T0}, s76')
        k(f's_lshl_b32 s{S_T1}, s{S_WB}, 1')
        k(f's_add_u32 s{S_T0}, s{S_T0}, s{S_T1}')
        k(f's_lshl_b32 s{S_OBASE}, s{S_T0}, 10')
        k(f's_add_u32 s{S_OBASE}, s{S_OBASE}, s77')
        k(f'v_lshlrev_b32 v1, 4, v{VL}')
        t = g.VF
        for b in range(2):
            regs = [acc(g, a, b) + r for a in range(8) for r in range(4)]
            m = VM + b; m2 = VM + 4 + b
            k(f'v_max3_f32 v{m}, v{regs[0]}, v{regs[1]}, v{regs[2]}')
            k(f'v_max3_f32 v{m2}, v{regs[3]}, v{regs[4]}, v{regs[5]}')
            i = 6; tog = 0
            while i < 32:
                d = m if tog == 0 else m2
                k(f'v_max3_f32 v{d}, v{d}, v{regs[i]}, v{regs[i+1]}')
                i += 2; tog ^= 1
            k(f'v_max_f32 v{m}, v{m}, v{m2}')
        for sw in ('v_permlane32_swap_b32', 'v_permlane16_swap_b32'):
            k(f'v_mov_b32 v{VM+4}, v{VM}\nv_mov_b32 v{VM+5}, v{VM+1}')
            k('s_nop 0')
            k(f'{sw} v{VM}, v{VM+4}')
            k(f'{sw} v{VM+1}, v{VM+5}')
            k('s_nop 0')
            k(f'v_max_f32 v{VM}, v{VM}, v{VM+4}\nv_max_f32 v{VM+1}, v{VM+1}, v{VM+5}')
        k(f'v_mul_f32 v{VM}, s78, v{VM}\nv_mul_f32 v{VM+1}, s78, v{VM+1}')
        k(f'v_mov_b32 v{VM+2}, 0\nv_mov_b32 v{VM+3}, 0')
        for ap in range(4):
            for b in range(2):
                regs = [acc(g, 2*ap+h, b) + r for h in range(2) for r in range(4)]
                for r in regs: k(f'v_fma_f32 v{r}, v{r}, s78, -v{VM+b}')
                for r in regs: k(f'v_exp_f32 v{r}, v{r}')
                k(f's_add_u32 s{S_T0}, s{S_OBASE}, {ap*64*1024}')
                for j in range(4): k(f'v_cvt_pk_bf16_f32 v{t+j}, v{regs[2*j]}, v{regs[2*j+1]}')
                k(f'buffer_store_dwordx4 {vr(t,4)}, v1, {sr(SRD_O,4)}, s{S_T0} offen offset:{b*1024}{ST}')
                for j in range(4): k(f'v_dot2_f32_bf16 v{VM+2+b}, v{t+j}, s79, v{VM+2+b}')
                t += 4
        k('s_nop 2')
        for sw in ('v_permlane32_swap_b32', 'v_permlane16_swap_b32'):
            k(f'v_mov_b32 v{VM+4}, v{VM+2}\nv_mov_b32 v{VM+5}, v{VM+3}')
            k('s_nop 0')
            k(f'{sw} v{VM+2}, v{VM+4}')
            k(f'{sw} v{VM+3}, v{VM+5}')
            k('s_nop 0')
            k(f'v_add_f32 v{VM+2}, v{VM+2}, v{VM+4}\nv_add_f32 v{VM+3}, v{VM+3}, v{VM+5}')
        k(f's_lshl_b32 s{S_T0}, s70, 2')
        k(f's_add_u32 s{S_T0}, s{S_T0}, s{S_WB}')
        k(f's_lshl_b32 s{S_T0}, s{S_T0}, 3')
        k(f's_add_u32 s{S_T0}, s{S_T0}, s68')
        k(f's_lshl_b32 s{S_T0}, s{S_T0}, 8')
        k('s_mov_b64 exec, 0xffff')
        k(f'buffer_store_dwordx4 {vr(VM,4)}, v1, {sr(SRD_X,4)}, s{S_T0} offen{ST}')
        k('s_mov_b64 exec, -1')
        g.vmax = VM + 6
    gemm_role(k, g1, epi_s, s_flag=72, depA=dep((71, 4, FL['H'], 4)), depB=dep((70, 9, FL['T'], 9)))
    k.label('pc_v')
    k('s_lshr_b32 s66, s64, 1')
    k('s_lshl_b32 s66, s66, 2')
    k('s_and_b32 s67, s65, 3')
    k('s_add_u32 s66, s66, s67')
    k('s_and_b32 s67, s64, 1')
    k('s_lshl_b32 s67, s67, 2')
    k('s_bfe_u32 s68, s65, 0x20002')
    k('s_add_u32 s67, s67, s68')
    k(f's_lshl_b32 s{S_ABASE}, s66, 13')
    k(f's_mul_i32 s{S_BBASE}, s67, {9*1024}')
    k('s_lshl_b32 s75, s66, 2')
    k('s_mul_i32 s76, s67, 9')
    k('s_lshr_b32 s72, s66, 3')
    k('s_lshl_b32 s72, s72, 3')
    k('s_add_u32 s72, s72, s67')
    k('s_lshl_b32 s72, s72, 3')
    k('s_and_b32 s73, s66, 7')
    k('s_add_u32 s72, s72, s73')
    k(f's_add_u32 s72, s72, {FL["V"]}')
    args_ready(k)
    ws_srd(k, SRD_A, 'H'); ws_srd(k, SRD_B, 'WVO'); ws_srd(k, SRD_O, 'VT')
    g2 = Gemm('vv', Opnd('frag', 8, SRD_A, S_ABASE, rbtot=128, aux=LD()), Opnd('frag', 9, SRD_B, S_BBASE, rbtot=72, aux=LD()), 4, 1, 18, 4, rot=R('vv'))
    gemm_role(k, g2, epi_frag16(72, 75, 76), s_flag=72, depA=dep((66, 4, FL['H'], 4)), depB=dep((67, 9, FL['WVO'], 18)))

E_VAT, E_VX, E_VZ = 16, 196, 232
def e_at_loads(k):
    ws_srd(k, SRD_B, 'AT')
    k(f's_sub_u32 s71, s{S_WAVE}, 4')
    k(f's_mul_i32 s72, s71, {9*10}')
    k('s_mul_i32 s73, s66, 5')
    k('s_add_u32 s72, s72, s73')
    k('s_lshl_b32 s72, s72, 10')
    for i in range(9):
        k('s_add_u32 s73, s72, 4096')
        for mb in range(5):
            k(f'buffer_load_dwordx4 {vr(E_VAT+20*i+4*mb,4)}, v1, {sr(SRD_B,4)}, s{72 if mb < 4 else 73} offen offset:{(mb%4)*1024}{LD()}')
        if i < 8: k('s_add_u32 s72, s72, 10240')

def e_preload_hook(k):
    if not C.PERSIST: return
    k(f'v_lshlrev_b32 v8, 7, v{VL}')
    k('s_mul_i32 s85, s66, 9')
    k(f's_add_u32 s85, s85, {FL["AT"]}')
    k('s_lshl_b32 s85, s85, 7')
    k('s_mov_b64 exec, 0x1ff')
    k(f'buffer_load_dword v9, v8, {sr(SRD_F,4)}, s85 offen sc1')
    k('s_waitcnt vmcnt(0)')
    k('v_cmp_ne_u32 vcc, 1, v9')
    k('s_mov_b64 exec, -1')
    k('s_cmp_eq_u64 vcc, 0')
    k('s_cbranch_scc1 pe_early')

def phase_D(k):
    phase_entry(k)
    k('s_cmp_ge_u32 s65, 24')
    k('s_cbranch_scc1 pd_aux')
    k('s_lshr_b32 s66, s64, 2')
    k('s_and_b32 s67, s64, 1')
    k('s_lshl_b32 s67, s67, 2')
    k('s_and_b32 s68, s65, 3')
    k('s_add_u32 s67, s67, s68')
    k('s_bfe_u32 s68, s64, 0x10001')
    k('s_mul_i32 s68, s68, 6')
    k('s_lshr_b32 s69, s65, 2')
    k('s_add_u32 s68, s68, s69')
    k(f's_mul_i32 s{S_ABASE}, s66, {32*72*1024}')
    k('s_mul_i32 s69, s68, 6144')
    k(f's_add_u32 s{S_ABASE}, s{S_ABASE}, s69')
    k(f's_lshl_b32 s{S_BBASE}, s66, 21')
    k('s_lshl_b32 s69, s67, 13')
    k(f's_add_u32 s{S_BBASE}, s{S_BBASE}, s69')
    k('s_lshl_b32 s70, s66, 3')
    k('s_add_u32 s70, s70, s67')
    k('s_mul_i32 s75, s68, 3')
    k('s_lshl_b32 s76, s70, 3')
    k('s_mul_i32 s72, s70, 12')
    k('s_add_u32 s72, s72, s68')
    k(f's_add_u32 s72, s72, {FL["X1"]}')
    k('s_lshl_b32 s71, s68, 1')
    div_const(k, 71, 71, 3, 24)
    k('s_min_u32 s71, s71, 6')
    k('s_lshl_b32 s73, s66, 3')
    k('s_add_u32 s71, s71, s73')
    k('s_and_b32 s74, s65, 3')
    k('s_lshl_b32 s74, s74, 1')
    k('s_lshr_b32 s73, s65, 2')
    k('s_add_u32 s74, s74, s73')
    k('s_and_b32 s74, s74, 7')
    k('s_lshl_b32 s74, s74, 1')
    args_ready(k)
    ws_srd(k, SRD_A, 'VT'); ws_srd(k, SRD_B, 'P'); ws_srd(k, SRD_O, 'X1')
    g1 = Gemm('pv', Opnd('frag', 6, SRD_A, S_ABASE, rbtot=72, aux=LD()), Opnd('frag', 8, SRD_B, S_BBASE, rbtot=64, aux=LD()), 1, 4, 16, 5, lds0=8192, rot=R('pv'))
    def depB_pv(k):
        dep((70, 8, FL['P'], 8))(k)
        ws_srd(k, SRD_X, 'ST')
        k(f's_lshl_b32 s{S_T1}, s{S_W2}, 12')
        k(f's_mov_b32 m0, s{S_T1}')
        k(f's_lshl_b32 s{S_T0}, s70, 13')
        k(f's_add_u32 s{S_T0}, s{S_T0}, s{S_T1}')
        for i in range(4): k(f'buffer_load_dwordx4 v1, {sr(SRD_X,4)}, s{S_T0} offen offset:{i*1024}{LD()} lds')
    def pv_consumer(k, g):
        ma, nb = 6, 2
        VF, VX = g.VF, g.VX
        VGT, VXR, VXF, VS, VR, VMX, VRF, VLS, VSA, VE, VBP = VX, VX+24, VX+48, VX+72, VX+76, VX+78, VX+80, VX+82, VX+84, VX+85, VX+87
        def side_loads():
            ws_srd(k, SRD_Y, 'GATE')
            k(f'v_lshrrev_b32 v1, 4, v{VL}\nv_lshlrev_b32 v1, 5, v1')
            k(f's_mul_i32 s{S_T0}, s66, 4608')
            k(f's_mul_i32 s{S_T1}, s68, 384')
            k(f's_add_u32 s{S_T0}, s{S_T0}, s{S_T1}')
            for ap in range(3):
                for h in range(2):
                    k(f'buffer_load_dwordx4 {vr(VGT+8*ap+4*h,4)}, v1, {sr(SRD_Y,4)}, s{S_T0} offen offset:{ap*128+16*h}{LD()}')
        make_srd(k, SRD_Y, P_X, NR*D*2)
        quad_voff(k, 1, 2304)
        k('s_lshl_b32 s79, s70, 2')
        k(f's_add_u32 s79, s79, s{S_WB}')
        k(f's_mul_i32 s{S_T0}, s79, {32*2304}')
        k(f's_mul_i32 s{S_T1}, s68, 192')
        k(f's_add_u32 s{S_T0}, s{S_T0}, s{S_T1}')
        k(f's_add_u32 s{S_T1}, s{S_T0}, {16*2304}')
        for ap in range(3):
            for b in range(2):
                k(f'buffer_load_dwordx4 {vr(VXR+(ap*2+b)*4,4)}, v1, {sr(SRD_Y,4)}, s{S_T0 if b == 0 else S_T1} offen offset:{ap*64}')
        if not C.PERSIST: side_loads()
        k(f'v_and_b32 v{VSA}, 15, v{VL}\nv_lshlrev_b32 v{VSA}, 4, v{VSA}')
        k(f's_lshl_b32 s77, s{S_WB}, 11')
        if g.rot is not None:
            k(f's_lshl_b32 s{S_T0}, s74, 7')
            k(f'v_add_u32 v{VSA}, s{S_T0}, v{VSA}')
        aA = cons_addr_setup(k, g, g.A, ma, S_WA, VL, VA, VT)
        aB = cons_addr_setup(k, g, g.B, nb, S_WB, VL, VA + len(aA), VT)
        addrs = aA + aB
        for i in range(ma*nb*4): k(f'v_mov_b32 v{VACC+i}, 0')
        q2f_addr(k, VBP)
        k(f'v_mov_b32 v{VMX}, {f32(-3.0e38)}\nv_mov_b32 v{VMX+1}, {f32(-3.0e38)}')
        k(f'v_mov_b32 v{VRF}, {f32(-3.0e38)}\nv_mov_b32 v{VRF+1}, {f32(-3.0e38)}')
        k(f'v_mov_b32 v{VLS}, 0\nv_mov_b32 v{VLS+1}, 0')
        k(f's_mov_b32 s78, {f32(-64.0)}')
        setsz = (ma + nb) * 4
        def fa(st, a): return VF + st*setsz + 4*a
        def fb(st, b): return VF + st*setsz + 4*ma + 4*b
        def reads(s, st):
            return cons_reads(g, g.B, nb, aB, s, fb(st, 0)) + cons_reads(g, g.A, ma, aA, s, fa(st, 0))
        def mf(st):
            return [f'v_mfma_f32_16x16x32_bf16 {vr(acc(g,a,b),4)}, {vr(fa(st,a),4)}, {vr(fb(st,b),4)}, {vr(acc(g,a,b),4)}'
                    for a in range(ma) for b in range(nb)]
        def muls(i):
            a, b = divmod(i, nb)
            c = acc(g, a, b)
            return [f'v_mul_f32 v{c+r}, v{VR+b}, v{c+r}' for r in range(4)]
        def upd():
            o = []
            for b in range(2): o.append(f'v_max_f32 v{VMX+b}, v{VMX+b}, v{VS+b}')
            for b in range(2): o.append(f'v_add_f32 v{VE+b}, s78, v{VMX+b}')
            for b in range(2): o.append(f'v_max_f32 v{VE+b}, v{VE+b}, v{VS+b}')
            for b in range(2): o.append(f'v_sub_f32 v{VR+b}, v{VRF+b}, v{VE+b}')
            for b in range(2): o.append(f'v_exp_f32 v{VR+b}, v{VR+b}')
            for b in range(2): o.append(f'v_mov_b32 v{VRF+b}, v{VE+b}')
            for b in range(2): o.append(f'v_fma_f32 v{VLS+b}, v{VLS+b}, v{VR+b}, v{VS+2+b}')
            return o
        srd_ = [f'v_add_u32 v{VE}, s77, v{VSA}', f'ds_read_b128 {vr(VS,4)}, v{VE}', f'v_add_u32 v{VSA}, 256, v{VSA}', f'v_and_b32 v{VSA}, 2047, v{VSA}']
        adv = [f's_add_u32 s{S_SLOT}, s{S_SLOT}, {g.stage}',
               f's_cmp_eq_u32 s{S_SLOT}, {g.NS*g.stage}',
               f's_cselect_b32 s{S_DELTA}, {-(g.NS-1)*g.stage & 0xffffffff}, s{S_T3}',
               f's_cselect_b32 s{S_SLOT}, 0, s{S_SLOT}'] + [f'v_add_u32 v{a}, s{S_DELTA}, v{a}' for a in addrs]
        k(f's_mov_b32 s{S_SLOT}, 0')
        k(f's_mov_b32 s{S_CNT}, 8')
        k(f's_mov_b32 s{S_T3}, {g.stage}')
        k('s_barrier')
        stamp(k, 0)
        for x in srd_: k(x)
        for r in reads(0, 0): k(r)
        k('s_waitcnt lgkmcnt(8)')
        for x in upd(): k(x)
        k('s_waitcnt lgkmcnt(0)')
        lp = k.newlabel('pv_mm'); le = k.newlabel('pv_last')
        k.label(lp)
        M = mf(0); fill = reads(1, 1) + adv
        for x in muls(0): k(x)
        for i in range(12):
            if i + 1 < 12:
                for x in muls(i+1): k(x)
            else:
                k('s_nop 1')
            k(M[i])
            if fill: k(fill.pop(0))
        for f in fill: k(f)
        k('s_waitcnt lgkmcnt(0)')
        k('s_barrier')
        interleave(k, mf(1), reads(0, 0) + srd_ + [f's_sub_u32 s{S_CNT}, s{S_CNT}, 1'])
        k('s_waitcnt lgkmcnt(0)')
        interleave(k, mf(0), reads(1, 1) + adv)
        k('s_waitcnt lgkmcnt(0)')
        k(f's_cmp_eq_u32 s{S_CNT}, 0')
        k(f's_cbranch_scc1 {le}')
        k('s_barrier')
        interleave(k, mf(1), reads(0, 0) + upd(), per=2)
        if C.PERSIST:
            k(f's_cmp_eq_u32 s{S_CNT}, 4')
            k('s_cbranch_scc1 pv_g1')
            k(f's_cmp_eq_u32 s{S_CNT}, 2')
            k('s_cbranch_scc1 pv_g2')
            k.label('pv_gback')
        k('s_waitcnt lgkmcnt(0)')
        k(f's_branch {lp}')
        if C.PERSIST:
            k.label('pv_g1')
            k(f'v_lshlrev_b32 v1, 7, v{VL}')
            k(f's_mov_b32 s{S_T0}, {FL["GATE"]*128}')
            k('s_mov_b64 exec, 0x3ffff')
            k(f'buffer_load_dword v{VGT}, v1, {sr(SRD_F,4)}, s{S_T0} offen sc1')
            k('s_mov_b64 exec, -1')
            k('s_branch pv_gback')
            k.label('pv_g2')
            k('s_mov_b64 exec, 0x3ffff')
            k('s_waitcnt vmcnt(0)')
            k(f'v_cmp_ne_u32 vcc, 1, v{VGT}')
            k('s_mov_b64 exec, -1')
            k('s_cmp_eq_u64 vcc, 0')
            k('s_cbranch_scc1 pv_g3')
            k(f's_mov_b32 s85, {FL["GATE"]}')
            poll(k, 85, 18, vt=VGT)
            k(f's_mov_b32 s{S_CNT}, 2')
            k.label('pv_g3')
            side_loads()
            k('s_branch pv_gback')
        k.label(le)
        k('s_waitcnt vmcnt(0)')
        bp = [f'ds_bpermute_b32 v{VXF+j}, v{VBP}, v{VXR+j}' for j in range(24)]
        interleave(k, mf(1), bp + [f'v_rcp_f32 v{VLS}, v{VLS}', f'v_rcp_f32 v{VLS+1}, v{VLS+1}'], per=2)
        g.VGT, g.VXF, g.VLS, g.VE = VGT, VXF, VLS, VE
        g.vmax = VBP + 1
    def epi_pv(k, g):
        k(f's_lshl_b32 s{S_T0}, s75, 7')
        k(f's_add_u32 s{S_T0}, s{S_T0}, s76')
        k(f's_lshl_b32 s{S_T1}, s{S_WB}, 1')
        k(f's_add_u32 s{S_T0}, s{S_T0}, s{S_T1}')
        k(f's_lshl_b32 s{S_OBASE}, s{S_T0}, 10')
        k(f'v_lshlrev_b32 v1, 4, v{VL}')
        k('s_waitcnt lgkmcnt(0)')
        T = g.VE
        t = g.VF
        for ap in range(3):
            for b in range(2):
                xr = g.VXF + (ap*2+b)*4
                regs = [acc(g, 2*ap+h, b) + r for h in range(2) for r in range(4)]
                for e in range(8):
                    k(f'v_mul_f32 v{regs[e]}, v{g.VLS+b}, v{regs[e]}')
                    if e % 2 == 0: k(f'v_lshlrev_b32 v{T}, 16, v{xr+e//2}')
                    else: k(f'v_and_b32 v{T}, 0xffff0000, v{xr+e//2}')
                    k(f'v_fma_f32 v{regs[e]}, v{regs[e]}, v{g.VGT+8*ap+e}, v{T}')
                for j in range(4): k(f'v_cvt_pk_bf16_f32 v{t+j}, v{regs[2*j]}, v{regs[2*j+1]}')
                k(f's_add_u32 s{S_T0}, s{S_OBASE}, {ap*128*1024}')
                k(f'buffer_store_dwordx4 {vr(t,4)}, v1, {sr(SRD_O,4)}, s{S_T0} offen offset:{b*1024}{ST}')
                t += 4
    gemm_role(k, g1, epi_pv, s_flag=72, custom_consumer=pv_consumer, depA=dep((71, 8, FL['V'], 16)), depB=depB_pv, end_hookA=e_preload_hook, end_hookB=e_preload_hook)
    k.label('pd_aux')
    k('s_sub_u32 s66, s65, 24')
    k('s_lshl_b32 s66, s66, 3')
    k('s_add_u32 s66, s66, s64')
    k('s_cmp_ge_u32 s66, 18')
    k('s_cbranch_scc1 pd_bt')
    k('s_and_b32 s67, s66, 1')
    k('s_lshr_b32 s68, s66, 1')
    k(f's_mul_i32 s{S_ABASE}, s68, {128*2304}')
    k(f's_mul_i32 s{S_BBASE}, s67, 5120')
    k('s_lshl_b32 s75, s68, 2')
    k('s_mul_i32 s76, s67, 5')
    k('s_mul_i32 s72, s67, 9')
    k('s_add_u32 s72, s72, s68')
    k(f's_add_u32 s72, s72, {FL["AT"]}')
    k('s_mul_i32 s74, s67, 9')
    args_ready(k)
    make_srd(k, SRD_A, P_WQC, D*D*2); ws_srd(k, SRD_B, 'KVC'); ws_srd(k, SRD_O, 'AT')
    g2 = Gemm('at', Opnd('row', 8, SRD_A, S_ABASE, stride=2304, perm=True), Opnd('frag', 5, SRD_B, S_BBASE, rbtot=10, aux=LD()), 4, 1, 18, 6, rot=R('at'))
    gemm_role(k, g2, epi_frag16(10, 75, 76), s_flag=72, depB=dep((67, 12, FL['KVC'], 6)))
    k.label('pd_bt')
    k('s_cmp_ge_u32 s66, 36')
    k('s_cbranch_scc1 pd_idle')
    k('s_sub_u32 s66, s66, 18')
    k('s_and_b32 s67, s66, 1')
    k('s_lshr_b32 s68, s66, 1')
    k(f's_mul_i32 s{S_ABASE}, s67, 5120')
    k(f's_add_u32 s{S_ABASE}, s{S_ABASE}, {36*10*1024}')
    k(f's_lshl_b32 s{S_BBASE}, s68, 8')
    k('s_mul_i32 s75, s67, 3')
    k('s_lshl_b32 s76, s68, 3')
    k('s_mul_i32 s72, s67, 9')
    k('s_add_u32 s72, s72, s68')
    k(f's_add_u32 s72, s72, {FL["BT"]}')
    k('s_mul_i32 s74, s67, 9')
    args_ready(k)
    ws_srd(k, SRD_A, 'KVC'); make_srd(k, SRD_B, P_WOC, D*D*2); ws_srd(k, SRD_O, 'BT')
    g3 = Gemm('bt', Opnd('frag', 5, SRD_A, S_ABASE, rbtot=10, aux=LD()), Opnd('col', 8, SRD_B, S_BBASE, stride=2304), 1, 4, 18, 6, rot=R('bt'))
    gemm_role(k, g3, epi_frag16(72, 75, 76, rowperm=True), s_flag=72, depA=dep((67, 12, FL['KVC'] + 6, 6)))
    k.label('pd_idle')
    args_ready(k)
    k('s_sub_u32 s73, s66, 36')
    if C.PERSIST:
        k('s_cmp_ge_u32 s73, 18')
        k('s_cbranch_scc1 pd_idle2')
        gate_job(k, 73)
        phase_exit(k)
        k.label('pd_idle2')
        k('s_sub_u32 s73, s73, 18')
    if not C.PERSIST:
        k('s_lshl_b32 s79, s73, 3')
        k(f's_add_u32 s79, s79, s{S_WAVE}')
        prefetch_flat(k, P_WOC, D*D*2, 79, 224, 14, vtmp=8)
        prefetch_flat(k, P_WQC, D*D*2, 79, 224, 14, vtmp=8)
    phase_exit(k, drain=False)

def phase_E(k):
    if C.PERSIST:
        k.label('pe_early')
        k('s_mov_b32 s81, 1')
        k('s_branch pe_at')
    phase_entry(k)
    L_ST, L_Z, L_CS, L_CS2, L_BT = 0, 1024, 21504, 41984, 47104
    VAT, VX_, VZ = E_VAT, E_VX, E_VZ
    k('s_lshr_b32 s66, s64, 2')
    k(f'v_lshlrev_b32 v1, 4, v{VL}')
    k('s_mov_b32 s81, 0')
    args_ready(k)
    k(f's_cmp_lt_u32 s{S_WAVE}, 4')
    k('s_cbranch_scc1 pe_common')
    dep((66, 9, FL['AT'], 9))(k)
    if C.PERSIST:
        k.label('pe_at')
        e_at_loads(k)
        k('s_cmp_eq_u32 s81, 0')
        k('s_cbranch_scc1 pe_common')
        k('s_barrier')
        stamp_begin(k)
    k.label('pe_common')
    k('s_bfe_u32 s67, s64, 0x10001')
    k('s_and_b32 s68, s64, 1')
    k('s_lshl_b32 s68, s68, 5')
    k('s_add_u32 s68, s68, s65')
    k('s_lshl_b32 s69, s66, 6')
    k('s_add_u32 s68, s68, s69')
    k('s_lshr_b32 s70, s68, 3')
    ws_srd(k, SRD_A, 'X1'); make_srd(k, SRD_O, P_OUT, NR*D*2)
    k(f's_cmp_lt_u32 s{S_WAVE}, 4')
    k('s_cbranch_scc1 pe_l')
    k(f's_sub_u32 s71, s{S_WAVE}, 4')
    k(f's_mul_i32 s74, s71, {9*128}')
    k('s_add_u32 s74, s74, s68')
    k('s_lshl_b32 s74, s74, 10')
    def load_x():
        for i in range(9):
            k(f'buffer_load_dwordx4 {vr(VX_+4*i,4)}, v1, {sr(SRD_A,4)}, s74 offen{LD()}')
            if i < 8: k(f's_add_u32 s74, s74, {128*1024}')
    if not C.PERSIST:
        e_at_loads(k)
        load_x()
    k('s_mov_b32 s77, 0x3f803f80')
    for j in range(4): k(f'v_mov_b32 v{12+j}, s77')
    k(f's_mul_i32 s{S_T1}, s71, 5120')
    k(f'v_add_u32 v6, s{S_T1}, v1')
    k(f'v_lshrrev_b32 v7, 5, v{VL}\nv_lshlrev_b32 v7, 6, v7\nv_and_b32 v10, 15, v{VL}\nv_lshl_add_u32 v7, v10, 2, v7')
    k(f's_lshl_b32 s{S_T0}, s71, 7')
    k(f'v_add_u32 v7, s{S_T0}, v7')
    ex = 0 if C.PERSIST else 9
    for i in range(9):
        k(f's_waitcnt vmcnt({5*(8-i) + ex})')
        for mb in range(5):
            c = '0' if i == 0 else vr(VZ+4*mb, 4)
            k(f'v_mfma_f32_16x16x32_bf16 {vr(VZ+4*mb,4)}, {vr(VAT+20*i+4*mb,4)}, v[12:15], {c}')
    k('v_mov_b32 v2, 0\nv_mov_b32 v3, 0\nv_mov_b32 v4, 0\nv_mov_b32 v5, 0')
    k('s_nop 4')
    for mb in range(5): k(f'ds_write_b128 v6, {vr(VZ+4*mb,4)} offset:{L_CS + mb*1024}')
    stamp(k, 0)
    if C.PERSIST:
        dep((70, 12, FL['X1'], 12))(k)
        stamp(k, 1)
        load_x()
    k('s_waitcnt lgkmcnt(0)')
    k('s_barrier')
    for i in range(9):
        k(f's_waitcnt vmcnt({8-i})')
        mm = []
        for mb in range(5):
            c = '0' if i == 0 else vr(VZ+4*mb, 4)
            mm.append(f'v_mfma_f32_16x16x32_bf16 {vr(VZ+4*mb,4)}, {vr(VAT+20*i+4*mb,4)}, {vr(VX_+4*i,4)}, {c}')
        dd = []
        for j in range(4*i, 4*i+4):
            dd.append(f'v_dot2_f32_bf16 v{2+(j&1)}, v{VX_+j}, s77, v{2+(j&1)}')
            dd.append(f'v_dot2_f32_bf16 v{4+(j&1)}, v{VX_+j}, v{VX_+j}, v{4+(j&1)}')
        interleave(k, mm, dd, per=2)
    k('s_nop 2')
    k('v_add_f32 v2, v2, v3\nv_add_f32 v4, v4, v5')
    k('s_nop 1')
    k('v_permlane32_swap_b32 v2, v4')
    k('s_nop 0')
    k('v_add_f32 v2, v2, v4')
    k('v_mov_b32 v3, v2')
    for mb in range(5): k(f'ds_write_b128 v6, {vr(VZ+4*mb,4)} offset:{L_Z + mb*1024}')
    k('v_permlane16_swap_b32 v2, v3')
    k('s_nop 0')
    k('v_add_f32 v2, v2, v3')
    k(f'ds_write_b32 v7, v2 offset:{L_ST}')
    stamp(k, 2)
    k(f's_cmp_ge_u32 s{S_WAVE}, 6')
    k('s_cbranch_scc0 pe_g2pre')
    k('s_waitcnt lgkmcnt(0)')
    k('s_barrier')
    phase_exit(k)
    k.label('pe_l')
    VRS, VP, VB, VZ2, VO, VQ, VCS = 16, 28, 40, 112, 192, 216, 232
    ws_srd(k, SRD_X, 'BT')
    dep((66, 9, FL['BT'], 9))(k)
    k('s_mul_i32 s75, s66, 216')
    k('s_mul_i32 s76, s67, 36')
    k('s_add_u32 s75, s75, s76')
    k(f's_mul_i32 s76, s{S_WAVE}, 9')
    k('s_add_u32 s75, s75, s76')
    k('s_lshl_b32 s75, s75, 10')
    k('s_lshl_b32 s76, s76, 10')
    k(f's_add_u32 s76, s76, {L_BT}')
    if not C.PERSIST: k('s_barrier')
    for kb in range(3):
        for g0 in (0, 4, 8):
            k(f's_add_u32 m0, s76, {kb*36864 + g0*1024}')
            k(f's_add_u32 s77, s75, {kb*72*1024 + g0*1024}')
            for i in range(4 if g0 < 8 else 1):
                k(f'buffer_load_dwordx4 v1, {sr(SRD_X,4)}, s77 offen offset:{i*1024}{LD()} lds')
    stamp(k, 0)
    if C.PERSIST: k('s_barrier')
    stamp(k, 1)
    def sum4(base, pre=()):
        for mb in range(5):
            for w in range(4):
                k(f'ds_read_b128 {vr(VZ2+20*w+4*mb,4)}, v1 offset:{base + w*5120 + mb*1024}')
        for x in pre: k(x)
        for mb in range(5):
            k(f's_waitcnt lgkmcnt({min(15, 4*(4-mb))})')
            for j in (0, 2):
                z = VZ2 + 4*mb + j
                k(f'v_pk_add_f32 {vr(z,2)}, {vr(z,2)}, {vr(z+20,2)}')
                k(f'v_pk_add_f32 {vr(z+40,2)}, {vr(z+40,2)}, {vr(z+60,2)}')
                k(f'v_pk_add_f32 {vr(z,2)}, {vr(z,2)}, {vr(z+40,2)}')
    k(f's_cmp_lg_u32 s{S_WAVE}, 3')
    k('s_cbranch_scc1 pe_g2pre')
    sum4(L_CS)
    for mb in range(5): k(f'ds_write_b128 v1, {vr(VZ2+4*mb,4)} offset:{L_CS2 + mb*1024}')
    k.label('pe_g2pre')
    k('s_mul_i32 s73, s67, 18')
    k(f's_mul_i32 s74, s{S_WAVE}, 3')
    k('s_add_u32 s73, s73, s74')
    k('s_lshl_b32 s74, s73, 7')
    k('s_add_u32 s74, s74, s68')
    k('s_lshl_b32 s74, s74, 10')
    for i in range(3):
        k(f'buffer_load_dwordx4 {vr(VRS+4*i,4)}, v1, {sr(SRD_A,4)}, s74 offen{LD()}')
        if i < 2: k(f's_add_u32 s74, s74, {128*1024}')
    f2q_addr(k, 5)
    quad_voff(k, 6, 2304)
    k(f's_mul_i32 s{S_T0}, s{S_WAVE}, 6144')
    k(f's_add_u32 s{S_T0}, s{S_T0}, {L_BT}')
    k(f'v_add_u32 v7, s{S_T0}, v1')
    k('v_add_u32 v8, 36864, v7')
    k(f'v_and_b32 v9, 15, v{VL}\nv_lshlrev_b32 v9, 2, v9')
    k(f'v_cmp_le_u32 vcc, 48, v{VL}')
    k(f's_mul_i32 s{S_T2}, s68, {16*2304}')
    k(f's_lshl_b32 s{S_T1}, s73, 6')
    k(f's_add_u32 s{S_T2}, s{S_T2}, s{S_T1}')
    k('s_mov_b32 s77, 0x3f803f80')
    k(f'v_mov_b32 v{VP+10}, 0\nv_mov_b32 v{VP+11}, 0\nv_mov_b32 v4, {f32(-3.0e38)}')
    k('s_waitcnt vmcnt(3) lgkmcnt(0)')
    k('s_barrier')
    stamp(k, 3)
    for w in range(4): k(f'ds_read2_b32 {vr(VO+2*w,2)}, v9 offset0:{w*32} offset1:{w*32+16}')
    for mb in range(5): k(f'ds_read_b128 {vr(VCS+4*mb,4)}, v1 offset:{L_CS2 + mb*1024}')
    st = [f'v_pk_add_f32 {vr(VO,2)}, {vr(VO,2)}, {vr(VO+2,2)}', f'v_pk_add_f32 {vr(VO+4,2)}, {vr(VO+4,2)}, {vr(VO+6,2)}',
          f'v_pk_add_f32 {vr(VO,2)}, {vr(VO,2)}, {vr(VO+4,2)}',
          f'v_mul_f32 v10, {f32(-1.0/D)}, v{VO}', f'v_mul_f32 v12, {f32(1.0/D)}, v{VO+1}', 'v_fma_f32 v12, -v10, v10, v12', 'v_max_f32 v12, 0, v12',
          f'v_add_f32 v12, {f32(1e-5)}, v12', 'v_rsq_f32 v12, v12', 'v_mov_b32 v11, v10', f'v_mul_f32 v12, {f32(CSC)}, v12']
    sum4(L_Z, pre=['s_waitcnt lgkmcnt(15)'] + st)
    for kb in range(3):
        for jb in range(6):
            k(f'ds_read_b128 {vr(VB+(kb*6+jb)*4,4)}, v{7 if kb == 0 else 8} offset:{(kb-1 if kb else 0)*36864 + jb*1024}')
    for i in range(0, 20, 2): k(f'v_pk_fma_f32 {vr(VZ2+i,2)}, {vr(VCS+i,2)}, v[10:11], {vr(VZ2+i,2)}')
    for r in (17, 18, 19): k(f'v_cndmask_b32 v{VZ2+r}, v{VZ2+r}, v4, vcc')
    k(f'v_max3_f32 v2, v{VZ2}, v{VZ2+1}, v{VZ2+2}')
    k(f'v_max3_f32 v3, v{VZ2+3}, v{VZ2+4}, v{VZ2+5}')
    for i in range(6, 20, 2): k(f'v_max3_f32 v{2 + (i//2)%2}, v{2 + (i//2)%2}, v{VZ2+i}, v{VZ2+i+1}')
    k('v_max_f32 v2, v2, v3')
    for sw in ('v_permlane32_swap_b32', 'v_permlane16_swap_b32'):
        k(f'v_mov_b32 v3, v2\ns_nop 1\n{sw} v2, v3\ns_nop 0\nv_max_f32 v2, v2, v3')
    k('v_sub_f32 v2, 0, v2\nv_mov_b32 v13, v12\nv_mov_b32 v3, v2')
    for i in range(0, 20, 2): k(f'v_pk_add_f32 {vr(VZ2+i,2)}, {vr(VZ2+i,2)}, v[2:3]')
    for i in range(0, 20, 2): k(f'v_pk_mul_f32 {vr(VZ2+i,2)}, {vr(VZ2+i,2)}, v[12:13]')
    for i in range(20): k(f'v_exp_f32 v{VZ2+i}, v{VZ2+i}')
    k('v_mov_b32 v2, 0')
    for i in range(10): k(f'v_cvt_pk_bf16_f32 v{VP+i}, v{VZ2+2*i}, v{VZ2+2*i+1}')
    k('s_waitcnt lgkmcnt(0)')
    k('s_nop 0')
    mmx = []
    for kb in range(3):
        for jb in range(6):
            c = '0' if kb == 0 else vr(VO+4*jb, 4)
            mmx.append(f'v_mfma_f32_16x16x32_bf16 {vr(VO+4*jb,4)}, {vr(VB+(kb*6+jb)*4,4)}, {vr(VP+4*kb,4)}, {c}')
    sm = [f'v_dot2_f32_bf16 v2, v{VP+i}, s77, v2' for i in range(10)] + ['s_nop 2']
    for sw in ('v_permlane32_swap_b32', 'v_permlane16_swap_b32'):
        sm += ['v_mov_b32 v3, v2', 's_nop 1', f'{sw} v2, v3', 's_nop 0', 'v_add_f32 v2, v2, v3']
    sm += ['v_rcp_f32 v2, v2', 's_waitcnt vmcnt(0)', 'v_mov_b32 v3, v2']
    for j in range(12):
        sm += [f'v_lshlrev_b32 v{VZ2+2*j}, 16, v{VRS+j}', f'v_and_b32 v{VZ2+2*j+1}, 0xffff0000, v{VRS+j}']
    interleave(k, mmx, sm, per=2)
    for i in range(3):
        for e in range(0, 8, 2):
            k(f'v_pk_fma_f32 {vr(VO+8*i+e,2)}, {vr(VO+8*i+e,2)}, v[2:3], {vr(VZ2+8*i+e,2)}')
        for j in range(4): k(f'v_cvt_pk_bf16_f32 v{VRS+4*i+j}, v{VO+8*i+2*j}, v{VO+8*i+2*j+1}')
        for j in range(4): k(f'ds_bpermute_b32 v{VQ+4*i+j}, v5, v{VRS+4*i+j}')
    for i in range(3):
        k(f's_waitcnt lgkmcnt({4*(2-i)})')
        k(f'buffer_store_dwordx4 {vr(VQ+4*i,4)}, v6, {sr(SRD_O,4)}, s{S_T2} offen offset:{64*i}')
    stamp(k, 4)
    phase_exit(k)
    VMAX[0] = 256; LMAX[0] = max(LMAX[0], L_BT + 108*1024)

def build(fn, persist, stampf):
    C.PERSIST, C.STAMP = persist, stampf
    k = K()
    k.L.append('.p2align 8'); k.label('code_start')
    info = []
    for i, f in enumerate((phase_A, phase_B, phase_C, phase_D, phase_E)):
        PH[0] = i
        if not persist: VMAX[0] = 0; LMAX[0] = 0
        f(k)
        if (not persist) or i == 0:
            k.label(f'quit{i}'); k('s_endpgm')
        info.append((NAMES[i], VMAX[0], LDS_MAX if i == 0 else LMAX[0]))
    k.label('code_end')
    k('s_endpgm')
    ref = open('standalone__pixart__diffusion.s.ref').read()
    hdr = ref.split('; Override launch geometry')[0]
    desc = '.section .rodata,"a"\n'
    if persist:
        n = 'standalone__pixart__diffusion_kernel'
        hdr += f'; @launch kernel={n} grid=(256,1,1) block=(512,1,1) lds={LDS_MAX}\n'
        desc += '.p2align 6\n' + kernel_desc(n, 256, 102)
    else:
        for (n, v, l) in info:
            assert v <= 256
            hdr += f'; @launch kernel={n} grid=(256,1,1) block=(512,1,1) lds={l}\n'
            desc += '.p2align 6\n' + kernel_desc(n, v, 102)
    hdr += '.amdgcn_target "amdgcn-amd-amdhsa--gfx950"\n.text\n'
    open(fn, 'w').write(hdr + k.text() + desc)

if __name__ == '__main__':
    C.ROT = set('wvo kvc at bt'.split()); C.APRE = True
    build('m3.s', False, False)
    build('m3_stamped.s', False, True)
    build('p3.s', True, False)
    build('p3_stamped.s', True, True)
    C.DBGT = True
    build('p3_dbgt.s', True, False)
    C.DBGT = False
    json.dump(WS, open('ws.json', 'w'))
```

```python
import sys, math, struct, json
from lib import *

D = 1152; NR = 2048
P_X, P_C, P_Y, P_WQKV, P_WO, P_WQC, P_WKVC, P_WOC, P_WMOD, P_OUT, P_DBG, P_WS = range(40, 64, 2)
def al(x): return (x + 4095) // 4096 * 4096
FL = {}
_f = 0
for nm, n in [('MOD', 72), ('GATE', 18), ('H', 64), ('WQK', 108), ('T', 144), ('WVO', 81), ('KVC', 24), ('P', 128), ('V', 128),
              ('X1', 192), ('AT', 18), ('BT', 18)]:
    FL[nm] = _f; _f += n
NFLAG = 1024
assert _f <= NFLAG
WS = {}
_o = 0
for nm, sz in [('FLAG', NFLAG*128), ('MODP', 2*2*2304*4), ('GATE', 2*1152*4), ('ST', 64*8*256), ('H', NR*D*2), ('WQK', D*D*2), ('WVO', D*D*2),
               ('T', NR*D*2), ('VT', NR*D*2), ('P', 2*1024*1024*2), ('KVC', 72*10*1024), ('AT', 36*10*1024), ('BT', 2*3*72*1024),
               ('X1', NR*D*2)]:
    WS[nm] = (_o, sz); _o = al(_o + sz)
ST = ' sc1'
CSC = (D ** -0.5) * math.log2(math.e)
def f32(x): return '0x%08x' % struct.unpack('<I', struct.pack('<f', x))[0]
LDS_MAX = 163840
L_CNT = LDS_MAX - 64

class Cfg:
    ROT = set('wqk tt wvo kvc ss vv pv at bt'.split())
    APRE = False
    SKIP = set()
    WQK_NS = 5
    WQK_NPRE = 3
    STAMP = False
    DBGT = False
    TLBW = 0
    PERSIST = False
C = Cfg()
STAMP_OFF = 128 << 20
PH = [0]
NAMES = ['pa_kernel', 'pb_kernel', 'pc_kernel', 'pd_kernel', 'pe_kernel']
VL = 0; VT = 2; VA = 4; VACC = 16
S_ROT = 74
def R(name): return S_ROT if name in C.ROT else None
def mod_const(k, s, m, maxv):
    div_const(k, S_T0, s, m, maxv)
    k(f's_mul_i32 s{S_T0}, s{S_T0}, {m}')
    k(f's_sub_u32 s{s}, s{s}, s{S_T0}')
def LD(): return ' sc1' if C.PERSIST else ''

def stamp(k, i):
    if C.STAMP: k(f's_memrealtime s[{86+2*i}:{87+2*i}]')
def stamp_begin(k):
    if C.STAMP: k('s_memrealtime s[98:99]\n' + '\n'.join(f's_mov_b32 s{86+2*i}, 0' for i in range(6)))

def phase_exit(k, drain=True):
    p = PH[0]
    k('s_mov_b64 exec, -1')
    if C.STAMP:
        if drain: k('s_waitcnt vmcnt(0)')
        k('s_memrealtime s[100:101]')
        k(f's_lshl_b32 s{S_T0}, s2, 8')
        k(f's_lshl_b32 s{S_T1}, s{S_WAVE}, 5')
        k(f's_add_u32 s{S_T0}, s{S_T0}, s{S_T1}')
        k(f's_add_u32 s{S_T0}, s{S_T0}, {STAMP_OFF + p*65536}')
        k('s_waitcnt lgkmcnt(0)')
        k(f'v_mov_b32 v1, s{S_T0}\nv_mov_b32 v4, s98\nv_mov_b32 v5, s100')
        for i in range(6): k(f'v_mov_b32 v{6+i}, s{86+2*i}')
        k('s_mov_b64 exec, 1')
        k('global_store_dwordx4 v1, v[4:7], s[62:63]')
        k('global_store_dwordx4 v1, v[8:11], s[62:63] offset:16')
        k('s_mov_b64 exec, -1')
        k('s_nop 1')
    if C.DBGT and p in (0, 1, 2, 3, 4):
        lq = k.newlabel('dbgt')
        k(f's_cmp_lg_u32 s{S_WAVE}, 0')
        k(f's_cbranch_scc1 {lq}')
        k('s_and_b32 s97, s65, 7')
        k('s_cmp_lg_u32 s97, 0')
        k(f's_cbranch_scc1 {lq}')
        if p == 4: k('s_waitcnt vmcnt(0)')
        k('s_memrealtime s[100:101]')
        k('s_waitcnt lgkmcnt(0)')
        k(f'v_mov_b32 v1, 0\nv_mov_b32 v4, s100\ns_not_b32 s97, s98\nv_mov_b32 v5, s97')
        k('s_mov_b64 exec, 1')
        k(f'global_atomic_umax v1, v4, s[60:61] offset:{[4,12,20,28,52][p]}')
        if p == 4: k('global_atomic_umax v1, v5, s[60:61] offset:48')
        k('s_mov_b64 exec, -1')
        k.label(lq)
    if C.PERSIST and p < 4:
        k(f's_branch ph{p+1}')
    else:
        k('s_endpgm')

def ws_srd(k, srd, nm):
    make_srd(k, srd, P_WS, WS[nm][1], WS[nm][0])

def phase_entry(k):
    p = PH[0]
    if C.PERSIST and p > 0:
        k.label(f'ph{p}')
        stamp_begin(k)
        return
    name = NAMES[p] if not C.PERSIST else 'standalone__pixart__diffusion_kernel'
    kernel_header(k, name)
    if p == 0:
        k('s_getpc_b64 s[76:77]')
        k('s_load_dwordx16 s[40:55], s[0:1], 0')
        k('s_load_dwordx8 s[56:63], s[0:1], 64')
        k('s_lshr_b32 s65, s2, 3')
        k('s_lshl_b32 s78, s65, 11')
        k('v_lshrrev_b32 v1, 6, v0')
        k('v_and_b32 v2, 1, v0')
        k('v_lshl_add_u32 v2, v1, 1, v2')
        k('v_lshl_add_u32 v2, v2, 7, s78')
        k('v_min_u32 v2, code_end - code_start - 8, v2')
        k('s_mov_b64 exec, 3')
        k('global_load_dword v15, v2, s[76:77]')
        k('s_mov_b64 exec, -1')
        stamp_begin(k)
        if C.DBGT: k('s_memrealtime s[98:99]')
    else:
        stamp_begin(k)
        k('s_load_dwordx16 s[40:55], s[0:1], 0')
        k('s_load_dwordx8 s[56:63], s[0:1], 64')
    k('s_cmp_ge_u32 s2, 256')
    k(f's_cbranch_scc1 quit{p}')
    k('v_lshrrev_b32 v1, 6, v0')
    k('v_and_b32 v0, 63, v0')
    k(f'v_readfirstlane_b32 s{S_WAVE}, v1')
    k('s_and_b32 s64, s2, 7')
    k('s_lshr_b32 s65, s2, 3')
def args_ready(k):
    p = PH[0]
    if (not C.PERSIST) or p == 0:
        k('s_waitcnt lgkmcnt(0)')
        ws_srd(k, SRD_F, 'FLAG')

def div_const(k, dst, src, d, maxv):
    for sh in range(4, 20):
        m = -(-(1 << sh) // d)
        if all((v*m) >> sh == v // d for v in range(maxv+1)):
            k(f's_mul_i32 s{dst}, s{src}, {m}')
            k(f's_lshr_b32 s{dst}, s{dst}, {sh}')
            return
    raise Exception('no magic')

SPIN = 0x20000
def poll(k, s_line, n, vt=8, force=False):
    if not (C.PERSIST or force): return
    lp, done = k.newlabel('poll'), k.newlabel('polled')
    k(f'v_min_u32 v{vt}, {n-1}, v{VL}')
    k(f'v_lshlrev_b32 v{vt}, 7, v{vt}')
    k(f's_lshl_b32 s{S_T0}, s{s_line}, 7')
    k(f's_mov_b32 s{S_CNT}, {SPIN}')
    if n < 64: k(f's_mov_b64 exec, {hex((1 << n) - 1)}' if n <= 31 else f's_mov_b32 exec_hi, {hex((1 << (n-32)) - 1)}')
    k.label(lp)
    k(f'buffer_load_dword v{vt+1}, v{vt}, {sr(SRD_F,4)}, s{S_T0} offen sc1')
    k(f's_sub_u32 s{S_CNT}, s{S_CNT}, 1')
    k('s_waitcnt vmcnt(0)')
    k(f'v_cmp_ne_u32 vcc, 1, v{vt+1}')
    k(f's_cmp_eq_u32 s{S_CNT}, 0')
    k(f's_cbranch_scc1 {done}')
    k('s_cmp_eq_u64 vcc, 0')
    k(f's_cbranch_scc1 {done}')
    k('s_sleep 3')
    k(f's_branch {lp}')
    k.label(done)
    k('s_mov_b64 exec, -1')

def wait_init(k, vt=8):
    lp, done = k.newlabel('wi'), k.newlabel('wid')
    k(f'v_min_u32 v{vt}, 11, v{VL}')
    k(f'v_and_b32 v{vt+1}, 1, v{vt}')
    k(f'v_lshlrev_b32 v{vt+1}, 7, v{vt+1}')
    k(f'v_lshl_add_u32 v{vt}, v{vt}, 2, v{vt+1}')
    k(f's_mov_b32 s{S_CNT}, {SPIN}')
    k.label(lp)
    k(f'global_load_dword v{vt+1}, v{vt}, s[{P_DBG}:{P_DBG+1}] sc1')
    k(f's_sub_u32 s{S_CNT}, s{S_CNT}, 1')
    k('s_waitcnt vmcnt(0)')
    k(f'v_cmp_ne_u32 vcc, 1, v{vt+1}')
    k(f's_cmp_eq_u32 s{S_CNT}, 0')
    k(f's_cbranch_scc1 {done}')
    k('s_cmp_eq_u64 vcc, 0')
    k(f's_cbranch_scc1 {done}')
    k('s_sleep 3')
    k(f's_branch {lp}')
    k.label(done)

def set_flag(k, s_line, vt=8):
    k(f's_lshl_b32 s{S_T0}, s{s_line}, 7')
    k(f'v_mov_b32 v{vt}, 0\nv_mov_b32 v{vt+1}, 1')
    k('s_mov_b64 exec, 1')
    k(f'buffer_store_dword v{vt+1}, v{vt}, {sr(SRD_F,4)}, s{S_T0} offen sc1')
    k('s_mov_b64 exec, -1')

def signal(k, s_line, nwaves, vt=8):
    if not C.PERSIST: return
    skip = k.newlabel('sig')
    k('s_mov_b64 exec, -1')
    k(f's_lshl_b32 s{S_T0}, s{s_line}, 7')
    k(f'v_mov_b32 v{vt}, 0\nv_mov_b32 v{vt+1}, 1')
    k(f's_cmp_lg_u32 s{S_WAVE}, 0')
    k('s_waitcnt vmcnt(0)')
    k('s_barrier')
    k(f's_cbranch_scc1 {skip}')
    k('s_mov_b64 exec, 1')
    k(f'buffer_store_dword v{vt+1}, v{vt}, {sr(SRD_F,4)}, s{S_T0} offen sc1')
    k('s_mov_b64 exec, -1')
    k.label(skip)

def q2f_addr(k, v):
    k(f'v_and_b32 v{v}, 15, v{VL}\nv_lshlrev_b32 v{v}, 4, v{v}\nv_lshrrev_b32 v{VT}, 4, v{VL}\nv_lshl_add_u32 v{v}, v{VT}, 2, v{v}')
def f2q_addr(k, v):
    k(f'v_and_b32 v{v}, 3, v{VL}\nv_lshlrev_b32 v{v}, 6, v{v}\nv_and_b32 v{VT}, 0x3c, v{VL}\nv_add_u32 v{v}, v{v}, v{VT}')
def quad_voff(k, v, stride):
    k(f'v_lshrrev_b32 v{v}, 2, v{VL}\ns_mov_b32 s{S_T0}, {stride}\nv_mul_u32_u24 v{v}, s{S_T0}, v{v}\nv_and_b32 v{VT}, 3, v{VL}\nv_lshl_add_u32 v{v}, v{VT}, 4, v{v}')

def prefetch_flat(k, ptr, nbytes, s_worker, nworkers, vdst, maxper=99, srd=SRD_Y, vtmp=1):
    make_srd(k, srd, ptr, nbytes)
    k(f'v_lshlrev_b32 v{vtmp}, 7, v{VL}')
    per = min(maxper, -(-(-(-nbytes // 8192)) // nworkers))
    k(f's_lshl_b32 s{S_T0}, s{s_worker}, 13')
    for i in range(per):
        k(f'buffer_load_dword v{vdst}, v{vtmp}, {sr(srd,4)}, s{S_T0} offen')
        if i + 1 < per: k(f's_add_u32 s{S_T0}, s{S_T0}, {nworkers*8192}')
def prefetch_cols(k, srd, lines_per_row, colbyte, s_worker, nworkers, vdst, v0, v1, stride=6912):
    tot = 1152 * lines_per_row
    per = -(-(tot // 64) // nworkers)
    sh = {18: 20, 36: 21}[lines_per_row]
    assert all((n*58255) >> sh == n // lines_per_row for n in range(per*nworkers*64)) and per*nworkers*64*58255 < 2**32
    k(f's_lshl_b32 s{S_T1}, s{s_worker}, 6')
    for i in range(per):
        k(f'v_add_u32 v{v0}, s{S_T1}, v{VL}')
        k(f's_mov_b32 s{S_T0}, 58255')
        k(f'v_mul_lo_u32 v{v1}, v{v0}, s{S_T0}')
        k(f'v_lshrrev_b32 v{v1}, {sh}, v{v1}')
        k(f's_mov_b32 s{S_T0}, {stride - lines_per_row*128}')
        k(f'v_mul_u32_u24 v{v1}, s{S_T0}, v{v1}')
        k(f'v_lshl_add_u32 v{v0}, v{v0}, 7, v{v1}')
        k(f's_mov_b32 s{S_T0}, {colbyte}')
        k(f'buffer_load_dword v{vdst}, v{v0}, {sr(srd,4)}, s{S_T0} offen')
        if i + 1 < per: k(f's_add_u32 s{S_T1}, s{S_T1}, {nworkers*64}')

VMAX = [0]
LMAX = [0]
def gemm_role(k, g, epilogue, s_flag=None, npre=2, custom_consumer=None, cons_first=None, depA=None, depB=None, end_hookA=None, end_hookB=None, exit_hook=None):
    ll, lb = k.newlabel(g.name + '_loader'), k.newlabel(g.name + '_loaderB')
    k(f's_cmp_ge_u32 s{S_WAVE}, 4')
    k(f's_cbranch_scc1 {ll}')
    if cons_first: cons_first(k)
    k(f's_and_b32 s{S_WB}, s{S_WAVE}, {g.WB-1}')
    k(f's_lshr_b32 s{S_WA}, s{S_WAVE}, {g.WB.bit_length()-1}')
    VF = VACC + g.ma*g.nb*4
    g.VF = VF
    g.VX = VF + 2*(g.ma+g.nb)*4
    g.vmax = g.VX
    if custom_consumer: custom_consumer(k, g)
    else: consumer_body(k, g, VL, VACC, VF, VA, VT, post_bar0=lambda k: stamp(k, 0))
    stamp(k, 1)
    epilogue(k, g)
    stamp(k, 2)
    if s_flag is not None: signal(k, s_flag, 4)
    lx = k.newlabel(g.name + '_exit')
    k.label(lx)
    if exit_hook: exit_hook(k)
    phase_exit(k, drain=not C.PERSIST)
    k.label(ll)
    k(f's_and_b32 s{S_W2}, s{S_WAVE}, 1')
    k(f's_cmp_ge_u32 s{S_WAVE}, 6')
    k(f's_cbranch_scc1 {lb}')
    def wrap(dep):
        def f(k):
            if dep: dep(k)
            stamp(k, 0)
        return f
    loader_body(k, g, g.A, VL, 1, VT, npre=npre, pre_hook=wrap(depA), end_barrier=C.PERSIST, end_hook=end_hookA)
    k(f's_branch {lx}')
    k.label(lb)
    loader_body(k, g, g.B, VL, 1, VT, npre=npre, pre_hook=wrap(depB), end_barrier=C.PERSIST, end_hook=end_hookB)
    k(f's_branch {lx}')
    VMAX[0] = max(VMAX[0], g.vmax); LMAX[0] = max(LMAX[0], g.lds_bytes)
    assert g.lds_bytes <= L_CNT

def acc(g, a, b): return VACC + (a*g.nb + b)*4

def epi_frag16(rbtot, s_kb0, s_rb0, rowperm=False):
    def f(k, g):
        npair = (g.ma + 1) // 2
        k(f's_mul_i32 s{S_T0}, s{S_WA}, {g.ma//2}')
        k(f's_add_u32 s{S_T0}, s{S_T0}, s{s_kb0}')
        k(f's_mul_i32 s{S_T0}, s{S_T0}, {rbtot}')
        k(f's_mul_i32 s{S_T1}, s{S_WB}, {g.nbstep}')
        k(f's_add_u32 s{S_T0}, s{S_T0}, s{S_T1}')
        k(f's_add_u32 s{S_T0}, s{S_T0}, s{s_rb0}')
        k(f's_lshl_b32 s{S_OBASE}, s{S_T0}, 10')
        if rowperm:
            assert g.nb % 2 == 0
            k(f'v_bfe_u32 v{VT}, v{VL}, 2, 1\nv_lshlrev_b32 v1, 10, v{VT}\nv_bfe_u32 v{VT}, v{VL}, 3, 1\nv_lshl_add_u32 v1, v{VT}, 6, v1')
            k(f'v_and_b32 v{VT}, 0x33, v{VL}\nv_lshl_add_u32 v1, v{VT}, 4, v1')
        else:
            k(f'v_lshlrev_b32 v1, 4, v{VL}')
        k('s_nop 1')
        t = g.VF
        for ap in range(npair):
            for b in range(g.nb):
                c0 = acc(g, 2*ap, b)
                k(f'v_cvt_pk_bf16_f32 v{t}, v{c0}, v{c0+1}')
                k(f'v_cvt_pk_bf16_f32 v{t+1}, v{c0+2}, v{c0+3}')
                if 2*ap+1 < g.ma:
                    c1 = acc(g, 2*ap+1, b)
                    k(f'v_cvt_pk_bf16_f32 v{t+2}, v{c1}, v{c1+1}')
                    k(f'v_cvt_pk_bf16_f32 v{t+3}, v{c1+2}, v{c1+3}')
                else:
                    k(f'v_mov_b32 v{t+2}, 0\nv_mov_b32 v{t+3}, 0')
                off = (b & ~1)*1024 + (b & 1)*128 if rowperm else b*1024
                hi, lo = off // 4096 * 4096, off % 4096
                k(f's_add_u32 s{S_T0}, s{S_OBASE}, {ap*rbtot*1024 + hi}')
                k(f'buffer_store_dwordx4 {vr(t,4)}, v1, {sr(SRD_O,4)}, s{S_T0} offen offset:{lo}{ST}')
                t += 4
        g.vmax = max(g.vmax, t)
    return f

def dep(*items):
    def f(k):
        for (s, mul, const, n) in items:
            if not C.PERSIST: continue
            if s is None: k(f's_mov_b32 s85, {const}')
            else:
                k(f's_mul_i32 s85, s{s}, {mul}')
                k(f's_add_u32 s85, s85, {const}')
            poll(k, 85, n)
    return f

def gemv_job(k, n, tag, s_goff, s_ldsrow, finish):
    make_srd(k, SRD_A, P_WMOD, D*6*D*2)
    make_srd(k, SRD_B, P_C, 2*D*2)
    L_SILU, L_RED = 0, 9216
    VW, VS, VAC, VU, VC = 16, 88, 124, 140, 148
    k(f's_lshl_b32 s{S_T0}, s{S_WAVE}, 10')
    k(f'v_lshl_add_u32 v3, v{VL}, 4, s{S_T0}')
    k(f'buffer_load_dwordx4 {vr(VC,4)}, v3, {sr(SRD_B,4)}, 0 offen')
    k(f's_lshl_b32 s{S_T0}, s{S_WAVE}, 3')
    k(f'v_lshrrev_b32 v4, 3, v{VL}')
    k(f'v_add_u32 v4, s{S_T0}, v4')
    k(f'v_and_b32 v5, 7, v{VL}')
    k('v_lshlrev_b32 v5, 4, v5')
    k(f's_mov_b32 s{S_T0}, 13824')
    k(f'v_mad_u32_u24 v5, v4, s{S_T0}, v5')
    def issue_w(i0, i1):
        for i in range(i0, i1):
            if i: k(f's_add_u32 s{s_goff}, s{s_goff}, {64*13824}')
            k(f'buffer_load_dwordx4 {vr(VW+4*i,4)}, v5, {sr(SRD_A,4)}, s{s_goff} offen')
    issue_w(0, 6)
    k('v_lshlrev_b32 v4, 2, v4')
    if s_ldsrow is not None: k(f'v_add_u32 v4, s{s_ldsrow}, v4')
    k('s_waitcnt vmcnt(6)')
    for j in range(4):
        k(f'v_lshlrev_b32 v{VC+4+2*j}, 16, v{VC+j}')
        k(f'v_and_b32 v{VC+5+2*j}, 0xffff0000, v{VC+j}')
    for j in range(8): k(f'v_mul_f32 v{VU+j}, {f32(-math.log2(math.e))}, v{VC+4+j}')
    for j in range(8): k(f'v_exp_f32 v{VU+j}, v{VU+j}')
    for j in range(8): k(f'v_add_f32 v{VU+j}, 1.0, v{VU+j}')
    for j in range(8): k(f'v_rcp_f32 v{VU+j}, v{VU+j}')
    for j in range(8): k(f'v_mul_f32 v{VC+4+j}, v{VU+j}, v{VC+4+j}')
    k('v_lshlrev_b32 v8, 1, v3')
    k('v_cmp_gt_u32 vcc, 9216, v8')
    k('s_and_saveexec_b64 s[80:81], vcc')
    k(f'ds_write_b128 v8, {vr(VC+4,4)} offset:{L_SILU}')
    k(f'ds_write_b128 v8, {vr(VC+8,4)} offset:{L_SILU+16}')
    k('s_mov_b64 exec, s[80:81]')
    k('s_waitcnt lgkmcnt(0)')
    k('s_barrier')
    stamp(k, 0)
    for i in range(n):
        k(f'ds_read2st64_b32 {vr(VS+2*i,2)}, v4 offset0:{i} offset1:{i+18}')
    issue_w(6, n)
    k(f'v_bfe_u32 v6, v{VL}, 1, 2\nv_lshlrev_b32 v6, 7, v6\nv_lshrrev_b32 v7, 3, v{VL}\nv_lshl_add_u32 v6, v7, 4, v6\nv_and_b32 v7, 1, v{VL}\nv_lshl_add_u32 v6, v7, 3, v6')
    k(f'v_lshrrev_b32 v7, 4, v{VL}\nv_lshlrev_b32 v7, 7, v7\nv_and_b32 v9, 7, v{VL}\nv_lshl_add_u32 v7, v9, 4, v7')
    k(f's_lshl_b32 s{S_T0}, s{S_WAVE}, 9')
    k(f'v_add_u32 v7, s{S_T0}, v7')
    k(f'v_lshlrev_b32 v9, 2, v{VL}')
    for j in range(16): k(f'v_mov_b32 v{VAC+j}, 0')
    k('s_waitcnt lgkmcnt(0)')
    for i in range(n):
        k(f's_waitcnt vmcnt({n - 1 - i})')
        for j in range(4):
            k(f'v_lshlrev_b32 v{VU+2*j}, 16, v{VW+4*i+j}')
            k(f'v_and_b32 v{VU+2*j+1}, 0xffff0000, v{VW+4*i+j}')
        for j in range(4):
            k(f'v_pk_fma_f32 {vr(VAC+4*j,2)}, {vr(VS+2*i,2)}, {vr(VU+2*j,2)}, {vr(VAC+4*j,2)} op_sel:[0,0,0] op_sel_hi:[1,0,1]')
            k(f'v_pk_fma_f32 {vr(VAC+4*j+2,2)}, {vr(VS+2*i,2)}, {vr(VU+2*j,2)}, {vr(VAC+4*j+2,2)} op_sel:[0,1,0] op_sel_hi:[1,1,1]')
    stamp(k, 1)
    k('s_nop 1')
    for j in range(8): k(f'v_permlane32_swap_b32 v{VAC+j}, v{VAC+8+j}')
    for j in range(8): k(f'v_add_f32 v{VAC+j}, v{VAC+j}, v{VAC+8+j}')
    k('s_nop 1')
    for j in range(4): k(f'v_permlane16_swap_b32 v{VAC+j}, v{VAC+4+j}')
    for j in range(4): k(f'v_add_f32 v{VAC+4+j}, v{VAC+j}, v{VAC+4+j}')
    k('s_nop 1')
    for j in range(4): k(f'v_add_f32_dpp v{VAC+j}, v{VAC+4+j}, v{VAC+4+j} row_ror:8 row_mask:0xf bank_mask:0xf')
    k(f'ds_write_b128 v7, {vr(VAC,4)} offset:{L_RED}')
    k('s_waitcnt lgkmcnt(0)')
    k('s_barrier')
    k(f's_cmp_lg_u32 s{S_WAVE}, 0')
    k(f's_cbranch_scc1 gv_nored{tag}')
    for w in range(8): k(f'ds_read_b64 {vr(VAC+2*w,2)}, v6 offset:{L_RED + 512*w}')
    k('s_waitcnt lgkmcnt(0)')
    for st in (8, 4, 2):
        for j in range(0, st, 2):
            k(f'v_pk_add_f32 {vr(VAC+j,2)}, {vr(VAC+j,2)}, {vr(VAC+st+j,2)}')
    stamp(k, 2)
    finish(k, VAC)
    stamp(k, 3)
    k.label(f'gv_nored{tag}')
    k('s_barrier')
    VMAX[0] = max(VMAX[0], 160); LMAX[0] = max(LMAX[0], 16384)

def gate_job(k, s_idx):
    k(f's_lshl_b32 s{S_G}, s{s_idx}, 7')
    k(f's_add_u32 s{S_G}, s{S_G}, 4608')
    def fin(k, VAC):
        ws_srd(k, SRD_O, 'GATE')
        k(f's_lshl_b32 s{S_T1}, s{s_idx}, 8')
        k(f's_add_u32 s{S_T2}, s{S_T1}, 4608')
        k(f'buffer_store_dword v{VAC}, v9, {sr(SRD_O,4)}, s{S_T1} offen sc1')
        k(f'buffer_store_dword v{VAC+1}, v9, {sr(SRD_O,4)}, s{S_T2} offen sc1')
        if C.PERSIST:
            k('s_waitcnt vmcnt(0)')
            k(f's_add_u32 s85, s{s_idx}, {FL["GATE"]}')
            set_flag(k, 85, 12)
    gemv_job(k, 18, 'g', S_G, None, fin)

def phase_A(k):
    phase_entry(k)
    k('s_cmp_ge_u32 s65, 23')
    k('s_cbranch_scc1 pa_mod')
    k('s_cmp_lt_u32 s65, 8')
    k('s_cbranch_scc1 pa_h')
    k('s_and_b32 s66, s64, 1')
    k('s_lshr_b32 s67, s64, 1')
    k('s_sub_u32 s68, 5, s66')
    k('s_mul_i32 s70, s68, 3')
    k('s_sub_u32 s69, s65, 8')
    k('s_cmp_ge_u32 s69, s70')
    k('s_cbranch_scc1 pa_spare')
    div_const(k, 71, 69, 5, 31)
    k('s_lshr_b32 s72, s69, 2')
    k('s_cmp_eq_u32 s66, 0')
    k('s_cselect_b32 s71, s71, s72')
    k('s_mul_i32 s72, s71, s68')
    k('s_sub_u32 s72, s69, s72')
    k('s_lshl_b32 s74, s71, 1')
    k('s_add_u32 s74, s74, s72')
    mod_const(k, 74, 6, 16)
    k('s_mul_i32 s74, s74, 3')
    k('s_mul_i32 s73, s66, 5')
    k('s_add_u32 s72, s72, s73')
    k('s_mul_i32 s73, s67, 3')
    k('s_add_u32 s71, s71, s73')
    k(f's_mul_i32 s{S_ABASE}, s72, {128*6912}')
    k(f's_mul_i32 s{S_BBASE}, s71, {96*6912}')
    k(f's_add_u32 s{S_BBASE}, s{S_BBASE}, {D*2}')
    k('s_lshl_b32 s75, s72, 2')
    k('s_mul_i32 s76, s71, 6')
    k('s_mul_i32 s77, s71, 9')
    k('s_add_u32 s77, s77, s72')
    k(f's_add_u32 s78, s77, {FL["WQK"]}')
    args_ready(k)
    make_srd(k, SRD_A, P_WQKV, D*3*D*2)
    ws_srd(k, SRD_O, 'WQK')
    g = Gemm('wqk', Opnd('row', 8, SRD_A, S_ABASE, stride=6912, perm=True), Opnd('row', 6, SRD_A, S_BBASE, stride=6912, perm=True), 2, 2, 18, C.WQK_NS, rot=R('wqk'))
    def a_pre(k):
        k('s_lshl_b32 s79, s77, 2')
        k(f's_add_u32 s79, s79, s{S_WAVE}')
        prefetch_cols(k, SRD_A, 36, 0, 79, 432, 12, 1, 2)
    def a_end(k):
        if C.PERSIST: wait_init(k)
    gemm_role(k, g, epi_frag16(72, 75, 76), s_flag=78, npre=C.WQK_NPRE, cons_first=(a_pre if C.APRE else None), end_hookA=a_end)
    k.label('pa_mod')
    if 'mod' in C.SKIP: k('s_endpgm')
    k('s_mul_i32 s73, s64, 9')
    k('s_add_u32 s73, s73, s65')
    k('s_sub_u32 s73, s73, 23')
    k('s_cmp_ge_u32 s73, 36')
    k('s_cselect_b32 s74, 1, 0')
    k('s_mul_i32 s75, s74, 36')
    k('s_sub_u32 s75, s73, s75')
    k(f's_mul_i32 s{S_G}, s74, {576*13824}')
    k(f's_lshl_b32 s{S_T0}, s75, 7')
    k(f's_add_u32 s{S_G}, s{S_G}, s{S_T0}')
    k('s_mul_i32 s76, s74, 2304')
    args_ready(k)
    def fin(k, VAC):
        ws_srd(k, SRD_O, 'MODP')
        k('s_cmp_ge_u32 s75, 18')
        k(f's_cselect_b32 s{S_T2}, 1.0, 0')
        k('s_cmp_eq_u32 s74, 0')
        k(f's_cselect_b32 s{S_T2}, s{S_T2}, 0')
        k(f'v_add_f32 v{VAC}, s{S_T2}, v{VAC}\nv_add_f32 v{VAC+1}, s{S_T2}, v{VAC+1}')
        k(f's_mul_i32 s{S_T1}, s74, 18432')
        k(f's_lshl_b32 s{S_T0}, s75, 8')
        k(f's_add_u32 s{S_T1}, s{S_T1}, s{S_T0}')
        k(f's_add_u32 s{S_T2}, s{S_T1}, 9216')
        k(f'buffer_store_dword v{VAC}, v9, {sr(SRD_O,4)}, s{S_T1} offen sc1')
        k(f'buffer_store_dword v{VAC+1}, v9, {sr(SRD_O,4)}, s{S_T2} offen sc1')
        wait_init(k, 12)
        k(f's_add_u32 s85, s73, {FL["MOD"]}')
        set_flag(k, 85, 12)
    gemv_job(k, 9, 'm', S_G, 76, fin)
    if not C.PERSIST:
        k('s_sub_u32 s73, s2, 184')
        k('s_cmp_ge_u32 s73, 18')
        k('s_cbranch_scc1 pa_modpf')
        gate_job(k, 73)
        phase_exit(k)
        k.label('pa_modpf')
        k('s_sub_u32 s79, s73, 18')
        k('s_lshl_b32 s79, s79, 3')
        k(f's_add_u32 s79, s79, s{S_WAVE}')
        make_srd(k, SRD_A, P_WQKV, D*3*D*2)
        prefetch_cols(k, SRD_A, 18, 4608, 79, 432, 14, 8, 9)
        prefetch_flat(k, P_WKVC, D*2*D*2, 79, 432, 14, vtmp=8)
    phase_exit(k, drain=False)
    k.label('pa_spare')
    k('s_mul_i32 s73, s67, 3')
    k('s_add_u32 s73, s73, s65')
    k('s_sub_u32 s73, s73, 20')
    args_ready(k)
    k(f'v_lshlrev_b32 v8, 4, v{VL}')
    k('v_mov_b32 v4, 0\nv_mov_b32 v5, 0\nv_mov_b32 v6, 0\nv_mov_b32 v7, 0')
    k('s_lshl_b32 s79, s73, 3')
    k(f's_add_u32 s79, s79, s{S_WAVE}')
    k(f's_lshl_b32 s{S_T0}, s79, 10')
    k(f'buffer_store_dwordx4 v[4:7], v8, {sr(SRD_F,4)}, s{S_T0} offen sc1')
    k(f's_add_u32 s{S_T0}, s{S_T0}, {96*1024}')
    k(f'buffer_store_dwordx4 v[4:7], v8, {sr(SRD_F,4)}, s{S_T0} offen sc1')
    k('s_waitcnt vmcnt(0)')
    k('s_barrier')
    k(f's_cmp_lg_u32 s{S_WAVE}, 0')
    k('s_cbranch_scc1 pa_noinit')
    k(f's_and_b32 s{S_T0}, s73, 1')
    k(f's_lshl_b32 s{S_T0}, s{S_T0}, 7')
    k(f's_lshl_b32 s{S_T1}, s73, 2')
    k(f's_add_u32 s{S_T0}, s{S_T0}, s{S_T1}')
    k(f'v_mov_b32 v8, 1\nv_mov_b32 v9, s{S_T0}')
    k('s_mov_b64 exec, 1')
    k(f'global_store_dword v9, v8, s[{P_DBG}:{P_DBG+1}] sc1')
    k('s_mov_b64 exec, -1')
    k.label('pa_noinit')
    k('s_lshl_b32 s79, s73, 3')
    k(f's_add_u32 s79, s79, s{S_WAVE}')
    if not C.PERSIST and 'pf' not in C.SKIP:
        prefetch_flat(k, P_WO, D*D*2, 79, 96, 14, vtmp=8)
        prefetch_flat(k, P_Y, 2*77*D*2, 79, 96, 14, vtmp=8)
    phase_exit(k, drain=False)
    k.label('pa_h')
    if 'h' in C.SKIP: k('s_endpgm')
    k('s_lshl_b32 s73, s64, 3')
    k('s_add_u32 s73, s73, s65')
    args_ready(k)
    def h_pf(k):
        if not C.PERSIST: return
        k('s_lshl_b32 s79, s73, 3')
        k(f's_add_u32 s79, s79, s{S_WAVE}')
        prefetch_flat(k, P_WKVC, D*2*D*2, 79, 512, 14, maxper=1, vtmp=8)
        l1 = k.newlabel('hpf')
        k('s_cmp_ge_u32 s79, 180')
        k(f's_cbranch_scc1 {l1}')
        k('s_cmp_ge_u32 s79, 136')
        k(f's_cselect_b32 s{SRD_Y}, s{P_Y}, s{P_WKVC}')
        k(f's_cselect_b32 s{SRD_Y+1}, s{P_Y+1}, s{P_WKVC+1}')
        k(f's_mov_b32 s{S_T1}, {D*2*D*2}')
        k(f's_cselect_b32 s{SRD_Y+2}, {2*77*D*2}, s{S_T1}')
        k(f's_mov_b32 s{S_T1}, {512*8192}')
        k(f's_cselect_b32 s{S_T1}, {(-136*8192) & 0xffffffff}, s{S_T1}')
        k(f's_add_u32 s{S_T0}, s{S_T0}, s{S_T1}')
        k(f'buffer_load_dword v14, v8, {sr(SRD_Y,4)}, s{S_T0} offen')
        k.label(l1)
    L_STAT, L_MOD = 0, 2048
    VN, VM, VXD = 16, 112, 208
    k(f's_cmp_ge_u32 s{S_WAVE}, 6')
    k('s_cbranch_scc1 pa_hhelp')
    make_srd(k, SRD_X, P_X, NR*D*2)
    k(f'v_lshrrev_b32 v6, 3, v{VL}\ns_mov_b32 s{S_T0}, 2304\nv_mul_u32_u24 v6, s{S_T0}, v6\nv_and_b32 v7, 7, v{VL}\nv_lshl_add_u32 v6, v7, 4, v6')
    k(f's_mul_i32 s75, s73, {32*2304}')
    k(f's_mul_i32 s76, s{S_WAVE}, 384')
    k('s_add_u32 s75, s75, s76')
    for rg in range(4):
        for sg in range(3):
            k(f'buffer_load_dwordx4 {vr(VM+(rg*3+sg)*4,4)}, v6, {sr(SRD_X,4)}, s75 offen offset:{128*sg}')
        if rg < 3: k(f's_add_u32 s75, s75, {8*2304}')
    k(f'v_lshlrev_b32 v7, 5, v7\nv_lshrrev_b32 v8, 3, v{VL}\nv_lshl_add_u32 v7, v8, 2, v7')
    k(f's_mov_b32 s77, 0x3f803f80')
    for rg in range(4):
        k(f's_waitcnt vmcnt({9 - 3*rg})')
        for j in range(12): k(f'ds_bpermute_b32 v{VXD+12*rg+j}, v7, v{VM+12*rg+j}')
    stamp(k, 0)
    for rg in range(4):
        k(f'v_mov_b32 v{VN+2*rg}, 0\nv_mov_b32 v{VN+2*rg+1}, 0')
    k('s_waitcnt lgkmcnt(0)')
    for j in range(12):
        for rg in range(4):
            k(f'v_dot2_f32_bf16 v{VN+rg}, v{VXD+12*rg+j}, s77, v{VN+rg}')
            k(f'v_dot2_f32_bf16 v{VN+4+rg}, v{VXD+12*rg+j}, v{VXD+12*rg+j}, v{VN+4+rg}')
    k('s_nop 3')
    for j in range(4): k(f'v_permlane32_swap_b32 v{VN+j}, v{VN+4+j}')
    for j in range(4): k(f'v_add_f32 v{VN+j}, v{VN+j}, v{VN+4+j}')
    k('s_nop 1')
    for j in range(2): k(f'v_permlane16_swap_b32 v{VN+j}, v{VN+2+j}')
    for j in range(2): k(f'v_add_f32 v{VN+2+j}, v{VN+j}, v{VN+2+j}')
    k('s_nop 1')
    for j in range(2): k(f'v_add_f32_dpp v{VN+j}, v{VN+2+j}, v{VN+2+j} row_ror:8 row_mask:0xf bank_mask:0xf')
    k(f'v_and_b32 v9, 7, v{VL}\nv_mul_u32_u24 v9, 192, v9\nv_lshrrev_b32 v10, 4, v{VL}\nv_lshl_add_u32 v10, v10, 3, v9')
    k(f's_lshl_b32 s{S_T0}, s{S_WAVE}, 5')
    k(f'v_add_u32 v10, s{S_T0}, v10')
    k(f'ds_write_b64 v10, {vr(VN,2)} offset:{L_STAT}')
    k('s_waitcnt lgkmcnt(0)')
    k('s_barrier')
    for w in range(6):
        k(f'ds_read_b128 {vr(VM+8*w,4)}, v9 offset:{L_STAT + 32*w}')
        k(f'ds_read_b128 {vr(VM+8*w+4,4)}, v9 offset:{L_STAT + 32*w + 16}')
    k('s_waitcnt lgkmcnt(0)')
    for w in range(1, 6):
        for j in range(0, 8, 2): k(f'v_pk_add_f32 {vr(VM+j,2)}, {vr(VM+j,2)}, {vr(VM+8*w+j,2)}')
    for rg in range(4):
        k(f'v_mul_f32 v{VM+rg}, {f32(1.0/D)}, v{VM+rg}')
        k(f'v_mul_f32 v{VM+4+rg}, {f32(1.0/D)}, v{VM+4+rg}')
        k(f'v_fma_f32 v{VM+4+rg}, -v{VM+rg}, v{VM+rg}, v{VM+4+rg}')
        k(f'v_max_f32 v{VM+4+rg}, 0, v{VM+4+rg}')
        k(f'v_add_f32 v{VM+4+rg}, {f32(1e-5)}, v{VM+4+rg}')
        k(f'v_rsq_f32 v{VM+4+rg}, v{VM+4+rg}')
        k('s_nop 0')
        k(f'v_mul_f32 v{VM+rg}, v{VM+rg}, v{VM+4+rg}')
    for rg in range(4):
        for j in range(12):
            n = VN + 24*rg + 2*j
            k(f'v_lshlrev_b32 v{n}, 16, v{VXD+12*rg+j}')
            k(f'v_and_b32 v{n+1}, 0xffff0000, v{VXD+12*rg+j}')
            k(f'v_fma_f32 v{n}, v{n}, v{VM+4+rg}, -v{VM+rg}')
            k(f'v_fma_f32 v{n+1}, v{n+1}, v{VM+4+rg}, -v{VM+rg}')
    ws_srd(k, SRD_A, 'H')
    k(f'v_lshrrev_b32 v8, 3, v{VL}\nv_lshlrev_b32 v8, 5, v8')
    k(f's_mul_i32 s{S_T0}, s{S_WAVE}, 768')
    k(f'v_add_u32 v8, s{S_T0}, v8')
    k(f'v_lshrrev_b32 v9, 5, v{VL}\nv_lshlrev_b32 v9, 17, v9\nv_bfe_u32 v10, v{VL}, 3, 2\nv_lshl_add_u32 v9, v10, 8, v9\nv_and_b32 v10, 7, v{VL}\nv_lshl_add_u32 v9, v10, 4, v9')
    k(f's_mul_i32 s{S_G}, s{S_WAVE}, {6*128}')
    k('s_lshl_b32 s76, s73, 1')
    k(f's_add_u32 s{S_G}, s{S_G}, s76')
    k(f's_lshl_b32 s{S_G}, s{S_G}, 10')
    stamp(k, 1)
    k('s_barrier')
    stamp(k, 2)
    for sg in range(3):
        m = VM + 32*sg
        for ks in range(2):
            for kind in range(2):
                for h in range(2):
                    k(f'ds_read_b128 {vr(m+16*ks+8*kind+4*h,4)}, v8 offset:{L_MOD + ks*9216 + kind*4608 + sg*256 + 16*h}')
    for sg in range(3):
        m = VM + 32*sg
        k(f's_waitcnt lgkmcnt({min(15, 8*(2-sg))})')
        for j in range(0, 16, 2): k(f'v_pk_add_f32 {vr(m+j,2)}, {vr(m+j,2)}, {vr(m+16+j,2)}')
        k(f's_add_u32 s{S_T0}, s{S_G}, {sg*2*128*1024}')
        for rg in range(4):
            n = VN + 24*rg + 8*sg
            o = VXD + 12*rg + 4*sg
            for j in range(0, 8, 2): k(f'v_pk_fma_f32 {vr(n+j,2)}, {vr(n+j,2)}, {vr(m+8+j,2)}, {vr(m+j,2)}')
            for j in range(4): k(f'v_cvt_pk_bf16_f32 v{o+j}, v{n+2*j}, v{n+2*j+1}')
            k(f'buffer_store_dwordx4 {vr(o,4)}, v9, {sr(SRD_A,4)}, s{S_T0} offen offset:{(rg>>1)*1024 + (rg&1)*128}{ST}')
    stamp(k, 3)
    k(f's_add_u32 s85, s73, {FL["H"]}')
    signal(k, 85, 6, 12)
    k.label('pa_hout')
    h_pf(k)
    phase_exit(k, drain=not C.PERSIST)
    k.label('pa_hhelp')
    k(f's_cmp_eq_u32 s{S_WAVE}, 7')
    k('s_cbranch_scc1 pa_hpoll')
    if C.TLBW:
        sh = C.TLBW
        k(f'v_lshlrev_b32 v8, 3, v{VL}')
        k('v_add_u32 v8, s65, v8')
        k(f'v_lshlrev_b32 v8, {sh}, v8')
        span = 512 << sh
        for ptr, nb in [(P_WS, _o), (P_OUT, NR*D*2), (P_WQKV, D*3*D*2), (P_WO, D*D*2), (P_WQC, D*D*2), (P_WKVC, D*2*D*2), (P_WOC, D*D*2), (P_WMOD, D*6*D*2), (P_Y, 2*77*D*2)]:
            make_srd(k, SRD_Y, ptr, nb)
            for i in range(-(-nb // span)):
                k(f's_mov_b32 s{S_T0}, {i*span}')
                k(f'buffer_load_dword v14, v8, {sr(SRD_Y,4)}, s{S_T0} offen sc1')
    k.label('pa_hidle')
    k('s_waitcnt lgkmcnt(0)')
    k('s_barrier')
    k('s_barrier')
    if C.PERSIST: k('s_barrier')
    k('s_branch pa_hout')
    k.label('pa_hpoll')
    wait_init(k)
    k('s_barrier')
    k(f'v_min_u32 v8, 35, v{VL}')
    k('v_lshlrev_b32 v8, 7, v8')
    k(f's_mov_b32 s{S_T0}, {FL["MOD"]*128}')
    k(f's_mov_b32 s{S_T1}, {(FL["MOD"]+36)*128}')
    k(f's_mov_b32 s{S_CNT}, {SPIN}')
    k('s_mov_b32 exec_hi, 15')
    k.label('pa_mp')
    k(f'buffer_load_dword v9, v8, {sr(SRD_F,4)}, s{S_T0} offen sc1')
    k(f'buffer_load_dword v10, v8, {sr(SRD_F,4)}, s{S_T1} offen sc1')
    k(f's_sub_u32 s{S_CNT}, s{S_CNT}, 1')
    k('s_waitcnt vmcnt(0)')
    k('v_add_u32 v9, v9, v10')
    k('v_cmp_ne_u32 vcc, 2, v9')
    k(f's_cmp_eq_u32 s{S_CNT}, 0')
    k('s_cbranch_scc1 pa_mpd')
    k('s_cmp_eq_u64 vcc, 0')
    k('s_cbranch_scc1 pa_mpd')
    k('s_sleep 2')
    k('s_branch pa_mp')
    k.label('pa_mpd')
    k('s_mov_b64 exec, -1')
    stamp(k, 0)
    ws_srd(k, SRD_O, 'MODP')
    k(f'v_lshlrev_b32 v8, 4, v{VL}')
    k('s_lshr_b32 s79, s73, 5')
    k('s_mul_i32 s79, s79, 9216')
    for ks in range(2):
        for c in range(9):
            if c % 4 == 0:
                k(f's_mov_b32 m0, {L_MOD + ks*9216 + c*1024}')
                k(f's_add_u32 s{S_T0}, s79, {ks*18432 + c*1024}')
            k(f'buffer_load_dwordx4 v8, {sr(SRD_O,4)}, s{S_T0} offen offset:{(c%4)*1024} sc1 lds')
    k('s_waitcnt vmcnt(0)')
    k('s_barrier')
    if C.PERSIST: k('s_barrier')
    k('s_branch pa_hout')
    VMAX[0] = 256

def phase_B(k):
    phase_entry(k)
    k('s_cmp_ge_u32 s65, 18')
    k('s_cbranch_scc1 pb_wvo')
    k('s_mul_i32 s66, s64, 18')
    k('s_add_u32 s66, s66, s65')
    div_const(k, 69, 66, 48, 255)
    k('s_mul_i32 s70, s69, 48')
    k('s_sub_u32 s70, s66, s70')
    div_const(k, 67, 70, 3, 63)
    k('s_mul_i32 s71, s67, 3')
    k('s_sub_u32 s71, s70, s71')
    k('s_mul_i32 s68, s69, 3')
    k('s_add_u32 s68, s68, s71')
    k('s_lshl_b32 s74, s71, 1')
    k('s_add_u32 s74, s74, s67')
    mod_const(k, 74, 6, 31)
    k('s_mul_i32 s74, s74, 3')
    k('s_mul_i32 s66, s67, 9')
    k('s_add_u32 s66, s66, s68')
    k(f's_lshl_b32 s{S_ABASE}, s68, 13')
    k(f's_lshl_b32 s{S_BBASE}, s67, 13')
    k('s_lshl_b32 s75, s68, 2')
    k('s_lshl_b32 s76, s67, 3')
    k(f's_add_u32 s78, s66, {FL["T"]}')
    k('s_lshl_b32 s69, s68, 2')
    div_const(k, 69, 69, 3, 40)
    args_ready(k)
    ws_srd(k, SRD_A, 'WQK'); ws_srd(k, SRD_B, 'H'); ws_srd(k, SRD_O, 'T')
    g1 = Gemm('tt', Opnd('frag', 8, SRD_A, S_ABASE, rbtot=72, aux=LD()), Opnd('frag', 8, SRD_B, S_BBASE, rbtot=128, aux=LD()), 2, 2, 18, 4, rot=R('tt'))
    gemm_role(k, g1, epi_frag16(128, 75, 76), s_flag=78, depA=dep((69, 9, FL['WQK'], 18)), depB=dep((67, 4, FL['H'], 4)))
    k.label('pb_wvo')
    k('s_mul_i32 s66, s64, 9')
    k('s_add_u32 s66, s66, s65')
    k('s_sub_u32 s66, s66, 23')
    k('s_cmp_ge_u32 s65, 23')
    k('s_cbranch_scc1 pb_wvo2')
    k('s_bitcmp1_b32 s64, 0')
    k('s_cbranch_scc0 pb_kvc_e')
    k('s_cmp_lt_u32 s65, 20')
    k('s_cbranch_scc1 pb_kvc_o')
    k('s_cmp_eq_u32 s64, 7')
    k('s_cbranch_scc1 pb_idle')
    k('s_lshr_b32 s66, s64, 1')
    k('s_mul_i32 s66, s66, 3')
    k('s_add_u32 s66, s66, s65')
    k('s_add_u32 s66, s66, 52')
    k.label('pb_wvo2')
    div_const(k, 69, 66, 9, 255)
    k('s_mul_i32 s70, s69, 9')
    k('s_sub_u32 s70, s66, s70')
    div_const(k, 67, 69, 3, 15)
    k('s_mul_i32 s68, s67, 3')
    k('s_sub_u32 s68, s69, s68')
    div_const(k, 71, 70, 3, 15)
    k('s_mul_i32 s67, s67, 3')
    k('s_add_u32 s67, s67, s71')
    k('s_mul_i32 s71, s71, 3')
    k('s_sub_u32 s71, s70, s71')
    k('s_mul_i32 s68, s68, 3')
    k('s_add_u32 s68, s68, s71')
    k('s_mul_i32 s66, s67, 9')
    k('s_add_u32 s66, s66, s68')
    k('s_add_u32 s74, s67, s68')
    mod_const(k, 74, 3, 31)
    k('s_mul_i32 s74, s74, 6')
    k(f's_mul_i32 s{S_ABASE}, s68, {128*6912}')
    k(f's_add_u32 s{S_ABASE}, s{S_ABASE}, {2*D*2}')
    k(f's_lshl_b32 s{S_BBASE}, s67, 8')
    k('s_lshl_b32 s75, s68, 2')
    k('s_lshl_b32 s76, s67, 3')
    k(f's_add_u32 s78, s66, {FL["WVO"]}')
    args_ready(k)
    make_srd(k, SRD_A, P_WQKV, D*3*D*2); make_srd(k, SRD_B, P_WO, D*D*2); ws_srd(k, SRD_O, 'WVO')
    g2 = Gemm('wvo', Opnd('row', 8, SRD_A, S_ABASE, stride=6912, perm=True), Opnd('col', 8, SRD_B, S_BBASE, stride=2304), 2, 2, 18, 4, rot=R('wvo'))
    def wvo_exit(k):
        if not C.PERSIST: return
        k('s_lshl_b32 s79, s66, 2')
        k(f's_and_b32 s{S_T1}, s{S_WAVE}, 3')
        k(f's_add_u32 s79, s79, s{S_T1}')
        k(f's_cmp_ge_u32 s{S_WAVE}, 4')
        k(f's_cselect_b32 s{SRD_Y}, s{P_WQC}, s{P_WOC}')
        k(f's_cselect_b32 s{SRD_Y+1}, s{P_WQC+1}, s{P_WOC+1}')
        k(f's_mov_b32 s{SRD_Y+2}, {D*D*2}')
        k(f's_mov_b32 s{SRD_Y+3}, 0x00020000')
        k(f'v_lshlrev_b32 v8, 7, v{VL}')
        k(f's_lshl_b32 s{S_T0}, s79, 13')
        k(f'buffer_load_dword v14, v8, {sr(SRD_Y,4)}, s{S_T0} offen')
    gemm_role(k, g2, epi_frag16(72, 75, 76, rowperm=True), s_flag=78, end_hookA=(wait_init if C.PERSIST else None), exit_hook=wvo_exit)
    k.label('pb_kvc_o')
    k('s_add_u32 s66, s64, s65')
    k('s_sub_u32 s66, s66, 3')
    k('s_branch pb_kvc')
    k.label('pb_kvc_e')
    k('s_cmp_eq_u32 s65, 22')
    k('s_cbranch_scc1 pb_idle')
    k('s_lshl_b32 s66, s64, 1')
    k('s_add_u32 s66, s66, s65')
    k('s_sub_u32 s66, s66, 18')
    k.label('pb_kvc')
    k('s_and_b32 s74, s66, 1')
    k('s_mul_i32 s74, s74, 9')
    k('s_and_b32 s67, s66, 1')
    k('s_lshr_b32 s68, s66, 1')
    k(f's_mul_i32 s{S_ABASE}, s68, 384')
    k(f's_mul_i32 s{S_BBASE}, s67, {77*2304}')
    k(f's_add_u32 s69, s{S_BBASE}, {77*2304}')
    k('s_mul_i32 s78, s67, 12')
    k('s_add_u32 s78, s78, s68')
    k(f's_add_u32 s78, s78, {FL["KVC"]}')
    args_ready(k)
    make_srd(k, SRD_A, P_WKVC, D*2*D*2); make_srd(k, SRD_B, P_Y, 's69'); ws_srd(k, SRD_O, 'KVC')
    g3 = Gemm('kvc', Opnd('col', 12, SRD_A, S_ABASE, stride=4608), Opnd('row', 5, SRD_B, S_BBASE, stride=2304), 4, 1, 18, 4, rot=R('kvc'))
    def epi_kvc(k, g):
        k(f'v_and_b32 v1, 15, v{VL}\nv_lshlrev_b32 v1, 4, v1\nv_lshrrev_b32 v{VT}, 5, v{VL}\nv_lshl_add_u32 v1, v{VT}, 8, v1')
        k(f'v_bfe_u32 v{VT}, v{VL}, 4, 1\nv_lshl_add_u32 v1, v{VT}, 3, v1')
        k('s_mul_i32 s70, s68, 12')
        k(f's_mul_i32 s71, s{S_WA}, 3')
        k('s_add_u32 s70, s70, s71')
        k('s_mul_i32 s72, s67, 5120')
        t = g.VF
        for i in range(3):
            k(f's_add_u32 s71, s70, {i}')
            k(f's_lshr_b32 s{S_T0}, s71, 1')
            k(f's_mul_i32 s{S_T0}, s{S_T0}, 10240')
            k('s_and_b32 s71, s71, 1')
            k('s_lshl_b32 s71, s71, 9')
            k(f's_add_u32 s{S_T0}, s{S_T0}, s71')
            k(f's_add_u32 s{S_T0}, s{S_T0}, s72')
            k(f's_add_u32 s{S_T1}, s{S_T0}, 4096')
            for b in range(5):
                c0 = acc(g, i, b)
                k(f'v_cvt_pk_bf16_f32 v{t}, v{c0}, v{c0+1}')
                k(f'v_cvt_pk_bf16_f32 v{t+1}, v{c0+2}, v{c0+3}')
                k(f'buffer_store_dwordx2 {vr(t,2)}, v1, {sr(SRD_O,4)}, s{S_T0 if b < 4 else S_T1} offen offset:{(b%4)*1024}{ST}')
                t += 2
    gemm_role(k, g3, epi_kvc, s_flag=78)
    k.label('pb_idle')
    args_ready(k)
    if C.PERSIST: wait_init(k)
    k('s_lshr_b32 s79, s64, 1')
    k('s_sub_u32 s78, s65, 16')
    k('s_cmp_eq_u32 s64, 7')
    k('s_cselect_b32 s79, s78, s79')
    k('s_lshl_b32 s79, s79, 3')
    k(f's_add_u32 s79, s79, s{S_WAVE}')
    if C.PERSIST:
        make_srd(k, SRD_Y, P_WMOD, D*6*D*2)
        prefetch_cols(k, SRD_Y, 18, 4608, 79, 56, 14, 8, 9, stride=13824)
    phase_exit(k, drain=False)

def phase_C(k):
    phase_entry(k)
    k('s_lshr_b32 s74, s65, 2')
    k('s_add_u32 s74, s74, s65')
    k('s_and_b32 s74, s74, 3')
    k('s_mul_i32 s74, s74, 9')
    k('s_lshr_b32 s74, s74, 1')
    k('s_cmp_ge_u32 s65, 16')
    k('s_cbranch_scc1 pc_v')
    k('s_lshr_b32 s66, s64, 2')
    k('s_and_b32 s67, s64, 1')
    k('s_lshl_b32 s67, s67, 2')
    k('s_lshr_b32 s68, s65, 2')
    k('s_add_u32 s67, s67, s68')
    k('s_bfe_u32 s68, s64, 0x10001')
    k('s_lshl_b32 s68, s68, 2')
    k('s_and_b32 s69, s65, 3')
    k('s_add_u32 s68, s68, s69')
    k('s_lshl_b32 s69, s66, 3')
    k('s_add_u32 s71, s69, s68')
    k(f's_lshl_b32 s{S_ABASE}, s71, 13')
    k('s_add_u32 s70, s69, s67')
    k(f's_lshl_b32 s{S_BBASE}, s70, 13')
    k('s_lshl_b32 s75, s68, 2')
    k('s_lshl_b32 s76, s67, 3')
    k('s_lshl_b32 s77, s66, 21')
    k('s_lshl_b32 s72, s70, 3')
    k('s_add_u32 s72, s72, s68')
    k(f's_add_u32 s72, s72, {FL["P"]}')
    args_ready(k)
    ws_srd(k, SRD_A, 'H'); ws_srd(k, SRD_B, 'T'); ws_srd(k, SRD_O, 'P'); ws_srd(k, SRD_X, 'ST')
    g1 = Gemm('ss', Opnd('frag', 8, SRD_A, S_ABASE, rbtot=128, aux=LD()), Opnd('frag', 8, SRD_B, S_BBASE, rbtot=128, aux=LD()), 1, 4, 18, 4, rot=R('ss'))
    def epi_s(k, g):
        k(f's_mov_b32 s78, {f32(CSC)}')
        k(f's_mov_b32 s79, 0x3f803f80')
        VM = (g.VX + 3) // 4 * 4
        k(f's_lshl_b32 s{S_T0}, s75, 6')
        k(f's_add_u32 s{S_T0}, s{S_T0}, s76')
        k(f's_lshl_b32 s{S_T1}, s{S_WB}, 1')
        k(f's_add_u32 s{S_T0}, s{S_T0}, s{S_T1}')
        k(f's_lshl_b32 s{S_OBASE}, s{S_T0}, 10')
        k(f's_add_u32 s{S_OBASE}, s{S_OBASE}, s77')
        k(f'v_lshlrev_b32 v1, 4, v{VL}')
        t = g.VF
        for b in range(2):
            regs = [acc(g, a, b) + r for a in range(8) for r in range(4)]
            m = VM + b; m2 = VM + 4 + b
            k(f'v_max3_f32 v{m}, v{regs[0]}, v{regs[1]}, v{regs[2]}')
            k(f'v_max3_f32 v{m2}, v{regs[3]}, v{regs[4]}, v{regs[5]}')
            i = 6; tog = 0
            while i < 32:
                d = m if tog == 0 else m2
                k(f'v_max3_f32 v{d}, v{d}, v{regs[i]}, v{regs[i+1]}')
                i += 2; tog ^= 1
            k(f'v_max_f32 v{m}, v{m}, v{m2}')
        for sw in ('v_permlane32_swap_b32', 'v_permlane16_swap_b32'):
            k(f'v_mov_b32 v{VM+4}, v{VM}\nv_mov_b32 v{VM+5}, v{VM+1}')
            k('s_nop 0')
            k(f'{sw} v{VM}, v{VM+4}')
            k(f'{sw} v{VM+1}, v{VM+5}')
            k('s_nop 0')
            k(f'v_max_f32 v{VM}, v{VM}, v{VM+4}\nv_max_f32 v{VM+1}, v{VM+1}, v{VM+5}')
        k(f'v_mul_f32 v{VM}, s78, v{VM}\nv_mul_f32 v{VM+1}, s78, v{VM+1}')
        k(f'v_mov_b32 v{VM+2}, 0\nv_mov_b32 v{VM+3}, 0')
        for ap in range(4):
            for b in range(2):
                regs = [acc(g, 2*ap+h, b) + r for h in range(2) for r in range(4)]
                for r in regs: k(f'v_fma_f32 v{r}, v{r}, s78, -v{VM+b}')
                for r in regs: k(f'v_exp_f32 v{r}, v{r}')
                k(f's_add_u32 s{S_T0}, s{S_OBASE}, {ap*64*1024}')
                for j in range(4): k(f'v_cvt_pk_bf16_f32 v{t+j}, v{regs[2*j]}, v{regs[2*j+1]}')
                k(f'buffer_store_dwordx4 {vr(t,4)}, v1, {sr(SRD_O,4)}, s{S_T0} offen offset:{b*1024}{ST}')
                for j in range(4): k(f'v_dot2_f32_bf16 v{VM+2+b}, v{t+j}, s79, v{VM+2+b}')
                t += 4
        k('s_nop 2')
        for sw in ('v_permlane32_swap_b32', 'v_permlane16_swap_b32'):
            k(f'v_mov_b32 v{VM+4}, v{VM+2}\nv_mov_b32 v{VM+5}, v{VM+3}')
            k('s_nop 0')
            k(f'{sw} v{VM+2}, v{VM+4}')
            k(f'{sw} v{VM+3}, v{VM+5}')
            k('s_nop 0')
            k(f'v_add_f32 v{VM+2}, v{VM+2}, v{VM+4}\nv_add_f32 v{VM+3}, v{VM+3}, v{VM+5}')
        k(f's_lshl_b32 s{S_T0}, s70, 2')
        k(f's_add_u32 s{S_T0}, s{S_T0}, s{S_WB}')
        k(f's_lshl_b32 s{S_T0}, s{S_T0}, 3')
        k(f's_add_u32 s{S_T0}, s{S_T0}, s68')
        k(f's_lshl_b32 s{S_T0}, s{S_T0}, 8')
        k('s_mov_b64 exec, 0xffff')
        k(f'buffer_store_dwordx4 {vr(VM,4)}, v1, {sr(SRD_X,4)}, s{S_T0} offen{ST}')
        k('s_mov_b64 exec, -1')
        g.vmax = VM + 6
    gemm_role(k, g1, epi_s, s_flag=72, depA=dep((71, 4, FL['H'], 4)), depB=dep((70, 9, FL['T'], 9)))
    k.label('pc_v')
    k('s_lshr_b32 s66, s64, 1')
    k('s_lshl_b32 s66, s66, 2')
    k('s_and_b32 s67, s65, 3')
    k('s_add_u32 s66, s66, s67')
    k('s_and_b32 s67, s64, 1')
    k('s_lshl_b32 s67, s67, 2')
    k('s_bfe_u32 s68, s65, 0x20002')
    k('s_add_u32 s67, s67, s68')
    k(f's_lshl_b32 s{S_ABASE}, s66, 13')
    k(f's_mul_i32 s{S_BBASE}, s67, {9*1024}')
    k('s_lshl_b32 s75, s66, 2')
    k('s_mul_i32 s76, s67, 9')
    k('s_lshr_b32 s72, s66, 3')
    k('s_lshl_b32 s72, s72, 3')
    k('s_add_u32 s72, s72, s67')
    k('s_lshl_b32 s72, s72, 3')
    k('s_and_b32 s73, s66, 7')
    k('s_add_u32 s72, s72, s73')
    k(f's_add_u32 s72, s72, {FL["V"]}')
    args_ready(k)
    ws_srd(k, SRD_A, 'H'); ws_srd(k, SRD_B, 'WVO'); ws_srd(k, SRD_O, 'VT')
    g2 = Gemm('vv', Opnd('frag', 8, SRD_A, S_ABASE, rbtot=128, aux=LD()), Opnd('frag', 9, SRD_B, S_BBASE, rbtot=72, aux=LD()), 4, 1, 18, 4, rot=R('vv'))
    gemm_role(k, g2, epi_frag16(72, 75, 76), s_flag=72, depA=dep((66, 4, FL['H'], 4)), depB=dep((67, 9, FL['WVO'], 18)))

E_VAT, E_VX, E_VZ = 16, 196, 232
def e_at_loads(k):
    ws_srd(k, SRD_B, 'AT')
    k(f's_sub_u32 s71, s{S_WAVE}, 4')
    k(f's_mul_i32 s72, s71, {9*10}')
    k('s_mul_i32 s73, s66, 5')
    k('s_add_u32 s72, s72, s73')
    k('s_lshl_b32 s72, s72, 10')
    for i in range(9):
        k('s_add_u32 s73, s72, 4096')
        for mb in range(5):
            k(f'buffer_load_dwordx4 {vr(E_VAT+20*i+4*mb,4)}, v1, {sr(SRD_B,4)}, s{72 if mb < 4 else 73} offen offset:{(mb%4)*1024}{LD()}')
        if i < 8: k('s_add_u32 s72, s72, 10240')

def e_preload_hook(k):
    if not C.PERSIST: return
    k(f'v_lshlrev_b32 v8, 7, v{VL}')
    k('s_mul_i32 s85, s66, 9')
    k(f's_add_u32 s85, s85, {FL["AT"]}')
    k('s_lshl_b32 s85, s85, 7')
    k('s_mov_b64 exec, 0x1ff')
    k(f'buffer_load_dword v9, v8, {sr(SRD_F,4)}, s85 offen sc1')
    k('s_waitcnt vmcnt(0)')
    k('v_cmp_ne_u32 vcc, 1, v9')
    k('s_mov_b64 exec, -1')
    k('s_cmp_eq_u64 vcc, 0')
    k('s_cbranch_scc1 pe_early')

def phase_D(k):
    phase_entry(k)
    k('s_cmp_ge_u32 s65, 24')
    k('s_cbranch_scc1 pd_aux')
    k('s_lshr_b32 s66, s64, 2')
    k('s_and_b32 s67, s64, 1')
    k('s_lshl_b32 s67, s67, 2')
    k('s_and_b32 s68, s65, 3')
    k('s_add_u32 s67, s67, s68')
    k('s_bfe_u32 s68, s64, 0x10001')
    k('s_mul_i32 s68, s68, 6')
    k('s_lshr_b32 s69, s65, 2')
    k('s_add_u32 s68, s68, s69')
    k(f's_mul_i32 s{S_ABASE}, s66, {32*72*1024}')
    k('s_mul_i32 s69, s68, 6144')
    k(f's_add_u32 s{S_ABASE}, s{S_ABASE}, s69')
    k(f's_lshl_b32 s{S_BBASE}, s66, 21')
    k('s_lshl_b32 s69, s67, 13')
    k(f's_add_u32 s{S_BBASE}, s{S_BBASE}, s69')
    k('s_lshl_b32 s70, s66, 3')
    k('s_add_u32 s70, s70, s67')
    k('s_mul_i32 s75, s68, 3')
    k('s_lshl_b32 s76, s70, 3')
    k('s_mul_i32 s72, s70, 12')
    k('s_add_u32 s72, s72, s68')
    k(f's_add_u32 s72, s72, {FL["X1"]}')
    k('s_lshl_b32 s71, s68, 1')
    div_const(k, 71, 71, 3, 24)
    k('s_min_u32 s71, s71, 6')
    k('s_lshl_b32 s73, s66, 3')
    k('s_add_u32 s71, s71, s73')
    k('s_and_b32 s74, s65, 3')
    k('s_lshl_b32 s74, s74, 1')
    k('s_lshr_b32 s73, s65, 2')
    k('s_add_u32 s74, s74, s73')
    k('s_and_b32 s74, s74, 7')
    k('s_lshl_b32 s74, s74, 1')
    args_ready(k)
    ws_srd(k, SRD_A, 'VT'); ws_srd(k, SRD_B, 'P'); ws_srd(k, SRD_O, 'X1')
    g1 = Gemm('pv', Opnd('frag', 6, SRD_A, S_ABASE, rbtot=72, aux=LD()), Opnd('frag', 8, SRD_B, S_BBASE, rbtot=64, aux=LD()), 1, 4, 16, 5, lds0=8192, rot=R('pv'))
    def depB_pv(k):
        dep((70, 8, FL['P'], 8))(k)
        ws_srd(k, SRD_X, 'ST')
        k(f's_lshl_b32 s{S_T1}, s{S_W2}, 12')
        k(f's_mov_b32 m0, s{S_T1}')
        k(f's_lshl_b32 s{S_T0}, s70, 13')
        k(f's_add_u32 s{S_T0}, s{S_T0}, s{S_T1}')
        for i in range(4): k(f'buffer_load_dwordx4 v1, {sr(SRD_X,4)}, s{S_T0} offen offset:{i*1024}{LD()} lds')
    def pv_consumer(k, g):
        ma, nb = 6, 2
        VF, VX = g.VF, g.VX
        VGT, VXR, VXF, VS, VR, VMX, VRF, VLS, VSA, VE, VBP = VX, VX+24, VX+48, VX+72, VX+76, VX+78, VX+80, VX+82, VX+84, VX+85, VX+87
        def side_loads():
            ws_srd(k, SRD_Y, 'GATE')
            k(f'v_lshrrev_b32 v1, 4, v{VL}\nv_lshlrev_b32 v1, 5, v1')
            k(f's_mul_i32 s{S_T0}, s66, 4608')
            k(f's_mul_i32 s{S_T1}, s68, 384')
            k(f's_add_u32 s{S_T0}, s{S_T0}, s{S_T1}')
            for ap in range(3):
                for h in range(2):
                    k(f'buffer_load_dwordx4 {vr(VGT+8*ap+4*h,4)}, v1, {sr(SRD_Y,4)}, s{S_T0} offen offset:{ap*128+16*h}{LD()}')
        make_srd(k, SRD_Y, P_X, NR*D*2)
        quad_voff(k, 1, 2304)
        k('s_lshl_b32 s79, s70, 2')
        k(f's_add_u32 s79, s79, s{S_WB}')
        k(f's_mul_i32 s{S_T0}, s79, {32*2304}')
        k(f's_mul_i32 s{S_T1}, s68, 192')
        k(f's_add_u32 s{S_T0}, s{S_T0}, s{S_T1}')
        k(f's_add_u32 s{S_T1}, s{S_T0}, {16*2304}')
        for ap in range(3):
            for b in range(2):
                k(f'buffer_load_dwordx4 {vr(VXR+(ap*2+b)*4,4)}, v1, {sr(SRD_Y,4)}, s{S_T0 if b == 0 else S_T1} offen offset:{ap*64}')
        if not C.PERSIST: side_loads()
        k(f'v_and_b32 v{VSA}, 15, v{VL}\nv_lshlrev_b32 v{VSA}, 4, v{VSA}')
        k(f's_lshl_b32 s77, s{S_WB}, 11')
        if g.rot is not None:
            k(f's_lshl_b32 s{S_T0}, s74, 7')
            k(f'v_add_u32 v{VSA}, s{S_T0}, v{VSA}')
        aA = cons_addr_setup(k, g, g.A, ma, S_WA, VL, VA, VT)
        aB = cons_addr_setup(k, g, g.B, nb, S_WB, VL, VA + len(aA), VT)
        addrs = aA + aB
        for i in range(ma*nb*4): k(f'v_mov_b32 v{VACC+i}, 0')
        q2f_addr(k, VBP)
        k(f'v_mov_b32 v{VMX}, {f32(-3.0e38)}\nv_mov_b32 v{VMX+1}, {f32(-3.0e38)}')
        k(f'v_mov_b32 v{VRF}, {f32(-3.0e38)}\nv_mov_b32 v{VRF+1}, {f32(-3.0e38)}')
        k(f'v_mov_b32 v{VLS}, 0\nv_mov_b32 v{VLS+1}, 0')
        k(f's_mov_b32 s78, {f32(-64.0)}')
        setsz = (ma + nb) * 4
        def fa(st, a): return VF + st*setsz + 4*a
        def fb(st, b): return VF + st*setsz + 4*ma + 4*b
        def reads(s, st):
            return cons_reads(g, g.B, nb, aB, s, fb(st, 0)) + cons_reads(g, g.A, ma, aA, s, fa(st, 0))
        def mf(st):
            return [f'v_mfma_f32_16x16x32_bf16 {vr(acc(g,a,b),4)}, {vr(fa(st,a),4)}, {vr(fb(st,b),4)}, {vr(acc(g,a,b),4)}'
                    for a in range(ma) for b in range(nb)]
        def muls(i):
            a, b = divmod(i, nb)
            c = acc(g, a, b)
            return [f'v_mul_f32 v{c+r}, v{VR+b}, v{c+r}' for r in range(4)]
        def upd():
            o = []
            for b in range(2): o.append(f'v_max_f32 v{VMX+b}, v{VMX+b}, v{VS+b}')
            for b in range(2): o.append(f'v_add_f32 v{VE+b}, s78, v{VMX+b}')
            for b in range(2): o.append(f'v_max_f32 v{VE+b}, v{VE+b}, v{VS+b}')
            for b in range(2): o.append(f'v_sub_f32 v{VR+b}, v{VRF+b}, v{VE+b}')
            for b in range(2): o.append(f'v_exp_f32 v{VR+b}, v{VR+b}')
            for b in range(2): o.append(f'v_mov_b32 v{VRF+b}, v{VE+b}')
            for b in range(2): o.append(f'v_fma_f32 v{VLS+b}, v{VLS+b}, v{VR+b}, v{VS+2+b}')
            return o
        srd_ = [f'v_add_u32 v{VE}, s77, v{VSA}', f'ds_read_b128 {vr(VS,4)}, v{VE}', f'v_add_u32 v{VSA}, 256, v{VSA}', f'v_and_b32 v{VSA}, 2047, v{VSA}']
        adv = [f's_add_u32 s{S_SLOT}, s{S_SLOT}, {g.stage}',
               f's_cmp_eq_u32 s{S_SLOT}, {g.NS*g.stage}',
               f's_cselect_b32 s{S_DELTA}, {-(g.NS-1)*g.stage & 0xffffffff}, s{S_T3}',
               f's_cselect_b32 s{S_SLOT}, 0, s{S_SLOT}'] + [f'v_add_u32 v{a}, s{S_DELTA}, v{a}' for a in addrs]
        k(f's_mov_b32 s{S_SLOT}, 0')
        k(f's_mov_b32 s{S_CNT}, 8')
        k(f's_mov_b32 s{S_T3}, {g.stage}')
        k('s_barrier')
        stamp(k, 0)
        for x in srd_: k(x)
        for r in reads(0, 0): k(r)
        k('s_waitcnt lgkmcnt(8)')
        for x in upd(): k(x)
        k('s_waitcnt lgkmcnt(0)')
        lp = k.newlabel('pv_mm'); le = k.newlabel('pv_last')
        k.label(lp)
        M = mf(0); fill = reads(1, 1) + adv
        for x in muls(0): k(x)
        for i in range(12):
            if i + 1 < 12:
                for x in muls(i+1): k(x)
            else:
                k('s_nop 1')
            k(M[i])
            if fill: k(fill.pop(0))
        for f in fill: k(f)
        k('s_waitcnt lgkmcnt(0)')
        k('s_barrier')
        interleave(k, mf(1), reads(0, 0) + srd_ + [f's_sub_u32 s{S_CNT}, s{S_CNT}, 1'])
        k('s_waitcnt lgkmcnt(0)')
        interleave(k, mf(0), reads(1, 1) + adv)
        k('s_waitcnt lgkmcnt(0)')
        k(f's_cmp_eq_u32 s{S_CNT}, 0')
        k(f's_cbranch_scc1 {le}')
        k('s_barrier')
        interleave(k, mf(1), reads(0, 0) + upd(), per=2)
        if C.PERSIST:
            k(f's_cmp_eq_u32 s{S_CNT}, 4')
            k('s_cbranch_scc1 pv_g1')
            k(f's_cmp_eq_u32 s{S_CNT}, 2')
            k('s_cbranch_scc1 pv_g2')
            k.label('pv_gback')
        k('s_waitcnt lgkmcnt(0)')
        k(f's_branch {lp}')
        if C.PERSIST:
            k.label('pv_g1')
            k(f'v_lshlrev_b32 v1, 7, v{VL}')
            k(f's_mov_b32 s{S_T0}, {FL["GATE"]*128}')
            k('s_mov_b64 exec, 0x3ffff')
            k(f'buffer_load_dword v{VGT}, v1, {sr(SRD_F,4)}, s{S_T0} offen sc1')
            k('s_mov_b64 exec, -1')
            k('s_branch pv_gback')
            k.label('pv_g2')
            k('s_mov_b64 exec, 0x3ffff')
            k('s_waitcnt vmcnt(0)')
            k(f'v_cmp_ne_u32 vcc, 1, v{VGT}')
            k('s_mov_b64 exec, -1')
            k('s_cmp_eq_u64 vcc, 0')
            k('s_cbranch_scc1 pv_g3')
            k(f's_mov_b32 s85, {FL["GATE"]}')
            poll(k, 85, 18, vt=VGT)
            k(f's_mov_b32 s{S_CNT}, 2')
            k.label('pv_g3')
            side_loads()
            k('s_branch pv_gback')
        k.label(le)
        k('s_waitcnt vmcnt(0)')
        bp = [f'ds_bpermute_b32 v{VXF+j}, v{VBP}, v{VXR+j}' for j in range(24)]
        interleave(k, mf(1), bp + [f'v_rcp_f32 v{VLS}, v{VLS}', f'v_rcp_f32 v{VLS+1}, v{VLS+1}'], per=2)
        g.VGT, g.VXF, g.VLS, g.VE = VGT, VXF, VLS, VE
        g.vmax = VBP + 1
    def epi_pv(k, g):
        k(f's_lshl_b32 s{S_T0}, s75, 7')
        k(f's_add_u32 s{S_T0}, s{S_T0}, s76')
        k(f's_lshl_b32 s{S_T1}, s{S_WB}, 1')
        k(f's_add_u32 s{S_T0}, s{S_T0}, s{S_T1}')
        k(f's_lshl_b32 s{S_OBASE}, s{S_T0}, 10')
        k(f'v_lshlrev_b32 v1, 4, v{VL}')
        k('s_waitcnt lgkmcnt(0)')
        T = g.VE
        t = g.VF
        for ap in range(3):
            for b in range(2):
                xr = g.VXF + (ap*2+b)*4
                regs = [acc(g, 2*ap+h, b) + r for h in range(2) for r in range(4)]
                for e in range(8):
                    k(f'v_mul_f32 v{regs[e]}, v{g.VLS+b}, v{regs[e]}')
                    if e % 2 == 0: k(f'v_lshlrev_b32 v{T}, 16, v{xr+e//2}')
                    else: k(f'v_and_b32 v{T}, 0xffff0000, v{xr+e//2}')
                    k(f'v_fma_f32 v{regs[e]}, v{regs[e]}, v{g.VGT+8*ap+e}, v{T}')
                for j in range(4): k(f'v_cvt_pk_bf16_f32 v{t+j}, v{regs[2*j]}, v{regs[2*j+1]}')
                k(f's_add_u32 s{S_T0}, s{S_OBASE}, {ap*128*1024}')
                k(f'buffer_store_dwordx4 {vr(t,4)}, v1, {sr(SRD_O,4)}, s{S_T0} offen offset:{b*1024}{ST}')
                t += 4
    gemm_role(k, g1, epi_pv, s_flag=72, custom_consumer=pv_consumer, depA=dep((71, 8, FL['V'], 16)), depB=depB_pv, end_hookA=e_preload_hook, end_hookB=e_preload_hook)
    k.label('pd_aux')
    k('s_sub_u32 s66, s65, 24')
    k('s_lshl_b32 s66, s66, 3')
    k('s_add_u32 s66, s66, s64')
    k('s_cmp_ge_u32 s66, 18')
    k('s_cbranch_scc1 pd_bt')
    k('s_and_b32 s67, s66, 1')
    k('s_lshr_b32 s68, s66, 1')
    k(f's_mul_i32 s{S_ABASE}, s68, {128*2304}')
    k(f's_mul_i32 s{S_BBASE}, s67, 5120')
    k('s_lshl_b32 s75, s68, 2')
    k('s_mul_i32 s76, s67, 5')
    k('s_mul_i32 s72, s67, 9')
    k('s_add_u32 s72, s72, s68')
    k(f's_add_u32 s72, s72, {FL["AT"]}')
    k('s_mul_i32 s74, s67, 9')
    args_ready(k)
    make_srd(k, SRD_A, P_WQC, D*D*2); ws_srd(k, SRD_B, 'KVC'); ws_srd(k, SRD_O, 'AT')
    g2 = Gemm('at', Opnd('row', 8, SRD_A, S_ABASE, stride=2304, perm=True), Opnd('frag', 5, SRD_B, S_BBASE, rbtot=10, aux=LD()), 4, 1, 18, 6, rot=R('at'))
    gemm_role(k, g2, epi_frag16(10, 75, 76), s_flag=72, depB=dep((67, 12, FL['KVC'], 6)))
    k.label('pd_bt')
    k('s_cmp_ge_u32 s66, 36')
    k('s_cbranch_scc1 pd_idle')
    k('s_sub_u32 s66, s66, 18')
    k('s_and_b32 s67, s66, 1')
    k('s_lshr_b32 s68, s66, 1')
    k(f's_mul_i32 s{S_ABASE}, s67, 5120')
    k(f's_add_u32 s{S_ABASE}, s{S_ABASE}, {36*10*1024}')
    k(f's_lshl_b32 s{S_BBASE}, s68, 8')
    k('s_mul_i32 s75, s67, 3')
    k('s_lshl_b32 s76, s68, 3')
    k('s_mul_i32 s72, s67, 9')
    k('s_add_u32 s72, s72, s68')
    k(f's_add_u32 s72, s72, {FL["BT"]}')
    k('s_mul_i32 s74, s67, 9')
    args_ready(k)
    ws_srd(k, SRD_A, 'KVC'); make_srd(k, SRD_B, P_WOC, D*D*2); ws_srd(k, SRD_O, 'BT')
    g3 = Gemm('bt', Opnd('frag', 5, SRD_A, S_ABASE, rbtot=10, aux=LD()), Opnd('col', 8, SRD_B, S_BBASE, stride=2304), 1, 4, 18, 6, rot=R('bt'))
    gemm_role(k, g3, epi_frag16(72, 75, 76, rowperm=True), s_flag=72, depA=dep((67, 12, FL['KVC'] + 6, 6)))
    k.label('pd_idle')
    args_ready(k)
    k('s_sub_u32 s73, s66, 36')
    if C.PERSIST:
        k('s_cmp_ge_u32 s73, 18')
        k('s_cbranch_scc1 pd_idle2')
        gate_job(k, 73)
        phase_exit(k)
        k.label('pd_idle2')
        k('s_sub_u32 s73, s73, 18')
    if not C.PERSIST:
        k('s_lshl_b32 s79, s73, 3')
        k(f's_add_u32 s79, s79, s{S_WAVE}')
        prefetch_flat(k, P_WOC, D*D*2, 79, 224, 14, vtmp=8)
        prefetch_flat(k, P_WQC, D*D*2, 79, 224, 14, vtmp=8)
    phase_exit(k, drain=False)

def phase_E(k):
    if C.PERSIST:
        k.label('pe_early')
        k('s_mov_b32 s81, 1')
        k('s_branch pe_at')
    phase_entry(k)
    L_ST, L_Z, L_CS, L_CS2, L_BT = 0, 1024, 21504, 41984, 47104
    VAT, VX_, VZ = E_VAT, E_VX, E_VZ
    k('s_lshr_b32 s66, s64, 2')
    k(f'v_lshlrev_b32 v1, 4, v{VL}')
    k('s_mov_b32 s81, 0')
    args_ready(k)
    k(f's_cmp_lt_u32 s{S_WAVE}, 4')
    k('s_cbranch_scc1 pe_common')
    dep((66, 9, FL['AT'], 9))(k)
    if C.PERSIST:
        k.label('pe_at')
        e_at_loads(k)
        k('s_cmp_eq_u32 s81, 0')
        k('s_cbranch_scc1 pe_common')
        k('s_barrier')
        stamp_begin(k)
    k.label('pe_common')
    k('s_bfe_u32 s67, s64, 0x10001')
    k('s_and_b32 s68, s64, 1')
    k('s_lshl_b32 s68, s68, 5')
    k('s_add_u32 s68, s68, s65')
    k('s_lshl_b32 s69, s66, 6')
    k('s_add_u32 s68, s68, s69')
    k('s_lshr_b32 s70, s68, 3')
    ws_srd(k, SRD_A, 'X1'); make_srd(k, SRD_O, P_OUT, NR*D*2)
    k(f's_cmp_lt_u32 s{S_WAVE}, 4')
    k('s_cbranch_scc1 pe_l')
    k(f's_sub_u32 s71, s{S_WAVE}, 4')
    k(f's_mul_i32 s74, s71, {9*128}')
    k('s_add_u32 s74, s74, s68')
    k('s_lshl_b32 s74, s74, 10')
    def load_x():
        for i in range(9):
            k(f'buffer_load_dwordx4 {vr(VX_+4*i,4)}, v1, {sr(SRD_A,4)}, s74 offen{LD()}')
            if i < 8: k(f's_add_u32 s74, s74, {128*1024}')
    if not C.PERSIST:
        e_at_loads(k)
        load_x()
    k('s_mov_b32 s77, 0x3f803f80')
    for j in range(4): k(f'v_mov_b32 v{12+j}, s77')
    k(f's_mul_i32 s{S_T1}, s71, 5120')
    k(f'v_add_u32 v6, s{S_T1}, v1')
    k(f'v_lshrrev_b32 v7, 5, v{VL}\nv_lshlrev_b32 v7, 6, v7\nv_and_b32 v10, 15, v{VL}\nv_lshl_add_u32 v7, v10, 2, v7')
    k(f's_lshl_b32 s{S_T0}, s71, 7')
    k(f'v_add_u32 v7, s{S_T0}, v7')
    ex = 0 if C.PERSIST else 9
    for i in range(9):
        k(f's_waitcnt vmcnt({5*(8-i) + ex})')
        for mb in range(5):
            c = '0' if i == 0 else vr(VZ+4*mb, 4)
            k(f'v_mfma_f32_16x16x32_bf16 {vr(VZ+4*mb,4)}, {vr(VAT+20*i+4*mb,4)}, v[12:15], {c}')
    k('v_mov_b32 v2, 0\nv_mov_b32 v3, 0\nv_mov_b32 v4, 0\nv_mov_b32 v5, 0')
    k('s_nop 4')
    for mb in range(5): k(f'ds_write_b128 v6, {vr(VZ+4*mb,4)} offset:{L_CS + mb*1024}')
    stamp(k, 0)
    if C.PERSIST:
        dep((70, 12, FL['X1'], 12))(k)
        stamp(k, 1)
        load_x()
    k('s_waitcnt lgkmcnt(0)')
    k('s_barrier')
    for i in range(9):
        k(f's_waitcnt vmcnt({8-i})')
        mm = []
        for mb in range(5):
            c = '0' if i == 0 else vr(VZ+4*mb, 4)
            mm.append(f'v_mfma_f32_16x16x32_bf16 {vr(VZ+4*mb,4)}, {vr(VAT+20*i+4*mb,4)}, {vr(VX_+4*i,4)}, {c}')
        dd = []
        for j in range(4*i, 4*i+4):
            dd.append(f'v_dot2_f32_bf16 v{2+(j&1)}, v{VX_+j}, s77, v{2+(j&1)}')
            dd.append(f'v_dot2_f32_bf16 v{4+(j&1)}, v{VX_+j}, v{VX_+j}, v{4+(j&1)}')
        interleave(k, mm, dd, per=2)
    k('s_nop 2')
    k('v_add_f32 v2, v2, v3\nv_add_f32 v4, v4, v5')
    k('s_nop 1')
    k('v_permlane32_swap_b32 v2, v4')
    k('s_nop 0')
    k('v_add_f32 v2, v2, v4')
    k('v_mov_b32 v3, v2')
    for mb in range(5): k(f'ds_write_b128 v6, {vr(VZ+4*mb,4)} offset:{L_Z + mb*1024}')
    k('v_permlane16_swap_b32 v2, v3')
    k('s_nop 0')
    k('v_add_f32 v2, v2, v3')
    k(f'ds_write_b32 v7, v2 offset:{L_ST}')
    stamp(k, 2)
    k(f's_cmp_ge_u32 s{S_WAVE}, 6')
    k('s_cbranch_scc0 pe_g2pre')
    k('s_waitcnt lgkmcnt(0)')
    k('s_barrier')
    phase_exit(k)
    k.label('pe_l')
    VRS, VP, VB, VZ2, VO, VQ, VCS = 16, 28, 40, 112, 192, 216, 232
    ws_srd(k, SRD_X, 'BT')
    dep((66, 9, FL['BT'], 9))(k)
    k('s_mul_i32 s75, s66, 216')
    k('s_mul_i32 s76, s67, 36')
    k('s_add_u32 s75, s75, s76')
    k(f's_mul_i32 s76, s{S_WAVE}, 9')
    k('s_add_u32 s75, s75, s76')
    k('s_lshl_b32 s75, s75, 10')
    k('s_lshl_b32 s76, s76, 10')
    k(f's_add_u32 s76, s76, {L_BT}')
    if not C.PERSIST: k('s_barrier')
    for kb in range(3):
        for g0 in (0, 4, 8):
            k(f's_add_u32 m0, s76, {kb*36864 + g0*1024}')
            k(f's_add_u32 s77, s75, {kb*72*1024 + g0*1024}')
            for i in range(4 if g0 < 8 else 1):
                k(f'buffer_load_dwordx4 v1, {sr(SRD_X,4)}, s77 offen offset:{i*1024}{LD()} lds')
    stamp(k, 0)
    if C.PERSIST: k('s_barrier')
    stamp(k, 1)
    def sum4(base, pre=()):
        for mb in range(5):
            for w in range(4):
                k(f'ds_read_b128 {vr(VZ2+20*w+4*mb,4)}, v1 offset:{base + w*5120 + mb*1024}')
        for x in pre: k(x)
        for mb in range(5):
            k(f's_waitcnt lgkmcnt({min(15, 4*(4-mb))})')
            for j in (0, 2):
                z = VZ2 + 4*mb + j
                k(f'v_pk_add_f32 {vr(z,2)}, {vr(z,2)}, {vr(z+20,2)}')
                k(f'v_pk_add_f32 {vr(z+40,2)}, {vr(z+40,2)}, {vr(z+60,2)}')
                k(f'v_pk_add_f32 {vr(z,2)}, {vr(z,2)}, {vr(z+40,2)}')
    k(f's_cmp_lg_u32 s{S_WAVE}, 3')
    k('s_cbranch_scc1 pe_g2pre')
    sum4(L_CS)
    for mb in range(5): k(f'ds_write_b128 v1, {vr(VZ2+4*mb,4)} offset:{L_CS2 + mb*1024}')
    k.label('pe_g2pre')
    k('s_mul_i32 s73, s67, 18')
    k(f's_mul_i32 s74, s{S_WAVE}, 3')
    k('s_add_u32 s73, s73, s74')
    k('s_lshl_b32 s74, s73, 7')
    k('s_add_u32 s74, s74, s68')
    k('s_lshl_b32 s74, s74, 10')
    for i in range(3):
        k(f'buffer_load_dwordx4 {vr(VRS+4*i,4)}, v1, {sr(SRD_A,4)}, s74 offen{LD()}')
        if i < 2: k(f's_add_u32 s74, s74, {128*1024}')
    f2q_addr(k, 5)
    quad_voff(k, 6, 2304)
    k(f's_mul_i32 s{S_T0}, s{S_WAVE}, 6144')
    k(f's_add_u32 s{S_T0}, s{S_T0}, {L_BT}')
    k(f'v_add_u32 v7, s{S_T0}, v1')
    k('v_add_u32 v8, 36864, v7')
    k(f'v_and_b32 v9, 15, v{VL}\nv_lshlrev_b32 v9, 2, v9')
    k(f'v_cmp_le_u32 vcc, 48, v{VL}')
    k(f's_mul_i32 s{S_T2}, s68, {16*2304}')
    k(f's_lshl_b32 s{S_T1}, s73, 6')
    k(f's_add_u32 s{S_T2}, s{S_T2}, s{S_T1}')
    k('s_mov_b32 s77, 0x3f803f80')
    k(f'v_mov_b32 v{VP+10}, 0\nv_mov_b32 v{VP+11}, 0\nv_mov_b32 v4, {f32(-3.0e38)}')
    k('s_waitcnt vmcnt(3) lgkmcnt(0)')
    k('s_barrier')
    stamp(k, 3)
    for w in range(4): k(f'ds_read2_b32 {vr(VO+2*w,2)}, v9 offset0:{w*32} offset1:{w*32+16}')
    for mb in range(5): k(f'ds_read_b128 {vr(VCS+4*mb,4)}, v1 offset:{L_CS2 + mb*1024}')
    st = [f'v_pk_add_f32 {vr(VO,2)}, {vr(VO,2)}, {vr(VO+2,2)}', f'v_pk_add_f32 {vr(VO+4,2)}, {vr(VO+4,2)}, {vr(VO+6,2)}',
          f'v_pk_add_f32 {vr(VO,2)}, {vr(VO,2)}, {vr(VO+4,2)}',
          f'v_mul_f32 v10, {f32(-1.0/D)}, v{VO}', f'v_mul_f32 v12, {f32(1.0/D)}, v{VO+1}', 'v_fma_f32 v12, -v10, v10, v12', 'v_max_f32 v12, 0, v12',
          f'v_add_f32 v12, {f32(1e-5)}, v12', 'v_rsq_f32 v12, v12', 'v_mov_b32 v11, v10', f'v_mul_f32 v12, {f32(CSC)}, v12']
    sum4(L_Z, pre=['s_waitcnt lgkmcnt(15)'] + st)
    for kb in range(3):
        for jb in range(6):
            k(f'ds_read_b128 {vr(VB+(kb*6+jb)*4,4)}, v{7 if kb == 0 else 8} offset:{(kb-1 if kb else 0)*36864 + jb*1024}')
    for i in range(0, 20, 2): k(f'v_pk_fma_f32 {vr(VZ2+i,2)}, {vr(VCS+i,2)}, v[10:11], {vr(VZ2+i,2)}')
    for r in (17, 18, 19): k(f'v_cndmask_b32 v{VZ2+r}, v{VZ2+r}, v4, vcc')
    k(f'v_max3_f32 v2, v{VZ2}, v{VZ2+1}, v{VZ2+2}')
    k(f'v_max3_f32 v3, v{VZ2+3}, v{VZ2+4}, v{VZ2+5}')
    for i in range(6, 20, 2): k(f'v_max3_f32 v{2 + (i//2)%2}, v{2 + (i//2)%2}, v{VZ2+i}, v{VZ2+i+1}')
    k('v_max_f32 v2, v2, v3')
    for sw in ('v_permlane32_swap_b32', 'v_permlane16_swap_b32'):
        k(f'v_mov_b32 v3, v2\ns_nop 1\n{sw} v2, v3\ns_nop 0\nv_max_f32 v2, v2, v3')
    k('v_sub_f32 v2, 0, v2\nv_mov_b32 v13, v12\nv_mov_b32 v3, v2')
    for i in range(0, 20, 2): k(f'v_pk_add_f32 {vr(VZ2+i,2)}, {vr(VZ2+i,2)}, v[2:3]')
    for i in range(0, 20, 2): k(f'v_pk_mul_f32 {vr(VZ2+i,2)}, {vr(VZ2+i,2)}, v[12:13]')
    for i in range(20): k(f'v_exp_f32 v{VZ2+i}, v{VZ2+i}')
    k('v_mov_b32 v2, 0')
    for i in range(10): k(f'v_cvt_pk_bf16_f32 v{VP+i}, v{VZ2+2*i}, v{VZ2+2*i+1}')
    k('s_waitcnt lgkmcnt(0)')
    k('s_nop 0')
    mmx = []
    for kb in range(3):
        for jb in range(6):
            c = '0' if kb == 0 else vr(VO+4*jb, 4)
            mmx.append(f'v_mfma_f32_16x16x32_bf16 {vr(VO+4*jb,4)}, {vr(VB+(kb*6+jb)*4,4)}, {vr(VP+4*kb,4)}, {c}')
    sm = [f'v_dot2_f32_bf16 v2, v{VP+i}, s77, v2' for i in range(10)] + ['s_nop 2']
    for sw in ('v_permlane32_swap_b32', 'v_permlane16_swap_b32'):
        sm += ['v_mov_b32 v3, v2', 's_nop 1', f'{sw} v2, v3', 's_nop 0', 'v_add_f32 v2, v2, v3']
    sm += ['v_rcp_f32 v2, v2', 's_waitcnt vmcnt(0)', 'v_mov_b32 v3, v2']
    for j in range(12):
        sm += [f'v_lshlrev_b32 v{VZ2+2*j}, 16, v{VRS+j}', f'v_and_b32 v{VZ2+2*j+1}, 0xffff0000, v{VRS+j}']
    interleave(k, mmx, sm, per=2)
    for i in range(3):
        for e in range(0, 8, 2):
            k(f'v_pk_fma_f32 {vr(VO+8*i+e,2)}, {vr(VO+8*i+e,2)}, v[2:3], {vr(VZ2+8*i+e,2)}')
        for j in range(4): k(f'v_cvt_pk_bf16_f32 v{VRS+4*i+j}, v{VO+8*i+2*j}, v{VO+8*i+2*j+1}')
        for j in range(4): k(f'ds_bpermute_b32 v{VQ+4*i+j}, v5, v{VRS+4*i+j}')
    for i in range(3):
        k(f's_waitcnt lgkmcnt({4*(2-i)})')
        k(f'buffer_store_dwordx4 {vr(VQ+4*i,4)}, v6, {sr(SRD_O,4)}, s{S_T2} offen offset:{64*i}')
    stamp(k, 4)
    phase_exit(k)
    VMAX[0] = 256; LMAX[0] = max(LMAX[0], L_BT + 108*1024)

def build(fn, persist, stampf):
    C.PERSIST, C.STAMP = persist, stampf
    k = K()
    k.L.append('.p2align 8'); k.label('code_start')
    info = []
    for i, f in enumerate((phase_A, phase_B, phase_C, phase_D, phase_E)):
        PH[0] = i
        if not persist: VMAX[0] = 0; LMAX[0] = 0
        f(k)
        if (not persist) or i == 0:
            k.label(f'quit{i}'); k('s_endpgm')
        info.append((NAMES[i], VMAX[0], LDS_MAX if i == 0 else LMAX[0]))
    k.label('code_end')
    k('s_endpgm')
    ref = open('standalone__pixart__diffusion.s.ref').read()
    hdr = ref.split('; Override launch geometry')[0]
    desc = '.section .rodata,"a"\n'
    if persist:
        n = 'standalone__pixart__diffusion_kernel'
        hdr += f'; @launch kernel={n} grid=(256,1,1) block=(512,1,1) lds={LDS_MAX}\n'
        desc += '.p2align 6\n' + kernel_desc(n, 256, 102)
    else:
        for (n, v, l) in info:
            assert v <= 256
            hdr += f'; @launch kernel={n} grid=(256,1,1) block=(512,1,1) lds={l}\n'
            desc += '.p2align 6\n' + kernel_desc(n, v, 102)
    hdr += '.amdgcn_target "amdgcn-amd-amdhsa--gfx950"\n.text\n'
    open(fn, 'w').write(hdr + k.text() + desc)

if __name__ == '__main__':
    C.ROT = set('wvo kvc at bt'.split()); C.APRE = True
    build('m3.s', False, False)
    build('m3_stamped.s', False, True)
    build('p3.s', True, False)
    build('p3_stamped.s', True, True)
    C.TLBW = 16
    build('p3_t16.s', True, False)
    C.TLBW = 12
    build('p3_t12.s', True, False)
    C.TLBW = 0
    C.DBGT = True
    build('p3_dbgt.s', True, False)
    C.DBGT = False
    json.dump(WS, open('ws.json', 'w'))
```

```python
import sys, math, struct, json
from lib import *

D = 1152; NR = 2048
P_X, P_C, P_Y, P_WQKV, P_WO, P_WQC, P_WKVC, P_WOC, P_WMOD, P_OUT, P_DBG, P_WS = range(40, 64, 2)
def al(x): return (x + 4095) // 4096 * 4096
FL = {}
_f = 0
for nm, n in [('MOD', 72), ('GATE', 18), ('H', 64), ('WQK', 108), ('T', 144), ('WVO', 81), ('KVC', 24), ('P', 128), ('V', 128),
              ('X1', 192), ('AT', 36), ('BT', 18)]:
    FL[nm] = _f; _f += n
NFLAG = 1024
assert _f <= NFLAG
WS = {}
_o = 0
for nm, sz in [('FLAG', NFLAG*128), ('MODP', 2*2*2304*4), ('GATE', 2*1152*4), ('ST', 64*8*256), ('H', NR*D*2), ('WQK', D*D*2), ('WVO', D*D*2),
               ('T', NR*D*2), ('VT', NR*D*2), ('P', 2*1024*1024*2), ('KVC', 72*10*1024), ('AT', 36*10*1024), ('BT', 2*3*72*1024),
               ('X1', NR*D*2)]:
    WS[nm] = (_o, sz); _o = al(_o + sz)
ST = ' sc1'
CSC = (D ** -0.5) * math.log2(math.e)
def f32(x): return '0x%08x' % struct.unpack('<I', struct.pack('<f', x))[0]
LDS_MAX = 163840
L_CNT = LDS_MAX - 64

class Cfg:
    ROT = set('wqk tt wvo kvc ss vv pv at bt'.split())
    APRE = False
    SKIP = set()
    WQK_NS = 5
    WQK_NPRE = 3
    STAMP = False
    DBGT = False
    TLBW = 0
    HPRE = True
    PPOLL = False
    WIN = {}
    NAT = 9
    PSLEEP = 3
    BTLATE = False
    PKMUL = 0
    SCHED = 1
    VM = [(0, 0x3f3f), (12, 0xc0c0)]
    KVPF = 0
    TPF = True
    WVOPF = True
    NS = dict(wqk=4, tt=4, wvo=4, ss=4, vv=4, pv=4, at=5, bt=4)
    LDX = ' sc1'
    OUTST = ' sc1'
    LIST = True
    PERSIST = False
C = Cfg()
STAMP_OFF = 128 << 20
PH = [0]
NAMES = ['pa_kernel', 'pb_kernel', 'pc_kernel', 'pd_kernel', 'pe_kernel']
VL = 0; VT = 2; VA = 4; VACC = 16
S_ROT = 74
def R(name): return S_ROT if name in C.ROT else None
def mod_const(k, s, m, maxv):
    div_const(k, S_T0, s, m, maxv)
    k(f's_mul_i32 s{S_T0}, s{S_T0}, {m}')
    k(f's_sub_u32 s{s}, s{s}, s{S_T0}')
def LD(): return C.LDX if C.PERSIST else ''
def Wn(name): return C.WIN.get(name, 0)
def rot_from(k, name, s_sum, n_full, maxv):
    w = Wn(name)
    if w:
        mod_const(k, s_sum, w, maxv)
    else:
        mod_const(k, s_sum, n_full, maxv)
        k(f's_mul_i32 s{s_sum}, s{s_sum}, {18 // n_full}')


def stamp(k, i):
    if C.STAMP: k(f's_memrealtime s[{86+2*i}:{87+2*i}]')
def cstamp(k, i):
    if C.STAMP: k(f's_memtime s[{86+2*i}:{87+2*i}]')
def stamp_begin(k):
    if C.STAMP: k('s_memrealtime s[98:99]\n' + '\n'.join(f's_mov_b32 s{86+2*i}, 0' for i in range(6)))

def phase_exit(k, drain=True):
    p = PH[0]
    k('s_mov_b64 exec, -1')
    if C.STAMP:
        if drain: k('s_waitcnt vmcnt(0)')
        k('s_memrealtime s[100:101]')
        k(f's_lshl_b32 s{S_T0}, s2, 8')
        k(f's_lshl_b32 s{S_T1}, s{S_WAVE}, 5')
        k(f's_add_u32 s{S_T0}, s{S_T0}, s{S_T1}')
        k(f's_add_u32 s{S_T0}, s{S_T0}, {STAMP_OFF}')
        k(f's_lshl_b32 s{S_T1}, s80, 16')
        k(f's_add_u32 s{S_T0}, s{S_T0}, s{S_T1}')
        k('s_waitcnt lgkmcnt(0)')
        k(f'v_mov_b32 v1, s{S_T0}\nv_mov_b32 v4, s98\nv_mov_b32 v5, s100')
        for i in range(6): k(f'v_mov_b32 v{6+i}, s{86+2*i}')
        k('s_mov_b64 exec, 1')
        k('global_store_dwordx4 v1, v[4:7], s[62:63]')
        k('global_store_dwordx4 v1, v[8:11], s[62:63] offset:16')
        k('s_mov_b64 exec, -1')
        k('s_nop 1')
    if p < 4:
        k('s_branch next_task')
    else:
        k('s_endpgm')

def ws_srd(k, srd, nm):
    make_srd(k, srd, P_WS, WS[nm][1], WS[nm][0])

def kernel_entry(k):
    name = 'standalone__pixart__diffusion_kernel'
    kernel_header(k, name)
    k('s_getpc_b64 s[76:77]')
    k('s_load_dwordx16 s[40:55], s[0:1], 0')
    k('s_load_dwordx8 s[56:63], s[0:1], 64')
    k('s_lshr_b32 s65, s2, 3')
    k('s_lshl_b32 s78, s65, 11')
    k('v_lshrrev_b32 v1, 6, v0')
    k('v_and_b32 v2, 1, v0')
    k('v_lshl_add_u32 v2, v1, 1, v2')
    k('v_lshl_add_u32 v2, v2, 7, s78')
    k('v_min_u32 v2, code_end - code_start - 8, v2')
    k('s_mov_b64 exec, 3')
    k('global_load_dword v15, v2, s[76:77]')
    k('s_mov_b64 exec, -1')
    stamp_begin(k)
    k('s_cmp_ge_u32 s2, 256')
    k('s_cbranch_scc1 quit0')
    k('v_and_b32 v0, 63, v0')
    k(f'v_readfirstlane_b32 s{S_WAVE}, v1')
    k('s_and_b32 s64, s2, 7')
    k('s_mov_b32 s80, 0')
def args_ready(k):
    if PH[0] == 0:
        k('s_waitcnt lgkmcnt(0)')
        l = k.newlabel('tt_pc')
        k('s_getpc_b64 s[0:1]')
        k.label(l)
        k('s_lshl_b32 s85, s2, 3')
        k(f's_add_u32 s85, s85, task_table - {l}')
        k('s_load_dwordx2 s[0:1], s[0:1], s85')
        ws_srd(k, SRD_F, 'FLAG')
ROLES = ['E', 'T', 'wvo', 'kvc', 'gate', 'S', 'V', 'PV', 'AT', 'BT', 'pf']
def dispatcher(k):
    k.label('next_task')
    k('s_waitcnt lgkmcnt(0)')
    k('s_add_u32 s80, s80, 1')
    stamp_begin(k)
    k('s_and_b32 s66, s0, 15')
    k('s_bfe_u32 s67, s0, 0x50004')
    k('s_bfe_u32 s68, s0, 0x50009')
    k('s_bfe_u32 s74, s0, 0x2000e')
    k('s_lshr_b64 s[0:1], s[0:1], 16')
    for i in (1, 5, 7, 6, 2, 3, 4, 8, 9, 10):
        k(f's_cmp_eq_u32 s66, {i}')
        k(f's_cbranch_scc1 role_{ROLES[i]}')
    k('s_branch role_E')

def div_const(k, dst, src, d, maxv):
    for sh in range(4, 20):
        m = -(-(1 << sh) // d)
        if all((v*m) >> sh == v // d for v in range(maxv+1)):
            k(f's_mul_i32 s{dst}, s{src}, {m}')
            k(f's_lshr_b32 s{dst}, s{dst}, {sh}')
            return
    raise Exception('no magic')

SPIN = 0x20000
def poll(k, s_line, n, vt=252, force=False, mask=None):
    if not (C.PERSIST or force): return
    lp, done = k.newlabel('poll'), k.newlabel('polled')
    k(f'v_min_u32 v{vt}, {n-1}, v{VL}')
    k(f'v_lshlrev_b32 v{vt}, 7, v{vt}')
    k(f's_lshl_b32 s{S_T0}, s{s_line}, 7')
    k(f's_mov_b32 s{S_CNT}, {SPIN}')
    if mask: k(f's_mov_b64 exec, {hex(mask)}')
    elif n < 64: k(f's_mov_b64 exec, {hex((1 << n) - 1)}' if n <= 31 else f's_mov_b32 exec_hi, {hex((1 << (n-32)) - 1)}')
    if C.PPOLL:
        ld = lambda r: k(f'buffer_load_dword v{r}, v{vt}, {sr(SRD_F,4)}, s{S_T0} offen sc1')
        ld(vt+1)
        k('s_waitcnt vmcnt(0)')
        k(f'v_cmp_ne_u32 vcc, 1, v{vt+1}')
        k('s_nop 0')
        k('s_cmp_eq_u64 vcc, 0')
        k(f's_cbranch_scc1 {done}')
        ld(vt+1); k('s_sleep 2'); ld(vt+2); k('s_sleep 2')
        k.label(lp)
        for r in (0, 1, 2):
            ld(vt+1+(r+2) % 3)
            k('s_waitcnt vmcnt(2)')
            k(f'v_cmp_ne_u32 vcc, 1, v{vt+1+r}')
            k('s_sleep 1')
            k('s_cmp_eq_u64 vcc, 0')
            k(f's_cbranch_scc1 {done}')
        k(f's_sub_u32 s{S_CNT}, s{S_CNT}, 1')
        k(f's_cmp_lg_u32 s{S_CNT}, 0')
        k(f's_cbranch_scc1 {lp}')
    else:
        k.label(lp)
        k(f'buffer_load_dword v{vt+1}, v{vt}, {sr(SRD_F,4)}, s{S_T0} offen sc1')
        k(f's_sub_u32 s{S_CNT}, s{S_CNT}, 1')
        k('s_waitcnt vmcnt(0)')
        k(f'v_cmp_ne_u32 vcc, 1, v{vt+1}')
        k(f's_cmp_eq_u32 s{S_CNT}, 0')
        k(f's_cbranch_scc1 {done}')
        k('s_cmp_eq_u64 vcc, 0')
        k(f's_cbranch_scc1 {done}')
        k(f's_sleep {C.PSLEEP}')
        k(f's_branch {lp}')
    k.label(done)
    k('s_mov_b64 exec, -1')

def wait_init(k, vt=8):
    lp, done = k.newlabel('wi'), k.newlabel('wid')
    k(f'v_min_u32 v{vt}, 11, v{VL}')
    k(f'v_and_b32 v{vt+1}, 1, v{vt}')
    k(f'v_lshlrev_b32 v{vt+1}, 7, v{vt+1}')
    k(f'v_lshl_add_u32 v{vt}, v{vt}, 2, v{vt+1}')
    k(f's_mov_b32 s{S_CNT}, {SPIN}')
    k.label(lp)
    k(f'global_load_dword v{vt+1}, v{vt}, s[{P_DBG}:{P_DBG+1}] sc1')
    k(f's_sub_u32 s{S_CNT}, s{S_CNT}, 1')
    k('s_waitcnt vmcnt(0)')
    k(f'v_cmp_ne_u32 vcc, 1, v{vt+1}')
    k(f's_cmp_eq_u32 s{S_CNT}, 0')
    k(f's_cbranch_scc1 {done}')
    k('s_cmp_eq_u64 vcc, 0')
    k(f's_cbranch_scc1 {done}')
    k('s_sleep 3')
    k(f's_branch {lp}')
    k.label(done)

def set_flag(k, s_line, vt=8):
    k(f's_lshl_b32 s{S_T0}, s{s_line}, 7')
    k(f'v_mov_b32 v{vt}, 0\nv_mov_b32 v{vt+1}, 1')
    k('s_mov_b64 exec, 1')
    k(f'buffer_store_dword v{vt+1}, v{vt}, {sr(SRD_F,4)}, s{S_T0} offen sc1')
    k('s_mov_b64 exec, -1')

def signal(k, s_line, nwaves, vt=8):
    if not C.PERSIST: return
    skip = k.newlabel('sig')
    k('s_mov_b64 exec, -1')
    k(f's_lshl_b32 s{S_T0}, s{s_line}, 7')
    k(f'v_mov_b32 v{vt}, 0\nv_mov_b32 v{vt+1}, 1')
    k(f's_cmp_lg_u32 s{S_WAVE}, 0')
    k('s_waitcnt vmcnt(0)')
    k('s_barrier')
    k(f's_cbranch_scc1 {skip}')
    k('s_mov_b64 exec, 1')
    k(f'buffer_store_dword v{vt+1}, v{vt}, {sr(SRD_F,4)}, s{S_T0} offen sc1')
    k('s_mov_b64 exec, -1')
    k.label(skip)

def signal_lds(k, s_line, nwaves, vt=8):
    skip = k.newlabel('sig')
    k('s_mov_b64 exec, -1')
    k(f's_lshl_b32 s{S_T0}, s{s_line}, 7')
    k(f'v_mov_b32 v{vt}, 0\nv_mov_b32 v{vt+1}, 1\nv_mov_b32 v{vt+2}, {L_CNT}')
    k('s_mov_b64 exec, 1')
    k('s_waitcnt vmcnt(0)')
    k(f'ds_add_rtn_u32 v{vt+3}, v{vt+2}, v{vt+1}')
    k('s_waitcnt lgkmcnt(0)')
    k(f'v_cmp_eq_u32 vcc, {nwaves-1}, v{vt+3}')
    k('s_nop 0')
    k('s_cmp_eq_u64 vcc, 0')
    k(f's_cbranch_scc1 {skip}')
    k(f'buffer_store_dword v{vt+1}, v{vt}, {sr(SRD_F,4)}, s{S_T0} offen sc1')
    k.label(skip)
    k('s_mov_b64 exec, -1')
    stamp(k, 3)
    k('s_barrier')

def q2f_addr(k, v):
    k(f'v_and_b32 v{v}, 15, v{VL}\nv_lshlrev_b32 v{v}, 4, v{v}\nv_lshrrev_b32 v{VT}, 4, v{VL}\nv_lshl_add_u32 v{v}, v{VT}, 2, v{v}')
def f2q_addr(k, v):
    k(f'v_and_b32 v{v}, 3, v{VL}\nv_lshlrev_b32 v{v}, 6, v{v}\nv_and_b32 v{VT}, 0x3c, v{VL}\nv_add_u32 v{v}, v{v}, v{VT}')
def quad_voff(k, v, stride):
    k(f'v_lshrrev_b32 v{v}, 2, v{VL}\ns_mov_b32 s{S_T0}, {stride}\nv_mul_u32_u24 v{v}, s{S_T0}, v{v}\nv_and_b32 v{VT}, 3, v{VL}\nv_lshl_add_u32 v{v}, v{VT}, 4, v{v}')

def prefetch_flat(k, ptr, nbytes, s_worker, nworkers, vdst, maxper=99, srd=SRD_Y, vtmp=1):
    make_srd(k, srd, ptr, nbytes)
    k(f'v_lshlrev_b32 v{vtmp}, 7, v{VL}')
    per = min(maxper, -(-(-(-nbytes // 8192)) // nworkers))
    k(f's_lshl_b32 s{S_T0}, s{s_worker}, 13')
    for i in range(per):
        k(f'buffer_load_dword v{vdst}, v{vtmp}, {sr(srd,4)}, s{S_T0} offen')
        if i + 1 < per: k(f's_add_u32 s{S_T0}, s{S_T0}, {nworkers*8192}')
def prefetch_cols(k, srd, lines_per_row, colbyte, s_worker, nworkers, vdst, v0, v1, stride=6912, limit=None):
    tot = 1152 * lines_per_row
    per = -(-(tot // 64) // nworkers)
    sh = {18: 20, 36: 21}[lines_per_row]
    assert all((n*58255) >> sh == n // lines_per_row for n in range(per*nworkers*64)) and per*nworkers*64*58255 < 2**32
    k(f's_lshl_b32 s{S_T1}, s{s_worker}, 6')
    lend = k.newlabel('pfc')
    for i in range(per):
        if limit and i == per - 1:
            k(f's_cmp_ge_u32 s{S_T1}, {limit*64}')
            k(f's_cbranch_scc1 {lend}')
        k(f'v_add_u32 v{v0}, s{S_T1}, v{VL}')
        k(f's_mov_b32 s{S_T0}, 58255')
        k(f'v_mul_lo_u32 v{v1}, v{v0}, s{S_T0}')
        k(f'v_lshrrev_b32 v{v1}, {sh}, v{v1}')
        k(f's_mov_b32 s{S_T0}, {stride - lines_per_row*128}')
        k(f'v_mul_u32_u24 v{v1}, s{S_T0}, v{v1}')
        k(f'v_lshl_add_u32 v{v0}, v{v0}, 7, v{v1}')
        k(f's_mov_b32 s{S_T0}, {colbyte}')
        k(f'buffer_load_dword v{vdst}, v{v0}, {sr(srd,4)}, s{S_T0} offen')
        if i + 1 < per: k(f's_add_u32 s{S_T1}, s{S_T1}, {nworkers*64}')
    k.label(lend)

VMAX = [0]
LMAX = [0]
def gemm_role(k, g, epilogue, s_flag=None, npre=2, custom_consumer=None, cons_first=None, depA=None, depB=None, end_hookA=None, end_hookB=None, exit_hook=None, midA=None, tail=None, lds_sig=False):
    ll, lb = k.newlabel(g.name + '_loader'), k.newlabel(g.name + '_loaderB')
    k(f's_cmp_ge_u32 s{S_WAVE}, 4')
    k(f's_cbranch_scc1 {ll}')
    if cons_first: cons_first(k)
    k(f's_and_b32 s{S_WB}, s{S_WAVE}, {g.WB-1}')
    k(f's_lshr_b32 s{S_WA}, s{S_WAVE}, {g.WB.bit_length()-1}')
    VF = VACC + g.ma*g.nb*4
    g.VF = VF
    g.VX = VF + 2*(g.ma+g.nb)*4
    g.vmax = g.VX
    if custom_consumer: custom_consumer(k, g)
    else: consumer_body(k, g, VL, VACC, VF, VA, VT, post_bar0=lambda k: (stamp(k, 0), cstamp(k, 4)))
    stamp(k, 1); cstamp(k, 5)
    epilogue(k, g)
    stamp(k, 2)
    if lds_sig: signal_lds(k, s_flag, 4)
    elif s_flag is not None: signal(k, s_flag, 4)
    lx = k.newlabel(g.name + '_exit')
    k.label(lx)
    if exit_hook: exit_hook(k)
    phase_exit(k, drain=not C.PERSIST)
    k.label(ll)
    k(f's_and_b32 s{S_W2}, s{S_WAVE}, 1')
    k(f's_cmp_ge_u32 s{S_WAVE}, 6')
    k(f's_cbranch_scc1 {lb}')
    def wrap(dep):
        def f(k):
            if dep: dep(k)
            stamp(k, 0)
        return f
    loader_body(k, g, g.A, VL, 1, VT, npre=npre, pre_hook=wrap(depA), end_barrier=C.PERSIST, end_hook=end_hookA, mid=midA, tail_hook=tail)
    k(f's_branch {lx}')
    k.label(lb)
    loader_body(k, g, g.B, VL, 1, VT, npre=npre, pre_hook=wrap(depB), end_barrier=C.PERSIST, end_hook=end_hookB, tail_hook=tail)
    k(f's_branch {lx}')
    VMAX[0] = max(VMAX[0], g.vmax); LMAX[0] = max(LMAX[0], g.lds_bytes)
    assert g.lds_bytes <= L_CNT

def acc(g, a, b): return VACC + (a*g.nb + b)*4

def epi_frag16(rbtot, s_kb0, s_rb0, rowperm=False):
    def f(k, g):
        npair = (g.ma + 1) // 2
        k(f's_mul_i32 s{S_T0}, s{S_WA}, {g.ma//2}')
        k(f's_add_u32 s{S_T0}, s{S_T0}, s{s_kb0}')
        k(f's_mul_i32 s{S_T0}, s{S_T0}, {rbtot}')
        k(f's_mul_i32 s{S_T1}, s{S_WB}, {g.nbstep}')
        k(f's_add_u32 s{S_T0}, s{S_T0}, s{S_T1}')
        k(f's_add_u32 s{S_T0}, s{S_T0}, s{s_rb0}')
        k(f's_lshl_b32 s{S_OBASE}, s{S_T0}, 10')
        if rowperm:
            assert g.nb % 2 == 0
            k(f'v_bfe_u32 v{VT}, v{VL}, 2, 1\nv_lshlrev_b32 v1, 10, v{VT}\nv_bfe_u32 v{VT}, v{VL}, 3, 1\nv_lshl_add_u32 v1, v{VT}, 6, v1')
            k(f'v_and_b32 v{VT}, 0x33, v{VL}\nv_lshl_add_u32 v1, v{VT}, 4, v1')
        else:
            k(f'v_lshlrev_b32 v1, 4, v{VL}')
        k('s_nop 1')
        t = g.VF
        for ap in range(npair):
            for b in range(g.nb):
                c0 = acc(g, 2*ap, b)
                k(f'v_cvt_pk_bf16_f32 v{t}, v{c0}, v{c0+1}')
                k(f'v_cvt_pk_bf16_f32 v{t+1}, v{c0+2}, v{c0+3}')
                if 2*ap+1 < g.ma:
                    c1 = acc(g, 2*ap+1, b)
                    k(f'v_cvt_pk_bf16_f32 v{t+2}, v{c1}, v{c1+1}')
                    k(f'v_cvt_pk_bf16_f32 v{t+3}, v{c1+2}, v{c1+3}')
                else:
                    k(f'v_mov_b32 v{t+2}, 0\nv_mov_b32 v{t+3}, 0')
                off = (b & ~1)*1024 + (b & 1)*128 if rowperm else b*1024
                hi, lo = off // 4096 * 4096, off % 4096
                k(f's_add_u32 s{S_T0}, s{S_OBASE}, {ap*rbtot*1024 + hi}')
                k(f'buffer_store_dwordx4 {vr(t,4)}, v1, {sr(SRD_O,4)}, s{S_T0} offen offset:{lo}{ST}')
                t += 4
        g.vmax = max(g.vmax, t)
    return f

def dep(*items):
    def f(k):
        for it in items:
            (s, mul, const, n), mask = it[:4], (it[4] if len(it) > 4 else None)
            if not C.PERSIST: continue
            if s is None: k(f's_mov_b32 s85, {const}')
            else:
                k(f's_mul_i32 s85, s{s}, {mul}')
                k(f's_add_u32 s85, s85, {const}')
            poll(k, 85, n, mask=mask)
    return f

def gemv_job(k, n, tag, s_goff, s_ldsrow, finish):
    make_srd(k, SRD_A, P_WMOD, D*6*D*2)
    make_srd(k, SRD_B, P_C, 2*D*2)
    L_SILU, L_RED = 0, 9216
    VW, VS, VAC, VU, VC = 16, 88, 124, 140, 148
    k(f's_lshl_b32 s{S_T0}, s{S_WAVE}, 10')
    k(f'v_lshl_add_u32 v3, v{VL}, 4, s{S_T0}')
    k(f'buffer_load_dwordx4 {vr(VC,4)}, v3, {sr(SRD_B,4)}, 0 offen')
    k(f's_lshl_b32 s{S_T0}, s{S_WAVE}, 3')
    k(f'v_lshrrev_b32 v4, 3, v{VL}')
    k(f'v_add_u32 v4, s{S_T0}, v4')
    k(f'v_and_b32 v5, 7, v{VL}')
    k('v_lshlrev_b32 v5, 4, v5')
    k(f's_mov_b32 s{S_T0}, 13824')
    k(f'v_mad_u32_u24 v5, v4, s{S_T0}, v5')
    def issue_w(i0, i1):
        for i in range(i0, i1):
            if i: k(f's_add_u32 s{s_goff}, s{s_goff}, {64*13824}')
            k(f'buffer_load_dwordx4 {vr(VW+4*i,4)}, v5, {sr(SRD_A,4)}, s{s_goff} offen')
    issue_w(0, 6)
    k('v_lshlrev_b32 v4, 2, v4')
    if s_ldsrow is not None: k(f'v_add_u32 v4, s{s_ldsrow}, v4')
    k('s_waitcnt vmcnt(6)')
    for j in range(4):
        k(f'v_lshlrev_b32 v{VC+4+2*j}, 16, v{VC+j}')
        k(f'v_and_b32 v{VC+5+2*j}, 0xffff0000, v{VC+j}')
    for j in range(8): k(f'v_mul_f32 v{VU+j}, {f32(-math.log2(math.e))}, v{VC+4+j}')
    for j in range(8): k(f'v_exp_f32 v{VU+j}, v{VU+j}')
    for j in range(8): k(f'v_add_f32 v{VU+j}, 1.0, v{VU+j}')
    for j in range(8): k(f'v_rcp_f32 v{VU+j}, v{VU+j}')
    for j in range(8): k(f'v_mul_f32 v{VC+4+j}, v{VU+j}, v{VC+4+j}')
    k('v_lshlrev_b32 v8, 1, v3')
    k('v_cmp_gt_u32 vcc, 9216, v8')
    k('s_mov_b64 exec, vcc')
    k(f'ds_write_b128 v8, {vr(VC+4,4)} offset:{L_SILU}')
    k(f'ds_write_b128 v8, {vr(VC+8,4)} offset:{L_SILU+16}')
    k('s_mov_b64 exec, -1')
    k('s_waitcnt lgkmcnt(0)')
    k('s_barrier')
    stamp(k, 0)
    for i in range(n):
        k(f'ds_read2st64_b32 {vr(VS+2*i,2)}, v4 offset0:{i} offset1:{i+18}')
    issue_w(6, n)
    k(f'v_bfe_u32 v6, v{VL}, 1, 2\nv_lshlrev_b32 v6, 7, v6\nv_lshrrev_b32 v7, 3, v{VL}\nv_lshl_add_u32 v6, v7, 4, v6\nv_and_b32 v7, 1, v{VL}\nv_lshl_add_u32 v6, v7, 3, v6')
    k(f'v_lshrrev_b32 v7, 4, v{VL}\nv_lshlrev_b32 v7, 7, v7\nv_and_b32 v9, 7, v{VL}\nv_lshl_add_u32 v7, v9, 4, v7')
    k(f's_lshl_b32 s{S_T0}, s{S_WAVE}, 9')
    k(f'v_add_u32 v7, s{S_T0}, v7')
    k(f'v_lshlrev_b32 v9, 2, v{VL}')
    for j in range(16): k(f'v_mov_b32 v{VAC+j}, 0')
    k('s_waitcnt lgkmcnt(0)')
    for i in range(n):
        k(f's_waitcnt vmcnt({n - 1 - i})')
        for j in range(4):
            k(f'v_lshlrev_b32 v{VU+2*j}, 16, v{VW+4*i+j}')
            k(f'v_and_b32 v{VU+2*j+1}, 0xffff0000, v{VW+4*i+j}')
        for j in range(4):
            k(f'v_pk_fma_f32 {vr(VAC+4*j,2)}, {vr(VS+2*i,2)}, {vr(VU+2*j,2)}, {vr(VAC+4*j,2)} op_sel:[0,0,0] op_sel_hi:[1,0,1]')
            k(f'v_pk_fma_f32 {vr(VAC+4*j+2,2)}, {vr(VS+2*i,2)}, {vr(VU+2*j,2)}, {vr(VAC+4*j+2,2)} op_sel:[0,1,0] op_sel_hi:[1,1,1]')
    stamp(k, 1)
    k('s_nop 1')
    for j in range(8): k(f'v_permlane32_swap_b32 v{VAC+j}, v{VAC+8+j}')
    for j in range(8): k(f'v_add_f32 v{VAC+j}, v{VAC+j}, v{VAC+8+j}')
    k('s_nop 1')
    for j in range(4): k(f'v_permlane16_swap_b32 v{VAC+j}, v{VAC+4+j}')
    for j in range(4): k(f'v_add_f32 v{VAC+4+j}, v{VAC+j}, v{VAC+4+j}')
    k('s_nop 1')
    for j in range(4): k(f'v_add_f32_dpp v{VAC+j}, v{VAC+4+j}, v{VAC+4+j} row_ror:8 row_mask:0xf bank_mask:0xf')
    k(f'ds_write_b128 v7, {vr(VAC,4)} offset:{L_RED}')
    k('s_waitcnt lgkmcnt(0)')
    k('s_barrier')
    k(f's_cmp_lg_u32 s{S_WAVE}, 0')
    k(f's_cbranch_scc1 gv_nored{tag}')
    for w in range(8): k(f'ds_read_b64 {vr(VAC+2*w,2)}, v6 offset:{L_RED + 512*w}')
    k('s_waitcnt lgkmcnt(0)')
    for st in (8, 4, 2):
        for j in range(0, st, 2):
            k(f'v_pk_add_f32 {vr(VAC+j,2)}, {vr(VAC+j,2)}, {vr(VAC+st+j,2)}')
    stamp(k, 2)
    finish(k, VAC)
    stamp(k, 3)
    k.label(f'gv_nored{tag}')
    k('s_barrier')
    VMAX[0] = max(VMAX[0], 160); LMAX[0] = max(LMAX[0], 16384)

def gate_job(k, s_idx):
    k(f's_lshl_b32 s{S_G}, s{s_idx}, 7')
    k(f's_add_u32 s{S_G}, s{S_G}, 4608')
    def fin(k, VAC):
        ws_srd(k, SRD_O, 'GATE')
        k(f's_lshl_b32 s{S_T1}, s{s_idx}, 8')
        k(f's_add_u32 s{S_T2}, s{S_T1}, 4608')
        k(f'buffer_store_dword v{VAC}, v9, {sr(SRD_O,4)}, s{S_T1} offen sc1')
        k(f'buffer_store_dword v{VAC+1}, v9, {sr(SRD_O,4)}, s{S_T2} offen sc1')
        if C.PERSIST:
            wait_init(k, 12)
            k(f's_add_u32 s85, s{s_idx}, {FL["GATE"]}')
            set_flag(k, 85, 12)
    gemv_job(k, 18, 'g', S_G, None, fin)

def phase_A(k):
    kernel_entry(k)
    k('s_cmp_ge_u32 s65, 23')
    k('s_cbranch_scc1 pa_mod')
    k('s_cmp_lt_u32 s65, 8')
    k('s_cbranch_scc1 pa_h')
    k('s_and_b32 s66, s64, 1')
    k('s_lshr_b32 s67, s64, 1')
    k('s_sub_u32 s68, 5, s66')
    k('s_mul_i32 s70, s68, 3')
    k('s_sub_u32 s69, s65, 8')
    k('s_cmp_ge_u32 s69, s70')
    k('s_cbranch_scc1 pa_spare')
    div_const(k, 71, 69, 5, 31)
    k('s_lshr_b32 s72, s69, 2')
    k('s_cmp_eq_u32 s66, 0')
    k('s_cselect_b32 s71, s71, s72')
    k('s_mul_i32 s72, s71, s68')
    k('s_sub_u32 s72, s69, s72')
    k('s_lshl_b32 s74, s71, 1')
    k('s_add_u32 s74, s74, s72')
    rot_from(k, 'wqk', 74, 6, 16)
    k('s_mul_i32 s73, s66, 5')
    k('s_add_u32 s72, s72, s73')
    k('s_mul_i32 s73, s67, 3')
    k('s_add_u32 s71, s71, s73')
    k(f's_mul_i32 s{S_ABASE}, s72, {128*6912}')
    k(f's_mul_i32 s{S_BBASE}, s71, {96*6912}')
    k(f's_add_u32 s{S_BBASE}, s{S_BBASE}, {D*2}')
    k('s_lshl_b32 s75, s72, 2')
    k('s_mul_i32 s76, s71, 6')
    k('s_mul_i32 s77, s71, 9')
    k('s_add_u32 s77, s77, s72')
    k(f's_add_u32 s78, s77, {FL["WQK"]}')
    args_ready(k)
    make_srd(k, SRD_A, P_WQKV, D*3*D*2)
    ws_srd(k, SRD_O, 'WQK')
    g = Gemm('wqk', Opnd('row', 8, SRD_A, S_ABASE, stride=6912, perm=True), Opnd('row', 6, SRD_A, S_BBASE, stride=6912, perm=True), 2, 2, 18, C.NS['wqk'], rot=R('wqk'), win=Wn('wqk'))
    def a_pre(k):
        k('s_lshl_b32 s79, s77, 2')
        k(f's_add_u32 s79, s79, s{S_WAVE}')
        prefetch_cols(k, SRD_A, 36, 0, 79, 432, 12, 1, 2)
    def a_end(k):
        if C.PERSIST: wait_init(k)
    gemm_role(k, g, epi_frag16(72, 75, 76), s_flag=78, npre=2, cons_first=(a_pre if C.APRE else None), end_hookA=a_end)
    k.label('pa_mod')
    if 'mod' in C.SKIP: k('s_endpgm')
    k('s_mul_i32 s73, s64, 9')
    k('s_add_u32 s73, s73, s65')
    k('s_sub_u32 s73, s73, 23')
    k('s_cmp_ge_u32 s73, 36')
    k('s_cselect_b32 s74, 1, 0')
    k('s_mul_i32 s75, s74, 36')
    k('s_sub_u32 s75, s73, s75')
    k(f's_mul_i32 s{S_G}, s74, {576*13824}')
    k(f's_lshl_b32 s{S_T0}, s75, 7')
    k(f's_add_u32 s{S_G}, s{S_G}, s{S_T0}')
    k('s_mul_i32 s76, s74, 2304')
    args_ready(k)
    def fin(k, VAC):
        ws_srd(k, SRD_O, 'MODP')
        k('s_cmp_ge_u32 s75, 18')
        k(f's_cselect_b32 s{S_T2}, 1.0, 0')
        k('s_cmp_eq_u32 s74, 0')
        k(f's_cselect_b32 s{S_T2}, s{S_T2}, 0')
        k(f'v_add_f32 v{VAC}, s{S_T2}, v{VAC}\nv_add_f32 v{VAC+1}, s{S_T2}, v{VAC+1}')
        k(f's_mul_i32 s{S_T1}, s74, 18432')
        k(f's_lshl_b32 s{S_T0}, s75, 8')
        k(f's_add_u32 s{S_T1}, s{S_T1}, s{S_T0}')
        k(f's_add_u32 s{S_T2}, s{S_T1}, 9216')
        k(f'buffer_store_dword v{VAC}, v9, {sr(SRD_O,4)}, s{S_T1} offen sc1')
        k(f'buffer_store_dword v{VAC+1}, v9, {sr(SRD_O,4)}, s{S_T2} offen sc1')
        wait_init(k, 12)
        k(f's_add_u32 s85, s73, {FL["MOD"]}')
        set_flag(k, 85, 12)
    gemv_job(k, 9, 'm', S_G, 76, fin)
    phase_exit(k, drain=False)
    k.label('pa_spare')
    k('s_mul_i32 s73, s67, 3')
    k('s_add_u32 s73, s73, s65')
    k('s_sub_u32 s73, s73, 20')
    args_ready(k)
    k(f'v_lshlrev_b32 v8, 4, v{VL}')
    k('v_mov_b32 v4, 0\nv_mov_b32 v5, 0\nv_mov_b32 v6, 0\nv_mov_b32 v7, 0')
    k('s_lshl_b32 s79, s73, 3')
    k(f's_add_u32 s79, s79, s{S_WAVE}')
    k(f's_lshl_b32 s{S_T0}, s79, 10')
    k(f'buffer_store_dwordx4 v[4:7], v8, {sr(SRD_F,4)}, s{S_T0} offen sc1')
    k(f's_add_u32 s{S_T0}, s{S_T0}, {96*1024}')
    k(f'buffer_store_dwordx4 v[4:7], v8, {sr(SRD_F,4)}, s{S_T0} offen sc1')
    k('s_waitcnt vmcnt(0)')
    k('s_barrier')
    k(f's_cmp_lg_u32 s{S_WAVE}, 0')
    k('s_cbranch_scc1 pa_noinit')
    k(f's_and_b32 s{S_T0}, s73, 1')
    k(f's_lshl_b32 s{S_T0}, s{S_T0}, 7')
    k(f's_lshl_b32 s{S_T1}, s73, 2')
    k(f's_add_u32 s{S_T0}, s{S_T0}, s{S_T1}')
    k(f'v_mov_b32 v8, 1\nv_mov_b32 v9, s{S_T0}')
    k('s_mov_b64 exec, 1')
    k(f'global_store_dword v9, v8, s[{P_DBG}:{P_DBG+1}] sc1')
    k('s_mov_b64 exec, -1')
    k.label('pa_noinit')
    k('s_lshl_b32 s79, s73, 3')
    k(f's_add_u32 s79, s79, s{S_WAVE}')
    k('s_lshr_b32 s78, s79, 1')
    k('s_bitcmp1_b32 s79, 0')
    k('s_cbranch_scc1 pa_noy')
    prefetch_flat(k, P_Y, 2*77*D*2, 78, 48, 14, vtmp=8)
    k.label('pa_noy')
    phase_exit(k, drain=False)
    k.label('pa_h')
    if 'h' in C.SKIP: k('s_endpgm')
    k('s_lshl_b32 s73, s64, 3')
    k('s_add_u32 s73, s73, s65')
    args_ready(k)
    def h_pf(k):
        if not C.PERSIST: return
        k('s_lshl_b32 s79, s73, 3')
        k(f's_add_u32 s79, s79, s{S_WAVE}')
        prefetch_flat(k, P_WKVC, D*2*D*2, 79, 512, 14, maxper=1, vtmp=8)
        l1 = k.newlabel('hpf')
        k('s_cmp_ge_u32 s79, 180')
        k(f's_cbranch_scc1 {l1}')
        k('s_cmp_ge_u32 s79, 136')
        k(f's_cselect_b32 s{SRD_Y}, s{P_Y}, s{P_WKVC}')
        k(f's_cselect_b32 s{SRD_Y+1}, s{P_Y+1}, s{P_WKVC+1}')
        k(f's_mov_b32 s{S_T1}, {D*2*D*2}')
        k(f's_cselect_b32 s{SRD_Y+2}, {2*77*D*2}, s{S_T1}')
        k(f's_mov_b32 s{S_T1}, {512*8192}')
        k(f's_cselect_b32 s{S_T1}, {(-136*8192) & 0xffffffff}, s{S_T1}')
        k(f's_add_u32 s{S_T0}, s{S_T0}, s{S_T1}')
        k(f'buffer_load_dword v14, v8, {sr(SRD_Y,4)}, s{S_T0} offen')
        k.label(l1)
    L_STAT, L_MOD = 0, 2048
    VN, VM, VXD = 16, 112, 208
    if C.HPRE:
        k('s_lshl_b32 s79, s73, 3')
        k(f's_add_u32 s79, s79, s{S_WAVE}')
        make_srd(k, SRD_Y, P_WQKV, D*3*D*2)
        prefetch_cols(k, SRD_Y, 36, 0, 79, 512, 13, 8, 9, limit=648)
    k(f's_cmp_ge_u32 s{S_WAVE}, 6')
    k('s_cbranch_scc1 pa_hhelp')
    make_srd(k, SRD_X, P_X, NR*D*2)
    k(f'v_lshrrev_b32 v6, 3, v{VL}\ns_mov_b32 s{S_T0}, 2304\nv_mul_u32_u24 v6, s{S_T0}, v6\nv_and_b32 v7, 7, v{VL}\nv_lshl_add_u32 v6, v7, 4, v6')
    k(f's_mul_i32 s75, s73, {32*2304}')
    k(f's_mul_i32 s76, s{S_WAVE}, 384')
    k('s_add_u32 s75, s75, s76')
    for rg in range(4):
        for sg in range(3):
            k(f'buffer_load_dwordx4 {vr(VM+(rg*3+sg)*4,4)}, v6, {sr(SRD_X,4)}, s75 offen offset:{128*sg}')
        if rg < 3: k(f's_add_u32 s75, s75, {8*2304}')
    k(f'v_lshlrev_b32 v7, 5, v7\nv_lshrrev_b32 v8, 3, v{VL}\nv_lshl_add_u32 v7, v8, 2, v7')
    k(f's_mov_b32 s77, 0x3f803f80')
    for rg in range(4):
        k(f's_waitcnt vmcnt({9 - 3*rg})')
        for j in range(12): k(f'ds_bpermute_b32 v{VXD+12*rg+j}, v7, v{VM+12*rg+j}')
    stamp(k, 0)
    for rg in range(4):
        k(f'v_mov_b32 v{VN+2*rg}, 0\nv_mov_b32 v{VN+2*rg+1}, 0')
    k('s_waitcnt lgkmcnt(0)')
    for j in range(12):
        for rg in range(4):
            k(f'v_dot2_f32_bf16 v{VN+rg}, v{VXD+12*rg+j}, s77, v{VN+rg}')
            k(f'v_dot2_f32_bf16 v{VN+4+rg}, v{VXD+12*rg+j}, v{VXD+12*rg+j}, v{VN+4+rg}')
    k('s_nop 3')
    for j in range(4): k(f'v_permlane32_swap_b32 v{VN+j}, v{VN+4+j}')
    for j in range(4): k(f'v_add_f32 v{VN+j}, v{VN+j}, v{VN+4+j}')
    k('s_nop 1')
    for j in range(2): k(f'v_permlane16_swap_b32 v{VN+j}, v{VN+2+j}')
    for j in range(2): k(f'v_add_f32 v{VN+2+j}, v{VN+j}, v{VN+2+j}')
    k('s_nop 1')
    for j in range(2): k(f'v_add_f32_dpp v{VN+j}, v{VN+2+j}, v{VN+2+j} row_ror:8 row_mask:0xf bank_mask:0xf')
    k(f'v_and_b32 v9, 7, v{VL}\nv_mul_u32_u24 v9, 192, v9\nv_lshrrev_b32 v10, 4, v{VL}\nv_lshl_add_u32 v10, v10, 3, v9')
    k(f's_lshl_b32 s{S_T0}, s{S_WAVE}, 5')
    k(f'v_add_u32 v10, s{S_T0}, v10')
    k(f'ds_write_b64 v10, {vr(VN,2)} offset:{L_STAT}')
    k('s_waitcnt lgkmcnt(0)')
    k('s_barrier')
    for w in range(6):
        k(f'ds_read_b128 {vr(VM+8*w,4)}, v9 offset:{L_STAT + 32*w}')
        k(f'ds_read_b128 {vr(VM+8*w+4,4)}, v9 offset:{L_STAT + 32*w + 16}')
    k('s_waitcnt lgkmcnt(0)')
    for w in range(1, 6):
        for j in range(0, 8, 2): k(f'v_pk_add_f32 {vr(VM+j,2)}, {vr(VM+j,2)}, {vr(VM+8*w+j,2)}')
    for rg in range(4):
        k(f'v_mul_f32 v{VM+rg}, {f32(1.0/D)}, v{VM+rg}')
        k(f'v_mul_f32 v{VM+4+rg}, {f32(1.0/D)}, v{VM+4+rg}')
        k(f'v_fma_f32 v{VM+4+rg}, -v{VM+rg}, v{VM+rg}, v{VM+4+rg}')
        k(f'v_max_f32 v{VM+4+rg}, 0, v{VM+4+rg}')
        k(f'v_add_f32 v{VM+4+rg}, {f32(1e-5)}, v{VM+4+rg}')
        k(f'v_rsq_f32 v{VM+4+rg}, v{VM+4+rg}')
        k('s_nop 0')
        k(f'v_mul_f32 v{VM+rg}, v{VM+rg}, v{VM+4+rg}')
    for rg in range(4):
        for j in range(12):
            n = VN + 24*rg + 2*j
            k(f'v_lshlrev_b32 v{n}, 16, v{VXD+12*rg+j}')
            k(f'v_and_b32 v{n+1}, 0xffff0000, v{VXD+12*rg+j}')
            k(f'v_fma_f32 v{n}, v{n}, v{VM+4+rg}, -v{VM+rg}')
            k(f'v_fma_f32 v{n+1}, v{n+1}, v{VM+4+rg}, -v{VM+rg}')
    ws_srd(k, SRD_A, 'H')
    k(f'v_lshrrev_b32 v8, 3, v{VL}\nv_lshlrev_b32 v8, 5, v8')
    k(f's_mul_i32 s{S_T0}, s{S_WAVE}, 768')
    k(f'v_add_u32 v8, s{S_T0}, v8')
    k(f'v_lshrrev_b32 v9, 5, v{VL}\nv_lshlrev_b32 v9, 17, v9\nv_bfe_u32 v10, v{VL}, 3, 2\nv_lshl_add_u32 v9, v10, 8, v9\nv_and_b32 v10, 7, v{VL}\nv_lshl_add_u32 v9, v10, 4, v9')
    k(f's_mul_i32 s{S_G}, s{S_WAVE}, {6*128}')
    k('s_lshl_b32 s76, s73, 1')
    k(f's_add_u32 s{S_G}, s{S_G}, s76')
    k(f's_lshl_b32 s{S_G}, s{S_G}, 10')
    stamp(k, 1)
    k('s_barrier')
    stamp(k, 2)
    for sg in range(3):
        m = VM + 32*sg
        for ks in range(2):
            for kind in range(2):
                for h in range(2):
                    k(f'ds_read_b128 {vr(m+16*ks+8*kind+4*h,4)}, v8 offset:{L_MOD + ks*9216 + kind*4608 + sg*256 + 16*h}')
    for sg in range(3):
        m = VM + 32*sg
        k(f's_waitcnt lgkmcnt({min(15, 8*(2-sg))})')
        for j in range(0, 16, 2): k(f'v_pk_add_f32 {vr(m+j,2)}, {vr(m+j,2)}, {vr(m+16+j,2)}')
        k(f's_add_u32 s{S_T0}, s{S_G}, {sg*2*128*1024}')
        for rg in range(4):
            n = VN + 24*rg + 8*sg
            o = VXD + 12*rg + 4*sg
            for j in range(0, 8, 2): k(f'v_pk_fma_f32 {vr(n+j,2)}, {vr(n+j,2)}, {vr(m+8+j,2)}, {vr(m+j,2)}')
            for j in range(4): k(f'v_cvt_pk_bf16_f32 v{o+j}, v{n+2*j}, v{n+2*j+1}')
            k(f'buffer_store_dwordx4 {vr(o,4)}, v9, {sr(SRD_A,4)}, s{S_T0} offen offset:{(rg>>1)*1024 + (rg&1)*128}{ST}')
    stamp(k, 3)
    k(f's_add_u32 s85, s73, {FL["H"]}')
    signal(k, 85, 6, 12)
    k.label('pa_hout')
    phase_exit(k, drain=not C.PERSIST)
    k.label('pa_hhelp')
    k(f's_cmp_eq_u32 s{S_WAVE}, 7')
    k('s_cbranch_scc1 pa_hpoll')
    if C.TLBW:
        sh = C.TLBW
        k(f'v_lshlrev_b32 v8, 3, v{VL}')
        k('v_add_u32 v8, s65, v8')
        k(f'v_lshlrev_b32 v8, {sh}, v8')
        span = 512 << sh
        for ptr, nb in [(P_WS, _o), (P_OUT, NR*D*2), (P_WQKV, D*3*D*2), (P_WO, D*D*2), (P_WQC, D*D*2), (P_WKVC, D*2*D*2), (P_WOC, D*D*2), (P_WMOD, D*6*D*2), (P_Y, 2*77*D*2)]:
            make_srd(k, SRD_Y, ptr, nb)
            for i in range(-(-nb // span)):
                k(f's_mov_b32 s{S_T0}, {i*span}')
                k(f'buffer_load_dword v14, v8, {sr(SRD_Y,4)}, s{S_T0} offen sc1')
    k.label('pa_hidle')
    k('s_waitcnt lgkmcnt(0)')
    k('s_barrier')
    k('s_barrier')
    if C.PERSIST: k('s_barrier')
    k('s_branch pa_hout')
    k.label('pa_hpoll')
    wait_init(k)
    k('s_barrier')
    k(f'v_min_u32 v8, 35, v{VL}')
    k('v_lshlrev_b32 v8, 7, v8')
    k(f's_mov_b32 s{S_T0}, {FL["MOD"]*128}')
    k(f's_mov_b32 s{S_T1}, {(FL["MOD"]+36)*128}')
    k(f's_mov_b32 s{S_CNT}, {SPIN}')
    k('s_mov_b32 exec_hi, 15')
    k.label('pa_mp')
    k(f'buffer_load_dword v9, v8, {sr(SRD_F,4)}, s{S_T0} offen sc1')
    k(f'buffer_load_dword v10, v8, {sr(SRD_F,4)}, s{S_T1} offen sc1')
    k(f's_sub_u32 s{S_CNT}, s{S_CNT}, 1')
    k('s_waitcnt vmcnt(0)')
    k('v_add_u32 v9, v9, v10')
    k('v_cmp_ne_u32 vcc, 2, v9')
    k(f's_cmp_eq_u32 s{S_CNT}, 0')
    k('s_cbranch_scc1 pa_mpd')
    k('s_cmp_eq_u64 vcc, 0')
    k('s_cbranch_scc1 pa_mpd')
    k('s_sleep 2')
    k('s_branch pa_mp')
    k.label('pa_mpd')
    k('s_mov_b64 exec, -1')
    stamp(k, 0)
    ws_srd(k, SRD_O, 'MODP')
    k(f'v_lshlrev_b32 v8, 4, v{VL}')
    k('s_lshr_b32 s79, s73, 5')
    k('s_mul_i32 s79, s79, 9216')
    for ks in range(2):
        for c in range(9):
            if c % 4 == 0:
                k(f's_mov_b32 m0, {L_MOD + ks*9216 + c*1024}')
                k(f's_add_u32 s{S_T0}, s79, {ks*18432 + c*1024}')
            k(f'buffer_load_dwordx4 v8, {sr(SRD_O,4)}, s{S_T0} offen offset:{(c%4)*1024} sc1 lds')
    k('s_waitcnt vmcnt(0)')
    k('s_barrier')
    if C.PERSIST: k('s_barrier')
    k('s_branch pa_hout')
    VMAX[0] = 256

def phase_B(k):
    dispatcher(k)
    k.label('role_T')
    k('s_mul_i32 s66, s67, 9')
    k('s_add_u32 s66, s66, s68')
    k(f's_lshl_b32 s{S_ABASE}, s68, 13')
    k(f's_lshl_b32 s{S_BBASE}, s67, 13')
    k('s_lshl_b32 s75, s68, 2')
    k('s_lshl_b32 s76, s67, 3')
    k(f's_add_u32 s78, s66, {FL["T"]}')
    k('s_lshl_b32 s69, s68, 2')
    div_const(k, 69, 69, 3, 40)
    args_ready(k)
    ws_srd(k, SRD_A, 'WQK'); ws_srd(k, SRD_B, 'H'); ws_srd(k, SRD_O, 'T')
    g1 = Gemm('tt', Opnd('frag', 8, SRD_A, S_ABASE, rbtot=72, aux=LD()), Opnd('frag', 8, SRD_B, S_BBASE, rbtot=128, aux=LD()), 2, 2, 18, C.NS['tt'], rot=R('tt'), win=Wn('tt'))
    def c_pf(k, s_chunk, n, step):
        k(f's_bitcmp1_b32 s{S_WAVE}, 1')
        k(f's_cselect_b32 s{SRD_Y}, s{P_WQC}, s{P_WOC}')
        k(f's_cselect_b32 s{SRD_Y+1}, s{P_WQC+1}, s{P_WOC+1}')
        k(f's_mov_b32 s{SRD_Y+2}, {D*D*2}')
        k(f's_mov_b32 s{SRD_Y+3}, 0x00020000')
        k(f'v_lshlrev_b32 v8, 7, v{VL}')
        k(f's_lshl_b32 s{S_T0}, s{s_chunk}, 13')
        for i in range(n):
            k(f'buffer_load_dword v14, v8, {sr(SRD_Y,4)}, s{S_T0} offen')
            if i + 1 < n: k(f's_add_u32 s{S_T0}, s{S_T0}, {step*8192}')
    def t_pf(k):
        if not C.TPF: return
        if C.TPF == 'c':
            k('s_lshl_b32 s79, s66, 1')
            k(f's_and_b32 s{S_T1}, s{S_WAVE}, 1')
            k(f's_add_u32 s79, s79, s{S_T1}')
            k('s_add_u32 s79, s79, 36')
            c_pf(k, 79, 1, 0)
            return
        k('s_lshl_b32 s79, s66, 2')
        k(f's_add_u32 s79, s79, s{S_WAVE}')
        k('s_add_u32 s79, s79, 72')
        prefetch_flat(k, P_WKVC, D*2*D*2, 79, 648, 14, vtmp=8)
    gemm_role(k, g1, epi_frag16(128, 75, 76), s_flag=78, cons_first=t_pf, depA=dep((69, 9, FL['WQK'], 18)), depB=dep((67, 4, FL['H'], 4)))
    k.label('role_wvo')
    k('s_mul_i32 s66, s67, 9')
    k('s_add_u32 s66, s66, s68')
    if not Wn('wvo'): k('s_mul_i32 s74, s74, 6')
    k(f's_mul_i32 s{S_ABASE}, s68, {128*6912}')
    k(f's_add_u32 s{S_ABASE}, s{S_ABASE}, {2*D*2}')
    k(f's_lshl_b32 s{S_BBASE}, s67, 8')
    k('s_lshl_b32 s75, s68, 2')
    k('s_lshl_b32 s76, s67, 3')
    k(f's_add_u32 s78, s66, {FL["WVO"]}')
    args_ready(k)
    make_srd(k, SRD_A, P_WQKV, D*3*D*2); make_srd(k, SRD_B, P_WO, D*D*2); ws_srd(k, SRD_O, 'WVO')
    g2 = Gemm('wvo', Opnd('row', 8, SRD_A, S_ABASE, stride=6912, perm=True), Opnd('col', 8, SRD_B, S_BBASE, stride=2304), 2, 2, 18, C.NS['wvo'], rot=R('wvo'), win=Wn('wvo'))
    def wvo_exit(k):
        if not C.PERSIST: return
        k('s_lshl_b32 s79, s66, 2')
        k(f's_and_b32 s{S_T1}, s{S_WAVE}, 3')
        k(f's_add_u32 s79, s79, s{S_T1}')
        k(f's_cmp_ge_u32 s{S_WAVE}, 4')
        k(f's_cselect_b32 s{SRD_Y}, s{P_WQC}, s{P_WOC}')
        k(f's_cselect_b32 s{SRD_Y+1}, s{P_WQC+1}, s{P_WOC+1}')
        k(f's_mov_b32 s{SRD_Y+2}, {D*D*2}')
        k(f's_mov_b32 s{SRD_Y+3}, 0x00020000')
        k(f'v_lshlrev_b32 v8, 7, v{VL}')
        k(f's_lshl_b32 s{S_T0}, s79, 13')
        k(f'buffer_load_dword v14, v8, {sr(SRD_Y,4)}, s{S_T0} offen')
    gemm_role(k, g2, epi_frag16(72, 75, 76, rowperm=True), s_flag=78, exit_hook=(wvo_exit if C.WVOPF == 1 else None), end_hookA=wait_init)
    def kv_pf(k, s_idx):
        k(f's_lshl_b32 s79, s{s_idx}, 3')
        k(f's_add_u32 s79, s79, s{S_WAVE}')
        prefetch_flat(k, P_WKVC, D*2*D*2, 79, 224, 14, vtmp=8, maxper=C.KVPF)
    k.label('role_kvc')
    if C.KVPF:
        k('s_lshl_b32 s66, s68, 1')
        k('s_add_u32 s66, s66, s67')
        kv_pf(k, 66)
    k(f's_mul_i32 s{S_ABASE}, s68, 384')
    k(f's_mul_i32 s{S_BBASE}, s67, {77*2304}')
    k('s_mul_i32 s78, s67, 12')
    k('s_add_u32 s78, s78, s68')
    k(f's_add_u32 s78, s78, {FL["KVC"]}')
    args_ready(k)
    make_srd(k, SRD_A, P_WKVC, D*2*D*2); make_srd(k, SRD_B, P_Y, 2*77*D*2); ws_srd(k, SRD_O, 'KVC')
    g3 = Gemm('kvc', Opnd('col', 12, SRD_A, S_ABASE, stride=4608), Opnd('row', 5, SRD_B, S_BBASE, stride=2304), 4, 1, 18, 4)
    def epi_kvc(k, g):
        k(f'v_and_b32 v1, 15, v{VL}\nv_lshlrev_b32 v1, 4, v1\nv_lshrrev_b32 v{VT}, 5, v{VL}\nv_lshl_add_u32 v1, v{VT}, 8, v1')
        k(f'v_bfe_u32 v{VT}, v{VL}, 4, 1\nv_lshl_add_u32 v1, v{VT}, 3, v1')
        k('s_mul_i32 s70, s68, 12')
        k(f's_mul_i32 s71, s{S_WA}, 3')
        k('s_add_u32 s70, s70, s71')
        k('s_mul_i32 s72, s67, 5120')
        t = g.VF
        for i in range(3):
            k(f's_add_u32 s71, s70, {i}')
            k(f's_lshr_b32 s{S_T0}, s71, 1')
            k(f's_mul_i32 s{S_T0}, s{S_T0}, 10240')
            k('s_and_b32 s71, s71, 1')
            k('s_lshl_b32 s71, s71, 9')
            k(f's_add_u32 s{S_T0}, s{S_T0}, s71')
            k(f's_add_u32 s{S_T0}, s{S_T0}, s72')
            for b in range(5):
                c0 = acc(g, i, b)
                k(f'v_cvt_pk_bf16_f32 v{t}, v{c0}, v{c0+1}')
                k(f'v_cvt_pk_bf16_f32 v{t+1}, v{c0+2}, v{c0+3}')
                if b == 4: k(f's_add_u32 s{S_T0}, s{S_T0}, 4096')
                k(f'buffer_store_dwordx2 {vr(t,2)}, v1, {sr(SRD_O,4)}, s{S_T0} offen offset:{(b%4)*1024}{ST}')
                t += 2
    gemm_role(k, g3, epi_kvc, s_flag=78, end_hookA=wait_init)
    k.label('role_gate')
    k('s_mov_b32 s73, s67')
    k('s_mov_b32 s72, s68')
    k.label('pb_gate')
    gate_job(k, 73)
    k('s_add_u32 s73, s73, 1')
    k('s_sub_u32 s72, s72, 1')
    k('s_cmp_lg_u32 s72, 0')
    k('s_cbranch_scc1 pb_gate')
    phase_exit(k, drain=False)
    k.label('role_pf')
    if C.TPF == 'c':
        k(f's_and_b32 s79, s{S_WAVE}, 1')
        k(f's_lshr_b32 s78, s{S_WAVE}, 2')
        k('s_lshl_b32 s78, s78, 1')
        k('s_add_u32 s79, s79, s78')
        k('s_lshl_b32 s78, s67, 2')
        k('s_add_u32 s79, s79, s78')
        c_pf(k, 79, 3, 12)
    elif C.TPF:
        k('s_sub_u32 s79, s67, 24')
        k('s_lshl_b32 s79, s79, 3')
        k(f's_add_u32 s79, s79, s{S_WAVE}')
        prefetch_flat(k, P_WKVC, D*2*D*2, 79, 32, 14, vtmp=8, maxper=3)
    else: kv_pf(k, 67)
    phase_exit(k, drain=False)

def phase_C(k):
    k.label('role_S')
    k('s_mov_b32 s70, s67')
    k('s_lshr_b32 s66, s70, 3')
    k('s_and_b32 s67, s70, 7')
    k('s_lshl_b32 s69, s66, 3')
    k('s_add_u32 s71, s69, s68')
    k(f's_lshl_b32 s{S_ABASE}, s71, 13')
    k(f's_lshl_b32 s{S_BBASE}, s70, 13')
    k('s_lshl_b32 s75, s68, 2')
    k('s_lshl_b32 s76, s67, 3')
    k('s_lshl_b32 s77, s66, 21')
    k('s_lshl_b32 s72, s70, 3')
    k('s_add_u32 s72, s72, s68')
    k(f's_add_u32 s72, s72, {FL["P"]}')
    args_ready(k)
    ws_srd(k, SRD_A, 'H'); ws_srd(k, SRD_B, 'T'); ws_srd(k, SRD_O, 'P'); ws_srd(k, SRD_X, 'ST')
    g1 = Gemm('ss', Opnd('frag', 8, SRD_A, S_ABASE, rbtot=128, aux=LD()), Opnd('frag', 8, SRD_B, S_BBASE, rbtot=128, aux=LD()), 1, 4, 18, C.NS['ss'], rot=R('ss'), win=Wn('ss'))
    def epi_s(k, g):
        k(f's_mov_b32 s78, {f32(CSC)}')
        k(f's_mov_b32 s79, 0x3f803f80')
        VM = (g.VX + 3) // 4 * 4
        k(f's_lshl_b32 s{S_T0}, s75, 6')
        k(f's_add_u32 s{S_T0}, s{S_T0}, s76')
        k(f's_lshl_b32 s{S_T1}, s{S_WB}, 1')
        k(f's_add_u32 s{S_T0}, s{S_T0}, s{S_T1}')
        k(f's_lshl_b32 s{S_OBASE}, s{S_T0}, 10')
        k(f's_add_u32 s{S_OBASE}, s{S_OBASE}, s77')
        k(f'v_lshlrev_b32 v1, 4, v{VL}')
        t = g.VF
        for b in range(2):
            regs = [acc(g, a, b) + r for a in range(8) for r in range(4)]
            m = VM + b; m2 = VM + 4 + b
            k(f'v_max3_f32 v{m}, v{regs[0]}, v{regs[1]}, v{regs[2]}')
            k(f'v_max3_f32 v{m2}, v{regs[3]}, v{regs[4]}, v{regs[5]}')
            i = 6; tog = 0
            while i < 32:
                d = m if tog == 0 else m2
                k(f'v_max3_f32 v{d}, v{d}, v{regs[i]}, v{regs[i+1]}')
                i += 2; tog ^= 1
            k(f'v_max_f32 v{m}, v{m}, v{m2}')
        for sw in ('v_permlane32_swap_b32', 'v_permlane16_swap_b32'):
            k(f'v_mov_b32 v{VM+4}, v{VM}\nv_mov_b32 v{VM+5}, v{VM+1}')
            k('s_nop 0')
            k(f'{sw} v{VM}, v{VM+4}')
            k(f'{sw} v{VM+1}, v{VM+5}')
            k('s_nop 0')
            k(f'v_max_f32 v{VM}, v{VM}, v{VM+4}\nv_max_f32 v{VM+1}, v{VM+1}, v{VM+5}')
        k(f'v_mul_f32 v{VM}, s78, v{VM}\nv_mul_f32 v{VM+1}, s78, v{VM+1}')
        k(f'v_mov_b32 v{VM+2}, 0\nv_mov_b32 v{VM+3}, 0')
        for ap in range(4):
            for b in range(2):
                regs = [acc(g, 2*ap+h, b) + r for h in range(2) for r in range(4)]
                for r in regs: k(f'v_fma_f32 v{r}, v{r}, s78, -v{VM+b}')
                for r in regs: k(f'v_exp_f32 v{r}, v{r}')
                k(f's_add_u32 s{S_T0}, s{S_OBASE}, {ap*64*1024}')
                for j in range(4): k(f'v_cvt_pk_bf16_f32 v{t+j}, v{regs[2*j]}, v{regs[2*j+1]}')
                k(f'buffer_store_dwordx4 {vr(t,4)}, v1, {sr(SRD_O,4)}, s{S_T0} offen offset:{b*1024}{ST}')
                for j in range(4): k(f'v_dot2_f32_bf16 v{VM+2+b}, v{t+j}, s79, v{VM+2+b}')
                t += 4
        k('s_nop 2')
        for sw in ('v_permlane32_swap_b32', 'v_permlane16_swap_b32'):
            k(f'v_mov_b32 v{VM+4}, v{VM+2}\nv_mov_b32 v{VM+5}, v{VM+3}')
            k('s_nop 0')
            k(f'{sw} v{VM+2}, v{VM+4}')
            k(f'{sw} v{VM+3}, v{VM+5}')
            k('s_nop 0')
            k(f'v_add_f32 v{VM+2}, v{VM+2}, v{VM+4}\nv_add_f32 v{VM+3}, v{VM+3}, v{VM+5}')
        k(f's_lshl_b32 s{S_T0}, s70, 2')
        k(f's_add_u32 s{S_T0}, s{S_T0}, s{S_WB}')
        k(f's_lshl_b32 s{S_T0}, s{S_T0}, 3')
        k(f's_add_u32 s{S_T0}, s{S_T0}, s68')
        k(f's_lshl_b32 s{S_T0}, s{S_T0}, 8')
        k('s_mov_b64 exec, 0xffff')
        k(f'buffer_store_dwordx4 {vr(VM,4)}, v1, {sr(SRD_X,4)}, s{S_T0} offen{ST}')
        k('s_mov_b64 exec, -1')
        g.vmax = VM + 6
    gemm_role(k, g1, epi_s, s_flag=72, depA=dep((71, 4, FL['H'], 4)), depB=dep((70, 9, FL['T'], 9)))
    k.label('role_V')
    k('s_mov_b32 s66, s67')
    k('s_mov_b32 s67, s68')
    k(f's_lshl_b32 s{S_ABASE}, s66, 13')
    k(f's_mul_i32 s{S_BBASE}, s67, {9*1024}')
    k('s_lshl_b32 s75, s66, 2')
    k('s_mul_i32 s76, s67, 9')
    k('s_lshr_b32 s72, s66, 3')
    k('s_lshl_b32 s72, s72, 3')
    k('s_add_u32 s72, s72, s67')
    k('s_lshl_b32 s72, s72, 3')
    k('s_and_b32 s73, s66, 7')
    k('s_add_u32 s72, s72, s73')
    k(f's_add_u32 s72, s72, {FL["V"]}')
    args_ready(k)
    ws_srd(k, SRD_A, 'H'); ws_srd(k, SRD_B, 'WVO'); ws_srd(k, SRD_O, 'VT')
    g2 = Gemm('vv', Opnd('frag', 8, SRD_A, S_ABASE, rbtot=128, aux=LD()), Opnd('frag', 9, SRD_B, S_BBASE, rbtot=72, aux=LD()), 4, 1, 18, C.NS['vv'], rot=R('vv'), win=Wn('ss'))
    def v_tail(k):
        k('s_lshr_b32 s79, s66, 3')
        k('s_lshl_b32 s79, s79, 1')
        k('s_sub_u32 s79, s66, s79')
        k('s_lshl_b32 s79, s79, 3')
        k('s_add_u32 s79, s79, s67')
        k('s_lshl_b32 s79, s79, 2')
        k(f's_add_u32 s79, s79, s{S_WAVE}')
        k('s_sub_u32 s79, s79, 4')
        k('s_cmp_ge_u32 s73, 6')
        k('s_cselect_b32 s79, 400, s79')
        prefetch_flat(k, P_WQC, D*D*2, 79, 384, 14, vtmp=8)
        prefetch_flat(k, P_WOC, D*D*2, 79, 384, 14, vtmp=8)
        return 2
    gemm_role(k, g2, epi_frag16(72, 75, 76), s_flag=72, depA=dep((66, 4, FL['H'], 4)), depB=dep((67, 9, FL['WVO'], 18)), tail=(v_tail if C.WVOPF == 0 else None))

E_VAT, E_VX, E_VZ = 16, 196, 232
def e_at_loads(k):
    ws_srd(k, SRD_B, 'AT')
    k(f's_sub_u32 s71, s{S_WAVE}, 4')
    k(f's_mul_i32 s72, s71, {9*10}')
    k('s_mul_i32 s73, s66, 5')
    k('s_add_u32 s72, s72, s73')
    k('s_lshl_b32 s72, s72, 10')
    for i in range(9):
        k('s_add_u32 s73, s72, 4096')
        for mb in range(5):
            k(f'buffer_load_dwordx4 {vr(E_VAT+20*i+4*mb,4)}, v1, {sr(SRD_B,4)}, s{72 if mb < 4 else 73} offen offset:{(mb%4)*1024}{LD()}')
        if i < 8: k('s_add_u32 s72, s72, 10240')

def e_preload_hook(k):
    if not C.PERSIST: return
    k(f'v_lshlrev_b32 v8, 7, v{VL}')
    k('s_lshr_b32 s66, s64, 2')
    k(f's_mul_i32 s85, s66, {C.NAT}')
    k(f's_add_u32 s85, s85, {FL["AT"]}')
    k('s_lshl_b32 s85, s85, 7')
    k(f's_mov_b64 exec, {hex((1 << C.NAT) - 1)}')
    k(f'buffer_load_dword v9, v8, {sr(SRD_F,4)}, s85 offen sc1')
    k('s_waitcnt vmcnt(0)')
    k('v_cmp_ne_u32 vcc, 1, v9')
    k('s_mov_b64 exec, -1')
    k('s_cmp_eq_u64 vcc, 0')
    k('s_cbranch_scc1 pe_early')

def phase_D(k):
    k.label('role_PV')
    k('s_lshr_b32 s66, s67, 3')
    k('s_and_b32 s67, s67, 7')
    k(f's_mul_i32 s{S_ABASE}, s66, {32*72*1024}')
    k('s_mul_i32 s69, s68, 6144')
    k(f's_add_u32 s{S_ABASE}, s{S_ABASE}, s69')
    k(f's_lshl_b32 s{S_BBASE}, s66, 21')
    k('s_lshl_b32 s69, s67, 13')
    k(f's_add_u32 s{S_BBASE}, s{S_BBASE}, s69')
    k('s_lshl_b32 s70, s66, 3')
    k('s_add_u32 s70, s70, s67')
    k('s_mul_i32 s75, s68, 3')
    k('s_lshl_b32 s76, s70, 3')
    k('s_mul_i32 s72, s70, 12')
    k('s_add_u32 s72, s72, s68')
    k(f's_add_u32 s72, s72, {FL["X1"]}')
    k('s_lshl_b32 s71, s68, 1')
    div_const(k, 71, 71, 3, 24)
    k('s_min_u32 s71, s71, 6')
    k('s_lshl_b32 s73, s66, 3')
    k('s_add_u32 s71, s71, s73')
    args_ready(k)
    ws_srd(k, SRD_A, 'VT'); ws_srd(k, SRD_B, 'P'); ws_srd(k, SRD_O, 'X1')
    g1 = Gemm('pv', Opnd('frag', 6, SRD_A, S_ABASE, rbtot=72, aux=LD()), Opnd('frag', 8, SRD_B, S_BBASE, rbtot=64, aux=LD()), 1, 4, 16, C.NS['pv'], lds0=8192, rot=R('pv'), win=Wn('pv'))
    def depB_pv(k):
        dep((70, 8, FL['P'], 8))(k)
        ws_srd(k, SRD_X, 'ST')
        k(f's_lshl_b32 s{S_T1}, s{S_W2}, 12')
        k(f's_mov_b32 m0, s{S_T1}')
        k(f's_lshl_b32 s{S_T0}, s70, 13')
        k(f's_add_u32 s{S_T0}, s{S_T0}, s{S_T1}')
        for i in range(4): k(f'buffer_load_dwordx4 v1, {sr(SRD_X,4)}, s{S_T0} offen offset:{i*1024}{LD()} lds')
    def pv_consumer(k, g):
        ma, nb = 6, 2
        VF, VX = g.VF, g.VX
        VGT, VXR, VXF, VS, VR, VMX, VRF, VLS, VSA, VE, VBP = VX, VX+24, VX+48, VX+72, VX+76, VX+78, VX+80, VX+82, VX+84, VX+85, VX+87
        def side_loads():
            ws_srd(k, SRD_Y, 'GATE')
            k(f'v_lshrrev_b32 v1, 4, v{VL}\nv_lshlrev_b32 v1, 5, v1')
            k(f's_mul_i32 s{S_T0}, s66, 4608')
            k(f's_mul_i32 s{S_T1}, s68, 384')
            k(f's_add_u32 s{S_T0}, s{S_T0}, s{S_T1}')
            for ap in range(3):
                for h in range(2):
                    k(f'buffer_load_dwordx4 {vr(VGT+8*ap+4*h,4)}, v1, {sr(SRD_Y,4)}, s{S_T0} offen offset:{ap*128+16*h}{LD()}')
        make_srd(k, SRD_Y, P_X, NR*D*2)
        quad_voff(k, 1, 2304)
        k('s_lshl_b32 s79, s70, 2')
        k(f's_add_u32 s79, s79, s{S_WB}')
        k(f's_mul_i32 s{S_T0}, s79, {32*2304}')
        k(f's_mul_i32 s{S_T1}, s68, 192')
        k(f's_add_u32 s{S_T0}, s{S_T0}, s{S_T1}')
        k(f's_add_u32 s{S_T1}, s{S_T0}, {16*2304}')
        for ap in range(3):
            for b in range(2):
                k(f'buffer_load_dwordx4 {vr(VXR+(ap*2+b)*4,4)}, v1, {sr(SRD_Y,4)}, s{S_T0 if b == 0 else S_T1} offen offset:{ap*64}')
        if not C.PERSIST: side_loads()
        k(f'v_and_b32 v{VSA}, 15, v{VL}\nv_lshlrev_b32 v{VSA}, 4, v{VSA}')
        k(f's_lshl_b32 s{S_T0}, s{S_WB}, 11')
        k(f'v_add_u32 v{VSA}, s{S_T0}, v{VSA}')
        k('s_mov_b32 s77, 0')
        if g.rot is not None: k('s_lshl_b32 s73, s74, 7')
        else: k('s_mov_b32 s73, 0')
        WM = ((g.win or 16)//2)*256 - 1
        aA = cons_addr_setup(k, g, g.A, ma, S_WA, VL, VA, VT)
        aB = cons_addr_setup(k, g, g.B, nb, S_WB, VL, VA + len(aA), VT)
        addrs = aA + aB
        for i in range(ma*nb*4): k(f'v_mov_b32 v{VACC+i}, 0')
        q2f_addr(k, VBP)
        k(f'v_mov_b32 v{VMX}, {f32(-3.0e38)}\nv_mov_b32 v{VMX+1}, {f32(-3.0e38)}')
        k(f'v_mov_b32 v{VRF}, {f32(-3.0e38)}\nv_mov_b32 v{VRF+1}, {f32(-3.0e38)}')
        k(f'v_mov_b32 v{VLS}, 0\nv_mov_b32 v{VLS+1}, 0')
        k(f's_mov_b32 s78, {f32(-64.0)}')
        k(f'v_mov_b32 v{VE}, {L_CNT}')
        k(f'ds_write_b32 v{VE}, v{VLS}')
        k('s_waitcnt lgkmcnt(0)')
        setsz = (ma + nb) * 4
        def fa(st, a): return VF + st*setsz + 4*a
        def fb(st, b): return VF + st*setsz + 4*ma + 4*b
        def reads(s, st):
            return cons_reads(g, g.B, nb, aB, s, fb(st, 0)) + cons_reads(g, g.A, ma, aA, s, fa(st, 0))
        def mf(st):
            return [f'v_mfma_f32_16x16x32_bf16 {vr(acc(g,a,b),4)}, {vr(fa(st,a),4)}, {vr(fb(st,b),4)}, {vr(acc(g,a,b),4)}'
                    for a in range(ma) for b in range(nb)]
        def muls(i):
            a, b = divmod(i, nb)
            c = acc(g, a, b)
            if C.PKMUL == 2: return ['s_nop 0']
            if C.PKMUL:
                sel = 'op_sel:[0,0] op_sel_hi:[1,0]' if b == 0 else 'op_sel:[0,1] op_sel_hi:[1,1]'
                return [f'v_pk_mul_f32 {vr(c+r,2)}, {vr(c+r,2)}, {vr(VR,2)} {sel}' for r in (0, 2)]
            return [f'v_mul_f32 v{c+r}, v{VR+b}, v{c+r}' for r in range(4)]
        def upd():
            o = []
            for b in range(2): o.append(f'v_max_f32 v{VMX+b}, v{VMX+b}, v{VS+b}')
            for b in range(2): o.append(f'v_add_f32 v{VE+b}, s78, v{VMX+b}')
            for b in range(2): o.append(f'v_max_f32 v{VE+b}, v{VE+b}, v{VS+b}')
            for b in range(2): o.append(f'v_sub_f32 v{VR+b}, v{VRF+b}, v{VE+b}')
            for b in range(2): o.append(f'v_exp_f32 v{VR+b}, v{VR+b}')
            for b in range(2): o.append(f'v_mov_b32 v{VRF+b}, v{VE+b}')
            for b in range(2): o.append(f'v_fma_f32 v{VLS+b}, v{VLS+b}, v{VR+b}, v{VS+2+b}')
            return o
        srd_ = [f's_add_u32 s{S_T0}, s77, s73', f's_and_b32 s{S_T0}, s{S_T0}, {WM}', f's_andn2_b32 s{S_T1}, s77, {WM}', f's_add_u32 s{S_T0}, s{S_T0}, s{S_T1}', f'v_add_u32 v{VE}, s{S_T0}, v{VSA}', f'ds_read_b128 {vr(VS,4)}, v{VE}', 's_add_u32 s77, s77, 256']
        adv = [f's_add_u32 s{S_SLOT}, s{S_SLOT}, {g.stage}',
               f's_cmp_eq_u32 s{S_SLOT}, {g.NS*g.stage}',
               f's_cselect_b32 s{S_DELTA}, {-(g.NS-1)*g.stage & 0xffffffff}, s{S_T3}',
               f's_cselect_b32 s{S_SLOT}, 0, s{S_SLOT}'] + [f'v_add_u32 v{a}, s{S_DELTA}, v{a}' for a in addrs]
        k(f's_mov_b32 s{S_SLOT}, 0')
        k(f's_mov_b32 s{S_CNT}, 8')
        k(f's_mov_b32 s{S_T3}, {g.stage}')
        k('s_barrier')
        stamp(k, 0); cstamp(k, 4)
        for x in srd_: k(x)
        for r in reads(0, 0): k(r)
        k('s_waitcnt lgkmcnt(8)')
        for x in upd(): k(x)
        k('s_waitcnt lgkmcnt(0)')
        lp = k.newlabel('pv_mm'); le = k.newlabel('pv_last')
        k.label(lp)
        M = mf(0); fill = reads(1, 1) + adv
        for x in muls(0): k(x)
        for i in range(12):
            if i + 1 < 12:
                for x in muls(i+1): k(x)
            else:
                k('s_nop 1')
            k(M[i])
            if fill: k(fill.pop(0))
        for f in fill: k(f)
        k('s_waitcnt lgkmcnt(0)')
        k('s_barrier')
        interleave(k, mf(1), reads(0, 0) + srd_ + [f's_sub_u32 s{S_CNT}, s{S_CNT}, 1'])
        k('s_waitcnt lgkmcnt(0)')
        interleave(k, mf(0), reads(1, 1) + adv)
        k('s_waitcnt lgkmcnt(0)')
        k(f's_cmp_eq_u32 s{S_CNT}, 0')
        k(f's_cbranch_scc1 {le}')
        k('s_barrier')
        interleave(k, mf(1), reads(0, 0) + upd(), per=2)
        if C.PERSIST:
            k(f's_cmp_eq_u32 s{S_CNT}, 4')
            k('s_cbranch_scc1 pv_g1')
            k(f's_cmp_eq_u32 s{S_CNT}, 2')
            k('s_cbranch_scc1 pv_g2')
            k.label('pv_gback')
        k('s_waitcnt lgkmcnt(0)')
        k(f's_branch {lp}')
        if C.PERSIST:
            k.label('pv_g1')
            k(f'v_lshlrev_b32 v1, 7, v{VL}')
            k(f's_mov_b32 s{S_T0}, {FL["GATE"]*128}')
            k('s_mov_b64 exec, 0x3ffff')
            k(f'buffer_load_dword v{VGT}, v1, {sr(SRD_F,4)}, s{S_T0} offen sc1')
            k('s_mov_b64 exec, -1')
            k('s_branch pv_gback')
            k.label('pv_g2')
            k('s_mov_b64 exec, 0x3ffff')
            k('s_waitcnt vmcnt(0)')
            k(f'v_cmp_ne_u32 vcc, 1, v{VGT}')
            k('s_mov_b64 exec, -1')
            k('s_cmp_eq_u64 vcc, 0')
            k('s_cbranch_scc1 pv_g3')
            k(f's_mov_b32 s85, {FL["GATE"]}')
            poll(k, 85, 18, vt=VGT)
            k(f's_mov_b32 s{S_CNT}, 2')
            k.label('pv_g3')
            side_loads()
            k('s_branch pv_gback')
        k.label(le)
        k('s_waitcnt vmcnt(0)')
        bp = [f'ds_bpermute_b32 v{VXF+j}, v{VBP}, v{VXR+j}' for j in range(24)]
        interleave(k, mf(1), bp + [f'v_rcp_f32 v{VLS}, v{VLS}', f'v_rcp_f32 v{VLS+1}, v{VLS+1}'], per=2)
        g.VGT, g.VXF, g.VLS, g.VE = VGT, VXF, VLS, VE
        g.vmax = VBP + 1
    def epi_pv(k, g):
        k(f's_lshl_b32 s{S_T0}, s75, 7')
        k(f's_add_u32 s{S_T0}, s{S_T0}, s76')
        k(f's_lshl_b32 s{S_T1}, s{S_WB}, 1')
        k(f's_add_u32 s{S_T0}, s{S_T0}, s{S_T1}')
        k(f's_lshl_b32 s{S_OBASE}, s{S_T0}, 10')
        k(f'v_lshlrev_b32 v1, 4, v{VL}')
        k('s_waitcnt lgkmcnt(0)')
        T = g.VE
        t = g.VF
        for ap in range(3):
            for b in range(2):
                xr = g.VXF + (ap*2+b)*4
                regs = [acc(g, 2*ap+h, b) + r for h in range(2) for r in range(4)]
                for e in range(8):
                    k(f'v_mul_f32 v{regs[e]}, v{g.VLS+b}, v{regs[e]}')
                    if e % 2 == 0: k(f'v_lshlrev_b32 v{T}, 16, v{xr+e//2}')
                    else: k(f'v_and_b32 v{T}, 0xffff0000, v{xr+e//2}')
                    k(f'v_fma_f32 v{regs[e]}, v{regs[e]}, v{g.VGT+8*ap+e}, v{T}')
                for j in range(4): k(f'v_cvt_pk_bf16_f32 v{t+j}, v{regs[2*j]}, v{regs[2*j+1]}')
                k(f's_add_u32 s{S_T0}, s{S_OBASE}, {ap*128*1024}')
                k(f'buffer_store_dwordx4 {vr(t,4)}, v1, {sr(SRD_O,4)}, s{S_T0} offen offset:{b*1024}{ST}')
                t += 4
    gemm_role(k, g1, epi_pv, s_flag=72, custom_consumer=pv_consumer, depA=dep((71, 8, FL['V'], 16, C.VM[0][1])), midA=[(st, dep((71, 8, FL['V'], 16, m))) for st, m in C.VM[1:]], depB=depB_pv, end_hookA=e_preload_hook, end_hookB=e_preload_hook, lds_sig=True)
    k.label('role_AT')
    NAT = C.NAT
    k(f's_mul_i32 s{S_ABASE}, s68, {(1152//NAT)*2304}')
    k(f's_mul_i32 s{S_BBASE}, s67, 5120')
    k(f's_mul_i32 s75, s68, {36//NAT}')
    k('s_mul_i32 s76, s67, 5')
    k(f's_mul_i32 s72, s67, {NAT}')
    k('s_add_u32 s72, s72, s68')
    k(f's_add_u32 s72, s72, {FL["AT"]}')
    k('s_mul_i32 s74, s67, 9')
    make_srd(k, SRD_A, P_WQC, D*D*2); ws_srd(k, SRD_B, 'KVC'); ws_srd(k, SRD_O, 'AT')
    if NAT == 18:
        g2 = Gemm('at', Opnd('row', 4, SRD_A, S_ABASE, stride=2304, perm=True), Opnd('frag', 5, SRD_B, S_BBASE, rbtot=10, aux=LD()), 2, 2, 18, C.NS['at'], rot=R('at'), nb_ov=(3, 2))
    else:
        g2 = Gemm('at', Opnd('row', 8, SRD_A, S_ABASE, stride=2304, perm=True), Opnd('frag', 5, SRD_B, S_BBASE, rbtot=10, aux=LD()), 4, 1, 18, 4, rot=R('at'))
    gemm_role(k, g2, epi_frag16(10, 75, 76), s_flag=72, depB=dep((67, 12, FL['KVC'], 6)))
    k.label('role_BT')
    k(f's_mul_i32 s{S_ABASE}, s67, 5120')
    k(f's_add_u32 s{S_ABASE}, s{S_ABASE}, {36*10*1024}')
    k(f's_lshl_b32 s{S_BBASE}, s68, 8')
    k('s_mul_i32 s75, s67, 3')
    k('s_lshl_b32 s76, s68, 3')
    k('s_mul_i32 s72, s67, 9')
    k('s_add_u32 s72, s72, s68')
    k(f's_add_u32 s72, s72, {FL["BT"]}')
    k('s_mul_i32 s74, s67, 9')
    args_ready(k)
    ws_srd(k, SRD_A, 'KVC'); make_srd(k, SRD_B, P_WOC, D*D*2); ws_srd(k, SRD_O, 'BT')
    g3 = Gemm('bt', Opnd('frag', 5, SRD_A, S_ABASE, rbtot=10, aux=LD()), Opnd('col', 8, SRD_B, S_BBASE, stride=2304), 1, 4, 18, C.NS['bt'], rot=R('bt'))
    gemm_role(k, g3, epi_frag16(72, 75, 76, rowperm=True), s_flag=72, depA=dep((67, 12, FL['KVC'] + 6, 6)))

def phase_E(k):
    if C.PERSIST:
        k.label('pe_early')
        k('s_mov_b32 s81, 1')
        k('s_add_u32 s80, s80, 1')
        k('s_branch pe_at')
    k.label('role_E')
    L_ST, L_CS, L_CS2, L_Z, L_RS, L_BT = 0, 512, 2048, 3072, 23552, 41984
    VAT, VX_, VZ = E_VAT, E_VX, E_VZ
    k('s_lshr_b32 s66, s64, 2')
    k(f'v_lshlrev_b32 v1, 4, v{VL}')
    k('s_mov_b32 s81, 0')
    args_ready(k)
    k(f's_cmp_lt_u32 s{S_WAVE}, 4')
    k('s_cbranch_scc1 pe_common')
    dep((66, C.NAT, FL['AT'], C.NAT))(k)
    if C.PERSIST:
        k.label('pe_at')
        e_at_loads(k)
        k('s_cmp_eq_u32 s81, 0')
        k('s_cbranch_scc1 pe_common')
        k('s_barrier')
        stamp_begin(k)
    k.label('pe_common')
    k('s_bfe_u32 s67, s64, 0x10001')
    k('s_and_b32 s68, s64, 1')
    k('s_lshl_b32 s68, s68, 5')
    k('s_add_u32 s68, s68, s65')
    k('s_lshl_b32 s69, s66, 6')
    k('s_add_u32 s68, s68, s69')
    k('s_lshr_b32 s70, s68, 3')
    ws_srd(k, SRD_A, 'X1'); make_srd(k, SRD_O, P_OUT, NR*D*2)
    k(f's_cmp_lt_u32 s{S_WAVE}, 4')
    k('s_cbranch_scc1 pe_l')
    k(f's_sub_u32 s71, s{S_WAVE}, 4')
    k(f's_mul_i32 s74, s71, {9*128}')
    k('s_add_u32 s74, s74, s68')
    k('s_lshl_b32 s74, s74, 10')
    def load_x():
        for i in range(9):
            k(f'buffer_load_dwordx4 {vr(VX_+4*i,4)}, v1, {sr(SRD_A,4)}, s74 offen{LD()}')
            if i < 8: k(f's_add_u32 s74, s74, {128*1024}')
    if not C.PERSIST:
        e_at_loads(k)
        load_x()
    k('s_mov_b32 s77, 0x3f803f80')
    for j in range(4): k(f'v_mov_b32 v{12+j}, s77')
    k(f's_mul_i32 s{S_T1}, s71, 5120')
    k(f'v_add_u32 v6, s{S_T1}, v1')
    k(f'v_lshrrev_b32 v7, 5, v{VL}\nv_lshlrev_b32 v7, 6, v7\nv_and_b32 v10, 15, v{VL}\nv_lshl_add_u32 v7, v10, 2, v7')
    k(f's_lshl_b32 s{S_T0}, s71, 7')
    k(f'v_add_u32 v7, s{S_T0}, v7')
    k(f'v_lshlrev_b32 v252, 7, v{VL}')
    k('s_mul_i32 s85, s70, 12')
    k(f's_add_u32 s85, s85, {FL["X1"]}')
    k('s_lshl_b32 s76, s85, 7')
    k('s_mov_b64 exec, 0xfff')
    k(f'buffer_load_dword v253, v252, {sr(SRD_F,4)}, s76 offen sc1')
    k('s_mov_b64 exec, -1')
    k('v_mov_b32 v2, 0\nv_mov_b32 v3, 0\nv_mov_b32 v4, 0\nv_mov_b32 v5, 0')
    k(f's_mul_i32 s{S_T0}, s71, 320')
    k(f'v_add_u32 v10, s{S_T0}, v{VL}')
    k('s_and_b32 s75, s71, 1')
    k('s_mul_i32 s75, s75, 9216')
    k('v_add_u32 v11, s75, v1')
    for i in range(9):
        k(f's_waitcnt vmcnt({5*(8-i) + 1})')
        for mb in range(5):
            c = '0' if i == 0 else vr(VZ+4*mb, 4)
            k(f'v_mfma_f32_16x16x32_bf16 {vr(VZ+4*mb,4)}, {vr(VAT+20*i+4*mb,4)}, v[12:15], {c}')
    k('s_mov_b64 exec, 0xfff')
    k('s_waitcnt vmcnt(0)')
    k('v_cmp_ne_u32 vcc, 1, v253')
    k('s_mov_b64 exec, -1')
    k('s_cmp_eq_u64 vcc, 0')
    k('s_cselect_b32 s81, 1, 0')
    k('s_cbranch_scc0 pe_x_late')
    k.label('pe_x_go')
    stamp(k, 1)
    load_x()
    k('s_cmp_eq_u32 s81, 0')
    k('s_cbranch_scc1 pe_x_done')
    k.label('pe_x_late')
    k('s_nop 2')
    k('s_mov_b32 exec_lo, 0x00010001\ns_mov_b32 exec_hi, 0x00010001')
    for mb in range(5): k(f'ds_write_b128 v10, {vr(VZ+4*mb,4)} offset:{L_CS + mb*64}')
    k('s_mov_b64 exec, -1')
    stamp(k, 0)
    k('s_waitcnt lgkmcnt(0)')
    k('s_barrier')
    k('s_cmp_eq_u32 s81, 1')
    k('s_cbranch_scc1 pe_x_done')
    poll(k, 85, 12)
    k('s_branch pe_x_go')
    k.label('pe_x_done')
    for i in range(9):
        k(f's_waitcnt vmcnt({8-i})')
        mm = []
        for mb in range(5):
            c = '0' if i == 0 else vr(VZ+4*mb, 4)
            mm.append(f'v_mfma_f32_16x16x32_bf16 {vr(VZ+4*mb,4)}, {vr(VAT+20*i+4*mb,4)}, {vr(VX_+4*i,4)}, {c}')
        dd = []
        for j in range(4*i, 4*i+4):
            dd.append(f'v_dot2_f32_bf16 v{2+(j&1)}, v{VX_+j}, s77, v{2+(j&1)}')
            dd.append(f'v_dot2_f32_bf16 v{4+(j&1)}, v{VX_+j}, v{VX_+j}, v{4+(j&1)}')
        interleave(k, mm, dd, per=2)
    k('s_lshr_b32 s75, s71, 1')
    k('s_cmp_lg_u32 s75, s67')
    k('s_cbranch_scc1 pe_nors')
    for i in range(9): k(f'ds_write_b128 v11, {vr(VX_+4*i,4)} offset:{L_RS + i*1024}')
    k.label('pe_nors')
    k('v_add_f32 v2, v2, v3\nv_add_f32 v4, v4, v5')
    k('s_nop 1')
    k('v_permlane32_swap_b32 v2, v4')
    k('s_nop 0')
    k('v_add_f32 v2, v2, v4')
    k('v_mov_b32 v3, v2')
    for mb in range(5): k(f'ds_write_b128 v6, {vr(VZ+4*mb,4)} offset:{L_Z + mb*1024}')
    k('v_permlane16_swap_b32 v2, v3')
    k('s_nop 0')
    k('v_add_f32 v2, v2, v3')
    k(f'ds_write_b32 v7, v2 offset:{L_ST}')
    stamp(k, 2)
    k(f's_cmp_ge_u32 s{S_WAVE}, 6')
    k('s_cbranch_scc0 pe_g2pre')
    k('s_waitcnt lgkmcnt(0)')
    k('s_barrier')
    phase_exit(k)
    k.label('pe_l')
    VRS, VP, VB, VZ2, VO, VQ, VCS = 16, 28, 40, 112, 192, 216, 232
    ws_srd(k, SRD_X, 'BT')
    k('s_mul_i32 s75, s66, 216')
    k('s_mul_i32 s76, s67, 36')
    k('s_add_u32 s75, s75, s76')
    k(f's_mul_i32 s76, s{S_WAVE}, 9')
    k('s_add_u32 s75, s75, s76')
    k('s_lshl_b32 s75, s75, 10')
    k('s_lshl_b32 s76, s76, 10')
    k(f's_add_u32 s76, s76, {L_BT}')
    k(f'v_lshlrev_b32 v252, 7, v{VL}')
    k('s_mul_i32 s85, s66, 9')
    k(f's_add_u32 s85, s85, {FL["BT"]}')
    k('s_lshl_b32 s77, s85, 7')
    k('s_mov_b64 exec, 0x1ff')
    k(f'buffer_load_dword v253, v252, {sr(SRD_F,4)}, s77 offen sc1')
    k('s_waitcnt vmcnt(0)')
    k('v_cmp_ne_u32 vcc, 1, v253')
    k('s_mov_b64 exec, -1')
    k('s_barrier')
    k('s_cmp_eq_u64 vcc, 0')
    k('s_cbranch_scc1 pe_bt_go')
    poll(k, 85, 9)
    k.label('pe_bt_go')
    stamp(k, 0)
    for kb in range(3):
        for g0 in (0, 4, 8):
            k(f's_add_u32 m0, s76, {kb*36864 + g0*1024}')
            k(f's_add_u32 s77, s75, {kb*72*1024 + g0*1024}')
            for i in range(4 if g0 < 8 else 1):
                k(f'buffer_load_dwordx4 v1, {sr(SRD_X,4)}, s77 offen offset:{i*1024}{LD()} lds')
    stamp(k, 1)
    def sum4(base, pre=(), va=1, ws=5120, ms=1024):
        for mb in range(5):
            for w in range(4):
                k(f'ds_read_b128 {vr(VZ2+20*w+4*mb,4)}, v{va} offset:{base + w*ws + mb*ms}')
        for x in pre: k(x)
        for mb in range(5):
            k(f's_waitcnt lgkmcnt({min(15, 4*(4-mb))})')
            for j in (0, 2):
                z = VZ2 + 4*mb + j
                k(f'v_pk_add_f32 {vr(z,2)}, {vr(z,2)}, {vr(z+20,2)}')
                k(f'v_pk_add_f32 {vr(z+40,2)}, {vr(z+40,2)}, {vr(z+60,2)}')
                k(f'v_pk_add_f32 {vr(z,2)}, {vr(z,2)}, {vr(z+40,2)}')
    k(f's_cmp_lg_u32 s{S_WAVE}, 3')
    k('s_cbranch_scc1 pe_g2pre')
    k(f'v_and_b32 v10, 48, v{VL}')
    sum4(L_CS, va=10, ws=320, ms=64)
    for mb in range(5): k(f'ds_write_b128 v10, {vr(VZ2+4*mb,4)} offset:{L_CS2 + mb*64}')
    k.label('pe_g2pre')
    k('s_mul_i32 s73, s67, 18')
    k(f's_mul_i32 s74, s{S_WAVE}, 3')
    k('s_add_u32 s73, s73, s74')
    f2q_addr(k, 5)
    k(f'v_and_b32 v14, 48, v{VL}')
    k(f's_mul_i32 s{S_T0}, s{S_WAVE}, 3072')
    k(f'v_add_u32 v15, s{S_T0}, v1')
    quad_voff(k, 6, 2304)
    k(f's_mul_i32 s{S_T0}, s{S_WAVE}, 6144')
    k(f's_add_u32 s{S_T0}, s{S_T0}, {L_BT}')
    k(f'v_add_u32 v7, s{S_T0}, v1')
    k('v_add_u32 v8, 36864, v7')
    k(f'v_and_b32 v9, 15, v{VL}\nv_lshlrev_b32 v9, 2, v9')
    k(f'v_cmp_le_u32 vcc, 48, v{VL}')
    k(f's_mul_i32 s{S_T2}, s68, {16*2304}')
    k(f's_lshl_b32 s{S_T1}, s73, 6')
    k(f's_add_u32 s{S_T2}, s{S_T2}, s{S_T1}')
    k('s_mov_b32 s77, 0x3f803f80')
    k(f'v_mov_b32 v{VP+10}, 0\nv_mov_b32 v{VP+11}, 0\nv_mov_b32 v4, {f32(-3.0e38)}')
    k('s_waitcnt vmcnt(0) lgkmcnt(0)')
    k('s_barrier')
    stamp(k, 3)
    for w in range(4): k(f'ds_read2_b32 {vr(VO+2*w,2)}, v9 offset0:{w*32} offset1:{w*32+16}')
    for mb in range(5): k(f'ds_read_b128 {vr(VCS+4*mb,4)}, v14 offset:{L_CS2 + mb*64}')
    st = [f'v_pk_add_f32 {vr(VO,2)}, {vr(VO,2)}, {vr(VO+2,2)}', f'v_pk_add_f32 {vr(VO+4,2)}, {vr(VO+4,2)}, {vr(VO+6,2)}',
          f'v_pk_add_f32 {vr(VO,2)}, {vr(VO,2)}, {vr(VO+4,2)}',
          f'v_mul_f32 v10, {f32(-1.0/D)}, v{VO}', f'v_mul_f32 v12, {f32(1.0/D)}, v{VO+1}', 'v_fma_f32 v12, -v10, v10, v12', 'v_max_f32 v12, 0, v12',
          f'v_add_f32 v12, {f32(1e-5)}, v12', 'v_rsq_f32 v12, v12', 'v_mov_b32 v11, v10', f'v_mul_f32 v12, {f32(CSC)}, v12']
    sum4(L_Z, pre=['s_waitcnt lgkmcnt(15)'] + st)
    for kb in range(3):
        for jb in range(6):
            k(f'ds_read_b128 {vr(VB+(kb*6+jb)*4,4)}, v{7 if kb == 0 else 8} offset:{(kb-1 if kb else 0)*36864 + jb*1024}')
    for i in range(3): k(f'ds_read_b128 {vr(VRS+4*i,4)}, v15 offset:{L_RS + i*1024}')
    for i in range(0, 20, 2): k(f'v_pk_fma_f32 {vr(VZ2+i,2)}, {vr(VCS+i,2)}, v[10:11], {vr(VZ2+i,2)}')
    for r in (17, 18, 19): k(f'v_cndmask_b32 v{VZ2+r}, v{VZ2+r}, v4, vcc')
    k(f'v_max3_f32 v2, v{VZ2}, v{VZ2+1}, v{VZ2+2}')
    k(f'v_max3_f32 v3, v{VZ2+3}, v{VZ2+4}, v{VZ2+5}')
    for i in range(6, 20, 2): k(f'v_max3_f32 v{2 + (i//2)%2}, v{2 + (i//2)%2}, v{VZ2+i}, v{VZ2+i+1}')
    k('v_max_f32 v2, v2, v3')
    for sw in ('v_permlane32_swap_b32', 'v_permlane16_swap_b32'):
        k(f'v_mov_b32 v3, v2\ns_nop 1\n{sw} v2, v3\ns_nop 0\nv_max_f32 v2, v2, v3')
    k('v_sub_f32 v2, 0, v2\nv_mov_b32 v13, v12\nv_mov_b32 v3, v2')
    for i in range(0, 20, 2): k(f'v_pk_add_f32 {vr(VZ2+i,2)}, {vr(VZ2+i,2)}, v[2:3]')
    for i in range(0, 20, 2): k(f'v_pk_mul_f32 {vr(VZ2+i,2)}, {vr(VZ2+i,2)}, v[12:13]')
    for i in range(20): k(f'v_exp_f32 v{VZ2+i}, v{VZ2+i}')
    k('v_mov_b32 v2, 0')
    for i in range(10): k(f'v_cvt_pk_bf16_f32 v{VP+i}, v{VZ2+2*i}, v{VZ2+2*i+1}')
    k('s_waitcnt lgkmcnt(0)')
    k('s_nop 0')
    mmx = []
    for kb in range(3):
        for jb in range(6):
            c = '0' if kb == 0 else vr(VO+4*jb, 4)
            mmx.append(f'v_mfma_f32_16x16x32_bf16 {vr(VO+4*jb,4)}, {vr(VB+(kb*6+jb)*4,4)}, {vr(VP+4*kb,4)}, {c}')
    sm = [f'v_dot2_f32_bf16 v2, v{VP+i}, s77, v2' for i in range(10)] + ['s_nop 2']
    for sw in ('v_permlane32_swap_b32', 'v_permlane16_swap_b32'):
        sm += ['v_mov_b32 v3, v2', 's_nop 1', f'{sw} v2, v3', 's_nop 0', 'v_add_f32 v2, v2, v3']
    sm += ['v_rcp_f32 v2, v2', 's_nop 0', 'v_mov_b32 v3, v2']
    for j in range(12):
        sm += [f'v_lshlrev_b32 v{VZ2+2*j}, 16, v{VRS+j}', f'v_and_b32 v{VZ2+2*j+1}, 0xffff0000, v{VRS+j}']
    interleave(k, mmx, sm, per=2)
    for i in range(3):
        for e in range(0, 8, 2):
            k(f'v_pk_fma_f32 {vr(VO+8*i+e,2)}, {vr(VO+8*i+e,2)}, v[2:3], {vr(VZ2+8*i+e,2)}')
        for j in range(4): k(f'v_cvt_pk_bf16_f32 v{VRS+4*i+j}, v{VO+8*i+2*j}, v{VO+8*i+2*j+1}')
        for j in range(4): k(f'ds_bpermute_b32 v{VQ+4*i+j}, v5, v{VRS+4*i+j}')
    for i in range(3):
        k(f's_waitcnt lgkmcnt({4*(2-i)})')
        k(f'buffer_store_dwordx4 {vr(VQ+4*i,4)}, v6, {sr(SRD_O,4)}, s{S_T2} offen offset:{64*i}{C.OUTST}')
    stamp(k, 4)
    phase_exit(k)
    VMAX[0] = 256; LMAX[0] = max(LMAX[0], L_BT + 108*1024)

def task(role, p1=0, p2=0, rot=0):
    assert p1 < 32 and p2 < 32 and rot < 4
    return (role, p1, p2, rot)

def make_schedule():
    sch = [[] for _ in range(256)]
    W = lambda x, loc: x + 8*loc
    late = []
    for x in range(8):
        for loc in range(18):
            u = x*18 + loc; jg, r = divmod(u, 48); tn, jl = divmod(r, 3)
            sch[W(x, loc)].append(task('T', tn, jg*3 + jl, (2*jl + tn) % 3))
    def wvo(w):
        blk, ins = divmod(w, 9); bj, bi = divmod(blk, 3); tj = bj*3 + ins//3; ti = bi*3 + ins % 3
        return task('wvo', tj, ti, (ti + tj) % 3)
    for x in range(8):
        for loc in range(23, 32): sch[W(x, loc)].append(wvo(x*9 + loc - 23))
    sg = []
    gj = 13
    for x in (1, 3, 5):
        for loc in (20, 21, 22):
            i = (x >> 1)*3 + loc - 20
            sch[W(x, loc)].append(wvo(72 + i))
            if gj < 18 and (loc < 22 ):
                sch[W(x, loc)].append(task('gate', gj, 1)); gj += 1; sg.append(W(x, loc))
    g3 = []
    for i, loc in enumerate((20, 21, 22)):
        sch[W(7, loc)].append(task('gate', 3*i, 3)); g3.append(W(7, loc))
    v = 0
    kv = []
    for x in range(8):
        for loc in (range(18, 22) if x % 2 == 0 else (18, 19)):
            sch[W(x, loc)].append(task('kvc', v & 1, v >> 1)); v += 1; kv.append(W(x, loc))
    for i, x in enumerate((0, 2, 4, 6)):
        sch[W(x, 22)].append(task('pf', 24 + i)); sch[W(x, 22)].append(task('gate', 9 + i, 1))
    for x in range(8):
        for loc in range(16):
            sch[W(x, loc)].append(task('S', (x >> 2)*8 + (x & 1)*4 + (loc >> 2), ((x >> 1) & 1)*4 + (loc & 3)))
    key = lambda w: (w & 7, w)
    lateV = sorted(sg + kv + g3, key=key)
    assert len(lateV) == 32
    lt = [(nt, jh*4 + j) for bb in range(2) for jh in range(2) for nt in (6 + 8*bb, 7 + 8*bb) for j in range(4)]
    for w, (nt, jt) in zip(lateV, lt): sch[w].append(task('V', nt, jt))
    rest = sorted([W(x, loc) for x in range(8) for loc in range(16, 32) if W(x, loc) not in lateV], key=key)
    assert len(rest) == 96
    nts = [0, 1, 2, 3, 4, 5, 8, 9, 10, 11, 12, 13]
    et = [(nts[g*3 + i], jh*4 + j) for g in range(4) for jh in range(2) for i in range(3) for j in range(4)]
    for w, (nt, jt) in zip(rest, et): sch[w].append(task('V', nt, jt))
    aux = [task('AT', i & 1, i >> 1) for i in range(2*C.NAT)] + [task('BT', i & 1, i >> 1) for i in range(18)]
    if C.BTLATE:
        bts = aux[2*C.NAT:]; aux = aux[:2*C.NAT]
    nidle = 64 - len(aux)
    idle = (sg + kv)[:nidle]
    if C.BTLATE:
        cand = [w for w in idle if w in kv]
        for w, t in zip(cand, bts): sch[w].append(t)
    cnt = [sum(1 for w in idle if w & 7 == x) for x in range(8)]
    nxt = [31]*8
    auxw = []
    for ai in range(0, len(aux), 2):
        x = min(range(8), key=lambda x: cnt[x])
        for j in range(2):
            w = W(x, nxt[x]); nxt[x] -= 1; cnt[x] += 1
            assert nxt[x] >= 22
            sch[w].append(aux[ai + j]); auxw.append(w)
    tiles = {x: [task('PV', (x >> 2)*8 + (x & 1)*4 + (i & 3), ((x >> 1) & 1)*6 + (i >> 2)) for i in range(24)] for x in range(8)}
    left = []
    for x in range(8):
        for loc in range(32):
            w = W(x, loc)
            if w in idle or w in auxw: continue
            if tiles[x]: sch[w].append(tiles[x].pop(0))
            else: left.append(w)
    rem = [t for x in range(8) for t in tiles[x]]
    assert len(rem) == len(left), (len(rem), len(left))
    for w, t in zip(left, rem): sch[w].append(t)
    return sch

def make_schedule2():
    sch = [[] for _ in range(256)]
    W = lambda x, loc: x + 8*loc
    key = lambda w: (w & 7, w)
    for x in range(8):
        for loc in range(18):
            u = x*18 + loc; jg, r = divmod(u, 48); tn, jl = divmod(r, 3)
            sch[W(x, loc)].append(task('T', tn, jg*3 + jl, (2*jl + tn) % 3))
        for loc in range(16):
            sch[W(x, loc)].append(task('S', (x >> 2)*8 + (x & 1)*4 + (loc >> 2), ((x >> 1) & 1)*4 + (loc & 3)))
    def wvo(w):
        blk, ins = divmod(w, 9); bj, bi = divmod(blk, 3); tj = bj*3 + ins//3; ti = bi*3 + ins % 3
        return task('wvo', tj, ti, (ti + tj) % 3)
    kv = []
    for x in range(8):
        for i, loc in enumerate((29, 30, 31)):
            v = x*3 + i
            sch[W(x, loc)].append(task('kvc', v & 1, v >> 1)); kv.append(W(x, loc))
    pool = {x: [W(x, loc) for loc in ((20, 21, 22, 18, 19) if x & 1 else range(18, 23))] for x in range(8)}
    sp = []
    for x in range(8):
        ws_ = [W(x, loc) for loc in range(23, 29)] + [pool[x].pop(0) for _ in range(3)]
        order = [1, 2, 3, 5, 6, 7, 0, 4, 8]
        for w, o in zip(ws_, order): sch[w].append(wvo(x*9 + o))
        if x & 1: sp += ws_[6:]
    rem = [w for x in range(8) for w in pool[x]]
    rem.sort(key=key)
    for i in range(9): sch[rem[i]].append(wvo(72 + i))
    gl = rem[9:]
    for i in range(3): sch[gl[i]].append(task('pf', i))
    gj = 0
    for w in gl[:6]: sch[w].append(task('gate', gj, 1)); gj += 1
    for w in sp: sch[w].append(task('gate', gj, 1)); gj += 1
    assert gj == 18
    aux = [task('AT', i & 1, i >> 1) for i in range(18)] + [task('BT', i & 1, i >> 1) for i in range(18)]
    auxw = []
    for x in range(8): auxw += [W(x, 31), W(x, 30)]
    for x in range(8): auxw += [W(x, 29), W(x, 28)]
    auxw += [W(0, 27), W(0, 26), W(4, 27), W(4, 26)]
    for w, t in zip(auxw, aux): sch[w].append(t)
    lt = [(nt, jh*4 + j) for bb in range(2) for jh in range(2) for nt in (6 + 8*bb, 7 + 8*bb) for j in range(4)]
    l5 = [(5, 0), (5, 1), (13, 0), (13, 1)]
    for w, (nt, jt) in zip(sorted(auxw[:32], key=key), lt): sch[w].append(task('V', nt, jt))
    for w, (nt, jt) in zip(auxw[32:], l5): sch[w].append(task('V', nt, jt))
    rest = sorted([W(x, loc) for x in range(8) for loc in range(16, 32) if W(x, loc) not in auxw], key=key)
    nts = [0, 1, 2, 3, 4, 5, 8, 9, 10, 11, 12, 13]
    et = [(nts[g*3 + i], jh*4 + j) for g in range(4) for jh in range(2) for i in range(3) for j in range(4)]
    et = [t for t in et if t not in l5]
    assert len(rest) == len(et) == 92
    for w, (nt, jt) in zip(rest, et): sch[w].append(task('V', nt, jt))
    skip = set(sp + gl + rem[:9])
    tiles = {x: [task('PV', (x >> 2)*8 + (x & 1)*4 + (i & 3), ((x >> 1) & 1)*6 + (i >> 2)) for i in range(24)] for x in range(8)}
    left = []
    for x in range(8):
        for loc in range(32):
            w = W(x, loc)
            if w in skip or w in auxw: continue
            if tiles[x]: sch[w].append(tiles[x].pop(0))
            else: left.append(w)
    remt = [t for x in range(8) for t in tiles[x]]
    assert len(remt) == len(left), (len(remt), len(left))
    for w, t in zip(left, remt): sch[w].append(t)
    return sch

def build(fn, stampf):
    C.PERSIST, C.STAMP = True, stampf
    k = K()
    k.L.append('.p2align 8'); k.label('code_start')
    for i, f in enumerate((phase_A, phase_B, phase_C, phase_D, phase_E)):
        PH[0] = i
        f(k)
        if i == 0:
            k.label('quit0'); k('s_endpgm')
    sch = make_schedule() if C.SCHED == 1 else make_schedule2()
    k.L.append('.p2align 6')
    k.L.append('.type task_table,@object')
    k.label('task_table')
    for w in range(256):
        val = 0
        assert len(sch[w]) <= 4
        for i, (r, p1, p2, rot) in enumerate(sch[w]):
            val |= (ROLES.index(r) | p1 << 4 | p2 << 9 | rot << 14) << (16*i)
        k.L.append(f'    .quad {hex(val)}')
    k.L.append('.size task_table, 2048')
    k.label('code_end')
    k('s_endpgm')
    json.dump([[t[0] for t in l] for l in sch], open('sched.json', 'w'))
    ref = open('standalone__pixart__diffusion.s.ref').read()
    hdr = ref.split('; Override launch geometry')[0]
    n = 'standalone__pixart__diffusion_kernel'
    hdr += (f'; @launch kernel={n} ' if C.LIST else '; @launch ') + f'grid=(256,1,1) block=(512,1,1) lds={LDS_MAX}\n'
    desc = '.section .rodata,"a"\n.p2align 6\n' + kernel_desc(n, 256, 102)
    hdr += '.amdgcn_target "amdgcn-amd-amdhsa--gfx950"\n.text\n'
    open(fn, 'w').write(hdr + k.text() + desc)

C.ROT = set('wqk tt wvo at bt'.split()); C.WIN = dict(wqk=3, tt=3); C.APRE = False; C.HPRE = True
if __name__ == '__main__':
    build('p4.s', False)
    build('p4_stamped.s', True)
    json.dump(WS, open('ws.json', 'w'))
```

```python
from dataclasses import dataclass, field

class K:
    def __init__(self):
        self.L = []
        self.uid = 0
    def __call__(self, s):
        for line in s.split('\n'):
            line = line.strip()
            if line:
                self.L.append('    ' + line)
    def label(self, n):
        self.L.append(n + ':')
    def c(self, s):
        self.L.append('    ; ' + s)
    def newlabel(self, p='L'):
        self.uid += 1
        return f'{p}_{self.uid}'
    def text(self):
        return '\n'.join(self.L) + '\n'

def vr(a, n=1):
    return f'v{a}' if n == 1 else f'v[{a}:{a+n-1}]'
def sr(a, n=1):
    return f's{a}' if n == 1 else f's[{a}:{a+n-1}]'

S_WG = 2
S_WAVE = 3
SRD_A = 4
SRD_B = 8
SRD_O = 12
SRD_X = 16
SRD_Y = 20
S_ABASE = 24
S_BBASE = 25
S_OBASE = 26
S_T0 = 27
S_T1 = 28
S_T2 = 29
S_T3 = 30
S_G = 31
S_LDS = 32
S_SLOT = 33
S_CNT = 34
S_DELTA = 35
SRD_F = 36
S_W2 = 82
S_WA = 83
S_WB = 84
S_P0 = 40
S_X0 = 64
S_GEND = 29

@dataclass
class Opnd:
    mode: str
    nblk: int
    srd: int
    base: int
    rbtot: int = 0
    stride: int = 0
    perm: bool = False
    region: int = 0
    aux: str = ''
    rows: list = None

@dataclass
class Gemm:
    name: str
    A: Opnd
    B: Opnd
    WA: int
    WB: int
    KT: int
    NS: int
    lds0: int = 0
    nb_ov: tuple = None
    win: int = 0
    rot: int = None
    def __post_init__(self):
        self.A.region = 0
        self.B.region = self.A.nblk * 2048
        self.stage = (self.A.nblk + self.B.nblk) * 2048
        assert self.A.nblk % self.WA == 0 and (self.nb_ov or self.B.nblk % self.WB == 0)
        self.ma = self.A.nblk // self.WA
        self.nb = self.B.nblk // self.WB
        self.nbstep = self.nb
        if self.nb_ov: self.nb, self.nbstep = self.nb_ov
        assert self.WA * self.WB == 4
        self.lds_bytes = self.lds0 + self.NS * self.stage

def make_srd(k, srd, plo, nbytes, off=0):
    if off:
        k(f's_add_u32 s{srd}, s{plo}, {off}')
        k(f's_addc_u32 s{srd+1}, s{plo+1}, 0')
    else:
        k(f's_mov_b32 s{srd}, s{plo}')
        k(f's_mov_b32 s{srd+1}, s{plo+1}')
    if isinstance(nbytes, int):
        k(f's_mov_b32 s{srd+2}, {nbytes}')
    else:
        k(f's_mov_b32 s{srd+2}, {nbytes}')
    k(f's_mov_b32 s{srd+3}, 0x00020000')

def loader_setup(k, g, X, VL, VOFF, VT):
    if X.mode == 'frag':
        k(f'v_lshlrev_b32 v{VOFF}, 4, v{VL}')
        k(f's_mul_i32 s{S_G}, s{S_W2}, {X.rbtot*1024}')
        k(f's_add_u32 s{S_G}, s{S_G}, s{X.base}')
        k(f's_mul_i32 s{S_LDS}, s{S_W2}, {X.nblk*1024}')
        k(f's_add_u32 s{S_LDS}, s{S_LDS}, {g.lds0 + X.region}')
    elif X.mode == 'row':
        k(f's_lshl_b32 s{S_T0}, s{S_W2}, 2')
        k(f'v_lshrrev_b32 v{VT}, 4, v{VL}')
        k(f'v_add_u32 v{VT}, s{S_T0}, v{VT}')
        k(f'v_and_b32 v{VOFF}, 7, v{VL}')
        k(f'v_xor_b32 v{VOFF}, v{VOFF}, v{VT}')
        k(f'v_lshlrev_b32 v{VOFF}, 4, v{VOFF}')
        if X.perm:
            k(f's_lshl_b32 s{S_T0}, s{S_W2}, 4')
            k(f'v_lshrrev_b32 v{VT}, 5, v{VL}')
            k(f'v_lshlrev_b32 v{VT}, 3, v{VT}')
            k(f'v_add_u32 v{VT}, s{S_T0}, v{VT}')
            k(f'v_bfe_u32 v{VT+1}, v{VL}, 3, 2')
            k(f'v_add_u32 v{VT}, v{VT}, v{VT+1}')
        else:
            k(f's_lshl_b32 s{S_T0}, s{S_W2}, 3')
            k(f'v_lshrrev_b32 v{VT}, 3, v{VL}')
            k(f'v_add_u32 v{VT}, s{S_T0}, v{VT}')
        k(f's_mov_b32 s{S_T0}, {X.stride}')
        k(f'v_mad_u32_u24 v{VOFF}, v{VT}, s{S_T0}, v{VOFF}')
        k(f's_mov_b32 s{S_G}, s{X.base}')
        k(f's_lshl_b32 s{S_LDS}, s{S_W2}, 10')
        k(f's_add_u32 s{S_LDS}, s{S_LDS}, {g.lds0 + X.region}')
    elif X.mode == 'col':
        k(f's_lshl_b32 s{S_T0}, s{S_W2}, 2')
        k(f'v_bfe_u32 v{VT}, v{VL}, 4, 1')
        k(f'v_lshlrev_b32 v{VT}, 1, v{VT}')
        k(f'v_or_b32 v{VT}, s{S_T0}, v{VT}')
        k(f'v_and_b32 v{VOFF}, 7, v{VL}')
        k(f'v_xor_b32 v{VOFF}, v{VOFF}, v{VT}')
        k(f'v_lshlrev_b32 v{VOFF}, 4, v{VOFF}')
        k(f's_lshl_b32 s{S_T0}, s{S_W2}, 3')
        k(f'v_lshrrev_b32 v{VT}, 3, v{VL}')
        k(f'v_add_u32 v{VT}, s{S_T0}, v{VT}')
        k(f's_mov_b32 s{S_T0}, {X.stride}')
        k(f'v_mad_u32_u24 v{VOFF}, v{VT}, s{S_T0}, v{VOFF}')
        k(f's_mov_b32 s{S_G}, s{X.base}')
        k(f's_lshl_b32 s{S_LDS}, s{S_W2}, 10')
        k(f's_add_u32 s{S_LDS}, s{S_LDS}, {g.lds0 + X.region}')

def op_step(X):
    return {'frag': 2*X.rbtot*1024, 'row': 128, 'col': 64*X.stride}[X.mode]

def loader_issue(k, g, X, VOFF, slot_const=None):
    groups = []
    if X.mode == 'frag':
        for g0 in range(0, X.nblk, 4):
            groups.append((g0*1024, g0*1024, [i*1024 for i in range(min(4, X.nblk-g0))]))
        step = 2 * X.rbtot * 1024
    elif X.mode == 'row':
        for i in range(X.nblk):
            r = (32*(i >> 1) + 4*(i & 1)) if X.perm else 16*i
            if X.rows: r = X.rows[i]
            groups.append((i*2048, r*X.stride, [0]))
        step = 128
    else:
        for cg in range(X.nblk // 4):
            for i in range(4):
                groups.append((cg*8192 + i*2048, 16*i*X.stride + cg*128, [0]))
        step = 64 * X.stride
    if slot_const is None:
        k(f's_add_u32 s{S_T1}, s{S_LDS}, s{S_SLOT}')
        lb, lc = S_T1, 0
    else:
        lb, lc = S_LDS, slot_const
    for (lo, go, imms) in groups:
        if lo + lc:
            k(f's_add_u32 m0, s{lb}, {lo+lc}')
        else:
            k(f's_mov_b32 m0, s{lb}')
        if go:
            k(f's_add_u32 s{S_T0}, s{S_G}, {go}')
            so = S_T0
        else:
            k('s_nop 0')
            so = S_G
        for im in imms:
            o = f' offset:{im}' if im else ''
            k(f'buffer_load_dwordx4 v{VOFF}, {sr(X.srd,4)}, s{so} offen{o}{X.aux} lds')
    k(f's_add_u32 s{S_G}, s{S_G}, {step}')
    if g.rot is not None:
        W = g.win or g.KT
        k(f's_cmp_ge_u32 s{S_G}, s{S_GEND}')
        k(f's_cselect_b32 s{S_T0}, {W*step}, 0')
        k(f's_sub_u32 s{S_G}, s{S_G}, s{S_T0}')
        if g.win:
            k(f's_add_u32 s{S_DELTA}, s{S_DELTA}, 1')
            k(f's_cmp_eq_u32 s{S_DELTA}, {W}')
            k(f's_cselect_b32 s{S_T0}, {W*step}, 0')
            k(f's_cselect_b32 s{S_DELTA}, 0, s{S_DELTA}')
            k(f's_add_u32 s{S_G}, s{S_G}, s{S_T0}')
            k(f's_add_u32 s{S_GEND}, s{S_GEND}, s{S_T0}')

def loader_body(k, g, X, VL, VOFF, VT, pre_hook=None, mid_hook=None, npre=None, tail_hook=None, end_barrier=False, end_hook=None, mid=None):
    n = X.nblk
    NS, KT = g.NS, g.KT
    loader_setup(k, g, X, VL, VOFF, VT)
    if g.rot is not None:
        k(f's_add_u32 s{S_GEND}, s{S_G}, {(g.win or g.KT)*op_step(X)}')
        k(f's_mov_b32 s{S_DELTA}, 0')
        k(f's_mul_i32 s{S_T0}, s{g.rot}, {op_step(X)}')
        k(f's_add_u32 s{S_G}, s{S_G}, s{S_T0}')
    if pre_hook: pre_hook(k)
    npro = min(NS, KT)
    if npre is None: npre = npro
    for s in range(npre):
        loader_issue(k, g, X, VOFF, slot_const=s*g.stage)
    if mid_hook: mid_hook(k, npre*n)
    assert (NS-1)*n <= 63
    k(f's_waitcnt vmcnt({(npre-1)*n})')
    k('s_barrier')
    for s in range(npre, npro):
        loader_issue(k, g, X, VOFF, slot_const=s*g.stage)
    nmain = max(0, KT - NS)
    if nmain > 0:
        k(f's_mov_b32 s{S_SLOT}, 0')
        parts = [nmain]
        if mid:
            cuts = [0] + [m[0] - NS for m in mid] + [nmain]
            parts = [cuts[i+1] - cuts[i] for i in range(len(cuts)-1)]
        for pi, cnt in enumerate(parts):
            if pi >= 1: mid[pi-1][1](k)
            k(f's_mov_b32 s{S_CNT}, {cnt}')
            lp = k.newlabel(g.name + '_ld')
            k.label(lp)
            k(f's_waitcnt vmcnt({(NS-2)*n})')
            k('s_barrier')
            loader_issue(k, g, X, VOFF)
            k(f's_add_u32 s{S_SLOT}, s{S_SLOT}, {g.stage}')
            k(f's_cmp_eq_u32 s{S_SLOT}, {NS*g.stage}')
            k(f's_cselect_b32 s{S_SLOT}, 0, s{S_SLOT}')
            k(f's_sub_u32 s{S_CNT}, s{S_CNT}, 1')
            k(f's_cmp_lg_u32 s{S_CNT}, 0')
            k(f's_cbranch_scc1 {lp}')
    extra = tail_hook(k) if tail_hook else 0
    for t in range(nmain, KT-1):
        k(f's_waitcnt vmcnt({(KT-1-(t+1))*n + extra})')
        k('s_barrier')
    if end_hook: end_hook(k)
    if end_barrier: k('s_barrier')

class ConsRegs:
    pass

def cons_addr_setup(k, g, X, nw, swave, VL, VA, VT, step=None):
    base = g.lds0 + X.region
    if X.mode == 'frag':
        k(f's_mul_i32 s{S_T0}, s{swave}, {(step or nw)*1024}')
        k(f's_add_u32 s{S_T0}, s{S_T0}, {base}')
        k(f'v_lshlrev_b32 v{VA}, 4, v{VL}')
        k(f'v_add_u32 v{VA}, s{S_T0}, v{VA}')
        return [VA]
    if X.mode == 'row':
        k(f's_mul_i32 s{S_T0}, s{swave}, {nw*2048}')
        k(f's_add_u32 s{S_T0}, s{S_T0}, {base}')
        k(f'v_bfe_u32 v{VT}, v{VL}, 1, 3')
        k(f'v_lshrrev_b32 v{VT+1}, 4, v{VL}')
        k(f'v_xor_b32 v{VT}, v{VT}, v{VT+1}')
        k(f'v_lshlrev_b32 v{VT}, 4, v{VT}')
        k(f'v_and_b32 v{VT+1}, 15, v{VL}')
        k(f'v_lshl_add_u32 v{VA}, v{VT+1}, 7, v{VT}')
        k(f'v_add_u32 v{VA}, s{S_T0}, v{VA}')
        k(f'v_xor_b32 v{VA+1}, 64, v{VA}')
        return [VA, VA+1]
    k(f'v_lshrrev_b32 v{VT}, 4, v{VL}')
    k(f'v_lshlrev_b32 v{VT}, 3, v{VT}')
    k(f'v_bfe_u32 v{VT+1}, v{VL}, 2, 2')
    k(f'v_add_u32 v{VT}, v{VT}, v{VT+1}')
    k(f'v_lshlrev_b32 v{VT}, 7, v{VT}')
    k(f'v_and_b32 v{VT+1}, 3, v{VL}')
    k(f'v_lshl_add_u32 v{VT}, v{VT+1}, 3, v{VT}')
    k(f'v_bfe_u32 v{VT+1}, v{VL}, 3, 2')
    k(f'v_lshl_add_u32 v{VT}, v{VT+1}, 5, v{VT}')
    for i in range(nw):
        k(f's_mul_i32 s{S_T0}, s{swave}, {nw}')
        k(f's_add_u32 s{S_T0}, s{S_T0}, {i}')
        k(f's_and_b32 s{S_T1}, s{S_T0}, 3')
        k(f's_lshl_b32 s{S_T1}, s{S_T1}, 5')
        k(f's_lshr_b32 s{S_T0}, s{S_T0}, 2')
        k(f's_lshl_b32 s{S_T0}, s{S_T0}, 13')
        k(f's_add_u32 s{S_T0}, s{S_T0}, {base}')
        k(f'v_xor_b32 v{VA+i}, s{S_T1}, v{VT}')
        k(f'v_add_u32 v{VA+i}, s{S_T0}, v{VA+i}')
    return [VA+i for i in range(nw)]

def cons_reads(g, X, nw, addrs, s, dst):
    out = []
    for i in range(nw):
        d = dst + 4*i
        if X.mode == 'frag':
            out.append(f'ds_read_b128 {vr(d,4)}, v{addrs[0]} offset:{s*X.nblk*1024 + i*1024}')
        elif X.mode == 'row':
            out.append(f'ds_read_b128 {vr(d,4)}, v{addrs[s]} offset:{i*2048}')
        else:
            out.append(f'ds_read_b64_tr_b16 {vr(d,2)}, v{addrs[i]} offset:{s*4096}')
            out.append(f'ds_read_b64_tr_b16 {vr(d+2,2)}, v{addrs[i]} offset:{s*4096+512}')
    return out

def interleave(k, mfmas, fill, start=0, per=1):
    fill = list(fill)
    for i, m in enumerate(mfmas):
        k(m)
        if i >= start:
            for _ in range(per):
                if fill: k(fill.pop(0))
    for f in fill: k(f)

def consumer_body(k, g, VL, VACC, VF, VA, VT, pre_hook=None, nomfma=False, noread=False, post_bar0=None, end_barrier=False, per=1):
    ma, nb = g.ma, g.nb
    aA = cons_addr_setup(k, g, g.A, ma, S_WA, VL, VA, VT)
    aB = cons_addr_setup(k, g, g.B, nb, S_WB, VL, VA + len(aA), VT, step=g.nbstep)
    addrs = aA + aB
    setsz = (ma + nb) * 4
    def fa(st, a): return VF + st*setsz + 4*a
    def fb(st, b): return VF + st*setsz + 4*ma + 4*b
    def reads(s, st):
        if noread: return []
        ra = cons_reads(g, g.A, ma, aA, s, fa(st, 0))
        rb = cons_reads(g, g.B, nb, aB, s, fb(st, 0))
        return rb + ra if nb <= ma else ra + rb
    def mf(st):
        if nomfma: return ['s_nop 0']
        out = []
        for a in range(ma):
            for b in range(nb):
                c = VACC + (a*nb + b)*4
                out.append(f'v_mfma_f32_16x16x32_bf16 {vr(c,4)}, {vr(fa(st,a),4)}, {vr(fb(st,b),4)}, {vr(c,4)}')
        return out
    for i in range(ma*nb*4):
        k(f'v_mov_b32 v{VACC+i}, 0')
    if pre_hook: pre_hook(k)
    k(f's_mov_b32 s{S_SLOT}, 0')
    k(f's_mov_b32 s{S_CNT}, {g.KT-1}')
    k(f's_mov_b32 s{S_T3}, {g.stage}')
    k('s_barrier')
    if post_bar0: post_bar0(k)
    for r in reads(0, 0): k(r)
    k('s_waitcnt lgkmcnt(0)')
    lp = k.newlabel(g.name + '_mm')
    k.label(lp)
    adv = [f's_add_u32 s{S_SLOT}, s{S_SLOT}, {g.stage}',
           f's_cmp_eq_u32 s{S_SLOT}, {g.NS*g.stage}',
           f's_cselect_b32 s{S_DELTA}, {-(g.NS-1)*g.stage & 0xffffffff}, s{S_T3}',
           f's_cselect_b32 s{S_SLOT}, 0, s{S_SLOT}'] + [f'v_add_u32 v{a}, s{S_DELTA}, v{a}' for a in addrs]
    interleave(k, mf(0), reads(1, 1) + adv, per=per)
    k('s_waitcnt lgkmcnt(0)')
    k('s_barrier')
    interleave(k, mf(1), reads(0, 0) + [f's_sub_u32 s{S_CNT}, s{S_CNT}, 1', f's_cmp_lg_u32 s{S_CNT}, 0'], per=per)
    k('s_waitcnt lgkmcnt(0)')
    k(f's_cbranch_scc1 {lp}')
    interleave(k, mf(0), reads(1, 1), per=per)
    k('s_waitcnt lgkmcnt(0)')
    if end_barrier: k('s_barrier')
    for m in mf(1): k(m)

def kernel_header(k, name):
    k.L.append(f'.globl {name}')
    k.L.append('.p2align 8')
    k.L.append(f'.type {name},@function')
    k.label(name)

def kernel_desc(name, vgpr, sgpr=96):
    acc = (vgpr + 3) // 4 * 4
    return f""".amdhsa_kernel {name}
  .amdhsa_next_free_vgpr {vgpr}
  .amdhsa_next_free_sgpr {sgpr}
  .amdhsa_accum_offset {acc}
  .amdhsa_group_segment_fixed_size 0
  .amdhsa_kernarg_size 96
  .amdhsa_user_sgpr_count 2
  .amdhsa_user_sgpr_kernarg_segment_ptr 1
  .amdhsa_system_sgpr_workgroup_id_x 1
.end_amdhsa_kernel
"""
```

```python
from lib import *
import gen4
from gen4 import *
base = open('x0.s').read()
def variant(fn, bufs, wsb=0):
    k = K()
    kernel_header(k, 'pz_kernel')
    k('s_load_dwordx16 s[40:55], s[0:1], 0')
    k('s_load_dwordx8 s[56:63], s[0:1], 64')
    k('s_cmp_ge_u32 s2, 256')
    k('s_cbranch_scc1 pz_end')
    k('v_lshrrev_b32 v1, 6, v0')
    k('v_and_b32 v0, 63, v0')
    k(f'v_readfirstlane_b32 s{S_WAVE}, v1')
    k('s_lshl_b32 s79, s2, 3')
    k(f's_add_u32 s79, s79, s{S_WAVE}')
    k('s_waitcnt lgkmcnt(0)')
    for ptr, nb in bufs:
        prefetch_flat(k, ptr, nb, 79, 2048, 14, vtmp=8)
    k('s_waitcnt vmcnt(0)')
    k.label('pz_end')
    k('s_endpgm')
    s = base.replace('; @launch kernel=standalone', '; @launch kernel=pz_kernel grid=(256,1,1) block=(512,1,1) lds=0\n; @launch kernel=standalone', 1)
    s = s.replace('.section .rodata,"a"\n', k.text() + '.section .rodata,"a"\n.p2align 6\n' + kernel_desc('pz_kernel', 32), 1)
    open(fn, 'w').write(s)
ins = [(P_X, NR*D*2), (P_WQKV, D*3*D*2), (P_WO, D*D*2), (P_WQC, D*D*2), (P_WKVC, D*2*D*2), (P_WOC, D*D*2), (P_WMOD, D*6*D*2), (P_Y, 2*77*D*2)]
variant('z0.s', [])
variant('z1.s', ins)
variant('z2.s', [(P_WS, gen4._o), (P_OUT, NR*D*2)])
variant('z3.s', ins + [(P_WS, gen4._o), (P_OUT, NR*D*2)])
```

```python
import sys, math, struct, json
from lib import *

D = 1152; NR = 2048
P_X, P_C, P_Y, P_WQKV, P_WO, P_WQC, P_WKVC, P_WOC, P_WMOD, P_OUT, P_DBG, P_WS = range(40, 64, 2)
def al(x): return (x + 4095) // 4096 * 4096
FL = {}
_f = 0
for nm, n in [('MOD', 72), ('GATE', 18), ('H', 64), ('WQK', 108), ('T', 144), ('WVO', 81), ('KVC', 24), ('P', 128), ('V', 128),
              ('X1', 192), ('AT', 36), ('BT', 18)]:
    FL[nm] = _f; _f += n
NFLAG = 1024
assert _f <= NFLAG
WS = {}
_o = 0
for nm, sz in [('FLAG', NFLAG*128), ('MODP', 2*2*2304*4), ('GATE', 2*1152*4), ('ST', 64*8*256), ('H', NR*D*2), ('WQK', D*D*2), ('WVO', D*D*2),
               ('T', NR*D*2), ('VT', NR*D*2), ('P', 2*1024*1024*2), ('KVC', 72*10*1024), ('AT', 36*10*1024), ('BT', 2*3*72*1024),
               ('X1', NR*D*2)]:
    WS[nm] = (_o, sz); _o = al(_o + sz)
WS['X1'] = WS['T']
ST = ' sc1'
CSC = (D ** -0.5) * math.log2(math.e)
def f32(x): return '0x%08x' % struct.unpack('<I', struct.pack('<f', x))[0]
LDS_MAX = 163840
L_CNT = LDS_MAX - 64

class Cfg:
    ROT = set('wqk tt wvo kvc ss vv pv at bt'.split())
    APRE = False
    SKIP = set()
    WQK_NS = 5
    WQK_NPRE = 3
    STAMP = False
    DBGT = False
    TLBW = 0
    HPRE = True
    PPOLL = False
    WIN = {}
    NAT = 9
    XLATE = False
    HPF2 = 'k'
    HPF2N = 11
    GFIRST = True
    WBL2 = False
    SPK = True
    BT1 = 20
    PSLEEP = 3
    BTLATE = False
    PKMUL = 0
    SCHED = 1
    VM = [(0, 0x3f3f), (12, 0xc0c0)]
    KVPF = 0
    TPF = False
    WVOPF = True
    NS = dict(wqk=4, tt=4, wvo=4, ss=4, vv=4, pv=4, at=5, bt=4)
    LDX = ' sc1'
    OUTST = ' sc1'
    LIST = True
    PERSIST = False
C = Cfg()
STAMP_OFF = 128 << 20
PH = [0]
NAMES = ['pa_kernel', 'pb_kernel', 'pc_kernel', 'pd_kernel', 'pe_kernel']
VL = 0; VT = 2; VA = 4; VACC = 16
S_ROT = 74
def R(name): return S_ROT if name in C.ROT else None
def mod_const(k, s, m, maxv):
    div_const(k, S_T0, s, m, maxv)
    k(f's_mul_i32 s{S_T0}, s{S_T0}, {m}')
    k(f's_sub_u32 s{s}, s{s}, s{S_T0}')
def LD(): return C.LDX if C.PERSIST else ''
def Wn(name): return C.WIN.get(name, 0)
def rot_from(k, name, s_sum, n_full, maxv):
    w = Wn(name)
    if w:
        mod_const(k, s_sum, w, maxv)
    else:
        mod_const(k, s_sum, n_full, maxv)
        k(f's_mul_i32 s{s_sum}, s{s_sum}, {18 // n_full}')


def stamp(k, i):
    if C.STAMP: k(f's_memrealtime s[{86+2*i}:{87+2*i}]')
def cstamp(k, i):
    if C.STAMP: k(f's_memtime s[{86+2*i}:{87+2*i}]')
def stamp_begin(k):
    if C.STAMP: k('s_memrealtime s[98:99]\n' + '\n'.join(f's_mov_b32 s{86+2*i}, 0' for i in range(6)))

def phase_exit(k, drain=True):
    p = PH[0]
    k('s_mov_b64 exec, -1')
    if C.STAMP:
        if drain: k('s_waitcnt vmcnt(0)')
        k('s_memrealtime s[100:101]')
        k(f's_lshl_b32 s{S_T0}, s2, 8')
        k(f's_lshl_b32 s{S_T1}, s{S_WAVE}, 5')
        k(f's_add_u32 s{S_T0}, s{S_T0}, s{S_T1}')
        k(f's_add_u32 s{S_T0}, s{S_T0}, {STAMP_OFF}')
        k(f's_lshl_b32 s{S_T1}, s80, 16')
        k(f's_add_u32 s{S_T0}, s{S_T0}, s{S_T1}')
        k('s_waitcnt lgkmcnt(0)')
        k(f'v_mov_b32 v1, s{S_T0}\nv_mov_b32 v4, s98\nv_mov_b32 v5, s100')
        for i in range(6): k(f'v_mov_b32 v{6+i}, s{86+2*i}')
        k('s_mov_b64 exec, 1')
        k('global_store_dwordx4 v1, v[4:7], s[62:63]')
        k('global_store_dwordx4 v1, v[8:11], s[62:63] offset:16')
        k('s_mov_b64 exec, -1')
        k('s_nop 1')
    if p < 4:
        k('s_branch next_task')
    else:
        k('s_endpgm')

def ws_srd(k, srd, nm):
    make_srd(k, srd, P_WS, WS[nm][1], WS[nm][0])

def kernel_entry(k):
    name = 'standalone__pixart__diffusion_kernel'
    kernel_header(k, name)
    k('s_getpc_b64 s[76:77]')
    k('s_load_dwordx16 s[40:55], s[0:1], 0')
    k('s_load_dwordx8 s[56:63], s[0:1], 64')
    k('s_lshr_b32 s65, s2, 3')
    k('s_lshl_b32 s78, s65, 11')
    k('v_lshrrev_b32 v1, 6, v0')
    k('v_and_b32 v2, 1, v0')
    k('v_lshl_add_u32 v2, v1, 1, v2')
    k('v_lshl_add_u32 v2, v2, 7, s78')
    k('v_min_u32 v2, code_end - code_start - 8, v2')
    k('s_mov_b64 exec, 3')
    k('global_load_dword v15, v2, s[76:77]')
    k('s_mov_b64 exec, -1')
    stamp_begin(k)
    k('s_cmp_ge_u32 s2, 256')
    k('s_cbranch_scc1 quit0')
    k('v_and_b32 v0, 63, v0')
    k(f'v_readfirstlane_b32 s{S_WAVE}, v1')
    k('s_and_b32 s64, s2, 7')
    k('s_mov_b32 s80, 0')
def args_ready(k):
    if PH[0] == 0:
        k('s_waitcnt lgkmcnt(0)')
        l = k.newlabel('tt_pc')
        k('s_getpc_b64 s[0:1]')
        k.label(l)
        k('s_lshl_b32 s85, s2, 3')
        k(f's_add_u32 s85, s85, task_table - {l}')
        k('s_load_dwordx2 s[0:1], s[0:1], s85')
        ws_srd(k, SRD_F, 'FLAG')
ROLES = ['E', 'T', 'wvo', 'kvc', 'gate', 'S', 'V', 'PV', 'AT', 'BT', 'pf']
def dispatcher(k):
    k.label('next_task')
    k('s_waitcnt lgkmcnt(0)')
    k('s_add_u32 s80, s80, 1')
    stamp_begin(k)
    k('s_and_b32 s66, s0, 15')
    k('s_bfe_u32 s67, s0, 0x50004')
    k('s_bfe_u32 s68, s0, 0x50009')
    k('s_bfe_u32 s74, s0, 0x2000e')
    k('s_lshr_b64 s[0:1], s[0:1], 16')
    for i in (1, 5, 7, 6, 2, 3, 4, 8, 9, 10):
        k(f's_cmp_eq_u32 s66, {i}')
        k(f's_cbranch_scc1 role_{ROLES[i]}')
    k('s_branch role_E')

def div_const(k, dst, src, d, maxv):
    for sh in range(4, 20):
        m = -(-(1 << sh) // d)
        if all((v*m) >> sh == v // d for v in range(maxv+1)):
            k(f's_mul_i32 s{dst}, s{src}, {m}')
            k(f's_lshr_b32 s{dst}, s{dst}, {sh}')
            return
    raise Exception('no magic')

SPIN = 0x20000
def poll(k, s_line, n, vt=252, force=False, mask=None):
    if not (C.PERSIST or force): return
    lp, done = k.newlabel('poll'), k.newlabel('polled')
    k(f'v_min_u32 v{vt}, {n-1}, v{VL}')
    k(f'v_lshlrev_b32 v{vt}, 7, v{vt}')
    k(f's_lshl_b32 s{S_T0}, s{s_line}, 7')
    k(f's_mov_b32 s{S_CNT}, {SPIN}')
    if mask: k(f's_mov_b64 exec, {hex(mask)}')
    elif n < 64: k(f's_mov_b64 exec, {hex((1 << n) - 1)}' if n <= 31 else f's_mov_b32 exec_hi, {hex((1 << (n-32)) - 1)}')
    if C.PPOLL:
        ld = lambda r: k(f'buffer_load_dword v{r}, v{vt}, {sr(SRD_F,4)}, s{S_T0} offen sc1')
        ld(vt+1)
        k('s_waitcnt vmcnt(0)')
        k(f'v_cmp_ne_u32 vcc, 1, v{vt+1}')
        k('s_nop 0')
        k('s_cmp_eq_u64 vcc, 0')
        k(f's_cbranch_scc1 {done}')
        ld(vt+1); k('s_sleep 2'); ld(vt+2); k('s_sleep 2')
        k.label(lp)
        for r in (0, 1, 2):
            ld(vt+1+(r+2) % 3)
            k('s_waitcnt vmcnt(2)')
            k(f'v_cmp_ne_u32 vcc, 1, v{vt+1+r}')
            k('s_sleep 1')
            k('s_cmp_eq_u64 vcc, 0')
            k(f's_cbranch_scc1 {done}')
        k(f's_sub_u32 s{S_CNT}, s{S_CNT}, 1')
        k(f's_cmp_lg_u32 s{S_CNT}, 0')
        k(f's_cbranch_scc1 {lp}')
    else:
        k.label(lp)
        k(f'buffer_load_dword v{vt+1}, v{vt}, {sr(SRD_F,4)}, s{S_T0} offen sc1')
        k(f's_sub_u32 s{S_CNT}, s{S_CNT}, 1')
        k('s_waitcnt vmcnt(0)')
        k(f'v_cmp_ne_u32 vcc, 1, v{vt+1}')
        k(f's_cmp_eq_u32 s{S_CNT}, 0')
        k(f's_cbranch_scc1 {done}')
        k('s_cmp_eq_u64 vcc, 0')
        k(f's_cbranch_scc1 {done}')
        k(f's_sleep {C.PSLEEP}')
        k(f's_branch {lp}')
    k.label(done)
    k('s_mov_b64 exec, -1')

def wait_init(k, vt=8):
    lp, done = k.newlabel('wi'), k.newlabel('wid')
    k(f'v_min_u32 v{vt}, 11, v{VL}')
    k(f'v_and_b32 v{vt+1}, 1, v{vt}')
    k(f'v_lshlrev_b32 v{vt+1}, 7, v{vt+1}')
    k(f'v_lshl_add_u32 v{vt}, v{vt}, 2, v{vt+1}')
    k(f's_mov_b32 s{S_CNT}, {SPIN}')
    k.label(lp)
    k(f'global_load_dword v{vt+1}, v{vt}, s[{P_DBG}:{P_DBG+1}] sc1')
    k(f's_sub_u32 s{S_CNT}, s{S_CNT}, 1')
    k('s_waitcnt vmcnt(0)')
    k(f'v_cmp_ne_u32 vcc, 1, v{vt+1}')
    k(f's_cmp_eq_u32 s{S_CNT}, 0')
    k(f's_cbranch_scc1 {done}')
    k('s_cmp_eq_u64 vcc, 0')
    k(f's_cbranch_scc1 {done}')
    k('s_sleep 3')
    k(f's_branch {lp}')
    k.label(done)

def set_flag(k, s_line, vt=8):
    k(f's_lshl_b32 s{S_T0}, s{s_line}, 7')
    k(f'v_mov_b32 v{vt}, 0\nv_mov_b32 v{vt+1}, 1')
    k('s_mov_b64 exec, 1')
    k(f'buffer_store_dword v{vt+1}, v{vt}, {sr(SRD_F,4)}, s{S_T0} offen sc1')
    k('s_mov_b64 exec, -1')

def signal(k, s_line, nwaves, vt=8):
    if not C.PERSIST: return
    skip = k.newlabel('sig')
    k('s_mov_b64 exec, -1')
    k(f's_lshl_b32 s{S_T0}, s{s_line}, 7')
    k(f'v_mov_b32 v{vt}, 0\nv_mov_b32 v{vt+1}, 1')
    k(f's_cmp_lg_u32 s{S_WAVE}, 0')
    k('s_waitcnt vmcnt(0)')
    k('s_barrier')
    k(f's_cbranch_scc1 {skip}')
    if C.WBL2: k('buffer_wbl2 sc1\ns_waitcnt vmcnt(0)')
    k('s_mov_b64 exec, 1')
    k(f'buffer_store_dword v{vt+1}, v{vt}, {sr(SRD_F,4)}, s{S_T0} offen sc1')
    k('s_mov_b64 exec, -1')
    k.label(skip)

def signal_lds(k, s_line, nwaves, vt=8):
    skip = k.newlabel('sig')
    k('s_mov_b64 exec, -1')
    k(f's_lshl_b32 s{S_T0}, s{s_line}, 7')
    k(f'v_mov_b32 v{vt}, 0\nv_mov_b32 v{vt+1}, 1\nv_mov_b32 v{vt+2}, {L_CNT}')
    k('s_mov_b64 exec, 1')
    k('s_waitcnt vmcnt(0)')
    k(f'ds_add_rtn_u32 v{vt+3}, v{vt+2}, v{vt+1}')
    k('s_waitcnt lgkmcnt(0)')
    k(f'v_cmp_eq_u32 vcc, {nwaves-1}, v{vt+3}')
    k('s_nop 0')
    k('s_cmp_eq_u64 vcc, 0')
    k(f's_cbranch_scc1 {skip}')
    if C.WBL2: k('buffer_wbl2 sc1\ns_waitcnt vmcnt(0)')
    k(f'buffer_store_dword v{vt+1}, v{vt}, {sr(SRD_F,4)}, s{S_T0} offen sc1')
    k.label(skip)
    k('s_mov_b64 exec, -1')
    stamp(k, 3)
    k('s_barrier')

def q2f_addr(k, v):
    k(f'v_and_b32 v{v}, 15, v{VL}\nv_lshlrev_b32 v{v}, 4, v{v}\nv_lshrrev_b32 v{VT}, 4, v{VL}\nv_lshl_add_u32 v{v}, v{VT}, 2, v{v}')
def f2q_addr(k, v):
    k(f'v_and_b32 v{v}, 3, v{VL}\nv_lshlrev_b32 v{v}, 6, v{v}\nv_and_b32 v{VT}, 0x3c, v{VL}\nv_add_u32 v{v}, v{v}, v{VT}')
def quad_voff(k, v, stride):
    k(f'v_lshrrev_b32 v{v}, 2, v{VL}\ns_mov_b32 s{S_T0}, {stride}\nv_mul_u32_u24 v{v}, s{S_T0}, v{v}\nv_and_b32 v{VT}, 3, v{VL}\nv_lshl_add_u32 v{v}, v{VT}, 4, v{v}')

def prefetch_flat(k, ptr, nbytes, s_worker, nworkers, vdst, maxper=99, srd=SRD_Y, vtmp=1):
    make_srd(k, srd, ptr, nbytes)
    k(f'v_lshlrev_b32 v{vtmp}, 7, v{VL}')
    per = min(maxper, -(-(-(-nbytes // 8192)) // nworkers))
    k(f's_lshl_b32 s{S_T0}, s{s_worker}, 13')
    for i in range(per):
        k(f'buffer_load_dword v{vdst}, v{vtmp}, {sr(srd,4)}, s{S_T0} offen')
        if i + 1 < per: k(f's_add_u32 s{S_T0}, s{S_T0}, {nworkers*8192}')
def prefetch_cols(k, srd, lines_per_row, colbyte, s_worker, nworkers, vdst, v0, v1, stride=6912, limit=None):
    tot = 1152 * lines_per_row
    per = -(-(tot // 64) // nworkers)
    sh = {18: 20, 36: 21}[lines_per_row]
    assert all((n*58255) >> sh == n // lines_per_row for n in range(per*nworkers*64)) and per*nworkers*64*58255 < 2**32
    k(f's_lshl_b32 s{S_T1}, s{s_worker}, 6')
    lend = k.newlabel('pfc')
    for i in range(per):
        if limit and i == per - 1:
            k(f's_cmp_ge_u32 s{S_T1}, {limit*64}')
            k(f's_cbranch_scc1 {lend}')
        k(f'v_add_u32 v{v0}, s{S_T1}, v{VL}')
        k(f's_mov_b32 s{S_T0}, 58255')
        k(f'v_mul_lo_u32 v{v1}, v{v0}, s{S_T0}')
        k(f'v_lshrrev_b32 v{v1}, {sh}, v{v1}')
        k(f's_mov_b32 s{S_T0}, {stride - lines_per_row*128}')
        k(f'v_mul_u32_u24 v{v1}, s{S_T0}, v{v1}')
        k(f'v_lshl_add_u32 v{v0}, v{v0}, 7, v{v1}')
        k(f's_mov_b32 s{S_T0}, {colbyte}')
        k(f'buffer_load_dword v{vdst}, v{v0}, {sr(srd,4)}, s{S_T0} offen')
        if i + 1 < per: k(f's_add_u32 s{S_T1}, s{S_T1}, {nworkers*64}')
    k.label(lend)

VMAX = [0]
LMAX = [0]
def gemm_role(k, g, epilogue, s_flag=None, npre=2, custom_consumer=None, cons_first=None, depA=None, depB=None, end_hookA=None, end_hookB=None, exit_hook=None, midA=None, tail=None, lds_sig=False):
    ll, lb = k.newlabel(g.name + '_loader'), k.newlabel(g.name + '_loaderB')
    k(f's_cmp_ge_u32 s{S_WAVE}, 4')
    k(f's_cbranch_scc1 {ll}')
    if cons_first: cons_first(k)
    k(f's_and_b32 s{S_WB}, s{S_WAVE}, {g.WB-1}')
    k(f's_lshr_b32 s{S_WA}, s{S_WAVE}, {g.WB.bit_length()-1}')
    VF = VACC + g.ma*g.nb*4
    g.VF = VF
    g.VX = VF + 2*(g.ma+g.nb)*4
    g.vmax = g.VX
    if custom_consumer: custom_consumer(k, g)
    else: consumer_body(k, g, VL, VACC, VF, VA, VT, post_bar0=lambda k: (stamp(k, 0), cstamp(k, 4)))
    stamp(k, 1); cstamp(k, 5)
    epilogue(k, g)
    stamp(k, 2)
    if lds_sig: signal_lds(k, s_flag, 4)
    elif s_flag is not None: signal(k, s_flag, 4)
    lx = k.newlabel(g.name + '_exit')
    k.label(lx)
    if exit_hook: exit_hook(k)
    phase_exit(k, drain=not C.PERSIST)
    k.label(ll)
    k(f's_and_b32 s{S_W2}, s{S_WAVE}, 1')
    k(f's_cmp_ge_u32 s{S_WAVE}, 6')
    k(f's_cbranch_scc1 {lb}')
    def wrap(dep):
        def f(k):
            if dep: dep(k)
            stamp(k, 0)
        return f
    loader_body(k, g, g.A, VL, 1, VT, npre=npre, pre_hook=wrap(depA), end_barrier=C.PERSIST, end_hook=end_hookA, mid=midA, tail_hook=tail)
    k(f's_branch {lx}')
    k.label(lb)
    loader_body(k, g, g.B, VL, 1, VT, npre=npre, pre_hook=wrap(depB), end_barrier=C.PERSIST, end_hook=end_hookB, tail_hook=tail)
    k(f's_branch {lx}')
    VMAX[0] = max(VMAX[0], g.vmax); LMAX[0] = max(LMAX[0], g.lds_bytes)
    assert g.lds_bytes <= L_CNT

def acc(g, a, b): return VACC + (a*g.nb + b)*4

def epi_frag16(rbtot, s_kb0, s_rb0, rowperm=False):
    def f(k, g):
        npair = (g.ma + 1) // 2
        k(f's_mul_i32 s{S_T0}, s{S_WA}, {g.ma//2}')
        k(f's_add_u32 s{S_T0}, s{S_T0}, s{s_kb0}')
        k(f's_mul_i32 s{S_T0}, s{S_T0}, {rbtot}')
        k(f's_mul_i32 s{S_T1}, s{S_WB}, {g.nbstep}')
        k(f's_add_u32 s{S_T0}, s{S_T0}, s{S_T1}')
        k(f's_add_u32 s{S_T0}, s{S_T0}, s{s_rb0}')
        k(f's_lshl_b32 s{S_OBASE}, s{S_T0}, 10')
        if rowperm:
            assert g.nb % 2 == 0
            k(f'v_bfe_u32 v{VT}, v{VL}, 2, 1\nv_lshlrev_b32 v1, 10, v{VT}\nv_bfe_u32 v{VT}, v{VL}, 3, 1\nv_lshl_add_u32 v1, v{VT}, 6, v1')
            k(f'v_and_b32 v{VT}, 0x33, v{VL}\nv_lshl_add_u32 v1, v{VT}, 4, v1')
        else:
            k(f'v_lshlrev_b32 v1, 4, v{VL}')
        k('s_nop 1')
        t = g.VF
        for ap in range(npair):
            for b in range(g.nb):
                c0 = acc(g, 2*ap, b)
                k(f'v_cvt_pk_bf16_f32 v{t}, v{c0}, v{c0+1}')
                k(f'v_cvt_pk_bf16_f32 v{t+1}, v{c0+2}, v{c0+3}')
                if 2*ap+1 < g.ma:
                    c1 = acc(g, 2*ap+1, b)
                    k(f'v_cvt_pk_bf16_f32 v{t+2}, v{c1}, v{c1+1}')
                    k(f'v_cvt_pk_bf16_f32 v{t+3}, v{c1+2}, v{c1+3}')
                else:
                    k(f'v_mov_b32 v{t+2}, 0\nv_mov_b32 v{t+3}, 0')
                off = (b & ~1)*1024 + (b & 1)*128 if rowperm else b*1024
                hi, lo = off // 4096 * 4096, off % 4096
                k(f's_add_u32 s{S_T0}, s{S_OBASE}, {ap*rbtot*1024 + hi}')
                k(f'buffer_store_dwordx4 {vr(t,4)}, v1, {sr(SRD_O,4)}, s{S_T0} offen offset:{lo}{ST}')
                t += 4
        g.vmax = max(g.vmax, t)
    return f

def dep(*items):
    def f(k):
        for it in items:
            (s, mul, const, n), mask = it[:4], (it[4] if len(it) > 4 else None)
            if not C.PERSIST: continue
            if s is None: k(f's_mov_b32 s85, {const}')
            else:
                k(f's_mul_i32 s85, s{s}, {mul}')
                k(f's_add_u32 s85, s85, {const}')
            poll(k, 85, n, mask=mask)
    return f

def gemv_job(k, n, tag, s_goff, s_ldsrow, finish):
    make_srd(k, SRD_A, P_WMOD, D*6*D*2)
    make_srd(k, SRD_B, P_C, 2*D*2)
    L_SILU, L_RED = 0, 9216
    VW, VS, VAC, VU, VC = 16, 88, 124, 140, 148
    k(f's_lshl_b32 s{S_T0}, s{S_WAVE}, 10')
    k(f'v_lshl_add_u32 v3, v{VL}, 4, s{S_T0}')
    k(f'buffer_load_dwordx4 {vr(VC,4)}, v3, {sr(SRD_B,4)}, 0 offen')
    k(f's_lshl_b32 s{S_T0}, s{S_WAVE}, 3')
    k(f'v_lshrrev_b32 v4, 3, v{VL}')
    k(f'v_add_u32 v4, s{S_T0}, v4')
    k(f'v_and_b32 v5, 7, v{VL}')
    k('v_lshlrev_b32 v5, 4, v5')
    k(f's_mov_b32 s{S_T0}, 13824')
    k(f'v_mad_u32_u24 v5, v4, s{S_T0}, v5')
    def issue_w(i0, i1):
        for i in range(i0, i1):
            if i: k(f's_add_u32 s{s_goff}, s{s_goff}, {64*13824}')
            k(f'buffer_load_dwordx4 {vr(VW+4*i,4)}, v5, {sr(SRD_A,4)}, s{s_goff} offen')
    issue_w(0, 6)
    k('v_lshlrev_b32 v4, 2, v4')
    if s_ldsrow is not None: k(f'v_add_u32 v4, s{s_ldsrow}, v4')
    k('s_waitcnt vmcnt(6)')
    for j in range(4):
        k(f'v_lshlrev_b32 v{VC+4+2*j}, 16, v{VC+j}')
        k(f'v_and_b32 v{VC+5+2*j}, 0xffff0000, v{VC+j}')
    for j in range(8): k(f'v_mul_f32 v{VU+j}, {f32(-math.log2(math.e))}, v{VC+4+j}')
    for j in range(8): k(f'v_exp_f32 v{VU+j}, v{VU+j}')
    for j in range(8): k(f'v_add_f32 v{VU+j}, 1.0, v{VU+j}')
    for j in range(8): k(f'v_rcp_f32 v{VU+j}, v{VU+j}')
    for j in range(8): k(f'v_mul_f32 v{VC+4+j}, v{VU+j}, v{VC+4+j}')
    k('v_lshlrev_b32 v8, 1, v3')
    k('v_cmp_gt_u32 vcc, 9216, v8')
    k('s_mov_b64 exec, vcc')
    k(f'ds_write_b128 v8, {vr(VC+4,4)} offset:{L_SILU}')
    k(f'ds_write_b128 v8, {vr(VC+8,4)} offset:{L_SILU+16}')
    k('s_mov_b64 exec, -1')
    k('s_waitcnt lgkmcnt(0)')
    k('s_barrier')
    stamp(k, 0)
    for i in range(n):
        k(f'ds_read2st64_b32 {vr(VS+2*i,2)}, v4 offset0:{i} offset1:{i+18}')
    issue_w(6, n)
    k(f'v_bfe_u32 v6, v{VL}, 1, 2\nv_lshlrev_b32 v6, 7, v6\nv_lshrrev_b32 v7, 3, v{VL}\nv_lshl_add_u32 v6, v7, 4, v6\nv_and_b32 v7, 1, v{VL}\nv_lshl_add_u32 v6, v7, 3, v6')
    k(f'v_lshrrev_b32 v7, 4, v{VL}\nv_lshlrev_b32 v7, 7, v7\nv_and_b32 v9, 7, v{VL}\nv_lshl_add_u32 v7, v9, 4, v7')
    k(f's_lshl_b32 s{S_T0}, s{S_WAVE}, 9')
    k(f'v_add_u32 v7, s{S_T0}, v7')
    k(f'v_lshlrev_b32 v9, 2, v{VL}')
    for j in range(16): k(f'v_mov_b32 v{VAC+j}, 0')
    k('s_waitcnt lgkmcnt(0)')
    for i in range(n):
        k(f's_waitcnt vmcnt({n - 1 - i})')
        for j in range(4):
            k(f'v_lshlrev_b32 v{VU+2*j}, 16, v{VW+4*i+j}')
            k(f'v_and_b32 v{VU+2*j+1}, 0xffff0000, v{VW+4*i+j}')
        for j in range(4):
            k(f'v_pk_fma_f32 {vr(VAC+4*j,2)}, {vr(VS+2*i,2)}, {vr(VU+2*j,2)}, {vr(VAC+4*j,2)} op_sel:[0,0,0] op_sel_hi:[1,0,1]')
            k(f'v_pk_fma_f32 {vr(VAC+4*j+2,2)}, {vr(VS+2*i,2)}, {vr(VU+2*j,2)}, {vr(VAC+4*j+2,2)} op_sel:[0,1,0] op_sel_hi:[1,1,1]')
    stamp(k, 1)
    k('s_nop 1')
    for j in range(8): k(f'v_permlane32_swap_b32 v{VAC+j}, v{VAC+8+j}')
    for j in range(8): k(f'v_add_f32 v{VAC+j}, v{VAC+j}, v{VAC+8+j}')
    k('s_nop 1')
    for j in range(4): k(f'v_permlane16_swap_b32 v{VAC+j}, v{VAC+4+j}')
    for j in range(4): k(f'v_add_f32 v{VAC+4+j}, v{VAC+j}, v{VAC+4+j}')
    k('s_nop 1')
    for j in range(4): k(f'v_add_f32_dpp v{VAC+j}, v{VAC+4+j}, v{VAC+4+j} row_ror:8 row_mask:0xf bank_mask:0xf')
    k(f'ds_write_b128 v7, {vr(VAC,4)} offset:{L_RED}')
    k('s_waitcnt lgkmcnt(0)')
    k('s_barrier')
    k(f's_cmp_lg_u32 s{S_WAVE}, 0')
    k(f's_cbranch_scc1 gv_nored{tag}')
    for w in range(8): k(f'ds_read_b64 {vr(VAC+2*w,2)}, v6 offset:{L_RED + 512*w}')
    k('s_waitcnt lgkmcnt(0)')
    for st in (8, 4, 2):
        for j in range(0, st, 2):
            k(f'v_pk_add_f32 {vr(VAC+j,2)}, {vr(VAC+j,2)}, {vr(VAC+st+j,2)}')
    stamp(k, 2)
    finish(k, VAC)
    stamp(k, 3)
    k.label(f'gv_nored{tag}')
    k('s_barrier')
    VMAX[0] = max(VMAX[0], 160); LMAX[0] = max(LMAX[0], 16384)

def gate_job(k, s_idx):
    k(f's_lshl_b32 s{S_G}, s{s_idx}, 7')
    k(f's_add_u32 s{S_G}, s{S_G}, 4608')
    def fin(k, VAC):
        ws_srd(k, SRD_O, 'GATE')
        k(f's_lshl_b32 s{S_T1}, s{s_idx}, 8')
        k(f's_add_u32 s{S_T2}, s{S_T1}, 4608')
        k(f'buffer_store_dword v{VAC}, v9, {sr(SRD_O,4)}, s{S_T1} offen sc1')
        k(f'buffer_store_dword v{VAC+1}, v9, {sr(SRD_O,4)}, s{S_T2} offen sc1')
        if C.PERSIST:
            wait_init(k, 12)
            k(f's_add_u32 s85, s{s_idx}, {FL["GATE"]}')
            set_flag(k, 85, 12)
    gemv_job(k, 18, 'g', S_G, None, fin)

def phase_A(k):
    kernel_entry(k)
    k('s_cmp_ge_u32 s65, 23')
    k('s_cbranch_scc1 pa_mod')
    k('s_cmp_lt_u32 s65, 8')
    k('s_cbranch_scc1 pa_h')
    k('s_and_b32 s66, s64, 1')
    k('s_lshr_b32 s67, s64, 1')
    k('s_sub_u32 s68, 5, s66')
    k('s_mul_i32 s70, s68, 3')
    k('s_sub_u32 s69, s65, 8')
    k('s_cmp_ge_u32 s69, s70')
    k('s_cbranch_scc1 pa_spare')
    div_const(k, 71, 69, 5, 31)
    k('s_lshr_b32 s72, s69, 2')
    k('s_cmp_eq_u32 s66, 0')
    k('s_cselect_b32 s71, s71, s72')
    k('s_mul_i32 s72, s71, s68')
    k('s_sub_u32 s72, s69, s72')
    k('s_lshl_b32 s74, s71, 1')
    k('s_add_u32 s74, s74, s72')
    rot_from(k, 'wqk', 74, 6, 16)
    k('s_mul_i32 s73, s66, 5')
    k('s_add_u32 s72, s72, s73')
    k('s_mul_i32 s73, s67, 3')
    k('s_add_u32 s71, s71, s73')
    k(f's_mul_i32 s{S_ABASE}, s72, {128*6912}')
    k(f's_mul_i32 s{S_BBASE}, s71, {96*6912}')
    k(f's_add_u32 s{S_BBASE}, s{S_BBASE}, {D*2}')
    k('s_lshl_b32 s75, s72, 2')
    k('s_mul_i32 s76, s71, 6')
    k('s_mul_i32 s77, s71, 9')
    k('s_add_u32 s77, s77, s72')
    k(f's_add_u32 s78, s77, {FL["WQK"]}')
    args_ready(k)
    make_srd(k, SRD_A, P_WQKV, D*3*D*2)
    ws_srd(k, SRD_O, 'WQK')
    g = Gemm('wqk', Opnd('row', 8, SRD_A, S_ABASE, stride=6912, perm=True), Opnd('row', 6, SRD_A, S_BBASE, stride=6912, perm=True), 2, 2, 18, C.NS['wqk'], rot=R('wqk'), win=Wn('wqk'))
    def a_pre(k):
        k('s_lshl_b32 s79, s77, 2')
        k(f's_add_u32 s79, s79, s{S_WAVE}')
        prefetch_cols(k, SRD_A, 36, 0, 79, 432, 12, 1, 2)
    def a_end(k):
        if C.PERSIST: wait_init(k)
    gemm_role(k, g, epi_frag16(72, 75, 76), s_flag=78, npre=2, cons_first=(a_pre if C.APRE else None), end_hookA=a_end)
    k.label('pa_mod')
    if 'mod' in C.SKIP: k('s_endpgm')
    k('s_mul_i32 s73, s64, 9')
    k('s_add_u32 s73, s73, s65')
    k('s_sub_u32 s73, s73, 23')
    k('s_cmp_ge_u32 s73, 36')
    k('s_cselect_b32 s74, 1, 0')
    k('s_mul_i32 s75, s74, 36')
    k('s_sub_u32 s75, s73, s75')
    k(f's_mul_i32 s{S_G}, s74, {576*13824}')
    k(f's_lshl_b32 s{S_T0}, s75, 7')
    k(f's_add_u32 s{S_G}, s{S_G}, s{S_T0}')
    k('s_mul_i32 s76, s74, 2304')
    args_ready(k)
    def fin(k, VAC):
        ws_srd(k, SRD_O, 'MODP')
        k('s_cmp_ge_u32 s75, 18')
        k(f's_cselect_b32 s{S_T2}, 1.0, 0')
        k('s_cmp_eq_u32 s74, 0')
        k(f's_cselect_b32 s{S_T2}, s{S_T2}, 0')
        k(f'v_add_f32 v{VAC}, s{S_T2}, v{VAC}\nv_add_f32 v{VAC+1}, s{S_T2}, v{VAC+1}')
        k(f's_mul_i32 s{S_T1}, s74, 18432')
        k(f's_lshl_b32 s{S_T0}, s75, 8')
        k(f's_add_u32 s{S_T1}, s{S_T1}, s{S_T0}')
        k(f's_add_u32 s{S_T2}, s{S_T1}, 9216')
        k(f'buffer_store_dword v{VAC}, v9, {sr(SRD_O,4)}, s{S_T1} offen sc1')
        k(f'buffer_store_dword v{VAC+1}, v9, {sr(SRD_O,4)}, s{S_T2} offen sc1')
        wait_init(k, 12)
        k(f's_add_u32 s85, s73, {FL["MOD"]}')
        set_flag(k, 85, 12)
    gemv_job(k, 9, 'm', S_G, 76, fin)
    phase_exit(k, drain=False)
    k.label('pa_spare')
    k('s_mul_i32 s73, s67, 3')
    k('s_add_u32 s73, s73, s65')
    k('s_sub_u32 s73, s73, 20')
    args_ready(k)
    k(f'v_lshlrev_b32 v8, 4, v{VL}')
    k('v_mov_b32 v4, 0\nv_mov_b32 v5, 0\nv_mov_b32 v6, 0\nv_mov_b32 v7, 0')
    k('s_lshl_b32 s79, s73, 3')
    k(f's_add_u32 s79, s79, s{S_WAVE}')
    k(f's_lshl_b32 s{S_T0}, s79, 10')
    k(f'buffer_store_dwordx4 v[4:7], v8, {sr(SRD_F,4)}, s{S_T0} offen sc1')
    k(f's_add_u32 s{S_T0}, s{S_T0}, {96*1024}')
    k(f'buffer_store_dwordx4 v[4:7], v8, {sr(SRD_F,4)}, s{S_T0} offen sc1')
    k('s_waitcnt vmcnt(0)')
    k('s_barrier')
    k(f's_cmp_lg_u32 s{S_WAVE}, 0')
    k('s_cbranch_scc1 pa_noinit')
    k(f's_and_b32 s{S_T0}, s73, 1')
    k(f's_lshl_b32 s{S_T0}, s{S_T0}, 7')
    k(f's_lshl_b32 s{S_T1}, s73, 2')
    k(f's_add_u32 s{S_T0}, s{S_T0}, s{S_T1}')
    k(f'v_mov_b32 v8, 1\nv_mov_b32 v9, s{S_T0}')
    k('s_mov_b64 exec, 1')
    k(f'global_store_dword v9, v8, s[{P_DBG}:{P_DBG+1}] sc1')
    k('s_mov_b64 exec, -1')
    k.label('pa_noinit')
    k('s_lshl_b32 s79, s73, 3')
    k(f's_add_u32 s79, s79, s{S_WAVE}')
    k('s_lshr_b32 s78, s79, 1')
    k('s_bitcmp1_b32 s79, 0')
    k('s_cbranch_scc1 pa_noy')
    prefetch_flat(k, P_Y, 2*77*D*2, 78, 48, 14, vtmp=8)
    k.label('pa_noy')
    phase_exit(k, drain=False)
    k.label('pa_h')
    if 'h' in C.SKIP: k('s_endpgm')
    k('s_lshl_b32 s73, s64, 3')
    k('s_add_u32 s73, s73, s65')
    args_ready(k)
    def h_pf(k):
        if not C.PERSIST: return
        k('s_lshl_b32 s79, s73, 3')
        k(f's_add_u32 s79, s79, s{S_WAVE}')
        prefetch_flat(k, P_WKVC, D*2*D*2, 79, 512, 14, maxper=1, vtmp=8)
        l1 = k.newlabel('hpf')
        k('s_cmp_ge_u32 s79, 180')
        k(f's_cbranch_scc1 {l1}')
        k('s_cmp_ge_u32 s79, 136')
        k(f's_cselect_b32 s{SRD_Y}, s{P_Y}, s{P_WKVC}')
        k(f's_cselect_b32 s{SRD_Y+1}, s{P_Y+1}, s{P_WKVC+1}')
        k(f's_mov_b32 s{S_T1}, {D*2*D*2}')
        k(f's_cselect_b32 s{SRD_Y+2}, {2*77*D*2}, s{S_T1}')
        k(f's_mov_b32 s{S_T1}, {512*8192}')
        k(f's_cselect_b32 s{S_T1}, {(-136*8192) & 0xffffffff}, s{S_T1}')
        k(f's_add_u32 s{S_T0}, s{S_T0}, s{S_T1}')
        k(f'buffer_load_dword v14, v8, {sr(SRD_Y,4)}, s{S_T0} offen')
        k.label(l1)
    L_STAT, L_MOD = 0, 2048
    VN, VM, VXD = 16, 112, 208
    if C.HPRE:
        k('s_lshl_b32 s79, s73, 3')
        k(f's_add_u32 s79, s79, s{S_WAVE}')
        make_srd(k, SRD_Y, P_WQKV, D*3*D*2)
        prefetch_cols(k, SRD_Y, 36, 0, 79, 512, 13, 8, 9, limit=648)
    k(f's_cmp_ge_u32 s{S_WAVE}, 6')
    k('s_cbranch_scc1 pa_hhelp')
    make_srd(k, SRD_X, P_X, NR*D*2)
    k(f'v_lshrrev_b32 v6, 3, v{VL}\ns_mov_b32 s{S_T0}, 2304\nv_mul_u32_u24 v6, s{S_T0}, v6\nv_and_b32 v7, 7, v{VL}\nv_lshl_add_u32 v6, v7, 4, v6')
    k(f's_mul_i32 s75, s73, {32*2304}')
    k(f's_mul_i32 s76, s{S_WAVE}, 384')
    k('s_add_u32 s75, s75, s76')
    for rg in range(4):
        for sg in range(3):
            k(f'buffer_load_dwordx4 {vr(VM+(rg*3+sg)*4,4)}, v6, {sr(SRD_X,4)}, s75 offen offset:{128*sg}')
        if rg < 3: k(f's_add_u32 s75, s75, {8*2304}')
    k(f'v_lshlrev_b32 v7, 5, v7\nv_lshrrev_b32 v8, 3, v{VL}\nv_lshl_add_u32 v7, v8, 2, v7')
    k(f's_mov_b32 s77, 0x3f803f80')
    for rg in range(4):
        k(f's_waitcnt vmcnt({9 - 3*rg})')
        for j in range(12): k(f'ds_bpermute_b32 v{VXD+12*rg+j}, v7, v{VM+12*rg+j}')
    stamp(k, 0)
    for rg in range(4):
        k(f'v_mov_b32 v{VN+2*rg}, 0\nv_mov_b32 v{VN+2*rg+1}, 0')
    k('s_waitcnt lgkmcnt(0)')
    for j in range(12):
        for rg in range(4):
            k(f'v_dot2_f32_bf16 v{VN+rg}, v{VXD+12*rg+j}, s77, v{VN+rg}')
            k(f'v_dot2_f32_bf16 v{VN+4+rg}, v{VXD+12*rg+j}, v{VXD+12*rg+j}, v{VN+4+rg}')
    k('s_nop 3')
    for j in range(4): k(f'v_permlane32_swap_b32 v{VN+j}, v{VN+4+j}')
    for j in range(4): k(f'v_add_f32 v{VN+j}, v{VN+j}, v{VN+4+j}')
    k('s_nop 1')
    for j in range(2): k(f'v_permlane16_swap_b32 v{VN+j}, v{VN+2+j}')
    for j in range(2): k(f'v_add_f32 v{VN+2+j}, v{VN+j}, v{VN+2+j}')
    k('s_nop 1')
    for j in range(2): k(f'v_add_f32_dpp v{VN+j}, v{VN+2+j}, v{VN+2+j} row_ror:8 row_mask:0xf bank_mask:0xf')
    k(f'v_and_b32 v9, 7, v{VL}\nv_mul_u32_u24 v9, 192, v9\nv_lshrrev_b32 v10, 4, v{VL}\nv_lshl_add_u32 v10, v10, 3, v9')
    k(f's_lshl_b32 s{S_T0}, s{S_WAVE}, 5')
    k(f'v_add_u32 v10, s{S_T0}, v10')
    k(f'ds_write_b64 v10, {vr(VN,2)} offset:{L_STAT}')
    k('s_waitcnt lgkmcnt(0)')
    k('s_barrier')
    for w in range(6):
        k(f'ds_read_b128 {vr(VM+8*w,4)}, v9 offset:{L_STAT + 32*w}')
        k(f'ds_read_b128 {vr(VM+8*w+4,4)}, v9 offset:{L_STAT + 32*w + 16}')
    k('s_waitcnt lgkmcnt(0)')
    for w in range(1, 6):
        for j in range(0, 8, 2): k(f'v_pk_add_f32 {vr(VM+j,2)}, {vr(VM+j,2)}, {vr(VM+8*w+j,2)}')
    for rg in range(4):
        k(f'v_mul_f32 v{VM+rg}, {f32(1.0/D)}, v{VM+rg}')
        k(f'v_mul_f32 v{VM+4+rg}, {f32(1.0/D)}, v{VM+4+rg}')
        k(f'v_fma_f32 v{VM+4+rg}, -v{VM+rg}, v{VM+rg}, v{VM+4+rg}')
        k(f'v_max_f32 v{VM+4+rg}, 0, v{VM+4+rg}')
        k(f'v_add_f32 v{VM+4+rg}, {f32(1e-5)}, v{VM+4+rg}')
        k(f'v_rsq_f32 v{VM+4+rg}, v{VM+4+rg}')
        k('s_nop 0')
        k(f'v_mul_f32 v{VM+rg}, v{VM+rg}, v{VM+4+rg}')
    for rg in range(4):
        for j in range(12):
            n = VN + 24*rg + 2*j
            k(f'v_lshlrev_b32 v{n}, 16, v{VXD+12*rg+j}')
            k(f'v_and_b32 v{n+1}, 0xffff0000, v{VXD+12*rg+j}')
            k(f'v_fma_f32 v{n}, v{n}, v{VM+4+rg}, -v{VM+rg}')
            k(f'v_fma_f32 v{n+1}, v{n+1}, v{VM+4+rg}, -v{VM+rg}')
    ws_srd(k, SRD_A, 'H')
    k(f'v_lshrrev_b32 v8, 3, v{VL}\nv_lshlrev_b32 v8, 5, v8')
    k(f's_mul_i32 s{S_T0}, s{S_WAVE}, 768')
    k(f'v_add_u32 v8, s{S_T0}, v8')
    k(f'v_lshrrev_b32 v9, 5, v{VL}\nv_lshlrev_b32 v9, 17, v9\nv_bfe_u32 v10, v{VL}, 3, 2\nv_lshl_add_u32 v9, v10, 8, v9\nv_and_b32 v10, 7, v{VL}\nv_lshl_add_u32 v9, v10, 4, v9')
    k(f's_mul_i32 s{S_G}, s{S_WAVE}, {6*128}')
    k('s_lshl_b32 s76, s73, 1')
    k(f's_add_u32 s{S_G}, s{S_G}, s76')
    k(f's_lshl_b32 s{S_G}, s{S_G}, 10')
    stamp(k, 1)
    k('s_barrier')
    stamp(k, 2)
    for sg in range(3):
        m = VM + 32*sg
        for ks in range(2):
            for kind in range(2):
                for h in range(2):
                    k(f'ds_read_b128 {vr(m+16*ks+8*kind+4*h,4)}, v8 offset:{L_MOD + ks*9216 + kind*4608 + sg*256 + 16*h}')
    for sg in range(3):
        m = VM + 32*sg
        k(f's_waitcnt lgkmcnt({min(15, 8*(2-sg))})')
        for j in range(0, 16, 2): k(f'v_pk_add_f32 {vr(m+j,2)}, {vr(m+j,2)}, {vr(m+16+j,2)}')
        k(f's_add_u32 s{S_T0}, s{S_G}, {sg*2*128*1024}')
        for rg in range(4):
            n = VN + 24*rg + 8*sg
            o = VXD + 12*rg + 4*sg
            for j in range(0, 8, 2): k(f'v_pk_fma_f32 {vr(n+j,2)}, {vr(n+j,2)}, {vr(m+8+j,2)}, {vr(m+j,2)}')
            for j in range(4): k(f'v_cvt_pk_bf16_f32 v{o+j}, v{n+2*j}, v{n+2*j+1}')
            k(f'buffer_store_dwordx4 {vr(o,4)}, v9, {sr(SRD_A,4)}, s{S_T0} offen offset:{(rg>>1)*1024 + (rg&1)*128}{ST}')
    stamp(k, 3)
    k(f's_add_u32 s85, s73, {FL["H"]}')
    signal(k, 85, 6, 12)
    k.label('pa_hout')
    phase_exit(k, drain=not C.PERSIST)
    k.label('pa_hhelp')
    k(f's_cmp_eq_u32 s{S_WAVE}, 7')
    k('s_cbranch_scc1 pa_hpoll')
    if C.TLBW:
        sh = C.TLBW
        k(f'v_lshlrev_b32 v8, 3, v{VL}')
        k('v_add_u32 v8, s65, v8')
        k(f'v_lshlrev_b32 v8, {sh}, v8')
        span = 512 << sh
        for ptr, nb in [(P_WS, _o), (P_OUT, NR*D*2), (P_WQKV, D*3*D*2), (P_WO, D*D*2), (P_WQC, D*D*2), (P_WKVC, D*2*D*2), (P_WOC, D*D*2), (P_WMOD, D*6*D*2), (P_Y, 2*77*D*2)]:
            make_srd(k, SRD_Y, ptr, nb)
            for i in range(-(-nb // span)):
                k(f's_mov_b32 s{S_T0}, {i*span}')
                k(f'buffer_load_dword v14, v8, {sr(SRD_Y,4)}, s{S_T0} offen sc1')
    if C.HPF2:
        k('s_waitcnt vmcnt(0)')
        if C.HPF2 == 'v':
            make_srd(k, SRD_Y, P_WQKV, D*3*D*2)
            prefetch_cols(k, SRD_Y, 18, 4608, 73, 64, 13, 8, 9, limit=324)
            prefetch_flat(k, P_WO, D*D*2, 73, 64, 13, vtmp=8)
        else:
            prefetch_flat(k, P_WKVC, D*2*D*2, 73, 64, 13, vtmp=8, maxper=C.HPF2N)
    k.label('pa_hidle')
    k('s_waitcnt lgkmcnt(0)')
    k('s_barrier')
    k('s_barrier')
    if C.PERSIST: k('s_barrier')
    k('s_branch pa_hout')
    k.label('pa_hpoll')
    wait_init(k)
    k('s_barrier')
    k(f'v_min_u32 v8, 35, v{VL}')
    k('v_lshlrev_b32 v8, 7, v8')
    k(f's_mov_b32 s{S_T0}, {FL["MOD"]*128}')
    k(f's_mov_b32 s{S_T1}, {(FL["MOD"]+36)*128}')
    k(f's_mov_b32 s{S_CNT}, {SPIN}')
    k('s_mov_b32 exec_hi, 15')
    k.label('pa_mp')
    k(f'buffer_load_dword v9, v8, {sr(SRD_F,4)}, s{S_T0} offen sc1')
    k(f'buffer_load_dword v10, v8, {sr(SRD_F,4)}, s{S_T1} offen sc1')
    k(f's_sub_u32 s{S_CNT}, s{S_CNT}, 1')
    k('s_waitcnt vmcnt(0)')
    k('v_add_u32 v9, v9, v10')
    k('v_cmp_ne_u32 vcc, 2, v9')
    k(f's_cmp_eq_u32 s{S_CNT}, 0')
    k('s_cbranch_scc1 pa_mpd')
    k('s_cmp_eq_u64 vcc, 0')
    k('s_cbranch_scc1 pa_mpd')
    k('s_sleep 2')
    k('s_branch pa_mp')
    k.label('pa_mpd')
    k('s_mov_b64 exec, -1')
    stamp(k, 0)
    ws_srd(k, SRD_O, 'MODP')
    k(f'v_lshlrev_b32 v8, 4, v{VL}')
    k('s_lshr_b32 s79, s73, 5')
    k('s_mul_i32 s79, s79, 9216')
    for ks in range(2):
        for c in range(9):
            if c % 4 == 0:
                k(f's_mov_b32 m0, {L_MOD + ks*9216 + c*1024}')
                k(f's_add_u32 s{S_T0}, s79, {ks*18432 + c*1024}')
            k(f'buffer_load_dwordx4 v8, {sr(SRD_O,4)}, s{S_T0} offen offset:{(c%4)*1024} sc1 lds')
    k('s_waitcnt vmcnt(0)')
    k('s_barrier')
    if C.PERSIST: k('s_barrier')
    k('s_branch pa_hout')
    VMAX[0] = 256

def phase_B(k):
    dispatcher(k)
    k.label('role_T')
    k('s_mul_i32 s66, s67, 9')
    k('s_add_u32 s66, s66, s68')
    k(f's_lshl_b32 s{S_ABASE}, s68, 13')
    k(f's_lshl_b32 s{S_BBASE}, s67, 13')
    k('s_lshl_b32 s75, s68, 2')
    k('s_lshl_b32 s76, s67, 3')
    k(f's_add_u32 s78, s66, {FL["T"]}')
    k('s_lshl_b32 s69, s68, 2')
    div_const(k, 69, 69, 3, 40)
    args_ready(k)
    ws_srd(k, SRD_A, 'WQK'); ws_srd(k, SRD_B, 'H'); ws_srd(k, SRD_O, 'T')
    g1 = Gemm('tt', Opnd('frag', 8, SRD_A, S_ABASE, rbtot=72, aux=LD()), Opnd('frag', 8, SRD_B, S_BBASE, rbtot=128, aux=LD()), 2, 2, 18, C.NS['tt'], rot=R('tt'), win=Wn('tt'))
    def c_pf(k, s_chunk, n, step):
        k(f's_bitcmp1_b32 s{S_WAVE}, 1')
        k(f's_cselect_b32 s{SRD_Y}, s{P_WQC}, s{P_WOC}')
        k(f's_cselect_b32 s{SRD_Y+1}, s{P_WQC+1}, s{P_WOC+1}')
        k(f's_mov_b32 s{SRD_Y+2}, {D*D*2}')
        k(f's_mov_b32 s{SRD_Y+3}, 0x00020000')
        k(f'v_lshlrev_b32 v8, 7, v{VL}')
        k(f's_lshl_b32 s{S_T0}, s{s_chunk}, 13')
        for i in range(n):
            k(f'buffer_load_dword v14, v8, {sr(SRD_Y,4)}, s{S_T0} offen')
            if i + 1 < n: k(f's_add_u32 s{S_T0}, s{S_T0}, {step*8192}')
    def t_pf(k):
        if not C.TPF: return
        if C.TPF == 'c':
            k('s_lshl_b32 s79, s66, 1')
            k(f's_and_b32 s{S_T1}, s{S_WAVE}, 1')
            k(f's_add_u32 s79, s79, s{S_T1}')
            k('s_add_u32 s79, s79, 36')
            c_pf(k, 79, 1, 0)
            return
        k('s_lshl_b32 s79, s66, 2')
        k(f's_add_u32 s79, s79, s{S_WAVE}')
        k('s_add_u32 s79, s79, 72')
        prefetch_flat(k, P_WKVC, D*2*D*2, 79, 648, 14, vtmp=8)
    gemm_role(k, g1, epi_frag16(128, 75, 76), s_flag=78, cons_first=t_pf, depA=dep((69, 9, FL['WQK'], 18)), depB=dep((67, 4, FL['H'], 4)))
    k.label('role_wvo')
    k('s_mul_i32 s66, s67, 9')
    k('s_add_u32 s66, s66, s68')
    if not Wn('wvo'): k('s_mul_i32 s74, s74, 6')
    k(f's_mul_i32 s{S_ABASE}, s68, {128*6912}')
    k(f's_add_u32 s{S_ABASE}, s{S_ABASE}, {2*D*2}')
    k(f's_lshl_b32 s{S_BBASE}, s67, 8')
    k('s_lshl_b32 s75, s68, 2')
    k('s_lshl_b32 s76, s67, 3')
    k(f's_add_u32 s78, s66, {FL["WVO"]}')
    args_ready(k)
    make_srd(k, SRD_A, P_WQKV, D*3*D*2); make_srd(k, SRD_B, P_WO, D*D*2); ws_srd(k, SRD_O, 'WVO')
    g2 = Gemm('wvo', Opnd('row', 8, SRD_A, S_ABASE, stride=6912, perm=True), Opnd('col', 8, SRD_B, S_BBASE, stride=2304), 2, 2, 18, C.NS['wvo'], rot=R('wvo'), win=Wn('wvo'))
    def wvo_exit(k):
        if not C.PERSIST: return
        k('s_lshl_b32 s79, s66, 2')
        k(f's_and_b32 s{S_T1}, s{S_WAVE}, 3')
        k(f's_add_u32 s79, s79, s{S_T1}')
        k(f's_cmp_ge_u32 s{S_WAVE}, 4')
        k(f's_cselect_b32 s{SRD_Y}, s{P_WQC}, s{P_WOC}')
        k(f's_cselect_b32 s{SRD_Y+1}, s{P_WQC+1}, s{P_WOC+1}')
        k(f's_mov_b32 s{SRD_Y+2}, {D*D*2}')
        k(f's_mov_b32 s{SRD_Y+3}, 0x00020000')
        k(f'v_lshlrev_b32 v8, 7, v{VL}')
        k(f's_lshl_b32 s{S_T0}, s79, 13')
        k(f'buffer_load_dword v14, v8, {sr(SRD_Y,4)}, s{S_T0} offen')
    gemm_role(k, g2, epi_frag16(72, 75, 76, rowperm=True), s_flag=78, exit_hook=(wvo_exit if C.WVOPF == 1 else None), end_hookA=wait_init)
    def kv_pf(k, s_idx):
        k(f's_lshl_b32 s79, s{s_idx}, 3')
        k(f's_add_u32 s79, s79, s{S_WAVE}')
        prefetch_flat(k, P_WKVC, D*2*D*2, 79, 224, 14, vtmp=8, maxper=C.KVPF)
    k.label('role_kvc')
    if C.KVPF:
        k('s_lshl_b32 s66, s68, 1')
        k('s_add_u32 s66, s66, s67')
        kv_pf(k, 66)
    k(f's_mul_i32 s{S_ABASE}, s68, 384')
    k(f's_mul_i32 s{S_BBASE}, s67, {77*2304}')
    k('s_mul_i32 s78, s67, 12')
    k('s_add_u32 s78, s78, s68')
    k(f's_add_u32 s78, s78, {FL["KVC"]}')
    args_ready(k)
    make_srd(k, SRD_A, P_WKVC, D*2*D*2); make_srd(k, SRD_B, P_Y, 2*77*D*2); ws_srd(k, SRD_O, 'KVC')
    g3 = Gemm('kvc', Opnd('col', 12, SRD_A, S_ABASE, stride=4608), Opnd('row', 5, SRD_B, S_BBASE, stride=2304), 4, 1, 18, 4)
    def epi_kvc(k, g):
        k(f'v_and_b32 v1, 15, v{VL}\nv_lshlrev_b32 v1, 4, v1\nv_lshrrev_b32 v{VT}, 5, v{VL}\nv_lshl_add_u32 v1, v{VT}, 8, v1')
        k(f'v_bfe_u32 v{VT}, v{VL}, 4, 1\nv_lshl_add_u32 v1, v{VT}, 3, v1')
        k('s_mul_i32 s70, s68, 12')
        k(f's_mul_i32 s71, s{S_WA}, 3')
        k('s_add_u32 s70, s70, s71')
        k('s_mul_i32 s72, s67, 5120')
        t = g.VF
        for i in range(3):
            k(f's_add_u32 s71, s70, {i}')
            k(f's_lshr_b32 s{S_T0}, s71, 1')
            k(f's_mul_i32 s{S_T0}, s{S_T0}, 10240')
            k('s_and_b32 s71, s71, 1')
            k('s_lshl_b32 s71, s71, 9')
            k(f's_add_u32 s{S_T0}, s{S_T0}, s71')
            k(f's_add_u32 s{S_T0}, s{S_T0}, s72')
            for b in range(5):
                c0 = acc(g, i, b)
                k(f'v_cvt_pk_bf16_f32 v{t}, v{c0}, v{c0+1}')
                k(f'v_cvt_pk_bf16_f32 v{t+1}, v{c0+2}, v{c0+3}')
                if b == 4: k(f's_add_u32 s{S_T0}, s{S_T0}, 4096')
                k(f'buffer_store_dwordx2 {vr(t,2)}, v1, {sr(SRD_O,4)}, s{S_T0} offen offset:{(b%4)*1024}{ST}')
                t += 2
    gemm_role(k, g3, epi_kvc, s_flag=78, end_hookA=wait_init)
    k.label('role_gate')
    k('s_mov_b32 s73, s67')
    k('s_mov_b32 s72, s68')
    k.label('pb_gate')
    gate_job(k, 73)
    k('s_add_u32 s73, s73, 1')
    k('s_sub_u32 s72, s72, 1')
    k('s_cmp_lg_u32 s72, 0')
    k('s_cbranch_scc1 pb_gate')
    phase_exit(k, drain=False)
    k.label('role_pf')
    if C.TPF == 'c':
        k(f's_and_b32 s79, s{S_WAVE}, 1')
        k(f's_lshr_b32 s78, s{S_WAVE}, 2')
        k('s_lshl_b32 s78, s78, 1')
        k('s_add_u32 s79, s79, s78')
        k('s_lshl_b32 s78, s67, 2')
        k('s_add_u32 s79, s79, s78')
        c_pf(k, 79, 3, 12)
    elif C.TPF:
        k('s_sub_u32 s79, s67, 24')
        k('s_lshl_b32 s79, s79, 3')
        k(f's_add_u32 s79, s79, s{S_WAVE}')
        prefetch_flat(k, P_WKVC, D*2*D*2, 79, 32, 14, vtmp=8, maxper=3)
    else: kv_pf(k, 67)
    phase_exit(k, drain=False)

def phase_C(k):
    k.label('role_S')
    k('s_mov_b32 s70, s67')
    k('s_lshr_b32 s66, s70, 3')
    k('s_and_b32 s67, s70, 7')
    k('s_lshl_b32 s69, s66, 3')
    k('s_add_u32 s71, s69, s68')
    k(f's_lshl_b32 s{S_ABASE}, s71, 13')
    k(f's_lshl_b32 s{S_BBASE}, s70, 13')
    k('s_lshl_b32 s75, s68, 2')
    k('s_lshl_b32 s76, s67, 3')
    k('s_lshl_b32 s77, s66, 21')
    k('s_lshl_b32 s72, s70, 3')
    k('s_add_u32 s72, s72, s68')
    k(f's_add_u32 s72, s72, {FL["P"]}')
    args_ready(k)
    ws_srd(k, SRD_A, 'H'); ws_srd(k, SRD_B, 'T'); ws_srd(k, SRD_O, 'P'); ws_srd(k, SRD_X, 'ST')
    g1 = Gemm('ss', Opnd('frag', 8, SRD_A, S_ABASE, rbtot=128, aux=LD()), Opnd('frag', 8, SRD_B, S_BBASE, rbtot=128, aux=LD()), 1, 4, 18, C.NS['ss'], rot=R('ss'), win=Wn('ss'))
    def epi_s(k, g):
        k(f's_mov_b32 s78, {f32(CSC)}')
        k(f's_mov_b32 s79, 0x3f803f80')
        VM = (g.VX + 3) // 4 * 4
        k(f's_lshl_b32 s{S_T0}, s75, 6')
        k(f's_add_u32 s{S_T0}, s{S_T0}, s76')
        k(f's_lshl_b32 s{S_T1}, s{S_WB}, 1')
        k(f's_add_u32 s{S_T0}, s{S_T0}, s{S_T1}')
        k(f's_lshl_b32 s{S_OBASE}, s{S_T0}, 10')
        k(f's_add_u32 s{S_OBASE}, s{S_OBASE}, s77')
        k(f'v_lshlrev_b32 v1, 4, v{VL}')
        for j in range(4): k(f'v_mov_b32 v{VM+8+j}, s79')
        k(f'v_mov_b32 v{VM+20}, s78\nv_mov_b32 v{VM+21}, s78')
        t = g.VF
        for b in range(2):
            regs = [acc(g, a, b) + r for a in range(8) for r in range(4)]
            m = VM + b; m2 = VM + 4 + b
            k(f'v_max3_f32 v{m}, v{regs[0]}, v{regs[1]}, v{regs[2]}')
            k(f'v_max3_f32 v{m2}, v{regs[3]}, v{regs[4]}, v{regs[5]}')
            i = 6; tog = 0
            while i < 32:
                d = m if tog == 0 else m2
                k(f'v_max3_f32 v{d}, v{d}, v{regs[i]}, v{regs[i+1]}')
                i += 2; tog ^= 1
            k(f'v_max_f32 v{m}, v{m}, v{m2}')
        for sw in ('v_permlane32_swap_b32', 'v_permlane16_swap_b32'):
            k(f'v_mov_b32 v{VM+4}, v{VM}\nv_mov_b32 v{VM+5}, v{VM+1}')
            k('s_nop 0')
            k(f'{sw} v{VM}, v{VM+4}')
            k(f'{sw} v{VM+1}, v{VM+5}')
            k('s_nop 0')
            k(f'v_max_f32 v{VM}, v{VM}, v{VM+4}\nv_max_f32 v{VM+1}, v{VM+1}, v{VM+5}')
        k(f'v_mul_f32 v{VM}, s78, v{VM}\nv_mul_f32 v{VM+1}, s78, v{VM+1}')
        VON, VL0, VC2 = VM + 8, VM + 12, VM + 20
        pend = []
        for ap in range(4):
            for b in range(2):
                regs = [acc(g, 2*ap+h, b) + r for h in range(2) for r in range(4)]
                if C.SPK:
                    sel = 'op_sel:[0,0,0] op_sel_hi:[1,1,0]' if b == 0 else 'op_sel:[0,0,1] op_sel_hi:[1,1,1]'
                    for r in regs[::2]: k(f'v_pk_fma_f32 {vr(r,2)}, {vr(r,2)}, {vr(VC2,2)}, {vr(VM,2)} {sel} neg_lo:[0,0,1] neg_hi:[0,0,1]')
                else:
                    for r in regs: k(f'v_fma_f32 v{r}, v{r}, s78, -v{VM+b}')
                for x in pend: k(x)
                for r in regs: k(f'v_exp_f32 v{r}, v{r}')
                k(f's_add_u32 s{S_T0}, s{S_OBASE}, {ap*64*1024}')
                for j in range(4): k(f'v_cvt_pk_bf16_f32 v{t+j}, v{regs[2*j]}, v{regs[2*j+1]}')
                k(f'buffer_store_dwordx4 {vr(t,4)}, v1, {sr(SRD_O,4)}, s{S_T0} offen offset:{b*1024}{ST}')
                pend = [f'v_mfma_f32_16x16x32_bf16 {vr(VL0+4*b,4)}, {vr(VON,4)}, {vr(t,4)}, ' + ('0' if ap == 0 else vr(VL0+4*b,4))]
                t += 4
        k('s_nop 0')
        for x in pend: k(x)
        k(f's_lshl_b32 s{S_T0}, s70, 2')
        k(f's_add_u32 s{S_T0}, s{S_T0}, s{S_WB}')
        k(f's_lshl_b32 s{S_T0}, s{S_T0}, 3')
        k(f's_add_u32 s{S_T0}, s{S_T0}, s68')
        k(f's_lshl_b32 s{S_T0}, s{S_T0}, 8')
        k(f'v_mov_b32 v{VM+2}, v{VL0}')
        k('s_nop 1')
        k(f'v_mov_b32 v{VM+3}, v{VL0+4}')
        k('s_mov_b64 exec, 0xffff')
        k(f'buffer_store_dwordx4 {vr(VM,4)}, v1, {sr(SRD_X,4)}, s{S_T0} offen{ST}')
        k('s_mov_b64 exec, -1')
        g.vmax = VM + 22
    gemm_role(k, g1, epi_s, s_flag=72, depA=dep((71, 4, FL['H'], 4)), depB=dep((70, 9, FL['T'], 9)))
    k.label('role_V')
    k('s_mov_b32 s66, s67')
    k('s_mov_b32 s67, s68')
    k(f's_lshl_b32 s{S_ABASE}, s66, 13')
    k(f's_mul_i32 s{S_BBASE}, s67, {9*1024}')
    k('s_lshl_b32 s75, s66, 2')
    k('s_mul_i32 s76, s67, 9')
    k('s_lshr_b32 s72, s66, 3')
    k('s_lshl_b32 s72, s72, 3')
    k('s_add_u32 s72, s72, s67')
    k('s_lshl_b32 s72, s72, 3')
    k('s_and_b32 s73, s66, 7')
    k('s_add_u32 s72, s72, s73')
    k(f's_add_u32 s72, s72, {FL["V"]}')
    args_ready(k)
    ws_srd(k, SRD_A, 'H'); ws_srd(k, SRD_B, 'WVO'); ws_srd(k, SRD_O, 'VT')
    g2 = Gemm('vv', Opnd('frag', 8, SRD_A, S_ABASE, rbtot=128, aux=LD()), Opnd('frag', 9, SRD_B, S_BBASE, rbtot=72, aux=LD()), 4, 1, 18, C.NS['vv'], rot=R('vv'), win=Wn('ss'))
    def v_tail(k):
        k('s_lshr_b32 s79, s66, 3')
        k('s_lshl_b32 s79, s79, 1')
        k('s_sub_u32 s79, s66, s79')
        k('s_lshl_b32 s79, s79, 3')
        k('s_add_u32 s79, s79, s67')
        k('s_lshl_b32 s79, s79, 2')
        k(f's_add_u32 s79, s79, s{S_WAVE}')
        k('s_sub_u32 s79, s79, 4')
        k('s_cmp_ge_u32 s73, 6')
        k('s_cselect_b32 s79, 400, s79')
        prefetch_flat(k, P_WQC, D*D*2, 79, 384, 14, vtmp=8)
        prefetch_flat(k, P_WOC, D*D*2, 79, 384, 14, vtmp=8)
        return 2
    gemm_role(k, g2, epi_frag16(72, 75, 76), s_flag=72, depA=dep((66, 4, FL['H'], 4)), depB=dep((67, 9, FL['WVO'], 18)), tail=(v_tail if C.WVOPF == 0 else None))

E_VAT, E_VX, E_VZ = 16, 196, 232
def e_at_loads(k):
    ws_srd(k, SRD_B, 'AT')
    k(f's_sub_u32 s71, s{S_WAVE}, 4')
    k(f's_mul_i32 s72, s71, {9*10}')
    k('s_mul_i32 s73, s66, 5')
    k('s_add_u32 s72, s72, s73')
    k('s_lshl_b32 s72, s72, 10')
    for i in range(9):
        k('s_add_u32 s73, s72, 4096')
        for mb in range(5):
            k(f'buffer_load_dwordx4 {vr(E_VAT+20*i+4*mb,4)}, v1, {sr(SRD_B,4)}, s{72 if mb < 4 else 73} offen offset:{(mb%4)*1024}{LD()}')
        if i < 8: k('s_add_u32 s72, s72, 10240')

def e_preload_hook(k):
    if not C.PERSIST: return
    k(f'v_lshlrev_b32 v8, 7, v{VL}')
    k('s_lshr_b32 s66, s64, 2')
    k(f's_mul_i32 s85, s66, {C.NAT}')
    k(f's_add_u32 s85, s85, {FL["AT"]}')
    k('s_lshl_b32 s85, s85, 7')
    k(f's_mov_b64 exec, {hex((1 << C.NAT) - 1)}')
    k(f'buffer_load_dword v9, v8, {sr(SRD_F,4)}, s85 offen sc1')
    k('s_waitcnt vmcnt(0)')
    k('v_cmp_ne_u32 vcc, 1, v9')
    k('s_mov_b64 exec, -1')
    k('s_cmp_eq_u64 vcc, 0')
    k('s_cbranch_scc1 pe_early')

def phase_D(k):
    k.label('role_PV')
    k('s_lshr_b32 s66, s67, 3')
    k('s_and_b32 s67, s67, 7')
    k(f's_mul_i32 s{S_ABASE}, s66, {32*72*1024}')
    k('s_mul_i32 s69, s68, 6144')
    k(f's_add_u32 s{S_ABASE}, s{S_ABASE}, s69')
    k(f's_lshl_b32 s{S_BBASE}, s66, 21')
    k('s_lshl_b32 s69, s67, 13')
    k(f's_add_u32 s{S_BBASE}, s{S_BBASE}, s69')
    k('s_lshl_b32 s70, s66, 3')
    k('s_add_u32 s70, s70, s67')
    k('s_mul_i32 s75, s68, 3')
    k('s_lshl_b32 s76, s70, 3')
    k('s_mul_i32 s72, s70, 12')
    k('s_add_u32 s72, s72, s68')
    k(f's_add_u32 s72, s72, {FL["X1"]}')
    k('s_lshl_b32 s71, s68, 1')
    div_const(k, 71, 71, 3, 24)
    k('s_min_u32 s71, s71, 6')
    k('s_lshl_b32 s73, s66, 3')
    k('s_add_u32 s71, s71, s73')
    args_ready(k)
    ws_srd(k, SRD_A, 'VT'); ws_srd(k, SRD_B, 'P'); ws_srd(k, SRD_O, 'X1')
    g1 = Gemm('pv', Opnd('frag', 6, SRD_A, S_ABASE, rbtot=72, aux=LD()), Opnd('frag', 8, SRD_B, S_BBASE, rbtot=64, aux=LD()), 1, 4, 16, C.NS['pv'], lds0=8192, rot=R('pv'), win=Wn('pv'))
    def depB_pv(k):
        dep((70, 8, FL['P'], 8))(k)
        ws_srd(k, SRD_X, 'ST')
        k(f's_lshl_b32 s{S_T1}, s{S_W2}, 12')
        k(f's_mov_b32 m0, s{S_T1}')
        k(f's_lshl_b32 s{S_T0}, s70, 13')
        k(f's_add_u32 s{S_T0}, s{S_T0}, s{S_T1}')
        for i in range(4): k(f'buffer_load_dwordx4 v1, {sr(SRD_X,4)}, s{S_T0} offen offset:{i*1024}{LD()} lds')
    def pv_consumer(k, g):
        ma, nb = 6, 2
        VF, VX = g.VF, g.VX
        VGT, VXR, VXF, VS, VR, VMX, VRF, VLS, VSA, VE, VBP = VX, VX+24, VX+48, VX+72, VX+76, VX+78, VX+80, VX+82, VX+84, VX+85, VX+87
        def side_loads():
            ws_srd(k, SRD_Y, 'GATE')
            k(f'v_lshrrev_b32 v1, 4, v{VL}\nv_lshlrev_b32 v1, 5, v1')
            k(f's_mul_i32 s{S_T0}, s66, 4608')
            k(f's_mul_i32 s{S_T1}, s68, 384')
            k(f's_add_u32 s{S_T0}, s{S_T0}, s{S_T1}')
            for ap in range(3):
                for h in range(2):
                    k(f'buffer_load_dwordx4 {vr(VGT+8*ap+4*h,4)}, v1, {sr(SRD_Y,4)}, s{S_T0} offen offset:{ap*128+16*h}{LD()}')
        def x_loads():
            make_srd(k, SRD_Y, P_X, NR*D*2)
            quad_voff(k, 1, 2304)
            k('s_lshl_b32 s79, s70, 2')
            k(f's_add_u32 s79, s79, s{S_WB}')
            k(f's_mul_i32 s{S_T0}, s79, {32*2304}')
            k(f's_mul_i32 s{S_T1}, s68, 192')
            k(f's_add_u32 s{S_T0}, s{S_T0}, s{S_T1}')
            k(f's_add_u32 s{S_T1}, s{S_T0}, {16*2304}')
            for ap in range(3):
                for b in range(2):
                    k(f'buffer_load_dwordx4 {vr(VXR+(ap*2+b)*4,4)}, v1, {sr(SRD_Y,4)}, s{S_T0 if b == 0 else S_T1} offen offset:{ap*64}')
        if not C.XLATE: x_loads()
        if not C.PERSIST: side_loads()
        k(f'v_and_b32 v{VSA}, 15, v{VL}\nv_lshlrev_b32 v{VSA}, 4, v{VSA}')
        k(f's_lshl_b32 s{S_T0}, s{S_WB}, 11')
        k(f'v_add_u32 v{VSA}, s{S_T0}, v{VSA}')
        k('s_mov_b32 s77, 0')
        if g.rot is not None: k('s_lshl_b32 s73, s74, 7')
        else: k('s_mov_b32 s73, 0')
        WM = ((g.win or 16)//2)*256 - 1
        aA = cons_addr_setup(k, g, g.A, ma, S_WA, VL, VA, VT)
        aB = cons_addr_setup(k, g, g.B, nb, S_WB, VL, VA + len(aA), VT)
        addrs = aA + aB
        for i in range(ma*nb*4): k(f'v_mov_b32 v{VACC+i}, 0')
        q2f_addr(k, VBP)
        k(f'v_mov_b32 v{VMX}, {f32(-3.0e38)}\nv_mov_b32 v{VMX+1}, {f32(-3.0e38)}')
        k(f'v_mov_b32 v{VRF}, {f32(-3.0e38)}\nv_mov_b32 v{VRF+1}, {f32(-3.0e38)}')
        k(f'v_mov_b32 v{VLS}, 0\nv_mov_b32 v{VLS+1}, 0')
        k(f's_mov_b32 s78, {f32(-64.0)}')
        k(f'v_mov_b32 v{VE}, {L_CNT}')
        k(f'ds_write_b32 v{VE}, v{VLS}')
        k('s_waitcnt lgkmcnt(0)')
        setsz = (ma + nb) * 4
        def fa(st, a): return VF + st*setsz + 4*a
        def fb(st, b): return VF + st*setsz + 4*ma + 4*b
        def reads(s, st):
            return cons_reads(g, g.B, nb, aB, s, fb(st, 0)) + cons_reads(g, g.A, ma, aA, s, fa(st, 0))
        def mf(st):
            return [f'v_mfma_f32_16x16x32_bf16 {vr(acc(g,a,b),4)}, {vr(fa(st,a),4)}, {vr(fb(st,b),4)}, {vr(acc(g,a,b),4)}'
                    for a in range(ma) for b in range(nb)]
        def muls(i):
            a, b = divmod(i, nb)
            c = acc(g, a, b)
            if C.PKMUL == 2: return ['s_nop 0']
            if C.PKMUL:
                sel = 'op_sel:[0,0] op_sel_hi:[1,0]' if b == 0 else 'op_sel:[0,1] op_sel_hi:[1,1]'
                return [f'v_pk_mul_f32 {vr(c+r,2)}, {vr(c+r,2)}, {vr(VR,2)} {sel}' for r in (0, 2)]
            return [f'v_mul_f32 v{c+r}, v{VR+b}, v{c+r}' for r in range(4)]
        def upd():
            o = []
            for b in range(2): o.append(f'v_max_f32 v{VMX+b}, v{VMX+b}, v{VS+b}')
            for b in range(2): o.append(f'v_add_f32 v{VE+b}, s78, v{VMX+b}')
            for b in range(2): o.append(f'v_max_f32 v{VE+b}, v{VE+b}, v{VS+b}')
            for b in range(2): o.append(f'v_sub_f32 v{VR+b}, v{VRF+b}, v{VE+b}')
            for b in range(2): o.append(f'v_exp_f32 v{VR+b}, v{VR+b}')
            for b in range(2): o.append(f'v_mov_b32 v{VRF+b}, v{VE+b}')
            for b in range(2): o.append(f'v_fma_f32 v{VLS+b}, v{VLS+b}, v{VR+b}, v{VS+2+b}')
            return o
        srd_ = [f's_add_u32 s{S_T0}, s77, s73', f's_and_b32 s{S_T0}, s{S_T0}, {WM}', f's_andn2_b32 s{S_T1}, s77, {WM}', f's_add_u32 s{S_T0}, s{S_T0}, s{S_T1}', f'v_add_u32 v{VE}, s{S_T0}, v{VSA}', f'ds_read_b128 {vr(VS,4)}, v{VE}', 's_add_u32 s77, s77, 256']
        adv = [f's_add_u32 s{S_SLOT}, s{S_SLOT}, {g.stage}',
               f's_cmp_eq_u32 s{S_SLOT}, {g.NS*g.stage}',
               f's_cselect_b32 s{S_DELTA}, {-(g.NS-1)*g.stage & 0xffffffff}, s{S_T3}',
               f's_cselect_b32 s{S_SLOT}, 0, s{S_SLOT}'] + [f'v_add_u32 v{a}, s{S_DELTA}, v{a}' for a in addrs]
        k(f's_mov_b32 s{S_SLOT}, 0')
        k(f's_mov_b32 s{S_CNT}, 8')
        k(f's_mov_b32 s{S_T3}, {g.stage}')
        k('s_barrier')
        stamp(k, 0); cstamp(k, 4)
        for x in srd_: k(x)
        for r in reads(0, 0): k(r)
        k('s_waitcnt lgkmcnt(8)')
        for x in upd(): k(x)
        k('s_waitcnt lgkmcnt(0)')
        lp = k.newlabel('pv_mm'); le = k.newlabel('pv_last')
        k.label(lp)
        M = mf(0); fill = reads(1, 1) + adv
        for x in muls(0): k(x)
        for i in range(12):
            if i + 1 < 12:
                for x in muls(i+1): k(x)
            else:
                k('s_nop 1')
            k(M[i])
            if fill: k(fill.pop(0))
        for f in fill: k(f)
        k('s_waitcnt lgkmcnt(0)')
        k('s_barrier')
        interleave(k, mf(1), reads(0, 0) + srd_ + [f's_sub_u32 s{S_CNT}, s{S_CNT}, 1'])
        k('s_waitcnt lgkmcnt(0)')
        interleave(k, mf(0), reads(1, 1) + adv)
        k('s_waitcnt lgkmcnt(0)')
        k(f's_cmp_eq_u32 s{S_CNT}, 0')
        k(f's_cbranch_scc1 {le}')
        k('s_barrier')
        interleave(k, mf(1), reads(0, 0) + upd(), per=2)
        if C.PERSIST:
            k(f's_cmp_eq_u32 s{S_CNT}, 4')
            k('s_cbranch_scc1 pv_g1')
            k(f's_cmp_eq_u32 s{S_CNT}, 2')
            k('s_cbranch_scc1 pv_g2')
            k.label('pv_gback')
        k('s_waitcnt lgkmcnt(0)')
        k(f's_branch {lp}')
        if C.PERSIST:
            k.label('pv_g1')
            k(f'v_lshlrev_b32 v1, 7, v{VL}')
            k(f's_mov_b32 s{S_T0}, {FL["GATE"]*128}')
            k('s_mov_b64 exec, 0x3ffff')
            k(f'buffer_load_dword v{VGT}, v1, {sr(SRD_F,4)}, s{S_T0} offen sc1')
            k('s_mov_b64 exec, -1')
            if C.XLATE: x_loads()
            k('s_branch pv_gback')
            k.label('pv_g2')
            k('s_mov_b64 exec, 0x3ffff')
            k('s_waitcnt vmcnt(0)')
            k(f'v_cmp_ne_u32 vcc, 1, v{VGT}')
            k('s_mov_b64 exec, -1')
            k('s_cmp_eq_u64 vcc, 0')
            k('s_cbranch_scc1 pv_g3')
            k(f's_mov_b32 s85, {FL["GATE"]}')
            poll(k, 85, 18, vt=VGT)
            k(f's_mov_b32 s{S_CNT}, 2')
            k.label('pv_g3')
            side_loads()
            k('s_branch pv_gback')
        k.label(le)
        k('s_waitcnt vmcnt(0)')
        bp = [f'ds_bpermute_b32 v{VXF+j}, v{VBP}, v{VXR+j}' for j in range(24)]
        interleave(k, mf(1), bp + [f'v_rcp_f32 v{VLS}, v{VLS}', f'v_rcp_f32 v{VLS+1}, v{VLS+1}'], per=2)
        g.VGT, g.VXF, g.VLS, g.VE = VGT, VXF, VLS, VE
        g.vmax = VBP + 1
    def epi_pv(k, g):
        k(f's_lshl_b32 s{S_T0}, s75, 7')
        k(f's_add_u32 s{S_T0}, s{S_T0}, s76')
        k(f's_lshl_b32 s{S_T1}, s{S_WB}, 1')
        k(f's_add_u32 s{S_T0}, s{S_T0}, s{S_T1}')
        k(f's_lshl_b32 s{S_OBASE}, s{S_T0}, 10')
        k(f'v_lshlrev_b32 v1, 4, v{VL}')
        k('s_waitcnt lgkmcnt(0)')
        T = g.VE
        t = g.VF
        for ap in range(3):
            for b in range(2):
                xr = g.VXF + (ap*2+b)*4
                regs = [acc(g, 2*ap+h, b) + r for h in range(2) for r in range(4)]
                for e in range(8):
                    k(f'v_mul_f32 v{regs[e]}, v{g.VLS+b}, v{regs[e]}')
                    if e % 2 == 0: k(f'v_lshlrev_b32 v{T}, 16, v{xr+e//2}')
                    else: k(f'v_and_b32 v{T}, 0xffff0000, v{xr+e//2}')
                    k(f'v_fma_f32 v{regs[e]}, v{regs[e]}, v{g.VGT+8*ap+e}, v{T}')
                for j in range(4): k(f'v_cvt_pk_bf16_f32 v{t+j}, v{regs[2*j]}, v{regs[2*j+1]}')
                k(f's_add_u32 s{S_T0}, s{S_OBASE}, {ap*128*1024}')
                k(f'buffer_store_dwordx4 {vr(t,4)}, v1, {sr(SRD_O,4)}, s{S_T0} offen offset:{b*1024}{ST}')
                t += 4
    gemm_role(k, g1, epi_pv, s_flag=72, custom_consumer=pv_consumer, depA=dep((71, 8, FL['V'], 16, C.VM[0][1])), midA=[(st, dep((71, 8, FL['V'], 16, m))) for st, m in C.VM[1:]], depB=depB_pv, end_hookA=e_preload_hook, end_hookB=e_preload_hook, lds_sig=True)
    k.label('role_AT')
    NAT = C.NAT
    k(f's_mul_i32 s{S_ABASE}, s68, {(1152//NAT)*2304}')
    k(f's_mul_i32 s{S_BBASE}, s67, 5120')
    k(f's_mul_i32 s75, s68, {36//NAT}')
    k('s_mul_i32 s76, s67, 5')
    k(f's_mul_i32 s72, s67, {NAT}')
    k('s_add_u32 s72, s72, s68')
    k(f's_add_u32 s72, s72, {FL["AT"]}')
    k('s_mul_i32 s74, s67, 9')
    make_srd(k, SRD_A, P_WQC, D*D*2); ws_srd(k, SRD_B, 'KVC'); ws_srd(k, SRD_O, 'AT')
    if NAT == 18:
        g2 = Gemm('at', Opnd('row', 4, SRD_A, S_ABASE, stride=2304, perm=True), Opnd('frag', 5, SRD_B, S_BBASE, rbtot=10, aux=LD()), 2, 2, 18, C.NS['at'], rot=R('at'), nb_ov=(3, 2))
    else:
        g2 = Gemm('at', Opnd('row', 8, SRD_A, S_ABASE, stride=2304, perm=True), Opnd('frag', 5, SRD_B, S_BBASE, rbtot=10, aux=LD()), 4, 1, 18, 4, rot=R('at'))
    gemm_role(k, g2, epi_frag16(10, 75, 76), s_flag=72, depB=dep((67, 12, FL['KVC'], 6)))
    k.label('role_BT')
    k(f's_mul_i32 s{S_ABASE}, s67, 5120')
    k(f's_add_u32 s{S_ABASE}, s{S_ABASE}, {36*10*1024}')
    k(f's_lshl_b32 s{S_BBASE}, s68, 8')
    k('s_mul_i32 s75, s67, 3')
    k('s_lshl_b32 s76, s68, 3')
    k('s_mul_i32 s72, s67, 9')
    k('s_add_u32 s72, s72, s68')
    k(f's_add_u32 s72, s72, {FL["BT"]}')
    k('s_mul_i32 s74, s67, 9')
    args_ready(k)
    ws_srd(k, SRD_A, 'KVC'); make_srd(k, SRD_B, P_WOC, D*D*2); ws_srd(k, SRD_O, 'BT')
    g3 = Gemm('bt', Opnd('frag', 5, SRD_A, S_ABASE, rbtot=10, aux=LD()), Opnd('col', 8, SRD_B, S_BBASE, stride=2304), 1, 4, 18, C.NS['bt'], rot=R('bt'))
    gemm_role(k, g3, epi_frag16(72, 75, 76, rowperm=True), s_flag=72, depA=dep((67, 12, FL['KVC'] + 6, 6)))

def phase_E(k):
    if C.PERSIST:
        k.label('pe_early')
        k('s_mov_b32 s81, 1')
        k('s_add_u32 s80, s80, 1')
        k('s_branch pe_at')
    k.label('role_E')
    L_CS, L_Z, L_RS = 0, 2048, 26624
    VAT, VX_, VZ = E_VAT, E_VX, E_VZ
    k('s_lshr_b32 s66, s64, 2')
    k(f'v_lshlrev_b32 v1, 4, v{VL}')
    k('s_mov_b32 s81, 0')
    args_ready(k)
    k(f's_cmp_lt_u32 s{S_WAVE}, 4')
    k('s_cbranch_scc1 pe_common')
    dep((66, C.NAT, FL['AT'], C.NAT))(k)
    if C.PERSIST:
        k.label('pe_at')
        e_at_loads(k)
        k('s_cmp_eq_u32 s81, 0')
        k('s_cbranch_scc1 pe_common')
        k('s_barrier')
        stamp_begin(k)
    k.label('pe_common')
    k('s_bfe_u32 s67, s64, 0x10001')
    k('s_and_b32 s68, s64, 1')
    k('s_lshl_b32 s68, s68, 5')
    k('s_add_u32 s68, s68, s65')
    k('s_lshl_b32 s69, s66, 6')
    k('s_add_u32 s68, s68, s69')
    k('s_lshr_b32 s70, s68, 3')
    ws_srd(k, SRD_A, 'X1'); make_srd(k, SRD_O, P_OUT, NR*D*2)
    k(f's_cmp_lt_u32 s{S_WAVE}, 4')
    k('s_cbranch_scc1 pe_l')
    VQQ = 252
    k(f's_sub_u32 s71, s{S_WAVE}, 4')
    k(f's_mul_i32 s74, s71, {9*128}')
    k('s_add_u32 s74, s74, s68')
    k('s_lshl_b32 s74, s74, 10')
    def load_x():
        for i in range(9):
            k(f'buffer_load_dwordx4 {vr(VX_+4*i,4)}, v1, {sr(SRD_A,4)}, s74 offen{LD()}')
            if i < 8: k(f's_add_u32 s74, s74, {128*1024}')
    k('s_mov_b32 s77, 0x3f803f80')
    for j in range(4): k(f'v_mov_b32 v{12+j}, s77')
    k(f's_mul_i32 s{S_T1}, s71, 6144')
    k(f'v_add_u32 v6, s{S_T1}, v1')
    k(f'v_lshlrev_b32 v8, 7, v{VL}')
    k('s_mul_i32 s85, s70, 12')
    k(f's_add_u32 s85, s85, {FL["X1"]}')
    k('s_lshl_b32 s76, s85, 7')
    k('s_mov_b64 exec, 0xfff')
    k(f'buffer_load_dword v9, v8, {sr(SRD_F,4)}, s76 offen sc1')
    k('s_mov_b64 exec, -1')
    k(f's_mul_i32 s{S_T0}, s71, 320')
    k(f'v_add_u32 v10, s{S_T0}, v{VL}')
    k('s_and_b32 s75, s71, 1')
    k('s_mul_i32 s75, s75, 9216')
    k('v_add_u32 v11, s75, v1')
    for i in range(9):
        k(f's_waitcnt vmcnt({5*(8-i) + 1})')
        for mb in range(5):
            c = '0' if i == 0 else vr(VZ+4*mb, 4)
            k(f'v_mfma_f32_16x16x32_bf16 {vr(VZ+4*mb,4)}, {vr(VAT+20*i+4*mb,4)}, v[12:15], {c}')
    k('s_mov_b64 exec, 0xfff')
    k('s_waitcnt vmcnt(0)')
    k('v_cmp_ne_u32 vcc, 1, v9')
    k('s_mov_b64 exec, -1')
    k('s_cmp_eq_u64 vcc, 0')
    k('s_cselect_b32 s81, 1, 0')
    k('s_cbranch_scc0 pe_x_late')
    k.label('pe_x_go')
    stamp(k, 1)
    load_x()
    k('s_cmp_eq_u32 s81, 0')
    k('s_cbranch_scc1 pe_x_done')
    k.label('pe_x_late')
    k('s_nop 2')
    k('s_mov_b32 exec_lo, 0x00010001\ns_mov_b32 exec_hi, 0x00010001')
    for mb in range(5): k(f'ds_write_b128 v10, {vr(VZ+4*mb,4)} offset:{L_CS + mb*64}')
    k('s_mov_b32 exec_lo, 0x80008000\ns_mov_b32 exec_hi, 0x80008000')
    stamp(k, 0)
    k('s_waitcnt lgkmcnt(0)')
    k('s_barrier')
    for i in range(9):
        for j in range(4): k(f'v_mov_b32 v{VAT+20*i+16+j}, s77')
    k('s_mov_b64 exec, -1')
    k('s_cmp_eq_u32 s81, 1')
    k('s_cbranch_scc1 pe_x_done')
    poll(k, 85, 12, vt=2)
    k('s_branch pe_x_go')
    k.label('pe_x_done')
    k('s_lshr_b32 s75, s71, 1')
    k('s_cmp_lg_u32 s75, s67')
    k(f's_cselect_b32 s75, {LDS_MAX}, 0')
    k('v_add_u32 v11, s75, v11')
    for i in range(9):
        k(f's_waitcnt vmcnt({8-i})')
        for mb in range(5):
            c = '0' if i == 0 else vr(VZ+4*mb, 4)
            k(f'v_mfma_f32_16x16x32_bf16 {vr(VZ+4*mb,4)}, {vr(VAT+20*i+4*mb,4)}, {vr(VX_+4*i,4)}, {c}')
            if mb == 0: k(f'ds_write_b128 v11, {vr(VX_+4*i,4)} offset:{L_RS + i*1024}')
        c = '0' if i == 0 else vr(VQQ, 4)
        k(f'v_mfma_f32_16x16x32_bf16 {vr(VQQ,4)}, {vr(VX_+4*i,4)}, {vr(VX_+4*i,4)}, {c}')
    k('s_nop 2')
    for mb in range(5): k(f'ds_write_b128 v6, {vr(VZ+4*mb,4)} offset:{L_Z + mb*1024}')
    k('s_nop 0')
    k(f'ds_write_b128 v6, {vr(VQQ,4)} offset:{L_Z + 5*1024}')
    stamp(k, 2)
    k('s_waitcnt lgkmcnt(0)')
    k('s_barrier')
    phase_exit(k)
    k.label('pe_l')
    NPW = 5
    VB, VZ2, VCS, VP, VRS = 16, 136, 196, 216, 228
    VZ3 = 216
    VO, VQ = 156, 16
    ws_srd(k, SRD_X, 'BT')
    k(f's_mul_i32 s75, s{S_WAVE}, 5')
    k('s_min_u32 s75, s75, 13')
    k(f's_cmp_eq_u32 s{S_WAVE}, 2')
    k('s_cselect_b32 s75, 9, s75')
    k('s_mul_i32 s73, s67, 18')
    k('s_add_u32 s73, s73, s75')
    k('s_mul_i32 s76, s66, 216')
    k('s_lshl_b32 s77, s73, 1')
    k('s_add_u32 s76, s76, s77')
    k('s_lshl_b32 s76, s76, 10')
    k(f'v_lshlrev_b32 v252, 7, v{VL}')
    k('s_mul_i32 s85, s66, 9')
    k(f's_add_u32 s85, s85, {FL["BT"]}')
    k('s_lshl_b32 s77, s85, 7')
    k('s_mov_b64 exec, 0x1ff')
    k(f'buffer_load_dword v253, v252, {sr(SRD_F,4)}, s77 offen sc1')
    k('s_mov_b64 exec, -1')
    f2q_addr(k, 5)
    quad_voff(k, 6, 2304)
    k(f'v_and_b32 v14, 48, v{VL}')
    k(f's_lshl_b32 s{S_T0}, s75, 10')
    k(f'v_add_u32 v15, s{S_T0}, v1')
    k(f'v_and_b32 v7, 15, v{VL}\nv_lshlrev_b32 v8, 4, v7\nv_lshrrev_b32 v9, 2, v7\nv_lshl_add_u32 v9, v9, 8, v8\nv_and_b32 v7, 3, v7\nv_lshl_add_u32 v9, v7, 2, v9')
    k(f's_mul_i32 s{S_T2}, s68, {16*2304}')
    k(f's_lshl_b32 s{S_T1}, s73, 6')
    k(f's_add_u32 s{S_T2}, s{S_T2}, s{S_T1}')
    k('v_mov_b32 v4, 0xff800000')
    k('s_mov_b64 exec, 0x1ff')
    k('s_waitcnt vmcnt(0)')
    k('v_cmp_ne_u32 vcc, 1, v253')
    k('s_mov_b64 exec, -1')
    k('s_barrier')
    k('s_cmp_eq_u64 vcc, 0')
    k('s_cbranch_scc1 pe_bt_go')
    poll(k, 85, 9)
    k.label('pe_bt_go')
    stamp(k, 0)
    zr = lambda w, mb: (VZ2 + 20*w + 4*mb) if w < 3 else (VZ3 + 4*mb)
    def sum4(base, dst, pre=(), va=1, ws=6144, ms=1024, mid=()):
        for mb in range(5):
            for w in range(4):
                k(f'ds_read_b128 {vr(zr(w,mb),4)}, v{va} offset:{base + w*ws + mb*ms}')
        for x in pre: k(x)
        for mb in range(5):
            k(f's_waitcnt lgkmcnt({min(15, 4*(4-mb))})')
            for j in (0, 2):
                k(f'v_pk_add_f32 {vr(zr(0,mb)+j,2)}, {vr(zr(0,mb)+j,2)}, {vr(zr(1,mb)+j,2)}')
                k(f'v_pk_add_f32 {vr(zr(2,mb)+j,2)}, {vr(zr(2,mb)+j,2)}, {vr(zr(3,mb)+j,2)}')
                k(f'v_pk_add_f32 {vr(dst+4*mb+j,2)}, {vr(zr(0,mb)+j,2)}, {vr(zr(2,mb)+j,2)}')
                while mid:
                    x = mid.pop(0); k(x)
                    if x.startswith('buffer'): break
        for x in mid: k(x)
    btl = []
    for kb in range(3):
        for g0 in (0, 4, 8):
            btl.append(f's_add_u32 s77, s76, {kb*72*1024 + g0*1024}')
            for i in range(4 if g0 < 8 else 2):
                btl.append(f'buffer_load_dwordx4 {vr(VB+(kb*10+g0+i)*4,4)}, v1, {sr(SRD_X,4)}, s77 offen offset:{i*1024}{LD()}')
    nb1 = C.BT1
    cut = [i for i, x in enumerate(btl) if x.startswith('buffer')][nb1] if nb1 < 30 else len(btl)
    if btl[cut-1].startswith('s_add'): cut -= 1
    late = btl[cut:]
    sum4(L_CS, VCS, pre=btl[:cut], va=14, ws=320, ms=64)
    k(f'v_cmp_le_u32 vcc, 48, v{VL}')
    k('s_mov_b32 s78, 0x3f803f80')
    stamp(k, 1)
    k('s_barrier')
    stamp(k, 3)
    for w in range(4):
        k(f'ds_read_b32 v{248+w}, v8 offset:{L_Z + w*6144 + 4*1024 + 48*16 + 12}')
        k(f'ds_read_b32 v{252+w}, v9 offset:{L_Z + w*6144 + 5*1024}')
    st = ['v_add_f32 v248, v248, v249', 'v_add_f32 v250, v250, v251', 'v_add_f32 v252, v252, v253', 'v_add_f32 v254, v254, v255',
          'v_add_f32 v248, v248, v250', 'v_add_f32 v252, v252, v254',
          f'v_mul_f32 v10, {f32(-1.0/D)}, v248', f'v_mul_f32 v12, {f32(1.0/D)}, v252', 'v_fma_f32 v12, -v10, v10, v12', 'v_max_f32 v12, 0, v12',
          f'v_add_f32 v12, {f32(1e-5)}, v12', 'v_rsq_f32 v12, v12', 'v_mov_b32 v11, v10', f'v_mul_f32 v12, {f32(CSC)}, v12']
    sum4(L_Z, VZ2, pre=['s_waitcnt lgkmcnt(15)'] + st, mid=late)
    for i in range(NPW): k(f'ds_read_b128 {vr(VRS+4*i,4)}, v15 offset:{L_RS + i*1024}')
    for i in range(0, 20, 2): k(f'v_pk_fma_f32 {vr(VZ2+i,2)}, {vr(VCS+i,2)}, v[10:11], {vr(VZ2+i,2)}')
    for r in (17, 18, 19): k(f'v_cndmask_b32 v{VZ2+r}, v{VZ2+r}, v4, vcc')
    k(f'v_max3_f32 v2, v{VZ2}, v{VZ2+1}, v{VZ2+2}')
    k(f'v_max3_f32 v3, v{VZ2+3}, v{VZ2+4}, v{VZ2+5}')
    for i in range(6, 20, 2): k(f'v_max3_f32 v{2 + (i//2)%2}, v{2 + (i//2)%2}, v{VZ2+i}, v{VZ2+i+1}')
    k('v_max_f32 v2, v2, v3')
    for sw in ('v_permlane32_swap_b32', 'v_permlane16_swap_b32'):
        k(f'v_mov_b32 v3, v2\ns_nop 1\n{sw} v2, v3\ns_nop 0\nv_max_f32 v2, v2, v3')
    k('v_mul_f32 v2, v2, v12')
    for i in range(20): k(f'v_fma_f32 v{VZ2+i}, v{VZ2+i}, v12, -v2')
    for i in range(20): k(f'v_exp_f32 v{VZ2+i}, v{VZ2+i}')
    k(f'v_mov_b32 v{VP+10}, 0\nv_mov_b32 v{VP+11}, 0')
    for i in range(10): k(f'v_cvt_pk_bf16_f32 v{VP+i}, v{VZ2+2*i}, v{VZ2+2*i+1}')
    for j in range(4): k(f'v_mov_b32 v{248+j}, s78')
    mmx = []
    for kb in range(3):
        mmx.append(f's_waitcnt vmcnt({10*(2-kb)})')
        mmx.append(f'v_mfma_f32_16x16x32_bf16 v[252:255], v[248:251], {vr(VP+4*kb,4)}, ' + ('0' if kb == 0 else 'v[252:255]'))
        for jb in range(10):
            c = '0' if kb == 0 else vr(VO+4*jb, 4)
            mmx.append(f'v_mfma_f32_16x16x32_bf16 {vr(VO+4*jb,4)}, {vr(VB+(kb*10+jb)*4,4)}, {vr(VP+4*kb,4)}, {c}')
    k('s_nop 0')
    un = lambda e: (VZ2 + e) if e < 20 else (VCS + e - 20)
    sm = ['s_waitcnt lgkmcnt(0)']
    for j in range(4*NPW):
        sm += [f'v_lshlrev_b32 v{un(2*j)}, 16, v{VRS+j}', f'v_and_b32 v{un(2*j+1)}, 0xffff0000, v{VRS+j}']
    interleave(k, mmx, sm, per=2, start=1)
    k('v_rcp_f32 v2, v252')
    k('s_nop 0')
    k('v_mov_b32 v3, v2')
    for i in range(NPW):
        for e in range(0, 8, 2):
            k(f'v_pk_fma_f32 {vr(VO+8*i+e,2)}, {vr(VO+8*i+e,2)}, v[2:3], {vr(un(8*i+e),2)}')
        for j in range(4): k(f'v_cvt_pk_bf16_f32 v{VRS+4*i+j}, v{VO+8*i+2*j}, v{VO+8*i+2*j+1}')
        for j in range(4): k(f'ds_bpermute_b32 v{VQ+4*i+j}, v5, v{VRS+4*i+j}')
        if i >= 1:
            k('s_waitcnt lgkmcnt(4)')
            k(f'buffer_store_dwordx4 {vr(VQ+4*(i-1),4)}, v6, {sr(SRD_O,4)}, s{S_T2} offen offset:{64*(i-1)}{C.OUTST}')
    k('s_waitcnt lgkmcnt(0)')
    k(f'buffer_store_dwordx4 {vr(VQ+4*(NPW-1),4)}, v6, {sr(SRD_O,4)}, s{S_T2} offen offset:{64*(NPW-1)}{C.OUTST}')
    stamp(k, 4)
    phase_exit(k)
    VMAX[0] = 256

def task(role, p1=0, p2=0, rot=0):
    assert p1 < 32 and p2 < 32 and rot < 4
    return (role, p1, p2, rot)

def make_schedule():
    sch = [[] for _ in range(256)]
    W = lambda x, loc: x + 8*loc
    late = []
    for x in range(8):
        for loc in range(18):
            u = x*18 + loc; jg, r = divmod(u, 48); tn, jl = divmod(r, 3)
            sch[W(x, loc)].append(task('T', tn, jg*3 + jl, (2*jl + tn) % 3))
    def wvo(w):
        blk, ins = divmod(w, 9); bj, bi = divmod(blk, 3); tj = bj*3 + ins//3; ti = bi*3 + ins % 3
        return task('wvo', tj, ti, (ti + tj) % 3)
    for x in range(8):
        for loc in range(23, 32): sch[W(x, loc)].append(wvo(x*9 + loc - 23))
    sg = []
    gj = 13
    for x in (1, 3, 5):
        for loc in (20, 21, 22):
            i = (x >> 1)*3 + loc - 20
            if C.GFIRST:
                sch[W(x, loc)].append(task('gate', 9 + i, 1)); sch[W(x, loc)].append(wvo(72 + i))
                continue
            sch[W(x, loc)].append(wvo(72 + i))
            if gj < 18 and (loc < 22 ):
                sch[W(x, loc)].append(task('gate', gj, 1)); gj += 1; sg.append(W(x, loc))
    g3 = []
    for i, loc in enumerate((20, 21, 22)):
        sch[W(7, loc)].append(task('gate', 3*i, 3)); g3.append(W(7, loc))
    v = 0
    kv = []
    for x in range(8):
        for loc in (range(18, 22) if x % 2 == 0 else (18, 19)):
            sch[W(x, loc)].append(task('kvc', v & 1, v >> 1)); v += 1; kv.append(W(x, loc))
    for i, x in enumerate((0, 2, 4, 6)):
        sch[W(x, 22)].append(task('pf', 24 + i))
        if not C.GFIRST: sch[W(x, 22)].append(task('gate', 9 + i, 1))
    if C.GFIRST: sg = [W(x, 17) for x in (1, 3, 5, 0, 2)]
    for x in range(8):
        for loc in range(16):
            sch[W(x, loc)].append(task('S', (x >> 2)*8 + (x & 1)*4 + (loc >> 2), ((x >> 1) & 1)*4 + (loc & 3)))
    key = lambda w: (w & 7, w)
    lateV = sorted(sg + kv + g3, key=key)
    assert len(lateV) == 32
    lt = [(nt, jh*4 + j) for bb in range(2) for jh in range(2) for nt in (6 + 8*bb, 7 + 8*bb) for j in range(4)]
    for w, (nt, jt) in zip(lateV, lt): sch[w].append(task('V', nt, jt))
    rest = sorted([W(x, loc) for x in range(8) for loc in range(16, 32) if W(x, loc) not in lateV], key=key)
    assert len(rest) == 96
    nts = [0, 1, 2, 3, 4, 5, 8, 9, 10, 11, 12, 13]
    et = [(nts[g*3 + i], jh*4 + j) for g in range(4) for jh in range(2) for i in range(3) for j in range(4)]
    for w, (nt, jt) in zip(rest, et): sch[w].append(task('V', nt, jt))
    aux = [task('AT', i & 1, i >> 1) for i in range(2*C.NAT)] + [task('BT', i & 1, i >> 1) for i in range(18)]
    if C.BTLATE:
        bts = aux[2*C.NAT:]; aux = aux[:2*C.NAT]
    nidle = 64 - len(aux)
    idle = (sg + kv)[:nidle] if not C.GFIRST else (kv + g3 + sg)[:nidle]
    if C.BTLATE:
        cand = [w for w in idle if w in kv]
        for w, t in zip(cand, bts): sch[w].append(t)
    cnt = [sum(1 for w in idle if w & 7 == x) for x in range(8)]
    nxt = [31]*8
    auxw = []
    for ai in range(0, len(aux), 2):
        x = min(range(8), key=lambda x: cnt[x])
        for j in range(2):
            w = W(x, nxt[x]); nxt[x] -= 1; cnt[x] += 1
            assert nxt[x] >= 22
            sch[w].append(aux[ai + j]); auxw.append(w)
    tiles = {x: [task('PV', (x >> 2)*8 + (x & 1)*4 + (i & 3), ((x >> 1) & 1)*6 + (i >> 2)) for i in range(24)] for x in range(8)}
    left = []
    for x in range(8):
        for loc in range(32):
            w = W(x, loc)
            if w in idle or w in auxw: continue
            if tiles[x]: sch[w].append(tiles[x].pop(0))
            else: left.append(w)
    rem = [t for x in range(8) for t in tiles[x]]
    assert len(rem) == len(left), (len(rem), len(left))
    for w, t in zip(left, rem): sch[w].append(t)
    return sch

def make_schedule2():
    sch = [[] for _ in range(256)]
    W = lambda x, loc: x + 8*loc
    key = lambda w: (w & 7, w)
    for x in range(8):
        for loc in range(18):
            u = x*18 + loc; jg, r = divmod(u, 48); tn, jl = divmod(r, 3)
            sch[W(x, loc)].append(task('T', tn, jg*3 + jl, (2*jl + tn) % 3))
        for loc in range(16):
            sch[W(x, loc)].append(task('S', (x >> 2)*8 + (x & 1)*4 + (loc >> 2), ((x >> 1) & 1)*4 + (loc & 3)))
    def wvo(w):
        blk, ins = divmod(w, 9); bj, bi = divmod(blk, 3); tj = bj*3 + ins//3; ti = bi*3 + ins % 3
        return task('wvo', tj, ti, (ti + tj) % 3)
    kv = []
    for x in range(8):
        for i, loc in enumerate((29, 30, 31)):
            v = x*3 + i
            sch[W(x, loc)].append(task('kvc', v & 1, v >> 1)); kv.append(W(x, loc))
    pool = {x: [W(x, loc) for loc in ((20, 21, 22, 18, 19) if x & 1 else range(18, 23))] for x in range(8)}
    sp = []
    for x in range(8):
        ws_ = [W(x, loc) for loc in range(23, 29)] + [pool[x].pop(0) for _ in range(3)]
        order = [1, 2, 3, 5, 6, 7, 0, 4, 8]
        for w, o in zip(ws_, order): sch[w].append(wvo(x*9 + o))
        if x & 1: sp += ws_[6:]
    rem = [w for x in range(8) for w in pool[x]]
    rem.sort(key=key)
    for i in range(9): sch[rem[i]].append(wvo(72 + i))
    gl = rem[9:]
    for i in range(3): sch[gl[i]].append(task('pf', i))
    gj = 0
    for w in gl[:6]: sch[w].append(task('gate', gj, 1)); gj += 1
    for w in sp: sch[w].append(task('gate', gj, 1)); gj += 1
    assert gj == 18
    aux = [task('AT', i & 1, i >> 1) for i in range(18)] + [task('BT', i & 1, i >> 1) for i in range(18)]
    auxw = []
    for x in range(8): auxw += [W(x, 31), W(x, 30)]
    for x in range(8): auxw += [W(x, 29), W(x, 28)]
    auxw += [W(0, 27), W(0, 26), W(4, 27), W(4, 26)]
    for w, t in zip(auxw, aux): sch[w].append(t)
    lt = [(nt, jh*4 + j) for bb in range(2) for jh in range(2) for nt in (6 + 8*bb, 7 + 8*bb) for j in range(4)]
    l5 = [(5, 0), (5, 1), (13, 0), (13, 1)]
    for w, (nt, jt) in zip(sorted(auxw[:32], key=key), lt): sch[w].append(task('V', nt, jt))
    for w, (nt, jt) in zip(auxw[32:], l5): sch[w].append(task('V', nt, jt))
    rest = sorted([W(x, loc) for x in range(8) for loc in range(16, 32) if W(x, loc) not in auxw], key=key)
    nts = [0, 1, 2, 3, 4, 5, 8, 9, 10, 11, 12, 13]
    et = [(nts[g*3 + i], jh*4 + j) for g in range(4) for jh in range(2) for i in range(3) for j in range(4)]
    et = [t for t in et if t not in l5]
    assert len(rest) == len(et) == 92
    for w, (nt, jt) in zip(rest, et): sch[w].append(task('V', nt, jt))
    skip = set(sp + gl + rem[:9])
    tiles = {x: [task('PV', (x >> 2)*8 + (x & 1)*4 + (i & 3), ((x >> 1) & 1)*6 + (i >> 2)) for i in range(24)] for x in range(8)}
    left = []
    for x in range(8):
        for loc in range(32):
            w = W(x, loc)
            if w in skip or w in auxw: continue
            if tiles[x]: sch[w].append(tiles[x].pop(0))
            else: left.append(w)
    remt = [t for x in range(8) for t in tiles[x]]
    assert len(remt) == len(left), (len(remt), len(left))
    for w, t in zip(left, remt): sch[w].append(t)
    return sch

def build(fn, stampf):
    C.PERSIST, C.STAMP = True, stampf
    k = K()
    k.L.append('.p2align 8'); k.label('code_start')
    for i, f in enumerate((phase_A, phase_B, phase_C, phase_D, phase_E)):
        PH[0] = i
        f(k)
        if i == 0:
            k.label('quit0'); k('s_endpgm')
    sch = make_schedule() if C.SCHED == 1 else make_schedule2()
    k.L.append('.p2align 6')
    k.L.append('.type task_table,@object')
    k.label('task_table')
    for w in range(256):
        val = 0
        assert len(sch[w]) <= 4
        for i, (r, p1, p2, rot) in enumerate(sch[w]):
            val |= (ROLES.index(r) | p1 << 4 | p2 << 9 | rot << 14) << (16*i)
        k.L.append(f'    .quad {hex(val)}')
    k.L.append('.size task_table, 2048')
    k.label('code_end')
    k('s_endpgm')
    json.dump([[t[0] for t in l] for l in sch], open('sched.json', 'w'))
    ref = open('standalone__pixart__diffusion.s.ref').read()
    hdr = ref.split('; Override launch geometry')[0]
    n = 'standalone__pixart__diffusion_kernel'
    hdr += (f'; @launch kernel={n} ' if C.LIST else '; @launch ') + f'grid=(256,1,1) block=(512,1,1) lds={LDS_MAX}\n'
    desc = '.section .rodata,"a"\n.p2align 6\n' + kernel_desc(n, 256, 102)
    hdr += '.amdgcn_target "amdgcn-amd-amdhsa--gfx950"\n.text\n'
    open(fn, 'w').write(hdr + k.text() + desc)

C.ROT = set('wqk tt wvo at bt'.split()); C.WIN = dict(wqk=3, tt=3); C.APRE = False; C.HPRE = True
if __name__ == '__main__':
    build('p4.s', False)
    build('p4_stamped.s', True)
    json.dump(WS, open('ws.json', 'w'))
```

```python
import sys, math, struct, json
from lib import *

D = 1152; NR = 2048
P_X, P_C, P_Y, P_WQKV, P_WO, P_WQC, P_WKVC, P_WOC, P_WMOD, P_OUT, P_DBG, P_WS = range(40, 64, 2)
def al(x): return (x + 4095) // 4096 * 4096
FL = {}
_f = 0
for nm, n in [('MOD', 72), ('GATE', 18), ('H', 64), ('WQK', 108), ('T', 144), ('WVO', 81), ('KVC', 24), ('P', 128), ('V', 128),
              ('X1', 192), ('AT', 36), ('BT', 18)]:
    FL[nm] = _f; _f += n
NFLAG = 1024
assert _f <= NFLAG
WS = {}
_o = 0
for nm, sz in [('FLAG', NFLAG*128), ('MODP', 2*2*2304*4), ('GATE', 2*1152*4), ('ST', 64*8*256), ('H', NR*D*2), ('WQK', D*D*2), ('WVO', D*D*2),
               ('T', NR*D*2), ('VT', NR*D*2), ('P', 2*1024*1024*2), ('KVC', 72*10*1024), ('AT', 36*10*1024), ('BT', 2*3*72*1024),
               ('X1', NR*D*2)]:
    WS[nm] = (_o, sz); _o = al(_o + sz)
WS['X1'] = WS['T']
ST = ' sc1'
CSC = (D ** -0.5) * math.log2(math.e)
def f32(x): return '0x%08x' % struct.unpack('<I', struct.pack('<f', x))[0]
LDS_MAX = 163840
L_CNT = LDS_MAX - 64

class Cfg:
    ROT = set('wqk tt wvo kvc ss vv pv at bt'.split())
    APRE = False
    SKIP = set()
    WQK_NS = 5
    WQK_NPRE = 3
    STAMP = False
    DBGT = False
    TLBW = 0
    HPRE = True
    PPOLL = False
    WIN = {}
    NAT = 9
    GN0 = 18
    GPLAN = 0
    MPF = False
    HBAL = 2
    PFG = True
    CT = 0
    LAG = 2
    XF = 6
    BT0 = 0
    ECHK = 1
    ESLP = 4
    EPRE = False
    PRIO = None
    NPRE = 3
    ALIGN = False
    XLATE = False
    HPF2 = 'k'
    HPF2N = 11
    GFIRST = True
    WBL2 = False
    SPK = True
    BT1 = 20
    RSG = True
    PSLEEP = 3
    BTLATE = False
    PKMUL = 0
    SCHED = 1
    VM = [(0, 0x3f3f), (12, 0xc0c0)]
    KVPF = 0
    TPF = False
    WVOPF = True
    NS = dict(wqk=4, tt=3, wvo=4, ss=3, vv=3, pv=3, at=4, bt=4, kvc=4)
    LDX = ' sc1'
    OUTST = ' sc1'
    LIST = True
    PERSIST = False
C = Cfg()
STAMP_OFF = 128 << 20
PH = [0]
NAMES = ['pa_kernel', 'pb_kernel', 'pc_kernel', 'pd_kernel', 'pe_kernel']
VL = 0; VT = 2; VA = 4; VACC = 16
S_ROT = 74
def R(name): return S_ROT if name in C.ROT else None
def mod_const(k, s, m, maxv):
    div_const(k, S_T0, s, m, maxv)
    k(f's_mul_i32 s{S_T0}, s{S_T0}, {m}')
    k(f's_sub_u32 s{s}, s{s}, s{S_T0}')
def LD(): return C.LDX if C.PERSIST else ''
def Wn(name): return C.WIN.get(name, 0)
def rot_from(k, name, s_sum, n_full, maxv):
    w = Wn(name)
    if w:
        mod_const(k, s_sum, w, maxv)
    else:
        mod_const(k, s_sum, n_full, maxv)
        k(f's_mul_i32 s{s_sum}, s{s_sum}, {18 // n_full}')


def stamp(k, i):
    if C.STAMP: k(f's_memrealtime s[{86+2*i}:{87+2*i}]')
def cstamp(k, i):
    if C.STAMP: k(f's_memtime s[{86+2*i}:{87+2*i}]')
def stamp_begin(k):
    if C.STAMP: k('s_memrealtime s[98:99]\n' + '\n'.join(f's_mov_b32 s{86+2*i}, 0' for i in range(6)))

def phase_exit(k, drain=True):
    p = PH[0]
    k('s_mov_b64 exec, -1')
    if C.STAMP:
        if drain: k('s_waitcnt vmcnt(0)')
        k('s_memrealtime s[100:101]')
        k(f's_lshl_b32 s{S_T0}, s2, 8')
        k(f's_lshl_b32 s{S_T1}, s{S_WAVE}, 5')
        k(f's_add_u32 s{S_T0}, s{S_T0}, s{S_T1}')
        k(f's_add_u32 s{S_T0}, s{S_T0}, {STAMP_OFF}')
        k(f's_lshl_b32 s{S_T1}, s80, 16')
        k(f's_add_u32 s{S_T0}, s{S_T0}, s{S_T1}')
        k('s_waitcnt lgkmcnt(0)')
        k(f'v_mov_b32 v1, s{S_T0}\nv_mov_b32 v4, s98\nv_mov_b32 v5, s100')
        for i in range(6): k(f'v_mov_b32 v{6+i}, s{86+2*i}')
        k('s_mov_b64 exec, 1')
        k('global_store_dwordx4 v1, v[4:7], s[62:63]')
        k('global_store_dwordx4 v1, v[8:11], s[62:63] offset:16')
        k('s_mov_b64 exec, -1')
        k('s_nop 1')
    if p < 4:
        k('s_branch next_task')
    else:
        k('s_endpgm')

def ws_srd(k, srd, nm):
    make_srd(k, srd, P_WS, WS[nm][1], WS[nm][0])

def kernel_entry(k):
    name = 'standalone__pixart__diffusion_kernel'
    kernel_header(k, name)
    k('s_getpc_b64 s[76:77]')
    k('s_load_dwordx16 s[40:55], s[0:1], 0')
    k('s_load_dwordx8 s[56:63], s[0:1], 64')
    k('s_lshr_b32 s65, s2, 3')
    k('s_lshl_b32 s78, s65, 11')
    k('v_lshrrev_b32 v1, 6, v0')
    k('v_and_b32 v2, 1, v0')
    k('v_lshl_add_u32 v2, v1, 1, v2')
    k('v_lshl_add_u32 v2, v2, 7, s78')
    k('v_min_u32 v2, code_end - code_start - 8, v2')
    k('s_mov_b64 exec, 3')
    k('global_load_dword v15, v2, s[76:77]')
    k('s_mov_b64 exec, -1')
    stamp_begin(k)
    k('s_cmp_ge_u32 s2, 256')
    k('s_cbranch_scc1 quit0')
    k('v_and_b32 v0, 63, v0')
    k(f'v_readfirstlane_b32 s{S_WAVE}, v1')
    k('s_and_b32 s64, s2, 7')
    k('s_mov_b32 s80, 0')
    k('s_mov_b32 s81, 0')
    if C.PRIO:
        k(f's_cmp_ge_u32 s{S_WAVE}, 4')
        k('s_cbranch_scc1 prio_l' if C.PRIO == 'c' else 's_cbranch_scc0 prio_l')
        k('s_setprio 2')
        k.label('prio_l')
def args_ready(k):
    if PH[0] == 0:
        k('s_waitcnt lgkmcnt(0)')
        l = k.newlabel('tt_pc')
        k('s_getpc_b64 s[0:1]')
        k.label(l)
        k('s_lshl_b32 s85, s2, 3')
        k(f's_add_u32 s85, s85, task_table - {l}')
        k('s_load_dwordx2 s[0:1], s[0:1], s85')
        ws_srd(k, SRD_F, 'FLAG')
ROLES = ['E', 'T', 'wvo', 'kvc', 'gate', 'S', 'V', 'PV', 'AT', 'BT', 'pf']
def code_touch(k, nl=2):
    l = k.newlabel('ct')
    k(f's_getpc_b64 s[{S_T0}:{S_T0+1}]' if S_T0 % 2 == 0 else 's_getpc_b64 s[78:79]')
    k.label(l)
    k(f's_sub_u32 s78, s78, {l} - code_start')
    k('s_subb_u32 s79, s79, 0')
    k(f's_lshl_b32 s{S_T0}, s65, 11')
    if nl == 2:
        k(f's_lshl_b32 s{S_T1}, s{S_WAVE}, 8')
        k(f's_add_u32 s{S_T0}, s{S_T0}, s{S_T1}')
    k(f'v_lshl_add_u32 v13, v{VL}, 7, s{S_T0}')
    k('v_min_u32 v13, code_end - code_start - 4, v13')
    k(f's_mov_b64 exec, {hex((1 << nl) - 1)}')
    k('global_load_dword v11, v13, s[78:79]')
    k('s_mov_b64 exec, -1')

def dispatcher(k):
    k.label('next_task')
    k('s_waitcnt lgkmcnt(0)')
    k('s_add_u32 s80, s80, 1')
    stamp_begin(k)
    if C.CT >= 1: code_touch(k)
    k('s_and_b32 s66, s0, 15')
    k('s_bfe_u32 s67, s0, 0x50004')
    k('s_bfe_u32 s68, s0, 0x50009')
    k('s_bfe_u32 s74, s0, 0x2000e')
    k('s_lshr_b64 s[0:1], s[0:1], 16')
    for i in (1, 5, 7, 6, 2, 3, 4, 8, 9, 10):
        k(f's_cmp_eq_u32 s66, {i}')
        k(f's_cbranch_scc1 role_{ROLES[i]}')
    k('s_branch role_E')

def div_const(k, dst, src, d, maxv):
    for sh in range(4, 20):
        m = -(-(1 << sh) // d)
        if all((v*m) >> sh == v // d for v in range(maxv+1)):
            k(f's_mul_i32 s{dst}, s{src}, {m}')
            k(f's_lshr_b32 s{dst}, s{dst}, {sh}')
            return
    raise Exception('no magic')

SPIN = 0x20000
def poll(k, s_line, n, vt=252, force=False, mask=None):
    if not (C.PERSIST or force): return
    lp, done = k.newlabel('poll'), k.newlabel('polled')
    k(f'v_min_u32 v{vt}, {n-1}, v{VL}')
    k(f'v_lshlrev_b32 v{vt}, 7, v{vt}')
    k(f's_lshl_b32 s{S_T0}, s{s_line}, 7')
    k(f's_mov_b32 s{S_CNT}, {SPIN}')
    if mask: k(f's_mov_b64 exec, {hex(mask)}')
    elif n < 64: k(f's_mov_b64 exec, {hex((1 << n) - 1)}' if n <= 31 else f's_mov_b32 exec_hi, {hex((1 << (n-32)) - 1)}')
    if C.PPOLL:
        ld = lambda r: k(f'buffer_load_dword v{r}, v{vt}, {sr(SRD_F,4)}, s{S_T0} offen sc1')
        ld(vt+1)
        k('s_waitcnt vmcnt(0)')
        k(f'v_cmp_ne_u32 vcc, 1, v{vt+1}')
        k('s_nop 0')
        k('s_cmp_eq_u64 vcc, 0')
        k(f's_cbranch_scc1 {done}')
        ld(vt+1); k('s_sleep 2'); ld(vt+2); k('s_sleep 2')
        k.label(lp)
        for r in (0, 1, 2):
            ld(vt+1+(r+2) % 3)
            k('s_waitcnt vmcnt(2)')
            k(f'v_cmp_ne_u32 vcc, 1, v{vt+1+r}')
            k('s_sleep 1')
            k('s_cmp_eq_u64 vcc, 0')
            k(f's_cbranch_scc1 {done}')
        k(f's_sub_u32 s{S_CNT}, s{S_CNT}, 1')
        k(f's_cmp_lg_u32 s{S_CNT}, 0')
        k(f's_cbranch_scc1 {lp}')
    else:
        k.label(lp)
        k(f'buffer_load_dword v{vt+1}, v{vt}, {sr(SRD_F,4)}, s{S_T0} offen sc1')
        k(f's_sub_u32 s{S_CNT}, s{S_CNT}, 1')
        k('s_waitcnt vmcnt(0)')
        k(f'v_cmp_ne_u32 vcc, 1, v{vt+1}')
        k(f's_cmp_eq_u32 s{S_CNT}, 0')
        k(f's_cbranch_scc1 {done}')
        k('s_cmp_eq_u64 vcc, 0')
        k(f's_cbranch_scc1 {done}')
        k(f's_sleep {C.PSLEEP}')
        k(f's_branch {lp}')
    k.label(done)
    k('s_mov_b64 exec, -1')

def wait_init(k, vt=8):
    lp, done = k.newlabel('wi'), k.newlabel('wid')
    k(f'v_min_u32 v{vt}, 11, v{VL}')
    k(f'v_and_b32 v{vt+1}, 1, v{vt}')
    k(f'v_lshlrev_b32 v{vt+1}, 7, v{vt+1}')
    k(f'v_lshl_add_u32 v{vt}, v{vt}, 2, v{vt+1}')
    k(f's_mov_b32 s{S_CNT}, {SPIN}')
    k.label(lp)
    k(f'global_load_dword v{vt+1}, v{vt}, s[{P_DBG}:{P_DBG+1}] sc1')
    k(f's_sub_u32 s{S_CNT}, s{S_CNT}, 1')
    k('s_waitcnt vmcnt(0)')
    k(f'v_cmp_ne_u32 vcc, 1, v{vt+1}')
    k(f's_cmp_eq_u32 s{S_CNT}, 0')
    k(f's_cbranch_scc1 {done}')
    k('s_cmp_eq_u64 vcc, 0')
    k(f's_cbranch_scc1 {done}')
    k('s_sleep 3')
    k(f's_branch {lp}')
    k.label(done)

def set_flag(k, s_line, vt=8):
    k(f's_lshl_b32 s{S_T0}, s{s_line}, 7')
    k(f'v_mov_b32 v{vt}, 0\nv_mov_b32 v{vt+1}, 1')
    k('s_mov_b64 exec, 1')
    k(f'buffer_store_dword v{vt+1}, v{vt}, {sr(SRD_F,4)}, s{S_T0} offen sc1')
    k('s_mov_b64 exec, -1')

def signal(k, s_line, nwaves, vt=8):
    if not C.PERSIST: return
    skip = k.newlabel('sig')
    k('s_mov_b64 exec, -1')
    k(f's_lshl_b32 s{S_T0}, s{s_line}, 7')
    k(f'v_mov_b32 v{vt}, 0\nv_mov_b32 v{vt+1}, 1')
    k(f's_cmp_lg_u32 s{S_WAVE}, 0')
    k('s_waitcnt vmcnt(0)')
    k('s_barrier')
    k(f's_cbranch_scc1 {skip}')
    if C.WBL2: k('buffer_wbl2 sc1\ns_waitcnt vmcnt(0)')
    k('s_mov_b64 exec, 1')
    k(f'buffer_store_dword v{vt+1}, v{vt}, {sr(SRD_F,4)}, s{S_T0} offen sc1')
    k('s_mov_b64 exec, -1')
    k.label(skip)

def signal_lds(k, s_line, nwaves, vt=8):
    skip = k.newlabel('sig')
    k('s_mov_b64 exec, -1')
    k(f's_lshl_b32 s{S_T0}, s{s_line}, 7')
    k(f'v_mov_b32 v{vt}, 0\nv_mov_b32 v{vt+1}, 1\nv_mov_b32 v{vt+2}, {L_CNT}')
    k('s_mov_b64 exec, 1')
    k('s_waitcnt vmcnt(0)')
    k(f'ds_add_rtn_u32 v{vt+3}, v{vt+2}, v{vt+1}')
    k('s_waitcnt lgkmcnt(0)')
    k(f'v_cmp_eq_u32 vcc, {nwaves-1}, v{vt+3}')
    k('s_nop 0')
    k('s_cmp_eq_u64 vcc, 0')
    k(f's_cbranch_scc1 {skip}')
    if C.WBL2: k('buffer_wbl2 sc1\ns_waitcnt vmcnt(0)')
    k(f'buffer_store_dword v{vt+1}, v{vt}, {sr(SRD_F,4)}, s{S_T0} offen sc1')
    k.label(skip)
    k('s_mov_b64 exec, -1')
    stamp(k, 3)
    k('s_barrier')

def q2f_addr(k, v):
    k(f'v_and_b32 v{v}, 15, v{VL}\nv_lshlrev_b32 v{v}, 4, v{v}\nv_lshrrev_b32 v{VT}, 4, v{VL}\nv_lshl_add_u32 v{v}, v{VT}, 2, v{v}')
def f2q_addr(k, v):
    k(f'v_and_b32 v{v}, 3, v{VL}\nv_lshlrev_b32 v{v}, 6, v{v}\nv_and_b32 v{VT}, 0x3c, v{VL}\nv_add_u32 v{v}, v{v}, v{VT}')
def quad_voff(k, v, stride):
    k(f'v_lshrrev_b32 v{v}, 2, v{VL}\ns_mov_b32 s{S_T0}, {stride}\nv_mul_u32_u24 v{v}, s{S_T0}, v{v}\nv_and_b32 v{VT}, 3, v{VL}\nv_lshl_add_u32 v{v}, v{VT}, 4, v{v}')

def prefetch_flat(k, ptr, nbytes, s_worker, nworkers, vdst, maxper=99, srd=SRD_Y, vtmp=1):
    make_srd(k, srd, ptr, nbytes)
    k(f'v_lshlrev_b32 v{vtmp}, 7, v{VL}')
    per = min(maxper, -(-(-(-nbytes // 8192)) // nworkers))
    k(f's_lshl_b32 s{S_T0}, s{s_worker}, 13')
    for i in range(per):
        k(f'buffer_load_dword v{vdst}, v{vtmp}, {sr(srd,4)}, s{S_T0} offen')
        if i + 1 < per: k(f's_add_u32 s{S_T0}, s{S_T0}, {nworkers*8192}')
def prefetch_cols(k, srd, lines_per_row, colbyte, s_worker, nworkers, vdst, v0, v1, stride=6912, limit=None, per_override=None):
    tot = 1152 * lines_per_row
    per = -(-(tot // 64) // nworkers)
    if per_override: per = per_override
    sh = {18: 20, 36: 21}[lines_per_row]
    assert all((n*58255) >> sh == n // lines_per_row for n in range(per*nworkers*64)) and per*nworkers*64*58255 < 2**32
    k(f's_lshl_b32 s{S_T1}, s{s_worker}, 6')
    lend = k.newlabel('pfc')
    for i in range(per):
        if limit and i == per - 1:
            k(f's_cmp_ge_u32 s{S_T1}, {limit*64}')
            k(f's_cbranch_scc1 {lend}')
        k(f'v_add_u32 v{v0}, s{S_T1}, v{VL}')
        k(f's_mov_b32 s{S_T0}, 58255')
        k(f'v_mul_lo_u32 v{v1}, v{v0}, s{S_T0}')
        k(f'v_lshrrev_b32 v{v1}, {sh}, v{v1}')
        k(f's_mov_b32 s{S_T0}, {stride - lines_per_row*128}')
        k(f'v_mul_u32_u24 v{v1}, s{S_T0}, v{v1}')
        k(f'v_lshl_add_u32 v{v0}, v{v0}, 7, v{v1}')
        k(f's_mov_b32 s{S_T0}, {colbyte}')
        k(f'buffer_load_dword v{vdst}, v{v0}, {sr(srd,4)}, s{S_T0} offen')
        if i + 1 < per: k(f's_add_u32 s{S_T1}, s{S_T1}, {nworkers*64}')
    k.label(lend)

VMAX = [0]
LMAX = [0]
def gemm_role(k, g, epilogue, s_flag=None, npre=2, custom_consumer=None, cons_first=None, depA=None, depB=None, end_hookA=None, end_hookB=None, exit_hook=None, midA=None, tail=None, lds_sig=False):
    ll, lb = k.newlabel(g.name + '_loader'), k.newlabel(g.name + '_loaderB')
    npre = C.NPRE
    tailA = tail
    if C.CT >= 2 and tail is None:
        def tailA(k):
            code_touch(k, 16)
            return 1
    k(f's_cmp_ge_u32 s{S_WAVE}, 4')
    k(f's_cbranch_scc1 {ll}')
    if cons_first: cons_first(k)
    k(f's_and_b32 s{S_WB}, s{S_WAVE}, {g.WB-1}')
    k(f's_lshr_b32 s{S_WA}, s{S_WAVE}, {g.WB.bit_length()-1}')
    VF = VACC + g.ma*g.nb*4
    g.VF = VF
    g.VX = VF + 2*(g.ma+g.nb)*4
    g.vmax = g.VX
    if custom_consumer: custom_consumer(k, g)
    else: consumer_body(k, g, VL, VACC, VF, VA, VT, post_bar0=lambda k: (stamp(k, 0), cstamp(k, 4)))
    stamp(k, 1); cstamp(k, 5)
    epilogue(k, g)
    stamp(k, 2)
    if lds_sig: signal_lds(k, s_flag, 4)
    elif s_flag is not None: signal(k, s_flag, 4)
    lx = k.newlabel(g.name + '_exit')
    k.label(lx)
    if exit_hook: exit_hook(k)
    phase_exit(k, drain=not C.PERSIST)
    k.label(ll)
    k(f's_and_b32 s{S_W2}, s{S_WAVE}, 1')
    k(f's_cmp_ge_u32 s{S_WAVE}, 6')
    k(f's_cbranch_scc1 {lb}')
    def wrap(dep):
        def f(k):
            if dep: dep(k)
            stamp(k, 0)
        return f
    loader_body(k, g, g.A, VL, 1, VT, npre=npre, pre_hook=wrap(depA), end_barrier=C.PERSIST, end_hook=end_hookA, mid=midA, tail_hook=tailA)
    k(f's_branch {lx}')
    k.label(lb)
    loader_body(k, g, g.B, VL, 1, VT, npre=npre, pre_hook=wrap(depB), end_barrier=C.PERSIST, end_hook=end_hookB, tail_hook=tail)
    k(f's_branch {lx}')
    VMAX[0] = max(VMAX[0], g.vmax); LMAX[0] = max(LMAX[0], g.lds_bytes)
    assert g.lds_bytes <= L_CNT

def acc(g, a, b): return VACC + (a*g.nb + b)*4

def epi_frag16(rbtot, s_kb0, s_rb0, rowperm=False, npair_max=99):
    def f(k, g):
        npair = min(npair_max, (g.ma + 1) // 2)
        k(f's_mul_i32 s{S_T0}, s{S_WA}, {g.ma//2}')
        k(f's_add_u32 s{S_T0}, s{S_T0}, s{s_kb0}')
        k(f's_mul_i32 s{S_T0}, s{S_T0}, {rbtot}')
        k(f's_mul_i32 s{S_T1}, s{S_WB}, {g.nbstep}')
        k(f's_add_u32 s{S_T0}, s{S_T0}, s{S_T1}')
        k(f's_add_u32 s{S_T0}, s{S_T0}, s{s_rb0}')
        k(f's_lshl_b32 s{S_OBASE}, s{S_T0}, 10')
        if rowperm:
            assert g.nb % 2 == 0
            k(f'v_bfe_u32 v{VT}, v{VL}, 2, 1\nv_lshlrev_b32 v1, 10, v{VT}\nv_bfe_u32 v{VT}, v{VL}, 3, 1\nv_lshl_add_u32 v1, v{VT}, 6, v1')
            k(f'v_and_b32 v{VT}, 0x33, v{VL}\nv_lshl_add_u32 v1, v{VT}, 4, v1')
        else:
            k(f'v_lshlrev_b32 v1, 4, v{VL}')
        k('s_nop 1')
        t = g.VF
        for ap in range(npair):
            for b in range(g.nb):
                c0 = acc(g, 2*ap, b)
                k(f'v_cvt_pk_bf16_f32 v{t}, v{c0}, v{c0+1}')
                k(f'v_cvt_pk_bf16_f32 v{t+1}, v{c0+2}, v{c0+3}')
                if 2*ap+1 < g.ma:
                    c1 = acc(g, 2*ap+1, b)
                    k(f'v_cvt_pk_bf16_f32 v{t+2}, v{c1}, v{c1+1}')
                    k(f'v_cvt_pk_bf16_f32 v{t+3}, v{c1+2}, v{c1+3}')
                else:
                    k(f'v_mov_b32 v{t+2}, 0\nv_mov_b32 v{t+3}, 0')
                off = (b & ~1)*1024 + (b & 1)*128 if rowperm else b*1024
                hi, lo = off // 4096 * 4096, off % 4096
                k(f's_add_u32 s{S_T0}, s{S_OBASE}, {ap*rbtot*1024 + hi}')
                k(f'buffer_store_dwordx4 {vr(t,4)}, v1, {sr(SRD_O,4)}, s{S_T0} offen offset:{lo}{ST}')
                t += 4
        g.vmax = max(g.vmax, t)
    return f

def dep(*items):
    def f(k):
        for it in items:
            (s, mul, const, n), mask = it[:4], (it[4] if len(it) > 4 else None)
            if not C.PERSIST: continue
            if s is None: k(f's_mov_b32 s85, {const}')
            else:
                k(f's_mul_i32 s85, s{s}, {mul}')
                k(f's_add_u32 s85, s85, {const}')
            poll(k, 85, n, mask=mask)
    return f

def gemv_job(k, n, tag, s_goff, s_ldsrow, finish, n0=6):
    make_srd(k, SRD_A, P_WMOD, D*6*D*2)
    make_srd(k, SRD_B, P_C, 2*D*2)
    L_SILU, L_RED = 0, 9216
    VW, VS, VAC, VU, VC = 16, 88, 124, 140, 148
    k(f's_lshl_b32 s{S_T0}, s{S_WAVE}, 10')
    k(f'v_lshl_add_u32 v3, v{VL}, 4, s{S_T0}')
    k(f'buffer_load_dwordx4 {vr(VC,4)}, v3, {sr(SRD_B,4)}, 0 offen')
    k(f's_lshl_b32 s{S_T0}, s{S_WAVE}, 3')
    k(f'v_lshrrev_b32 v4, 3, v{VL}')
    k(f'v_add_u32 v4, s{S_T0}, v4')
    k(f'v_and_b32 v5, 7, v{VL}')
    k('v_lshlrev_b32 v5, 4, v5')
    k(f's_mov_b32 s{S_T0}, 13824')
    k(f'v_mad_u32_u24 v5, v4, s{S_T0}, v5')
    def issue_w(i0, i1):
        for i in range(i0, i1):
            if i: k(f's_add_u32 s{s_goff}, s{s_goff}, {64*13824}')
            k(f'buffer_load_dwordx4 {vr(VW+4*i,4)}, v5, {sr(SRD_A,4)}, s{s_goff} offen')
    issue_w(0, n0)
    k('v_lshlrev_b32 v4, 2, v4')
    if s_ldsrow is not None: k(f'v_add_u32 v4, s{s_ldsrow}, v4')
    k(f's_waitcnt vmcnt({n0})')
    for j in range(4):
        k(f'v_lshlrev_b32 v{VC+4+2*j}, 16, v{VC+j}')
        k(f'v_and_b32 v{VC+5+2*j}, 0xffff0000, v{VC+j}')
    for j in range(8): k(f'v_mul_f32 v{VU+j}, {f32(-math.log2(math.e))}, v{VC+4+j}')
    for j in range(8): k(f'v_exp_f32 v{VU+j}, v{VU+j}')
    for j in range(8): k(f'v_add_f32 v{VU+j}, 1.0, v{VU+j}')
    for j in range(8): k(f'v_rcp_f32 v{VU+j}, v{VU+j}')
    for j in range(8): k(f'v_mul_f32 v{VC+4+j}, v{VU+j}, v{VC+4+j}')
    k('v_lshlrev_b32 v8, 1, v3')
    k('v_cmp_gt_u32 vcc, 9216, v8')
    k('s_mov_b64 exec, vcc')
    k(f'ds_write_b128 v8, {vr(VC+4,4)} offset:{L_SILU}')
    k(f'ds_write_b128 v8, {vr(VC+8,4)} offset:{L_SILU+16}')
    k('s_mov_b64 exec, -1')
    k('s_waitcnt lgkmcnt(0)')
    k('s_barrier')
    stamp(k, 0)
    for i in range(n):
        k(f'ds_read2st64_b32 {vr(VS+2*i,2)}, v4 offset0:{i} offset1:{i+18}')
    issue_w(n0, n)
    k(f'v_bfe_u32 v6, v{VL}, 1, 2\nv_lshlrev_b32 v6, 7, v6\nv_lshrrev_b32 v7, 3, v{VL}\nv_lshl_add_u32 v6, v7, 4, v6\nv_and_b32 v7, 1, v{VL}\nv_lshl_add_u32 v6, v7, 3, v6')
    k(f'v_lshrrev_b32 v7, 4, v{VL}\nv_lshlrev_b32 v7, 7, v7\nv_and_b32 v9, 7, v{VL}\nv_lshl_add_u32 v7, v9, 4, v7')
    k(f's_lshl_b32 s{S_T0}, s{S_WAVE}, 9')
    k(f'v_add_u32 v7, s{S_T0}, v7')
    k(f'v_lshlrev_b32 v9, 2, v{VL}')
    for j in range(16): k(f'v_mov_b32 v{VAC+j}, 0')
    k('s_waitcnt lgkmcnt(0)')
    for i in range(n):
        k(f's_waitcnt vmcnt({n - 1 - i})')
        for j in range(4):
            k(f'v_lshlrev_b32 v{VU+2*j}, 16, v{VW+4*i+j}')
            k(f'v_and_b32 v{VU+2*j+1}, 0xffff0000, v{VW+4*i+j}')
        for j in range(4):
            k(f'v_pk_fma_f32 {vr(VAC+4*j,2)}, {vr(VS+2*i,2)}, {vr(VU+2*j,2)}, {vr(VAC+4*j,2)} op_sel:[0,0,0] op_sel_hi:[1,0,1]')
            k(f'v_pk_fma_f32 {vr(VAC+4*j+2,2)}, {vr(VS+2*i,2)}, {vr(VU+2*j,2)}, {vr(VAC+4*j+2,2)} op_sel:[0,1,0] op_sel_hi:[1,1,1]')
    stamp(k, 1)
    k('s_nop 1')
    for j in range(8): k(f'v_permlane32_swap_b32 v{VAC+j}, v{VAC+8+j}')
    for j in range(8): k(f'v_add_f32 v{VAC+j}, v{VAC+j}, v{VAC+8+j}')
    k('s_nop 1')
    for j in range(4): k(f'v_permlane16_swap_b32 v{VAC+j}, v{VAC+4+j}')
    for j in range(4): k(f'v_add_f32 v{VAC+4+j}, v{VAC+j}, v{VAC+4+j}')
    k('s_nop 1')
    for j in range(4): k(f'v_add_f32_dpp v{VAC+j}, v{VAC+4+j}, v{VAC+4+j} row_ror:8 row_mask:0xf bank_mask:0xf')
    k(f'ds_write_b128 v7, {vr(VAC,4)} offset:{L_RED}')
    k('s_waitcnt lgkmcnt(0)')
    k('s_barrier')
    k(f's_cmp_lg_u32 s{S_WAVE}, 0')
    k(f's_cbranch_scc1 gv_nored{tag}')
    for w in range(8): k(f'ds_read_b64 {vr(VAC+2*w,2)}, v6 offset:{L_RED + 512*w}')
    k('s_waitcnt lgkmcnt(0)')
    for st in (8, 4, 2):
        for j in range(0, st, 2):
            k(f'v_pk_add_f32 {vr(VAC+j,2)}, {vr(VAC+j,2)}, {vr(VAC+st+j,2)}')
    stamp(k, 2)
    finish(k, VAC)
    stamp(k, 3)
    k.label(f'gv_nored{tag}')
    k('s_barrier')
    VMAX[0] = max(VMAX[0], 160); LMAX[0] = max(LMAX[0], 16384)

def gate_job(k, s_idx):
    k(f's_lshl_b32 s{S_G}, s{s_idx}, 7')
    k(f's_add_u32 s{S_G}, s{S_G}, 4608')
    def fin(k, VAC):
        ws_srd(k, SRD_O, 'GATE')
        k(f's_lshl_b32 s{S_T1}, s{s_idx}, 8')
        k(f's_add_u32 s{S_T2}, s{S_T1}, 4608')
        k(f'buffer_store_dword v{VAC}, v9, {sr(SRD_O,4)}, s{S_T1} offen sc1')
        k(f'buffer_store_dword v{VAC+1}, v9, {sr(SRD_O,4)}, s{S_T2} offen sc1')
        if C.PERSIST:
            wait_init(k, 12)
            k(f's_add_u32 s85, s{s_idx}, {FL["GATE"]}')
            set_flag(k, 85, 12)
    gemv_job(k, 18, 'g', S_G, None, fin, n0=C.GN0)

def phase_A(k):
    kernel_entry(k)
    k('s_cmp_ge_u32 s65, 23')
    k('s_cbranch_scc1 pa_mod')
    k('s_cmp_lt_u32 s65, 8')
    k('s_cbranch_scc1 pa_h')
    k('s_and_b32 s66, s64, 1')
    k('s_lshr_b32 s67, s64, 1')
    k('s_sub_u32 s68, 5, s66')
    k('s_mul_i32 s70, s68, 3')
    k('s_sub_u32 s69, s65, 8')
    k('s_cmp_ge_u32 s69, s70')
    k('s_cbranch_scc1 pa_spare')
    div_const(k, 71, 69, 5, 31)
    k('s_lshr_b32 s72, s69, 2')
    k('s_cmp_eq_u32 s66, 0')
    k('s_cselect_b32 s71, s71, s72')
    k('s_mul_i32 s72, s71, s68')
    k('s_sub_u32 s72, s69, s72')
    k('s_lshl_b32 s74, s71, 1')
    k('s_add_u32 s74, s74, s72')
    rot_from(k, 'wqk', 74, 6, 16)
    k('s_mul_i32 s73, s66, 5')
    k('s_add_u32 s72, s72, s73')
    k('s_mul_i32 s73, s67, 3')
    k('s_add_u32 s71, s71, s73')
    k(f's_mul_i32 s{S_ABASE}, s72, {128*6912}')
    k(f's_mul_i32 s{S_BBASE}, s71, {96*6912}')
    k(f's_add_u32 s{S_BBASE}, s{S_BBASE}, {D*2}')
    k('s_lshl_b32 s75, s72, 2')
    k('s_mul_i32 s76, s71, 6')
    k('s_mul_i32 s77, s71, 9')
    k('s_add_u32 s77, s77, s72')
    k(f's_add_u32 s78, s77, {FL["WQK"]}')
    args_ready(k)
    make_srd(k, SRD_A, P_WQKV, D*3*D*2)
    ws_srd(k, SRD_O, 'WQK')
    g = Gemm('wqk', Opnd('row', 8, SRD_A, S_ABASE, stride=6912, perm=True), Opnd('row', 6, SRD_A, S_BBASE, stride=6912, perm=True), 2, 2, 18, C.NS['wqk'], rot=R('wqk'), win=Wn('wqk'))
    def a_pre(k):
        k(f's_mul_i32 s79, s{S_WAVE}, 108')
        k('s_add_u32 s79, s79, s77')
        k('s_add_u32 s79, s79, 512')
        prefetch_cols(k, SRD_A, 36, 0, 79, 432, 12, 1, 2, limit=648, per_override=1)
    def a_end(k):
        if C.PERSIST: wait_init(k)
    gemm_role(k, g, epi_frag16(72, 75, 76), s_flag=78, npre=2, cons_first=(a_pre if C.HBAL == 2 else None), end_hookA=a_end)
    k.label('pa_mod')
    if 'mod' in C.SKIP: k('s_endpgm')
    k('s_mul_i32 s73, s64, 9')
    k('s_add_u32 s73, s73, s65')
    k('s_sub_u32 s73, s73, 23')
    k('s_cmp_ge_u32 s73, 36')
    k('s_cselect_b32 s74, 1, 0')
    k('s_mul_i32 s75, s74, 36')
    k('s_sub_u32 s75, s73, s75')
    k(f's_mul_i32 s{S_G}, s74, {576*13824}')
    k(f's_lshl_b32 s{S_T0}, s75, 7')
    k(f's_add_u32 s{S_G}, s{S_G}, s{S_T0}')
    k('s_mul_i32 s76, s74, 2304')
    args_ready(k)
    def fin(k, VAC):
        ws_srd(k, SRD_O, 'MODP')
        k('s_cmp_ge_u32 s75, 18')
        k(f's_cselect_b32 s{S_T2}, 1.0, 0')
        k('s_cmp_eq_u32 s74, 0')
        k(f's_cselect_b32 s{S_T2}, s{S_T2}, 0')
        k(f'v_add_f32 v{VAC}, s{S_T2}, v{VAC}\nv_add_f32 v{VAC+1}, s{S_T2}, v{VAC+1}')
        k(f's_mul_i32 s{S_T1}, s74, 18432')
        k(f's_lshl_b32 s{S_T0}, s75, 8')
        k(f's_add_u32 s{S_T1}, s{S_T1}, s{S_T0}')
        k(f's_add_u32 s{S_T2}, s{S_T1}, 9216')
        k(f'buffer_store_dword v{VAC}, v9, {sr(SRD_O,4)}, s{S_T1} offen sc1')
        k(f'buffer_store_dword v{VAC+1}, v9, {sr(SRD_O,4)}, s{S_T2} offen sc1')
        wait_init(k, 12)
        k(f's_add_u32 s85, s73, {FL["MOD"]}')
        set_flag(k, 85, 12)
    gemv_job(k, 9, 'm', S_G, 76, fin)
    if C.MPF:
        k('s_lshl_b32 s79, s73, 3')
        k(f's_add_u32 s79, s79, s{S_WAVE}')
        k('s_add_u32 s79, s79, 72')
        prefetch_flat(k, P_WKVC, D*2*D*2, 79, 648, 14, vtmp=8)
    phase_exit(k, drain=False)
    k.label('pa_spare')
    k('s_mul_i32 s73, s67, 3')
    k('s_add_u32 s73, s73, s65')
    k('s_sub_u32 s73, s73, 20')
    args_ready(k)
    k(f'v_lshlrev_b32 v8, 4, v{VL}')
    k('v_mov_b32 v4, 0\nv_mov_b32 v5, 0\nv_mov_b32 v6, 0\nv_mov_b32 v7, 0')
    k('s_lshl_b32 s79, s73, 3')
    k(f's_add_u32 s79, s79, s{S_WAVE}')
    k(f's_lshl_b32 s{S_T0}, s79, 10')
    k(f'buffer_store_dwordx4 v[4:7], v8, {sr(SRD_F,4)}, s{S_T0} offen sc1')
    k(f's_add_u32 s{S_T0}, s{S_T0}, {96*1024}')
    k(f'buffer_store_dwordx4 v[4:7], v8, {sr(SRD_F,4)}, s{S_T0} offen sc1')
    k('s_waitcnt vmcnt(0)')
    k('s_barrier')
    k(f's_cmp_lg_u32 s{S_WAVE}, 0')
    k('s_cbranch_scc1 pa_noinit')
    k(f's_and_b32 s{S_T0}, s73, 1')
    k(f's_lshl_b32 s{S_T0}, s{S_T0}, 7')
    k(f's_lshl_b32 s{S_T1}, s73, 2')
    k(f's_add_u32 s{S_T0}, s{S_T0}, s{S_T1}')
    k(f'v_mov_b32 v8, 1\nv_mov_b32 v9, s{S_T0}')
    k('s_mov_b64 exec, 1')
    k(f'global_store_dword v9, v8, s[{P_DBG}:{P_DBG+1}] sc1')
    k('s_mov_b64 exec, -1')
    k.label('pa_noinit')
    k('s_lshl_b32 s79, s73, 3')
    k(f's_add_u32 s79, s79, s{S_WAVE}')
    if C.HBAL == 1:
        k('s_add_u32 s78, s79, 512')
        make_srd(k, SRD_Y, P_WQKV, D*3*D*2)
        prefetch_cols(k, SRD_Y, 36, 0, 78, 96, 13, 8, 9, limit=648, per_override=2)
    k('s_lshr_b32 s78, s79, 1')
    k('s_bitcmp1_b32 s79, 0')
    k('s_cbranch_scc1 pa_noy')
    prefetch_flat(k, P_Y, 2*77*D*2, 78, 48, 14, vtmp=8)
    k.label('pa_noy')
    phase_exit(k, drain=False)
    k.label('pa_h')
    if 'h' in C.SKIP: k('s_endpgm')
    k('s_lshl_b32 s73, s64, 3')
    k('s_add_u32 s73, s73, s65')
    args_ready(k)
    def h_pf(k):
        if not C.PERSIST: return
        k('s_lshl_b32 s79, s73, 3')
        k(f's_add_u32 s79, s79, s{S_WAVE}')
        prefetch_flat(k, P_WKVC, D*2*D*2, 79, 512, 14, maxper=1, vtmp=8)
        l1 = k.newlabel('hpf')
        k('s_cmp_ge_u32 s79, 180')
        k(f's_cbranch_scc1 {l1}')
        k('s_cmp_ge_u32 s79, 136')
        k(f's_cselect_b32 s{SRD_Y}, s{P_Y}, s{P_WKVC}')
        k(f's_cselect_b32 s{SRD_Y+1}, s{P_Y+1}, s{P_WKVC+1}')
        k(f's_mov_b32 s{S_T1}, {D*2*D*2}')
        k(f's_cselect_b32 s{SRD_Y+2}, {2*77*D*2}, s{S_T1}')
        k(f's_mov_b32 s{S_T1}, {512*8192}')
        k(f's_cselect_b32 s{S_T1}, {(-136*8192) & 0xffffffff}, s{S_T1}')
        k(f's_add_u32 s{S_T0}, s{S_T0}, s{S_T1}')
        k(f'buffer_load_dword v14, v8, {sr(SRD_Y,4)}, s{S_T0} offen')
        k.label(l1)
    L_STAT, L_MOD = 0, 2048
    VN, VM, VXD = 16, 112, 208
    if C.HPRE:
        k('s_lshl_b32 s79, s73, 3')
        k(f's_add_u32 s79, s79, s{S_WAVE}')
        make_srd(k, SRD_Y, P_WQKV, D*3*D*2)
        prefetch_cols(k, SRD_Y, 36, 0, 79, 512, 13, 8, 9, limit=(512 if C.HBAL else 648))
    k(f's_cmp_ge_u32 s{S_WAVE}, 6')
    k('s_cbranch_scc1 pa_hhelp')
    make_srd(k, SRD_X, P_X, NR*D*2)
    k(f'v_lshrrev_b32 v6, 3, v{VL}\ns_mov_b32 s{S_T0}, 2304\nv_mul_u32_u24 v6, s{S_T0}, v6\nv_and_b32 v7, 7, v{VL}\nv_lshl_add_u32 v6, v7, 4, v6')
    k(f's_mul_i32 s75, s73, {32*2304}')
    k(f's_mul_i32 s76, s{S_WAVE}, 384')
    k('s_add_u32 s75, s75, s76')
    for rg in range(4):
        for sg in range(3):
            k(f'buffer_load_dwordx4 {vr(VM+(rg*3+sg)*4,4)}, v6, {sr(SRD_X,4)}, s75 offen offset:{128*sg}')
        if rg < 3: k(f's_add_u32 s75, s75, {8*2304}')
    k(f'v_lshlrev_b32 v7, 5, v7\nv_lshrrev_b32 v8, 3, v{VL}\nv_lshl_add_u32 v7, v8, 2, v7')
    k(f's_mov_b32 s77, 0x3f803f80')
    for rg in range(4):
        k(f's_waitcnt vmcnt({9 - 3*rg})')
        for j in range(12): k(f'ds_bpermute_b32 v{VXD+12*rg+j}, v7, v{VM+12*rg+j}')
    stamp(k, 0)
    for rg in range(4):
        k(f'v_mov_b32 v{VN+2*rg}, 0\nv_mov_b32 v{VN+2*rg+1}, 0')
    k('s_waitcnt lgkmcnt(0)')
    for j in range(12):
        for rg in range(4):
            k(f'v_dot2_f32_bf16 v{VN+rg}, v{VXD+12*rg+j}, s77, v{VN+rg}')
            k(f'v_dot2_f32_bf16 v{VN+4+rg}, v{VXD+12*rg+j}, v{VXD+12*rg+j}, v{VN+4+rg}')
    k('s_nop 3')
    for j in range(4): k(f'v_permlane32_swap_b32 v{VN+j}, v{VN+4+j}')
    for j in range(4): k(f'v_add_f32 v{VN+j}, v{VN+j}, v{VN+4+j}')
    k('s_nop 1')
    for j in range(2): k(f'v_permlane16_swap_b32 v{VN+j}, v{VN+2+j}')
    for j in range(2): k(f'v_add_f32 v{VN+2+j}, v{VN+j}, v{VN+2+j}')
    k('s_nop 1')
    for j in range(2): k(f'v_add_f32_dpp v{VN+j}, v{VN+2+j}, v{VN+2+j} row_ror:8 row_mask:0xf bank_mask:0xf')
    k(f'v_and_b32 v9, 7, v{VL}\nv_mul_u32_u24 v9, 192, v9\nv_lshrrev_b32 v10, 4, v{VL}\nv_lshl_add_u32 v10, v10, 3, v9')
    k(f's_lshl_b32 s{S_T0}, s{S_WAVE}, 5')
    k(f'v_add_u32 v10, s{S_T0}, v10')
    k(f'ds_write_b64 v10, {vr(VN,2)} offset:{L_STAT}')
    k('s_waitcnt lgkmcnt(0)')
    k('s_barrier')
    for w in range(6):
        k(f'ds_read_b128 {vr(VM+8*w,4)}, v9 offset:{L_STAT + 32*w}')
        k(f'ds_read_b128 {vr(VM+8*w+4,4)}, v9 offset:{L_STAT + 32*w + 16}')
    k('s_waitcnt lgkmcnt(0)')
    for w in range(1, 6):
        for j in range(0, 8, 2): k(f'v_pk_add_f32 {vr(VM+j,2)}, {vr(VM+j,2)}, {vr(VM+8*w+j,2)}')
    for rg in range(4):
        k(f'v_mul_f32 v{VM+rg}, {f32(1.0/D)}, v{VM+rg}')
        k(f'v_mul_f32 v{VM+4+rg}, {f32(1.0/D)}, v{VM+4+rg}')
        k(f'v_fma_f32 v{VM+4+rg}, -v{VM+rg}, v{VM+rg}, v{VM+4+rg}')
        k(f'v_max_f32 v{VM+4+rg}, 0, v{VM+4+rg}')
        k(f'v_add_f32 v{VM+4+rg}, {f32(1e-5)}, v{VM+4+rg}')
        k(f'v_rsq_f32 v{VM+4+rg}, v{VM+4+rg}')
        k('s_nop 0')
        k(f'v_mul_f32 v{VM+rg}, v{VM+rg}, v{VM+4+rg}')
    for rg in range(4):
        for j in range(12):
            n = VN + 24*rg + 2*j
            k(f'v_lshlrev_b32 v{n}, 16, v{VXD+12*rg+j}')
            k(f'v_and_b32 v{n+1}, 0xffff0000, v{VXD+12*rg+j}')
            k(f'v_fma_f32 v{n}, v{n}, v{VM+4+rg}, -v{VM+rg}')
            k(f'v_fma_f32 v{n+1}, v{n+1}, v{VM+4+rg}, -v{VM+rg}')
    ws_srd(k, SRD_A, 'H')
    k(f'v_lshrrev_b32 v8, 3, v{VL}\nv_lshlrev_b32 v8, 5, v8')
    k(f's_mul_i32 s{S_T0}, s{S_WAVE}, 768')
    k(f'v_add_u32 v8, s{S_T0}, v8')
    k(f'v_lshrrev_b32 v9, 5, v{VL}\nv_lshlrev_b32 v9, 17, v9\nv_bfe_u32 v10, v{VL}, 3, 2\nv_lshl_add_u32 v9, v10, 8, v9\nv_and_b32 v10, 7, v{VL}\nv_lshl_add_u32 v9, v10, 4, v9')
    k(f's_mul_i32 s{S_G}, s{S_WAVE}, {6*128}')
    k('s_lshl_b32 s76, s73, 1')
    k(f's_add_u32 s{S_G}, s{S_G}, s76')
    k(f's_lshl_b32 s{S_G}, s{S_G}, 10')
    stamp(k, 1)
    k('s_barrier')
    stamp(k, 2)
    for sg in range(3):
        m = VM + 32*sg
        for ks in range(2):
            for kind in range(2):
                for h in range(2):
                    k(f'ds_read_b128 {vr(m+16*ks+8*kind+4*h,4)}, v8 offset:{L_MOD + ks*9216 + kind*4608 + sg*256 + 16*h}')
    for sg in range(3):
        m = VM + 32*sg
        k(f's_waitcnt lgkmcnt({min(15, 8*(2-sg))})')
        for j in range(0, 16, 2): k(f'v_pk_add_f32 {vr(m+j,2)}, {vr(m+j,2)}, {vr(m+16+j,2)}')
        k(f's_add_u32 s{S_T0}, s{S_G}, {sg*2*128*1024}')
        for rg in range(4):
            n = VN + 24*rg + 8*sg
            o = VXD + 12*rg + 4*sg
            for j in range(0, 8, 2): k(f'v_pk_fma_f32 {vr(n+j,2)}, {vr(n+j,2)}, {vr(m+8+j,2)}, {vr(m+j,2)}')
            for j in range(4): k(f'v_cvt_pk_bf16_f32 v{o+j}, v{n+2*j}, v{n+2*j+1}')
            k(f'buffer_store_dwordx4 {vr(o,4)}, v9, {sr(SRD_A,4)}, s{S_T0} offen offset:{(rg>>1)*1024 + (rg&1)*128}{ST}')
    stamp(k, 3)
    k(f's_add_u32 s85, s73, {FL["H"]}')
    signal(k, 85, 6, 12)
    k.label('pa_hout')
    phase_exit(k, drain=not C.PERSIST)
    k.label('pa_hhelp')
    k(f's_cmp_eq_u32 s{S_WAVE}, 7')
    k('s_cbranch_scc1 pa_hpoll')
    if C.TLBW:
        sh = C.TLBW
        k(f'v_lshlrev_b32 v8, 3, v{VL}')
        k('v_add_u32 v8, s65, v8')
        k(f'v_lshlrev_b32 v8, {sh}, v8')
        span = 512 << sh
        for ptr, nb in [(P_WS, _o), (P_OUT, NR*D*2), (P_WQKV, D*3*D*2), (P_WO, D*D*2), (P_WQC, D*D*2), (P_WKVC, D*2*D*2), (P_WOC, D*D*2), (P_WMOD, D*6*D*2), (P_Y, 2*77*D*2)]:
            make_srd(k, SRD_Y, ptr, nb)
            for i in range(-(-nb // span)):
                k(f's_mov_b32 s{S_T0}, {i*span}')
                k(f'buffer_load_dword v14, v8, {sr(SRD_Y,4)}, s{S_T0} offen sc1')
    if C.HPF2:
        k('s_waitcnt vmcnt(0)')
        if C.HPF2 == 'v':
            make_srd(k, SRD_Y, P_WQKV, D*3*D*2)
            prefetch_cols(k, SRD_Y, 18, 4608, 73, 64, 13, 8, 9, limit=324)
            prefetch_flat(k, P_WO, D*D*2, 73, 64, 13, vtmp=8)
        else:
            prefetch_flat(k, P_WKVC, D*2*D*2, 73, 64, 13, vtmp=8, maxper=C.HPF2N)
    k.label('pa_hidle')
    k('s_waitcnt lgkmcnt(0)')
    k('s_barrier')
    k('s_barrier')
    if C.PERSIST: k('s_barrier')
    k('s_branch pa_hout')
    k.label('pa_hpoll')
    wait_init(k)
    k('s_barrier')
    k(f'v_min_u32 v8, 35, v{VL}')
    k('v_lshlrev_b32 v8, 7, v8')
    k(f's_mov_b32 s{S_T0}, {FL["MOD"]*128}')
    k(f's_mov_b32 s{S_T1}, {(FL["MOD"]+36)*128}')
    k(f's_mov_b32 s{S_CNT}, {SPIN}')
    k('s_mov_b32 exec_hi, 15')
    k.label('pa_mp')
    k(f'buffer_load_dword v9, v8, {sr(SRD_F,4)}, s{S_T0} offen sc1')
    k(f'buffer_load_dword v10, v8, {sr(SRD_F,4)}, s{S_T1} offen sc1')
    k(f's_sub_u32 s{S_CNT}, s{S_CNT}, 1')
    k('s_waitcnt vmcnt(0)')
    k('v_add_u32 v9, v9, v10')
    k('v_cmp_ne_u32 vcc, 2, v9')
    k(f's_cmp_eq_u32 s{S_CNT}, 0')
    k('s_cbranch_scc1 pa_mpd')
    k('s_cmp_eq_u64 vcc, 0')
    k('s_cbranch_scc1 pa_mpd')
    k('s_sleep 2')
    k('s_branch pa_mp')
    k.label('pa_mpd')
    k('s_mov_b64 exec, -1')
    stamp(k, 0)
    ws_srd(k, SRD_O, 'MODP')
    k(f'v_lshlrev_b32 v8, 4, v{VL}')
    k('s_lshr_b32 s79, s73, 5')
    k('s_mul_i32 s79, s79, 9216')
    for ks in range(2):
        for c in range(9):
            if c % 4 == 0:
                k(f's_mov_b32 m0, {L_MOD + ks*9216 + c*1024}')
                k(f's_add_u32 s{S_T0}, s79, {ks*18432 + c*1024}')
            k(f'buffer_load_dwordx4 v8, {sr(SRD_O,4)}, s{S_T0} offen offset:{(c%4)*1024} sc1 lds')
    k('s_waitcnt vmcnt(0)')
    k('s_barrier')
    if C.PERSIST: k('s_barrier')
    k('s_branch pa_hout')
    VMAX[0] = 256

def phase_B(k):
    dispatcher(k)
    k.label('role_T')
    k('s_mul_i32 s66, s67, 9')
    k('s_add_u32 s66, s66, s68')
    k(f's_lshl_b32 s{S_ABASE}, s68, 13')
    k(f's_lshl_b32 s{S_BBASE}, s67, 13')
    k('s_lshl_b32 s75, s68, 2')
    k('s_lshl_b32 s76, s67, 3')
    k(f's_add_u32 s78, s66, {FL["T"]}')
    k('s_lshl_b32 s69, s68, 2')
    div_const(k, 69, 69, 3, 40)
    args_ready(k)
    ws_srd(k, SRD_A, 'WQK'); ws_srd(k, SRD_B, 'H'); ws_srd(k, SRD_O, 'T')
    g1 = Gemm('tt', Opnd('frag', 8, SRD_A, S_ABASE, rbtot=72, aux=LD()), Opnd('frag', 8, SRD_B, S_BBASE, rbtot=128, aux=LD()), 2, 2, 18, C.NS['tt'], rot=R('tt'), win=Wn('tt'))
    def c_pf(k, s_chunk, n, step):
        k(f's_bitcmp1_b32 s{S_WAVE}, 1')
        k(f's_cselect_b32 s{SRD_Y}, s{P_WQC}, s{P_WOC}')
        k(f's_cselect_b32 s{SRD_Y+1}, s{P_WQC+1}, s{P_WOC+1}')
        k(f's_mov_b32 s{SRD_Y+2}, {D*D*2}')
        k(f's_mov_b32 s{SRD_Y+3}, 0x00020000')
        k(f'v_lshlrev_b32 v8, 7, v{VL}')
        k(f's_lshl_b32 s{S_T0}, s{s_chunk}, 13')
        for i in range(n):
            k(f'buffer_load_dword v14, v8, {sr(SRD_Y,4)}, s{S_T0} offen')
            if i + 1 < n: k(f's_add_u32 s{S_T0}, s{S_T0}, {step*8192}')
    def t_pf(k):
        if not C.TPF: return
        if C.TPF == 'c':
            k('s_lshl_b32 s79, s66, 1')
            k(f's_and_b32 s{S_T1}, s{S_WAVE}, 1')
            k(f's_add_u32 s79, s79, s{S_T1}')
            k('s_add_u32 s79, s79, 36')
            c_pf(k, 79, 1, 0)
            return
        k('s_lshl_b32 s79, s66, 2')
        k(f's_add_u32 s79, s79, s{S_WAVE}')
        k('s_add_u32 s79, s79, 72')
        prefetch_flat(k, P_WKVC, D*2*D*2, 79, 648, 14, vtmp=8)
    gemm_role(k, g1, epi_frag16(128, 75, 76), s_flag=78, cons_first=t_pf, depA=dep((69, 9, FL['WQK'], 18)), depB=dep((67, 4, FL['H'], 4)))
    k.label('role_wvo')
    k('s_mul_i32 s66, s67, 9')
    k('s_add_u32 s66, s66, s68')
    if not Wn('wvo'): k('s_mul_i32 s74, s74, 6')
    k(f's_mul_i32 s{S_ABASE}, s68, {128*6912}')
    k(f's_add_u32 s{S_ABASE}, s{S_ABASE}, {2*D*2}')
    k(f's_lshl_b32 s{S_BBASE}, s67, 8')
    k('s_lshl_b32 s75, s68, 2')
    k('s_lshl_b32 s76, s67, 3')
    k(f's_add_u32 s78, s66, {FL["WVO"]}')
    args_ready(k)
    make_srd(k, SRD_A, P_WQKV, D*3*D*2); make_srd(k, SRD_B, P_WO, D*D*2); ws_srd(k, SRD_O, 'WVO')
    g2 = Gemm('wvo', Opnd('row', 8, SRD_A, S_ABASE, stride=6912, perm=True), Opnd('col', 8, SRD_B, S_BBASE, stride=2304), 2, 2, 18, C.NS['wvo'], rot=R('wvo'), win=Wn('wvo'))
    def wvo_exit(k):
        if not C.PERSIST: return
        k('s_lshl_b32 s79, s66, 2')
        k(f's_and_b32 s{S_T1}, s{S_WAVE}, 3')
        k(f's_add_u32 s79, s79, s{S_T1}')
        k(f's_cmp_ge_u32 s{S_WAVE}, 4')
        k(f's_cselect_b32 s{SRD_Y}, s{P_WQC}, s{P_WOC}')
        k(f's_cselect_b32 s{SRD_Y+1}, s{P_WQC+1}, s{P_WOC+1}')
        k(f's_mov_b32 s{SRD_Y+2}, {D*D*2}')
        k(f's_mov_b32 s{SRD_Y+3}, 0x00020000')
        k(f'v_lshlrev_b32 v8, 7, v{VL}')
        k(f's_lshl_b32 s{S_T0}, s79, 13')
        k(f'buffer_load_dword v14, v8, {sr(SRD_Y,4)}, s{S_T0} offen')
    gemm_role(k, g2, epi_frag16(72, 75, 76, rowperm=True), s_flag=78, exit_hook=(wvo_exit if C.WVOPF == 1 else None), end_hookA=wait_init)
    def kv_pf(k, s_idx):
        k(f's_lshl_b32 s79, s{s_idx}, 3')
        k(f's_add_u32 s79, s79, s{S_WAVE}')
        prefetch_flat(k, P_WKVC, D*2*D*2, 79, 224, 14, vtmp=8, maxper=C.KVPF)
    k.label('role_kvc')
    if C.KVPF:
        k('s_lshl_b32 s66, s68, 1')
        k('s_add_u32 s66, s66, s67')
        kv_pf(k, 66)
    k(f's_mul_i32 s{S_ABASE}, s68, 384')
    k(f's_mul_i32 s{S_BBASE}, s67, {77*2304}')
    k('s_mul_i32 s78, s67, 12')
    k('s_add_u32 s78, s78, s68')
    k(f's_add_u32 s78, s78, {FL["KVC"]}')
    args_ready(k)
    make_srd(k, SRD_A, P_WKVC, D*2*D*2); make_srd(k, SRD_B, P_Y, 2*77*D*2); ws_srd(k, SRD_O, 'KVC')
    g3 = Gemm('kvc', Opnd('col', 12, SRD_A, S_ABASE, stride=4608), Opnd('row', 5, SRD_B, S_BBASE, stride=2304), 4, 1, 18, C.NS['kvc'])
    def epi_kvc(k, g):
        k(f'v_and_b32 v1, 15, v{VL}\nv_lshlrev_b32 v1, 4, v1\nv_lshrrev_b32 v{VT}, 5, v{VL}\nv_lshl_add_u32 v1, v{VT}, 8, v1')
        k(f'v_bfe_u32 v{VT}, v{VL}, 4, 1\nv_lshl_add_u32 v1, v{VT}, 3, v1')
        k('s_mul_i32 s70, s68, 12')
        k(f's_mul_i32 s71, s{S_WA}, 3')
        k('s_add_u32 s70, s70, s71')
        k('s_mul_i32 s72, s67, 5120')
        t = g.VF
        for i in range(3):
            k(f's_add_u32 s71, s70, {i}')
            k(f's_lshr_b32 s{S_T0}, s71, 1')
            k(f's_mul_i32 s{S_T0}, s{S_T0}, 10240')
            k('s_and_b32 s71, s71, 1')
            k('s_lshl_b32 s71, s71, 9')
            k(f's_add_u32 s{S_T0}, s{S_T0}, s71')
            k(f's_add_u32 s{S_T0}, s{S_T0}, s72')
            for b in range(5):
                c0 = acc(g, i, b)
                k(f'v_cvt_pk_bf16_f32 v{t}, v{c0}, v{c0+1}')
                k(f'v_cvt_pk_bf16_f32 v{t+1}, v{c0+2}, v{c0+3}')
                if b == 4: k(f's_add_u32 s{S_T0}, s{S_T0}, 4096')
                k(f'buffer_store_dwordx2 {vr(t,2)}, v1, {sr(SRD_O,4)}, s{S_T0} offen offset:{(b%4)*1024}{ST}')
                t += 2
    gemm_role(k, g3, epi_kvc, s_flag=78, end_hookA=wait_init)
    k.label('role_gate')
    k('s_mov_b32 s73, s67')
    k('s_mov_b32 s72, s68')
    k.label('pb_gate')
    gate_job(k, 73)
    k('s_add_u32 s73, s73, 1')
    k('s_sub_u32 s72, s72, 1')
    k('s_cmp_lg_u32 s72, 0')
    k('s_cbranch_scc1 pb_gate')
    phase_exit(k, drain=False)
    k.label('role_pf')
    if C.TPF == 'c':
        k(f's_and_b32 s79, s{S_WAVE}, 1')
        k(f's_lshr_b32 s78, s{S_WAVE}, 2')
        k('s_lshl_b32 s78, s78, 1')
        k('s_add_u32 s79, s79, s78')
        k('s_lshl_b32 s78, s67, 2')
        k('s_add_u32 s79, s79, s78')
        c_pf(k, 79, 3, 12)
    elif C.TPF or C.MPF:
        k('s_sub_u32 s79, s67, 24')
        k('s_lshl_b32 s79, s79, 3')
        k(f's_add_u32 s79, s79, s{S_WAVE}')
        prefetch_flat(k, P_WKVC, D*2*D*2, 79, 32, 14, vtmp=8, maxper=3)
    else: kv_pf(k, 67)
    phase_exit(k, drain=False)

def phase_C(k):
    k.label('role_S')
    k('s_mov_b32 s70, s67')
    k('s_lshr_b32 s66, s70, 3')
    k('s_and_b32 s67, s70, 7')
    k('s_lshl_b32 s69, s66, 3')
    k('s_add_u32 s71, s69, s68')
    k(f's_lshl_b32 s{S_ABASE}, s71, 13')
    k(f's_lshl_b32 s{S_BBASE}, s70, 13')
    k('s_lshl_b32 s75, s68, 2')
    k('s_lshl_b32 s76, s67, 3')
    k('s_lshl_b32 s77, s66, 21')
    k('s_lshl_b32 s72, s70, 3')
    k('s_add_u32 s72, s72, s68')
    k(f's_add_u32 s72, s72, {FL["P"]}')
    args_ready(k)
    ws_srd(k, SRD_A, 'H'); ws_srd(k, SRD_B, 'T'); ws_srd(k, SRD_O, 'P'); ws_srd(k, SRD_X, 'ST')
    g1 = Gemm('ss', Opnd('frag', 8, SRD_A, S_ABASE, rbtot=128, aux=LD()), Opnd('frag', 8, SRD_B, S_BBASE, rbtot=128, aux=LD()), 1, 4, 18, C.NS['ss'], rot=R('ss'), win=Wn('ss'))
    def epi_s(k, g):
        k(f's_mov_b32 s78, {f32(CSC)}')
        k(f's_mov_b32 s79, 0x3f803f80')
        VM = (g.VX + 3) // 4 * 4
        k(f's_lshl_b32 s{S_T0}, s75, 6')
        k(f's_add_u32 s{S_T0}, s{S_T0}, s76')
        k(f's_lshl_b32 s{S_T1}, s{S_WB}, 1')
        k(f's_add_u32 s{S_T0}, s{S_T0}, s{S_T1}')
        k(f's_lshl_b32 s{S_OBASE}, s{S_T0}, 10')
        k(f's_add_u32 s{S_OBASE}, s{S_OBASE}, s77')
        k(f'v_lshlrev_b32 v1, 4, v{VL}')
        for j in range(4): k(f'v_mov_b32 v{VM+8+j}, s79')
        k(f'v_mov_b32 v{VM+20}, s78\nv_mov_b32 v{VM+21}, s78')
        t = g.VF
        for b in range(2):
            regs = [acc(g, a, b) + r for a in range(8) for r in range(4)]
            m = VM + b; m2 = VM + 4 + b
            k(f'v_max3_f32 v{m}, v{regs[0]}, v{regs[1]}, v{regs[2]}')
            k(f'v_max3_f32 v{m2}, v{regs[3]}, v{regs[4]}, v{regs[5]}')
            i = 6; tog = 0
            while i < 32:
                d = m if tog == 0 else m2
                k(f'v_max3_f32 v{d}, v{d}, v{regs[i]}, v{regs[i+1]}')
                i += 2; tog ^= 1
            k(f'v_max_f32 v{m}, v{m}, v{m2}')
        for sw in ('v_permlane32_swap_b32', 'v_permlane16_swap_b32'):
            k(f'v_mov_b32 v{VM+4}, v{VM}\nv_mov_b32 v{VM+5}, v{VM+1}')
            k('s_nop 0')
            k(f'{sw} v{VM}, v{VM+4}')
            k(f'{sw} v{VM+1}, v{VM+5}')
            k('s_nop 0')
            k(f'v_max_f32 v{VM}, v{VM}, v{VM+4}\nv_max_f32 v{VM+1}, v{VM+1}, v{VM+5}')
        k(f'v_mul_f32 v{VM}, s78, v{VM}\nv_mul_f32 v{VM+1}, s78, v{VM+1}')
        VON, VL0, VC2 = VM + 8, VM + 12, VM + 20
        pend = []
        for ap in range(4):
            for b in range(2):
                regs = [acc(g, 2*ap+h, b) + r for h in range(2) for r in range(4)]
                if C.SPK:
                    sel = 'op_sel:[0,0,0] op_sel_hi:[1,1,0]' if b == 0 else 'op_sel:[0,0,1] op_sel_hi:[1,1,1]'
                    for r in regs[::2]: k(f'v_pk_fma_f32 {vr(r,2)}, {vr(r,2)}, {vr(VC2,2)}, {vr(VM,2)} {sel} neg_lo:[0,0,1] neg_hi:[0,0,1]')
                else:
                    for r in regs: k(f'v_fma_f32 v{r}, v{r}, s78, -v{VM+b}')
                for x in pend: k(x)
                for r in regs: k(f'v_exp_f32 v{r}, v{r}')
                k(f's_add_u32 s{S_T0}, s{S_OBASE}, {ap*64*1024}')
                for j in range(4): k(f'v_cvt_pk_bf16_f32 v{t+j}, v{regs[2*j]}, v{regs[2*j+1]}')
                k(f'buffer_store_dwordx4 {vr(t,4)}, v1, {sr(SRD_O,4)}, s{S_T0} offen offset:{b*1024}{ST}')
                pend = [f'v_mfma_f32_16x16x32_bf16 {vr(VL0+4*b,4)}, {vr(VON,4)}, {vr(t,4)}, ' + ('0' if ap == 0 else vr(VL0+4*b,4))]
                t += 4
        k('s_nop 0')
        for x in pend: k(x)
        k(f's_lshl_b32 s{S_T0}, s70, 2')
        k(f's_add_u32 s{S_T0}, s{S_T0}, s{S_WB}')
        k(f's_lshl_b32 s{S_T0}, s{S_T0}, 3')
        k(f's_add_u32 s{S_T0}, s{S_T0}, s68')
        k(f's_lshl_b32 s{S_T0}, s{S_T0}, 8')
        k(f'v_mov_b32 v{VM+2}, v{VL0}')
        k('s_nop 1')
        k(f'v_mov_b32 v{VM+3}, v{VL0+4}')
        k('s_mov_b64 exec, 0xffff')
        k(f'buffer_store_dwordx4 {vr(VM,4)}, v1, {sr(SRD_X,4)}, s{S_T0} offen{ST}')
        k('s_mov_b64 exec, -1')
        g.vmax = VM + 22
    gemm_role(k, g1, epi_s, s_flag=72, depA=dep((71, 4, FL['H'], 4)), depB=dep((70, 9, FL['T'], 9)))
    k.label('role_V')
    k('s_mov_b32 s66, s67')
    k('s_mov_b32 s67, s68')
    k(f's_lshl_b32 s{S_ABASE}, s66, 13')
    k(f's_mul_i32 s{S_BBASE}, s67, {9*1024}')
    k('s_lshl_b32 s75, s66, 2')
    k('s_mul_i32 s76, s67, 9')
    k('s_lshr_b32 s72, s66, 3')
    k('s_lshl_b32 s72, s72, 3')
    k('s_add_u32 s72, s72, s67')
    k('s_lshl_b32 s72, s72, 3')
    k('s_and_b32 s73, s66, 7')
    k('s_add_u32 s72, s72, s73')
    k(f's_add_u32 s72, s72, {FL["V"]}')
    args_ready(k)
    ws_srd(k, SRD_A, 'H'); ws_srd(k, SRD_B, 'WVO'); ws_srd(k, SRD_O, 'VT')
    g2 = Gemm('vv', Opnd('frag', 8, SRD_A, S_ABASE, rbtot=128, aux=LD()), Opnd('frag', 9, SRD_B, S_BBASE, rbtot=72, aux=LD()), 4, 1, 18, C.NS['vv'], rot=R('vv'), win=Wn('ss'))
    def v_tail(k):
        k('s_lshr_b32 s79, s66, 3')
        k('s_lshl_b32 s79, s79, 1')
        k('s_sub_u32 s79, s66, s79')
        k('s_lshl_b32 s79, s79, 3')
        k('s_add_u32 s79, s79, s67')
        k('s_lshl_b32 s79, s79, 2')
        k(f's_add_u32 s79, s79, s{S_WAVE}')
        k('s_sub_u32 s79, s79, 4')
        k('s_cmp_ge_u32 s73, 6')
        k('s_cselect_b32 s79, 400, s79')
        prefetch_flat(k, P_WQC, D*D*2, 79, 384, 14, vtmp=8)
        prefetch_flat(k, P_WOC, D*D*2, 79, 384, 14, vtmp=8)
        return 2
    gemm_role(k, g2, epi_frag16(72, 75, 76), s_flag=72, depA=dep((66, 4, FL['H'], 4)), depB=dep((67, 9, FL['WVO'], 18)), tail=(v_tail if C.WVOPF == 0 else None))

E_VAT, E_VX, E_VZ = 16, 196, 232
def e_at_loads(k):
    ws_srd(k, SRD_B, 'AT')
    k(f's_sub_u32 s71, s{S_WAVE}, 4')
    k(f's_mul_i32 s72, s71, {9*10}')
    k('s_mul_i32 s73, s66, 5')
    k('s_add_u32 s72, s72, s73')
    k('s_lshl_b32 s72, s72, 10')
    for i in range(9):
        k('s_add_u32 s73, s72, 4096')
        for mb in range(5):
            k(f'buffer_load_dwordx4 {vr(E_VAT+20*i+4*mb,4)}, v1, {sr(SRD_B,4)}, s{72 if mb < 4 else 73} offen offset:{(mb%4)*1024}{LD()}')
        if i < 8: k('s_add_u32 s72, s72, 10240')

def e_preload_hook(k):
    if not C.PERSIST: return
    k(f'v_lshlrev_b32 v8, 7, v{VL}')
    k('s_lshr_b32 s66, s64, 2')
    k(f's_mul_i32 s85, s66, {C.NAT}')
    k(f's_add_u32 s85, s85, {FL["AT"]}')
    k('s_lshl_b32 s85, s85, 7')
    ld = k.newlabel('echk')
    k(f's_mov_b64 exec, {hex((1 << C.NAT) - 1)}')
    for i in range(C.ECHK):
        if i: k(f's_sleep {C.ESLP}')
        k(f'buffer_load_dword v9, v8, {sr(SRD_F,4)}, s85 offen sc1')
        k('s_waitcnt vmcnt(0)')
        k('v_cmp_ne_u32 vcc, 1, v9')
        k('s_nop 0')
        k('s_cmp_eq_u64 vcc, 0')
        k(f's_cbranch_scc1 {ld}')
    k.label(ld)
    k('s_mov_b64 exec, -1')
    k('s_cselect_b32 s81, 3, 0')

def phase_D(k):
    k.label('role_PV')
    k('s_lshr_b32 s66, s67, 3')
    k('s_and_b32 s67, s67, 7')
    k(f's_mul_i32 s{S_ABASE}, s66, {32*72*1024}')
    k('s_mul_i32 s69, s68, 6144')
    k(f's_add_u32 s{S_ABASE}, s{S_ABASE}, s69')
    k(f's_lshl_b32 s{S_BBASE}, s66, 21')
    k('s_lshl_b32 s69, s67, 13')
    k(f's_add_u32 s{S_BBASE}, s{S_BBASE}, s69')
    k('s_lshl_b32 s70, s66, 3')
    k('s_add_u32 s70, s70, s67')
    k('s_mul_i32 s75, s68, 3')
    k('s_lshl_b32 s76, s70, 3')
    k('s_mul_i32 s72, s70, 12')
    k('s_add_u32 s72, s72, s68')
    k(f's_add_u32 s72, s72, {FL["X1"]}')
    k('s_lshl_b32 s71, s68, 1')
    div_const(k, 71, 71, 3, 24)
    k('s_min_u32 s71, s71, 6')
    k('s_lshl_b32 s73, s66, 3')
    k('s_add_u32 s71, s71, s73')
    args_ready(k)
    ws_srd(k, SRD_A, 'VT'); ws_srd(k, SRD_B, 'P'); ws_srd(k, SRD_O, 'X1')
    g1 = Gemm('pv', Opnd('frag', 6, SRD_A, S_ABASE, rbtot=72, aux=LD()), Opnd('frag', 8, SRD_B, S_BBASE, rbtot=64, aux=LD()), 1, 4, 16, C.NS['pv'], lds0=8192, rot=R('pv'), win=Wn('pv'))
    def depB_pv(k):
        dep((70, 8, FL['P'], 8))(k)
        ws_srd(k, SRD_X, 'ST')
        k(f's_lshl_b32 s{S_T1}, s{S_W2}, 12')
        k(f's_mov_b32 m0, s{S_T1}')
        k(f's_lshl_b32 s{S_T0}, s70, 13')
        k(f's_add_u32 s{S_T0}, s{S_T0}, s{S_T1}')
        for i in range(4): k(f'buffer_load_dwordx4 v1, {sr(SRD_X,4)}, s{S_T0} offen offset:{i*1024}{LD()} lds')
    def pv_consumer(k, g):
        ma, nb = 6, 2
        VF, VX = g.VF, g.VX
        VGT, VXR, VXF, VS, VR, VMX, VRF, VLS, VSA, VE, VBP = VX, VX+24, VX+48, VX+72, VX+76, VX+78, VX+80, VX+82, VX+84, VX+85, VX+87
        def side_loads():
            ws_srd(k, SRD_Y, 'GATE')
            k(f'v_lshrrev_b32 v1, 4, v{VL}\nv_lshlrev_b32 v1, 5, v1')
            k(f's_mul_i32 s{S_T0}, s66, 4608')
            k(f's_mul_i32 s{S_T1}, s68, 384')
            k(f's_add_u32 s{S_T0}, s{S_T0}, s{S_T1}')
            for ap in range(3):
                for h in range(2):
                    k(f'buffer_load_dwordx4 {vr(VGT+8*ap+4*h,4)}, v1, {sr(SRD_Y,4)}, s{S_T0} offen offset:{ap*128+16*h}{LD()}')
        def x_loads():
            make_srd(k, SRD_Y, P_X, NR*D*2)
            quad_voff(k, 1, 2304)
            k('s_lshl_b32 s79, s70, 2')
            k(f's_add_u32 s79, s79, s{S_WB}')
            k(f's_mul_i32 s{S_T0}, s79, {32*2304}')
            k(f's_mul_i32 s{S_T1}, s68, 192')
            k(f's_add_u32 s{S_T0}, s{S_T0}, s{S_T1}')
            k(f's_add_u32 s{S_T1}, s{S_T0}, {16*2304}')
            for ap in range(3):
                for b in range(2):
                    k(f'buffer_load_dwordx4 {vr(VXR+(ap*2+b)*4,4)}, v1, {sr(SRD_Y,4)}, s{S_T0 if b == 0 else S_T1} offen offset:{ap*64}')
        if not C.XLATE: x_loads()
        if not C.PERSIST: side_loads()
        k(f'v_and_b32 v{VSA}, 15, v{VL}\nv_lshlrev_b32 v{VSA}, 4, v{VSA}')
        k(f's_lshl_b32 s{S_T0}, s{S_WB}, 11')
        k(f'v_add_u32 v{VSA}, s{S_T0}, v{VSA}')
        k('s_mov_b32 s77, 0')
        if g.rot is not None: k('s_lshl_b32 s73, s74, 7')
        else: k('s_mov_b32 s73, 0')
        WM = ((g.win or 16)//2)*256 - 1
        aA = cons_addr_setup(k, g, g.A, ma, S_WA, VL, VA, VT)
        aB = cons_addr_setup(k, g, g.B, nb, S_WB, VL, VA + len(aA), VT)
        addrs = aA + aB
        for i in range(ma*nb*4): k(f'v_mov_b32 v{VACC+i}, 0')
        q2f_addr(k, VBP)
        k(f'v_mov_b32 v{VMX}, {f32(-3.0e38)}\nv_mov_b32 v{VMX+1}, {f32(-3.0e38)}')
        k(f'v_mov_b32 v{VRF}, {f32(-3.0e38)}\nv_mov_b32 v{VRF+1}, {f32(-3.0e38)}')
        k(f'v_mov_b32 v{VLS}, 0\nv_mov_b32 v{VLS+1}, 0')
        k(f's_mov_b32 s78, {f32(-64.0)}')
        k(f'v_mov_b32 v{VE}, {L_CNT}')
        k(f'ds_write_b32 v{VE}, v{VLS}')
        k('s_waitcnt lgkmcnt(0)')
        setsz = (ma + nb) * 4
        def fa(st, a): return VF + st*setsz + 4*a
        def fb(st, b): return VF + st*setsz + 4*ma + 4*b
        def reads(s, st):
            return cons_reads(g, g.B, nb, aB, s, fb(st, 0)) + cons_reads(g, g.A, ma, aA, s, fa(st, 0))
        def mf(st):
            return [f'v_mfma_f32_16x16x32_bf16 {vr(acc(g,a,b),4)}, {vr(fa(st,a),4)}, {vr(fb(st,b),4)}, {vr(acc(g,a,b),4)}'
                    for a in range(ma) for b in range(nb)]
        def muls(i):
            a, b = divmod(i, nb)
            c = acc(g, a, b)
            if C.PKMUL == 2: return ['s_nop 0']
            if C.PKMUL:
                sel = 'op_sel:[0,0] op_sel_hi:[1,0]' if b == 0 else 'op_sel:[0,1] op_sel_hi:[1,1]'
                return [f'v_pk_mul_f32 {vr(c+r,2)}, {vr(c+r,2)}, {vr(VR,2)} {sel}' for r in (0, 2)]
            return [f'v_mul_f32 v{c+r}, v{VR+b}, v{c+r}' for r in range(4)]
        def upd():
            o = []
            for b in range(2): o.append(f'v_max_f32 v{VMX+b}, v{VMX+b}, v{VS+b}')
            for b in range(2): o.append(f'v_add_f32 v{VE+b}, s78, v{VMX+b}')
            for b in range(2): o.append(f'v_max_f32 v{VE+b}, v{VE+b}, v{VS+b}')
            for b in range(2): o.append(f'v_sub_f32 v{VR+b}, v{VRF+b}, v{VE+b}')
            for b in range(2): o.append(f'v_exp_f32 v{VR+b}, v{VR+b}')
            for b in range(2): o.append(f'v_mov_b32 v{VRF+b}, v{VE+b}')
            for b in range(2): o.append(f'v_fma_f32 v{VLS+b}, v{VLS+b}, v{VR+b}, v{VS+2+b}')
            return o
        srd_ = [f's_add_u32 s{S_T0}, s77, s73', f's_and_b32 s{S_T0}, s{S_T0}, {WM}', f's_andn2_b32 s{S_T1}, s77, {WM}', f's_add_u32 s{S_T0}, s{S_T0}, s{S_T1}', f'v_add_u32 v{VE}, s{S_T0}, v{VSA}', f'ds_read_b128 {vr(VS,4)}, v{VE}', 's_add_u32 s77, s77, 256']
        adv = [f's_add_u32 s{S_SLOT}, s{S_SLOT}, {g.stage}',
               f's_cmp_eq_u32 s{S_SLOT}, {g.NS*g.stage}',
               f's_cselect_b32 s{S_DELTA}, {-(g.NS-1)*g.stage & 0xffffffff}, s{S_T3}',
               f's_cselect_b32 s{S_SLOT}, 0, s{S_SLOT}'] + [f'v_add_u32 v{a}, s{S_DELTA}, v{a}' for a in addrs]
        k(f's_mov_b32 s{S_SLOT}, 0')
        k(f's_mov_b32 s{S_CNT}, 8')
        k(f's_mov_b32 s{S_T3}, {g.stage}')
        k('s_barrier')
        stamp(k, 0); cstamp(k, 4)
        for x in srd_: k(x)
        for r in reads(0, 0): k(r)
        k('s_waitcnt lgkmcnt(8)')
        for x in upd(): k(x)
        k('s_waitcnt lgkmcnt(0)')
        lp = k.newlabel('pv_mm'); le = k.newlabel('pv_last')
        k.label(lp)
        M = mf(0); fill = reads(1, 1) + adv
        for x in muls(0): k(x)
        for i in range(12):
            if i + 1 < 12:
                for x in muls(i+1): k(x)
            else:
                k('s_nop 1')
            k(M[i])
            if fill: k(fill.pop(0))
        for f in fill: k(f)
        k('s_waitcnt lgkmcnt(0)')
        k('s_barrier')
        interleave(k, mf(1), reads(0, 0) + srd_ + [f's_sub_u32 s{S_CNT}, s{S_CNT}, 1'])
        k('s_waitcnt lgkmcnt(0)')
        interleave(k, mf(0), reads(1, 1) + adv)
        k('s_waitcnt lgkmcnt(0)')
        k(f's_cmp_eq_u32 s{S_CNT}, 0')
        k(f's_cbranch_scc1 {le}')
        k('s_barrier')
        interleave(k, mf(1), reads(0, 0) + upd(), per=2)
        if C.PERSIST:
            k(f's_cmp_eq_u32 s{S_CNT}, 4')
            k('s_cbranch_scc1 pv_g1')
            k(f's_cmp_eq_u32 s{S_CNT}, 2')
            k('s_cbranch_scc1 pv_g2')
            k.label('pv_gback')
        k('s_waitcnt lgkmcnt(0)')
        k(f's_branch {lp}')
        if C.PERSIST:
            k.label('pv_g1')
            k(f'v_lshlrev_b32 v1, 7, v{VL}')
            k(f's_mov_b32 s{S_T0}, {FL["GATE"]*128}')
            k('s_mov_b64 exec, 0x3ffff')
            k(f'buffer_load_dword v{VGT}, v1, {sr(SRD_F,4)}, s{S_T0} offen sc1')
            k('s_mov_b64 exec, -1')
            if C.XLATE: x_loads()
            k('s_branch pv_gback')
            k.label('pv_g2')
            k('s_mov_b64 exec, 0x3ffff')
            k('s_waitcnt vmcnt(0)')
            k(f'v_cmp_ne_u32 vcc, 1, v{VGT}')
            k('s_mov_b64 exec, -1')
            k('s_cmp_eq_u64 vcc, 0')
            k('s_cbranch_scc1 pv_g3')
            k(f's_mov_b32 s85, {FL["GATE"]}')
            poll(k, 85, 18, vt=VGT)
            k(f's_mov_b32 s{S_CNT}, 2')
            k.label('pv_g3')
            side_loads()
            k('s_branch pv_gback')
        k.label(le)
        k('s_waitcnt vmcnt(0)')
        bp = [f'ds_bpermute_b32 v{VXF+j}, v{VBP}, v{VXR+j}' for j in range(24)]
        interleave(k, mf(1), bp + [f'v_rcp_f32 v{VLS}, v{VLS}', f'v_rcp_f32 v{VLS+1}, v{VLS+1}'], per=2)
        g.VGT, g.VXF, g.VLS, g.VE = VGT, VXF, VLS, VE
        g.vmax = VBP + 1
    def epi_pv(k, g):
        k(f's_lshl_b32 s{S_T0}, s75, 7')
        k(f's_add_u32 s{S_T0}, s{S_T0}, s76')
        k(f's_lshl_b32 s{S_T1}, s{S_WB}, 1')
        k(f's_add_u32 s{S_T0}, s{S_T0}, s{S_T1}')
        k(f's_lshl_b32 s{S_OBASE}, s{S_T0}, 10')
        k(f'v_lshlrev_b32 v1, 4, v{VL}')
        k('s_waitcnt lgkmcnt(0)')
        T = g.VE
        t = g.VF
        for ap in range(3):
            for b in range(2):
                xr = g.VXF + (ap*2+b)*4
                regs = [acc(g, 2*ap+h, b) + r for h in range(2) for r in range(4)]
                for e in range(8):
                    k(f'v_mul_f32 v{regs[e]}, v{g.VLS+b}, v{regs[e]}')
                    if e % 2 == 0: k(f'v_lshlrev_b32 v{T}, 16, v{xr+e//2}')
                    else: k(f'v_and_b32 v{T}, 0xffff0000, v{xr+e//2}')
                    k(f'v_fma_f32 v{regs[e]}, v{regs[e]}, v{g.VGT+8*ap+e}, v{T}')
                for j in range(4): k(f'v_cvt_pk_bf16_f32 v{t+j}, v{regs[2*j]}, v{regs[2*j+1]}')
                k(f's_add_u32 s{S_T0}, s{S_OBASE}, {ap*128*1024}')
                k(f'buffer_store_dwordx4 {vr(t,4)}, v1, {sr(SRD_O,4)}, s{S_T0} offen offset:{b*1024}{ST}')
                t += 4
    gemm_role(k, g1, epi_pv, s_flag=72, custom_consumer=pv_consumer, depA=dep((71, 8, FL['V'], 16, C.VM[0][1])), midA=[(st, dep((71, 8, FL['V'], 16, m))) for st, m in C.VM[1:]], depB=depB_pv, end_hookA=(e_preload_hook if C.ECHK else None), end_hookB=(e_preload_hook if C.ECHK else None), lds_sig=C.EPRE)
    k.label('role_AT')
    NAT = C.NAT
    k(f's_mul_i32 s{S_ABASE}, s68, {(1152//NAT)*2304}')
    k(f's_mul_i32 s{S_BBASE}, s67, 5120')
    k(f's_mul_i32 s75, s68, {36//NAT}')
    k('s_mul_i32 s76, s67, 5')
    k(f's_mul_i32 s72, s67, {NAT}')
    k('s_add_u32 s72, s72, s68')
    k(f's_add_u32 s72, s72, {FL["AT"]}')
    k('s_mul_i32 s74, s67, 9')
    make_srd(k, SRD_A, P_WQC, D*D*2); ws_srd(k, SRD_B, 'KVC'); ws_srd(k, SRD_O, 'AT')
    if NAT == 18:
        g2 = Gemm('at', Opnd('row', 4, SRD_A, S_ABASE, stride=2304, perm=True), Opnd('frag', 5, SRD_B, S_BBASE, rbtot=10, aux=LD()), 2, 2, 18, C.NS['at'], rot=R('at'), nb_ov=(3, 2))
    else:
        g2 = Gemm('at', Opnd('row', 8, SRD_A, S_ABASE, stride=2304, perm=True), Opnd('frag', 5, SRD_B, S_BBASE, rbtot=10, aux=LD()), 4, 1, 18, C.NS['at'], rot=R('at'))
    gemm_role(k, g2, epi_frag16(10, 75, 76), s_flag=72, depB=dep((67, 12, FL['KVC'], 6)))
    k.label('role_BT')
    k(f's_mul_i32 s{S_ABASE}, s67, 5120')
    k(f's_add_u32 s{S_ABASE}, s{S_ABASE}, {36*10*1024}')
    k(f's_lshl_b32 s{S_BBASE}, s68, 8')
    k('s_mul_i32 s75, s67, 3')
    k('s_lshl_b32 s76, s68, 3')
    k('s_mul_i32 s72, s67, 9')
    k('s_add_u32 s72, s72, s68')
    k(f's_add_u32 s72, s72, {FL["BT"]}')
    k('s_mul_i32 s74, s67, 9')
    args_ready(k)
    ws_srd(k, SRD_A, 'KVC'); make_srd(k, SRD_B, P_WOC, D*D*2); ws_srd(k, SRD_O, 'BT')
    g3 = Gemm('bt', Opnd('frag', 5, SRD_A, S_ABASE, rbtot=10, aux=LD()), Opnd('col', 8, SRD_B, S_BBASE, stride=2304), 1, 4, 18, C.NS['bt'], rot=R('bt'))
    def epi_bt(k, g):
        epi_frag16(72, 75, 76, rowperm=True, npair_max=2)(k, g)
        k(f'v_bfe_u32 v{VT}, v{VL}, 2, 1\nv_lshlrev_b32 v1, 3, v{VT}\nv_bfe_u32 v{VT}, v{VL}, 3, 1\nv_lshl_add_u32 v1, v{VT}, 6, v1')
        k(f'v_and_b32 v{VT}, 0x33, v{VL}\nv_lshl_add_u32 v1, v{VT}, 4, v1')
        k(f's_mul_i32 s{S_T0}, s67, 216')
        k(f's_lshl_b32 s{S_T1}, s68, 2')
        k(f's_add_u32 s{S_T0}, s{S_T0}, s{S_T1}')
        k(f's_add_u32 s{S_T0}, s{S_T0}, s{S_WB}')
        k(f's_add_u32 s{S_T0}, s{S_T0}, 144')
        k(f's_lshl_b32 s{S_T0}, s{S_T0}, 10')
        t = g.VF + 32
        for b in range(2):
            c0 = acc(g, 4, b)
            k(f'v_cvt_pk_bf16_f32 v{t}, v{c0}, v{c0+1}')
            k(f'v_cvt_pk_bf16_f32 v{t+1}, v{c0+2}, v{c0+3}')
            k(f'buffer_store_dwordx2 {vr(t,2)}, v1, {sr(SRD_O,4)}, s{S_T0} offen offset:{b*128}{ST}')
            t += 2
    gemm_role(k, g3, epi_bt, s_flag=72, depA=dep((67, 12, FL['KVC'] + 6, 6)))

def phase_E(k):
    k.label('role_E')
    L_CS, L_Z, L_RS = 0, 2048, 26624
    VAT, VX_, VZ = E_VAT, E_VX, E_VZ
    k('s_lshr_b32 s66, s64, 2')
    k(f'v_lshlrev_b32 v1, 4, v{VL}')
    k('s_and_b32 s67, s65, 1')
    k('s_lshl_b32 s68, s64, 4')
    k('s_lshr_b32 s69, s65, 1')
    k('s_add_u32 s68, s68, s69')
    k('s_lshr_b32 s70, s68, 3')
    k(f's_cmp_lt_u32 s{S_WAVE}, 4')
    k('s_cbranch_scc1 pe_l')
    VQQ = 252
    k('s_cmp_eq_u32 s81, 3')
    k('s_cbranch_scc1 pe_at')
    dep((66, C.NAT, FL['AT'], C.NAT))(k)
    k.label('pe_at')
    ws_srd(k, SRD_B, 'AT')
    k(f's_sub_u32 s71, s{S_WAVE}, 4')
    k(f's_mul_i32 s72, s71, {9*10}')
    k('s_mul_i32 s73, s66, 5')
    k('s_add_u32 s72, s72, s73')
    k('s_lshl_b32 s72, s72, 10')
    XF = C.XF
    LAG = C.LAG
    def cs_mm(i):
        for mb in range(5):
            c = '0' if i == 0 else vr(VZ+4*mb, 4)
            k(f'v_mfma_f32_16x16x32_bf16 {vr(VZ+4*mb,4)}, {vr(VAT+20*i+4*mb,4)}, v[12:15], {c}')
        k('s_mov_b32 exec_lo, 0x80008000\ns_mov_b32 exec_hi, 0x80008000')
        for j in range(4): k(f'v_mov_b32 v{VAT+20*i+16+j}, s77')
        k('s_mov_b64 exec, -1')
    for i in range(9):
        k('s_add_u32 s73, s72, 4096')
        for mb in range(5):
            k(f'buffer_load_dwordx4 {vr(VAT+20*i+4*mb,4)}, v1, {sr(SRD_B,4)}, s{72 if mb < 4 else 73} offen offset:{(mb%4)*1024}{LD()}')
        if i < 8: k('s_add_u32 s72, s72, 10240')
        if i == 0:
            ws_srd(k, SRD_A, 'X1')
            k(f's_mul_i32 s74, s71, {9*128}')
            k('s_add_u32 s74, s74, s68')
            k('s_lshl_b32 s74, s74, 10')
            k('s_mov_b32 s77, 0x3f803f80')
            for j in range(4): k(f'v_mov_b32 v{12+j}, s77')
            k(f's_mul_i32 s{S_T1}, s71, 6144')
            k(f'v_add_u32 v6, s{S_T1}, v1')
            k(f'v_lshlrev_b32 v8, 7, v{VL}')
            k('s_mul_i32 s85, s70, 12')
            k(f's_add_u32 s85, s85, {FL["X1"]}')
            k('s_lshl_b32 s76, s85, 7')
            k(f's_mul_i32 s{S_T0}, s71, 320')
            k(f'v_add_u32 v10, s{S_T0}, v{VL}')
            k('s_and_b32 s75, s71, 1')
            k('s_mul_i32 s75, s75, 9216')
            k('v_add_u32 v11, s75, v1')
        if i == XF:
            k('s_mov_b64 exec, 0xfff')
            k(f'buffer_load_dword v9, v8, {sr(SRD_F,4)}, s76 offen sc1')
            k('s_mov_b64 exec, -1')
        if i >= LAG:
            k(f's_waitcnt vmcnt({5*LAG + (1 if i - LAG <= XF <= i else 0)})')
            cs_mm(i - LAG)
    def load_x():
        for i in range(9):
            k(f'buffer_load_dwordx4 {vr(VX_+4*i,4)}, v1, {sr(SRD_A,4)}, s74 offen{LD()}')
            if i < 8: k(f's_add_u32 s74, s74, {128*1024}')
    k('s_mov_b64 exec, 0xfff')
    k(f's_waitcnt vmcnt({5*(8-XF)})')
    k('v_cmp_ne_u32 vcc, 1, v9')
    k('s_mov_b64 exec, -1')
    k('s_cmp_eq_u64 vcc, 0')
    k('s_cselect_b32 s81, 1, 0')
    k('s_cbranch_scc0 pe_x_late0')
    k.label('pe_x_go')
    stamp(k, 1)
    load_x()
    k('s_cmp_eq_u32 s81, 0')
    k('s_cbranch_scc1 pe_x_done')
    k('s_barrier')
    k('s_waitcnt vmcnt(9)')
    k('s_branch pe_x_late')
    k.label('pe_x_late0')
    k('s_barrier')
    k('s_waitcnt vmcnt(0)')
    k.label('pe_x_late')
    for i in range(9 - LAG, 9): cs_mm(i)
    k('s_mov_b32 exec_lo, 0x00010001\ns_mov_b32 exec_hi, 0x00010001')
    for mb in range(5): k(f'ds_write_b128 v10, {vr(VZ+4*mb,4)} offset:{L_CS + mb*64}')
    k('s_mov_b64 exec, -1')
    stamp(k, 0)
    k('s_waitcnt lgkmcnt(0)')
    k('s_barrier')
    k('s_cmp_eq_u32 s81, 1')
    k('s_cbranch_scc1 pe_x_done')
    poll(k, 85, 12, vt=2)
    k('s_branch pe_x_go')
    k.label('pe_x_done')
    if not C.RSG:
        k('s_lshr_b32 s75, s71, 1')
        k('s_cmp_lg_u32 s75, s67')
        k(f's_cselect_b32 s75, {LDS_MAX}, 0')
        k('v_add_u32 v11, s75, v11')
    for i in range(9):
        k(f's_waitcnt vmcnt({8-i})')
        for mb in range(5):
            c = '0' if i == 0 else vr(VZ+4*mb, 4)
            k(f'v_mfma_f32_16x16x32_bf16 {vr(VZ+4*mb,4)}, {vr(VAT+20*i+4*mb,4)}, {vr(VX_+4*i,4)}, {c}')
            if mb == 0 and not C.RSG: k(f'ds_write_b128 v11, {vr(VX_+4*i,4)} offset:{L_RS + i*1024}')
        c = '0' if i == 0 else vr(VQQ, 4)
        k(f'v_mfma_f32_16x16x32_bf16 {vr(VQQ,4)}, {vr(VX_+4*i,4)}, {vr(VX_+4*i,4)}, {c}')
    k('s_nop 2')
    for mb in range(5): k(f'ds_write_b128 v6, {vr(VZ+4*mb,4)} offset:{L_Z + mb*1024}')
    k('s_nop 0')
    k(f'ds_write_b128 v6, {vr(VQQ,4)} offset:{L_Z + 5*1024}')
    stamp(k, 2)
    k('s_waitcnt lgkmcnt(0)')
    k('s_barrier')
    phase_exit(k)
    k.label('pe_l')
    NPW = 5
    VB, VZ2, VCS, VP, VRS = 16, 136, 196, 216, 116
    VZ3 = 216
    VO, VQ = 156, 16
    ws_srd(k, SRD_X, 'BT'); make_srd(k, SRD_O, P_OUT, NR*D*2)
    k(f's_mul_i32 s75, s{S_WAVE}, 5')
    k('s_min_u32 s75, s75, 14')
    k('s_mul_i32 s73, s67, 18')
    k('s_add_u32 s73, s73, s75')
    k('s_mul_i32 s76, s66, 216')
    k('s_lshl_b32 s77, s73, 1')
    k('s_add_u32 s76, s76, s77')
    k('s_lshl_b32 s76, s76, 10')
    k('s_mul_i32 s72, s66, 216')
    k('s_add_u32 s72, s72, s73')
    k('s_add_u32 s72, s72, 144')
    k('s_lshl_b32 s72, s72, 10')
    k(f'v_lshlrev_b32 v252, 7, v{VL}')
    k('s_mul_i32 s85, s66, 9')
    k(f's_add_u32 s85, s85, {FL["BT"]}')
    k('s_lshl_b32 s77, s85, 7')
    k('s_mov_b64 exec, 0x1ff')
    k(f'buffer_load_dword v253, v252, {sr(SRD_F,4)}, s77 offen sc1')
    k('s_mov_b64 exec, -1')
    f2q_addr(k, 5)
    quad_voff(k, 6, 2304)
    k(f'v_and_b32 v14, 48, v{VL}')
    k(f's_lshl_b32 s{S_T0}, s75, 10')
    k(f'v_add_u32 v15, s{S_T0}, v1')
    ws_srd(k, SRD_A, 'X1')
    k('s_lshl_b32 s74, s73, 7')
    k('s_add_u32 s74, s74, s68')
    k('s_lshl_b32 s74, s74, 10')
    k(f'v_and_b32 v7, 15, v{VL}\nv_lshlrev_b32 v8, 4, v7\nv_lshrrev_b32 v9, 2, v7\nv_lshl_add_u32 v9, v9, 8, v8\nv_and_b32 v7, 3, v7\nv_lshl_add_u32 v9, v7, 2, v9')
    k(f's_mul_i32 s{S_T2}, s68, {16*2304}')
    k(f's_lshl_b32 s{S_T1}, s73, 6')
    k(f's_add_u32 s{S_T2}, s{S_T2}, s{S_T1}')
    k('v_mov_b32 v4, 0xff800000')
    k('s_mov_b64 exec, 0x1ff')
    k('s_waitcnt vmcnt(0)')
    k('v_cmp_ne_u32 vcc, 1, v253')
    k('s_mov_b64 exec, -1')
    k('s_barrier')
    k('s_cmp_eq_u64 vcc, 0')
    k('s_cbranch_scc1 pe_bt_go')
    poll(k, 85, 9)
    k.label('pe_bt_go')
    stamp(k, 0)
    zr = lambda w, mb: (VZ2 + 20*w + 4*mb) if w < 3 else (VZ3 + 4*mb)
    def sum4(base, dst, pre=(), va=1, ws=6144, ms=1024, mid=()):
        for mb in range(5):
            for w in range(4):
                k(f'ds_read_b128 {vr(zr(w,mb),4)}, v{va} offset:{base + w*ws + mb*ms}')
        for x in pre: k(x)
        for mb in range(5):
            k(f's_waitcnt lgkmcnt({min(15, 4*(4-mb))})')
            for j in (0, 2):
                k(f'v_pk_add_f32 {vr(zr(0,mb)+j,2)}, {vr(zr(0,mb)+j,2)}, {vr(zr(1,mb)+j,2)}')
                k(f'v_pk_add_f32 {vr(zr(2,mb)+j,2)}, {vr(zr(2,mb)+j,2)}, {vr(zr(3,mb)+j,2)}')
                k(f'v_pk_add_f32 {vr(dst+4*mb+j,2)}, {vr(zr(0,mb)+j,2)}, {vr(zr(2,mb)+j,2)}')
                while mid:
                    x = mid.pop(0); k(x)
                    if x.startswith('buffer'): break
        for x in mid: k(x)
    VB2 = VB + 80
    ldb = lambda r, sg, off: f'buffer_load_dwordx4 {vr(r,4)}, v1, {sr(SRD_X,4)}, s{sg} offen offset:{off}{LD()}'
    k(f's_cmp_ge_u32 s{S_WAVE}, 2')
    k('s_cbranch_scc1 pe_no5')
    for kb in range(2):
        k(f's_add_u32 s77, s76, {kb*72*1024 + 8192}')
        for i in range(2): k(ldb(VB+(kb*10+8+i)*4, 77, i*1024))
    k('s_add_u32 s77, s72, 4096')
    k(ldb(VB2+16, 77, 0))
    k.label('pe_no5')
    btl = []
    for kb in range(2):
        for g0 in (0, 4):
            btl.append(f's_add_u32 s77, s76, {kb*72*1024 + g0*1024}')
            for i in range(4): btl.append(ldb(VB+(kb*10+g0+i)*4, 77, i*1024))
    for i in range(4): btl.append(ldb(VB2+4*i, 72, i*1024))
    def split(lst, n):
        idx = [i for i, x in enumerate(lst) if x.startswith('buffer')]
        if n >= len(idx): return lst, []
        cut = idx[n]
        if cut and lst[cut-1].startswith('s_add'): cut -= 1
        return lst[:cut], lst[cut:]
    p0, rest = split(btl, C.BT0)
    p1, late = split(rest, C.BT1 - C.BT0)
    for x in p0: k(x)
    k('s_barrier')
    sum4(L_CS, VCS, pre=p1, va=14, ws=320, ms=64)
    k(f'v_cmp_le_u32 vcc, 48, v{VL}')
    k('s_mov_b32 s78, 0x3f803f80')
    stamp(k, 1)
    k('s_barrier')
    stamp(k, 3)
    rsl = []
    for i in range(NPW):
        rsl.append(f'buffer_load_dwordx4 {vr(VRS+4*i,4)}, v1, {sr(SRD_A,4)}, s74 offen{LD()}')
        if i < NPW-1: rsl.append(f's_add_u32 s74, s74, {128*1024}')
    RX = NPW if C.RSG else 0
    for w in range(4):
        k(f'ds_read_b32 v{248+w}, v8 offset:{L_Z + w*6144 + 4*1024 + 48*16 + 12}')
        k(f'ds_read_b32 v{252+w}, v9 offset:{L_Z + w*6144 + 5*1024}')
    st = ['v_add_f32 v248, v248, v249', 'v_add_f32 v250, v250, v251', 'v_add_f32 v252, v252, v253', 'v_add_f32 v254, v254, v255',
          'v_add_f32 v248, v248, v250', 'v_add_f32 v252, v252, v254',
          f'v_mul_f32 v10, {f32(-1.0/D)}, v248', f'v_mul_f32 v12, {f32(1.0/D)}, v252', 'v_fma_f32 v12, -v10, v10, v12', 'v_max_f32 v12, 0, v12',
          f'v_add_f32 v12, {f32(1e-5)}, v12', 'v_rsq_f32 v12, v12', 'v_mov_b32 v11, v10', f'v_mul_f32 v12, {f32(CSC)}, v12']
    assert not (C.RSG and late)
    sum4(L_Z, VZ2, pre=(rsl if C.RSG else []) + ['s_waitcnt lgkmcnt(15)'] + st, mid=late)
    stamp(k, 2)
    if not C.RSG:
        for i in range(NPW): k(f'ds_read_b128 {vr(VRS+4*i,4)}, v15 offset:{L_RS + i*1024}')
    for i in range(0, 20, 2): k(f'v_pk_fma_f32 {vr(VZ2+i,2)}, {vr(VCS+i,2)}, v[10:11], {vr(VZ2+i,2)}')
    for r in (17, 18, 19): k(f'v_cndmask_b32 v{VZ2+r}, v{VZ2+r}, v4, vcc')
    k(f'v_max3_f32 v2, v{VZ2}, v{VZ2+1}, v{VZ2+2}')
    k(f'v_max3_f32 v3, v{VZ2+3}, v{VZ2+4}, v{VZ2+5}')
    for i in range(6, 20, 2): k(f'v_max3_f32 v{2 + (i//2)%2}, v{2 + (i//2)%2}, v{VZ2+i}, v{VZ2+i+1}')
    k('v_max_f32 v2, v2, v3')
    for sw in ('v_permlane32_swap_b32', 'v_permlane16_swap_b32'):
        k(f'v_mov_b32 v3, v2\ns_nop 1\n{sw} v2, v3\ns_nop 0\nv_max_f32 v2, v2, v3')
    k('v_mul_f32 v2, v2, v12')
    for i in range(20): k(f'v_fma_f32 v{VZ2+i}, v{VZ2+i}, v12, -v2')
    for i in range(20): k(f'v_exp_f32 v{VZ2+i}, v{VZ2+i}')
    for i in range(10): k(f'v_cvt_pk_bf16_f32 v{VP+i}, v{VZ2+2*i}, v{VZ2+2*i+1}')
    for j in range(4): k(f'v_mov_b32 v{248+j}, s78')
    mmx = []
    for kb in range(2):
        mmx.append(f's_waitcnt vmcnt({8*(1-kb) + 4 + RX})')
        mmx.append(f'v_mfma_f32_16x16x32_bf16 v[252:255], v[248:251], {vr(VP+4*kb,4)}, ' + ('0' if kb == 0 else 'v[252:255]'))
        for jb in range(10):
            c = '0' if kb == 0 else vr(VO+4*jb, 4)
            mmx.append(f'v_mfma_f32_16x16x32_bf16 {vr(VO+4*jb,4)}, {vr(VB+(kb*10+jb)*4,4)}, {vr(VP+4*kb,4)}, {c}')
    mmx.append(f's_waitcnt vmcnt({RX})')
    mmx.append(f'v_mfma_f32_16x16x16_bf16 v[252:255], v[248:249], {vr(VP+8,2)}, v[252:255]')
    for jb in range(10):
        mmx.append(f'v_mfma_f32_16x16x16_bf16 {vr(VO+4*jb,4)}, {vr(VB2+2*jb,2)}, {vr(VP+8,2)}, {vr(VO+4*jb,4)}')
    k('s_nop 0')
    un = lambda e: (VZ2 + e) if e < 20 else (VCS + e - 20)
    sm = ['s_waitcnt vmcnt(0) lgkmcnt(0)' if C.RSG else 's_waitcnt lgkmcnt(0)']
    stamp(k, 5)
    for j in range(4*NPW):
        sm += [f'v_lshlrev_b32 v{un(2*j)}, 16, v{VRS+j}', f'v_and_b32 v{un(2*j+1)}, 0xffff0000, v{VRS+j}']
    interleave(k, mmx, sm, per=2, start=1)
    k('v_rcp_f32 v2, v252')
    k('s_nop 0')
    k('v_mov_b32 v3, v2')
    for i in range(NPW):
        for e in range(0, 8, 2):
            k(f'v_pk_fma_f32 {vr(VO+8*i+e,2)}, {vr(VO+8*i+e,2)}, v[2:3], {vr(un(8*i+e),2)}')
        for j in range(4): k(f'v_cvt_pk_bf16_f32 v{VRS+4*i+j}, v{VO+8*i+2*j}, v{VO+8*i+2*j+1}')
        for j in range(4): k(f'ds_bpermute_b32 v{VQ+4*i+j}, v5, v{VRS+4*i+j}')
        if i >= 1:
            k('s_waitcnt lgkmcnt(4)')
            k(f'buffer_store_dwordx4 {vr(VQ+4*(i-1),4)}, v6, {sr(SRD_O,4)}, s{S_T2} offen offset:{64*(i-1)}{C.OUTST}')
    k(f's_cmp_ge_u32 s{S_WAVE}, 2')
    k('s_cbranch_scc1 pe_no5s')
    k('s_waitcnt lgkmcnt(0)')
    k(f'buffer_store_dwordx4 {vr(VQ+4*(NPW-1),4)}, v6, {sr(SRD_O,4)}, s{S_T2} offen offset:{64*(NPW-1)}{C.OUTST}')
    k.label('pe_no5s')
    stamp(k, 4)
    phase_exit(k)
    VMAX[0] = 256

def task(role, p1=0, p2=0, rot=0):
    assert p1 < 32 and p2 < 32 and rot < 4
    return (role, p1, p2, rot)

def make_schedule():
    sch = [[] for _ in range(256)]
    W = lambda x, loc: x + 8*loc
    late = []
    for x in range(8):
        for loc in range(18):
            u = x*18 + loc; jg, r = divmod(u, 48); tn, jl = divmod(r, 3)
            sch[W(x, loc)].append(task('T', tn, jg*3 + jl, (2*jl + tn) % 3))
    def wvo(w):
        blk, ins = divmod(w, 9); bj, bi = divmod(blk, 3); tj = bj*3 + ins//3; ti = bi*3 + ins % 3
        return task('wvo', tj, ti, (ti + tj) % 3)
    for x in range(8):
        for loc in range(23, 32): sch[W(x, loc)].append(wvo(x*9 + loc - 23))
    if C.GPLAN == 1:
        sg = []
        for x in (1, 3, 5):
            for loc in (20, 21, 22):
                i = (x >> 1)*3 + loc - 20
                sch[W(x, loc)].append(wvo(72 + i))
        sch[W(5, 22)].append(task('gate', 17, 1))
        g3 = [W(7, loc) for loc in (20, 21, 22)]
        for i, w in enumerate(g3): sch[w].append(task('gate', 3*i, 3))
        kv = [W(x, loc) for x in range(8) for loc in (range(18, 22) if x % 2 == 0 else (18, 19))]
        for v, w in enumerate(kv): sch[w].append(task('kvc', v & 1, v >> 1))
        for i, x in enumerate((0, 2, 4, 6)):
            sch[W(x, 22)].append(task('gate', 9 + 2*i, 2)); sg.append(W(x, 22))
        g3 = g3 + [W(5, 22)]
    else:
        sg = []
        gj = 13
        for x in (1, 3, 5):
            for loc in (20, 21, 22):
                i = (x >> 1)*3 + loc - 20
                if C.GFIRST:
                    if not (C.PFG and i < 4): sch[W(x, loc)].append(task('gate', 9 + i, 1))
                    sch[W(x, loc)].append(wvo(72 + i))
                    continue
                sch[W(x, loc)].append(wvo(72 + i))
                if gj < 18 and (loc < 22 ):
                    sch[W(x, loc)].append(task('gate', gj, 1)); gj += 1; sg.append(W(x, loc))
        g3 = []
        for i, loc in enumerate((20, 21, 22)):
            sch[W(7, loc)].append(task('gate', 3*i, 3)); g3.append(W(7, loc))
        v = 0
        kv = []
        for x in range(8):
            for loc in (range(18, 22) if x % 2 == 0 else (18, 19)):
                sch[W(x, loc)].append(task('kvc', v & 1, v >> 1)); v += 1; kv.append(W(x, loc))
        for i, x in enumerate((0, 2, 4, 6)):
            sch[W(x, 22)].append(task('pf', 24 + i))
            if C.PFG or not C.GFIRST: sch[W(x, 22)].append(task('gate', 9 + i, 1))
        if C.GFIRST: sg = [W(x, 17) for x in (1, 3, 5, 0, 2)]
    for x in range(8):
        for loc in range(16):
            sch[W(x, loc)].append(task('S', (x >> 2)*8 + (x & 1)*4 + (loc >> 2), ((x >> 1) & 1)*4 + (loc & 3), ((loc >> 2) + (loc & 3)) % 3))
    key = lambda w: (w & 7, w)
    lateV = sorted(sg + kv + g3, key=key)
    assert len(lateV) == 32
    lt = [(nt, jh*4 + j) for bb in range(2) for jh in range(2) for nt in (6 + 8*bb, 7 + 8*bb) for j in range(4)]
    for w, (nt, jt) in zip(lateV, lt): sch[w].append(task('V', nt, jt, (nt + jt) % 3))
    rest = sorted([W(x, loc) for x in range(8) for loc in range(16, 32) if W(x, loc) not in lateV], key=key)
    assert len(rest) == 96
    nts = [0, 1, 2, 3, 4, 5, 8, 9, 10, 11, 12, 13]
    et = [(nts[g*3 + i], jh*4 + j) for g in range(4) for jh in range(2) for i in range(3) for j in range(4)]
    for w, (nt, jt) in zip(rest, et): sch[w].append(task('V', nt, jt, (nt + jt) % 3))
    aux = [task('AT', i & 1, i >> 1) for i in range(2*C.NAT)] + [task('BT', i & 1, i >> 1) for i in range(18)]
    if C.BTLATE:
        bts = aux[2*C.NAT:]; aux = aux[:2*C.NAT]
    nidle = 64 - len(aux)
    idle = (sg + kv)[:nidle] if not C.GFIRST else (kv + g3 + sg)[:nidle]
    if C.BTLATE:
        cand = [w for w in idle if w in kv]
        for w, t in zip(cand, bts): sch[w].append(t)
    cnt = [sum(1 for w in idle if w & 7 == x) for x in range(8)]
    nxt = [31]*8
    auxw = []
    for ai in range(0, len(aux), 2):
        x = min(range(8), key=lambda x: cnt[x])
        for j in range(2):
            w = W(x, nxt[x]); nxt[x] -= 1; cnt[x] += 1
            assert nxt[x] >= 22
            sch[w].append(aux[ai + j]); auxw.append(w)
    tiles = {x: [task('PV', (x >> 2)*8 + (x & 1)*4 + (i & 3), ((x >> 1) & 1)*6 + (i >> 2)) for i in range(24)] for x in range(8)}
    left = []
    for x in range(8):
        for loc in range(32):
            w = W(x, loc)
            if w in idle or w in auxw: continue
            if tiles[x]: sch[w].append(tiles[x].pop(0))
            else: left.append(w)
    rem = [t for x in range(8) for t in tiles[x]]
    assert len(rem) == len(left), (len(rem), len(left))
    for w, t in zip(left, rem): sch[w].append(t)
    return sch

def make_schedule2():
    sch = [[] for _ in range(256)]
    W = lambda x, loc: x + 8*loc
    key = lambda w: (w & 7, w)
    for x in range(8):
        for loc in range(18):
            u = x*18 + loc; jg, r = divmod(u, 48); tn, jl = divmod(r, 3)
            sch[W(x, loc)].append(task('T', tn, jg*3 + jl, (2*jl + tn) % 3))
        for loc in range(16):
            sch[W(x, loc)].append(task('S', (x >> 2)*8 + (x & 1)*4 + (loc >> 2), ((x >> 1) & 1)*4 + (loc & 3)))
    def wvo(w):
        blk, ins = divmod(w, 9); bj, bi = divmod(blk, 3); tj = bj*3 + ins//3; ti = bi*3 + ins % 3
        return task('wvo', tj, ti, (ti + tj) % 3)
    kv = []
    for x in range(8):
        for i, loc in enumerate((29, 30, 31)):
            v = x*3 + i
            sch[W(x, loc)].append(task('kvc', v & 1, v >> 1)); kv.append(W(x, loc))
    pool = {x: [W(x, loc) for loc in ((20, 21, 22, 18, 19) if x & 1 else range(18, 23))] for x in range(8)}
    sp = []
    for x in range(8):
        ws_ = [W(x, loc) for loc in range(23, 29)] + [pool[x].pop(0) for _ in range(3)]
        order = [1, 2, 3, 5, 6, 7, 0, 4, 8]
        for w, o in zip(ws_, order): sch[w].append(wvo(x*9 + o))
        if x & 1: sp += ws_[6:]
    rem = [w for x in range(8) for w in pool[x]]
    rem.sort(key=key)
    for i in range(9): sch[rem[i]].append(wvo(72 + i))
    gl = rem[9:]
    for i in range(3): sch[gl[i]].append(task('pf', i))
    gj = 0
    for w in gl[:6]: sch[w].append(task('gate', gj, 1)); gj += 1
    for w in sp: sch[w].append(task('gate', gj, 1)); gj += 1
    assert gj == 18
    aux = [task('AT', i & 1, i >> 1) for i in range(18)] + [task('BT', i & 1, i >> 1) for i in range(18)]
    auxw = []
    for x in range(8): auxw += [W(x, 31), W(x, 30)]
    for x in range(8): auxw += [W(x, 29), W(x, 28)]
    auxw += [W(0, 27), W(0, 26), W(4, 27), W(4, 26)]
    for w, t in zip(auxw, aux): sch[w].append(t)
    lt = [(nt, jh*4 + j) for bb in range(2) for jh in range(2) for nt in (6 + 8*bb, 7 + 8*bb) for j in range(4)]
    l5 = [(5, 0), (5, 1), (13, 0), (13, 1)]
    for w, (nt, jt) in zip(sorted(auxw[:32], key=key), lt): sch[w].append(task('V', nt, jt, (nt + jt) % 3))
    for w, (nt, jt) in zip(auxw[32:], l5): sch[w].append(task('V', nt, jt, (nt + jt) % 3))
    rest = sorted([W(x, loc) for x in range(8) for loc in range(16, 32) if W(x, loc) not in auxw], key=key)
    nts = [0, 1, 2, 3, 4, 5, 8, 9, 10, 11, 12, 13]
    et = [(nts[g*3 + i], jh*4 + j) for g in range(4) for jh in range(2) for i in range(3) for j in range(4)]
    et = [t for t in et if t not in l5]
    assert len(rest) == len(et) == 92
    for w, (nt, jt) in zip(rest, et): sch[w].append(task('V', nt, jt, (nt + jt) % 3))
    skip = set(sp + gl + rem[:9])
    tiles = {x: [task('PV', (x >> 2)*8 + (x & 1)*4 + (i & 3), ((x >> 1) & 1)*6 + (i >> 2)) for i in range(24)] for x in range(8)}
    left = []
    for x in range(8):
        for loc in range(32):
            w = W(x, loc)
            if w in skip or w in auxw: continue
            if tiles[x]: sch[w].append(tiles[x].pop(0))
            else: left.append(w)
    remt = [t for x in range(8) for t in tiles[x]]
    assert len(remt) == len(left), (len(remt), len(left))
    for w, t in zip(left, remt): sch[w].append(t)
    return sch

def build(fn, stampf):
    C.PERSIST, C.STAMP = True, stampf
    k = K()
    k.L.append('.p2align 8'); k.label('code_start')
    for i, f in enumerate((phase_A, phase_B, phase_C, phase_D, phase_E)):
        PH[0] = i
        f(k)
        if i == 0:
            k.label('quit0'); k('s_endpgm')
    sch = make_schedule() if C.SCHED == 1 else make_schedule2()
    k.L.append('.p2align 6')
    k.L.append('.type task_table,@object')
    k.label('task_table')
    for w in range(256):
        val = 0
        assert len(sch[w]) <= 4
        for i, (r, p1, p2, rot) in enumerate(sch[w]):
            val |= (ROLES.index(r) | p1 << 4 | p2 << 9 | rot << 14) << (16*i)
        k.L.append(f'    .quad {hex(val)}')
    k.L.append('.size task_table, 2048')
    k.label('code_end')
    k('s_endpgm')
    json.dump([[t[0] for t in l] for l in sch], open('sched.json', 'w'))
    ref = open('standalone__pixart__diffusion.s.ref').read()
    hdr = ref.split('; Override launch geometry')[0]
    n = 'standalone__pixart__diffusion_kernel'
    hdr += (f'; @launch kernel={n} ' if C.LIST else '; @launch ') + f'grid=(256,1,1) block=(512,1,1) lds={LDS_MAX}\n'
    desc = '.section .rodata,"a"\n.p2align 6\n' + kernel_desc(n, 256, 102)
    hdr += '.amdgcn_target "amdgcn-amd-amdhsa--gfx950"\n.text\n'
    txt = k.text()
    if C.ALIGN:
        import re
        txt = re.sub(r'^(\w+_mm_\d+:)', r'.p2align 6\n\1', txt, flags=re.M)
    open(fn, 'w').write(hdr + txt + desc)

C.ROT = set('wqk tt wvo at bt'.split()); C.WIN = dict(wqk=6, tt=3); C.APRE = False; C.HPRE = True
if __name__ == '__main__':
    build('p4.s', False)
    build('p4_stamped.s', True)
    json.dump(WS, open('ws.json', 'w'))
```

```python
import sys, math, struct, json
from lib import *

D = 1152; NR = 2048
P_X, P_C, P_Y, P_WQKV, P_WO, P_WQC, P_WKVC, P_WOC, P_WMOD, P_OUT, P_DBG, P_WS = range(40, 64, 2)
def al(x): return (x + 4095) // 4096 * 4096
FL = {}
_f = 0
for nm, n in [('MOD', 72), ('GATE', 18), ('H', 64), ('WQK', 108), ('T', 144), ('WVO', 81), ('KVC', 24), ('P', 128), ('V', 128),
              ('X1', 192), ('AT', 36), ('BT', 18)]:
    FL[nm] = _f; _f += n
NFLAG = 1024
assert _f <= NFLAG
WS = {}
_o = 0
for nm, sz in [('FLAG', NFLAG*128), ('MODP', 2*2*2304*4), ('GATE', 2*1152*4), ('ST', 64*8*256), ('H', NR*D*2), ('WQK', D*D*2), ('WVO', D*D*2),
               ('T', NR*D*2), ('VT', NR*D*2), ('P', 2*1024*1024*2), ('KVC', 72*10*1024), ('AT', 36*10*1024), ('BT', 2*3*72*1024),
               ('X1', NR*D*2)]:
    WS[nm] = (_o, sz); _o = al(_o + sz)
WS['X1'] = WS['T']
ST = ' sc1'
CSC = (D ** -0.5) * math.log2(math.e)
def f32(x): return '0x%08x' % struct.unpack('<I', struct.pack('<f', x))[0]
LDS_MAX = 163840
L_CNT = LDS_MAX - 64

class Cfg:
    ROT = set('wqk tt wvo kvc ss vv pv at bt'.split())
    APRE = False
    SKIP = set()
    WQK_NS = 5
    WQK_NPRE = 3
    STAMP = False
    DBGT = False
    TLBW = 0
    HPRE = True
    PPOLL = False
    WIN = {}
    NAT = 9
    VMAP = 1
    NBV = True
    SIDE = True
    GN0 = 18
    GPLAN = 0
    MPF = False
    HBAL = 2
    PFG = True
    CT = 0
    LAG = 2
    XF = 6
    BT0 = 0
    ECHK = 1
    ESLP = 4
    EPRE = False
    PRIO = None
    NPRE = 3
    ALIGN = False
    XLATE = False
    HPF2 = 'v'
    HPF2N = 11
    GFIRST = True
    WBL2 = False
    SPK = True
    BT1 = 20
    RSG = True
    PSLEEP = 3
    BTLATE = False
    PKMUL = 0
    SCHED = 1
    VM = [(0, 0x3f3f), (12, 0xc0c0)]
    KVPF = 0
    TPF = True
    WVOPF = True
    NS = dict(wqk=4, tt=3, wvo=4, ss=3, vv=3, pv=4, at=4, bt=4, kvc=4)
    LDX = ' sc1'
    OUTST = ' sc1'
    LIST = True
    PERSIST = False
C = Cfg()
STAMP_OFF = 128 << 20
PH = [0]
NAMES = ['pa_kernel', 'pb_kernel', 'pc_kernel', 'pd_kernel', 'pe_kernel']
VL = 0; VT = 2; VA = 4; VACC = 16
S_ROT = 74
def R(name): return S_ROT if name in C.ROT else None
def mod_const(k, s, m, maxv):
    div_const(k, S_T0, s, m, maxv)
    k(f's_mul_i32 s{S_T0}, s{S_T0}, {m}')
    k(f's_sub_u32 s{s}, s{s}, s{S_T0}')
def LD(): return C.LDX if C.PERSIST else ''
def Wn(name): return C.WIN.get(name, 0)
def rot_from(k, name, s_sum, n_full, maxv):
    w = Wn(name)
    if w:
        mod_const(k, s_sum, w, maxv)
    else:
        mod_const(k, s_sum, n_full, maxv)
        k(f's_mul_i32 s{s_sum}, s{s_sum}, {18 // n_full}')


def stamp(k, i):
    if C.STAMP: k(f's_memrealtime s[{86+2*i}:{87+2*i}]')
def cstamp(k, i):
    if C.STAMP: k(f's_memtime s[{86+2*i}:{87+2*i}]')
def stamp_begin(k):
    if C.STAMP: k('s_memrealtime s[98:99]\n' + '\n'.join(f's_mov_b32 s{86+2*i}, 0' for i in range(6)))

def phase_exit(k, drain=True):
    p = PH[0]
    k('s_mov_b64 exec, -1')
    if C.STAMP:
        if drain: k('s_waitcnt vmcnt(0)')
        k('s_memrealtime s[100:101]')
        k(f's_lshl_b32 s{S_T0}, s2, 8')
        k(f's_lshl_b32 s{S_T1}, s{S_WAVE}, 5')
        k(f's_add_u32 s{S_T0}, s{S_T0}, s{S_T1}')
        k(f's_add_u32 s{S_T0}, s{S_T0}, {STAMP_OFF}')
        k(f's_lshl_b32 s{S_T1}, s80, 16')
        k(f's_add_u32 s{S_T0}, s{S_T0}, s{S_T1}')
        k('s_waitcnt lgkmcnt(0)')
        k(f'v_mov_b32 v1, s{S_T0}\nv_mov_b32 v4, s98\nv_mov_b32 v5, s100')
        for i in range(6): k(f'v_mov_b32 v{6+i}, s{86+2*i}')
        k('s_mov_b64 exec, 1')
        k('global_store_dwordx4 v1, v[4:7], s[62:63]')
        k('global_store_dwordx4 v1, v[8:11], s[62:63] offset:16')
        k('s_mov_b64 exec, -1')
        k('s_nop 1')
    if p < 4:
        k('s_branch next_task')
    else:
        k('s_endpgm')

def ws_srd(k, srd, nm):
    make_srd(k, srd, P_WS, WS[nm][1], WS[nm][0])

def kernel_entry(k):
    name = 'standalone__pixart__diffusion_kernel'
    kernel_header(k, name)
    k('s_getpc_b64 s[76:77]')
    k('s_load_dwordx16 s[40:55], s[0:1], 0')
    k('s_load_dwordx8 s[56:63], s[0:1], 64')
    k('s_lshr_b32 s65, s2, 3')
    k('s_lshl_b32 s78, s65, 11')
    k('v_lshrrev_b32 v1, 6, v0')
    k('v_and_b32 v2, 1, v0')
    k('v_lshl_add_u32 v2, v1, 1, v2')
    k('v_lshl_add_u32 v2, v2, 7, s78')
    k('v_min_u32 v2, code_end - code_start - 8, v2')
    k('s_mov_b64 exec, 3')
    k('global_load_dword v15, v2, s[76:77]')
    k('s_mov_b64 exec, -1')
    stamp_begin(k)
    k('s_cmp_ge_u32 s2, 256')
    k('s_cbranch_scc1 quit0')
    k('v_and_b32 v0, 63, v0')
    k(f'v_readfirstlane_b32 s{S_WAVE}, v1')
    k('s_and_b32 s64, s2, 7')
    k('s_mov_b32 s80, 0')
    k('s_mov_b32 s81, 0')
    if C.PRIO:
        k(f's_cmp_ge_u32 s{S_WAVE}, 4')
        k('s_cbranch_scc1 prio_l' if C.PRIO == 'c' else 's_cbranch_scc0 prio_l')
        k('s_setprio 2')
        k.label('prio_l')
def args_ready(k):
    if PH[0] == 0:
        k('s_waitcnt lgkmcnt(0)')
        l = k.newlabel('tt_pc')
        k('s_getpc_b64 s[0:1]')
        k.label(l)
        k('s_lshl_b32 s85, s2, 3')
        k(f's_add_u32 s85, s85, task_table - {l}')
        k('s_load_dwordx2 s[0:1], s[0:1], s85')
        ws_srd(k, SRD_F, 'FLAG')
ROLES = ['E', 'T', 'wvo', 'kvc', 'gate', 'S', 'V', 'PV', 'AT', 'BT', 'pf']
def code_touch(k, nl=2):
    l = k.newlabel('ct')
    k(f's_getpc_b64 s[{S_T0}:{S_T0+1}]' if S_T0 % 2 == 0 else 's_getpc_b64 s[78:79]')
    k.label(l)
    k(f's_sub_u32 s78, s78, {l} - code_start')
    k('s_subb_u32 s79, s79, 0')
    k(f's_lshl_b32 s{S_T0}, s65, 11')
    if nl == 2:
        k(f's_lshl_b32 s{S_T1}, s{S_WAVE}, 8')
        k(f's_add_u32 s{S_T0}, s{S_T0}, s{S_T1}')
    k(f'v_lshl_add_u32 v13, v{VL}, 7, s{S_T0}')
    k('v_min_u32 v13, code_end - code_start - 4, v13')
    k(f's_mov_b64 exec, {hex((1 << nl) - 1)}')
    k('global_load_dword v11, v13, s[78:79]')
    k('s_mov_b64 exec, -1')

def dispatcher(k):
    k.label('next_task')
    k('s_waitcnt lgkmcnt(0)')
    k('s_add_u32 s80, s80, 1')
    stamp_begin(k)
    if C.CT >= 1: code_touch(k)
    k('s_and_b32 s66, s0, 15')
    k('s_bfe_u32 s67, s0, 0x50004')
    k('s_bfe_u32 s68, s0, 0x50009')
    k('s_bfe_u32 s74, s0, 0x2000e')
    k('s_lshr_b64 s[0:1], s[0:1], 16')
    for i in (1, 5, 7, 6, 2, 3, 4, 8, 9, 10):
        k(f's_cmp_eq_u32 s66, {i}')
        k(f's_cbranch_scc1 role_{ROLES[i]}')
    k('s_branch role_E')

def div_const(k, dst, src, d, maxv):
    for sh in range(4, 20):
        m = -(-(1 << sh) // d)
        if all((v*m) >> sh == v // d for v in range(maxv+1)):
            k(f's_mul_i32 s{dst}, s{src}, {m}')
            k(f's_lshr_b32 s{dst}, s{dst}, {sh}')
            return
    raise Exception('no magic')

SPIN = 0x20000
def poll(k, s_line, n, vt=252, force=False, mask=None):
    if not (C.PERSIST or force): return
    lp, done = k.newlabel('poll'), k.newlabel('polled')
    k(f'v_min_u32 v{vt}, {n-1}, v{VL}')
    k(f'v_lshlrev_b32 v{vt}, 7, v{vt}')
    k(f's_lshl_b32 s{S_T0}, s{s_line}, 7')
    k(f's_mov_b32 s{S_CNT}, {SPIN}')
    if mask: k(f's_mov_b64 exec, {hex(mask)}')
    elif n < 64: k(f's_mov_b64 exec, {hex((1 << n) - 1)}' if n <= 31 else f's_mov_b32 exec_hi, {hex((1 << (n-32)) - 1)}')
    if C.PPOLL:
        ld = lambda r: k(f'buffer_load_dword v{r}, v{vt}, {sr(SRD_F,4)}, s{S_T0} offen sc1')
        ld(vt+1)
        k('s_waitcnt vmcnt(0)')
        k(f'v_cmp_ne_u32 vcc, 1, v{vt+1}')
        k('s_nop 0')
        k('s_cmp_eq_u64 vcc, 0')
        k(f's_cbranch_scc1 {done}')
        ld(vt+1); k('s_sleep 2'); ld(vt+2); k('s_sleep 2')
        k.label(lp)
        for r in (0, 1, 2):
            ld(vt+1+(r+2) % 3)
            k('s_waitcnt vmcnt(2)')
            k(f'v_cmp_ne_u32 vcc, 1, v{vt+1+r}')
            k('s_sleep 1')
            k('s_cmp_eq_u64 vcc, 0')
            k(f's_cbranch_scc1 {done}')
        k(f's_sub_u32 s{S_CNT}, s{S_CNT}, 1')
        k(f's_cmp_lg_u32 s{S_CNT}, 0')
        k(f's_cbranch_scc1 {lp}')
    else:
        k.label(lp)
        k(f'buffer_load_dword v{vt+1}, v{vt}, {sr(SRD_F,4)}, s{S_T0} offen sc1')
        k(f's_sub_u32 s{S_CNT}, s{S_CNT}, 1')
        k('s_waitcnt vmcnt(0)')
        k(f'v_cmp_ne_u32 vcc, 1, v{vt+1}')
        k(f's_cmp_eq_u32 s{S_CNT}, 0')
        k(f's_cbranch_scc1 {done}')
        k('s_cmp_eq_u64 vcc, 0')
        k(f's_cbranch_scc1 {done}')
        k(f's_sleep {C.PSLEEP}')
        k(f's_branch {lp}')
    k.label(done)
    k('s_mov_b64 exec, -1')

def wait_init(k, vt=8):
    lp, done = k.newlabel('wi'), k.newlabel('wid')
    k(f'v_min_u32 v{vt}, 11, v{VL}')
    k(f'v_and_b32 v{vt+1}, 1, v{vt}')
    k(f'v_lshlrev_b32 v{vt+1}, 7, v{vt+1}')
    k(f'v_lshl_add_u32 v{vt}, v{vt}, 2, v{vt+1}')
    k(f's_mov_b32 s{S_CNT}, {SPIN}')
    k.label(lp)
    k(f'global_load_dword v{vt+1}, v{vt}, s[{P_DBG}:{P_DBG+1}] sc1')
    k(f's_sub_u32 s{S_CNT}, s{S_CNT}, 1')
    k('s_waitcnt vmcnt(0)')
    k(f'v_cmp_ne_u32 vcc, 1, v{vt+1}')
    k(f's_cmp_eq_u32 s{S_CNT}, 0')
    k(f's_cbranch_scc1 {done}')
    k('s_cmp_eq_u64 vcc, 0')
    k(f's_cbranch_scc1 {done}')
    k('s_sleep 3')
    k(f's_branch {lp}')
    k.label(done)

def set_flag(k, s_line, vt=8):
    k(f's_lshl_b32 s{S_T0}, s{s_line}, 7')
    k(f'v_mov_b32 v{vt}, 0\nv_mov_b32 v{vt+1}, 1')
    k('s_mov_b64 exec, 1')
    k(f'buffer_store_dword v{vt+1}, v{vt}, {sr(SRD_F,4)}, s{S_T0} offen sc1')
    k('s_mov_b64 exec, -1')

def signal(k, s_line, nwaves, vt=8):
    if not C.PERSIST: return
    skip = k.newlabel('sig')
    k('s_mov_b64 exec, -1')
    k(f's_lshl_b32 s{S_T0}, s{s_line}, 7')
    k(f'v_mov_b32 v{vt}, 0\nv_mov_b32 v{vt+1}, 1')
    k(f's_cmp_lg_u32 s{S_WAVE}, 0')
    k('s_waitcnt vmcnt(0)')
    k('s_barrier')
    k(f's_cbranch_scc1 {skip}')
    if C.WBL2: k('buffer_wbl2 sc1\ns_waitcnt vmcnt(0)')
    k('s_mov_b64 exec, 1')
    k(f'buffer_store_dword v{vt+1}, v{vt}, {sr(SRD_F,4)}, s{S_T0} offen sc1')
    k('s_mov_b64 exec, -1')
    k.label(skip)

def signal_lds(k, s_line, nwaves, vt=8):
    skip = k.newlabel('sig')
    k('s_mov_b64 exec, -1')
    k(f's_lshl_b32 s{S_T0}, s{s_line}, 7')
    k(f'v_mov_b32 v{vt}, 0\nv_mov_b32 v{vt+1}, 1\nv_mov_b32 v{vt+2}, {L_CNT}')
    k('s_mov_b64 exec, 1')
    k('s_waitcnt vmcnt(0)')
    k(f'ds_add_rtn_u32 v{vt+3}, v{vt+2}, v{vt+1}')
    k('s_waitcnt lgkmcnt(0)')
    k(f'v_cmp_eq_u32 vcc, {nwaves-1}, v{vt+3}')
    k('s_nop 0')
    k('s_cmp_eq_u64 vcc, 0')
    k(f's_cbranch_scc1 {skip}')
    if C.WBL2: k('buffer_wbl2 sc1\ns_waitcnt vmcnt(0)')
    k(f'buffer_store_dword v{vt+1}, v{vt}, {sr(SRD_F,4)}, s{S_T0} offen sc1')
    k.label(skip)
    k('s_mov_b64 exec, -1')
    stamp(k, 3)
    k('s_barrier')

def q2f_addr(k, v):
    k(f'v_and_b32 v{v}, 15, v{VL}\nv_lshlrev_b32 v{v}, 4, v{v}\nv_lshrrev_b32 v{VT}, 4, v{VL}\nv_lshl_add_u32 v{v}, v{VT}, 2, v{v}')
def f2q_addr(k, v):
    k(f'v_and_b32 v{v}, 3, v{VL}\nv_lshlrev_b32 v{v}, 6, v{v}\nv_and_b32 v{VT}, 0x3c, v{VL}\nv_add_u32 v{v}, v{v}, v{VT}')
def quad_voff(k, v, stride):
    k(f'v_lshrrev_b32 v{v}, 2, v{VL}\ns_mov_b32 s{S_T0}, {stride}\nv_mul_u32_u24 v{v}, s{S_T0}, v{v}\nv_and_b32 v{VT}, 3, v{VL}\nv_lshl_add_u32 v{v}, v{VT}, 4, v{v}')

def prefetch_flat(k, ptr, nbytes, s_worker, nworkers, vdst, maxper=99, srd=SRD_Y, vtmp=1):
    make_srd(k, srd, ptr, nbytes)
    k(f'v_lshlrev_b32 v{vtmp}, 7, v{VL}')
    per = min(maxper, -(-(-(-nbytes // 8192)) // nworkers))
    k(f's_lshl_b32 s{S_T0}, s{s_worker}, 13')
    for i in range(per):
        k(f'buffer_load_dword v{vdst}, v{vtmp}, {sr(srd,4)}, s{S_T0} offen')
        if i + 1 < per: k(f's_add_u32 s{S_T0}, s{S_T0}, {nworkers*8192}')
def prefetch_cols(k, srd, lines_per_row, colbyte, s_worker, nworkers, vdst, v0, v1, stride=6912, limit=None, per_override=None):
    tot = 1152 * lines_per_row
    per = -(-(tot // 64) // nworkers)
    if per_override: per = per_override
    sh = {18: 20, 36: 21}[lines_per_row]
    assert all((n*58255) >> sh == n // lines_per_row for n in range(per*nworkers*64)) and per*nworkers*64*58255 < 2**32
    k(f's_lshl_b32 s{S_T1}, s{s_worker}, 6')
    lend = k.newlabel('pfc')
    for i in range(per):
        if limit and i == per - 1:
            k(f's_cmp_ge_u32 s{S_T1}, {limit*64}')
            k(f's_cbranch_scc1 {lend}')
        k(f'v_add_u32 v{v0}, s{S_T1}, v{VL}')
        k(f's_mov_b32 s{S_T0}, 58255')
        k(f'v_mul_lo_u32 v{v1}, v{v0}, s{S_T0}')
        k(f'v_lshrrev_b32 v{v1}, {sh}, v{v1}')
        k(f's_mov_b32 s{S_T0}, {stride - lines_per_row*128}')
        k(f'v_mul_u32_u24 v{v1}, s{S_T0}, v{v1}')
        k(f'v_lshl_add_u32 v{v0}, v{v0}, 7, v{v1}')
        k(f's_mov_b32 s{S_T0}, {colbyte}')
        k(f'buffer_load_dword v{vdst}, v{v0}, {sr(srd,4)}, s{S_T0} offen')
        if i + 1 < per: k(f's_add_u32 s{S_T1}, s{S_T1}, {nworkers*64}')
    k.label(lend)

VMAX = [0]
LMAX = [0]
def gemm_role(k, g, epilogue, s_flag=None, npre=2, custom_consumer=None, cons_first=None, depA=None, depB=None, end_hookA=None, end_hookB=None, exit_hook=None, midA=None, tail=None, lds_sig=False):
    ll, lb = k.newlabel(g.name + '_loader'), k.newlabel(g.name + '_loaderB')
    npre = C.NPRE
    tailA = tail
    if C.CT >= 2 and tail is None:
        def tailA(k):
            code_touch(k, 16)
            return 1
    k(f's_cmp_ge_u32 s{S_WAVE}, 4')
    k(f's_cbranch_scc1 {ll}')
    if cons_first: cons_first(k)
    k(f's_and_b32 s{S_WB}, s{S_WAVE}, {g.WB-1}')
    k(f's_lshr_b32 s{S_WA}, s{S_WAVE}, {g.WB.bit_length()-1}')
    VF = VACC + g.ma*g.nb*4
    g.VF = VF
    g.VX = VF + 2*(g.ma+g.nb)*4
    g.vmax = g.VX
    if custom_consumer: custom_consumer(k, g)
    else: consumer_body(k, g, VL, VACC, VF, VA, VT, post_bar0=lambda k: (stamp(k, 0), cstamp(k, 4)))
    stamp(k, 1); cstamp(k, 5)
    epilogue(k, g)
    stamp(k, 2)
    if lds_sig: signal_lds(k, s_flag, 4)
    elif s_flag is not None: signal(k, s_flag, 4)
    lx = k.newlabel(g.name + '_exit')
    k.label(lx)
    if exit_hook: exit_hook(k)
    phase_exit(k, drain=not C.PERSIST)
    k.label(ll)
    k(f's_and_b32 s{S_W2}, s{S_WAVE}, 1')
    k(f's_cmp_ge_u32 s{S_WAVE}, 6')
    k(f's_cbranch_scc1 {lb}')
    def wrap(dep):
        def f(k):
            if dep: dep(k)
            stamp(k, 0)
        return f
    loader_body(k, g, g.A, VL, 1, VT, npre=npre, pre_hook=wrap(depA), end_barrier=C.PERSIST, end_hook=end_hookA, mid=midA, tail_hook=tailA)
    k(f's_branch {lx}')
    k.label(lb)
    loader_body(k, g, g.B, VL, 1, VT, npre=npre, pre_hook=wrap(depB), end_barrier=C.PERSIST, end_hook=end_hookB, tail_hook=tail)
    k(f's_branch {lx}')
    VMAX[0] = max(VMAX[0], g.vmax); LMAX[0] = max(LMAX[0], g.lds_bytes)
    assert g.lds_bytes <= L_CNT

def acc(g, a, b): return VACC + (a*g.nb + b)*4

def epi_frag16(rbtot, s_kb0, s_rb0, rowperm=False, npair_max=99):
    def f(k, g):
        npair = min(npair_max, (g.ma + 1) // 2)
        k(f's_mul_i32 s{S_T0}, s{S_WA}, {g.ma//2}')
        k(f's_add_u32 s{S_T0}, s{S_T0}, s{s_kb0}')
        k(f's_mul_i32 s{S_T0}, s{S_T0}, {rbtot}')
        k(f's_mul_i32 s{S_T1}, s{S_WB}, {g.nbstep}')
        k(f's_add_u32 s{S_T0}, s{S_T0}, s{S_T1}')
        k(f's_add_u32 s{S_T0}, s{S_T0}, s{s_rb0}')
        k(f's_lshl_b32 s{S_OBASE}, s{S_T0}, 10')
        if rowperm:
            assert g.nb % 2 == 0
            k(f'v_bfe_u32 v{VT}, v{VL}, 2, 1\nv_lshlrev_b32 v1, 10, v{VT}\nv_bfe_u32 v{VT}, v{VL}, 3, 1\nv_lshl_add_u32 v1, v{VT}, 6, v1')
            k(f'v_and_b32 v{VT}, 0x33, v{VL}\nv_lshl_add_u32 v1, v{VT}, 4, v1')
        else:
            k(f'v_lshlrev_b32 v1, 4, v{VL}')
        k('s_nop 1')
        t = g.VF
        for ap in range(npair):
            for b in range(g.nb):
                c0 = acc(g, 2*ap, b)
                k(f'v_cvt_pk_bf16_f32 v{t}, v{c0}, v{c0+1}')
                k(f'v_cvt_pk_bf16_f32 v{t+1}, v{c0+2}, v{c0+3}')
                if 2*ap+1 < g.ma:
                    c1 = acc(g, 2*ap+1, b)
                    k(f'v_cvt_pk_bf16_f32 v{t+2}, v{c1}, v{c1+1}')
                    k(f'v_cvt_pk_bf16_f32 v{t+3}, v{c1+2}, v{c1+3}')
                else:
                    k(f'v_mov_b32 v{t+2}, 0\nv_mov_b32 v{t+3}, 0')
                off = (b & ~1)*1024 + (b & 1)*128 if rowperm else b*1024
                hi, lo = off // 4096 * 4096, off % 4096
                k(f's_add_u32 s{S_T0}, s{S_OBASE}, {ap*rbtot*1024 + hi}')
                k(f'buffer_store_dwordx4 {vr(t,4)}, v1, {sr(SRD_O,4)}, s{S_T0} offen offset:{lo}{ST}')
                t += 4
        g.vmax = max(g.vmax, t)
    return f

def dep(*items):
    def f(k):
        for it in items:
            (s, mul, const, n), mask = it[:4], (it[4] if len(it) > 4 else None)
            if not C.PERSIST: continue
            if s is None: k(f's_mov_b32 s85, {const}')
            else:
                k(f's_mul_i32 s85, s{s}, {mul}')
                k(f's_add_u32 s85, s85, {const}')
            poll(k, 85, n, mask=mask)
    return f

def gemv_job(k, n, tag, s_goff, s_ldsrow, finish, n0=6):
    make_srd(k, SRD_A, P_WMOD, D*6*D*2)
    make_srd(k, SRD_B, P_C, 2*D*2)
    L_SILU, L_RED = 0, 9216
    VW, VS, VAC, VU, VC = 16, 88, 124, 140, 148
    k(f's_lshl_b32 s{S_T0}, s{S_WAVE}, 10')
    k(f'v_lshl_add_u32 v3, v{VL}, 4, s{S_T0}')
    k(f'buffer_load_dwordx4 {vr(VC,4)}, v3, {sr(SRD_B,4)}, 0 offen')
    k(f's_lshl_b32 s{S_T0}, s{S_WAVE}, 3')
    k(f'v_lshrrev_b32 v4, 3, v{VL}')
    k(f'v_add_u32 v4, s{S_T0}, v4')
    k(f'v_and_b32 v5, 7, v{VL}')
    k('v_lshlrev_b32 v5, 4, v5')
    k(f's_mov_b32 s{S_T0}, 13824')
    k(f'v_mad_u32_u24 v5, v4, s{S_T0}, v5')
    def issue_w(i0, i1):
        for i in range(i0, i1):
            if i: k(f's_add_u32 s{s_goff}, s{s_goff}, {64*13824}')
            k(f'buffer_load_dwordx4 {vr(VW+4*i,4)}, v5, {sr(SRD_A,4)}, s{s_goff} offen')
    issue_w(0, n0)
    k('v_lshlrev_b32 v4, 2, v4')
    if s_ldsrow is not None: k(f'v_add_u32 v4, s{s_ldsrow}, v4')
    k(f's_waitcnt vmcnt({n0})')
    for j in range(4):
        k(f'v_lshlrev_b32 v{VC+4+2*j}, 16, v{VC+j}')
        k(f'v_and_b32 v{VC+5+2*j}, 0xffff0000, v{VC+j}')
    for j in range(8): k(f'v_mul_f32 v{VU+j}, {f32(-math.log2(math.e))}, v{VC+4+j}')
    for j in range(8): k(f'v_exp_f32 v{VU+j}, v{VU+j}')
    for j in range(8): k(f'v_add_f32 v{VU+j}, 1.0, v{VU+j}')
    for j in range(8): k(f'v_rcp_f32 v{VU+j}, v{VU+j}')
    for j in range(8): k(f'v_mul_f32 v{VC+4+j}, v{VU+j}, v{VC+4+j}')
    k('v_lshlrev_b32 v8, 1, v3')
    k('v_cmp_gt_u32 vcc, 9216, v8')
    k('s_mov_b64 exec, vcc')
    k(f'ds_write_b128 v8, {vr(VC+4,4)} offset:{L_SILU}')
    k(f'ds_write_b128 v8, {vr(VC+8,4)} offset:{L_SILU+16}')
    k('s_mov_b64 exec, -1')
    k('s_waitcnt lgkmcnt(0)')
    k('s_barrier')
    stamp(k, 0)
    for i in range(n):
        k(f'ds_read2st64_b32 {vr(VS+2*i,2)}, v4 offset0:{i} offset1:{i+18}')
    issue_w(n0, n)
    k(f'v_bfe_u32 v6, v{VL}, 1, 2\nv_lshlrev_b32 v6, 7, v6\nv_lshrrev_b32 v7, 3, v{VL}\nv_lshl_add_u32 v6, v7, 4, v6\nv_and_b32 v7, 1, v{VL}\nv_lshl_add_u32 v6, v7, 3, v6')
    k(f'v_lshrrev_b32 v7, 4, v{VL}\nv_lshlrev_b32 v7, 7, v7\nv_and_b32 v9, 7, v{VL}\nv_lshl_add_u32 v7, v9, 4, v7')
    k(f's_lshl_b32 s{S_T0}, s{S_WAVE}, 9')
    k(f'v_add_u32 v7, s{S_T0}, v7')
    k(f'v_lshlrev_b32 v9, 2, v{VL}')
    for j in range(16): k(f'v_mov_b32 v{VAC+j}, 0')
    k('s_waitcnt lgkmcnt(0)')
    for i in range(n):
        k(f's_waitcnt vmcnt({n - 1 - i})')
        for j in range(4):
            k(f'v_lshlrev_b32 v{VU+2*j}, 16, v{VW+4*i+j}')
            k(f'v_and_b32 v{VU+2*j+1}, 0xffff0000, v{VW+4*i+j}')
        for j in range(4):
            k(f'v_pk_fma_f32 {vr(VAC+4*j,2)}, {vr(VS+2*i,2)}, {vr(VU+2*j,2)}, {vr(VAC+4*j,2)} op_sel:[0,0,0] op_sel_hi:[1,0,1]')
            k(f'v_pk_fma_f32 {vr(VAC+4*j+2,2)}, {vr(VS+2*i,2)}, {vr(VU+2*j,2)}, {vr(VAC+4*j+2,2)} op_sel:[0,1,0] op_sel_hi:[1,1,1]')
    stamp(k, 1)
    k('s_nop 1')
    for j in range(8): k(f'v_permlane32_swap_b32 v{VAC+j}, v{VAC+8+j}')
    for j in range(8): k(f'v_add_f32 v{VAC+j}, v{VAC+j}, v{VAC+8+j}')
    k('s_nop 1')
    for j in range(4): k(f'v_permlane16_swap_b32 v{VAC+j}, v{VAC+4+j}')
    for j in range(4): k(f'v_add_f32 v{VAC+4+j}, v{VAC+j}, v{VAC+4+j}')
    k('s_nop 1')
    for j in range(4): k(f'v_add_f32_dpp v{VAC+j}, v{VAC+4+j}, v{VAC+4+j} row_ror:8 row_mask:0xf bank_mask:0xf')
    k(f'ds_write_b128 v7, {vr(VAC,4)} offset:{L_RED}')
    k('s_waitcnt lgkmcnt(0)')
    k('s_barrier')
    k(f's_cmp_lg_u32 s{S_WAVE}, 0')
    k(f's_cbranch_scc1 gv_nored{tag}')
    for w in range(8): k(f'ds_read_b64 {vr(VAC+2*w,2)}, v6 offset:{L_RED + 512*w}')
    k('s_waitcnt lgkmcnt(0)')
    for st in (8, 4, 2):
        for j in range(0, st, 2):
            k(f'v_pk_add_f32 {vr(VAC+j,2)}, {vr(VAC+j,2)}, {vr(VAC+st+j,2)}')
    stamp(k, 2)
    finish(k, VAC)
    stamp(k, 3)
    k.label(f'gv_nored{tag}')
    k('s_barrier')
    VMAX[0] = max(VMAX[0], 160); LMAX[0] = max(LMAX[0], 16384)

def gate_job(k, s_idx):
    k(f's_lshl_b32 s{S_G}, s{s_idx}, 7')
    k(f's_add_u32 s{S_G}, s{S_G}, 4608')
    def fin(k, VAC):
        ws_srd(k, SRD_O, 'GATE')
        k(f's_lshl_b32 s{S_T1}, s{s_idx}, 8')
        k(f's_add_u32 s{S_T2}, s{S_T1}, 4608')
        k(f'buffer_store_dword v{VAC}, v9, {sr(SRD_O,4)}, s{S_T1} offen sc1')
        k(f'buffer_store_dword v{VAC+1}, v9, {sr(SRD_O,4)}, s{S_T2} offen sc1')
        if C.PERSIST:
            wait_init(k, 12)
            k(f's_add_u32 s85, s{s_idx}, {FL["GATE"]}')
            set_flag(k, 85, 12)
    gemv_job(k, 18, 'g', S_G, None, fin, n0=C.GN0)

def phase_A(k):
    kernel_entry(k)
    k('s_cmp_ge_u32 s65, 23')
    k('s_cbranch_scc1 pa_mod')
    k('s_cmp_lt_u32 s65, 8')
    k('s_cbranch_scc1 pa_h')
    k('s_and_b32 s66, s64, 1')
    k('s_lshr_b32 s67, s64, 1')
    k('s_sub_u32 s68, 5, s66')
    k('s_mul_i32 s70, s68, 3')
    k('s_sub_u32 s69, s65, 8')
    k('s_cmp_ge_u32 s69, s70')
    k('s_cbranch_scc1 pa_spare')
    div_const(k, 71, 69, 5, 31)
    k('s_lshr_b32 s72, s69, 2')
    k('s_cmp_eq_u32 s66, 0')
    k('s_cselect_b32 s71, s71, s72')
    k('s_mul_i32 s72, s71, s68')
    k('s_sub_u32 s72, s69, s72')
    k('s_lshl_b32 s74, s71, 1')
    k('s_add_u32 s74, s74, s72')
    rot_from(k, 'wqk', 74, 6, 16)
    k('s_mul_i32 s73, s66, 5')
    k('s_add_u32 s72, s72, s73')
    k('s_mul_i32 s73, s67, 3')
    k('s_add_u32 s71, s71, s73')
    k(f's_mul_i32 s{S_ABASE}, s72, {128*6912}')
    k(f's_mul_i32 s{S_BBASE}, s71, {96*6912}')
    k(f's_add_u32 s{S_BBASE}, s{S_BBASE}, {D*2}')
    k('s_lshl_b32 s75, s72, 2')
    k('s_mul_i32 s76, s71, 6')
    k('s_mul_i32 s77, s71, 9')
    k('s_add_u32 s77, s77, s72')
    k(f's_add_u32 s78, s77, {FL["WQK"]}')
    args_ready(k)
    make_srd(k, SRD_A, P_WQKV, D*3*D*2)
    ws_srd(k, SRD_O, 'WQK')
    g = Gemm('wqk', Opnd('row', 8, SRD_A, S_ABASE, stride=6912, perm=True), Opnd('row', 6, SRD_A, S_BBASE, stride=6912, perm=True), 2, 2, 18, C.NS['wqk'], rot=R('wqk'), win=Wn('wqk'))
    def a_pre(k):
        k(f's_mul_i32 s79, s{S_WAVE}, 108')
        k('s_add_u32 s79, s79, s77')
        k('s_add_u32 s79, s79, 512')
        prefetch_cols(k, SRD_A, 36, 0, 79, 432, 12, 1, 2, limit=648, per_override=1)
    def a_end(k):
        if C.PERSIST: wait_init(k)
    gemm_role(k, g, epi_frag16(72, 75, 76), s_flag=78, npre=2, cons_first=(a_pre if C.HBAL == 2 else None), end_hookA=a_end)
    k.label('pa_mod')
    if 'mod' in C.SKIP: k('s_endpgm')
    k('s_mul_i32 s73, s64, 9')
    k('s_add_u32 s73, s73, s65')
    k('s_sub_u32 s73, s73, 23')
    k('s_cmp_ge_u32 s73, 36')
    k('s_cselect_b32 s74, 1, 0')
    k('s_mul_i32 s75, s74, 36')
    k('s_sub_u32 s75, s73, s75')
    k(f's_mul_i32 s{S_G}, s74, {576*13824}')
    k(f's_lshl_b32 s{S_T0}, s75, 7')
    k(f's_add_u32 s{S_G}, s{S_G}, s{S_T0}')
    k('s_mul_i32 s76, s74, 2304')
    args_ready(k)
    def fin(k, VAC):
        ws_srd(k, SRD_O, 'MODP')
        k('s_cmp_ge_u32 s75, 18')
        k(f's_cselect_b32 s{S_T2}, 1.0, 0')
        k('s_cmp_eq_u32 s74, 0')
        k(f's_cselect_b32 s{S_T2}, s{S_T2}, 0')
        k(f'v_add_f32 v{VAC}, s{S_T2}, v{VAC}\nv_add_f32 v{VAC+1}, s{S_T2}, v{VAC+1}')
        k(f's_mul_i32 s{S_T1}, s74, 18432')
        k(f's_lshl_b32 s{S_T0}, s75, 8')
        k(f's_add_u32 s{S_T1}, s{S_T1}, s{S_T0}')
        k(f's_add_u32 s{S_T2}, s{S_T1}, 9216')
        k(f'buffer_store_dword v{VAC}, v9, {sr(SRD_O,4)}, s{S_T1} offen sc1')
        k(f'buffer_store_dword v{VAC+1}, v9, {sr(SRD_O,4)}, s{S_T2} offen sc1')
        wait_init(k, 12)
        k(f's_add_u32 s85, s73, {FL["MOD"]}')
        set_flag(k, 85, 12)
    gemv_job(k, 9, 'm', S_G, 76, fin)
    if C.MPF:
        k('s_lshl_b32 s79, s73, 3')
        k(f's_add_u32 s79, s79, s{S_WAVE}')
        k('s_add_u32 s79, s79, 72')
        prefetch_flat(k, P_WKVC, D*2*D*2, 79, 648, 14, vtmp=8)
    phase_exit(k, drain=False)
    k.label('pa_spare')
    k('s_mul_i32 s73, s67, 3')
    k('s_add_u32 s73, s73, s65')
    k('s_sub_u32 s73, s73, 20')
    args_ready(k)
    k(f'v_lshlrev_b32 v8, 4, v{VL}')
    k('v_mov_b32 v4, 0\nv_mov_b32 v5, 0\nv_mov_b32 v6, 0\nv_mov_b32 v7, 0')
    k('s_lshl_b32 s79, s73, 3')
    k(f's_add_u32 s79, s79, s{S_WAVE}')
    k(f's_lshl_b32 s{S_T0}, s79, 10')
    k(f'buffer_store_dwordx4 v[4:7], v8, {sr(SRD_F,4)}, s{S_T0} offen sc1')
    k(f's_add_u32 s{S_T0}, s{S_T0}, {96*1024}')
    k(f'buffer_store_dwordx4 v[4:7], v8, {sr(SRD_F,4)}, s{S_T0} offen sc1')
    k('s_waitcnt vmcnt(0)')
    k('s_barrier')
    k(f's_cmp_lg_u32 s{S_WAVE}, 0')
    k('s_cbranch_scc1 pa_noinit')
    k(f's_and_b32 s{S_T0}, s73, 1')
    k(f's_lshl_b32 s{S_T0}, s{S_T0}, 7')
    k(f's_lshl_b32 s{S_T1}, s73, 2')
    k(f's_add_u32 s{S_T0}, s{S_T0}, s{S_T1}')
    k(f'v_mov_b32 v8, 1\nv_mov_b32 v9, s{S_T0}')
    k('s_mov_b64 exec, 1')
    k(f'global_store_dword v9, v8, s[{P_DBG}:{P_DBG+1}] sc1')
    k('s_mov_b64 exec, -1')
    k.label('pa_noinit')
    k('s_lshl_b32 s79, s73, 3')
    k(f's_add_u32 s79, s79, s{S_WAVE}')
    if C.HBAL == 1:
        k('s_add_u32 s78, s79, 512')
        make_srd(k, SRD_Y, P_WQKV, D*3*D*2)
        prefetch_cols(k, SRD_Y, 36, 0, 78, 96, 13, 8, 9, limit=648, per_override=2)
    k('s_lshr_b32 s78, s79, 1')
    k('s_bitcmp1_b32 s79, 0')
    k('s_cbranch_scc1 pa_noy')
    prefetch_flat(k, P_Y, 2*77*D*2, 78, 48, 14, vtmp=8)
    k.label('pa_noy')
    phase_exit(k, drain=False)
    k.label('pa_h')
    if 'h' in C.SKIP: k('s_endpgm')
    k('s_lshl_b32 s73, s64, 3')
    k('s_add_u32 s73, s73, s65')
    args_ready(k)
    def h_pf(k):
        if not C.PERSIST: return
        k('s_lshl_b32 s79, s73, 3')
        k(f's_add_u32 s79, s79, s{S_WAVE}')
        prefetch_flat(k, P_WKVC, D*2*D*2, 79, 512, 14, maxper=1, vtmp=8)
        l1 = k.newlabel('hpf')
        k('s_cmp_ge_u32 s79, 180')
        k(f's_cbranch_scc1 {l1}')
        k('s_cmp_ge_u32 s79, 136')
        k(f's_cselect_b32 s{SRD_Y}, s{P_Y}, s{P_WKVC}')
        k(f's_cselect_b32 s{SRD_Y+1}, s{P_Y+1}, s{P_WKVC+1}')
        k(f's_mov_b32 s{S_T1}, {D*2*D*2}')
        k(f's_cselect_b32 s{SRD_Y+2}, {2*77*D*2}, s{S_T1}')
        k(f's_mov_b32 s{S_T1}, {512*8192}')
        k(f's_cselect_b32 s{S_T1}, {(-136*8192) & 0xffffffff}, s{S_T1}')
        k(f's_add_u32 s{S_T0}, s{S_T0}, s{S_T1}')
        k(f'buffer_load_dword v14, v8, {sr(SRD_Y,4)}, s{S_T0} offen')
        k.label(l1)
    L_STAT, L_MOD = 0, 2048
    VN, VM, VXD = 16, 112, 208
    if C.HPRE:
        k('s_lshl_b32 s79, s73, 3')
        k(f's_add_u32 s79, s79, s{S_WAVE}')
        make_srd(k, SRD_Y, P_WQKV, D*3*D*2)
        prefetch_cols(k, SRD_Y, 36, 0, 79, 512, 13, 8, 9, limit=(512 if C.HBAL else 648))
    k(f's_cmp_ge_u32 s{S_WAVE}, 6')
    k('s_cbranch_scc1 pa_hhelp')
    make_srd(k, SRD_X, P_X, NR*D*2)
    k(f'v_lshrrev_b32 v6, 3, v{VL}\ns_mov_b32 s{S_T0}, 2304\nv_mul_u32_u24 v6, s{S_T0}, v6\nv_and_b32 v7, 7, v{VL}\nv_lshl_add_u32 v6, v7, 4, v6')
    k(f's_mul_i32 s75, s73, {32*2304}')
    k(f's_mul_i32 s76, s{S_WAVE}, 384')
    k('s_add_u32 s75, s75, s76')
    for rg in range(4):
        for sg in range(3):
            k(f'buffer_load_dwordx4 {vr(VM+(rg*3+sg)*4,4)}, v6, {sr(SRD_X,4)}, s75 offen offset:{128*sg}')
        if rg < 3: k(f's_add_u32 s75, s75, {8*2304}')
    k(f'v_lshlrev_b32 v7, 5, v7\nv_lshrrev_b32 v8, 3, v{VL}\nv_lshl_add_u32 v7, v8, 2, v7')
    k(f's_mov_b32 s77, 0x3f803f80')
    for rg in range(4):
        k(f's_waitcnt vmcnt({9 - 3*rg})')
        for j in range(12): k(f'ds_bpermute_b32 v{VXD+12*rg+j}, v7, v{VM+12*rg+j}')
    stamp(k, 0)
    for rg in range(4):
        k(f'v_mov_b32 v{VN+2*rg}, 0\nv_mov_b32 v{VN+2*rg+1}, 0')
    k('s_waitcnt lgkmcnt(0)')
    for j in range(12):
        for rg in range(4):
            k(f'v_dot2_f32_bf16 v{VN+rg}, v{VXD+12*rg+j}, s77, v{VN+rg}')
            k(f'v_dot2_f32_bf16 v{VN+4+rg}, v{VXD+12*rg+j}, v{VXD+12*rg+j}, v{VN+4+rg}')
    k('s_nop 3')
    for j in range(4): k(f'v_permlane32_swap_b32 v{VN+j}, v{VN+4+j}')
    for j in range(4): k(f'v_add_f32 v{VN+j}, v{VN+j}, v{VN+4+j}')
    k('s_nop 1')
    for j in range(2): k(f'v_permlane16_swap_b32 v{VN+j}, v{VN+2+j}')
    for j in range(2): k(f'v_add_f32 v{VN+2+j}, v{VN+j}, v{VN+2+j}')
    k('s_nop 1')
    for j in range(2): k(f'v_add_f32_dpp v{VN+j}, v{VN+2+j}, v{VN+2+j} row_ror:8 row_mask:0xf bank_mask:0xf')
    k(f'v_and_b32 v9, 7, v{VL}\nv_mul_u32_u24 v9, 192, v9\nv_lshrrev_b32 v10, 4, v{VL}\nv_lshl_add_u32 v10, v10, 3, v9')
    k(f's_lshl_b32 s{S_T0}, s{S_WAVE}, 5')
    k(f'v_add_u32 v10, s{S_T0}, v10')
    k(f'ds_write_b64 v10, {vr(VN,2)} offset:{L_STAT}')
    k('s_waitcnt lgkmcnt(0)')
    k('s_barrier')
    for w in range(6):
        k(f'ds_read_b128 {vr(VM+8*w,4)}, v9 offset:{L_STAT + 32*w}')
        k(f'ds_read_b128 {vr(VM+8*w+4,4)}, v9 offset:{L_STAT + 32*w + 16}')
    k('s_waitcnt lgkmcnt(0)')
    for w in range(1, 6):
        for j in range(0, 8, 2): k(f'v_pk_add_f32 {vr(VM+j,2)}, {vr(VM+j,2)}, {vr(VM+8*w+j,2)}')
    for rg in range(4):
        k(f'v_mul_f32 v{VM+rg}, {f32(1.0/D)}, v{VM+rg}')
        k(f'v_mul_f32 v{VM+4+rg}, {f32(1.0/D)}, v{VM+4+rg}')
        k(f'v_fma_f32 v{VM+4+rg}, -v{VM+rg}, v{VM+rg}, v{VM+4+rg}')
        k(f'v_max_f32 v{VM+4+rg}, 0, v{VM+4+rg}')
        k(f'v_add_f32 v{VM+4+rg}, {f32(1e-5)}, v{VM+4+rg}')
        k(f'v_rsq_f32 v{VM+4+rg}, v{VM+4+rg}')
        k('s_nop 0')
        k(f'v_mul_f32 v{VM+rg}, v{VM+rg}, v{VM+4+rg}')
    for rg in range(4):
        for j in range(12):
            n = VN + 24*rg + 2*j
            k(f'v_lshlrev_b32 v{n}, 16, v{VXD+12*rg+j}')
            k(f'v_and_b32 v{n+1}, 0xffff0000, v{VXD+12*rg+j}')
            k(f'v_fma_f32 v{n}, v{n}, v{VM+4+rg}, -v{VM+rg}')
            k(f'v_fma_f32 v{n+1}, v{n+1}, v{VM+4+rg}, -v{VM+rg}')
    ws_srd(k, SRD_A, 'H')
    k(f'v_lshrrev_b32 v8, 3, v{VL}\nv_lshlrev_b32 v8, 5, v8')
    k(f's_mul_i32 s{S_T0}, s{S_WAVE}, 768')
    k(f'v_add_u32 v8, s{S_T0}, v8')
    k(f'v_lshrrev_b32 v9, 5, v{VL}\nv_lshlrev_b32 v9, 17, v9\nv_bfe_u32 v10, v{VL}, 3, 2\nv_lshl_add_u32 v9, v10, 8, v9\nv_and_b32 v10, 7, v{VL}\nv_lshl_add_u32 v9, v10, 4, v9')
    k(f's_mul_i32 s{S_G}, s{S_WAVE}, {6*128}')
    k('s_lshl_b32 s76, s73, 1')
    k(f's_add_u32 s{S_G}, s{S_G}, s76')
    k(f's_lshl_b32 s{S_G}, s{S_G}, 10')
    stamp(k, 1)
    k('s_barrier')
    stamp(k, 2)
    for sg in range(3):
        m = VM + 32*sg
        for ks in range(2):
            for kind in range(2):
                for h in range(2):
                    k(f'ds_read_b128 {vr(m+16*ks+8*kind+4*h,4)}, v8 offset:{L_MOD + ks*9216 + kind*4608 + sg*256 + 16*h}')
    for sg in range(3):
        m = VM + 32*sg
        k(f's_waitcnt lgkmcnt({min(15, 8*(2-sg))})')
        for j in range(0, 16, 2): k(f'v_pk_add_f32 {vr(m+j,2)}, {vr(m+j,2)}, {vr(m+16+j,2)}')
        k(f's_add_u32 s{S_T0}, s{S_G}, {sg*2*128*1024}')
        for rg in range(4):
            n = VN + 24*rg + 8*sg
            o = VXD + 12*rg + 4*sg
            for j in range(0, 8, 2): k(f'v_pk_fma_f32 {vr(n+j,2)}, {vr(n+j,2)}, {vr(m+8+j,2)}, {vr(m+j,2)}')
            for j in range(4): k(f'v_cvt_pk_bf16_f32 v{o+j}, v{n+2*j}, v{n+2*j+1}')
            k(f'buffer_store_dwordx4 {vr(o,4)}, v9, {sr(SRD_A,4)}, s{S_T0} offen offset:{(rg>>1)*1024 + (rg&1)*128}{ST}')
    stamp(k, 3)
    k(f's_add_u32 s85, s73, {FL["H"]}')
    signal(k, 85, 6, 12)
    k.label('pa_hout')
    phase_exit(k, drain=not C.PERSIST)
    k.label('pa_hhelp')
    k(f's_cmp_eq_u32 s{S_WAVE}, 7')
    k('s_cbranch_scc1 pa_hpoll')
    if C.TLBW:
        sh = C.TLBW
        k(f'v_lshlrev_b32 v8, 3, v{VL}')
        k('v_add_u32 v8, s65, v8')
        k(f'v_lshlrev_b32 v8, {sh}, v8')
        span = 512 << sh
        for ptr, nb in [(P_WS, _o), (P_OUT, NR*D*2), (P_WQKV, D*3*D*2), (P_WO, D*D*2), (P_WQC, D*D*2), (P_WKVC, D*2*D*2), (P_WOC, D*D*2), (P_WMOD, D*6*D*2), (P_Y, 2*77*D*2)]:
            make_srd(k, SRD_Y, ptr, nb)
            for i in range(-(-nb // span)):
                k(f's_mov_b32 s{S_T0}, {i*span}')
                k(f'buffer_load_dword v14, v8, {sr(SRD_Y,4)}, s{S_T0} offen sc1')
    if C.HPF2:
        k('s_waitcnt vmcnt(0)')
        if C.HPF2 == 'v':
            make_srd(k, SRD_Y, P_WQKV, D*3*D*2)
            prefetch_cols(k, SRD_Y, 18, 4608, 73, 64, 13, 8, 9, limit=324)
            prefetch_flat(k, P_WO, D*D*2, 73, 64, 13, vtmp=8)
        else:
            prefetch_flat(k, P_WKVC, D*2*D*2, 73, 64, 13, vtmp=8, maxper=C.HPF2N)
    k.label('pa_hidle')
    k('s_waitcnt lgkmcnt(0)')
    k('s_barrier')
    k('s_barrier')
    if C.PERSIST: k('s_barrier')
    k('s_branch pa_hout')
    k.label('pa_hpoll')
    wait_init(k)
    k('s_barrier')
    k(f'v_min_u32 v8, 35, v{VL}')
    k('v_lshlrev_b32 v8, 7, v8')
    k(f's_mov_b32 s{S_T0}, {FL["MOD"]*128}')
    k(f's_mov_b32 s{S_T1}, {(FL["MOD"]+36)*128}')
    k(f's_mov_b32 s{S_CNT}, {SPIN}')
    k('s_mov_b32 exec_hi, 15')
    k.label('pa_mp')
    k(f'buffer_load_dword v9, v8, {sr(SRD_F,4)}, s{S_T0} offen sc1')
    k(f'buffer_load_dword v10, v8, {sr(SRD_F,4)}, s{S_T1} offen sc1')
    k(f's_sub_u32 s{S_CNT}, s{S_CNT}, 1')
    k('s_waitcnt vmcnt(0)')
    k('v_add_u32 v9, v9, v10')
    k('v_cmp_ne_u32 vcc, 2, v9')
    k(f's_cmp_eq_u32 s{S_CNT}, 0')
    k('s_cbranch_scc1 pa_mpd')
    k('s_cmp_eq_u64 vcc, 0')
    k('s_cbranch_scc1 pa_mpd')
    k('s_sleep 2')
    k('s_branch pa_mp')
    k.label('pa_mpd')
    k('s_mov_b64 exec, -1')
    stamp(k, 0)
    ws_srd(k, SRD_O, 'MODP')
    k(f'v_lshlrev_b32 v8, 4, v{VL}')
    k('s_lshr_b32 s79, s73, 5')
    k('s_mul_i32 s79, s79, 9216')
    for ks in range(2):
        for c in range(9):
            if c % 4 == 0:
                k(f's_mov_b32 m0, {L_MOD + ks*9216 + c*1024}')
                k(f's_add_u32 s{S_T0}, s79, {ks*18432 + c*1024}')
            k(f'buffer_load_dwordx4 v8, {sr(SRD_O,4)}, s{S_T0} offen offset:{(c%4)*1024} sc1 lds')
    k('s_waitcnt vmcnt(0)')
    k('s_barrier')
    if C.PERSIST: k('s_barrier')
    k('s_branch pa_hout')
    VMAX[0] = 256

def phase_B(k):
    dispatcher(k)
    k.label('role_T')
    k('s_mul_i32 s66, s67, 9')
    k('s_add_u32 s66, s66, s68')
    k(f's_lshl_b32 s{S_ABASE}, s68, 13')
    k(f's_lshl_b32 s{S_BBASE}, s67, 13')
    k('s_lshl_b32 s75, s68, 2')
    k('s_lshl_b32 s76, s67, 3')
    k(f's_add_u32 s78, s66, {FL["T"]}')
    k('s_lshl_b32 s69, s68, 2')
    div_const(k, 69, 69, 3, 40)
    args_ready(k)
    ws_srd(k, SRD_A, 'WQK'); ws_srd(k, SRD_B, 'H'); ws_srd(k, SRD_O, 'T')
    g1 = Gemm('tt', Opnd('frag', 8, SRD_A, S_ABASE, rbtot=72, aux=LD()), Opnd('frag', 8, SRD_B, S_BBASE, rbtot=128, aux=LD()), 2, 2, 18, C.NS['tt'], rot=R('tt'), win=Wn('tt'))
    def c_pf(k, s_chunk, n, step):
        k(f's_bitcmp1_b32 s{S_WAVE}, 1')
        k(f's_cselect_b32 s{SRD_Y}, s{P_WQC}, s{P_WOC}')
        k(f's_cselect_b32 s{SRD_Y+1}, s{P_WQC+1}, s{P_WOC+1}')
        k(f's_mov_b32 s{SRD_Y+2}, {D*D*2}')
        k(f's_mov_b32 s{SRD_Y+3}, 0x00020000')
        k(f'v_lshlrev_b32 v8, 7, v{VL}')
        k(f's_lshl_b32 s{S_T0}, s{s_chunk}, 13')
        for i in range(n):
            k(f'buffer_load_dword v14, v8, {sr(SRD_Y,4)}, s{S_T0} offen')
            if i + 1 < n: k(f's_add_u32 s{S_T0}, s{S_T0}, {step*8192}')
    def t_pf(k):
        if not C.TPF: return
        if C.TPF == 'c':
            k('s_lshl_b32 s79, s66, 1')
            k(f's_and_b32 s{S_T1}, s{S_WAVE}, 1')
            k(f's_add_u32 s79, s79, s{S_T1}')
            k('s_add_u32 s79, s79, 36')
            c_pf(k, 79, 1, 0)
            return
        k('s_lshl_b32 s79, s66, 2')
        k(f's_add_u32 s79, s79, s{S_WAVE}')
        k('s_add_u32 s79, s79, 72')
        prefetch_flat(k, P_WKVC, D*2*D*2, 79, 648, 14, vtmp=8)
    gemm_role(k, g1, epi_frag16(128, 75, 76), s_flag=78, cons_first=t_pf, depA=dep((69, 9, FL['WQK'], 18)), depB=dep((67, 4, FL['H'], 4)))
    k.label('role_wvo')
    k('s_mul_i32 s66, s67, 9')
    k('s_add_u32 s66, s66, s68')
    if not Wn('wvo'): k('s_mul_i32 s74, s74, 6')
    k(f's_mul_i32 s{S_ABASE}, s68, {128*6912}')
    k(f's_add_u32 s{S_ABASE}, s{S_ABASE}, {2*D*2}')
    k(f's_lshl_b32 s{S_BBASE}, s67, 8')
    k('s_lshl_b32 s75, s68, 2')
    k('s_lshl_b32 s76, s67, 3')
    k(f's_add_u32 s78, s66, {FL["WVO"]}')
    args_ready(k)
    make_srd(k, SRD_A, P_WQKV, D*3*D*2); make_srd(k, SRD_B, P_WO, D*D*2); ws_srd(k, SRD_O, 'WVO')
    g2 = Gemm('wvo', Opnd('row', 8, SRD_A, S_ABASE, stride=6912, perm=True), Opnd('col', 8, SRD_B, S_BBASE, stride=2304), 2, 2, 18, C.NS['wvo'], rot=R('wvo'), win=Wn('wvo'))
    def wvo_exit(k):
        if not C.PERSIST: return
        k('s_lshl_b32 s79, s66, 2')
        k(f's_and_b32 s{S_T1}, s{S_WAVE}, 3')
        k(f's_add_u32 s79, s79, s{S_T1}')
        k(f's_cmp_ge_u32 s{S_WAVE}, 4')
        k(f's_cselect_b32 s{SRD_Y}, s{P_WQC}, s{P_WOC}')
        k(f's_cselect_b32 s{SRD_Y+1}, s{P_WQC+1}, s{P_WOC+1}')
        k(f's_mov_b32 s{SRD_Y+2}, {D*D*2}')
        k(f's_mov_b32 s{SRD_Y+3}, 0x00020000')
        k(f'v_lshlrev_b32 v8, 7, v{VL}')
        k(f's_lshl_b32 s{S_T0}, s79, 13')
        k(f'buffer_load_dword v14, v8, {sr(SRD_Y,4)}, s{S_T0} offen')
    gemm_role(k, g2, epi_frag16(72, 75, 76, rowperm=True), s_flag=78, exit_hook=(wvo_exit if C.WVOPF == 1 else None), end_hookA=wait_init)
    def kv_pf(k, s_idx):
        k(f's_lshl_b32 s79, s{s_idx}, 3')
        k(f's_add_u32 s79, s79, s{S_WAVE}')
        prefetch_flat(k, P_WKVC, D*2*D*2, 79, 224, 14, vtmp=8, maxper=C.KVPF)
    k.label('role_kvc')
    if C.KVPF:
        k('s_lshl_b32 s66, s68, 1')
        k('s_add_u32 s66, s66, s67')
        kv_pf(k, 66)
    k(f's_mul_i32 s{S_ABASE}, s68, 384')
    k(f's_mul_i32 s{S_BBASE}, s67, {77*2304}')
    k('s_mul_i32 s78, s67, 12')
    k('s_add_u32 s78, s78, s68')
    k(f's_add_u32 s78, s78, {FL["KVC"]}')
    args_ready(k)
    make_srd(k, SRD_A, P_WKVC, D*2*D*2); make_srd(k, SRD_B, P_Y, 2*77*D*2); ws_srd(k, SRD_O, 'KVC')
    g3 = Gemm('kvc', Opnd('col', 12, SRD_A, S_ABASE, stride=4608), Opnd('row', 5, SRD_B, S_BBASE, stride=2304), 4, 1, 18, C.NS['kvc'])
    def epi_kvc(k, g):
        k(f'v_and_b32 v1, 15, v{VL}\nv_lshlrev_b32 v1, 4, v1\nv_lshrrev_b32 v{VT}, 5, v{VL}\nv_lshl_add_u32 v1, v{VT}, 8, v1')
        k(f'v_bfe_u32 v{VT}, v{VL}, 4, 1\nv_lshl_add_u32 v1, v{VT}, 3, v1')
        k('s_mul_i32 s70, s68, 12')
        k(f's_mul_i32 s71, s{S_WA}, 3')
        k('s_add_u32 s70, s70, s71')
        k('s_mul_i32 s72, s67, 5120')
        t = g.VF
        for i in range(3):
            k(f's_add_u32 s71, s70, {i}')
            k(f's_lshr_b32 s{S_T0}, s71, 1')
            k(f's_mul_i32 s{S_T0}, s{S_T0}, 10240')
            k('s_and_b32 s71, s71, 1')
            k('s_lshl_b32 s71, s71, 9')
            k(f's_add_u32 s{S_T0}, s{S_T0}, s71')
            k(f's_add_u32 s{S_T0}, s{S_T0}, s72')
            for b in range(5):
                c0 = acc(g, i, b)
                k(f'v_cvt_pk_bf16_f32 v{t}, v{c0}, v{c0+1}')
                k(f'v_cvt_pk_bf16_f32 v{t+1}, v{c0+2}, v{c0+3}')
                if b == 4: k(f's_add_u32 s{S_T0}, s{S_T0}, 4096')
                k(f'buffer_store_dwordx2 {vr(t,2)}, v1, {sr(SRD_O,4)}, s{S_T0} offen offset:{(b%4)*1024}{ST}')
                t += 2
    gemm_role(k, g3, epi_kvc, s_flag=78, end_hookA=wait_init)
    k.label('role_gate')
    k('s_mov_b32 s73, s67')
    k('s_mov_b32 s72, s68')
    k.label('pb_gate')
    gate_job(k, 73)
    k('s_add_u32 s73, s73, 1')
    k('s_sub_u32 s72, s72, 1')
    k('s_cmp_lg_u32 s72, 0')
    k('s_cbranch_scc1 pb_gate')
    phase_exit(k, drain=False)
    k.label('role_pf')
    if C.TPF == 'c':
        k(f's_and_b32 s79, s{S_WAVE}, 1')
        k(f's_lshr_b32 s78, s{S_WAVE}, 2')
        k('s_lshl_b32 s78, s78, 1')
        k('s_add_u32 s79, s79, s78')
        k('s_lshl_b32 s78, s67, 2')
        k('s_add_u32 s79, s79, s78')
        c_pf(k, 79, 3, 12)
    elif C.TPF or C.MPF:
        k('s_sub_u32 s79, s67, 24')
        k('s_lshl_b32 s79, s79, 3')
        k(f's_add_u32 s79, s79, s{S_WAVE}')
        prefetch_flat(k, P_WKVC, D*2*D*2, 79, 32, 14, vtmp=8, maxper=3)
    else: kv_pf(k, 67)
    phase_exit(k, drain=False)

L_XR, L_GT = 131072, 131072 + 24576
def side_sub(k):
    k.label('side_sub')
    k('s_and_b32 s85, s0, 15')
    k(f's_cmp_lg_u32 s85, {ROLES.index("PV")}')
    k('s_cbranch_scc1 side_ret')
    k('s_bfe_u32 s76, s0, 0x50004')
    k('s_bfe_u32 s77, s0, 0x50009')
    make_srd(k, SRD_Y, P_X, NR*D*2)
    quad_voff(k, 1, 2304)
    k(f's_sub_u32 s75, s{S_WAVE}, 4')
    k(f's_lshl_b32 s{S_T0}, s76, 2')
    k(f's_add_u32 s{S_T0}, s{S_T0}, s75')
    k(f's_mul_i32 s{S_G}, s{S_T0}, {32*2304}')
    k(f's_mul_i32 s{S_T1}, s77, 192')
    k(f's_add_u32 s{S_G}, s{S_G}, s{S_T1}')
    k('s_mul_i32 s75, s75, 6144')
    for ap in range(3):
        for b in range(2):
            k(f's_add_u32 m0, s75, {L_XR + (ap*2+b)*1024}')
            k(f's_add_u32 s{S_T0}, s{S_G}, {b*16*2304 + ap*64}')
            k(f'buffer_load_dwordx4 v1, {sr(SRD_Y,4)}, s{S_T0} offen lds')
    k(f's_cmp_lg_u32 s{S_WAVE}, 4')
    k('s_cbranch_scc1 side_ret')
    k(f's_mov_b32 s85, {FL["GATE"]}')
    poll(k, 85, 18)
    ws_srd(k, SRD_Y, 'GATE')
    k(f'v_lshlrev_b32 v1, 4, v{VL}')
    k('s_lshr_b32 s76, s76, 3')
    k(f's_mul_i32 s{S_T0}, s76, 4608')
    k(f's_mul_i32 s{S_T1}, s77, 384')
    k(f's_add_u32 s{S_T0}, s{S_T0}, s{S_T1}')
    k(f's_mov_b32 m0, {L_GT}')
    k('s_mov_b64 exec, 0xffffff')
    k(f'buffer_load_dwordx4 v1, {sr(SRD_Y,4)}, s{S_T0} offen sc1 lds')
    k('s_mov_b64 exec, -1')
    k.label('side_ret')
    k('s_setpc_b64 s[78:79]')
def side_hook(k):
    if C.SIDE: k('s_call_b64 s[78:79], side_sub')

def phase_C(k):
    if C.SIDE: side_sub(k)
    k.label('role_S')
    k('s_mov_b32 s70, s67')
    k('s_lshr_b32 s66, s70, 3')
    k('s_and_b32 s67, s70, 7')
    k('s_lshl_b32 s69, s66, 3')
    k('s_add_u32 s71, s69, s68')
    k(f's_lshl_b32 s{S_ABASE}, s71, 13')
    k(f's_lshl_b32 s{S_BBASE}, s70, 13')
    k('s_lshl_b32 s75, s68, 2')
    k('s_lshl_b32 s76, s67, 3')
    k('s_lshl_b32 s77, s66, 21')
    k('s_lshl_b32 s72, s70, 3')
    k('s_add_u32 s72, s72, s68')
    k(f's_add_u32 s72, s72, {FL["P"]}')
    args_ready(k)
    ws_srd(k, SRD_A, 'H'); ws_srd(k, SRD_B, 'T'); ws_srd(k, SRD_O, 'P'); ws_srd(k, SRD_X, 'ST')
    g1 = Gemm('ss', Opnd('frag', 8, SRD_A, S_ABASE, rbtot=128, aux=LD()), Opnd('frag', 8, SRD_B, S_BBASE, rbtot=128, aux=LD()), 1, 4, 18, C.NS['ss'], rot=R('ss'), win=Wn('ss'))
    def epi_s(k, g):
        k(f's_mov_b32 s78, {f32(CSC)}')
        k(f's_mov_b32 s79, 0x3f803f80')
        VM = (g.VX + 3) // 4 * 4
        k(f's_lshl_b32 s{S_T0}, s75, 6')
        k(f's_add_u32 s{S_T0}, s{S_T0}, s76')
        k(f's_lshl_b32 s{S_T1}, s{S_WB}, 1')
        k(f's_add_u32 s{S_T0}, s{S_T0}, s{S_T1}')
        k(f's_lshl_b32 s{S_OBASE}, s{S_T0}, 10')
        k(f's_add_u32 s{S_OBASE}, s{S_OBASE}, s77')
        k(f'v_lshlrev_b32 v1, 4, v{VL}')
        for j in range(4): k(f'v_mov_b32 v{VM+8+j}, s79')
        k(f'v_mov_b32 v{VM+20}, s78\nv_mov_b32 v{VM+21}, s78')
        t = g.VF
        for b in range(2):
            regs = [acc(g, a, b) + r for a in range(8) for r in range(4)]
            m = VM + b; m2 = VM + 4 + b
            k(f'v_max3_f32 v{m}, v{regs[0]}, v{regs[1]}, v{regs[2]}')
            k(f'v_max3_f32 v{m2}, v{regs[3]}, v{regs[4]}, v{regs[5]}')
            i = 6; tog = 0
            while i < 32:
                d = m if tog == 0 else m2
                k(f'v_max3_f32 v{d}, v{d}, v{regs[i]}, v{regs[i+1]}')
                i += 2; tog ^= 1
            k(f'v_max_f32 v{m}, v{m}, v{m2}')
        for sw in ('v_permlane32_swap_b32', 'v_permlane16_swap_b32'):
            k(f'v_mov_b32 v{VM+4}, v{VM}\nv_mov_b32 v{VM+5}, v{VM+1}')
            k('s_nop 0')
            k(f'{sw} v{VM}, v{VM+4}')
            k(f'{sw} v{VM+1}, v{VM+5}')
            k('s_nop 0')
            k(f'v_max_f32 v{VM}, v{VM}, v{VM+4}\nv_max_f32 v{VM+1}, v{VM+1}, v{VM+5}')
        k(f'v_mul_f32 v{VM}, s78, v{VM}\nv_mul_f32 v{VM+1}, s78, v{VM+1}')
        VON, VL0, VC2 = VM + 8, VM + 12, VM + 20
        pend = []
        for ap in range(4):
            for b in range(2):
                regs = [acc(g, 2*ap+h, b) + r for h in range(2) for r in range(4)]
                if C.SPK:
                    sel = 'op_sel:[0,0,0] op_sel_hi:[1,1,0]' if b == 0 else 'op_sel:[0,0,1] op_sel_hi:[1,1,1]'
                    for r in regs[::2]: k(f'v_pk_fma_f32 {vr(r,2)}, {vr(r,2)}, {vr(VC2,2)}, {vr(VM,2)} {sel} neg_lo:[0,0,1] neg_hi:[0,0,1]')
                else:
                    for r in regs: k(f'v_fma_f32 v{r}, v{r}, s78, -v{VM+b}')
                for x in pend: k(x)
                for r in regs: k(f'v_exp_f32 v{r}, v{r}')
                k(f's_add_u32 s{S_T0}, s{S_OBASE}, {ap*64*1024}')
                for j in range(4): k(f'v_cvt_pk_bf16_f32 v{t+j}, v{regs[2*j]}, v{regs[2*j+1]}')
                k(f'buffer_store_dwordx4 {vr(t,4)}, v1, {sr(SRD_O,4)}, s{S_T0} offen offset:{b*1024}{ST}')
                pend = [f'v_mfma_f32_16x16x32_bf16 {vr(VL0+4*b,4)}, {vr(VON,4)}, {vr(t,4)}, ' + ('0' if ap == 0 else vr(VL0+4*b,4))]
                t += 4
        k('s_nop 0')
        for x in pend: k(x)
        k(f's_lshl_b32 s{S_T0}, s70, 2')
        k(f's_add_u32 s{S_T0}, s{S_T0}, s{S_WB}')
        k(f's_lshl_b32 s{S_T0}, s{S_T0}, 3')
        k(f's_add_u32 s{S_T0}, s{S_T0}, s68')
        k(f's_lshl_b32 s{S_T0}, s{S_T0}, 8')
        k(f'v_mov_b32 v{VM+2}, v{VL0}')
        k('s_nop 1')
        k(f'v_mov_b32 v{VM+3}, v{VL0+4}')
        k('s_mov_b64 exec, 0xffff')
        k(f'buffer_store_dwordx4 {vr(VM,4)}, v1, {sr(SRD_X,4)}, s{S_T0} offen{ST}')
        k('s_mov_b64 exec, -1')
        g.vmax = VM + 22
    gemm_role(k, g1, epi_s, s_flag=72, depA=dep((71, 4, FL['H'], 4)), depB=dep((70, 9, FL['T'], 9)), end_hookA=side_hook, end_hookB=side_hook)
    k.label('role_V')
    k('s_mov_b32 s66, s67')
    k('s_mov_b32 s67, s68')
    k(f's_lshl_b32 s{S_ABASE}, s66, 13')
    k(f's_mul_i32 s{S_BBASE}, s67, {9*1024}')
    k('s_lshl_b32 s75, s66, 2')
    k('s_mul_i32 s76, s67, 9')
    k('s_lshr_b32 s72, s66, 3')
    k('s_lshl_b32 s72, s72, 3')
    k('s_add_u32 s72, s72, s67')
    k('s_lshl_b32 s72, s72, 3')
    k('s_and_b32 s73, s66, 7')
    k('s_add_u32 s72, s72, s73')
    k(f's_add_u32 s72, s72, {FL["V"]}')
    args_ready(k)
    ws_srd(k, SRD_A, 'H'); ws_srd(k, SRD_B, 'WVO'); ws_srd(k, SRD_O, 'VT')
    g2 = Gemm('vv', Opnd('frag', 8, SRD_A, S_ABASE, rbtot=128, aux=LD()), Opnd('frag', 9, SRD_B, S_BBASE, rbtot=72, aux=LD()), 4, 1, 18, C.NS['vv'], rot=R('vv'), win=Wn('ss'))
    def v_tail(k):
        k('s_lshr_b32 s79, s66, 3')
        k('s_lshl_b32 s79, s79, 1')
        k('s_sub_u32 s79, s66, s79')
        k('s_lshl_b32 s79, s79, 3')
        k('s_add_u32 s79, s79, s67')
        k('s_lshl_b32 s79, s79, 2')
        k(f's_add_u32 s79, s79, s{S_WAVE}')
        k('s_sub_u32 s79, s79, 4')
        k('s_cmp_ge_u32 s73, 6')
        k('s_cselect_b32 s79, 400, s79')
        prefetch_flat(k, P_WQC, D*D*2, 79, 384, 14, vtmp=8)
        prefetch_flat(k, P_WOC, D*D*2, 79, 384, 14, vtmp=8)
        return 2
    gemm_role(k, g2, epi_frag16(72, 75, 76), s_flag=72, depA=dep((66, 4, FL['H'], 4)), depB=dep((67, 9, FL['WVO'], 18)), tail=(v_tail if C.WVOPF == 0 else None), end_hookA=side_hook, end_hookB=side_hook)

E_VAT, E_VX, E_VZ = 16, 196, 232
def e_at_loads(k):
    ws_srd(k, SRD_B, 'AT')
    k(f's_sub_u32 s71, s{S_WAVE}, 4')
    k(f's_mul_i32 s72, s71, {9*10}')
    k('s_mul_i32 s73, s66, 5')
    k('s_add_u32 s72, s72, s73')
    k('s_lshl_b32 s72, s72, 10')
    for i in range(9):
        k('s_add_u32 s73, s72, 4096')
        for mb in range(5):
            k(f'buffer_load_dwordx4 {vr(E_VAT+20*i+4*mb,4)}, v1, {sr(SRD_B,4)}, s{72 if mb < 4 else 73} offen offset:{(mb%4)*1024}{LD()}')
        if i < 8: k('s_add_u32 s72, s72, 10240')

def e_preload_hook(k):
    if not C.PERSIST: return
    k(f'v_lshlrev_b32 v8, 7, v{VL}')
    k('s_lshr_b32 s66, s64, 2')
    k(f's_mul_i32 s85, s66, {C.NAT}')
    k(f's_add_u32 s85, s85, {FL["AT"]}')
    k('s_lshl_b32 s85, s85, 7')
    ld = k.newlabel('echk')
    k(f's_mov_b64 exec, {hex((1 << C.NAT) - 1)}')
    for i in range(C.ECHK):
        if i: k(f's_sleep {C.ESLP}')
        k(f'buffer_load_dword v9, v8, {sr(SRD_F,4)}, s85 offen sc1')
        k('s_waitcnt vmcnt(0)')
        k('v_cmp_ne_u32 vcc, 1, v9')
        k('s_nop 0')
        k('s_cmp_eq_u64 vcc, 0')
        k(f's_cbranch_scc1 {ld}')
    k.label(ld)
    k('s_mov_b64 exec, -1')
    k('s_cselect_b32 s81, 3, 0')

def phase_D(k):
    k.label('role_PV')
    k('s_lshr_b32 s66, s67, 3')
    k('s_and_b32 s67, s67, 7')
    k(f's_mul_i32 s{S_ABASE}, s66, {32*72*1024}')
    k('s_mul_i32 s69, s68, 6144')
    k(f's_add_u32 s{S_ABASE}, s{S_ABASE}, s69')
    k(f's_lshl_b32 s{S_BBASE}, s66, 21')
    k('s_lshl_b32 s69, s67, 13')
    k(f's_add_u32 s{S_BBASE}, s{S_BBASE}, s69')
    k('s_lshl_b32 s70, s66, 3')
    k('s_add_u32 s70, s70, s67')
    k('s_mul_i32 s75, s68, 3')
    k('s_lshl_b32 s76, s70, 3')
    k('s_mul_i32 s72, s70, 12')
    k('s_add_u32 s72, s72, s68')
    k(f's_add_u32 s72, s72, {FL["X1"]}')
    k('s_lshl_b32 s71, s68, 1')
    div_const(k, 71, 71, 3, 24)
    k('s_min_u32 s71, s71, 6')
    k('s_lshl_b32 s73, s66, 3')
    k('s_add_u32 s71, s71, s73')
    args_ready(k)
    ws_srd(k, SRD_A, 'VT'); ws_srd(k, SRD_B, 'P'); ws_srd(k, SRD_O, 'X1')
    g1 = Gemm('pv', Opnd('frag', 6, SRD_A, S_ABASE, rbtot=72, aux=LD()), Opnd('frag', 8, SRD_B, S_BBASE, rbtot=64, aux=LD()), 1, 4, 16, C.NS['pv'], lds0=8192, rot=R('pv'), win=Wn('pv'))
    def depB_pv(k):
        dep((70, 8, FL['P'], 8))(k)
        ws_srd(k, SRD_X, 'ST')
        k(f's_lshl_b32 s{S_T1}, s{S_W2}, 12')
        k(f's_mov_b32 m0, s{S_T1}')
        k(f's_lshl_b32 s{S_T0}, s70, 13')
        k(f's_add_u32 s{S_T0}, s{S_T0}, s{S_T1}')
        for i in range(4): k(f'buffer_load_dwordx4 v1, {sr(SRD_X,4)}, s{S_T0} offen offset:{i*1024}{LD()} lds')
    def pv_mids():
        if not C.NBV: return [(st, dep((71, 8, FL['V'], 16, m))) for st, m in C.VM[1:]]
        st, m = C.VM[1]
        def pre(k):
            k(f'v_lshlrev_b32 v8, 7, v{VL}')
            k('s_lshl_b32 s85, s71, 3')
            k(f's_add_u32 s85, s85, {FL["V"]}')
            k(f's_lshl_b32 s{S_T0}, s85, 7')
            k(f's_mov_b64 exec, {hex(m)}')
            k(f'buffer_load_dword v9, v8, {sr(SRD_F,4)}, s{S_T0} offen sc1')
            k('s_mov_b64 exec, -1')
        def chk(k):
            l = k.newlabel('nbv')
            k(f's_mov_b64 exec, {hex(m)}')
            k(f's_waitcnt vmcnt({2*6})')
            k('v_cmp_ne_u32 vcc, 1, v9')
            k('s_mov_b64 exec, -1')
            k('s_cmp_eq_u64 vcc, 0')
            k(f's_cbranch_scc1 {l}')
            poll(k, 85, 16, mask=m)
            k.label(l)
        return [(st - 2, pre), (st, chk)]
    def pv_consumer(k, g):
        ma, nb = 6, 2
        VF, VX = g.VF, g.VX
        VGT, VXR, VXF, VS, VR, VMX, VRF, VLS, VSA, VE, VBP = VX, VX+24, VX+48, VX+72, VX+76, VX+78, VX+80, VX+82, VX+84, VX+85, VX+87
        def side_loads():
            ws_srd(k, SRD_Y, 'GATE')
            k(f'v_lshrrev_b32 v1, 4, v{VL}\nv_lshlrev_b32 v1, 5, v1')
            k(f's_mul_i32 s{S_T0}, s66, 4608')
            k(f's_mul_i32 s{S_T1}, s68, 384')
            k(f's_add_u32 s{S_T0}, s{S_T0}, s{S_T1}')
            for ap in range(3):
                for h in range(2):
                    k(f'buffer_load_dwordx4 {vr(VGT+8*ap+4*h,4)}, v1, {sr(SRD_Y,4)}, s{S_T0} offen offset:{ap*128+16*h}{LD()}')
        def x_loads():
            make_srd(k, SRD_Y, P_X, NR*D*2)
            quad_voff(k, 1, 2304)
            k('s_lshl_b32 s79, s70, 2')
            k(f's_add_u32 s79, s79, s{S_WB}')
            k(f's_mul_i32 s{S_T0}, s79, {32*2304}')
            k(f's_mul_i32 s{S_T1}, s68, 192')
            k(f's_add_u32 s{S_T0}, s{S_T0}, s{S_T1}')
            k(f's_add_u32 s{S_T1}, s{S_T0}, {16*2304}')
            for ap in range(3):
                for b in range(2):
                    k(f'buffer_load_dwordx4 {vr(VXR+(ap*2+b)*4,4)}, v1, {sr(SRD_Y,4)}, s{S_T0 if b == 0 else S_T1} offen offset:{ap*64}')
        if not C.XLATE and not C.SIDE: x_loads()
        if not C.PERSIST: side_loads()
        k(f'v_and_b32 v{VSA}, 15, v{VL}\nv_lshlrev_b32 v{VSA}, 4, v{VSA}')
        k(f's_lshl_b32 s{S_T0}, s{S_WB}, 11')
        k(f'v_add_u32 v{VSA}, s{S_T0}, v{VSA}')
        k('s_mov_b32 s77, 0')
        if g.rot is not None: k('s_lshl_b32 s73, s74, 7')
        else: k('s_mov_b32 s73, 0')
        WM = ((g.win or 16)//2)*256 - 1
        aA = cons_addr_setup(k, g, g.A, ma, S_WA, VL, VA, VT)
        aB = cons_addr_setup(k, g, g.B, nb, S_WB, VL, VA + len(aA), VT)
        addrs = aA + aB
        for i in range(ma*nb*4): k(f'v_mov_b32 v{VACC+i}, 0')
        if C.SIDE:
            k(f'v_and_b32 v{VBP}, 15, v{VL}\nv_lshlrev_b32 v{VBP}, 6, v{VBP}\nv_lshrrev_b32 v{VT}, 4, v{VL}\nv_lshl_add_u32 v{VBP}, v{VT}, 4, v{VBP}')
            k(f's_mul_i32 s{S_T0}, s{S_WB}, 6144')
            k(f's_add_u32 s{S_T0}, s{S_T0}, {L_XR}')
            k(f'v_add_u32 v{VBP}, s{S_T0}, v{VBP}')
            k(f'v_lshlrev_b32 v{VXR}, 5, v{VT}')
            k(f'v_add_u32 v{VXR}, {L_GT}, v{VXR}')
        else: q2f_addr(k, VBP)
        k(f'v_mov_b32 v{VMX}, {f32(-3.0e38)}\nv_mov_b32 v{VMX+1}, {f32(-3.0e38)}')
        k(f'v_mov_b32 v{VRF}, {f32(-3.0e38)}\nv_mov_b32 v{VRF+1}, {f32(-3.0e38)}')
        k(f'v_mov_b32 v{VLS}, 0\nv_mov_b32 v{VLS+1}, 0')
        k(f's_mov_b32 s78, {f32(-64.0)}')
        k(f'v_mov_b32 v{VE}, {L_CNT}')
        k(f'ds_write_b32 v{VE}, v{VLS}')
        k('s_waitcnt lgkmcnt(0)')
        setsz = (ma + nb) * 4
        def fa(st, a): return VF + st*setsz + 4*a
        def fb(st, b): return VF + st*setsz + 4*ma + 4*b
        def reads(s, st):
            return cons_reads(g, g.B, nb, aB, s, fb(st, 0)) + cons_reads(g, g.A, ma, aA, s, fa(st, 0))
        def mf(st):
            return [f'v_mfma_f32_16x16x32_bf16 {vr(acc(g,a,b),4)}, {vr(fa(st,a),4)}, {vr(fb(st,b),4)}, {vr(acc(g,a,b),4)}'
                    for a in range(ma) for b in range(nb)]
        def muls(i):
            a, b = divmod(i, nb)
            c = acc(g, a, b)
            if C.PKMUL == 2: return ['s_nop 0']
            if C.PKMUL:
                sel = 'op_sel:[0,0] op_sel_hi:[1,0]' if b == 0 else 'op_sel:[0,1] op_sel_hi:[1,1]'
                return [f'v_pk_mul_f32 {vr(c+r,2)}, {vr(c+r,2)}, {vr(VR,2)} {sel}' for r in (0, 2)]
            return [f'v_mul_f32 v{c+r}, v{VR+b}, v{c+r}' for r in range(4)]
        def upd():
            o = []
            for b in range(2): o.append(f'v_max_f32 v{VMX+b}, v{VMX+b}, v{VS+b}')
            for b in range(2): o.append(f'v_add_f32 v{VE+b}, s78, v{VMX+b}')
            for b in range(2): o.append(f'v_max_f32 v{VE+b}, v{VE+b}, v{VS+b}')
            for b in range(2): o.append(f'v_sub_f32 v{VR+b}, v{VRF+b}, v{VE+b}')
            for b in range(2): o.append(f'v_exp_f32 v{VR+b}, v{VR+b}')
            for b in range(2): o.append(f'v_mov_b32 v{VRF+b}, v{VE+b}')
            for b in range(2): o.append(f'v_fma_f32 v{VLS+b}, v{VLS+b}, v{VR+b}, v{VS+2+b}')
            return o
        srd_ = [f's_add_u32 s{S_T0}, s77, s73', f's_and_b32 s{S_T0}, s{S_T0}, {WM}', f's_andn2_b32 s{S_T1}, s77, {WM}', f's_add_u32 s{S_T0}, s{S_T0}, s{S_T1}', f'v_add_u32 v{VE}, s{S_T0}, v{VSA}', f'ds_read_b128 {vr(VS,4)}, v{VE}', 's_add_u32 s77, s77, 256']
        adv = [f's_add_u32 s{S_SLOT}, s{S_SLOT}, {g.stage}',
               f's_cmp_eq_u32 s{S_SLOT}, {g.NS*g.stage}',
               f's_cselect_b32 s{S_DELTA}, {-(g.NS-1)*g.stage & 0xffffffff}, s{S_T3}',
               f's_cselect_b32 s{S_SLOT}, 0, s{S_SLOT}'] + [f'v_add_u32 v{a}, s{S_DELTA}, v{a}' for a in addrs]
        k(f's_mov_b32 s{S_SLOT}, 0')
        k(f's_mov_b32 s{S_CNT}, 8')
        k(f's_mov_b32 s{S_T3}, {g.stage}')
        k('s_barrier')
        stamp(k, 0); cstamp(k, 4)
        for x in srd_: k(x)
        for r in reads(0, 0): k(r)
        k('s_waitcnt lgkmcnt(8)')
        for x in upd(): k(x)
        k('s_waitcnt lgkmcnt(0)')
        lp = k.newlabel('pv_mm'); le = k.newlabel('pv_last')
        k.label(lp)
        M = mf(0); fill = reads(1, 1) + adv
        for x in muls(0): k(x)
        for i in range(12):
            if i + 1 < 12:
                for x in muls(i+1): k(x)
            else:
                k('s_nop 1')
            k(M[i])
            if fill: k(fill.pop(0))
        for f in fill: k(f)
        k('s_waitcnt lgkmcnt(0)')
        k('s_barrier')
        interleave(k, mf(1), reads(0, 0) + srd_ + [f's_sub_u32 s{S_CNT}, s{S_CNT}, 1'])
        k('s_waitcnt lgkmcnt(0)')
        interleave(k, mf(0), reads(1, 1) + adv)
        k('s_waitcnt lgkmcnt(0)')
        k(f's_cmp_eq_u32 s{S_CNT}, 0')
        k(f's_cbranch_scc1 {le}')
        k('s_barrier')
        interleave(k, mf(1), reads(0, 0) + upd(), per=2)
        if not C.SIDE:
            k(f's_cmp_eq_u32 s{S_CNT}, 4')
            k('s_cbranch_scc1 pv_g1')
            k(f's_cmp_eq_u32 s{S_CNT}, 2')
            k('s_cbranch_scc1 pv_g2')
            k.label('pv_gback')
        k('s_waitcnt lgkmcnt(0)')
        k(f's_branch {lp}')
        if not C.SIDE:
            k.label('pv_g1')
            k(f'v_lshlrev_b32 v1, 7, v{VL}')
            k(f's_mov_b32 s{S_T0}, {FL["GATE"]*128}')
            k('s_mov_b64 exec, 0x3ffff')
            k(f'buffer_load_dword v{VGT}, v1, {sr(SRD_F,4)}, s{S_T0} offen sc1')
            k('s_mov_b64 exec, -1')
            if C.XLATE: x_loads()
            k('s_branch pv_gback')
            k.label('pv_g2')
            k('s_mov_b64 exec, 0x3ffff')
            k('s_waitcnt vmcnt(0)')
            k(f'v_cmp_ne_u32 vcc, 1, v{VGT}')
            k('s_mov_b64 exec, -1')
            k('s_cmp_eq_u64 vcc, 0')
            k('s_cbranch_scc1 pv_g3')
            k(f's_mov_b32 s85, {FL["GATE"]}')
            poll(k, 85, 18, vt=VGT)
            k(f's_mov_b32 s{S_CNT}, 2')
            k.label('pv_g3')
            side_loads()
            k('s_branch pv_gback')
        k.label(le)
        k('s_waitcnt vmcnt(0)')
        bp = [f'ds_bpermute_b32 v{VXF+j}, v{VBP}, v{VXR+j}' for j in range(24)]
        if C.SIDE:
            bp = [f'ds_read_b128 {vr(VXF+4*j,4)}, v{VBP} offset:{j*1024}' for j in range(6)]
            bp += [f'ds_read_b128 {vr(VGT+8*ap+4*h,4)}, v{VXR} offset:{ap*128+16*h}' for ap in range(3) for h in range(2)]
        interleave(k, mf(1), bp + [f'v_rcp_f32 v{VLS}, v{VLS}', f'v_rcp_f32 v{VLS+1}, v{VLS+1}'], per=2)
        g.VGT, g.VXF, g.VLS, g.VE = VGT, VXF, VLS, VE
        g.vmax = VBP + 1
    def epi_pv(k, g):
        k(f's_lshl_b32 s{S_T0}, s75, 7')
        k(f's_add_u32 s{S_T0}, s{S_T0}, s76')
        k(f's_lshl_b32 s{S_T1}, s{S_WB}, 1')
        k(f's_add_u32 s{S_T0}, s{S_T0}, s{S_T1}')
        k(f's_lshl_b32 s{S_OBASE}, s{S_T0}, 10')
        k(f'v_lshlrev_b32 v1, 4, v{VL}')
        k('s_waitcnt lgkmcnt(0)')
        T = g.VE
        t = g.VF
        for ap in range(3):
            for b in range(2):
                xr = g.VXF + (ap*2+b)*4
                regs = [acc(g, 2*ap+h, b) + r for h in range(2) for r in range(4)]
                for e in range(8):
                    k(f'v_mul_f32 v{regs[e]}, v{g.VLS+b}, v{regs[e]}')
                    if e % 2 == 0: k(f'v_lshlrev_b32 v{T}, 16, v{xr+e//2}')
                    else: k(f'v_and_b32 v{T}, 0xffff0000, v{xr+e//2}')
                    k(f'v_fma_f32 v{regs[e]}, v{regs[e]}, v{g.VGT+8*ap+e}, v{T}')
                for j in range(4): k(f'v_cvt_pk_bf16_f32 v{t+j}, v{regs[2*j]}, v{regs[2*j+1]}')
                k(f's_add_u32 s{S_T0}, s{S_OBASE}, {ap*128*1024}')
                k(f'buffer_store_dwordx4 {vr(t,4)}, v1, {sr(SRD_O,4)}, s{S_T0} offen offset:{b*1024}{ST}')
                t += 4
    gemm_role(k, g1, epi_pv, s_flag=72, custom_consumer=pv_consumer, depA=dep((71, 8, FL['V'], 16, C.VM[0][1])), midA=pv_mids(), depB=depB_pv, end_hookA=(e_preload_hook if C.ECHK else None), end_hookB=(e_preload_hook if C.ECHK else None), lds_sig=C.EPRE)
    k.label('role_AT')
    NAT = C.NAT
    k(f's_mul_i32 s{S_ABASE}, s68, {(1152//NAT)*2304}')
    k(f's_mul_i32 s{S_BBASE}, s67, 5120')
    k(f's_mul_i32 s75, s68, {36//NAT}')
    k('s_mul_i32 s76, s67, 5')
    k(f's_mul_i32 s72, s67, {NAT}')
    k('s_add_u32 s72, s72, s68')
    k(f's_add_u32 s72, s72, {FL["AT"]}')
    k('s_mul_i32 s74, s67, 9')
    make_srd(k, SRD_A, P_WQC, D*D*2); ws_srd(k, SRD_B, 'KVC'); ws_srd(k, SRD_O, 'AT')
    if NAT == 18:
        g2 = Gemm('at', Opnd('row', 4, SRD_A, S_ABASE, stride=2304, perm=True), Opnd('frag', 5, SRD_B, S_BBASE, rbtot=10, aux=LD()), 2, 2, 18, C.NS['at'], rot=R('at'), nb_ov=(3, 2))
    else:
        g2 = Gemm('at', Opnd('row', 8, SRD_A, S_ABASE, stride=2304, perm=True), Opnd('frag', 5, SRD_B, S_BBASE, rbtot=10, aux=LD()), 4, 1, 18, C.NS['at'], rot=R('at'))
    gemm_role(k, g2, epi_frag16(10, 75, 76), s_flag=72, depB=dep((67, 12, FL['KVC'], 6)))
    k.label('role_BT')
    k(f's_mul_i32 s{S_ABASE}, s67, 5120')
    k(f's_add_u32 s{S_ABASE}, s{S_ABASE}, {36*10*1024}')
    k(f's_lshl_b32 s{S_BBASE}, s68, 8')
    k('s_mul_i32 s75, s67, 3')
    k('s_lshl_b32 s76, s68, 3')
    k('s_mul_i32 s72, s67, 9')
    k('s_add_u32 s72, s72, s68')
    k(f's_add_u32 s72, s72, {FL["BT"]}')
    k('s_mul_i32 s74, s67, 9')
    args_ready(k)
    ws_srd(k, SRD_A, 'KVC'); make_srd(k, SRD_B, P_WOC, D*D*2); ws_srd(k, SRD_O, 'BT')
    g3 = Gemm('bt', Opnd('frag', 5, SRD_A, S_ABASE, rbtot=10, aux=LD()), Opnd('col', 8, SRD_B, S_BBASE, stride=2304), 1, 4, 18, C.NS['bt'], rot=R('bt'))
    def epi_bt(k, g):
        epi_frag16(72, 75, 76, rowperm=True, npair_max=2)(k, g)
        k(f'v_bfe_u32 v{VT}, v{VL}, 2, 1\nv_lshlrev_b32 v1, 3, v{VT}\nv_bfe_u32 v{VT}, v{VL}, 3, 1\nv_lshl_add_u32 v1, v{VT}, 6, v1')
        k(f'v_and_b32 v{VT}, 0x33, v{VL}\nv_lshl_add_u32 v1, v{VT}, 4, v1')
        k(f's_mul_i32 s{S_T0}, s67, 216')
        k(f's_lshl_b32 s{S_T1}, s68, 2')
        k(f's_add_u32 s{S_T0}, s{S_T0}, s{S_T1}')
        k(f's_add_u32 s{S_T0}, s{S_T0}, s{S_WB}')
        k(f's_add_u32 s{S_T0}, s{S_T0}, 144')
        k(f's_lshl_b32 s{S_T0}, s{S_T0}, 10')
        t = g.VF + 32
        for b in range(2):
            c0 = acc(g, 4, b)
            k(f'v_cvt_pk_bf16_f32 v{t}, v{c0}, v{c0+1}')
            k(f'v_cvt_pk_bf16_f32 v{t+1}, v{c0+2}, v{c0+3}')
            k(f'buffer_store_dwordx2 {vr(t,2)}, v1, {sr(SRD_O,4)}, s{S_T0} offen offset:{b*128}{ST}')
            t += 2
    gemm_role(k, g3, epi_bt, s_flag=72, depA=dep((67, 12, FL['KVC'] + 6, 6)))

def phase_E(k):
    k.label('role_E')
    L_CS, L_Z, L_RS = 0, 2048, 26624
    VAT, VX_, VZ = E_VAT, E_VX, E_VZ
    k('s_lshr_b32 s66, s64, 2')
    k(f'v_lshlrev_b32 v1, 4, v{VL}')
    k('s_and_b32 s67, s65, 1')
    k('s_lshl_b32 s68, s64, 4')
    k('s_lshr_b32 s69, s65, 1')
    k('s_add_u32 s68, s68, s69')
    k('s_lshr_b32 s70, s68, 3')
    k(f's_cmp_lt_u32 s{S_WAVE}, 4')
    k('s_cbranch_scc1 pe_l')
    VQQ = 252
    k('s_cmp_eq_u32 s81, 3')
    k('s_cbranch_scc1 pe_at')
    dep((66, C.NAT, FL['AT'], C.NAT))(k)
    k.label('pe_at')
    ws_srd(k, SRD_B, 'AT')
    k(f's_sub_u32 s71, s{S_WAVE}, 4')
    k(f's_mul_i32 s72, s71, {9*10}')
    k('s_mul_i32 s73, s66, 5')
    k('s_add_u32 s72, s72, s73')
    k('s_lshl_b32 s72, s72, 10')
    XF = C.XF
    LAG = C.LAG
    def cs_mm(i):
        for mb in range(5):
            c = '0' if i == 0 else vr(VZ+4*mb, 4)
            k(f'v_mfma_f32_16x16x32_bf16 {vr(VZ+4*mb,4)}, {vr(VAT+20*i+4*mb,4)}, v[12:15], {c}')
        k('s_mov_b32 exec_lo, 0x80008000\ns_mov_b32 exec_hi, 0x80008000')
        for j in range(4): k(f'v_mov_b32 v{VAT+20*i+16+j}, s77')
        k('s_mov_b64 exec, -1')
    for i in range(9):
        k('s_add_u32 s73, s72, 4096')
        for mb in range(5):
            k(f'buffer_load_dwordx4 {vr(VAT+20*i+4*mb,4)}, v1, {sr(SRD_B,4)}, s{72 if mb < 4 else 73} offen offset:{(mb%4)*1024}{LD()}')
        if i < 8: k('s_add_u32 s72, s72, 10240')
        if i == 0:
            ws_srd(k, SRD_A, 'X1')
            k(f's_mul_i32 s74, s71, {9*128}')
            k('s_add_u32 s74, s74, s68')
            k('s_lshl_b32 s74, s74, 10')
            k('s_mov_b32 s77, 0x3f803f80')
            for j in range(4): k(f'v_mov_b32 v{12+j}, s77')
            k(f's_mul_i32 s{S_T1}, s71, 6144')
            k(f'v_add_u32 v6, s{S_T1}, v1')
            k(f'v_lshlrev_b32 v8, 7, v{VL}')
            k('s_mul_i32 s85, s70, 12')
            k(f's_add_u32 s85, s85, {FL["X1"]}')
            k('s_lshl_b32 s76, s85, 7')
            k(f's_mul_i32 s{S_T0}, s71, 320')
            k(f'v_add_u32 v10, s{S_T0}, v{VL}')
            k('s_and_b32 s75, s71, 1')
            k('s_mul_i32 s75, s75, 9216')
            k('v_add_u32 v11, s75, v1')
        if i == XF:
            k('s_mov_b64 exec, 0xfff')
            k(f'buffer_load_dword v9, v8, {sr(SRD_F,4)}, s76 offen sc1')
            k('s_mov_b64 exec, -1')
        if i >= LAG:
            k(f's_waitcnt vmcnt({5*LAG + (1 if i - LAG <= XF <= i else 0)})')
            cs_mm(i - LAG)
    def load_x():
        for i in range(9):
            k(f'buffer_load_dwordx4 {vr(VX_+4*i,4)}, v1, {sr(SRD_A,4)}, s74 offen{LD()}')
            if i < 8: k(f's_add_u32 s74, s74, {128*1024}')
    k('s_mov_b64 exec, 0xfff')
    k(f's_waitcnt vmcnt({5*(8-XF)})')
    k('v_cmp_ne_u32 vcc, 1, v9')
    k('s_mov_b64 exec, -1')
    k('s_cmp_eq_u64 vcc, 0')
    k('s_cselect_b32 s81, 1, 0')
    k('s_cbranch_scc0 pe_x_late0')
    k.label('pe_x_go')
    stamp(k, 1)
    load_x()
    k('s_cmp_eq_u32 s81, 0')
    k('s_cbranch_scc1 pe_x_done')
    k('s_barrier')
    k('s_waitcnt vmcnt(9)')
    k('s_branch pe_x_late')
    k.label('pe_x_late0')
    k('s_barrier')
    k('s_waitcnt vmcnt(0)')
    k.label('pe_x_late')
    for i in range(9 - LAG, 9): cs_mm(i)
    k('s_mov_b32 exec_lo, 0x00010001\ns_mov_b32 exec_hi, 0x00010001')
    for mb in range(5): k(f'ds_write_b128 v10, {vr(VZ+4*mb,4)} offset:{L_CS + mb*64}')
    k('s_mov_b64 exec, -1')
    stamp(k, 0)
    k('s_waitcnt lgkmcnt(0)')
    k('s_barrier')
    k('s_cmp_eq_u32 s81, 1')
    k('s_cbranch_scc1 pe_x_done')
    poll(k, 85, 12, vt=2)
    k('s_branch pe_x_go')
    k.label('pe_x_done')
    if not C.RSG:
        k('s_lshr_b32 s75, s71, 1')
        k('s_cmp_lg_u32 s75, s67')
        k(f's_cselect_b32 s75, {LDS_MAX}, 0')
        k('v_add_u32 v11, s75, v11')
    for i in range(9):
        k(f's_waitcnt vmcnt({8-i})')
        for mb in range(5):
            c = '0' if i == 0 else vr(VZ+4*mb, 4)
            k(f'v_mfma_f32_16x16x32_bf16 {vr(VZ+4*mb,4)}, {vr(VAT+20*i+4*mb,4)}, {vr(VX_+4*i,4)}, {c}')
            if mb == 0 and not C.RSG: k(f'ds_write_b128 v11, {vr(VX_+4*i,4)} offset:{L_RS + i*1024}')
        c = '0' if i == 0 else vr(VQQ, 4)
        k(f'v_mfma_f32_16x16x32_bf16 {vr(VQQ,4)}, {vr(VX_+4*i,4)}, {vr(VX_+4*i,4)}, {c}')
    k('s_nop 2')
    for mb in range(5): k(f'ds_write_b128 v6, {vr(VZ+4*mb,4)} offset:{L_Z + mb*1024}')
    k('s_nop 0')
    k(f'ds_write_b128 v6, {vr(VQQ,4)} offset:{L_Z + 5*1024}')
    stamp(k, 2)
    k('s_waitcnt lgkmcnt(0)')
    k('s_barrier')
    phase_exit(k)
    k.label('pe_l')
    NPW = 5
    VB, VZ2, VCS, VP, VRS = 16, 136, 196, 216, 116
    VZ3 = 216
    VO, VQ = 156, 16
    ws_srd(k, SRD_X, 'BT'); make_srd(k, SRD_O, P_OUT, NR*D*2)
    k(f's_mul_i32 s75, s{S_WAVE}, 5')
    k('s_min_u32 s75, s75, 14')
    k('s_mul_i32 s73, s67, 18')
    k('s_add_u32 s73, s73, s75')
    k('s_mul_i32 s76, s66, 216')
    k('s_lshl_b32 s77, s73, 1')
    k('s_add_u32 s76, s76, s77')
    k('s_lshl_b32 s76, s76, 10')
    k('s_mul_i32 s72, s66, 216')
    k('s_add_u32 s72, s72, s73')
    k('s_add_u32 s72, s72, 144')
    k('s_lshl_b32 s72, s72, 10')
    k(f'v_lshlrev_b32 v252, 7, v{VL}')
    k('s_mul_i32 s85, s66, 9')
    k(f's_add_u32 s85, s85, {FL["BT"]}')
    k('s_lshl_b32 s77, s85, 7')
    k('s_mov_b64 exec, 0x1ff')
    k(f'buffer_load_dword v253, v252, {sr(SRD_F,4)}, s77 offen sc1')
    k('s_mov_b64 exec, -1')
    f2q_addr(k, 5)
    quad_voff(k, 6, 2304)
    k(f'v_and_b32 v14, 48, v{VL}')
    k(f's_lshl_b32 s{S_T0}, s75, 10')
    k(f'v_add_u32 v15, s{S_T0}, v1')
    ws_srd(k, SRD_A, 'X1')
    k('s_lshl_b32 s74, s73, 7')
    k('s_add_u32 s74, s74, s68')
    k('s_lshl_b32 s74, s74, 10')
    k(f'v_and_b32 v7, 15, v{VL}\nv_lshlrev_b32 v8, 4, v7\nv_lshrrev_b32 v9, 2, v7\nv_lshl_add_u32 v9, v9, 8, v8\nv_and_b32 v7, 3, v7\nv_lshl_add_u32 v9, v7, 2, v9')
    k(f's_mul_i32 s{S_T2}, s68, {16*2304}')
    k(f's_lshl_b32 s{S_T1}, s73, 6')
    k(f's_add_u32 s{S_T2}, s{S_T2}, s{S_T1}')
    k('v_mov_b32 v4, 0xff800000')
    k('s_mov_b64 exec, 0x1ff')
    k('s_waitcnt vmcnt(0)')
    k('v_cmp_ne_u32 vcc, 1, v253')
    k('s_mov_b64 exec, -1')
    k('s_barrier')
    k('s_cmp_eq_u64 vcc, 0')
    k('s_cbranch_scc1 pe_bt_go')
    poll(k, 85, 9)
    k.label('pe_bt_go')
    stamp(k, 0)
    zr = lambda w, mb: (VZ2 + 20*w + 4*mb) if w < 3 else (VZ3 + 4*mb)
    def sum4(base, dst, pre=(), va=1, ws=6144, ms=1024, mid=()):
        for mb in range(5):
            for w in range(4):
                k(f'ds_read_b128 {vr(zr(w,mb),4)}, v{va} offset:{base + w*ws + mb*ms}')
        for x in pre: k(x)
        for mb in range(5):
            k(f's_waitcnt lgkmcnt({min(15, 4*(4-mb))})')
            for j in (0, 2):
                k(f'v_pk_add_f32 {vr(zr(0,mb)+j,2)}, {vr(zr(0,mb)+j,2)}, {vr(zr(1,mb)+j,2)}')
                k(f'v_pk_add_f32 {vr(zr(2,mb)+j,2)}, {vr(zr(2,mb)+j,2)}, {vr(zr(3,mb)+j,2)}')
                k(f'v_pk_add_f32 {vr(dst+4*mb+j,2)}, {vr(zr(0,mb)+j,2)}, {vr(zr(2,mb)+j,2)}')
                while mid:
                    x = mid.pop(0); k(x)
                    if x.startswith('buffer'): break
        for x in mid: k(x)
    VB2 = VB + 80
    ldb = lambda r, sg, off: f'buffer_load_dwordx4 {vr(r,4)}, v1, {sr(SRD_X,4)}, s{sg} offen offset:{off}{LD()}'
    k(f's_cmp_ge_u32 s{S_WAVE}, 2')
    k('s_cbranch_scc1 pe_no5')
    for kb in range(2):
        k(f's_add_u32 s77, s76, {kb*72*1024 + 8192}')
        for i in range(2): k(ldb(VB+(kb*10+8+i)*4, 77, i*1024))
    k('s_add_u32 s77, s72, 4096')
    k(ldb(VB2+16, 77, 0))
    k.label('pe_no5')
    btl = []
    for kb in range(2):
        for g0 in (0, 4):
            btl.append(f's_add_u32 s77, s76, {kb*72*1024 + g0*1024}')
            for i in range(4): btl.append(ldb(VB+(kb*10+g0+i)*4, 77, i*1024))
    for i in range(4): btl.append(ldb(VB2+4*i, 72, i*1024))
    def split(lst, n):
        idx = [i for i, x in enumerate(lst) if x.startswith('buffer')]
        if n >= len(idx): return lst, []
        cut = idx[n]
        if cut and lst[cut-1].startswith('s_add'): cut -= 1
        return lst[:cut], lst[cut:]
    p0, rest = split(btl, C.BT0)
    p1, late = split(rest, C.BT1 - C.BT0)
    for x in p0: k(x)
    k('s_barrier')
    sum4(L_CS, VCS, pre=p1, va=14, ws=320, ms=64)
    k(f'v_cmp_le_u32 vcc, 48, v{VL}')
    k('s_mov_b32 s78, 0x3f803f80')
    stamp(k, 1)
    k('s_barrier')
    stamp(k, 3)
    rsl = []
    for i in range(NPW):
        rsl.append(f'buffer_load_dwordx4 {vr(VRS+4*i,4)}, v1, {sr(SRD_A,4)}, s74 offen{LD()}')
        if i < NPW-1: rsl.append(f's_add_u32 s74, s74, {128*1024}')
    RX = NPW if C.RSG else 0
    for w in range(4):
        k(f'ds_read_b32 v{248+w}, v8 offset:{L_Z + w*6144 + 4*1024 + 48*16 + 12}')
        k(f'ds_read_b32 v{252+w}, v9 offset:{L_Z + w*6144 + 5*1024}')
    st = ['v_add_f32 v248, v248, v249', 'v_add_f32 v250, v250, v251', 'v_add_f32 v252, v252, v253', 'v_add_f32 v254, v254, v255',
          'v_add_f32 v248, v248, v250', 'v_add_f32 v252, v252, v254',
          f'v_mul_f32 v10, {f32(-1.0/D)}, v248', f'v_mul_f32 v12, {f32(1.0/D)}, v252', 'v_fma_f32 v12, -v10, v10, v12', 'v_max_f32 v12, 0, v12',
          f'v_add_f32 v12, {f32(1e-5)}, v12', 'v_rsq_f32 v12, v12', 'v_mov_b32 v11, v10', f'v_mul_f32 v12, {f32(CSC)}, v12']
    assert not (C.RSG and late)
    sum4(L_Z, VZ2, pre=(rsl if C.RSG else []) + ['s_waitcnt lgkmcnt(15)'] + st, mid=late)
    stamp(k, 2)
    if not C.RSG:
        for i in range(NPW): k(f'ds_read_b128 {vr(VRS+4*i,4)}, v15 offset:{L_RS + i*1024}')
    for i in range(0, 20, 2): k(f'v_pk_fma_f32 {vr(VZ2+i,2)}, {vr(VCS+i,2)}, v[10:11], {vr(VZ2+i,2)}')
    for r in (17, 18, 19): k(f'v_cndmask_b32 v{VZ2+r}, v{VZ2+r}, v4, vcc')
    k(f'v_max3_f32 v2, v{VZ2}, v{VZ2+1}, v{VZ2+2}')
    k(f'v_max3_f32 v3, v{VZ2+3}, v{VZ2+4}, v{VZ2+5}')
    for i in range(6, 20, 2): k(f'v_max3_f32 v{2 + (i//2)%2}, v{2 + (i//2)%2}, v{VZ2+i}, v{VZ2+i+1}')
    k('v_max_f32 v2, v2, v3')
    for sw in ('v_permlane32_swap_b32', 'v_permlane16_swap_b32'):
        k(f'v_mov_b32 v3, v2\ns_nop 1\n{sw} v2, v3\ns_nop 0\nv_max_f32 v2, v2, v3')
    k('v_mul_f32 v2, v2, v12')
    for i in range(20): k(f'v_fma_f32 v{VZ2+i}, v{VZ2+i}, v12, -v2')
    for i in range(20): k(f'v_exp_f32 v{VZ2+i}, v{VZ2+i}')
    for i in range(10): k(f'v_cvt_pk_bf16_f32 v{VP+i}, v{VZ2+2*i}, v{VZ2+2*i+1}')
    for j in range(4): k(f'v_mov_b32 v{248+j}, s78')
    mmx = []
    for kb in range(2):
        mmx.append(f's_waitcnt vmcnt({8*(1-kb) + 4 + RX})')
        mmx.append(f'v_mfma_f32_16x16x32_bf16 v[252:255], v[248:251], {vr(VP+4*kb,4)}, ' + ('0' if kb == 0 else 'v[252:255]'))
        for jb in range(10):
            c = '0' if kb == 0 else vr(VO+4*jb, 4)
            mmx.append(f'v_mfma_f32_16x16x32_bf16 {vr(VO+4*jb,4)}, {vr(VB+(kb*10+jb)*4,4)}, {vr(VP+4*kb,4)}, {c}')
    mmx.append(f's_waitcnt vmcnt({RX})')
    mmx.append(f'v_mfma_f32_16x16x16_bf16 v[252:255], v[248:249], {vr(VP+8,2)}, v[252:255]')
    for jb in range(10):
        mmx.append(f'v_mfma_f32_16x16x16_bf16 {vr(VO+4*jb,4)}, {vr(VB2+2*jb,2)}, {vr(VP+8,2)}, {vr(VO+4*jb,4)}')
    k('s_nop 0')
    un = lambda e: (VZ2 + e) if e < 20 else (VCS + e - 20)
    sm = ['s_waitcnt vmcnt(0) lgkmcnt(0)' if C.RSG else 's_waitcnt lgkmcnt(0)']
    stamp(k, 5)
    for j in range(4*NPW):
        sm += [f'v_lshlrev_b32 v{un(2*j)}, 16, v{VRS+j}', f'v_and_b32 v{un(2*j+1)}, 0xffff0000, v{VRS+j}']
    interleave(k, mmx, sm, per=2, start=1)
    k('v_rcp_f32 v2, v252')
    k('s_nop 0')
    k('v_mov_b32 v3, v2')
    for i in range(NPW):
        for e in range(0, 8, 2):
            k(f'v_pk_fma_f32 {vr(VO+8*i+e,2)}, {vr(VO+8*i+e,2)}, v[2:3], {vr(un(8*i+e),2)}')
        for j in range(4): k(f'v_cvt_pk_bf16_f32 v{VRS+4*i+j}, v{VO+8*i+2*j}, v{VO+8*i+2*j+1}')
        for j in range(4): k(f'ds_bpermute_b32 v{VQ+4*i+j}, v5, v{VRS+4*i+j}')
        if i >= 1:
            k('s_waitcnt lgkmcnt(4)')
            k(f'buffer_store_dwordx4 {vr(VQ+4*(i-1),4)}, v6, {sr(SRD_O,4)}, s{S_T2} offen offset:{64*(i-1)}{C.OUTST}')
    k(f's_cmp_ge_u32 s{S_WAVE}, 2')
    k('s_cbranch_scc1 pe_no5s')
    k('s_waitcnt lgkmcnt(0)')
    k(f'buffer_store_dwordx4 {vr(VQ+4*(NPW-1),4)}, v6, {sr(SRD_O,4)}, s{S_T2} offen offset:{64*(NPW-1)}{C.OUTST}')
    k.label('pe_no5s')
    stamp(k, 4)
    phase_exit(k)
    VMAX[0] = 256

def task(role, p1=0, p2=0, rot=0):
    assert p1 < 32 and p2 < 32 and rot < 4
    return (role, p1, p2, rot)

def make_schedule():
    sch = [[] for _ in range(256)]
    W = lambda x, loc: x + 8*loc
    late = []
    for x in range(8):
        for loc in range(18):
            u = x*18 + loc; jg, r = divmod(u, 48); tn, jl = divmod(r, 3)
            sch[W(x, loc)].append(task('T', tn, jg*3 + jl, (2*jl + tn) % 3))
    def wvo(w):
        blk, ins = divmod(w, 9); bj, bi = divmod(blk, 3); tj = bj*3 + ins//3; ti = bi*3 + ins % 3
        return task('wvo', tj, ti, (ti + tj) % 3)
    for x in range(8):
        for loc in range(23, 32): sch[W(x, loc)].append(wvo(x*9 + loc - 23))
    if C.GPLAN == 1:
        sg = []
        for x in (1, 3, 5):
            for loc in (20, 21, 22):
                i = (x >> 1)*3 + loc - 20
                sch[W(x, loc)].append(wvo(72 + i))
        sch[W(5, 22)].append(task('gate', 17, 1))
        g3 = [W(7, loc) for loc in (20, 21, 22)]
        for i, w in enumerate(g3): sch[w].append(task('gate', 3*i, 3))
        kv = [W(x, loc) for x in range(8) for loc in (range(18, 22) if x % 2 == 0 else (18, 19))]
        for v, w in enumerate(kv): sch[w].append(task('kvc', v & 1, v >> 1))
        for i, x in enumerate((0, 2, 4, 6)):
            sch[W(x, 22)].append(task('gate', 9 + 2*i, 2)); sg.append(W(x, 22))
        g3 = g3 + [W(5, 22)]
    else:
        sg = []
        gj = 13
        for x in (1, 3, 5):
            for loc in (20, 21, 22):
                i = (x >> 1)*3 + loc - 20
                if C.GFIRST:
                    if not (C.PFG and i < 4): sch[W(x, loc)].append(task('gate', 9 + i, 1))
                    sch[W(x, loc)].append(wvo(72 + i))
                    continue
                sch[W(x, loc)].append(wvo(72 + i))
                if gj < 18 and (loc < 22 ):
                    sch[W(x, loc)].append(task('gate', gj, 1)); gj += 1; sg.append(W(x, loc))
        g3 = []
        for i, loc in enumerate((20, 21, 22)):
            sch[W(7, loc)].append(task('gate', 3*i, 3)); g3.append(W(7, loc))
        v = 0
        kv = []
        for x in range(8):
            for loc in (range(18, 22) if x % 2 == 0 else (18, 19)):
                sch[W(x, loc)].append(task('kvc', v & 1, v >> 1)); v += 1; kv.append(W(x, loc))
        for i, x in enumerate((0, 2, 4, 6)):
            sch[W(x, 22)].append(task('pf', 24 + i))
            if C.PFG or not C.GFIRST: sch[W(x, 22)].append(task('gate', 9 + i, 1))
        if C.GFIRST: sg = [W(x, 17) for x in (1, 3, 5, 0, 2)]
    for x in range(8):
        for loc in range(16):
            sch[W(x, loc)].append(task('S', (x >> 2)*8 + (x & 1)*4 + (loc >> 2), ((x >> 1) & 1)*4 + (loc & 3), ((loc >> 2) + (loc & 3)) % 3))
    key = lambda w: (w & 7, w)
    lateV = sorted(sg + kv + g3, key=key)
    assert len(lateV) == 32
    lt = [(nt, jh*4 + j) for bb in range(2) for jh in range(2) for nt in (6 + 8*bb, 7 + 8*bb) for j in range(4)]
    for w, (nt, jt) in zip(lateV, lt): sch[w].append(task('V', nt, jt, (nt + jt) % 3))
    rest = sorted([W(x, loc) for x in range(8) for loc in range(16, 32) if W(x, loc) not in lateV], key=key)
    assert len(rest) == 96
    nts = [0, 1, 2, 3, 4, 5, 8, 9, 10, 11, 12, 13]
    if C.VMAP == 0:
        et = [(nts[g*3 + i], jh*4 + j) for g in range(4) for jh in range(2) for i in range(3) for j in range(4)]
    else:
        js = [(5, 6, 0, 1), (7, 4, 2, 3)]
        et = [(nts[g*3 + i], j) for g in range(4) for jh in range(2) for j in js[jh] for i in range(3)]
    vt = {}
    for w, (nt, jt) in zip(rest, et): sch[w].append(task('V', nt, jt, (nt + jt) % 3)); vt[w] = jt
    aux = [task('AT', i & 1, i >> 1) for i in range(2*C.NAT)] + [task('BT', i & 1, i >> 1) for i in range(18)]
    if C.BTLATE == 1:
        bts = aux[2*C.NAT:]; aux = aux[:2*C.NAT]
    if C.BTLATE == 2:
        bts = aux[18:36]; aux = aux[:18] + aux[36:]
    nidle = 64 - len(aux)
    idle = (sg + kv)[:nidle] if not C.GFIRST else (kv + g3 + sg)[:nidle]
    if C.BTLATE:
        first = [w for w in idle if w not in kv]
        if len(first) % 2: first = first[:-1]
        kvs = sorted([w for w in idle if w in kv], key=lambda w: (((w >> 3) - 18) >> 1, w & 7, w))
        for w, t in zip(first + kvs, bts): sch[w].append(t)
    cnt = [sum(1 for w in idle if w & 7 == x) for x in range(8)]
    auxw = []
    cand = {x: [W(x, loc) for loc in range(31, 22, -1) if (C.VMAP == 0 or vt[W(x, loc)] <= 4)] for x in range(8)}
    for ai in range(0, len(aux), 2):
        x = min([x for x in range(8) if len(cand[x]) >= 2], key=lambda x: cnt[x])
        for j in range(2):
            w = cand[x].pop(0); cnt[x] += 1
            sch[w].append(aux[ai + j]); auxw.append(w)
    tiles = {x: [task('PV', (x >> 2)*8 + (x & 1)*4 + (i & 3), ((x >> 1) & 1)*6 + (i >> 2)) for i in range(24)] for x in range(8)}
    left = []
    for x in range(8):
        for loc in range(32):
            w = W(x, loc)
            if w in idle or w in auxw: continue
            if tiles[x]: sch[w].append(tiles[x].pop(0))
            else: left.append(w)
    rem = [t for x in range(8) for t in tiles[x]]
    assert len(rem) == len(left), (len(rem), len(left))
    for w, t in zip(left, rem): sch[w].append(t)
    return sch

def make_schedule2():
    sch = [[] for _ in range(256)]
    W = lambda x, loc: x + 8*loc
    key = lambda w: (w & 7, w)
    for x in range(8):
        for loc in range(18):
            u = x*18 + loc; jg, r = divmod(u, 48); tn, jl = divmod(r, 3)
            sch[W(x, loc)].append(task('T', tn, jg*3 + jl, (2*jl + tn) % 3))
        for loc in range(16):
            sch[W(x, loc)].append(task('S', (x >> 2)*8 + (x & 1)*4 + (loc >> 2), ((x >> 1) & 1)*4 + (loc & 3)))
    def wvo(w):
        blk, ins = divmod(w, 9); bj, bi = divmod(blk, 3); tj = bj*3 + ins//3; ti = bi*3 + ins % 3
        return task('wvo', tj, ti, (ti + tj) % 3)
    kv = []
    for x in range(8):
        for i, loc in enumerate((29, 30, 31)):
            v = x*3 + i
            sch[W(x, loc)].append(task('kvc', v & 1, v >> 1)); kv.append(W(x, loc))
    pool = {x: [W(x, loc) for loc in ((20, 21, 22, 18, 19) if x & 1 else range(18, 23))] for x in range(8)}
    sp = []
    for x in range(8):
        ws_ = [W(x, loc) for loc in range(23, 29)] + [pool[x].pop(0) for _ in range(3)]
        order = [1, 2, 3, 5, 6, 7, 0, 4, 8]
        for w, o in zip(ws_, order): sch[w].append(wvo(x*9 + o))
        if x & 1: sp += ws_[6:]
    rem = [w for x in range(8) for w in pool[x]]
    rem.sort(key=key)
    for i in range(9): sch[rem[i]].append(wvo(72 + i))
    gl = rem[9:]
    for i in range(3): sch[gl[i]].append(task('pf', i))
    gj = 0
    for w in gl[:6]: sch[w].append(task('gate', gj, 1)); gj += 1
    for w in sp: sch[w].append(task('gate', gj, 1)); gj += 1
    assert gj == 18
    aux = [task('AT', i & 1, i >> 1) for i in range(18)] + [task('BT', i & 1, i >> 1) for i in range(18)]
    auxw = []
    for x in range(8): auxw += [W(x, 31), W(x, 30)]
    for x in range(8): auxw += [W(x, 29), W(x, 28)]
    auxw += [W(0, 27), W(0, 26), W(4, 27), W(4, 26)]
    for w, t in zip(auxw, aux): sch[w].append(t)
    lt = [(nt, jh*4 + j) for bb in range(2) for jh in range(2) for nt in (6 + 8*bb, 7 + 8*bb) for j in range(4)]
    l5 = [(5, 0), (5, 1), (13, 0), (13, 1)]
    for w, (nt, jt) in zip(sorted(auxw[:32], key=key), lt): sch[w].append(task('V', nt, jt, (nt + jt) % 3))
    for w, (nt, jt) in zip(auxw[32:], l5): sch[w].append(task('V', nt, jt, (nt + jt) % 3))
    rest = sorted([W(x, loc) for x in range(8) for loc in range(16, 32) if W(x, loc) not in auxw], key=key)
    nts = [0, 1, 2, 3, 4, 5, 8, 9, 10, 11, 12, 13]
    et = [(nts[g*3 + i], jh*4 + j) for g in range(4) for jh in range(2) for i in range(3) for j in range(4)]
    et = [t for t in et if t not in l5]
    assert len(rest) == len(et) == 92
    for w, (nt, jt) in zip(rest, et): sch[w].append(task('V', nt, jt, (nt + jt) % 3))
    skip = set(sp + gl + rem[:9])
    tiles = {x: [task('PV', (x >> 2)*8 + (x & 1)*4 + (i & 3), ((x >> 1) & 1)*6 + (i >> 2)) for i in range(24)] for x in range(8)}
    left = []
    for x in range(8):
        for loc in range(32):
            w = W(x, loc)
            if w in skip or w in auxw: continue
            if tiles[x]: sch[w].append(tiles[x].pop(0))
            else: left.append(w)
    remt = [t for x in range(8) for t in tiles[x]]
    assert len(remt) == len(left), (len(remt), len(left))
    for w, t in zip(left, remt): sch[w].append(t)
    return sch

def build(fn, stampf):
    C.PERSIST, C.STAMP = True, stampf
    k = K()
    k.L.append('.p2align 8'); k.label('code_start')
    for i, f in enumerate((phase_A, phase_B, phase_C, phase_D, phase_E)):
        PH[0] = i
        f(k)
        if i == 0:
            k.label('quit0'); k('s_endpgm')
    sch = make_schedule() if C.SCHED == 1 else make_schedule2()
    k.L.append('.p2align 6')
    k.L.append('.type task_table,@object')
    k.label('task_table')
    for w in range(256):
        val = 0
        assert len(sch[w]) <= 4
        for i, (r, p1, p2, rot) in enumerate(sch[w]):
            val |= (ROLES.index(r) | p1 << 4 | p2 << 9 | rot << 14) << (16*i)
        k.L.append(f'    .quad {hex(val)}')
    k.L.append('.size task_table, 2048')
    k.label('code_end')
    k('s_endpgm')
    json.dump([[t[0] for t in l] for l in sch], open('sched.json', 'w'))
    ref = open('standalone__pixart__diffusion.s.ref').read()
    hdr = ref.split('; Override launch geometry')[0]
    n = 'standalone__pixart__diffusion_kernel'
    hdr += (f'; @launch kernel={n} ' if C.LIST else '; @launch ') + f'grid=(256,1,1) block=(512,1,1) lds={LDS_MAX}\n'
    desc = '.section .rodata,"a"\n.p2align 6\n' + kernel_desc(n, 256, 102)
    hdr += '.amdgcn_target "amdgcn-amd-amdhsa--gfx950"\n.text\n'
    txt = k.text()
    if C.ALIGN:
        import re
        txt = re.sub(r'^(\w+_mm_\d+:)', r'.p2align 6\n\1', txt, flags=re.M)
    open(fn, 'w').write(hdr + txt + desc)

C.ROT = set('wqk tt wvo at bt'.split()); C.WIN = dict(wqk=6, tt=3); C.APRE = False; C.HPRE = True
if __name__ == '__main__':
    build('p4.s', False)
    build('p4_stamped.s', True)
    json.dump(WS, open('ws.json', 'w'))
```

```python
import sys, math, struct, json
from lib import *

D = 1152; NR = 2048
P_X, P_C, P_Y, P_WQKV, P_WO, P_WQC, P_WKVC, P_WOC, P_WMOD, P_OUT, P_DBG, P_WS = range(40, 64, 2)
def al(x): return (x + 4095) // 4096 * 4096
FL = {}
_f = 0
for nm, n in [('MOD', 72), ('GATE', 18), ('H', 64), ('WQK', 108), ('T', 144), ('WVO', 81), ('KVC', 24), ('P', 128), ('V', 128),
              ('X1', 192), ('AT', 36), ('BT', 18)]:
    FL[nm] = _f; _f += n
NFLAG = 1024
assert _f <= NFLAG
WS = {}
_o = 0
for nm, sz in [('FLAG', NFLAG*128), ('MODP', 2*2*2304*4), ('GATE', 2*1152*4), ('ST', 64*8*256), ('H', NR*D*2), ('WQK', D*D*2), ('WVO', D*D*2),
               ('T', NR*D*2), ('VT', NR*D*2), ('P', 2*1024*1024*2), ('KVC', 72*10*1024), ('AT', 36*10*1024), ('BT', 2*3*72*1024),
               ('X1', NR*D*2)]:
    WS[nm] = (_o, sz); _o = al(_o + sz)
WS['X1'] = WS['T']
ST = ' sc1'
CSC = (D ** -0.5) * math.log2(math.e)
def f32(x): return '0x%08x' % struct.unpack('<I', struct.pack('<f', x))[0]
LDS_MAX = 163840
L_CNT = LDS_MAX - 64

class Cfg:
    ROT = set('wqk tt wvo kvc ss vv pv at bt'.split())
    APRE = False
    SKIP = set()
    WQK_NS = 5
    WQK_NPRE = 3
    STAMP = False
    DBGT = False
    TLBW = 0
    HPRE = True
    PPOLL = False
    WIN = {}
    NAT = 9
    STAIL = True
    TPFW = 4
    VMAP = 1
    NBV = True
    SIDE = True
    GN0 = 18
    GPLAN = 0
    MPF = False
    HBAL = 2
    PFG = True
    CT = 0
    LAG = 2
    XF = 6
    BT0 = 0
    ECHK = 1
    ESLP = 4
    EPRE = False
    PRIO = None
    NPRE = 3
    ALIGN = False
    XLATE = False
    HPF2 = 'v'
    HPF2N = 11
    GFIRST = True
    WBL2 = False
    SPK = True
    BT1 = 20
    RSG = True
    PSLEEP = 3
    BTLATE = False
    PKMUL = 0
    SCHED = 1
    VM = [(0, 0x3f3f), (12, 0xc0c0)]
    KVPF = 0
    TPF = True
    WVOPF = True
    NS = dict(wqk=4, tt=3, wvo=4, ss=3, vv=3, pv=4, at=4, bt=4, kvc=4)
    LDX = ' sc1'
    OUTST = ' sc1'
    LIST = True
    PERSIST = False
C = Cfg()
STAMP_OFF = 128 << 20
PH = [0]
NAMES = ['pa_kernel', 'pb_kernel', 'pc_kernel', 'pd_kernel', 'pe_kernel']
VL = 0; VT = 2; VA = 4; VACC = 16
S_ROT = 74
def R(name): return S_ROT if name in C.ROT else None
def mod_const(k, s, m, maxv):
    div_const(k, S_T0, s, m, maxv)
    k(f's_mul_i32 s{S_T0}, s{S_T0}, {m}')
    k(f's_sub_u32 s{s}, s{s}, s{S_T0}')
def LD(): return C.LDX if C.PERSIST else ''
def Wn(name): return C.WIN.get(name, 0)
def rot_from(k, name, s_sum, n_full, maxv):
    w = Wn(name)
    if w:
        mod_const(k, s_sum, w, maxv)
    else:
        mod_const(k, s_sum, n_full, maxv)
        k(f's_mul_i32 s{s_sum}, s{s_sum}, {18 // n_full}')


def stamp(k, i):
    if C.STAMP: k(f's_memrealtime s[{86+2*i}:{87+2*i}]')
def cstamp(k, i):
    if C.STAMP: k(f's_memtime s[{86+2*i}:{87+2*i}]')
def stamp_begin(k):
    if C.STAMP: k('s_memrealtime s[98:99]\n' + '\n'.join(f's_mov_b32 s{86+2*i}, 0' for i in range(6)))

def phase_exit(k, drain=True):
    p = PH[0]
    k('s_mov_b64 exec, -1')
    if C.STAMP:
        if drain: k('s_waitcnt vmcnt(0)')
        k('s_memrealtime s[100:101]')
        k(f's_lshl_b32 s{S_T0}, s2, 8')
        k(f's_lshl_b32 s{S_T1}, s{S_WAVE}, 5')
        k(f's_add_u32 s{S_T0}, s{S_T0}, s{S_T1}')
        k(f's_add_u32 s{S_T0}, s{S_T0}, {STAMP_OFF}')
        k(f's_lshl_b32 s{S_T1}, s80, 16')
        k(f's_add_u32 s{S_T0}, s{S_T0}, s{S_T1}')
        k('s_waitcnt lgkmcnt(0)')
        k(f'v_mov_b32 v1, s{S_T0}\nv_mov_b32 v4, s98\nv_mov_b32 v5, s100')
        for i in range(6): k(f'v_mov_b32 v{6+i}, s{86+2*i}')
        k('s_mov_b64 exec, 1')
        k('global_store_dwordx4 v1, v[4:7], s[62:63]')
        k('global_store_dwordx4 v1, v[8:11], s[62:63] offset:16')
        k('s_mov_b64 exec, -1')
        k('s_nop 1')
    if p < 4:
        k('s_branch next_task')
    else:
        k('s_endpgm')

def ws_srd(k, srd, nm):
    make_srd(k, srd, P_WS, WS[nm][1], WS[nm][0])

def kernel_entry(k):
    name = 'standalone__pixart__diffusion_kernel'
    kernel_header(k, name)
    k('s_getpc_b64 s[76:77]')
    k('s_load_dwordx16 s[40:55], s[0:1], 0')
    k('s_load_dwordx8 s[56:63], s[0:1], 64')
    k('s_lshr_b32 s65, s2, 3')
    k('s_lshl_b32 s78, s65, 11')
    k('v_lshrrev_b32 v1, 6, v0')
    k('v_and_b32 v2, 1, v0')
    k('v_lshl_add_u32 v2, v1, 1, v2')
    k('v_lshl_add_u32 v2, v2, 7, s78')
    k('v_min_u32 v2, code_end - code_start - 8, v2')
    k('s_mov_b64 exec, 3')
    k('global_load_dword v15, v2, s[76:77]')
    k('s_mov_b64 exec, -1')
    stamp_begin(k)
    k('s_cmp_ge_u32 s2, 256')
    k('s_cbranch_scc1 quit0')
    k('v_and_b32 v0, 63, v0')
    k(f'v_readfirstlane_b32 s{S_WAVE}, v1')
    k('s_and_b32 s64, s2, 7')
    k('s_mov_b32 s80, 0')
    k('s_mov_b32 s81, 0')
    if C.PRIO:
        k(f's_cmp_ge_u32 s{S_WAVE}, 4')
        k('s_cbranch_scc1 prio_l' if C.PRIO == 'c' else 's_cbranch_scc0 prio_l')
        k('s_setprio 2')
        k.label('prio_l')
def args_ready(k):
    if PH[0] == 0:
        k('s_waitcnt lgkmcnt(0)')
        l = k.newlabel('tt_pc')
        k('s_getpc_b64 s[0:1]')
        k.label(l)
        k('s_lshl_b32 s85, s2, 3')
        k(f's_add_u32 s85, s85, task_table - {l}')
        k('s_load_dwordx2 s[0:1], s[0:1], s85')
        ws_srd(k, SRD_F, 'FLAG')
ROLES = ['E', 'T', 'wvo', 'kvc', 'gate', 'S', 'V', 'PV', 'AT', 'BT', 'pf']
def code_touch(k, nl=2):
    l = k.newlabel('ct')
    k(f's_getpc_b64 s[{S_T0}:{S_T0+1}]' if S_T0 % 2 == 0 else 's_getpc_b64 s[78:79]')
    k.label(l)
    k(f's_sub_u32 s78, s78, {l} - code_start')
    k('s_subb_u32 s79, s79, 0')
    k(f's_lshl_b32 s{S_T0}, s65, 11')
    if nl == 2:
        k(f's_lshl_b32 s{S_T1}, s{S_WAVE}, 8')
        k(f's_add_u32 s{S_T0}, s{S_T0}, s{S_T1}')
    k(f'v_lshl_add_u32 v13, v{VL}, 7, s{S_T0}')
    k('v_min_u32 v13, code_end - code_start - 4, v13')
    k(f's_mov_b64 exec, {hex((1 << nl) - 1)}')
    k('global_load_dword v11, v13, s[78:79]')
    k('s_mov_b64 exec, -1')

def dispatcher(k):
    k.label('next_task')
    k('s_waitcnt lgkmcnt(0)')
    k('s_add_u32 s80, s80, 1')
    stamp_begin(k)
    if C.CT >= 1: code_touch(k)
    k('s_and_b32 s66, s0, 15')
    k('s_bfe_u32 s67, s0, 0x50004')
    k('s_bfe_u32 s68, s0, 0x50009')
    k('s_bfe_u32 s74, s0, 0x2000e')
    k('s_lshr_b64 s[0:1], s[0:1], 16')
    for i in (1, 5, 7, 6, 2, 3, 4, 8, 9, 10):
        k(f's_cmp_eq_u32 s66, {i}')
        k(f's_cbranch_scc1 role_{ROLES[i]}')
    k('s_branch role_E')

def div_const(k, dst, src, d, maxv):
    for sh in range(4, 20):
        m = -(-(1 << sh) // d)
        if all((v*m) >> sh == v // d for v in range(maxv+1)):
            k(f's_mul_i32 s{dst}, s{src}, {m}')
            k(f's_lshr_b32 s{dst}, s{dst}, {sh}')
            return
    raise Exception('no magic')

SPIN = 0x20000
def poll(k, s_line, n, vt=252, force=False, mask=None):
    if not (C.PERSIST or force): return
    lp, done = k.newlabel('poll'), k.newlabel('polled')
    k(f'v_min_u32 v{vt}, {n-1}, v{VL}')
    k(f'v_lshlrev_b32 v{vt}, 7, v{vt}')
    k(f's_lshl_b32 s{S_T0}, s{s_line}, 7')
    k(f's_mov_b32 s{S_CNT}, {SPIN}')
    if mask: k(f's_mov_b64 exec, {hex(mask)}')
    elif n < 64: k(f's_mov_b64 exec, {hex((1 << n) - 1)}' if n <= 31 else f's_mov_b32 exec_hi, {hex((1 << (n-32)) - 1)}')
    if C.PPOLL:
        ld = lambda r: k(f'buffer_load_dword v{r}, v{vt}, {sr(SRD_F,4)}, s{S_T0} offen sc1')
        ld(vt+1)
        k('s_waitcnt vmcnt(0)')
        k(f'v_cmp_ne_u32 vcc, 1, v{vt+1}')
        k('s_nop 0')
        k('s_cmp_eq_u64 vcc, 0')
        k(f's_cbranch_scc1 {done}')
        ld(vt+1); k('s_sleep 2'); ld(vt+2); k('s_sleep 2')
        k.label(lp)
        for r in (0, 1, 2):
            ld(vt+1+(r+2) % 3)
            k('s_waitcnt vmcnt(2)')
            k(f'v_cmp_ne_u32 vcc, 1, v{vt+1+r}')
            k('s_sleep 1')
            k('s_cmp_eq_u64 vcc, 0')
            k(f's_cbranch_scc1 {done}')
        k(f's_sub_u32 s{S_CNT}, s{S_CNT}, 1')
        k(f's_cmp_lg_u32 s{S_CNT}, 0')
        k(f's_cbranch_scc1 {lp}')
    else:
        k.label(lp)
        k(f'buffer_load_dword v{vt+1}, v{vt}, {sr(SRD_F,4)}, s{S_T0} offen sc1')
        k(f's_sub_u32 s{S_CNT}, s{S_CNT}, 1')
        k('s_waitcnt vmcnt(0)')
        k(f'v_cmp_ne_u32 vcc, 1, v{vt+1}')
        k(f's_cmp_eq_u32 s{S_CNT}, 0')
        k(f's_cbranch_scc1 {done}')
        k('s_cmp_eq_u64 vcc, 0')
        k(f's_cbranch_scc1 {done}')
        k(f's_sleep {C.PSLEEP}')
        k(f's_branch {lp}')
    k.label(done)
    k('s_mov_b64 exec, -1')

def wait_init(k, vt=8):
    lp, done = k.newlabel('wi'), k.newlabel('wid')
    k(f'v_min_u32 v{vt}, 11, v{VL}')
    k(f'v_and_b32 v{vt+1}, 1, v{vt}')
    k(f'v_lshlrev_b32 v{vt+1}, 7, v{vt+1}')
    k(f'v_lshl_add_u32 v{vt}, v{vt}, 2, v{vt+1}')
    k(f's_mov_b32 s{S_CNT}, {SPIN}')
    k.label(lp)
    k(f'global_load_dword v{vt+1}, v{vt}, s[{P_DBG}:{P_DBG+1}] sc1')
    k(f's_sub_u32 s{S_CNT}, s{S_CNT}, 1')
    k('s_waitcnt vmcnt(0)')
    k(f'v_cmp_ne_u32 vcc, 1, v{vt+1}')
    k(f's_cmp_eq_u32 s{S_CNT}, 0')
    k(f's_cbranch_scc1 {done}')
    k('s_cmp_eq_u64 vcc, 0')
    k(f's_cbranch_scc1 {done}')
    k('s_sleep 3')
    k(f's_branch {lp}')
    k.label(done)

def set_flag(k, s_line, vt=8):
    k(f's_lshl_b32 s{S_T0}, s{s_line}, 7')
    k(f'v_mov_b32 v{vt}, 0\nv_mov_b32 v{vt+1}, 1')
    k('s_mov_b64 exec, 1')
    k(f'buffer_store_dword v{vt+1}, v{vt}, {sr(SRD_F,4)}, s{S_T0} offen sc1')
    k('s_mov_b64 exec, -1')

def signal(k, s_line, nwaves, vt=8):
    if not C.PERSIST: return
    skip = k.newlabel('sig')
    k('s_mov_b64 exec, -1')
    k(f's_lshl_b32 s{S_T0}, s{s_line}, 7')
    k(f'v_mov_b32 v{vt}, 0\nv_mov_b32 v{vt+1}, 1')
    k(f's_cmp_lg_u32 s{S_WAVE}, 0')
    k('s_waitcnt vmcnt(0)')
    k('s_barrier')
    k(f's_cbranch_scc1 {skip}')
    if C.WBL2: k('buffer_wbl2 sc1\ns_waitcnt vmcnt(0)')
    k('s_mov_b64 exec, 1')
    k(f'buffer_store_dword v{vt+1}, v{vt}, {sr(SRD_F,4)}, s{S_T0} offen sc1')
    k('s_mov_b64 exec, -1')
    k.label(skip)

def signal_lds(k, s_line, nwaves, vt=8):
    skip = k.newlabel('sig')
    k('s_mov_b64 exec, -1')
    k(f's_lshl_b32 s{S_T0}, s{s_line}, 7')
    k(f'v_mov_b32 v{vt}, 0\nv_mov_b32 v{vt+1}, 1\nv_mov_b32 v{vt+2}, {L_CNT}')
    k('s_mov_b64 exec, 1')
    k('s_waitcnt vmcnt(0)')
    k(f'ds_add_rtn_u32 v{vt+3}, v{vt+2}, v{vt+1}')
    k('s_waitcnt lgkmcnt(0)')
    k(f'v_cmp_eq_u32 vcc, {nwaves-1}, v{vt+3}')
    k('s_nop 0')
    k('s_cmp_eq_u64 vcc, 0')
    k(f's_cbranch_scc1 {skip}')
    if C.WBL2: k('buffer_wbl2 sc1\ns_waitcnt vmcnt(0)')
    k(f'buffer_store_dword v{vt+1}, v{vt}, {sr(SRD_F,4)}, s{S_T0} offen sc1')
    k.label(skip)
    k('s_mov_b64 exec, -1')
    stamp(k, 3)
    k('s_barrier')

def q2f_addr(k, v):
    k(f'v_and_b32 v{v}, 15, v{VL}\nv_lshlrev_b32 v{v}, 4, v{v}\nv_lshrrev_b32 v{VT}, 4, v{VL}\nv_lshl_add_u32 v{v}, v{VT}, 2, v{v}')
def f2q_addr(k, v):
    k(f'v_and_b32 v{v}, 3, v{VL}\nv_lshlrev_b32 v{v}, 6, v{v}\nv_and_b32 v{VT}, 0x3c, v{VL}\nv_add_u32 v{v}, v{v}, v{VT}')
def quad_voff(k, v, stride):
    k(f'v_lshrrev_b32 v{v}, 2, v{VL}\ns_mov_b32 s{S_T0}, {stride}\nv_mul_u32_u24 v{v}, s{S_T0}, v{v}\nv_and_b32 v{VT}, 3, v{VL}\nv_lshl_add_u32 v{v}, v{VT}, 4, v{v}')

def prefetch_flat(k, ptr, nbytes, s_worker, nworkers, vdst, maxper=99, srd=SRD_Y, vtmp=1):
    make_srd(k, srd, ptr, nbytes)
    k(f'v_lshlrev_b32 v{vtmp}, 7, v{VL}')
    per = min(maxper, -(-(-(-nbytes // 8192)) // nworkers))
    k(f's_lshl_b32 s{S_T0}, s{s_worker}, 13')
    for i in range(per):
        k(f'buffer_load_dword v{vdst}, v{vtmp}, {sr(srd,4)}, s{S_T0} offen')
        if i + 1 < per: k(f's_add_u32 s{S_T0}, s{S_T0}, {nworkers*8192}')
def prefetch_cols(k, srd, lines_per_row, colbyte, s_worker, nworkers, vdst, v0, v1, stride=6912, limit=None, per_override=None):
    tot = 1152 * lines_per_row
    per = -(-(tot // 64) // nworkers)
    if per_override: per = per_override
    sh = {18: 20, 36: 21}[lines_per_row]
    assert all((n*58255) >> sh == n // lines_per_row for n in range(per*nworkers*64)) and per*nworkers*64*58255 < 2**32
    k(f's_lshl_b32 s{S_T1}, s{s_worker}, 6')
    lend = k.newlabel('pfc')
    for i in range(per):
        if limit and i == per - 1:
            k(f's_cmp_ge_u32 s{S_T1}, {limit*64}')
            k(f's_cbranch_scc1 {lend}')
        k(f'v_add_u32 v{v0}, s{S_T1}, v{VL}')
        k(f's_mov_b32 s{S_T0}, 58255')
        k(f'v_mul_lo_u32 v{v1}, v{v0}, s{S_T0}')
        k(f'v_lshrrev_b32 v{v1}, {sh}, v{v1}')
        k(f's_mov_b32 s{S_T0}, {stride - lines_per_row*128}')
        k(f'v_mul_u32_u24 v{v1}, s{S_T0}, v{v1}')
        k(f'v_lshl_add_u32 v{v0}, v{v0}, 7, v{v1}')
        k(f's_mov_b32 s{S_T0}, {colbyte}')
        k(f'buffer_load_dword v{vdst}, v{v0}, {sr(srd,4)}, s{S_T0} offen')
        if i + 1 < per: k(f's_add_u32 s{S_T1}, s{S_T1}, {nworkers*64}')
    k.label(lend)

VMAX = [0]
LMAX = [0]
def gemm_role(k, g, epilogue, s_flag=None, npre=2, custom_consumer=None, cons_first=None, depA=None, depB=None, end_hookA=None, end_hookB=None, exit_hook=None, midA=None, tail=None, lds_sig=False):
    ll, lb = k.newlabel(g.name + '_loader'), k.newlabel(g.name + '_loaderB')
    npre = C.NPRE
    tailA = tail
    if C.CT >= 2 and tail is None:
        def tailA(k):
            code_touch(k, 16)
            return 1
    k(f's_cmp_ge_u32 s{S_WAVE}, 4')
    k(f's_cbranch_scc1 {ll}')
    if cons_first: cons_first(k)
    k(f's_and_b32 s{S_WB}, s{S_WAVE}, {g.WB-1}')
    k(f's_lshr_b32 s{S_WA}, s{S_WAVE}, {g.WB.bit_length()-1}')
    VF = VACC + g.ma*g.nb*4
    g.VF = VF
    g.VX = VF + 2*(g.ma+g.nb)*4
    g.vmax = g.VX
    if custom_consumer: custom_consumer(k, g)
    else: consumer_body(k, g, VL, VACC, VF, VA, VT, post_bar0=lambda k: (stamp(k, 0), cstamp(k, 4)))
    stamp(k, 1); cstamp(k, 5)
    epilogue(k, g)
    stamp(k, 2)
    if lds_sig: signal_lds(k, s_flag, 4)
    elif s_flag is not None: signal(k, s_flag, 4)
    lx = k.newlabel(g.name + '_exit')
    k.label(lx)
    if exit_hook: exit_hook(k)
    phase_exit(k, drain=not C.PERSIST)
    k.label(ll)
    k(f's_and_b32 s{S_W2}, s{S_WAVE}, 1')
    k(f's_cmp_ge_u32 s{S_WAVE}, 6')
    k(f's_cbranch_scc1 {lb}')
    def wrap(dep):
        def f(k):
            if dep: dep(k)
            stamp(k, 0)
        return f
    loader_body(k, g, g.A, VL, 1, VT, npre=npre, pre_hook=wrap(depA), end_barrier=C.PERSIST, end_hook=end_hookA, mid=midA, tail_hook=tailA)
    k(f's_branch {lx}')
    k.label(lb)
    loader_body(k, g, g.B, VL, 1, VT, npre=npre, pre_hook=wrap(depB), end_barrier=C.PERSIST, end_hook=end_hookB, tail_hook=tail)
    k(f's_branch {lx}')
    VMAX[0] = max(VMAX[0], g.vmax); LMAX[0] = max(LMAX[0], g.lds_bytes)
    assert g.lds_bytes <= L_CNT

def acc(g, a, b): return VACC + (a*g.nb + b)*4

def epi_frag16(rbtot, s_kb0, s_rb0, rowperm=False, npair_max=99):
    def f(k, g):
        npair = min(npair_max, (g.ma + 1) // 2)
        k(f's_mul_i32 s{S_T0}, s{S_WA}, {g.ma//2}')
        k(f's_add_u32 s{S_T0}, s{S_T0}, s{s_kb0}')
        k(f's_mul_i32 s{S_T0}, s{S_T0}, {rbtot}')
        k(f's_mul_i32 s{S_T1}, s{S_WB}, {g.nbstep}')
        k(f's_add_u32 s{S_T0}, s{S_T0}, s{S_T1}')
        k(f's_add_u32 s{S_T0}, s{S_T0}, s{s_rb0}')
        k(f's_lshl_b32 s{S_OBASE}, s{S_T0}, 10')
        if rowperm:
            assert g.nb % 2 == 0
            k(f'v_bfe_u32 v{VT}, v{VL}, 2, 1\nv_lshlrev_b32 v1, 10, v{VT}\nv_bfe_u32 v{VT}, v{VL}, 3, 1\nv_lshl_add_u32 v1, v{VT}, 6, v1')
            k(f'v_and_b32 v{VT}, 0x33, v{VL}\nv_lshl_add_u32 v1, v{VT}, 4, v1')
        else:
            k(f'v_lshlrev_b32 v1, 4, v{VL}')
        k('s_nop 1')
        t = g.VF
        for ap in range(npair):
            for b in range(g.nb):
                c0 = acc(g, 2*ap, b)
                k(f'v_cvt_pk_bf16_f32 v{t}, v{c0}, v{c0+1}')
                k(f'v_cvt_pk_bf16_f32 v{t+1}, v{c0+2}, v{c0+3}')
                if 2*ap+1 < g.ma:
                    c1 = acc(g, 2*ap+1, b)
                    k(f'v_cvt_pk_bf16_f32 v{t+2}, v{c1}, v{c1+1}')
                    k(f'v_cvt_pk_bf16_f32 v{t+3}, v{c1+2}, v{c1+3}')
                else:
                    k(f'v_mov_b32 v{t+2}, 0\nv_mov_b32 v{t+3}, 0')
                off = (b & ~1)*1024 + (b & 1)*128 if rowperm else b*1024
                hi, lo = off // 4096 * 4096, off % 4096
                k(f's_add_u32 s{S_T0}, s{S_OBASE}, {ap*rbtot*1024 + hi}')
                k(f'buffer_store_dwordx4 {vr(t,4)}, v1, {sr(SRD_O,4)}, s{S_T0} offen offset:{lo}{ST}')
                t += 4
        g.vmax = max(g.vmax, t)
    return f

def dep(*items):
    def f(k):
        for it in items:
            (s, mul, const, n), mask = it[:4], (it[4] if len(it) > 4 else None)
            if not C.PERSIST: continue
            if s is None: k(f's_mov_b32 s85, {const}')
            else:
                k(f's_mul_i32 s85, s{s}, {mul}')
                k(f's_add_u32 s85, s85, {const}')
            poll(k, 85, n, mask=mask)
    return f

def gemv_job(k, n, tag, s_goff, s_ldsrow, finish, n0=6):
    make_srd(k, SRD_A, P_WMOD, D*6*D*2)
    make_srd(k, SRD_B, P_C, 2*D*2)
    L_SILU, L_RED = 0, 9216
    VW, VS, VAC, VU, VC = 16, 88, 124, 140, 148
    k(f's_lshl_b32 s{S_T0}, s{S_WAVE}, 10')
    k(f'v_lshl_add_u32 v3, v{VL}, 4, s{S_T0}')
    k(f'buffer_load_dwordx4 {vr(VC,4)}, v3, {sr(SRD_B,4)}, 0 offen')
    k(f's_lshl_b32 s{S_T0}, s{S_WAVE}, 3')
    k(f'v_lshrrev_b32 v4, 3, v{VL}')
    k(f'v_add_u32 v4, s{S_T0}, v4')
    k(f'v_and_b32 v5, 7, v{VL}')
    k('v_lshlrev_b32 v5, 4, v5')
    k(f's_mov_b32 s{S_T0}, 13824')
    k(f'v_mad_u32_u24 v5, v4, s{S_T0}, v5')
    def issue_w(i0, i1):
        for i in range(i0, i1):
            if i: k(f's_add_u32 s{s_goff}, s{s_goff}, {64*13824}')
            k(f'buffer_load_dwordx4 {vr(VW+4*i,4)}, v5, {sr(SRD_A,4)}, s{s_goff} offen')
    issue_w(0, n0)
    k('v_lshlrev_b32 v4, 2, v4')
    if s_ldsrow is not None: k(f'v_add_u32 v4, s{s_ldsrow}, v4')
    k(f's_waitcnt vmcnt({n0})')
    for j in range(4):
        k(f'v_lshlrev_b32 v{VC+4+2*j}, 16, v{VC+j}')
        k(f'v_and_b32 v{VC+5+2*j}, 0xffff0000, v{VC+j}')
    for j in range(8): k(f'v_mul_f32 v{VU+j}, {f32(-math.log2(math.e))}, v{VC+4+j}')
    for j in range(8): k(f'v_exp_f32 v{VU+j}, v{VU+j}')
    for j in range(8): k(f'v_add_f32 v{VU+j}, 1.0, v{VU+j}')
    for j in range(8): k(f'v_rcp_f32 v{VU+j}, v{VU+j}')
    for j in range(8): k(f'v_mul_f32 v{VC+4+j}, v{VU+j}, v{VC+4+j}')
    k('v_lshlrev_b32 v8, 1, v3')
    k('v_cmp_gt_u32 vcc, 9216, v8')
    k('s_mov_b64 exec, vcc')
    k(f'ds_write_b128 v8, {vr(VC+4,4)} offset:{L_SILU}')
    k(f'ds_write_b128 v8, {vr(VC+8,4)} offset:{L_SILU+16}')
    k('s_mov_b64 exec, -1')
    k('s_waitcnt lgkmcnt(0)')
    k('s_barrier')
    stamp(k, 0)
    for i in range(n):
        k(f'ds_read2st64_b32 {vr(VS+2*i,2)}, v4 offset0:{i} offset1:{i+18}')
    issue_w(n0, n)
    k(f'v_bfe_u32 v6, v{VL}, 1, 2\nv_lshlrev_b32 v6, 7, v6\nv_lshrrev_b32 v7, 3, v{VL}\nv_lshl_add_u32 v6, v7, 4, v6\nv_and_b32 v7, 1, v{VL}\nv_lshl_add_u32 v6, v7, 3, v6')
    k(f'v_lshrrev_b32 v7, 4, v{VL}\nv_lshlrev_b32 v7, 7, v7\nv_and_b32 v9, 7, v{VL}\nv_lshl_add_u32 v7, v9, 4, v7')
    k(f's_lshl_b32 s{S_T0}, s{S_WAVE}, 9')
    k(f'v_add_u32 v7, s{S_T0}, v7')
    k(f'v_lshlrev_b32 v9, 2, v{VL}')
    for j in range(16): k(f'v_mov_b32 v{VAC+j}, 0')
    k('s_waitcnt lgkmcnt(0)')
    for i in range(n):
        k(f's_waitcnt vmcnt({n - 1 - i})')
        for j in range(4):
            k(f'v_lshlrev_b32 v{VU+2*j}, 16, v{VW+4*i+j}')
            k(f'v_and_b32 v{VU+2*j+1}, 0xffff0000, v{VW+4*i+j}')
        for j in range(4):
            k(f'v_pk_fma_f32 {vr(VAC+4*j,2)}, {vr(VS+2*i,2)}, {vr(VU+2*j,2)}, {vr(VAC+4*j,2)} op_sel:[0,0,0] op_sel_hi:[1,0,1]')
            k(f'v_pk_fma_f32 {vr(VAC+4*j+2,2)}, {vr(VS+2*i,2)}, {vr(VU+2*j,2)}, {vr(VAC+4*j+2,2)} op_sel:[0,1,0] op_sel_hi:[1,1,1]')
    stamp(k, 1)
    k('s_nop 1')
    for j in range(8): k(f'v_permlane32_swap_b32 v{VAC+j}, v{VAC+8+j}')
    for j in range(8): k(f'v_add_f32 v{VAC+j}, v{VAC+j}, v{VAC+8+j}')
    k('s_nop 1')
    for j in range(4): k(f'v_permlane16_swap_b32 v{VAC+j}, v{VAC+4+j}')
    for j in range(4): k(f'v_add_f32 v{VAC+4+j}, v{VAC+j}, v{VAC+4+j}')
    k('s_nop 1')
    for j in range(4): k(f'v_add_f32_dpp v{VAC+j}, v{VAC+4+j}, v{VAC+4+j} row_ror:8 row_mask:0xf bank_mask:0xf')
    k(f'ds_write_b128 v7, {vr(VAC,4)} offset:{L_RED}')
    k('s_waitcnt lgkmcnt(0)')
    k('s_barrier')
    k(f's_cmp_lg_u32 s{S_WAVE}, 0')
    k(f's_cbranch_scc1 gv_nored{tag}')
    for w in range(8): k(f'ds_read_b64 {vr(VAC+2*w,2)}, v6 offset:{L_RED + 512*w}')
    k('s_waitcnt lgkmcnt(0)')
    for st in (8, 4, 2):
        for j in range(0, st, 2):
            k(f'v_pk_add_f32 {vr(VAC+j,2)}, {vr(VAC+j,2)}, {vr(VAC+st+j,2)}')
    stamp(k, 2)
    finish(k, VAC)
    stamp(k, 3)
    k.label(f'gv_nored{tag}')
    k('s_barrier')
    VMAX[0] = max(VMAX[0], 160); LMAX[0] = max(LMAX[0], 16384)

def gate_job(k, s_idx):
    k(f's_lshl_b32 s{S_G}, s{s_idx}, 7')
    k(f's_add_u32 s{S_G}, s{S_G}, 4608')
    def fin(k, VAC):
        ws_srd(k, SRD_O, 'GATE')
        k(f's_lshl_b32 s{S_T1}, s{s_idx}, 8')
        k(f's_add_u32 s{S_T2}, s{S_T1}, 4608')
        k(f'buffer_store_dword v{VAC}, v9, {sr(SRD_O,4)}, s{S_T1} offen sc1')
        k(f'buffer_store_dword v{VAC+1}, v9, {sr(SRD_O,4)}, s{S_T2} offen sc1')
        if C.PERSIST:
            wait_init(k, 12)
            k(f's_add_u32 s85, s{s_idx}, {FL["GATE"]}')
            set_flag(k, 85, 12)
    gemv_job(k, 18, 'g', S_G, None, fin, n0=C.GN0)

def phase_A(k):
    kernel_entry(k)
    k('s_cmp_ge_u32 s65, 23')
    k('s_cbranch_scc1 pa_mod')
    k('s_cmp_lt_u32 s65, 8')
    k('s_cbranch_scc1 pa_h')
    k('s_and_b32 s66, s64, 1')
    k('s_lshr_b32 s67, s64, 1')
    k('s_sub_u32 s68, 5, s66')
    k('s_mul_i32 s70, s68, 3')
    k('s_sub_u32 s69, s65, 8')
    k('s_cmp_ge_u32 s69, s70')
    k('s_cbranch_scc1 pa_spare')
    div_const(k, 71, 69, 5, 31)
    k('s_lshr_b32 s72, s69, 2')
    k('s_cmp_eq_u32 s66, 0')
    k('s_cselect_b32 s71, s71, s72')
    k('s_mul_i32 s72, s71, s68')
    k('s_sub_u32 s72, s69, s72')
    k('s_lshl_b32 s74, s71, 1')
    k('s_add_u32 s74, s74, s72')
    rot_from(k, 'wqk', 74, 6, 16)
    k('s_mul_i32 s73, s66, 5')
    k('s_add_u32 s72, s72, s73')
    k('s_mul_i32 s73, s67, 3')
    k('s_add_u32 s71, s71, s73')
    k(f's_mul_i32 s{S_ABASE}, s72, {128*6912}')
    k(f's_mul_i32 s{S_BBASE}, s71, {96*6912}')
    k(f's_add_u32 s{S_BBASE}, s{S_BBASE}, {D*2}')
    k('s_lshl_b32 s75, s72, 2')
    k('s_mul_i32 s76, s71, 6')
    k('s_mul_i32 s77, s71, 9')
    k('s_add_u32 s77, s77, s72')
    k(f's_add_u32 s78, s77, {FL["WQK"]}')
    args_ready(k)
    make_srd(k, SRD_A, P_WQKV, D*3*D*2)
    ws_srd(k, SRD_O, 'WQK')
    g = Gemm('wqk', Opnd('row', 8, SRD_A, S_ABASE, stride=6912, perm=True), Opnd('row', 6, SRD_A, S_BBASE, stride=6912, perm=True), 2, 2, 18, C.NS['wqk'], rot=R('wqk'), win=Wn('wqk'))
    def a_pre(k):
        k(f's_mul_i32 s79, s{S_WAVE}, 108')
        k('s_add_u32 s79, s79, s77')
        k('s_add_u32 s79, s79, 512')
        prefetch_cols(k, SRD_A, 36, 0, 79, 432, 12, 1, 2, limit=648, per_override=1)
    def a_end(k):
        if C.PERSIST: wait_init(k)
    gemm_role(k, g, epi_frag16(72, 75, 76), s_flag=78, npre=2, cons_first=(a_pre if C.HBAL == 2 else None), end_hookA=a_end)
    k.label('pa_mod')
    if 'mod' in C.SKIP: k('s_endpgm')
    k('s_mul_i32 s73, s64, 9')
    k('s_add_u32 s73, s73, s65')
    k('s_sub_u32 s73, s73, 23')
    k('s_cmp_ge_u32 s73, 36')
    k('s_cselect_b32 s74, 1, 0')
    k('s_mul_i32 s75, s74, 36')
    k('s_sub_u32 s75, s73, s75')
    k(f's_mul_i32 s{S_G}, s74, {576*13824}')
    k(f's_lshl_b32 s{S_T0}, s75, 7')
    k(f's_add_u32 s{S_G}, s{S_G}, s{S_T0}')
    k('s_mul_i32 s76, s74, 2304')
    args_ready(k)
    def fin(k, VAC):
        ws_srd(k, SRD_O, 'MODP')
        k('s_cmp_ge_u32 s75, 18')
        k(f's_cselect_b32 s{S_T2}, 1.0, 0')
        k('s_cmp_eq_u32 s74, 0')
        k(f's_cselect_b32 s{S_T2}, s{S_T2}, 0')
        k(f'v_add_f32 v{VAC}, s{S_T2}, v{VAC}\nv_add_f32 v{VAC+1}, s{S_T2}, v{VAC+1}')
        k(f's_mul_i32 s{S_T1}, s74, 18432')
        k(f's_lshl_b32 s{S_T0}, s75, 8')
        k(f's_add_u32 s{S_T1}, s{S_T1}, s{S_T0}')
        k(f's_add_u32 s{S_T2}, s{S_T1}, 9216')
        k(f'buffer_store_dword v{VAC}, v9, {sr(SRD_O,4)}, s{S_T1} offen sc1')
        k(f'buffer_store_dword v{VAC+1}, v9, {sr(SRD_O,4)}, s{S_T2} offen sc1')
        wait_init(k, 12)
        k(f's_add_u32 s85, s73, {FL["MOD"]}')
        set_flag(k, 85, 12)
    gemv_job(k, 9, 'm', S_G, 76, fin)
    if C.MPF:
        k('s_lshl_b32 s79, s73, 3')
        k(f's_add_u32 s79, s79, s{S_WAVE}')
        k('s_add_u32 s79, s79, 72')
        prefetch_flat(k, P_WKVC, D*2*D*2, 79, 648, 14, vtmp=8)
    phase_exit(k, drain=False)
    k.label('pa_spare')
    k('s_mul_i32 s73, s67, 3')
    k('s_add_u32 s73, s73, s65')
    k('s_sub_u32 s73, s73, 20')
    args_ready(k)
    k(f'v_lshlrev_b32 v8, 4, v{VL}')
    k('v_mov_b32 v4, 0\nv_mov_b32 v5, 0\nv_mov_b32 v6, 0\nv_mov_b32 v7, 0')
    k('s_lshl_b32 s79, s73, 3')
    k(f's_add_u32 s79, s79, s{S_WAVE}')
    k(f's_lshl_b32 s{S_T0}, s79, 10')
    k(f'buffer_store_dwordx4 v[4:7], v8, {sr(SRD_F,4)}, s{S_T0} offen sc1')
    k(f's_add_u32 s{S_T0}, s{S_T0}, {96*1024}')
    k(f'buffer_store_dwordx4 v[4:7], v8, {sr(SRD_F,4)}, s{S_T0} offen sc1')
    k('s_waitcnt vmcnt(0)')
    k('s_barrier')
    k(f's_cmp_lg_u32 s{S_WAVE}, 0')
    k('s_cbranch_scc1 pa_noinit')
    k(f's_and_b32 s{S_T0}, s73, 1')
    k(f's_lshl_b32 s{S_T0}, s{S_T0}, 7')
    k(f's_lshl_b32 s{S_T1}, s73, 2')
    k(f's_add_u32 s{S_T0}, s{S_T0}, s{S_T1}')
    k(f'v_mov_b32 v8, 1\nv_mov_b32 v9, s{S_T0}')
    k('s_mov_b64 exec, 1')
    k(f'global_store_dword v9, v8, s[{P_DBG}:{P_DBG+1}] sc1')
    k('s_mov_b64 exec, -1')
    k.label('pa_noinit')
    k('s_lshl_b32 s79, s73, 3')
    k(f's_add_u32 s79, s79, s{S_WAVE}')
    if C.HBAL == 1:
        k('s_add_u32 s78, s79, 512')
        make_srd(k, SRD_Y, P_WQKV, D*3*D*2)
        prefetch_cols(k, SRD_Y, 36, 0, 78, 96, 13, 8, 9, limit=648, per_override=2)
    k('s_lshr_b32 s78, s79, 1')
    k('s_bitcmp1_b32 s79, 0')
    k('s_cbranch_scc1 pa_noy')
    prefetch_flat(k, P_Y, 2*77*D*2, 78, 48, 14, vtmp=8)
    k.label('pa_noy')
    phase_exit(k, drain=False)
    k.label('pa_h')
    if 'h' in C.SKIP: k('s_endpgm')
    k('s_lshl_b32 s73, s64, 3')
    k('s_add_u32 s73, s73, s65')
    args_ready(k)
    def h_pf(k):
        if not C.PERSIST: return
        k('s_lshl_b32 s79, s73, 3')
        k(f's_add_u32 s79, s79, s{S_WAVE}')
        prefetch_flat(k, P_WKVC, D*2*D*2, 79, 512, 14, maxper=1, vtmp=8)
        l1 = k.newlabel('hpf')
        k('s_cmp_ge_u32 s79, 180')
        k(f's_cbranch_scc1 {l1}')
        k('s_cmp_ge_u32 s79, 136')
        k(f's_cselect_b32 s{SRD_Y}, s{P_Y}, s{P_WKVC}')
        k(f's_cselect_b32 s{SRD_Y+1}, s{P_Y+1}, s{P_WKVC+1}')
        k(f's_mov_b32 s{S_T1}, {D*2*D*2}')
        k(f's_cselect_b32 s{SRD_Y+2}, {2*77*D*2}, s{S_T1}')
        k(f's_mov_b32 s{S_T1}, {512*8192}')
        k(f's_cselect_b32 s{S_T1}, {(-136*8192) & 0xffffffff}, s{S_T1}')
        k(f's_add_u32 s{S_T0}, s{S_T0}, s{S_T1}')
        k(f'buffer_load_dword v14, v8, {sr(SRD_Y,4)}, s{S_T0} offen')
        k.label(l1)
    L_STAT, L_MOD = 0, 2048
    VN, VM, VXD = 16, 112, 208
    if C.HPRE:
        k('s_lshl_b32 s79, s73, 3')
        k(f's_add_u32 s79, s79, s{S_WAVE}')
        make_srd(k, SRD_Y, P_WQKV, D*3*D*2)
        prefetch_cols(k, SRD_Y, 36, 0, 79, 512, 13, 8, 9, limit=(512 if C.HBAL else 648))
    k(f's_cmp_ge_u32 s{S_WAVE}, 6')
    k('s_cbranch_scc1 pa_hhelp')
    make_srd(k, SRD_X, P_X, NR*D*2)
    k(f'v_lshrrev_b32 v6, 3, v{VL}\ns_mov_b32 s{S_T0}, 2304\nv_mul_u32_u24 v6, s{S_T0}, v6\nv_and_b32 v7, 7, v{VL}\nv_lshl_add_u32 v6, v7, 4, v6')
    k(f's_mul_i32 s75, s73, {32*2304}')
    k(f's_mul_i32 s76, s{S_WAVE}, 384')
    k('s_add_u32 s75, s75, s76')
    for rg in range(4):
        for sg in range(3):
            k(f'buffer_load_dwordx4 {vr(VM+(rg*3+sg)*4,4)}, v6, {sr(SRD_X,4)}, s75 offen offset:{128*sg}')
        if rg < 3: k(f's_add_u32 s75, s75, {8*2304}')
    k(f'v_lshlrev_b32 v7, 5, v7\nv_lshrrev_b32 v8, 3, v{VL}\nv_lshl_add_u32 v7, v8, 2, v7')
    k(f's_mov_b32 s77, 0x3f803f80')
    for rg in range(4):
        k(f's_waitcnt vmcnt({9 - 3*rg})')
        for j in range(12): k(f'ds_bpermute_b32 v{VXD+12*rg+j}, v7, v{VM+12*rg+j}')
    stamp(k, 0)
    for rg in range(4):
        k(f'v_mov_b32 v{VN+2*rg}, 0\nv_mov_b32 v{VN+2*rg+1}, 0')
    k('s_waitcnt lgkmcnt(0)')
    for j in range(12):
        for rg in range(4):
            k(f'v_dot2_f32_bf16 v{VN+rg}, v{VXD+12*rg+j}, s77, v{VN+rg}')
            k(f'v_dot2_f32_bf16 v{VN+4+rg}, v{VXD+12*rg+j}, v{VXD+12*rg+j}, v{VN+4+rg}')
    k('s_nop 3')
    for j in range(4): k(f'v_permlane32_swap_b32 v{VN+j}, v{VN+4+j}')
    for j in range(4): k(f'v_add_f32 v{VN+j}, v{VN+j}, v{VN+4+j}')
    k('s_nop 1')
    for j in range(2): k(f'v_permlane16_swap_b32 v{VN+j}, v{VN+2+j}')
    for j in range(2): k(f'v_add_f32 v{VN+2+j}, v{VN+j}, v{VN+2+j}')
    k('s_nop 1')
    for j in range(2): k(f'v_add_f32_dpp v{VN+j}, v{VN+2+j}, v{VN+2+j} row_ror:8 row_mask:0xf bank_mask:0xf')
    k(f'v_and_b32 v9, 7, v{VL}\nv_mul_u32_u24 v9, 192, v9\nv_lshrrev_b32 v10, 4, v{VL}\nv_lshl_add_u32 v10, v10, 3, v9')
    k(f's_lshl_b32 s{S_T0}, s{S_WAVE}, 5')
    k(f'v_add_u32 v10, s{S_T0}, v10')
    k(f'ds_write_b64 v10, {vr(VN,2)} offset:{L_STAT}')
    k('s_waitcnt lgkmcnt(0)')
    k('s_barrier')
    for w in range(6):
        k(f'ds_read_b128 {vr(VM+8*w,4)}, v9 offset:{L_STAT + 32*w}')
        k(f'ds_read_b128 {vr(VM+8*w+4,4)}, v9 offset:{L_STAT + 32*w + 16}')
    k('s_waitcnt lgkmcnt(0)')
    for w in range(1, 6):
        for j in range(0, 8, 2): k(f'v_pk_add_f32 {vr(VM+j,2)}, {vr(VM+j,2)}, {vr(VM+8*w+j,2)}')
    for rg in range(4):
        k(f'v_mul_f32 v{VM+rg}, {f32(1.0/D)}, v{VM+rg}')
        k(f'v_mul_f32 v{VM+4+rg}, {f32(1.0/D)}, v{VM+4+rg}')
        k(f'v_fma_f32 v{VM+4+rg}, -v{VM+rg}, v{VM+rg}, v{VM+4+rg}')
        k(f'v_max_f32 v{VM+4+rg}, 0, v{VM+4+rg}')
        k(f'v_add_f32 v{VM+4+rg}, {f32(1e-5)}, v{VM+4+rg}')
        k(f'v_rsq_f32 v{VM+4+rg}, v{VM+4+rg}')
        k('s_nop 0')
        k(f'v_mul_f32 v{VM+rg}, v{VM+rg}, v{VM+4+rg}')
    for rg in range(4):
        for j in range(12):
            n = VN + 24*rg + 2*j
            k(f'v_lshlrev_b32 v{n}, 16, v{VXD+12*rg+j}')
            k(f'v_and_b32 v{n+1}, 0xffff0000, v{VXD+12*rg+j}')
            k(f'v_fma_f32 v{n}, v{n}, v{VM+4+rg}, -v{VM+rg}')
            k(f'v_fma_f32 v{n+1}, v{n+1}, v{VM+4+rg}, -v{VM+rg}')
    ws_srd(k, SRD_A, 'H')
    k(f'v_lshrrev_b32 v8, 3, v{VL}\nv_lshlrev_b32 v8, 5, v8')
    k(f's_mul_i32 s{S_T0}, s{S_WAVE}, 768')
    k(f'v_add_u32 v8, s{S_T0}, v8')
    k(f'v_lshrrev_b32 v9, 5, v{VL}\nv_lshlrev_b32 v9, 17, v9\nv_bfe_u32 v10, v{VL}, 3, 2\nv_lshl_add_u32 v9, v10, 8, v9\nv_and_b32 v10, 7, v{VL}\nv_lshl_add_u32 v9, v10, 4, v9')
    k(f's_mul_i32 s{S_G}, s{S_WAVE}, {6*128}')
    k('s_lshl_b32 s76, s73, 1')
    k(f's_add_u32 s{S_G}, s{S_G}, s76')
    k(f's_lshl_b32 s{S_G}, s{S_G}, 10')
    stamp(k, 1)
    k('s_barrier')
    stamp(k, 2)
    for sg in range(3):
        m = VM + 32*sg
        for ks in range(2):
            for kind in range(2):
                for h in range(2):
                    k(f'ds_read_b128 {vr(m+16*ks+8*kind+4*h,4)}, v8 offset:{L_MOD + ks*9216 + kind*4608 + sg*256 + 16*h}')
    for sg in range(3):
        m = VM + 32*sg
        k(f's_waitcnt lgkmcnt({min(15, 8*(2-sg))})')
        for j in range(0, 16, 2): k(f'v_pk_add_f32 {vr(m+j,2)}, {vr(m+j,2)}, {vr(m+16+j,2)}')
        k(f's_add_u32 s{S_T0}, s{S_G}, {sg*2*128*1024}')
        for rg in range(4):
            n = VN + 24*rg + 8*sg
            o = VXD + 12*rg + 4*sg
            for j in range(0, 8, 2): k(f'v_pk_fma_f32 {vr(n+j,2)}, {vr(n+j,2)}, {vr(m+8+j,2)}, {vr(m+j,2)}')
            for j in range(4): k(f'v_cvt_pk_bf16_f32 v{o+j}, v{n+2*j}, v{n+2*j+1}')
            k(f'buffer_store_dwordx4 {vr(o,4)}, v9, {sr(SRD_A,4)}, s{S_T0} offen offset:{(rg>>1)*1024 + (rg&1)*128}{ST}')
    stamp(k, 3)
    k(f's_add_u32 s85, s73, {FL["H"]}')
    signal(k, 85, 6, 12)
    k.label('pa_hout')
    phase_exit(k, drain=not C.PERSIST)
    k.label('pa_hhelp')
    k(f's_cmp_eq_u32 s{S_WAVE}, 7')
    k('s_cbranch_scc1 pa_hpoll')
    if C.TLBW:
        sh = C.TLBW
        k(f'v_lshlrev_b32 v8, 3, v{VL}')
        k('v_add_u32 v8, s65, v8')
        k(f'v_lshlrev_b32 v8, {sh}, v8')
        span = 512 << sh
        for ptr, nb in [(P_WS, _o), (P_OUT, NR*D*2), (P_WQKV, D*3*D*2), (P_WO, D*D*2), (P_WQC, D*D*2), (P_WKVC, D*2*D*2), (P_WOC, D*D*2), (P_WMOD, D*6*D*2), (P_Y, 2*77*D*2)]:
            make_srd(k, SRD_Y, ptr, nb)
            for i in range(-(-nb // span)):
                k(f's_mov_b32 s{S_T0}, {i*span}')
                k(f'buffer_load_dword v14, v8, {sr(SRD_Y,4)}, s{S_T0} offen sc1')
    if C.HPF2:
        k('s_waitcnt vmcnt(0)')
        if C.HPF2 == 'v':
            make_srd(k, SRD_Y, P_WQKV, D*3*D*2)
            prefetch_cols(k, SRD_Y, 18, 4608, 73, 64, 13, 8, 9, limit=324)
            prefetch_flat(k, P_WO, D*D*2, 73, 64, 13, vtmp=8)
        else:
            prefetch_flat(k, P_WKVC, D*2*D*2, 73, 64, 13, vtmp=8, maxper=C.HPF2N)
    k.label('pa_hidle')
    k('s_waitcnt lgkmcnt(0)')
    k('s_barrier')
    k('s_barrier')
    if C.PERSIST: k('s_barrier')
    k('s_branch pa_hout')
    k.label('pa_hpoll')
    wait_init(k)
    k('s_barrier')
    k(f'v_min_u32 v8, 35, v{VL}')
    k('v_lshlrev_b32 v8, 7, v8')
    k(f's_mov_b32 s{S_T0}, {FL["MOD"]*128}')
    k(f's_mov_b32 s{S_T1}, {(FL["MOD"]+36)*128}')
    k(f's_mov_b32 s{S_CNT}, {SPIN}')
    k('s_mov_b32 exec_hi, 15')
    k.label('pa_mp')
    k(f'buffer_load_dword v9, v8, {sr(SRD_F,4)}, s{S_T0} offen sc1')
    k(f'buffer_load_dword v10, v8, {sr(SRD_F,4)}, s{S_T1} offen sc1')
    k(f's_sub_u32 s{S_CNT}, s{S_CNT}, 1')
    k('s_waitcnt vmcnt(0)')
    k('v_add_u32 v9, v9, v10')
    k('v_cmp_ne_u32 vcc, 2, v9')
    k(f's_cmp_eq_u32 s{S_CNT}, 0')
    k('s_cbranch_scc1 pa_mpd')
    k('s_cmp_eq_u64 vcc, 0')
    k('s_cbranch_scc1 pa_mpd')
    k('s_sleep 2')
    k('s_branch pa_mp')
    k.label('pa_mpd')
    k('s_mov_b64 exec, -1')
    stamp(k, 0)
    ws_srd(k, SRD_O, 'MODP')
    k(f'v_lshlrev_b32 v8, 4, v{VL}')
    k('s_lshr_b32 s79, s73, 5')
    k('s_mul_i32 s79, s79, 9216')
    for ks in range(2):
        for c in range(9):
            if c % 4 == 0:
                k(f's_mov_b32 m0, {L_MOD + ks*9216 + c*1024}')
                k(f's_add_u32 s{S_T0}, s79, {ks*18432 + c*1024}')
            k(f'buffer_load_dwordx4 v8, {sr(SRD_O,4)}, s{S_T0} offen offset:{(c%4)*1024} sc1 lds')
    k('s_waitcnt vmcnt(0)')
    k('s_barrier')
    if C.PERSIST: k('s_barrier')
    k('s_branch pa_hout')
    VMAX[0] = 256

def phase_B(k):
    dispatcher(k)
    k.label('role_T')
    k('s_mul_i32 s66, s67, 9')
    k('s_add_u32 s66, s66, s68')
    k(f's_lshl_b32 s{S_ABASE}, s68, 13')
    k(f's_lshl_b32 s{S_BBASE}, s67, 13')
    k('s_lshl_b32 s75, s68, 2')
    k('s_lshl_b32 s76, s67, 3')
    k(f's_add_u32 s78, s66, {FL["T"]}')
    k('s_lshl_b32 s69, s68, 2')
    div_const(k, 69, 69, 3, 40)
    args_ready(k)
    ws_srd(k, SRD_A, 'WQK'); ws_srd(k, SRD_B, 'H'); ws_srd(k, SRD_O, 'T')
    g1 = Gemm('tt', Opnd('frag', 8, SRD_A, S_ABASE, rbtot=72, aux=LD()), Opnd('frag', 8, SRD_B, S_BBASE, rbtot=128, aux=LD()), 2, 2, 18, C.NS['tt'], rot=R('tt'), win=Wn('tt'))
    def c_pf(k, s_chunk, n, step):
        k(f's_bitcmp1_b32 s{S_WAVE}, 1')
        k(f's_cselect_b32 s{SRD_Y}, s{P_WQC}, s{P_WOC}')
        k(f's_cselect_b32 s{SRD_Y+1}, s{P_WQC+1}, s{P_WOC+1}')
        k(f's_mov_b32 s{SRD_Y+2}, {D*D*2}')
        k(f's_mov_b32 s{SRD_Y+3}, 0x00020000')
        k(f'v_lshlrev_b32 v8, 7, v{VL}')
        k(f's_lshl_b32 s{S_T0}, s{s_chunk}, 13')
        for i in range(n):
            k(f'buffer_load_dword v14, v8, {sr(SRD_Y,4)}, s{S_T0} offen')
            if i + 1 < n: k(f's_add_u32 s{S_T0}, s{S_T0}, {step*8192}')
    def t_pf(k):
        if not C.TPF: return
        if C.TPF == 'c':
            k('s_lshl_b32 s79, s66, 1')
            k(f's_and_b32 s{S_T1}, s{S_WAVE}, 1')
            k(f's_add_u32 s79, s79, s{S_T1}')
            k('s_add_u32 s79, s79, 36')
            c_pf(k, 79, 1, 0)
            return
        nw = C.TPFW
        lt = k.newlabel('tpf')
        k(f's_cmp_ge_u32 s{S_WAVE}, {nw}')
        k(f's_cbranch_scc1 {lt}')
        k(f's_mul_i32 s79, s66, {nw}')
        k(f's_add_u32 s79, s79, s{S_WAVE}')
        k(f's_add_u32 s79, s79, {648 - 144*nw}')
        prefetch_flat(k, P_WKVC, D*2*D*2, 79, 648, 14, vtmp=8)
        k.label(lt)
    gemm_role(k, g1, epi_frag16(128, 75, 76), s_flag=78, cons_first=t_pf, depA=dep((69, 9, FL['WQK'], 18)), depB=dep((67, 4, FL['H'], 4)))
    k.label('role_wvo')
    k('s_mul_i32 s66, s67, 9')
    k('s_add_u32 s66, s66, s68')
    if not Wn('wvo'): k('s_mul_i32 s74, s74, 6')
    k(f's_mul_i32 s{S_ABASE}, s68, {128*6912}')
    k(f's_add_u32 s{S_ABASE}, s{S_ABASE}, {2*D*2}')
    k(f's_lshl_b32 s{S_BBASE}, s67, 8')
    k('s_lshl_b32 s75, s68, 2')
    k('s_lshl_b32 s76, s67, 3')
    k(f's_add_u32 s78, s66, {FL["WVO"]}')
    args_ready(k)
    make_srd(k, SRD_A, P_WQKV, D*3*D*2); make_srd(k, SRD_B, P_WO, D*D*2); ws_srd(k, SRD_O, 'WVO')
    g2 = Gemm('wvo', Opnd('row', 8, SRD_A, S_ABASE, stride=6912, perm=True), Opnd('col', 8, SRD_B, S_BBASE, stride=2304), 2, 2, 18, C.NS['wvo'], rot=R('wvo'), win=Wn('wvo'))
    def wvo_exit(k):
        if not C.PERSIST: return
        k('s_lshl_b32 s79, s66, 2')
        k(f's_and_b32 s{S_T1}, s{S_WAVE}, 3')
        k(f's_add_u32 s79, s79, s{S_T1}')
        k(f's_cmp_ge_u32 s{S_WAVE}, 4')
        k(f's_cselect_b32 s{SRD_Y}, s{P_WQC}, s{P_WOC}')
        k(f's_cselect_b32 s{SRD_Y+1}, s{P_WQC+1}, s{P_WOC+1}')
        k(f's_mov_b32 s{SRD_Y+2}, {D*D*2}')
        k(f's_mov_b32 s{SRD_Y+3}, 0x00020000')
        k(f'v_lshlrev_b32 v8, 7, v{VL}')
        k(f's_lshl_b32 s{S_T0}, s79, 13')
        k(f'buffer_load_dword v14, v8, {sr(SRD_Y,4)}, s{S_T0} offen')
    gemm_role(k, g2, epi_frag16(72, 75, 76, rowperm=True), s_flag=78, exit_hook=(wvo_exit if C.WVOPF == 1 else None), end_hookA=wait_init)
    def kv_pf(k, s_idx):
        k(f's_lshl_b32 s79, s{s_idx}, 3')
        k(f's_add_u32 s79, s79, s{S_WAVE}')
        prefetch_flat(k, P_WKVC, D*2*D*2, 79, 224, 14, vtmp=8, maxper=C.KVPF)
    k.label('role_kvc')
    if C.KVPF:
        k('s_lshl_b32 s66, s68, 1')
        k('s_add_u32 s66, s66, s67')
        kv_pf(k, 66)
    k(f's_mul_i32 s{S_ABASE}, s68, 384')
    k(f's_mul_i32 s{S_BBASE}, s67, {77*2304}')
    k('s_mul_i32 s78, s67, 12')
    k('s_add_u32 s78, s78, s68')
    k(f's_add_u32 s78, s78, {FL["KVC"]}')
    args_ready(k)
    make_srd(k, SRD_A, P_WKVC, D*2*D*2); make_srd(k, SRD_B, P_Y, 2*77*D*2); ws_srd(k, SRD_O, 'KVC')
    g3 = Gemm('kvc', Opnd('col', 12, SRD_A, S_ABASE, stride=4608), Opnd('row', 5, SRD_B, S_BBASE, stride=2304), 4, 1, 18, C.NS['kvc'])
    def epi_kvc(k, g):
        k(f'v_and_b32 v1, 15, v{VL}\nv_lshlrev_b32 v1, 4, v1\nv_lshrrev_b32 v{VT}, 5, v{VL}\nv_lshl_add_u32 v1, v{VT}, 8, v1')
        k(f'v_bfe_u32 v{VT}, v{VL}, 4, 1\nv_lshl_add_u32 v1, v{VT}, 3, v1')
        k('s_mul_i32 s70, s68, 12')
        k(f's_mul_i32 s71, s{S_WA}, 3')
        k('s_add_u32 s70, s70, s71')
        k('s_mul_i32 s72, s67, 5120')
        t = g.VF
        for i in range(3):
            k(f's_add_u32 s71, s70, {i}')
            k(f's_lshr_b32 s{S_T0}, s71, 1')
            k(f's_mul_i32 s{S_T0}, s{S_T0}, 10240')
            k('s_and_b32 s71, s71, 1')
            k('s_lshl_b32 s71, s71, 9')
            k(f's_add_u32 s{S_T0}, s{S_T0}, s71')
            k(f's_add_u32 s{S_T0}, s{S_T0}, s72')
            for b in range(5):
                c0 = acc(g, i, b)
                k(f'v_cvt_pk_bf16_f32 v{t}, v{c0}, v{c0+1}')
                k(f'v_cvt_pk_bf16_f32 v{t+1}, v{c0+2}, v{c0+3}')
                if b == 4: k(f's_add_u32 s{S_T0}, s{S_T0}, 4096')
                k(f'buffer_store_dwordx2 {vr(t,2)}, v1, {sr(SRD_O,4)}, s{S_T0} offen offset:{(b%4)*1024}{ST}')
                t += 2
    gemm_role(k, g3, epi_kvc, s_flag=78, end_hookA=wait_init)
    k.label('role_gate')
    k('s_mov_b32 s73, s67')
    k('s_mov_b32 s72, s68')
    k.label('pb_gate')
    gate_job(k, 73)
    k('s_add_u32 s73, s73, 1')
    k('s_sub_u32 s72, s72, 1')
    k('s_cmp_lg_u32 s72, 0')
    k('s_cbranch_scc1 pb_gate')
    phase_exit(k, drain=False)
    k.label('role_pf')
    if C.TPF == 'c':
        k(f's_and_b32 s79, s{S_WAVE}, 1')
        k(f's_lshr_b32 s78, s{S_WAVE}, 2')
        k('s_lshl_b32 s78, s78, 1')
        k('s_add_u32 s79, s79, s78')
        k('s_lshl_b32 s78, s67, 2')
        k('s_add_u32 s79, s79, s78')
        c_pf(k, 79, 3, 12)
    elif C.TPF or C.MPF:
        k('s_sub_u32 s79, s67, 24')
        k('s_lshl_b32 s79, s79, 3')
        k(f's_add_u32 s79, s79, s{S_WAVE}')
        prefetch_flat(k, P_WKVC, D*2*D*2, 79, 32, 14, vtmp=8, maxper=3)
    else: kv_pf(k, 67)
    phase_exit(k, drain=False)

L_XR, L_GT = 131072, 131072 + 24576
def side_sub(k):
    k.label('side_x')
    k('s_and_b32 s85, s0, 15')
    k('s_bfe_u32 s76, s0, 0x50004')
    k('s_bfe_u32 s77, s0, 0x50009')
    make_srd(k, SRD_Y, P_X, NR*D*2)
    k(f's_cmp_lg_u32 s85, {ROLES.index("PV")}')
    k(f's_cselect_b32 s{SRD_Y+2}, 0, s{SRD_Y+2}')
    quad_voff(k, 1, 2304)
    k(f's_sub_u32 s75, s{S_WAVE}, 4')
    k(f's_lshl_b32 s{S_T0}, s76, 2')
    k(f's_add_u32 s{S_T0}, s{S_T0}, s75')
    k(f's_mul_i32 s{S_G}, s{S_T0}, {32*2304}')
    k(f's_mul_i32 s{S_T1}, s77, 192')
    k(f's_add_u32 s{S_G}, s{S_G}, s{S_T1}')
    k('s_mul_i32 s75, s75, 6144')
    for ap in range(3):
        for b in range(2):
            k(f's_add_u32 m0, s75, {L_XR + (ap*2+b)*1024}')
            k(f's_add_u32 s{S_T0}, s{S_G}, {b*16*2304 + ap*64}')
            k(f'buffer_load_dwordx4 v1, {sr(SRD_Y,4)}, s{S_T0} offen lds')
    k('s_setpc_b64 s[78:79]')
    k.label('side_g')
    k('s_and_b32 s85, s0, 15')
    k(f's_cmp_lg_u32 s85, {ROLES.index("PV")}')
    k('s_cbranch_scc1 side_ret')
    k(f's_cmp_lg_u32 s{S_WAVE}, 4')
    k('s_cbranch_scc1 side_ret')
    k(f's_mov_b32 s85, {FL["GATE"]}')
    poll(k, 85, 18)
    ws_srd(k, SRD_Y, 'GATE')
    k(f'v_lshlrev_b32 v1, 4, v{VL}')
    k('s_lshr_b32 s76, s76, 3')
    k(f's_mul_i32 s{S_T0}, s76, 4608')
    k(f's_mul_i32 s{S_T1}, s77, 384')
    k(f's_add_u32 s{S_T0}, s{S_T0}, s{S_T1}')
    k(f's_mov_b32 m0, {L_GT}')
    k('s_mov_b64 exec, 0xffffff')
    k(f'buffer_load_dwordx4 v1, {sr(SRD_Y,4)}, s{S_T0} offen sc1 lds')
    k('s_mov_b64 exec, -1')
    k.label('side_ret')
    k('s_setpc_b64 s[78:79]')
def side_tail(k):
    k('s_call_b64 s[78:79], side_x')
    return 6
def side_hook(k):
    if not C.STAIL: k('s_call_b64 s[78:79], side_x')
    k('s_call_b64 s[78:79], side_g')

def phase_C(k):
    if C.SIDE: side_sub(k)
    k.label('role_S')
    k('s_mov_b32 s70, s67')
    k('s_lshr_b32 s66, s70, 3')
    k('s_and_b32 s67, s70, 7')
    k('s_lshl_b32 s69, s66, 3')
    k('s_add_u32 s71, s69, s68')
    k(f's_lshl_b32 s{S_ABASE}, s71, 13')
    k(f's_lshl_b32 s{S_BBASE}, s70, 13')
    k('s_lshl_b32 s75, s68, 2')
    k('s_lshl_b32 s76, s67, 3')
    k('s_lshl_b32 s77, s66, 21')
    k('s_lshl_b32 s72, s70, 3')
    k('s_add_u32 s72, s72, s68')
    k(f's_add_u32 s72, s72, {FL["P"]}')
    args_ready(k)
    ws_srd(k, SRD_A, 'H'); ws_srd(k, SRD_B, 'T'); ws_srd(k, SRD_O, 'P'); ws_srd(k, SRD_X, 'ST')
    g1 = Gemm('ss', Opnd('frag', 8, SRD_A, S_ABASE, rbtot=128, aux=LD()), Opnd('frag', 8, SRD_B, S_BBASE, rbtot=128, aux=LD()), 1, 4, 18, C.NS['ss'], rot=R('ss'), win=Wn('ss'))
    def epi_s(k, g):
        k(f's_mov_b32 s78, {f32(CSC)}')
        k(f's_mov_b32 s79, 0x3f803f80')
        VM = (g.VX + 3) // 4 * 4
        k(f's_lshl_b32 s{S_T0}, s75, 6')
        k(f's_add_u32 s{S_T0}, s{S_T0}, s76')
        k(f's_lshl_b32 s{S_T1}, s{S_WB}, 1')
        k(f's_add_u32 s{S_T0}, s{S_T0}, s{S_T1}')
        k(f's_lshl_b32 s{S_OBASE}, s{S_T0}, 10')
        k(f's_add_u32 s{S_OBASE}, s{S_OBASE}, s77')
        k(f'v_lshlrev_b32 v1, 4, v{VL}')
        for j in range(4): k(f'v_mov_b32 v{VM+8+j}, s79')
        k(f'v_mov_b32 v{VM+20}, s78\nv_mov_b32 v{VM+21}, s78')
        t = g.VF
        for b in range(2):
            regs = [acc(g, a, b) + r for a in range(8) for r in range(4)]
            m = VM + b; m2 = VM + 4 + b
            k(f'v_max3_f32 v{m}, v{regs[0]}, v{regs[1]}, v{regs[2]}')
            k(f'v_max3_f32 v{m2}, v{regs[3]}, v{regs[4]}, v{regs[5]}')
            i = 6; tog = 0
            while i < 32:
                d = m if tog == 0 else m2
                k(f'v_max3_f32 v{d}, v{d}, v{regs[i]}, v{regs[i+1]}')
                i += 2; tog ^= 1
            k(f'v_max_f32 v{m}, v{m}, v{m2}')
        for sw in ('v_permlane32_swap_b32', 'v_permlane16_swap_b32'):
            k(f'v_mov_b32 v{VM+4}, v{VM}\nv_mov_b32 v{VM+5}, v{VM+1}')
            k('s_nop 0')
            k(f'{sw} v{VM}, v{VM+4}')
            k(f'{sw} v{VM+1}, v{VM+5}')
            k('s_nop 0')
            k(f'v_max_f32 v{VM}, v{VM}, v{VM+4}\nv_max_f32 v{VM+1}, v{VM+1}, v{VM+5}')
        k(f'v_mul_f32 v{VM}, s78, v{VM}\nv_mul_f32 v{VM+1}, s78, v{VM+1}')
        VON, VL0, VC2 = VM + 8, VM + 12, VM + 20
        pend = []
        for ap in range(4):
            for b in range(2):
                regs = [acc(g, 2*ap+h, b) + r for h in range(2) for r in range(4)]
                if C.SPK:
                    sel = 'op_sel:[0,0,0] op_sel_hi:[1,1,0]' if b == 0 else 'op_sel:[0,0,1] op_sel_hi:[1,1,1]'
                    for r in regs[::2]: k(f'v_pk_fma_f32 {vr(r,2)}, {vr(r,2)}, {vr(VC2,2)}, {vr(VM,2)} {sel} neg_lo:[0,0,1] neg_hi:[0,0,1]')
                else:
                    for r in regs: k(f'v_fma_f32 v{r}, v{r}, s78, -v{VM+b}')
                for x in pend: k(x)
                for r in regs: k(f'v_exp_f32 v{r}, v{r}')
                k(f's_add_u32 s{S_T0}, s{S_OBASE}, {ap*64*1024}')
                for j in range(4): k(f'v_cvt_pk_bf16_f32 v{t+j}, v{regs[2*j]}, v{regs[2*j+1]}')
                k(f'buffer_store_dwordx4 {vr(t,4)}, v1, {sr(SRD_O,4)}, s{S_T0} offen offset:{b*1024}{ST}')
                pend = [f'v_mfma_f32_16x16x32_bf16 {vr(VL0+4*b,4)}, {vr(VON,4)}, {vr(t,4)}, ' + ('0' if ap == 0 else vr(VL0+4*b,4))]
                t += 4
        k('s_nop 0')
        for x in pend: k(x)
        k(f's_lshl_b32 s{S_T0}, s70, 2')
        k(f's_add_u32 s{S_T0}, s{S_T0}, s{S_WB}')
        k(f's_lshl_b32 s{S_T0}, s{S_T0}, 3')
        k(f's_add_u32 s{S_T0}, s{S_T0}, s68')
        k(f's_lshl_b32 s{S_T0}, s{S_T0}, 8')
        k(f'v_mov_b32 v{VM+2}, v{VL0}')
        k('s_nop 1')
        k(f'v_mov_b32 v{VM+3}, v{VL0+4}')
        k('s_mov_b64 exec, 0xffff')
        k(f'buffer_store_dwordx4 {vr(VM,4)}, v1, {sr(SRD_X,4)}, s{S_T0} offen{ST}')
        k('s_mov_b64 exec, -1')
        g.vmax = VM + 22
    gemm_role(k, g1, epi_s, s_flag=72, depA=dep((71, 4, FL['H'], 4)), depB=dep((70, 9, FL['T'], 9)), end_hookA=side_hook, end_hookB=side_hook, tail=(side_tail if C.STAIL else None))
    k.label('role_V')
    k('s_mov_b32 s66, s67')
    k('s_mov_b32 s67, s68')
    k(f's_lshl_b32 s{S_ABASE}, s66, 13')
    k(f's_mul_i32 s{S_BBASE}, s67, {9*1024}')
    k('s_lshl_b32 s75, s66, 2')
    k('s_mul_i32 s76, s67, 9')
    k('s_lshr_b32 s72, s66, 3')
    k('s_lshl_b32 s72, s72, 3')
    k('s_add_u32 s72, s72, s67')
    k('s_lshl_b32 s72, s72, 3')
    k('s_and_b32 s73, s66, 7')
    k('s_add_u32 s72, s72, s73')
    k(f's_add_u32 s72, s72, {FL["V"]}')
    args_ready(k)
    ws_srd(k, SRD_A, 'H'); ws_srd(k, SRD_B, 'WVO'); ws_srd(k, SRD_O, 'VT')
    g2 = Gemm('vv', Opnd('frag', 8, SRD_A, S_ABASE, rbtot=128, aux=LD()), Opnd('frag', 9, SRD_B, S_BBASE, rbtot=72, aux=LD()), 4, 1, 18, C.NS['vv'], rot=R('vv'), win=Wn('ss'))
    def v_tail(k):
        k('s_lshr_b32 s79, s66, 3')
        k('s_lshl_b32 s79, s79, 1')
        k('s_sub_u32 s79, s66, s79')
        k('s_lshl_b32 s79, s79, 3')
        k('s_add_u32 s79, s79, s67')
        k('s_lshl_b32 s79, s79, 2')
        k(f's_add_u32 s79, s79, s{S_WAVE}')
        k('s_sub_u32 s79, s79, 4')
        k('s_cmp_ge_u32 s73, 6')
        k('s_cselect_b32 s79, 400, s79')
        prefetch_flat(k, P_WQC, D*D*2, 79, 384, 14, vtmp=8)
        prefetch_flat(k, P_WOC, D*D*2, 79, 384, 14, vtmp=8)
        return 2
    gemm_role(k, g2, epi_frag16(72, 75, 76), s_flag=72, depA=dep((66, 4, FL['H'], 4)), depB=dep((67, 9, FL['WVO'], 18)), tail=(side_tail if C.STAIL else None), end_hookA=side_hook, end_hookB=side_hook)

E_VAT, E_VX, E_VZ = 16, 196, 232
def e_at_loads(k):
    ws_srd(k, SRD_B, 'AT')
    k(f's_sub_u32 s71, s{S_WAVE}, 4')
    k(f's_mul_i32 s72, s71, {9*10}')
    k('s_mul_i32 s73, s66, 5')
    k('s_add_u32 s72, s72, s73')
    k('s_lshl_b32 s72, s72, 10')
    for i in range(9):
        k('s_add_u32 s73, s72, 4096')
        for mb in range(5):
            k(f'buffer_load_dwordx4 {vr(E_VAT+20*i+4*mb,4)}, v1, {sr(SRD_B,4)}, s{72 if mb < 4 else 73} offen offset:{(mb%4)*1024}{LD()}')
        if i < 8: k('s_add_u32 s72, s72, 10240')

def e_preload_hook(k):
    if not C.PERSIST: return
    k(f'v_lshlrev_b32 v8, 7, v{VL}')
    k('s_lshr_b32 s66, s64, 2')
    k(f's_mul_i32 s85, s66, {C.NAT}')
    k(f's_add_u32 s85, s85, {FL["AT"]}')
    k('s_lshl_b32 s85, s85, 7')
    ld = k.newlabel('echk')
    k(f's_mov_b64 exec, {hex((1 << C.NAT) - 1)}')
    for i in range(C.ECHK):
        if i: k(f's_sleep {C.ESLP}')
        k(f'buffer_load_dword v9, v8, {sr(SRD_F,4)}, s85 offen sc1')
        k('s_waitcnt vmcnt(0)')
        k('v_cmp_ne_u32 vcc, 1, v9')
        k('s_nop 0')
        k('s_cmp_eq_u64 vcc, 0')
        k(f's_cbranch_scc1 {ld}')
    k.label(ld)
    k('s_mov_b64 exec, -1')
    k('s_cselect_b32 s81, 3, 0')

def phase_D(k):
    k.label('role_PV')
    k('s_lshr_b32 s66, s67, 3')
    k('s_and_b32 s67, s67, 7')
    k(f's_mul_i32 s{S_ABASE}, s66, {32*72*1024}')
    k('s_mul_i32 s69, s68, 6144')
    k(f's_add_u32 s{S_ABASE}, s{S_ABASE}, s69')
    k(f's_lshl_b32 s{S_BBASE}, s66, 21')
    k('s_lshl_b32 s69, s67, 13')
    k(f's_add_u32 s{S_BBASE}, s{S_BBASE}, s69')
    k('s_lshl_b32 s70, s66, 3')
    k('s_add_u32 s70, s70, s67')
    k('s_mul_i32 s75, s68, 3')
    k('s_lshl_b32 s76, s70, 3')
    k('s_mul_i32 s72, s70, 12')
    k('s_add_u32 s72, s72, s68')
    k(f's_add_u32 s72, s72, {FL["X1"]}')
    k('s_lshl_b32 s71, s68, 1')
    div_const(k, 71, 71, 3, 24)
    k('s_min_u32 s71, s71, 6')
    k('s_lshl_b32 s73, s66, 3')
    k('s_add_u32 s71, s71, s73')
    args_ready(k)
    ws_srd(k, SRD_A, 'VT'); ws_srd(k, SRD_B, 'P'); ws_srd(k, SRD_O, 'X1')
    g1 = Gemm('pv', Opnd('frag', 6, SRD_A, S_ABASE, rbtot=72, aux=LD()), Opnd('frag', 8, SRD_B, S_BBASE, rbtot=64, aux=LD()), 1, 4, 16, C.NS['pv'], lds0=8192, rot=R('pv'), win=Wn('pv'))
    def depB_pv(k):
        dep((70, 8, FL['P'], 8))(k)
        ws_srd(k, SRD_X, 'ST')
        k(f's_lshl_b32 s{S_T1}, s{S_W2}, 12')
        k(f's_mov_b32 m0, s{S_T1}')
        k(f's_lshl_b32 s{S_T0}, s70, 13')
        k(f's_add_u32 s{S_T0}, s{S_T0}, s{S_T1}')
        for i in range(4): k(f'buffer_load_dwordx4 v1, {sr(SRD_X,4)}, s{S_T0} offen offset:{i*1024}{LD()} lds')
    def pv_mids():
        if not C.NBV: return [(st, dep((71, 8, FL['V'], 16, m))) for st, m in C.VM[1:]]
        st, m = C.VM[1]
        def pre(k):
            k(f'v_lshlrev_b32 v8, 7, v{VL}')
            k('s_lshl_b32 s85, s71, 3')
            k(f's_add_u32 s85, s85, {FL["V"]}')
            k(f's_lshl_b32 s{S_T0}, s85, 7')
            k(f's_mov_b64 exec, {hex(m)}')
            k(f'buffer_load_dword v9, v8, {sr(SRD_F,4)}, s{S_T0} offen sc1')
            k('s_mov_b64 exec, -1')
        def chk(k):
            l = k.newlabel('nbv')
            k(f's_mov_b64 exec, {hex(m)}')
            k(f's_waitcnt vmcnt({2*6})')
            k('v_cmp_ne_u32 vcc, 1, v9')
            k('s_mov_b64 exec, -1')
            k('s_cmp_eq_u64 vcc, 0')
            k(f's_cbranch_scc1 {l}')
            poll(k, 85, 16, mask=m)
            k.label(l)
        return [(st - 2, pre), (st, chk)]
    def pv_consumer(k, g):
        ma, nb = 6, 2
        VF, VX = g.VF, g.VX
        VGT, VXR, VXF, VS, VR, VMX, VRF, VLS, VSA, VE, VBP = VX, VX+24, VX+48, VX+72, VX+76, VX+78, VX+80, VX+82, VX+84, VX+85, VX+87
        def side_loads():
            ws_srd(k, SRD_Y, 'GATE')
            k(f'v_lshrrev_b32 v1, 4, v{VL}\nv_lshlrev_b32 v1, 5, v1')
            k(f's_mul_i32 s{S_T0}, s66, 4608')
            k(f's_mul_i32 s{S_T1}, s68, 384')
            k(f's_add_u32 s{S_T0}, s{S_T0}, s{S_T1}')
            for ap in range(3):
                for h in range(2):
                    k(f'buffer_load_dwordx4 {vr(VGT+8*ap+4*h,4)}, v1, {sr(SRD_Y,4)}, s{S_T0} offen offset:{ap*128+16*h}{LD()}')
        def x_loads():
            make_srd(k, SRD_Y, P_X, NR*D*2)
            quad_voff(k, 1, 2304)
            k('s_lshl_b32 s79, s70, 2')
            k(f's_add_u32 s79, s79, s{S_WB}')
            k(f's_mul_i32 s{S_T0}, s79, {32*2304}')
            k(f's_mul_i32 s{S_T1}, s68, 192')
            k(f's_add_u32 s{S_T0}, s{S_T0}, s{S_T1}')
            k(f's_add_u32 s{S_T1}, s{S_T0}, {16*2304}')
            for ap in range(3):
                for b in range(2):
                    k(f'buffer_load_dwordx4 {vr(VXR+(ap*2+b)*4,4)}, v1, {sr(SRD_Y,4)}, s{S_T0 if b == 0 else S_T1} offen offset:{ap*64}')
        if not C.XLATE and not C.SIDE: x_loads()
        if not C.PERSIST: side_loads()
        k(f'v_and_b32 v{VSA}, 15, v{VL}\nv_lshlrev_b32 v{VSA}, 4, v{VSA}')
        k(f's_lshl_b32 s{S_T0}, s{S_WB}, 11')
        k(f'v_add_u32 v{VSA}, s{S_T0}, v{VSA}')
        k('s_mov_b32 s77, 0')
        if g.rot is not None: k('s_lshl_b32 s73, s74, 7')
        else: k('s_mov_b32 s73, 0')
        WM = ((g.win or 16)//2)*256 - 1
        aA = cons_addr_setup(k, g, g.A, ma, S_WA, VL, VA, VT)
        aB = cons_addr_setup(k, g, g.B, nb, S_WB, VL, VA + len(aA), VT)
        addrs = aA + aB
        for i in range(ma*nb*4): k(f'v_mov_b32 v{VACC+i}, 0')
        if C.SIDE:
            k(f'v_and_b32 v{VBP}, 15, v{VL}\nv_lshlrev_b32 v{VBP}, 6, v{VBP}\nv_lshrrev_b32 v{VT}, 4, v{VL}\nv_lshl_add_u32 v{VBP}, v{VT}, 4, v{VBP}')
            k(f's_mul_i32 s{S_T0}, s{S_WB}, 6144')
            k(f's_add_u32 s{S_T0}, s{S_T0}, {L_XR}')
            k(f'v_add_u32 v{VBP}, s{S_T0}, v{VBP}')
            k(f'v_lshlrev_b32 v{VXR}, 5, v{VT}')
            k(f'v_add_u32 v{VXR}, {L_GT}, v{VXR}')
        else: q2f_addr(k, VBP)
        k(f'v_mov_b32 v{VMX}, {f32(-3.0e38)}\nv_mov_b32 v{VMX+1}, {f32(-3.0e38)}')
        k(f'v_mov_b32 v{VRF}, {f32(-3.0e38)}\nv_mov_b32 v{VRF+1}, {f32(-3.0e38)}')
        k(f'v_mov_b32 v{VLS}, 0\nv_mov_b32 v{VLS+1}, 0')
        k(f's_mov_b32 s78, {f32(-64.0)}')
        k(f'v_mov_b32 v{VE}, {L_CNT}')
        k(f'ds_write_b32 v{VE}, v{VLS}')
        k('s_waitcnt lgkmcnt(0)')
        setsz = (ma + nb) * 4
        def fa(st, a): return VF + st*setsz + 4*a
        def fb(st, b): return VF + st*setsz + 4*ma + 4*b
        def reads(s, st):
            return cons_reads(g, g.B, nb, aB, s, fb(st, 0)) + cons_reads(g, g.A, ma, aA, s, fa(st, 0))
        def mf(st):
            return [f'v_mfma_f32_16x16x32_bf16 {vr(acc(g,a,b),4)}, {vr(fa(st,a),4)}, {vr(fb(st,b),4)}, {vr(acc(g,a,b),4)}'
                    for a in range(ma) for b in range(nb)]
        def muls(i):
            a, b = divmod(i, nb)
            c = acc(g, a, b)
            if C.PKMUL == 2: return ['s_nop 0']
            if C.PKMUL:
                sel = 'op_sel:[0,0] op_sel_hi:[1,0]' if b == 0 else 'op_sel:[0,1] op_sel_hi:[1,1]'
                return [f'v_pk_mul_f32 {vr(c+r,2)}, {vr(c+r,2)}, {vr(VR,2)} {sel}' for r in (0, 2)]
            return [f'v_mul_f32 v{c+r}, v{VR+b}, v{c+r}' for r in range(4)]
        def upd():
            o = []
            for b in range(2): o.append(f'v_max_f32 v{VMX+b}, v{VMX+b}, v{VS+b}')
            for b in range(2): o.append(f'v_add_f32 v{VE+b}, s78, v{VMX+b}')
            for b in range(2): o.append(f'v_max_f32 v{VE+b}, v{VE+b}, v{VS+b}')
            for b in range(2): o.append(f'v_sub_f32 v{VR+b}, v{VRF+b}, v{VE+b}')
            for b in range(2): o.append(f'v_exp_f32 v{VR+b}, v{VR+b}')
            for b in range(2): o.append(f'v_mov_b32 v{VRF+b}, v{VE+b}')
            for b in range(2): o.append(f'v_fma_f32 v{VLS+b}, v{VLS+b}, v{VR+b}, v{VS+2+b}')
            return o
        srd_ = [f's_add_u32 s{S_T0}, s77, s73', f's_and_b32 s{S_T0}, s{S_T0}, {WM}', f's_andn2_b32 s{S_T1}, s77, {WM}', f's_add_u32 s{S_T0}, s{S_T0}, s{S_T1}', f'v_add_u32 v{VE}, s{S_T0}, v{VSA}', f'ds_read_b128 {vr(VS,4)}, v{VE}', 's_add_u32 s77, s77, 256']
        adv = [f's_add_u32 s{S_SLOT}, s{S_SLOT}, {g.stage}',
               f's_cmp_eq_u32 s{S_SLOT}, {g.NS*g.stage}',
               f's_cselect_b32 s{S_DELTA}, {-(g.NS-1)*g.stage & 0xffffffff}, s{S_T3}',
               f's_cselect_b32 s{S_SLOT}, 0, s{S_SLOT}'] + [f'v_add_u32 v{a}, s{S_DELTA}, v{a}' for a in addrs]
        k(f's_mov_b32 s{S_SLOT}, 0')
        k(f's_mov_b32 s{S_CNT}, 8')
        k(f's_mov_b32 s{S_T3}, {g.stage}')
        k('s_barrier')
        stamp(k, 0); cstamp(k, 4)
        for x in srd_: k(x)
        for r in reads(0, 0): k(r)
        k('s_waitcnt lgkmcnt(8)')
        for x in upd(): k(x)
        k('s_waitcnt lgkmcnt(0)')
        lp = k.newlabel('pv_mm'); le = k.newlabel('pv_last')
        k.label(lp)
        M = mf(0); fill = reads(1, 1) + adv
        for x in muls(0): k(x)
        for i in range(12):
            if i + 1 < 12:
                for x in muls(i+1): k(x)
            else:
                k('s_nop 1')
            k(M[i])
            if fill: k(fill.pop(0))
        for f in fill: k(f)
        k('s_waitcnt lgkmcnt(0)')
        k('s_barrier')
        interleave(k, mf(1), reads(0, 0) + srd_ + [f's_sub_u32 s{S_CNT}, s{S_CNT}, 1'])
        k('s_waitcnt lgkmcnt(0)')
        interleave(k, mf(0), reads(1, 1) + adv)
        k('s_waitcnt lgkmcnt(0)')
        k(f's_cmp_eq_u32 s{S_CNT}, 0')
        k(f's_cbranch_scc1 {le}')
        k('s_barrier')
        interleave(k, mf(1), reads(0, 0) + upd(), per=2)
        if not C.SIDE:
            k(f's_cmp_eq_u32 s{S_CNT}, 4')
            k('s_cbranch_scc1 pv_g1')
            k(f's_cmp_eq_u32 s{S_CNT}, 2')
            k('s_cbranch_scc1 pv_g2')
            k.label('pv_gback')
        k('s_waitcnt lgkmcnt(0)')
        k(f's_branch {lp}')
        if not C.SIDE:
            k.label('pv_g1')
            k(f'v_lshlrev_b32 v1, 7, v{VL}')
            k(f's_mov_b32 s{S_T0}, {FL["GATE"]*128}')
            k('s_mov_b64 exec, 0x3ffff')
            k(f'buffer_load_dword v{VGT}, v1, {sr(SRD_F,4)}, s{S_T0} offen sc1')
            k('s_mov_b64 exec, -1')
            if C.XLATE: x_loads()
            k('s_branch pv_gback')
            k.label('pv_g2')
            k('s_mov_b64 exec, 0x3ffff')
            k('s_waitcnt vmcnt(0)')
            k(f'v_cmp_ne_u32 vcc, 1, v{VGT}')
            k('s_mov_b64 exec, -1')
            k('s_cmp_eq_u64 vcc, 0')
            k('s_cbranch_scc1 pv_g3')
            k(f's_mov_b32 s85, {FL["GATE"]}')
            poll(k, 85, 18, vt=VGT)
            k(f's_mov_b32 s{S_CNT}, 2')
            k.label('pv_g3')
            side_loads()
            k('s_branch pv_gback')
        k.label(le)
        k('s_waitcnt vmcnt(0)')
        bp = [f'ds_bpermute_b32 v{VXF+j}, v{VBP}, v{VXR+j}' for j in range(24)]
        if C.SIDE:
            bp = [f'ds_read_b128 {vr(VXF+4*j,4)}, v{VBP} offset:{j*1024}' for j in range(6)]
            bp += [f'ds_read_b128 {vr(VGT+8*ap+4*h,4)}, v{VXR} offset:{ap*128+16*h}' for ap in range(3) for h in range(2)]
        interleave(k, mf(1), bp + [f'v_rcp_f32 v{VLS}, v{VLS}', f'v_rcp_f32 v{VLS+1}, v{VLS+1}'], per=2)
        g.VGT, g.VXF, g.VLS, g.VE = VGT, VXF, VLS, VE
        g.vmax = VBP + 1
    def epi_pv(k, g):
        k(f's_lshl_b32 s{S_T0}, s75, 7')
        k(f's_add_u32 s{S_T0}, s{S_T0}, s76')
        k(f's_lshl_b32 s{S_T1}, s{S_WB}, 1')
        k(f's_add_u32 s{S_T0}, s{S_T0}, s{S_T1}')
        k(f's_lshl_b32 s{S_OBASE}, s{S_T0}, 10')
        k(f'v_lshlrev_b32 v1, 4, v{VL}')
        k('s_waitcnt lgkmcnt(0)')
        T = g.VE
        t = g.VF
        for ap in range(3):
            for b in range(2):
                xr = g.VXF + (ap*2+b)*4
                regs = [acc(g, 2*ap+h, b) + r for h in range(2) for r in range(4)]
                for e in range(8):
                    k(f'v_mul_f32 v{regs[e]}, v{g.VLS+b}, v{regs[e]}')
                    if e % 2 == 0: k(f'v_lshlrev_b32 v{T}, 16, v{xr+e//2}')
                    else: k(f'v_and_b32 v{T}, 0xffff0000, v{xr+e//2}')
                    k(f'v_fma_f32 v{regs[e]}, v{regs[e]}, v{g.VGT+8*ap+e}, v{T}')
                for j in range(4): k(f'v_cvt_pk_bf16_f32 v{t+j}, v{regs[2*j]}, v{regs[2*j+1]}')
                k(f's_add_u32 s{S_T0}, s{S_OBASE}, {ap*128*1024}')
                k(f'buffer_store_dwordx4 {vr(t,4)}, v1, {sr(SRD_O,4)}, s{S_T0} offen offset:{b*1024}{ST}')
                t += 4
    gemm_role(k, g1, epi_pv, s_flag=72, custom_consumer=pv_consumer, depA=dep((71, 8, FL['V'], 16, C.VM[0][1])), midA=pv_mids(), depB=depB_pv, end_hookA=(e_preload_hook if C.ECHK else None), end_hookB=(e_preload_hook if C.ECHK else None), lds_sig=C.EPRE)
    k.label('role_AT')
    NAT = C.NAT
    k(f's_mul_i32 s{S_ABASE}, s68, {(1152//NAT)*2304}')
    k(f's_mul_i32 s{S_BBASE}, s67, 5120')
    k(f's_mul_i32 s75, s68, {36//NAT}')
    k('s_mul_i32 s76, s67, 5')
    k(f's_mul_i32 s72, s67, {NAT}')
    k('s_add_u32 s72, s72, s68')
    k(f's_add_u32 s72, s72, {FL["AT"]}')
    k('s_mul_i32 s74, s67, 9')
    make_srd(k, SRD_A, P_WQC, D*D*2); ws_srd(k, SRD_B, 'KVC'); ws_srd(k, SRD_O, 'AT')
    if NAT == 18:
        g2 = Gemm('at', Opnd('row', 4, SRD_A, S_ABASE, stride=2304, perm=True), Opnd('frag', 5, SRD_B, S_BBASE, rbtot=10, aux=LD()), 2, 2, 18, C.NS['at'], rot=R('at'), nb_ov=(3, 2))
    else:
        g2 = Gemm('at', Opnd('row', 8, SRD_A, S_ABASE, stride=2304, perm=True), Opnd('frag', 5, SRD_B, S_BBASE, rbtot=10, aux=LD()), 4, 1, 18, C.NS['at'], rot=R('at'))
    gemm_role(k, g2, epi_frag16(10, 75, 76), s_flag=72, depB=dep((67, 12, FL['KVC'], 6)))
    k.label('role_BT')
    k(f's_mul_i32 s{S_ABASE}, s67, 5120')
    k(f's_add_u32 s{S_ABASE}, s{S_ABASE}, {36*10*1024}')
    k(f's_lshl_b32 s{S_BBASE}, s68, 8')
    k('s_mul_i32 s75, s67, 3')
    k('s_lshl_b32 s76, s68, 3')
    k('s_mul_i32 s72, s67, 9')
    k('s_add_u32 s72, s72, s68')
    k(f's_add_u32 s72, s72, {FL["BT"]}')
    k('s_mul_i32 s74, s67, 9')
    args_ready(k)
    ws_srd(k, SRD_A, 'KVC'); make_srd(k, SRD_B, P_WOC, D*D*2); ws_srd(k, SRD_O, 'BT')
    g3 = Gemm('bt', Opnd('frag', 5, SRD_A, S_ABASE, rbtot=10, aux=LD()), Opnd('col', 8, SRD_B, S_BBASE, stride=2304), 1, 4, 18, C.NS['bt'], rot=R('bt'))
    def epi_bt(k, g):
        epi_frag16(72, 75, 76, rowperm=True, npair_max=2)(k, g)
        k(f'v_bfe_u32 v{VT}, v{VL}, 2, 1\nv_lshlrev_b32 v1, 3, v{VT}\nv_bfe_u32 v{VT}, v{VL}, 3, 1\nv_lshl_add_u32 v1, v{VT}, 6, v1')
        k(f'v_and_b32 v{VT}, 0x33, v{VL}\nv_lshl_add_u32 v1, v{VT}, 4, v1')
        k(f's_mul_i32 s{S_T0}, s67, 216')
        k(f's_lshl_b32 s{S_T1}, s68, 2')
        k(f's_add_u32 s{S_T0}, s{S_T0}, s{S_T1}')
        k(f's_add_u32 s{S_T0}, s{S_T0}, s{S_WB}')
        k(f's_add_u32 s{S_T0}, s{S_T0}, 144')
        k(f's_lshl_b32 s{S_T0}, s{S_T0}, 10')
        t = g.VF + 32
        for b in range(2):
            c0 = acc(g, 4, b)
            k(f'v_cvt_pk_bf16_f32 v{t}, v{c0}, v{c0+1}')
            k(f'v_cvt_pk_bf16_f32 v{t+1}, v{c0+2}, v{c0+3}')
            k(f'buffer_store_dwordx2 {vr(t,2)}, v1, {sr(SRD_O,4)}, s{S_T0} offen offset:{b*128}{ST}')
            t += 2
    gemm_role(k, g3, epi_bt, s_flag=72, depA=dep((67, 12, FL['KVC'] + 6, 6)))

def phase_E(k):
    k.label('role_E')
    L_CS, L_Z, L_RS = 0, 2048, 26624
    VAT, VX_, VZ = E_VAT, E_VX, E_VZ
    k('s_lshr_b32 s66, s64, 2')
    k(f'v_lshlrev_b32 v1, 4, v{VL}')
    k('s_and_b32 s67, s65, 1')
    k('s_lshl_b32 s68, s64, 4')
    k('s_lshr_b32 s69, s65, 1')
    k('s_add_u32 s68, s68, s69')
    k('s_lshr_b32 s70, s68, 3')
    k(f's_cmp_lt_u32 s{S_WAVE}, 4')
    k('s_cbranch_scc1 pe_l')
    VQQ = 252
    k('s_cmp_eq_u32 s81, 3')
    k('s_cbranch_scc1 pe_at')
    dep((66, C.NAT, FL['AT'], C.NAT))(k)
    k.label('pe_at')
    ws_srd(k, SRD_B, 'AT')
    k(f's_sub_u32 s71, s{S_WAVE}, 4')
    k(f's_mul_i32 s72, s71, {9*10}')
    k('s_mul_i32 s73, s66, 5')
    k('s_add_u32 s72, s72, s73')
    k('s_lshl_b32 s72, s72, 10')
    XF = C.XF
    LAG = C.LAG
    def cs_mm(i):
        for mb in range(5):
            c = '0' if i == 0 else vr(VZ+4*mb, 4)
            k(f'v_mfma_f32_16x16x32_bf16 {vr(VZ+4*mb,4)}, {vr(VAT+20*i+4*mb,4)}, v[12:15], {c}')
        k('s_mov_b32 exec_lo, 0x80008000\ns_mov_b32 exec_hi, 0x80008000')
        for j in range(4): k(f'v_mov_b32 v{VAT+20*i+16+j}, s77')
        k('s_mov_b64 exec, -1')
    for i in range(9):
        k('s_add_u32 s73, s72, 4096')
        for mb in range(5):
            k(f'buffer_load_dwordx4 {vr(VAT+20*i+4*mb,4)}, v1, {sr(SRD_B,4)}, s{72 if mb < 4 else 73} offen offset:{(mb%4)*1024}{LD()}')
        if i < 8: k('s_add_u32 s72, s72, 10240')
        if i == 0:
            ws_srd(k, SRD_A, 'X1')
            k(f's_mul_i32 s74, s71, {9*128}')
            k('s_add_u32 s74, s74, s68')
            k('s_lshl_b32 s74, s74, 10')
            k('s_mov_b32 s77, 0x3f803f80')
            for j in range(4): k(f'v_mov_b32 v{12+j}, s77')
            k(f's_mul_i32 s{S_T1}, s71, 6144')
            k(f'v_add_u32 v6, s{S_T1}, v1')
            k(f'v_lshlrev_b32 v8, 7, v{VL}')
            k('s_mul_i32 s85, s70, 12')
            k(f's_add_u32 s85, s85, {FL["X1"]}')
            k('s_lshl_b32 s76, s85, 7')
            k(f's_mul_i32 s{S_T0}, s71, 320')
            k(f'v_add_u32 v10, s{S_T0}, v{VL}')
            k('s_and_b32 s75, s71, 1')
            k('s_mul_i32 s75, s75, 9216')
            k('v_add_u32 v11, s75, v1')
        if i == XF:
            k('s_mov_b64 exec, 0xfff')
            k(f'buffer_load_dword v9, v8, {sr(SRD_F,4)}, s76 offen sc1')
            k('s_mov_b64 exec, -1')
        if i >= LAG:
            k(f's_waitcnt vmcnt({5*LAG + (1 if i - LAG <= XF <= i else 0)})')
            cs_mm(i - LAG)
    def load_x():
        for i in range(9):
            k(f'buffer_load_dwordx4 {vr(VX_+4*i,4)}, v1, {sr(SRD_A,4)}, s74 offen{LD()}')
            if i < 8: k(f's_add_u32 s74, s74, {128*1024}')
    k('s_mov_b64 exec, 0xfff')
    k(f's_waitcnt vmcnt({5*(8-XF)})')
    k('v_cmp_ne_u32 vcc, 1, v9')
    k('s_mov_b64 exec, -1')
    k('s_cmp_eq_u64 vcc, 0')
    k('s_cselect_b32 s81, 1, 0')
    k('s_cbranch_scc0 pe_x_late0')
    k.label('pe_x_go')
    stamp(k, 1)
    load_x()
    k('s_cmp_eq_u32 s81, 0')
    k('s_cbranch_scc1 pe_x_done')
    k('s_barrier')
    k('s_waitcnt vmcnt(9)')
    k('s_branch pe_x_late')
    k.label('pe_x_late0')
    k('s_barrier')
    k('s_waitcnt vmcnt(0)')
    k.label('pe_x_late')
    for i in range(9 - LAG, 9): cs_mm(i)
    k('s_mov_b32 exec_lo, 0x00010001\ns_mov_b32 exec_hi, 0x00010001')
    for mb in range(5): k(f'ds_write_b128 v10, {vr(VZ+4*mb,4)} offset:{L_CS + mb*64}')
    k('s_mov_b64 exec, -1')
    stamp(k, 0)
    k('s_waitcnt lgkmcnt(0)')
    k('s_barrier')
    k('s_cmp_eq_u32 s81, 1')
    k('s_cbranch_scc1 pe_x_done')
    poll(k, 85, 12, vt=2)
    k('s_branch pe_x_go')
    k.label('pe_x_done')
    if not C.RSG:
        k('s_lshr_b32 s75, s71, 1')
        k('s_cmp_lg_u32 s75, s67')
        k(f's_cselect_b32 s75, {LDS_MAX}, 0')
        k('v_add_u32 v11, s75, v11')
    for i in range(9):
        k(f's_waitcnt vmcnt({8-i})')
        for mb in range(5):
            c = '0' if i == 0 else vr(VZ+4*mb, 4)
            k(f'v_mfma_f32_16x16x32_bf16 {vr(VZ+4*mb,4)}, {vr(VAT+20*i+4*mb,4)}, {vr(VX_+4*i,4)}, {c}')
            if mb == 0 and not C.RSG: k(f'ds_write_b128 v11, {vr(VX_+4*i,4)} offset:{L_RS + i*1024}')
        c = '0' if i == 0 else vr(VQQ, 4)
        k(f'v_mfma_f32_16x16x32_bf16 {vr(VQQ,4)}, {vr(VX_+4*i,4)}, {vr(VX_+4*i,4)}, {c}')
    k('s_nop 2')
    for mb in range(5): k(f'ds_write_b128 v6, {vr(VZ+4*mb,4)} offset:{L_Z + mb*1024}')
    k('s_nop 0')
    k(f'ds_write_b128 v6, {vr(VQQ,4)} offset:{L_Z + 5*1024}')
    stamp(k, 2)
    k('s_waitcnt lgkmcnt(0)')
    k('s_barrier')
    phase_exit(k)
    k.label('pe_l')
    NPW = 5
    VB, VZ2, VCS, VP, VRS = 16, 136, 196, 216, 116
    VZ3 = 216
    VO, VQ = 156, 16
    ws_srd(k, SRD_X, 'BT'); make_srd(k, SRD_O, P_OUT, NR*D*2)
    k(f's_mul_i32 s75, s{S_WAVE}, 5')
    k('s_min_u32 s75, s75, 14')
    k('s_mul_i32 s73, s67, 18')
    k('s_add_u32 s73, s73, s75')
    k('s_mul_i32 s76, s66, 216')
    k('s_lshl_b32 s77, s73, 1')
    k('s_add_u32 s76, s76, s77')
    k('s_lshl_b32 s76, s76, 10')
    k('s_mul_i32 s72, s66, 216')
    k('s_add_u32 s72, s72, s73')
    k('s_add_u32 s72, s72, 144')
    k('s_lshl_b32 s72, s72, 10')
    k(f'v_lshlrev_b32 v252, 7, v{VL}')
    k('s_mul_i32 s85, s66, 9')
    k(f's_add_u32 s85, s85, {FL["BT"]}')
    k('s_lshl_b32 s77, s85, 7')
    k('s_mov_b64 exec, 0x1ff')
    k(f'buffer_load_dword v253, v252, {sr(SRD_F,4)}, s77 offen sc1')
    k('s_mov_b64 exec, -1')
    f2q_addr(k, 5)
    quad_voff(k, 6, 2304)
    k(f'v_and_b32 v14, 48, v{VL}')
    k(f's_lshl_b32 s{S_T0}, s75, 10')
    k(f'v_add_u32 v15, s{S_T0}, v1')
    ws_srd(k, SRD_A, 'X1')
    k('s_lshl_b32 s74, s73, 7')
    k('s_add_u32 s74, s74, s68')
    k('s_lshl_b32 s74, s74, 10')
    k(f'v_and_b32 v7, 15, v{VL}\nv_lshlrev_b32 v8, 4, v7\nv_lshrrev_b32 v9, 2, v7\nv_lshl_add_u32 v9, v9, 8, v8\nv_and_b32 v7, 3, v7\nv_lshl_add_u32 v9, v7, 2, v9')
    k(f's_mul_i32 s{S_T2}, s68, {16*2304}')
    k(f's_lshl_b32 s{S_T1}, s73, 6')
    k(f's_add_u32 s{S_T2}, s{S_T2}, s{S_T1}')
    k('v_mov_b32 v4, 0xff800000')
    k('s_mov_b64 exec, 0x1ff')
    k('s_waitcnt vmcnt(0)')
    k('v_cmp_ne_u32 vcc, 1, v253')
    k('s_mov_b64 exec, -1')
    k('s_barrier')
    k('s_cmp_eq_u64 vcc, 0')
    k('s_cbranch_scc1 pe_bt_go')
    poll(k, 85, 9)
    k.label('pe_bt_go')
    stamp(k, 0)
    zr = lambda w, mb: (VZ2 + 20*w + 4*mb) if w < 3 else (VZ3 + 4*mb)
    def sum4(base, dst, pre=(), va=1, ws=6144, ms=1024, mid=()):
        for mb in range(5):
            for w in range(4):
                k(f'ds_read_b128 {vr(zr(w,mb),4)}, v{va} offset:{base + w*ws + mb*ms}')
        for x in pre: k(x)
        for mb in range(5):
            k(f's_waitcnt lgkmcnt({min(15, 4*(4-mb))})')
            for j in (0, 2):
                k(f'v_pk_add_f32 {vr(zr(0,mb)+j,2)}, {vr(zr(0,mb)+j,2)}, {vr(zr(1,mb)+j,2)}')
                k(f'v_pk_add_f32 {vr(zr(2,mb)+j,2)}, {vr(zr(2,mb)+j,2)}, {vr(zr(3,mb)+j,2)}')
                k(f'v_pk_add_f32 {vr(dst+4*mb+j,2)}, {vr(zr(0,mb)+j,2)}, {vr(zr(2,mb)+j,2)}')
                while mid:
                    x = mid.pop(0); k(x)
                    if x.startswith('buffer'): break
        for x in mid: k(x)
    VB2 = VB + 80
    ldb = lambda r, sg, off: f'buffer_load_dwordx4 {vr(r,4)}, v1, {sr(SRD_X,4)}, s{sg} offen offset:{off}{LD()}'
    k(f's_cmp_ge_u32 s{S_WAVE}, 2')
    k('s_cbranch_scc1 pe_no5')
    for kb in range(2):
        k(f's_add_u32 s77, s76, {kb*72*1024 + 8192}')
        for i in range(2): k(ldb(VB+(kb*10+8+i)*4, 77, i*1024))
    k('s_add_u32 s77, s72, 4096')
    k(ldb(VB2+16, 77, 0))
    k.label('pe_no5')
    btl = []
    for kb in range(2):
        for g0 in (0, 4):
            btl.append(f's_add_u32 s77, s76, {kb*72*1024 + g0*1024}')
            for i in range(4): btl.append(ldb(VB+(kb*10+g0+i)*4, 77, i*1024))
    for i in range(4): btl.append(ldb(VB2+4*i, 72, i*1024))
    def split(lst, n):
        idx = [i for i, x in enumerate(lst) if x.startswith('buffer')]
        if n >= len(idx): return lst, []
        cut = idx[n]
        if cut and lst[cut-1].startswith('s_add'): cut -= 1
        return lst[:cut], lst[cut:]
    p0, rest = split(btl, C.BT0)
    p1, late = split(rest, C.BT1 - C.BT0)
    for x in p0: k(x)
    k('s_barrier')
    sum4(L_CS, VCS, pre=p1, va=14, ws=320, ms=64)
    k(f'v_cmp_le_u32 vcc, 48, v{VL}')
    k('s_mov_b32 s78, 0x3f803f80')
    stamp(k, 1)
    k('s_barrier')
    stamp(k, 3)
    rsl = []
    for i in range(NPW):
        rsl.append(f'buffer_load_dwordx4 {vr(VRS+4*i,4)}, v1, {sr(SRD_A,4)}, s74 offen{LD()}')
        if i < NPW-1: rsl.append(f's_add_u32 s74, s74, {128*1024}')
    RX = NPW if C.RSG else 0
    for w in range(4):
        k(f'ds_read_b32 v{248+w}, v8 offset:{L_Z + w*6144 + 4*1024 + 48*16 + 12}')
        k(f'ds_read_b32 v{252+w}, v9 offset:{L_Z + w*6144 + 5*1024}')
    st = ['v_add_f32 v248, v248, v249', 'v_add_f32 v250, v250, v251', 'v_add_f32 v252, v252, v253', 'v_add_f32 v254, v254, v255',
          'v_add_f32 v248, v248, v250', 'v_add_f32 v252, v252, v254',
          f'v_mul_f32 v10, {f32(-1.0/D)}, v248', f'v_mul_f32 v12, {f32(1.0/D)}, v252', 'v_fma_f32 v12, -v10, v10, v12', 'v_max_f32 v12, 0, v12',
          f'v_add_f32 v12, {f32(1e-5)}, v12', 'v_rsq_f32 v12, v12', 'v_mov_b32 v11, v10', f'v_mul_f32 v12, {f32(CSC)}, v12']
    assert not (C.RSG and late)
    sum4(L_Z, VZ2, pre=(rsl if C.RSG else []) + ['s_waitcnt lgkmcnt(15)'] + st, mid=late)
    stamp(k, 2)
    if not C.RSG:
        for i in range(NPW): k(f'ds_read_b128 {vr(VRS+4*i,4)}, v15 offset:{L_RS + i*1024}')
    for i in range(0, 20, 2): k(f'v_pk_fma_f32 {vr(VZ2+i,2)}, {vr(VCS+i,2)}, v[10:11], {vr(VZ2+i,2)}')
    for r in (17, 18, 19): k(f'v_cndmask_b32 v{VZ2+r}, v{VZ2+r}, v4, vcc')
    k(f'v_max3_f32 v2, v{VZ2}, v{VZ2+1}, v{VZ2+2}')
    k(f'v_max3_f32 v3, v{VZ2+3}, v{VZ2+4}, v{VZ2+5}')
    for i in range(6, 20, 2): k(f'v_max3_f32 v{2 + (i//2)%2}, v{2 + (i//2)%2}, v{VZ2+i}, v{VZ2+i+1}')
    k('v_max_f32 v2, v2, v3')
    for sw in ('v_permlane32_swap_b32', 'v_permlane16_swap_b32'):
        k(f'v_mov_b32 v3, v2\ns_nop 1\n{sw} v2, v3\ns_nop 0\nv_max_f32 v2, v2, v3')
    k('v_mul_f32 v2, v2, v12')
    for i in range(20): k(f'v_fma_f32 v{VZ2+i}, v{VZ2+i}, v12, -v2')
    for i in range(20): k(f'v_exp_f32 v{VZ2+i}, v{VZ2+i}')
    for i in range(10): k(f'v_cvt_pk_bf16_f32 v{VP+i}, v{VZ2+2*i}, v{VZ2+2*i+1}')
    for j in range(4): k(f'v_mov_b32 v{248+j}, s78')
    mmx = []
    for kb in range(2):
        mmx.append(f's_waitcnt vmcnt({8*(1-kb) + 4 + RX})')
        mmx.append(f'v_mfma_f32_16x16x32_bf16 v[252:255], v[248:251], {vr(VP+4*kb,4)}, ' + ('0' if kb == 0 else 'v[252:255]'))
        for jb in range(10):
            c = '0' if kb == 0 else vr(VO+4*jb, 4)
            mmx.append(f'v_mfma_f32_16x16x32_bf16 {vr(VO+4*jb,4)}, {vr(VB+(kb*10+jb)*4,4)}, {vr(VP+4*kb,4)}, {c}')
    mmx.append(f's_waitcnt vmcnt({RX})')
    mmx.append(f'v_mfma_f32_16x16x16_bf16 v[252:255], v[248:249], {vr(VP+8,2)}, v[252:255]')
    for jb in range(10):
        mmx.append(f'v_mfma_f32_16x16x16_bf16 {vr(VO+4*jb,4)}, {vr(VB2+2*jb,2)}, {vr(VP+8,2)}, {vr(VO+4*jb,4)}')
    k('s_nop 0')
    un = lambda e: (VZ2 + e) if e < 20 else (VCS + e - 20)
    sm = ['s_waitcnt vmcnt(0) lgkmcnt(0)' if C.RSG else 's_waitcnt lgkmcnt(0)']
    stamp(k, 5)
    for j in range(4*NPW):
        sm += [f'v_lshlrev_b32 v{un(2*j)}, 16, v{VRS+j}', f'v_and_b32 v{un(2*j+1)}, 0xffff0000, v{VRS+j}']
    interleave(k, mmx, sm, per=2, start=1)
    k('v_rcp_f32 v2, v252')
    k('s_nop 0')
    k('v_mov_b32 v3, v2')
    for i in range(NPW):
        for e in range(0, 8, 2):
            k(f'v_pk_fma_f32 {vr(VO+8*i+e,2)}, {vr(VO+8*i+e,2)}, v[2:3], {vr(un(8*i+e),2)}')
        for j in range(4): k(f'v_cvt_pk_bf16_f32 v{VRS+4*i+j}, v{VO+8*i+2*j}, v{VO+8*i+2*j+1}')
        for j in range(4): k(f'ds_bpermute_b32 v{VQ+4*i+j}, v5, v{VRS+4*i+j}')
        if i >= 1:
            k('s_waitcnt lgkmcnt(4)')
            k(f'buffer_store_dwordx4 {vr(VQ+4*(i-1),4)}, v6, {sr(SRD_O,4)}, s{S_T2} offen offset:{64*(i-1)}{C.OUTST}')
    k(f's_cmp_ge_u32 s{S_WAVE}, 2')
    k('s_cbranch_scc1 pe_no5s')
    k('s_waitcnt lgkmcnt(0)')
    k(f'buffer_store_dwordx4 {vr(VQ+4*(NPW-1),4)}, v6, {sr(SRD_O,4)}, s{S_T2} offen offset:{64*(NPW-1)}{C.OUTST}')
    k.label('pe_no5s')
    stamp(k, 4)
    phase_exit(k)
    VMAX[0] = 256

def task(role, p1=0, p2=0, rot=0):
    assert p1 < 32 and p2 < 32 and rot < 4
    return (role, p1, p2, rot)

def make_schedule():
    sch = [[] for _ in range(256)]
    W = lambda x, loc: x + 8*loc
    late = []
    for x in range(8):
        for loc in range(18):
            u = x*18 + loc; jg, r = divmod(u, 48); tn, jl = divmod(r, 3)
            sch[W(x, loc)].append(task('T', tn, jg*3 + jl, (2*jl + tn) % 3))
    def wvo(w):
        blk, ins = divmod(w, 9); bj, bi = divmod(blk, 3); tj = bj*3 + ins//3; ti = bi*3 + ins % 3
        return task('wvo', tj, ti, (ti + tj) % 3)
    for x in range(8):
        for loc in range(23, 32): sch[W(x, loc)].append(wvo(x*9 + loc - 23))
    if C.GPLAN == 1:
        sg = []
        for x in (1, 3, 5):
            for loc in (20, 21, 22):
                i = (x >> 1)*3 + loc - 20
                sch[W(x, loc)].append(wvo(72 + i))
        sch[W(5, 22)].append(task('gate', 17, 1))
        g3 = [W(7, loc) for loc in (20, 21, 22)]
        for i, w in enumerate(g3): sch[w].append(task('gate', 3*i, 3))
        kv = [W(x, loc) for x in range(8) for loc in (range(18, 22) if x % 2 == 0 else (18, 19))]
        for v, w in enumerate(kv): sch[w].append(task('kvc', v & 1, v >> 1))
        for i, x in enumerate((0, 2, 4, 6)):
            sch[W(x, 22)].append(task('gate', 9 + 2*i, 2)); sg.append(W(x, 22))
        g3 = g3 + [W(5, 22)]
    else:
        sg = []
        gj = 13
        for x in (1, 3, 5):
            for loc in (20, 21, 22):
                i = (x >> 1)*3 + loc - 20
                if C.GFIRST:
                    if not (C.PFG and i < 4): sch[W(x, loc)].append(task('gate', 9 + i, 1))
                    sch[W(x, loc)].append(wvo(72 + i))
                    continue
                sch[W(x, loc)].append(wvo(72 + i))
                if gj < 18 and (loc < 22 ):
                    sch[W(x, loc)].append(task('gate', gj, 1)); gj += 1; sg.append(W(x, loc))
        g3 = []
        for i, loc in enumerate((20, 21, 22)):
            sch[W(7, loc)].append(task('gate', 3*i, 3)); g3.append(W(7, loc))
        v = 0
        kv = []
        for x in range(8):
            for loc in (range(18, 22) if x % 2 == 0 else (18, 19)):
                sch[W(x, loc)].append(task('kvc', v & 1, v >> 1)); v += 1; kv.append(W(x, loc))
        for i, x in enumerate((0, 2, 4, 6)):
            sch[W(x, 22)].append(task('pf', 24 + i))
            if C.PFG or not C.GFIRST: sch[W(x, 22)].append(task('gate', 9 + i, 1))
        if C.GFIRST: sg = [W(x, 17) for x in (1, 3, 5, 0, 2)]
    for x in range(8):
        for loc in range(16):
            sch[W(x, loc)].append(task('S', (x >> 2)*8 + (x & 1)*4 + (loc >> 2), ((x >> 1) & 1)*4 + (loc & 3), ((loc >> 2) + (loc & 3)) % 3))
    key = lambda w: (w & 7, w)
    lateV = sorted(sg + kv + g3, key=key)
    assert len(lateV) == 32
    lt = [(nt, jh*4 + j) for bb in range(2) for jh in range(2) for nt in (6 + 8*bb, 7 + 8*bb) for j in range(4)]
    for w, (nt, jt) in zip(lateV, lt): sch[w].append(task('V', nt, jt, (nt + jt) % 3))
    rest = sorted([W(x, loc) for x in range(8) for loc in range(16, 32) if W(x, loc) not in lateV], key=key)
    assert len(rest) == 96
    nts = [0, 1, 2, 3, 4, 5, 8, 9, 10, 11, 12, 13]
    if C.VMAP == 0:
        et = [(nts[g*3 + i], jh*4 + j) for g in range(4) for jh in range(2) for i in range(3) for j in range(4)]
    else:
        js = [(5, 6, 0, 1), (7, 4, 2, 3)]
        et = [(nts[g*3 + i], j) for g in range(4) for jh in range(2) for j in js[jh] for i in range(3)]
    vt = {}
    for w, (nt, jt) in zip(rest, et): sch[w].append(task('V', nt, jt, (nt + jt) % 3)); vt[w] = jt
    aux = [task('AT', i & 1, i >> 1) for i in range(2*C.NAT)] + [task('BT', i & 1, i >> 1) for i in range(18)]
    if C.BTLATE == 1:
        bts = aux[2*C.NAT:]; aux = aux[:2*C.NAT]
    if C.BTLATE == 2:
        bts = aux[18:36]; aux = aux[:18] + aux[36:]
    nidle = 64 - len(aux)
    idle = (sg + kv)[:nidle] if not C.GFIRST else (kv + g3 + sg)[:nidle]
    if C.BTLATE:
        first = [w for w in idle if w not in kv]
        if len(first) % 2: first = first[:-1]
        kvs = sorted([w for w in idle if w in kv], key=lambda w: (((w >> 3) - 18) >> 1, w & 7, w))
        for w, t in zip(first + kvs, bts): sch[w].append(t)
    cnt = [sum(1 for w in idle if w & 7 == x) for x in range(8)]
    auxw = []
    cand = {x: [W(x, loc) for loc in range(31, 22, -1) if (C.VMAP == 0 or vt[W(x, loc)] <= 4)] for x in range(8)}
    for ai in range(0, len(aux), 2):
        x = min([x for x in range(8) if len(cand[x]) >= 2], key=lambda x: cnt[x])
        for j in range(2):
            w = cand[x].pop(0); cnt[x] += 1
            sch[w].append(aux[ai + j]); auxw.append(w)
    tiles = {x: [task('PV', (x >> 2)*8 + (x & 1)*4 + (i & 3), ((x >> 1) & 1)*6 + (i >> 2)) for i in range(24)] for x in range(8)}
    left = []
    for x in range(8):
        for loc in range(32):
            w = W(x, loc)
            if w in idle or w in auxw: continue
            if tiles[x]: sch[w].append(tiles[x].pop(0))
            else: left.append(w)
    rem = [t for x in range(8) for t in tiles[x]]
    assert len(rem) == len(left), (len(rem), len(left))
    for w, t in zip(left, rem): sch[w].append(t)
    return sch

def make_schedule2():
    sch = [[] for _ in range(256)]
    W = lambda x, loc: x + 8*loc
    key = lambda w: (w & 7, w)
    for x in range(8):
        for loc in range(18):
            u = x*18 + loc; jg, r = divmod(u, 48); tn, jl = divmod(r, 3)
            sch[W(x, loc)].append(task('T', tn, jg*3 + jl, (2*jl + tn) % 3))
        for loc in range(16):
            sch[W(x, loc)].append(task('S', (x >> 2)*8 + (x & 1)*4 + (loc >> 2), ((x >> 1) & 1)*4 + (loc & 3)))
    def wvo(w):
        blk, ins = divmod(w, 9); bj, bi = divmod(blk, 3); tj = bj*3 + ins//3; ti = bi*3 + ins % 3
        return task('wvo', tj, ti, (ti + tj) % 3)
    kv = []
    for x in range(8):
        for i, loc in enumerate((29, 30, 31)):
            v = x*3 + i
            sch[W(x, loc)].append(task('kvc', v & 1, v >> 1)); kv.append(W(x, loc))
    pool = {x: [W(x, loc) for loc in ((20, 21, 22, 18, 19) if x & 1 else range(18, 23))] for x in range(8)}
    sp = []
    for x in range(8):
        ws_ = [W(x, loc) for loc in range(23, 29)] + [pool[x].pop(0) for _ in range(3)]
        order = [1, 2, 3, 5, 6, 7, 0, 4, 8]
        for w, o in zip(ws_, order): sch[w].append(wvo(x*9 + o))
        if x & 1: sp += ws_[6:]
    rem = [w for x in range(8) for w in pool[x]]
    rem.sort(key=key)
    for i in range(9): sch[rem[i]].append(wvo(72 + i))
    gl = rem[9:]
    for i in range(3): sch[gl[i]].append(task('pf', i))
    gj = 0
    for w in gl[:6]: sch[w].append(task('gate', gj, 1)); gj += 1
    for w in sp: sch[w].append(task('gate', gj, 1)); gj += 1
    assert gj == 18
    aux = [task('AT', i & 1, i >> 1) for i in range(18)] + [task('BT', i & 1, i >> 1) for i in range(18)]
    auxw = []
    for x in range(8): auxw += [W(x, 31), W(x, 30)]
    for x in range(8): auxw += [W(x, 29), W(x, 28)]
    auxw += [W(0, 27), W(0, 26), W(4, 27), W(4, 26)]
    for w, t in zip(auxw, aux): sch[w].append(t)
    lt = [(nt, jh*4 + j) for bb in range(2) for jh in range(2) for nt in (6 + 8*bb, 7 + 8*bb) for j in range(4)]
    l5 = [(5, 0), (5, 1), (13, 0), (13, 1)]
    for w, (nt, jt) in zip(sorted(auxw[:32], key=key), lt): sch[w].append(task('V', nt, jt, (nt + jt) % 3))
    for w, (nt, jt) in zip(auxw[32:], l5): sch[w].append(task('V', nt, jt, (nt + jt) % 3))
    rest = sorted([W(x, loc) for x in range(8) for loc in range(16, 32) if W(x, loc) not in auxw], key=key)
    nts = [0, 1, 2, 3, 4, 5, 8, 9, 10, 11, 12, 13]
    et = [(nts[g*3 + i], jh*4 + j) for g in range(4) for jh in range(2) for i in range(3) for j in range(4)]
    et = [t for t in et if t not in l5]
    assert len(rest) == len(et) == 92
    for w, (nt, jt) in zip(rest, et): sch[w].append(task('V', nt, jt, (nt + jt) % 3))
    skip = set(sp + gl + rem[:9])
    tiles = {x: [task('PV', (x >> 2)*8 + (x & 1)*4 + (i & 3), ((x >> 1) & 1)*6 + (i >> 2)) for i in range(24)] for x in range(8)}
    left = []
    for x in range(8):
        for loc in range(32):
            w = W(x, loc)
            if w in skip or w in auxw: continue
            if tiles[x]: sch[w].append(tiles[x].pop(0))
            else: left.append(w)
    remt = [t for x in range(8) for t in tiles[x]]
    assert len(remt) == len(left), (len(remt), len(left))
    for w, t in zip(left, remt): sch[w].append(t)
    return sch

def build(fn, stampf):
    C.PERSIST, C.STAMP = True, stampf
    k = K()
    k.L.append('.p2align 8'); k.label('code_start')
    for i, f in enumerate((phase_A, phase_B, phase_C, phase_D, phase_E)):
        PH[0] = i
        f(k)
        if i == 0:
            k.label('quit0'); k('s_endpgm')
    sch = make_schedule() if C.SCHED == 1 else make_schedule2()
    k.L.append('.p2align 6')
    k.L.append('.type task_table,@object')
    k.label('task_table')
    for w in range(256):
        val = 0
        assert len(sch[w]) <= 4
        for i, (r, p1, p2, rot) in enumerate(sch[w]):
            val |= (ROLES.index(r) | p1 << 4 | p2 << 9 | rot << 14) << (16*i)
        k.L.append(f'    .quad {hex(val)}')
    k.L.append('.size task_table, 2048')
    k.label('code_end')
    k('s_endpgm')
    json.dump([[t[0] for t in l] for l in sch], open('sched.json', 'w'))
    ref = open('standalone__pixart__diffusion.s.ref').read()
    hdr = ref.split('; Override launch geometry')[0]
    n = 'standalone__pixart__diffusion_kernel'
    hdr += (f'; @launch kernel={n} ' if C.LIST else '; @launch ') + f'grid=(256,1,1) block=(512,1,1) lds={LDS_MAX}\n'
    desc = '.section .rodata,"a"\n.p2align 6\n' + kernel_desc(n, 256, 102)
    hdr += '.amdgcn_target "amdgcn-amd-amdhsa--gfx950"\n.text\n'
    txt = k.text()
    if C.ALIGN:
        import re
        txt = re.sub(r'^(\w+_mm_\d+:)', r'.p2align 6\n\1', txt, flags=re.M)
    open(fn, 'w').write(hdr + txt + desc)

C.ROT = set('wqk tt wvo at bt'.split()); C.WIN = dict(wqk=6, tt=3); C.APRE = False; C.HPRE = True
if __name__ == '__main__':
    build('p4.s', False)
    build('p4_stamped.s', True)
    json.dump(WS, open('ws.json', 'w'))
```

```python
from dataclasses import dataclass, field

class K:
    def __init__(self):
        self.L = []
        self.uid = 0
    def __call__(self, s):
        for line in s.split('\n'):
            line = line.strip()
            if line:
                self.L.append('    ' + line)
    def label(self, n):
        self.L.append(n + ':')
    def c(self, s):
        self.L.append('    ; ' + s)
    def newlabel(self, p='L'):
        self.uid += 1
        return f'{p}_{self.uid}'
    def text(self):
        return '\n'.join(self.L) + '\n'

def vr(a, n=1):
    return f'v{a}' if n == 1 else f'v[{a}:{a+n-1}]'
def sr(a, n=1):
    return f's{a}' if n == 1 else f's[{a}:{a+n-1}]'

S_WG = 2
S_WAVE = 3
SRD_A = 4
SRD_B = 8
SRD_O = 12
SRD_X = 16
SRD_Y = 20
S_ABASE = 24
S_BBASE = 25
S_OBASE = 26
S_T0 = 27
S_T1 = 28
S_T2 = 29
S_T3 = 30
S_G = 31
S_LDS = 32
S_SLOT = 33
S_CNT = 34
S_DELTA = 35
SRD_F = 36
S_W2 = 82
S_WA = 83
S_WB = 84
S_P0 = 40
S_X0 = 64
S_GEND = 29

@dataclass
class Opnd:
    mode: str
    nblk: int
    srd: int
    base: int
    rbtot: int = 0
    stride: int = 0
    perm: bool = False
    region: int = 0
    aux: str = ''
    rows: list = None

@dataclass
class Gemm:
    name: str
    A: Opnd
    B: Opnd
    WA: int
    WB: int
    KT: int
    NS: int
    lds0: int = 0
    nb_ov: tuple = None
    NSA: int = 0
    win: int = 0
    rot: int = None
    def __post_init__(self):
        self.A.ns = self.NSA or self.NS
        self.B.ns = self.NS
        self.A.slot = self.A.nblk * 2048
        self.B.slot = self.B.nblk * 2048
        self.A.region = 0
        self.B.region = self.A.ns * self.A.slot
        assert self.A.nblk % self.WA == 0 and (self.nb_ov or self.B.nblk % self.WB == 0)
        self.ma = self.A.nblk // self.WA
        self.nb = self.B.nblk // self.WB
        self.nbstep = self.nb
        if self.nb_ov: self.nb, self.nbstep = self.nb_ov
        assert self.WA * self.WB == 4
        self.lds_bytes = self.lds0 + self.A.ns * self.A.slot + self.B.ns * self.B.slot

def make_srd(k, srd, plo, nbytes, off=0):
    if off:
        k(f's_add_u32 s{srd}, s{plo}, {off}')
        k(f's_addc_u32 s{srd+1}, s{plo+1}, 0')
    else:
        k(f's_mov_b32 s{srd}, s{plo}')
        k(f's_mov_b32 s{srd+1}, s{plo+1}')
    if isinstance(nbytes, int):
        k(f's_mov_b32 s{srd+2}, {nbytes}')
    else:
        k(f's_mov_b32 s{srd+2}, {nbytes}')
    k(f's_mov_b32 s{srd+3}, 0x00020000')

def loader_setup(k, g, X, VL, VOFF, VT):
    if X.mode == 'frag':
        k(f'v_lshlrev_b32 v{VOFF}, 4, v{VL}')
        k(f's_mul_i32 s{S_G}, s{S_W2}, {X.rbtot*1024}')
        k(f's_add_u32 s{S_G}, s{S_G}, s{X.base}')
        k(f's_mul_i32 s{S_LDS}, s{S_W2}, {X.nblk*1024}')
        k(f's_add_u32 s{S_LDS}, s{S_LDS}, {g.lds0 + X.region}')
    elif X.mode == 'row':
        k(f's_lshl_b32 s{S_T0}, s{S_W2}, 2')
        k(f'v_lshrrev_b32 v{VT}, 4, v{VL}')
        k(f'v_add_u32 v{VT}, s{S_T0}, v{VT}')
        k(f'v_and_b32 v{VOFF}, 7, v{VL}')
        k(f'v_xor_b32 v{VOFF}, v{VOFF}, v{VT}')
        k(f'v_lshlrev_b32 v{VOFF}, 4, v{VOFF}')
        if X.perm:
            k(f's_lshl_b32 s{S_T0}, s{S_W2}, 4')
            k(f'v_lshrrev_b32 v{VT}, 5, v{VL}')
            k(f'v_lshlrev_b32 v{VT}, 3, v{VT}')
            k(f'v_add_u32 v{VT}, s{S_T0}, v{VT}')
            k(f'v_bfe_u32 v{VT+1}, v{VL}, 3, 2')
            k(f'v_add_u32 v{VT}, v{VT}, v{VT+1}')
        else:
            k(f's_lshl_b32 s{S_T0}, s{S_W2}, 3')
            k(f'v_lshrrev_b32 v{VT}, 3, v{VL}')
            k(f'v_add_u32 v{VT}, s{S_T0}, v{VT}')
        k(f's_mov_b32 s{S_T0}, {X.stride}')
        k(f'v_mad_u32_u24 v{VOFF}, v{VT}, s{S_T0}, v{VOFF}')
        k(f's_mov_b32 s{S_G}, s{X.base}')
        k(f's_lshl_b32 s{S_LDS}, s{S_W2}, 10')
        k(f's_add_u32 s{S_LDS}, s{S_LDS}, {g.lds0 + X.region}')
    elif X.mode == 'col':
        k(f's_lshl_b32 s{S_T0}, s{S_W2}, 2')
        k(f'v_bfe_u32 v{VT}, v{VL}, 4, 1')
        k(f'v_lshlrev_b32 v{VT}, 1, v{VT}')
        k(f'v_or_b32 v{VT}, s{S_T0}, v{VT}')
        k(f'v_and_b32 v{VOFF}, 7, v{VL}')
        k(f'v_xor_b32 v{VOFF}, v{VOFF}, v{VT}')
        k(f'v_lshlrev_b32 v{VOFF}, 4, v{VOFF}')
        k(f's_lshl_b32 s{S_T0}, s{S_W2}, 3')
        k(f'v_lshrrev_b32 v{VT}, 3, v{VL}')
        k(f'v_add_u32 v{VT}, s{S_T0}, v{VT}')
        k(f's_mov_b32 s{S_T0}, {X.stride}')
        k(f'v_mad_u32_u24 v{VOFF}, v{VT}, s{S_T0}, v{VOFF}')
        k(f's_mov_b32 s{S_G}, s{X.base}')
        k(f's_lshl_b32 s{S_LDS}, s{S_W2}, 10')
        k(f's_add_u32 s{S_LDS}, s{S_LDS}, {g.lds0 + X.region}')

def op_step(X):
    return {'frag': 2*X.rbtot*1024, 'row': 128, 'col': 64*X.stride}[X.mode]

def loader_issue(k, g, X, VOFF, slot_const=None):
    groups = []
    if X.mode == 'frag':
        for g0 in range(0, X.nblk, 4):
            groups.append((g0*1024, g0*1024, [i*1024 for i in range(min(4, X.nblk-g0))]))
        step = 2 * X.rbtot * 1024
    elif X.mode == 'row':
        for i in range(X.nblk):
            r = (32*(i >> 1) + 4*(i & 1)) if X.perm else 16*i
            if X.rows: r = X.rows[i]
            groups.append((i*2048, r*X.stride, [0]))
        step = 128
    else:
        for cg in range(X.nblk // 4):
            for i in range(4):
                groups.append((cg*8192 + i*2048, 16*i*X.stride + cg*128, [0]))
        step = 64 * X.stride
    if slot_const is None:
        k(f's_add_u32 s{S_T1}, s{S_LDS}, s{S_SLOT}')
        lb, lc = S_T1, 0
    else:
        lb, lc = S_LDS, slot_const
    for (lo, go, imms) in groups:
        if lo + lc:
            k(f's_add_u32 m0, s{lb}, {lo+lc}')
        else:
            k(f's_mov_b32 m0, s{lb}')
        if go:
            k(f's_add_u32 s{S_T0}, s{S_G}, {go}')
            so = S_T0
        else:
            k('s_nop 0')
            so = S_G
        for im in imms:
            o = f' offset:{im}' if im else ''
            k(f'buffer_load_dwordx4 v{VOFF}, {sr(X.srd,4)}, s{so} offen{o}{X.aux} lds')
    k(f's_add_u32 s{S_G}, s{S_G}, {step}')
    if g.rot is not None:
        W = g.win or g.KT
        k(f's_cmp_ge_u32 s{S_G}, s{S_GEND}')
        k(f's_cselect_b32 s{S_T0}, {W*step}, 0')
        k(f's_sub_u32 s{S_G}, s{S_G}, s{S_T0}')
        if g.win:
            k(f's_add_u32 s{S_DELTA}, s{S_DELTA}, 1')
            k(f's_cmp_eq_u32 s{S_DELTA}, {W}')
            k(f's_cselect_b32 s{S_T0}, {W*step}, 0')
            k(f's_cselect_b32 s{S_DELTA}, 0, s{S_DELTA}')
            k(f's_add_u32 s{S_G}, s{S_G}, s{S_T0}')
            k(f's_add_u32 s{S_GEND}, s{S_GEND}, s{S_T0}')

def loader_body(k, g, X, VL, VOFF, VT, pre_hook=None, mid_hook=None, npre=None, tail_hook=None, end_barrier=False, end_hook=None, mid=None):
    n = X.nblk
    NS, KT = X.ns, g.KT
    if X.ns > g.NS: npre = X.ns
    loader_setup(k, g, X, VL, VOFF, VT)
    if g.rot is not None:
        k(f's_add_u32 s{S_GEND}, s{S_G}, {(g.win or g.KT)*op_step(X)}')
        k(f's_mov_b32 s{S_DELTA}, 0')
        k(f's_mul_i32 s{S_T0}, s{g.rot}, {op_step(X)}')
        k(f's_add_u32 s{S_G}, s{S_G}, s{S_T0}')
    if pre_hook: pre_hook(k)
    npro = min(NS, KT)
    if npre is None: npre = npro
    for s in range(npre):
        loader_issue(k, g, X, VOFF, slot_const=s*X.slot)
    if mid_hook: mid_hook(k, npre*n)
    assert (NS-1)*n <= 63
    k(f's_waitcnt vmcnt({(npre-1)*n})')
    k('s_barrier')
    for s in range(npre, npro):
        loader_issue(k, g, X, VOFF, slot_const=s*X.slot)
    nmain = max(0, KT - NS)
    if nmain > 0:
        k(f's_mov_b32 s{S_SLOT}, 0')
        parts = [nmain]
        if mid:
            cuts = [0] + [m[0] - NS for m in mid] + [nmain]
            parts = [cuts[i+1] - cuts[i] for i in range(len(cuts)-1)]
        for pi, cnt in enumerate(parts):
            if pi >= 1: mid[pi-1][1](k)
            k(f's_mov_b32 s{S_CNT}, {cnt}')
            lp = k.newlabel(g.name + '_ld')
            k.label(lp)
            k(f's_waitcnt vmcnt({(NS-2)*n})')
            k('s_barrier')
            loader_issue(k, g, X, VOFF)
            k(f's_add_u32 s{S_SLOT}, s{S_SLOT}, {X.slot}')
            k(f's_cmp_eq_u32 s{S_SLOT}, {NS*X.slot}')
            k(f's_cselect_b32 s{S_SLOT}, 0, s{S_SLOT}')
            k(f's_sub_u32 s{S_CNT}, s{S_CNT}, 1')
            k(f's_cmp_lg_u32 s{S_CNT}, 0')
            k(f's_cbranch_scc1 {lp}')
    extra = tail_hook(k) if tail_hook else 0
    for t in range(nmain, KT-1):
        k(f's_waitcnt vmcnt({(KT-1-(t+1))*n + extra})')
        k('s_barrier')
    if end_hook: end_hook(k)
    if end_barrier: k('s_barrier')

class ConsRegs:
    pass

def cons_addr_setup(k, g, X, nw, swave, VL, VA, VT, step=None):
    base = g.lds0 + X.region
    if X.mode == 'frag':
        k(f's_mul_i32 s{S_T0}, s{swave}, {(step or nw)*1024}')
        k(f's_add_u32 s{S_T0}, s{S_T0}, {base}')
        k(f'v_lshlrev_b32 v{VA}, 4, v{VL}')
        k(f'v_add_u32 v{VA}, s{S_T0}, v{VA}')
        return [VA]
    if X.mode == 'row':
        k(f's_mul_i32 s{S_T0}, s{swave}, {nw*2048}')
        k(f's_add_u32 s{S_T0}, s{S_T0}, {base}')
        k(f'v_bfe_u32 v{VT}, v{VL}, 1, 3')
        k(f'v_lshrrev_b32 v{VT+1}, 4, v{VL}')
        k(f'v_xor_b32 v{VT}, v{VT}, v{VT+1}')
        k(f'v_lshlrev_b32 v{VT}, 4, v{VT}')
        k(f'v_and_b32 v{VT+1}, 15, v{VL}')
        k(f'v_lshl_add_u32 v{VA}, v{VT+1}, 7, v{VT}')
        k(f'v_add_u32 v{VA}, s{S_T0}, v{VA}')
        k(f'v_xor_b32 v{VA+1}, 64, v{VA}')
        return [VA, VA+1]
    k(f'v_lshrrev_b32 v{VT}, 4, v{VL}')
    k(f'v_lshlrev_b32 v{VT}, 3, v{VT}')
    k(f'v_bfe_u32 v{VT+1}, v{VL}, 2, 2')
    k(f'v_add_u32 v{VT}, v{VT}, v{VT+1}')
    k(f'v_lshlrev_b32 v{VT}, 7, v{VT}')
    k(f'v_and_b32 v{VT+1}, 3, v{VL}')
    k(f'v_lshl_add_u32 v{VT}, v{VT+1}, 3, v{VT}')
    k(f'v_bfe_u32 v{VT+1}, v{VL}, 3, 2')
    k(f'v_lshl_add_u32 v{VT}, v{VT+1}, 5, v{VT}')
    for i in range(nw):
        k(f's_mul_i32 s{S_T0}, s{swave}, {nw}')
        k(f's_add_u32 s{S_T0}, s{S_T0}, {i}')
        k(f's_and_b32 s{S_T1}, s{S_T0}, 3')
        k(f's_lshl_b32 s{S_T1}, s{S_T1}, 5')
        k(f's_lshr_b32 s{S_T0}, s{S_T0}, 2')
        k(f's_lshl_b32 s{S_T0}, s{S_T0}, 13')
        k(f's_add_u32 s{S_T0}, s{S_T0}, {base}')
        k(f'v_xor_b32 v{VA+i}, s{S_T1}, v{VT}')
        k(f'v_add_u32 v{VA+i}, s{S_T0}, v{VA+i}')
    return [VA+i for i in range(nw)]

def cons_reads(g, X, nw, addrs, s, dst):
    out = []
    for i in range(nw):
        d = dst + 4*i
        if X.mode == 'frag':
            out.append(f'ds_read_b128 {vr(d,4)}, v{addrs[0]} offset:{s*X.nblk*1024 + i*1024}')
        elif X.mode == 'row':
            out.append(f'ds_read_b128 {vr(d,4)}, v{addrs[s]} offset:{i*2048}')
        else:
            out.append(f'ds_read_b64_tr_b16 {vr(d,2)}, v{addrs[i]} offset:{s*4096}')
            out.append(f'ds_read_b64_tr_b16 {vr(d+2,2)}, v{addrs[i]} offset:{s*4096+512}')
    return out

def cons_init(k, g):
    k(f's_mov_b32 s{S_SLOT}, 0')
    k(f's_mov_b32 s{S_G}, 0')
    k(f's_mov_b32 s{S_T3}, {g.A.slot}')
    k(f's_mov_b32 s{S_LDS}, {g.B.slot}')
def cons_adv(g, aA, aB):
    o = []
    if g.A.ns == g.B.ns:
        o += [f's_add_u32 s{S_SLOT}, s{S_SLOT}, 1', f's_cmp_eq_u32 s{S_SLOT}, {g.A.ns}',
              f's_cselect_b32 s{S_DELTA}, {-(g.A.ns-1)*g.A.slot & 0xffffffff}, s{S_T3}',
              f's_cselect_b32 s{S_T2}, {-(g.B.ns-1)*g.B.slot & 0xffffffff}, s{S_LDS}',
              f's_cselect_b32 s{S_SLOT}, 0, s{S_SLOT}']
    else:
        o += [f's_add_u32 s{S_SLOT}, s{S_SLOT}, 1', f's_cmp_eq_u32 s{S_SLOT}, {g.A.ns}',
              f's_cselect_b32 s{S_DELTA}, {-(g.A.ns-1)*g.A.slot & 0xffffffff}, s{S_T3}',
              f's_cselect_b32 s{S_SLOT}, 0, s{S_SLOT}',
              f's_add_u32 s{S_G}, s{S_G}, 1', f's_cmp_eq_u32 s{S_G}, {g.B.ns}',
              f's_cselect_b32 s{S_T2}, {-(g.B.ns-1)*g.B.slot & 0xffffffff}, s{S_LDS}',
              f's_cselect_b32 s{S_G}, 0, s{S_G}']
    o += [f'v_add_u32 v{a}, s{S_DELTA}, v{a}' for a in aA] + [f'v_add_u32 v{a}, s{S_T2}, v{a}' for a in aB]
    return o

def interleave(k, mfmas, fill, start=0, per=1):
    fill = list(fill)
    for i, m in enumerate(mfmas):
        k(m)
        if i >= start:
            for _ in range(per):
                if fill: k(fill.pop(0))
    for f in fill: k(f)

def consumer_body(k, g, VL, VACC, VF, VA, VT, pre_hook=None, nomfma=False, noread=False, post_bar0=None, end_barrier=False, per=1):
    ma, nb = g.ma, g.nb
    aA = cons_addr_setup(k, g, g.A, ma, S_WA, VL, VA, VT)
    aB = cons_addr_setup(k, g, g.B, nb, S_WB, VL, VA + len(aA), VT, step=g.nbstep)
    addrs = aA + aB
    setsz = (ma + nb) * 4
    def fa(st, a): return VF + st*setsz + 4*a
    def fb(st, b): return VF + st*setsz + 4*ma + 4*b
    def reads(s, st):
        if noread: return []
        ra = cons_reads(g, g.A, ma, aA, s, fa(st, 0))
        rb = cons_reads(g, g.B, nb, aB, s, fb(st, 0))
        return rb + ra if nb <= ma else ra + rb
    def mf(st):
        if nomfma: return ['s_nop 0']
        out = []
        for a in range(ma):
            for b in range(nb):
                c = VACC + (a*nb + b)*4
                out.append(f'v_mfma_f32_16x16x32_bf16 {vr(c,4)}, {vr(fa(st,a),4)}, {vr(fb(st,b),4)}, {vr(c,4)}')
        return out
    for i in range(ma*nb*4):
        k(f'v_mov_b32 v{VACC+i}, 0')
    if pre_hook: pre_hook(k)
    cons_init(k, g)
    k(f's_mov_b32 s{S_CNT}, {g.KT-1}')
    k('s_barrier')
    if post_bar0: post_bar0(k)
    for r in reads(0, 0): k(r)
    k('s_waitcnt lgkmcnt(0)')
    lp = k.newlabel(g.name + '_mm')
    k.label(lp)
    adv = cons_adv(g, aA, aB)
    interleave(k, mf(0), reads(1, 1) + adv, per=per)
    k('s_waitcnt lgkmcnt(0)')
    k('s_barrier')
    interleave(k, mf(1), reads(0, 0) + [f's_sub_u32 s{S_CNT}, s{S_CNT}, 1', f's_cmp_lg_u32 s{S_CNT}, 0'], per=per)
    k('s_waitcnt lgkmcnt(0)')
    k(f's_cbranch_scc1 {lp}')
    interleave(k, mf(0), reads(1, 1), per=per)
    k('s_waitcnt lgkmcnt(0)')
    if end_barrier: k('s_barrier')
    for m in mf(1): k(m)

def kernel_header(k, name):
    k.L.append(f'.globl {name}')
    k.L.append('.p2align 8')
    k.L.append(f'.type {name},@function')
    k.label(name)

def kernel_desc(name, vgpr, sgpr=96):
    acc = (vgpr + 3) // 4 * 4
    return f""".amdhsa_kernel {name}
  .amdhsa_next_free_vgpr {vgpr}
  .amdhsa_next_free_sgpr {sgpr}
  .amdhsa_accum_offset {acc}
  .amdhsa_group_segment_fixed_size 0
  .amdhsa_kernarg_size 96
  .amdhsa_user_sgpr_count 2
  .amdhsa_user_sgpr_kernarg_segment_ptr 1
  .amdhsa_system_sgpr_workgroup_id_x 1
.end_amdhsa_kernel
"""
```

```python
import sys, math, struct, json
from lib import *

D = 1152; NR = 2048
P_X, P_C, P_Y, P_WQKV, P_WO, P_WQC, P_WKVC, P_WOC, P_WMOD, P_OUT, P_DBG, P_WS = range(40, 64, 2)
def al(x): return (x + 4095) // 4096 * 4096
FL = {}
_f = 0
for nm, n in [('MOD', 72), ('GATE', 18), ('H', 64), ('WQK', 108), ('T', 144), ('WVO', 81), ('KVC', 24), ('P', 128), ('V', 128),
              ('X1', 192), ('AT', 36), ('BT', 18)]:
    FL[nm] = _f; _f += n
NFLAG = 1024
assert _f <= NFLAG
WS = {}
_o = 0
for nm, sz in [('FLAG', NFLAG*128), ('MODP', 2*2*2304*4), ('GATE', 2*1152*4), ('ST', 64*8*256), ('H', NR*D*2), ('WQK', D*D*2), ('WVO', D*D*2),
               ('T', NR*D*2), ('VT', NR*D*2), ('P', 2*1024*1024*2), ('KVC', 72*10*1024), ('AT', 36*10*1024), ('BT', 2*3*72*1024),
               ('X1', NR*D*2)]:
    WS[nm] = (_o, sz); _o = al(_o + sz)
WS['X1'] = WS['T']
ST = ' sc1'
CSC = (D ** -0.5) * math.log2(math.e)
def f32(x): return '0x%08x' % struct.unpack('<I', struct.pack('<f', x))[0]
LDS_MAX = 163840
L_CNT = LDS_MAX - 64

class Cfg:
    ROT = set('wqk tt wvo kvc ss vv pv at bt'.split())
    APRE = False
    SKIP = set()
    WQK_NS = 5
    WQK_NPRE = 3
    STAMP = False
    DBGT = False
    TLBW = 0
    HPRE = True
    PPOLL = False
    WIN = {}
    NAT = 9
    SEARLY = True
    PVEPI = True
    NSA = {}
    STAIL = True
    TPFW = 4
    VMAP = 1
    NBV = True
    SIDE = True
    GN0 = 18
    GPLAN = 0
    MPF = False
    HBAL = 2
    PFG = True
    CT = 0
    LAG = 2
    XF = 6
    BT0 = 0
    ECHK = 1
    ESLP = 4
    EPRE = False
    PRIO = None
    NPRE = 3
    ALIGN = False
    XLATE = False
    HPF2 = 'v'
    HPF2N = 11
    GFIRST = True
    WBL2 = False
    SPK = True
    BT1 = 20
    RSG = True
    PSLEEP = 3
    BTLATE = False
    PKMUL = 0
    SCHED = 1
    VM = [(0, 0x3f3f), (12, 0xc0c0)]
    KVPF = 0
    TPF = True
    WVOPF = True
    NS = dict(wqk=4, tt=3, wvo=4, ss=3, vv=3, pv=4, at=4, bt=4, kvc=4)
    LDX = ' sc1'
    OUTST = ' sc1'
    LIST = True
    PERSIST = False
C = Cfg()
STAMP_OFF = 128 << 20
PH = [0]
NAMES = ['pa_kernel', 'pb_kernel', 'pc_kernel', 'pd_kernel', 'pe_kernel']
VL = 0; VT = 2; VA = 4; VACC = 16
S_ROT = 74
def R(name): return S_ROT if name in C.ROT else None
def mod_const(k, s, m, maxv):
    div_const(k, S_T0, s, m, maxv)
    k(f's_mul_i32 s{S_T0}, s{S_T0}, {m}')
    k(f's_sub_u32 s{s}, s{s}, s{S_T0}')
def LD(): return C.LDX if C.PERSIST else ''
def Wn(name): return C.WIN.get(name, 0)
def rot_from(k, name, s_sum, n_full, maxv):
    w = Wn(name)
    if w:
        mod_const(k, s_sum, w, maxv)
    else:
        mod_const(k, s_sum, n_full, maxv)
        k(f's_mul_i32 s{s_sum}, s{s_sum}, {18 // n_full}')


def stamp(k, i):
    if C.STAMP: k(f's_memrealtime s[{86+2*i}:{87+2*i}]')
def cstamp(k, i):
    if C.STAMP: k(f's_memtime s[{86+2*i}:{87+2*i}]')
def stamp_begin(k):
    if C.STAMP: k('s_memrealtime s[98:99]\n' + '\n'.join(f's_mov_b32 s{86+2*i}, 0' for i in range(6)))

def phase_exit(k, drain=True):
    p = PH[0]
    k('s_mov_b64 exec, -1')
    if C.STAMP:
        if drain: k('s_waitcnt vmcnt(0)')
        k('s_memrealtime s[100:101]')
        k(f's_lshl_b32 s{S_T0}, s2, 8')
        k(f's_lshl_b32 s{S_T1}, s{S_WAVE}, 5')
        k(f's_add_u32 s{S_T0}, s{S_T0}, s{S_T1}')
        k(f's_add_u32 s{S_T0}, s{S_T0}, {STAMP_OFF}')
        k(f's_lshl_b32 s{S_T1}, s80, 16')
        k(f's_add_u32 s{S_T0}, s{S_T0}, s{S_T1}')
        k('s_waitcnt lgkmcnt(0)')
        k(f'v_mov_b32 v1, s{S_T0}\nv_mov_b32 v4, s98\nv_mov_b32 v5, s100')
        for i in range(6): k(f'v_mov_b32 v{6+i}, s{86+2*i}')
        k('s_mov_b64 exec, 1')
        k('global_store_dwordx4 v1, v[4:7], s[62:63]')
        k('global_store_dwordx4 v1, v[8:11], s[62:63] offset:16')
        k('s_mov_b64 exec, -1')
        k('s_nop 1')
    if p < 4:
        k('s_branch next_task')
    else:
        k('s_endpgm')

def ws_srd(k, srd, nm):
    make_srd(k, srd, P_WS, WS[nm][1], WS[nm][0])

def kernel_entry(k):
    name = 'standalone__pixart__diffusion_kernel'
    kernel_header(k, name)
    k('s_getpc_b64 s[76:77]')
    k('s_load_dwordx16 s[40:55], s[0:1], 0')
    k('s_load_dwordx8 s[56:63], s[0:1], 64')
    k('s_lshr_b32 s65, s2, 3')
    k('s_lshl_b32 s78, s65, 11')
    k('v_lshrrev_b32 v1, 6, v0')
    k('v_and_b32 v2, 1, v0')
    k('v_lshl_add_u32 v2, v1, 1, v2')
    k('v_lshl_add_u32 v2, v2, 7, s78')
    k('v_min_u32 v2, code_end - code_start - 8, v2')
    k('s_mov_b64 exec, 3')
    k('global_load_dword v15, v2, s[76:77]')
    k('s_mov_b64 exec, -1')
    stamp_begin(k)
    k('s_cmp_ge_u32 s2, 256')
    k('s_cbranch_scc1 quit0')
    k('v_and_b32 v0, 63, v0')
    k(f'v_readfirstlane_b32 s{S_WAVE}, v1')
    k('s_and_b32 s64, s2, 7')
    k('s_mov_b32 s80, 0')
    k('s_mov_b32 s81, 0')
    if C.PRIO:
        k(f's_cmp_ge_u32 s{S_WAVE}, 4')
        k('s_cbranch_scc1 prio_l' if C.PRIO == 'c' else 's_cbranch_scc0 prio_l')
        k('s_setprio 2')
        k.label('prio_l')
def args_ready(k):
    if PH[0] == 0:
        k('s_waitcnt lgkmcnt(0)')
        l = k.newlabel('tt_pc')
        k('s_getpc_b64 s[0:1]')
        k.label(l)
        k('s_lshl_b32 s85, s2, 3')
        k(f's_add_u32 s85, s85, task_table - {l}')
        k('s_load_dwordx2 s[0:1], s[0:1], s85')
        ws_srd(k, SRD_F, 'FLAG')
ROLES = ['E', 'T', 'wvo', 'kvc', 'gate', 'S', 'V', 'PV', 'AT', 'BT', 'pf']
def code_touch(k, nl=2):
    l = k.newlabel('ct')
    k(f's_getpc_b64 s[{S_T0}:{S_T0+1}]' if S_T0 % 2 == 0 else 's_getpc_b64 s[78:79]')
    k.label(l)
    k(f's_sub_u32 s78, s78, {l} - code_start')
    k('s_subb_u32 s79, s79, 0')
    k(f's_lshl_b32 s{S_T0}, s65, 11')
    if nl == 2:
        k(f's_lshl_b32 s{S_T1}, s{S_WAVE}, 8')
        k(f's_add_u32 s{S_T0}, s{S_T0}, s{S_T1}')
    k(f'v_lshl_add_u32 v13, v{VL}, 7, s{S_T0}')
    k('v_min_u32 v13, code_end - code_start - 4, v13')
    k(f's_mov_b64 exec, {hex((1 << nl) - 1)}')
    k('global_load_dword v11, v13, s[78:79]')
    k('s_mov_b64 exec, -1')

def dispatcher(k):
    k.label('next_task')
    k('s_waitcnt lgkmcnt(0)')
    k('s_add_u32 s80, s80, 1')
    stamp_begin(k)
    if C.CT >= 1: code_touch(k)
    k('s_and_b32 s66, s0, 15')
    k('s_bfe_u32 s67, s0, 0x50004')
    k('s_bfe_u32 s68, s0, 0x50009')
    k('s_bfe_u32 s74, s0, 0x2000e')
    k('s_lshr_b64 s[0:1], s[0:1], 16')
    for i in (1, 5, 7, 6, 2, 3, 4, 8, 9, 10):
        k(f's_cmp_eq_u32 s66, {i}')
        k(f's_cbranch_scc1 role_{ROLES[i]}')
    k('s_branch role_E')

def div_const(k, dst, src, d, maxv):
    for sh in range(4, 20):
        m = -(-(1 << sh) // d)
        if all((v*m) >> sh == v // d for v in range(maxv+1)):
            k(f's_mul_i32 s{dst}, s{src}, {m}')
            k(f's_lshr_b32 s{dst}, s{dst}, {sh}')
            return
    raise Exception('no magic')

SPIN = 0x20000
def poll(k, s_line, n, vt=252, force=False, mask=None):
    if not (C.PERSIST or force): return
    lp, done = k.newlabel('poll'), k.newlabel('polled')
    k(f'v_min_u32 v{vt}, {n-1}, v{VL}')
    k(f'v_lshlrev_b32 v{vt}, 7, v{vt}')
    k(f's_lshl_b32 s{S_T0}, s{s_line}, 7')
    k(f's_mov_b32 s{S_CNT}, {SPIN}')
    if mask: k(f's_mov_b64 exec, {hex(mask)}')
    elif n < 64: k(f's_mov_b64 exec, {hex((1 << n) - 1)}' if n <= 31 else f's_mov_b32 exec_hi, {hex((1 << (n-32)) - 1)}')
    if C.PPOLL:
        ld = lambda r: k(f'buffer_load_dword v{r}, v{vt}, {sr(SRD_F,4)}, s{S_T0} offen sc1')
        ld(vt+1)
        k('s_waitcnt vmcnt(0)')
        k(f'v_cmp_ne_u32 vcc, 1, v{vt+1}')
        k('s_nop 0')
        k('s_cmp_eq_u64 vcc, 0')
        k(f's_cbranch_scc1 {done}')
        ld(vt+1); k('s_sleep 2'); ld(vt+2); k('s_sleep 2')
        k.label(lp)
        for r in (0, 1, 2):
            ld(vt+1+(r+2) % 3)
            k('s_waitcnt vmcnt(2)')
            k(f'v_cmp_ne_u32 vcc, 1, v{vt+1+r}')
            k('s_sleep 1')
            k('s_cmp_eq_u64 vcc, 0')
            k(f's_cbranch_scc1 {done}')
        k(f's_sub_u32 s{S_CNT}, s{S_CNT}, 1')
        k(f's_cmp_lg_u32 s{S_CNT}, 0')
        k(f's_cbranch_scc1 {lp}')
    else:
        k.label(lp)
        k(f'buffer_load_dword v{vt+1}, v{vt}, {sr(SRD_F,4)}, s{S_T0} offen sc1')
        k(f's_sub_u32 s{S_CNT}, s{S_CNT}, 1')
        k('s_waitcnt vmcnt(0)')
        k(f'v_cmp_ne_u32 vcc, 1, v{vt+1}')
        k(f's_cmp_eq_u32 s{S_CNT}, 0')
        k(f's_cbranch_scc1 {done}')
        k('s_cmp_eq_u64 vcc, 0')
        k(f's_cbranch_scc1 {done}')
        k(f's_sleep {C.PSLEEP}')
        k(f's_branch {lp}')
    k.label(done)
    k('s_mov_b64 exec, -1')

def wait_init(k, vt=8):
    lp, done = k.newlabel('wi'), k.newlabel('wid')
    k(f'v_min_u32 v{vt}, 11, v{VL}')
    k(f'v_and_b32 v{vt+1}, 1, v{vt}')
    k(f'v_lshlrev_b32 v{vt+1}, 7, v{vt+1}')
    k(f'v_lshl_add_u32 v{vt}, v{vt}, 2, v{vt+1}')
    k(f's_mov_b32 s{S_CNT}, {SPIN}')
    k.label(lp)
    k(f'global_load_dword v{vt+1}, v{vt}, s[{P_DBG}:{P_DBG+1}] sc1')
    k(f's_sub_u32 s{S_CNT}, s{S_CNT}, 1')
    k('s_waitcnt vmcnt(0)')
    k(f'v_cmp_ne_u32 vcc, 1, v{vt+1}')
    k(f's_cmp_eq_u32 s{S_CNT}, 0')
    k(f's_cbranch_scc1 {done}')
    k('s_cmp_eq_u64 vcc, 0')
    k(f's_cbranch_scc1 {done}')
    k('s_sleep 3')
    k(f's_branch {lp}')
    k.label(done)

def set_flag(k, s_line, vt=8):
    k(f's_lshl_b32 s{S_T0}, s{s_line}, 7')
    k(f'v_mov_b32 v{vt}, 0\nv_mov_b32 v{vt+1}, 1')
    k('s_mov_b64 exec, 1')
    k(f'buffer_store_dword v{vt+1}, v{vt}, {sr(SRD_F,4)}, s{S_T0} offen sc1')
    k('s_mov_b64 exec, -1')

def signal(k, s_line, nwaves, vt=8):
    if not C.PERSIST: return
    skip = k.newlabel('sig')
    k('s_mov_b64 exec, -1')
    k(f's_lshl_b32 s{S_T0}, s{s_line}, 7')
    k(f'v_mov_b32 v{vt}, 0\nv_mov_b32 v{vt+1}, 1')
    k(f's_cmp_lg_u32 s{S_WAVE}, 0')
    k('s_waitcnt vmcnt(0)')
    k('s_barrier')
    k(f's_cbranch_scc1 {skip}')
    if C.WBL2: k('buffer_wbl2 sc1\ns_waitcnt vmcnt(0)')
    k('s_mov_b64 exec, 1')
    k(f'buffer_store_dword v{vt+1}, v{vt}, {sr(SRD_F,4)}, s{S_T0} offen sc1')
    k('s_mov_b64 exec, -1')
    k.label(skip)

def signal_lds(k, s_line, nwaves, vt=8):
    skip = k.newlabel('sig')
    k('s_mov_b64 exec, -1')
    k(f's_lshl_b32 s{S_T0}, s{s_line}, 7')
    k(f'v_mov_b32 v{vt}, 0\nv_mov_b32 v{vt+1}, 1\nv_mov_b32 v{vt+2}, {L_CNT}')
    k('s_mov_b64 exec, 1')
    k('s_waitcnt vmcnt(0)')
    k(f'ds_add_rtn_u32 v{vt+3}, v{vt+2}, v{vt+1}')
    k('s_waitcnt lgkmcnt(0)')
    k(f'v_cmp_eq_u32 vcc, {nwaves-1}, v{vt+3}')
    k('s_nop 0')
    k('s_cmp_eq_u64 vcc, 0')
    k(f's_cbranch_scc1 {skip}')
    if C.WBL2: k('buffer_wbl2 sc1\ns_waitcnt vmcnt(0)')
    k(f'buffer_store_dword v{vt+1}, v{vt}, {sr(SRD_F,4)}, s{S_T0} offen sc1')
    k.label(skip)
    k('s_mov_b64 exec, -1')
    stamp(k, 3)
    k('s_barrier')

def q2f_addr(k, v):
    k(f'v_and_b32 v{v}, 15, v{VL}\nv_lshlrev_b32 v{v}, 4, v{v}\nv_lshrrev_b32 v{VT}, 4, v{VL}\nv_lshl_add_u32 v{v}, v{VT}, 2, v{v}')
def f2q_addr(k, v):
    k(f'v_and_b32 v{v}, 3, v{VL}\nv_lshlrev_b32 v{v}, 6, v{v}\nv_and_b32 v{VT}, 0x3c, v{VL}\nv_add_u32 v{v}, v{v}, v{VT}')
def quad_voff(k, v, stride):
    k(f'v_lshrrev_b32 v{v}, 2, v{VL}\ns_mov_b32 s{S_T0}, {stride}\nv_mul_u32_u24 v{v}, s{S_T0}, v{v}\nv_and_b32 v{VT}, 3, v{VL}\nv_lshl_add_u32 v{v}, v{VT}, 4, v{v}')

def prefetch_flat(k, ptr, nbytes, s_worker, nworkers, vdst, maxper=99, srd=SRD_Y, vtmp=1):
    make_srd(k, srd, ptr, nbytes)
    k(f'v_lshlrev_b32 v{vtmp}, 7, v{VL}')
    per = min(maxper, -(-(-(-nbytes // 8192)) // nworkers))
    k(f's_lshl_b32 s{S_T0}, s{s_worker}, 13')
    for i in range(per):
        k(f'buffer_load_dword v{vdst}, v{vtmp}, {sr(srd,4)}, s{S_T0} offen')
        if i + 1 < per: k(f's_add_u32 s{S_T0}, s{S_T0}, {nworkers*8192}')
def prefetch_cols(k, srd, lines_per_row, colbyte, s_worker, nworkers, vdst, v0, v1, stride=6912, limit=None, per_override=None):
    tot = 1152 * lines_per_row
    per = -(-(tot // 64) // nworkers)
    if per_override: per = per_override
    sh = {18: 20, 36: 21}[lines_per_row]
    assert all((n*58255) >> sh == n // lines_per_row for n in range(per*nworkers*64)) and per*nworkers*64*58255 < 2**32
    k(f's_lshl_b32 s{S_T1}, s{s_worker}, 6')
    lend = k.newlabel('pfc')
    for i in range(per):
        if limit and i == per - 1:
            k(f's_cmp_ge_u32 s{S_T1}, {limit*64}')
            k(f's_cbranch_scc1 {lend}')
        k(f'v_add_u32 v{v0}, s{S_T1}, v{VL}')
        k(f's_mov_b32 s{S_T0}, 58255')
        k(f'v_mul_lo_u32 v{v1}, v{v0}, s{S_T0}')
        k(f'v_lshrrev_b32 v{v1}, {sh}, v{v1}')
        k(f's_mov_b32 s{S_T0}, {stride - lines_per_row*128}')
        k(f'v_mul_u32_u24 v{v1}, s{S_T0}, v{v1}')
        k(f'v_lshl_add_u32 v{v0}, v{v0}, 7, v{v1}')
        k(f's_mov_b32 s{S_T0}, {colbyte}')
        k(f'buffer_load_dword v{vdst}, v{v0}, {sr(srd,4)}, s{S_T0} offen')
        if i + 1 < per: k(f's_add_u32 s{S_T1}, s{S_T1}, {nworkers*64}')
    k.label(lend)

VMAX = [0]
LMAX = [0]
def gemm_role(k, g, epilogue, s_flag=None, npre=2, custom_consumer=None, cons_first=None, depA=None, depB=None, end_hookA=None, end_hookB=None, exit_hook=None, midA=None, tail=None, lds_sig=False):
    ll, lb = k.newlabel(g.name + '_loader'), k.newlabel(g.name + '_loaderB')
    npre = C.NPRE
    tailA = tail
    if C.CT >= 2 and tail is None:
        def tailA(k):
            code_touch(k, 16)
            return 1
    k(f's_cmp_ge_u32 s{S_WAVE}, 4')
    k(f's_cbranch_scc1 {ll}')
    if cons_first: cons_first(k)
    k(f's_and_b32 s{S_WB}, s{S_WAVE}, {g.WB-1}')
    k(f's_lshr_b32 s{S_WA}, s{S_WAVE}, {g.WB.bit_length()-1}')
    VF = VACC + g.ma*g.nb*4
    g.VF = VF
    g.VX = VF + 2*(g.ma+g.nb)*4
    g.vmax = g.VX
    if custom_consumer: custom_consumer(k, g)
    else: consumer_body(k, g, VL, VACC, VF, VA, VT, post_bar0=lambda k: (stamp(k, 0), cstamp(k, 4)))
    stamp(k, 1); cstamp(k, 5)
    epilogue(k, g)
    stamp(k, 2)
    if lds_sig: signal_lds(k, s_flag, 4)
    elif s_flag is not None: signal(k, s_flag, 4)
    lx = k.newlabel(g.name + '_exit')
    k.label(lx)
    if exit_hook: exit_hook(k)
    phase_exit(k, drain=not C.PERSIST)
    k.label(ll)
    k(f's_and_b32 s{S_W2}, s{S_WAVE}, 1')
    k(f's_cmp_ge_u32 s{S_WAVE}, 6')
    k(f's_cbranch_scc1 {lb}')
    def wrap(dep):
        def f(k):
            if dep: dep(k)
            stamp(k, 0)
        return f
    loader_body(k, g, g.A, VL, 1, VT, npre=npre, pre_hook=wrap(depA), end_barrier=C.PERSIST, end_hook=end_hookA, mid=midA, tail_hook=tailA)
    k(f's_branch {lx}')
    k.label(lb)
    loader_body(k, g, g.B, VL, 1, VT, npre=npre, pre_hook=wrap(depB), end_barrier=C.PERSIST, end_hook=end_hookB, tail_hook=tail)
    k(f's_branch {lx}')
    VMAX[0] = max(VMAX[0], g.vmax); LMAX[0] = max(LMAX[0], g.lds_bytes)
    assert g.lds_bytes <= (135168 if g.name in ('ss', 'vv', 'pv') else L_CNT), (g.name, g.lds_bytes)

def acc(g, a, b): return VACC + (a*g.nb + b)*4

def epi_frag16(rbtot, s_kb0, s_rb0, rowperm=False, npair_max=99):
    def f(k, g):
        npair = min(npair_max, (g.ma + 1) // 2)
        k(f's_mul_i32 s{S_T0}, s{S_WA}, {g.ma//2}')
        k(f's_add_u32 s{S_T0}, s{S_T0}, s{s_kb0}')
        k(f's_mul_i32 s{S_T0}, s{S_T0}, {rbtot}')
        k(f's_mul_i32 s{S_T1}, s{S_WB}, {g.nbstep}')
        k(f's_add_u32 s{S_T0}, s{S_T0}, s{S_T1}')
        k(f's_add_u32 s{S_T0}, s{S_T0}, s{s_rb0}')
        k(f's_lshl_b32 s{S_OBASE}, s{S_T0}, 10')
        if rowperm:
            assert g.nb % 2 == 0
            k(f'v_bfe_u32 v{VT}, v{VL}, 2, 1\nv_lshlrev_b32 v1, 10, v{VT}\nv_bfe_u32 v{VT}, v{VL}, 3, 1\nv_lshl_add_u32 v1, v{VT}, 6, v1')
            k(f'v_and_b32 v{VT}, 0x33, v{VL}\nv_lshl_add_u32 v1, v{VT}, 4, v1')
        else:
            k(f'v_lshlrev_b32 v1, 4, v{VL}')
        k('s_nop 1')
        t = g.VF
        for ap in range(npair):
            for b in range(g.nb):
                c0 = acc(g, 2*ap, b)
                k(f'v_cvt_pk_bf16_f32 v{t}, v{c0}, v{c0+1}')
                k(f'v_cvt_pk_bf16_f32 v{t+1}, v{c0+2}, v{c0+3}')
                if 2*ap+1 < g.ma:
                    c1 = acc(g, 2*ap+1, b)
                    k(f'v_cvt_pk_bf16_f32 v{t+2}, v{c1}, v{c1+1}')
                    k(f'v_cvt_pk_bf16_f32 v{t+3}, v{c1+2}, v{c1+3}')
                else:
                    k(f'v_mov_b32 v{t+2}, 0\nv_mov_b32 v{t+3}, 0')
                off = (b & ~1)*1024 + (b & 1)*128 if rowperm else b*1024
                hi, lo = off // 4096 * 4096, off % 4096
                k(f's_add_u32 s{S_T0}, s{S_OBASE}, {ap*rbtot*1024 + hi}')
                k(f'buffer_store_dwordx4 {vr(t,4)}, v1, {sr(SRD_O,4)}, s{S_T0} offen offset:{lo}{ST}')
                t += 4
        g.vmax = max(g.vmax, t)
    return f

def dep(*items):
    def f(k):
        for it in items:
            (s, mul, const, n), mask = it[:4], (it[4] if len(it) > 4 else None)
            if not C.PERSIST: continue
            if s is None: k(f's_mov_b32 s85, {const}')
            else:
                k(f's_mul_i32 s85, s{s}, {mul}')
                k(f's_add_u32 s85, s85, {const}')
            poll(k, 85, n, mask=mask)
    return f

def gemv_job(k, n, tag, s_goff, s_ldsrow, finish, n0=6):
    make_srd(k, SRD_A, P_WMOD, D*6*D*2)
    make_srd(k, SRD_B, P_C, 2*D*2)
    L_SILU, L_RED = 0, 9216
    VW, VS, VAC, VU, VC = 16, 88, 124, 140, 148
    k(f's_lshl_b32 s{S_T0}, s{S_WAVE}, 10')
    k(f'v_lshl_add_u32 v3, v{VL}, 4, s{S_T0}')
    k(f'buffer_load_dwordx4 {vr(VC,4)}, v3, {sr(SRD_B,4)}, 0 offen')
    k(f's_lshl_b32 s{S_T0}, s{S_WAVE}, 3')
    k(f'v_lshrrev_b32 v4, 3, v{VL}')
    k(f'v_add_u32 v4, s{S_T0}, v4')
    k(f'v_and_b32 v5, 7, v{VL}')
    k('v_lshlrev_b32 v5, 4, v5')
    k(f's_mov_b32 s{S_T0}, 13824')
    k(f'v_mad_u32_u24 v5, v4, s{S_T0}, v5')
    def issue_w(i0, i1):
        for i in range(i0, i1):
            if i: k(f's_add_u32 s{s_goff}, s{s_goff}, {64*13824}')
            k(f'buffer_load_dwordx4 {vr(VW+4*i,4)}, v5, {sr(SRD_A,4)}, s{s_goff} offen')
    issue_w(0, n0)
    k('v_lshlrev_b32 v4, 2, v4')
    if s_ldsrow is not None: k(f'v_add_u32 v4, s{s_ldsrow}, v4')
    k(f's_waitcnt vmcnt({n0})')
    for j in range(4):
        k(f'v_lshlrev_b32 v{VC+4+2*j}, 16, v{VC+j}')
        k(f'v_and_b32 v{VC+5+2*j}, 0xffff0000, v{VC+j}')
    for j in range(8): k(f'v_mul_f32 v{VU+j}, {f32(-math.log2(math.e))}, v{VC+4+j}')
    for j in range(8): k(f'v_exp_f32 v{VU+j}, v{VU+j}')
    for j in range(8): k(f'v_add_f32 v{VU+j}, 1.0, v{VU+j}')
    for j in range(8): k(f'v_rcp_f32 v{VU+j}, v{VU+j}')
    for j in range(8): k(f'v_mul_f32 v{VC+4+j}, v{VU+j}, v{VC+4+j}')
    k('v_lshlrev_b32 v8, 1, v3')
    k('v_cmp_gt_u32 vcc, 9216, v8')
    k('s_mov_b64 exec, vcc')
    k(f'ds_write_b128 v8, {vr(VC+4,4)} offset:{L_SILU}')
    k(f'ds_write_b128 v8, {vr(VC+8,4)} offset:{L_SILU+16}')
    k('s_mov_b64 exec, -1')
    k('s_waitcnt lgkmcnt(0)')
    k('s_barrier')
    stamp(k, 0)
    for i in range(n):
        k(f'ds_read2st64_b32 {vr(VS+2*i,2)}, v4 offset0:{i} offset1:{i+18}')
    issue_w(n0, n)
    k(f'v_bfe_u32 v6, v{VL}, 1, 2\nv_lshlrev_b32 v6, 7, v6\nv_lshrrev_b32 v7, 3, v{VL}\nv_lshl_add_u32 v6, v7, 4, v6\nv_and_b32 v7, 1, v{VL}\nv_lshl_add_u32 v6, v7, 3, v6')
    k(f'v_lshrrev_b32 v7, 4, v{VL}\nv_lshlrev_b32 v7, 7, v7\nv_and_b32 v9, 7, v{VL}\nv_lshl_add_u32 v7, v9, 4, v7')
    k(f's_lshl_b32 s{S_T0}, s{S_WAVE}, 9')
    k(f'v_add_u32 v7, s{S_T0}, v7')
    k(f'v_lshlrev_b32 v9, 2, v{VL}')
    for j in range(16): k(f'v_mov_b32 v{VAC+j}, 0')
    k('s_waitcnt lgkmcnt(0)')
    for i in range(n):
        k(f's_waitcnt vmcnt({n - 1 - i})')
        for j in range(4):
            k(f'v_lshlrev_b32 v{VU+2*j}, 16, v{VW+4*i+j}')
            k(f'v_and_b32 v{VU+2*j+1}, 0xffff0000, v{VW+4*i+j}')
        for j in range(4):
            k(f'v_pk_fma_f32 {vr(VAC+4*j,2)}, {vr(VS+2*i,2)}, {vr(VU+2*j,2)}, {vr(VAC+4*j,2)} op_sel:[0,0,0] op_sel_hi:[1,0,1]')
            k(f'v_pk_fma_f32 {vr(VAC+4*j+2,2)}, {vr(VS+2*i,2)}, {vr(VU+2*j,2)}, {vr(VAC+4*j+2,2)} op_sel:[0,1,0] op_sel_hi:[1,1,1]')
    stamp(k, 1)
    k('s_nop 1')
    for j in range(8): k(f'v_permlane32_swap_b32 v{VAC+j}, v{VAC+8+j}')
    for j in range(8): k(f'v_add_f32 v{VAC+j}, v{VAC+j}, v{VAC+8+j}')
    k('s_nop 1')
    for j in range(4): k(f'v_permlane16_swap_b32 v{VAC+j}, v{VAC+4+j}')
    for j in range(4): k(f'v_add_f32 v{VAC+4+j}, v{VAC+j}, v{VAC+4+j}')
    k('s_nop 1')
    for j in range(4): k(f'v_add_f32_dpp v{VAC+j}, v{VAC+4+j}, v{VAC+4+j} row_ror:8 row_mask:0xf bank_mask:0xf')
    k(f'ds_write_b128 v7, {vr(VAC,4)} offset:{L_RED}')
    k('s_waitcnt lgkmcnt(0)')
    k('s_barrier')
    k(f's_cmp_lg_u32 s{S_WAVE}, 0')
    k(f's_cbranch_scc1 gv_nored{tag}')
    for w in range(8): k(f'ds_read_b64 {vr(VAC+2*w,2)}, v6 offset:{L_RED + 512*w}')
    k('s_waitcnt lgkmcnt(0)')
    for st in (8, 4, 2):
        for j in range(0, st, 2):
            k(f'v_pk_add_f32 {vr(VAC+j,2)}, {vr(VAC+j,2)}, {vr(VAC+st+j,2)}')
    stamp(k, 2)
    finish(k, VAC)
    stamp(k, 3)
    k.label(f'gv_nored{tag}')
    k('s_barrier')
    VMAX[0] = max(VMAX[0], 160); LMAX[0] = max(LMAX[0], 16384)

def gate_job(k, s_idx):
    k(f's_lshl_b32 s{S_G}, s{s_idx}, 7')
    k(f's_add_u32 s{S_G}, s{S_G}, 4608')
    def fin(k, VAC):
        ws_srd(k, SRD_O, 'GATE')
        k(f's_lshl_b32 s{S_T1}, s{s_idx}, 8')
        k(f's_add_u32 s{S_T2}, s{S_T1}, 4608')
        k(f'buffer_store_dword v{VAC}, v9, {sr(SRD_O,4)}, s{S_T1} offen sc1')
        k(f'buffer_store_dword v{VAC+1}, v9, {sr(SRD_O,4)}, s{S_T2} offen sc1')
        if C.PERSIST:
            wait_init(k, 12)
            k(f's_add_u32 s85, s{s_idx}, {FL["GATE"]}')
            set_flag(k, 85, 12)
    gemv_job(k, 18, 'g', S_G, None, fin, n0=C.GN0)

def phase_A(k):
    kernel_entry(k)
    k('s_cmp_ge_u32 s65, 23')
    k('s_cbranch_scc1 pa_mod')
    k('s_cmp_lt_u32 s65, 8')
    k('s_cbranch_scc1 pa_h')
    k('s_and_b32 s66, s64, 1')
    k('s_lshr_b32 s67, s64, 1')
    k('s_sub_u32 s68, 5, s66')
    k('s_mul_i32 s70, s68, 3')
    k('s_sub_u32 s69, s65, 8')
    k('s_cmp_ge_u32 s69, s70')
    k('s_cbranch_scc1 pa_spare')
    div_const(k, 71, 69, 5, 31)
    k('s_lshr_b32 s72, s69, 2')
    k('s_cmp_eq_u32 s66, 0')
    k('s_cselect_b32 s71, s71, s72')
    k('s_mul_i32 s72, s71, s68')
    k('s_sub_u32 s72, s69, s72')
    k('s_lshl_b32 s74, s71, 1')
    k('s_add_u32 s74, s74, s72')
    rot_from(k, 'wqk', 74, 6, 16)
    k('s_mul_i32 s73, s66, 5')
    k('s_add_u32 s72, s72, s73')
    k('s_mul_i32 s73, s67, 3')
    k('s_add_u32 s71, s71, s73')
    k(f's_mul_i32 s{S_ABASE}, s72, {128*6912}')
    k(f's_mul_i32 s{S_BBASE}, s71, {96*6912}')
    k(f's_add_u32 s{S_BBASE}, s{S_BBASE}, {D*2}')
    k('s_lshl_b32 s75, s72, 2')
    k('s_mul_i32 s76, s71, 6')
    k('s_mul_i32 s77, s71, 9')
    k('s_add_u32 s77, s77, s72')
    k(f's_add_u32 s78, s77, {FL["WQK"]}')
    args_ready(k)
    make_srd(k, SRD_A, P_WQKV, D*3*D*2)
    ws_srd(k, SRD_O, 'WQK')
    g = Gemm('wqk', Opnd('row', 8, SRD_A, S_ABASE, stride=6912, perm=True), Opnd('row', 6, SRD_A, S_BBASE, stride=6912, perm=True), 2, 2, 18, C.NS['wqk'], rot=R('wqk'), win=Wn('wqk'))
    def a_pre(k):
        k(f's_mul_i32 s79, s{S_WAVE}, 108')
        k('s_add_u32 s79, s79, s77')
        k('s_add_u32 s79, s79, 512')
        prefetch_cols(k, SRD_A, 36, 0, 79, 432, 12, 1, 2, limit=648, per_override=1)
    def a_end(k):
        if C.PERSIST: wait_init(k)
    gemm_role(k, g, epi_frag16(72, 75, 76), s_flag=78, npre=2, cons_first=(a_pre if C.HBAL == 2 else None), end_hookA=a_end)
    k.label('pa_mod')
    if 'mod' in C.SKIP: k('s_endpgm')
    k('s_mul_i32 s73, s64, 9')
    k('s_add_u32 s73, s73, s65')
    k('s_sub_u32 s73, s73, 23')
    k('s_cmp_ge_u32 s73, 36')
    k('s_cselect_b32 s74, 1, 0')
    k('s_mul_i32 s75, s74, 36')
    k('s_sub_u32 s75, s73, s75')
    k(f's_mul_i32 s{S_G}, s74, {576*13824}')
    k(f's_lshl_b32 s{S_T0}, s75, 7')
    k(f's_add_u32 s{S_G}, s{S_G}, s{S_T0}')
    k('s_mul_i32 s76, s74, 2304')
    args_ready(k)
    def fin(k, VAC):
        ws_srd(k, SRD_O, 'MODP')
        k('s_cmp_ge_u32 s75, 18')
        k(f's_cselect_b32 s{S_T2}, 1.0, 0')
        k('s_cmp_eq_u32 s74, 0')
        k(f's_cselect_b32 s{S_T2}, s{S_T2}, 0')
        k(f'v_add_f32 v{VAC}, s{S_T2}, v{VAC}\nv_add_f32 v{VAC+1}, s{S_T2}, v{VAC+1}')
        k(f's_mul_i32 s{S_T1}, s74, 18432')
        k(f's_lshl_b32 s{S_T0}, s75, 8')
        k(f's_add_u32 s{S_T1}, s{S_T1}, s{S_T0}')
        k(f's_add_u32 s{S_T2}, s{S_T1}, 9216')
        k(f'buffer_store_dword v{VAC}, v9, {sr(SRD_O,4)}, s{S_T1} offen sc1')
        k(f'buffer_store_dword v{VAC+1}, v9, {sr(SRD_O,4)}, s{S_T2} offen sc1')
        wait_init(k, 12)
        k(f's_add_u32 s85, s73, {FL["MOD"]}')
        set_flag(k, 85, 12)
    gemv_job(k, 9, 'm', S_G, 76, fin)
    if C.MPF:
        k('s_lshl_b32 s79, s73, 3')
        k(f's_add_u32 s79, s79, s{S_WAVE}')
        k('s_add_u32 s79, s79, 72')
        prefetch_flat(k, P_WKVC, D*2*D*2, 79, 648, 14, vtmp=8)
    phase_exit(k, drain=False)
    k.label('pa_spare')
    k('s_mul_i32 s73, s67, 3')
    k('s_add_u32 s73, s73, s65')
    k('s_sub_u32 s73, s73, 20')
    args_ready(k)
    k(f'v_lshlrev_b32 v8, 4, v{VL}')
    k('v_mov_b32 v4, 0\nv_mov_b32 v5, 0\nv_mov_b32 v6, 0\nv_mov_b32 v7, 0')
    k('s_lshl_b32 s79, s73, 3')
    k(f's_add_u32 s79, s79, s{S_WAVE}')
    k(f's_lshl_b32 s{S_T0}, s79, 10')
    k(f'buffer_store_dwordx4 v[4:7], v8, {sr(SRD_F,4)}, s{S_T0} offen sc1')
    k(f's_add_u32 s{S_T0}, s{S_T0}, {96*1024}')
    k(f'buffer_store_dwordx4 v[4:7], v8, {sr(SRD_F,4)}, s{S_T0} offen sc1')
    k('s_waitcnt vmcnt(0)')
    k('s_barrier')
    k(f's_cmp_lg_u32 s{S_WAVE}, 0')
    k('s_cbranch_scc1 pa_noinit')
    k(f's_and_b32 s{S_T0}, s73, 1')
    k(f's_lshl_b32 s{S_T0}, s{S_T0}, 7')
    k(f's_lshl_b32 s{S_T1}, s73, 2')
    k(f's_add_u32 s{S_T0}, s{S_T0}, s{S_T1}')
    k(f'v_mov_b32 v8, 1\nv_mov_b32 v9, s{S_T0}')
    k('s_mov_b64 exec, 1')
    k(f'global_store_dword v9, v8, s[{P_DBG}:{P_DBG+1}] sc1')
    k('s_mov_b64 exec, -1')
    k.label('pa_noinit')
    k('s_lshl_b32 s79, s73, 3')
    k(f's_add_u32 s79, s79, s{S_WAVE}')
    if C.HBAL == 1:
        k('s_add_u32 s78, s79, 512')
        make_srd(k, SRD_Y, P_WQKV, D*3*D*2)
        prefetch_cols(k, SRD_Y, 36, 0, 78, 96, 13, 8, 9, limit=648, per_override=2)
    k('s_lshr_b32 s78, s79, 1')
    k('s_bitcmp1_b32 s79, 0')
    k('s_cbranch_scc1 pa_noy')
    prefetch_flat(k, P_Y, 2*77*D*2, 78, 48, 14, vtmp=8)
    k.label('pa_noy')
    phase_exit(k, drain=False)
    k.label('pa_h')
    if 'h' in C.SKIP: k('s_endpgm')
    k('s_lshl_b32 s73, s64, 3')
    k('s_add_u32 s73, s73, s65')
    args_ready(k)
    def h_pf(k):
        if not C.PERSIST: return
        k('s_lshl_b32 s79, s73, 3')
        k(f's_add_u32 s79, s79, s{S_WAVE}')
        prefetch_flat(k, P_WKVC, D*2*D*2, 79, 512, 14, maxper=1, vtmp=8)
        l1 = k.newlabel('hpf')
        k('s_cmp_ge_u32 s79, 180')
        k(f's_cbranch_scc1 {l1}')
        k('s_cmp_ge_u32 s79, 136')
        k(f's_cselect_b32 s{SRD_Y}, s{P_Y}, s{P_WKVC}')
        k(f's_cselect_b32 s{SRD_Y+1}, s{P_Y+1}, s{P_WKVC+1}')
        k(f's_mov_b32 s{S_T1}, {D*2*D*2}')
        k(f's_cselect_b32 s{SRD_Y+2}, {2*77*D*2}, s{S_T1}')
        k(f's_mov_b32 s{S_T1}, {512*8192}')
        k(f's_cselect_b32 s{S_T1}, {(-136*8192) & 0xffffffff}, s{S_T1}')
        k(f's_add_u32 s{S_T0}, s{S_T0}, s{S_T1}')
        k(f'buffer_load_dword v14, v8, {sr(SRD_Y,4)}, s{S_T0} offen')
        k.label(l1)
    L_STAT, L_MOD = 0, 2048
    VN, VM, VXD = 16, 112, 208
    if C.HPRE:
        k('s_lshl_b32 s79, s73, 3')
        k(f's_add_u32 s79, s79, s{S_WAVE}')
        make_srd(k, SRD_Y, P_WQKV, D*3*D*2)
        prefetch_cols(k, SRD_Y, 36, 0, 79, 512, 13, 8, 9, limit=(512 if C.HBAL else 648))
    k(f's_cmp_ge_u32 s{S_WAVE}, 6')
    k('s_cbranch_scc1 pa_hhelp')
    make_srd(k, SRD_X, P_X, NR*D*2)
    k(f'v_lshrrev_b32 v6, 3, v{VL}\ns_mov_b32 s{S_T0}, 2304\nv_mul_u32_u24 v6, s{S_T0}, v6\nv_and_b32 v7, 7, v{VL}\nv_lshl_add_u32 v6, v7, 4, v6')
    k(f's_mul_i32 s75, s73, {32*2304}')
    k(f's_mul_i32 s76, s{S_WAVE}, 384')
    k('s_add_u32 s75, s75, s76')
    for rg in range(4):
        for sg in range(3):
            k(f'buffer_load_dwordx4 {vr(VM+(rg*3+sg)*4,4)}, v6, {sr(SRD_X,4)}, s75 offen offset:{128*sg}')
        if rg < 3: k(f's_add_u32 s75, s75, {8*2304}')
    k(f'v_lshlrev_b32 v7, 5, v7\nv_lshrrev_b32 v8, 3, v{VL}\nv_lshl_add_u32 v7, v8, 2, v7')
    k(f's_mov_b32 s77, 0x3f803f80')
    for rg in range(4):
        k(f's_waitcnt vmcnt({9 - 3*rg})')
        for j in range(12): k(f'ds_bpermute_b32 v{VXD+12*rg+j}, v7, v{VM+12*rg+j}')
    stamp(k, 0)
    for rg in range(4):
        k(f'v_mov_b32 v{VN+2*rg}, 0\nv_mov_b32 v{VN+2*rg+1}, 0')
    k('s_waitcnt lgkmcnt(0)')
    for j in range(12):
        for rg in range(4):
            k(f'v_dot2_f32_bf16 v{VN+rg}, v{VXD+12*rg+j}, s77, v{VN+rg}')
            k(f'v_dot2_f32_bf16 v{VN+4+rg}, v{VXD+12*rg+j}, v{VXD+12*rg+j}, v{VN+4+rg}')
    k('s_nop 3')
    for j in range(4): k(f'v_permlane32_swap_b32 v{VN+j}, v{VN+4+j}')
    for j in range(4): k(f'v_add_f32 v{VN+j}, v{VN+j}, v{VN+4+j}')
    k('s_nop 1')
    for j in range(2): k(f'v_permlane16_swap_b32 v{VN+j}, v{VN+2+j}')
    for j in range(2): k(f'v_add_f32 v{VN+2+j}, v{VN+j}, v{VN+2+j}')
    k('s_nop 1')
    for j in range(2): k(f'v_add_f32_dpp v{VN+j}, v{VN+2+j}, v{VN+2+j} row_ror:8 row_mask:0xf bank_mask:0xf')
    k(f'v_and_b32 v9, 7, v{VL}\nv_mul_u32_u24 v9, 192, v9\nv_lshrrev_b32 v10, 4, v{VL}\nv_lshl_add_u32 v10, v10, 3, v9')
    k(f's_lshl_b32 s{S_T0}, s{S_WAVE}, 5')
    k(f'v_add_u32 v10, s{S_T0}, v10')
    k(f'ds_write_b64 v10, {vr(VN,2)} offset:{L_STAT}')
    k('s_waitcnt lgkmcnt(0)')
    k('s_barrier')
    for w in range(6):
        k(f'ds_read_b128 {vr(VM+8*w,4)}, v9 offset:{L_STAT + 32*w}')
        k(f'ds_read_b128 {vr(VM+8*w+4,4)}, v9 offset:{L_STAT + 32*w + 16}')
    k('s_waitcnt lgkmcnt(0)')
    for w in range(1, 6):
        for j in range(0, 8, 2): k(f'v_pk_add_f32 {vr(VM+j,2)}, {vr(VM+j,2)}, {vr(VM+8*w+j,2)}')
    for rg in range(4):
        k(f'v_mul_f32 v{VM+rg}, {f32(1.0/D)}, v{VM+rg}')
        k(f'v_mul_f32 v{VM+4+rg}, {f32(1.0/D)}, v{VM+4+rg}')
        k(f'v_fma_f32 v{VM+4+rg}, -v{VM+rg}, v{VM+rg}, v{VM+4+rg}')
        k(f'v_max_f32 v{VM+4+rg}, 0, v{VM+4+rg}')
        k(f'v_add_f32 v{VM+4+rg}, {f32(1e-5)}, v{VM+4+rg}')
        k(f'v_rsq_f32 v{VM+4+rg}, v{VM+4+rg}')
        k('s_nop 0')
        k(f'v_mul_f32 v{VM+rg}, v{VM+rg}, v{VM+4+rg}')
    for rg in range(4):
        for j in range(12):
            n = VN + 24*rg + 2*j
            k(f'v_lshlrev_b32 v{n}, 16, v{VXD+12*rg+j}')
            k(f'v_and_b32 v{n+1}, 0xffff0000, v{VXD+12*rg+j}')
            k(f'v_fma_f32 v{n}, v{n}, v{VM+4+rg}, -v{VM+rg}')
            k(f'v_fma_f32 v{n+1}, v{n+1}, v{VM+4+rg}, -v{VM+rg}')
    ws_srd(k, SRD_A, 'H')
    k(f'v_lshrrev_b32 v8, 3, v{VL}\nv_lshlrev_b32 v8, 5, v8')
    k(f's_mul_i32 s{S_T0}, s{S_WAVE}, 768')
    k(f'v_add_u32 v8, s{S_T0}, v8')
    k(f'v_lshrrev_b32 v9, 5, v{VL}\nv_lshlrev_b32 v9, 17, v9\nv_bfe_u32 v10, v{VL}, 3, 2\nv_lshl_add_u32 v9, v10, 8, v9\nv_and_b32 v10, 7, v{VL}\nv_lshl_add_u32 v9, v10, 4, v9')
    k(f's_mul_i32 s{S_G}, s{S_WAVE}, {6*128}')
    k('s_lshl_b32 s76, s73, 1')
    k(f's_add_u32 s{S_G}, s{S_G}, s76')
    k(f's_lshl_b32 s{S_G}, s{S_G}, 10')
    stamp(k, 1)
    k('s_barrier')
    stamp(k, 2)
    for sg in range(3):
        m = VM + 32*sg
        for ks in range(2):
            for kind in range(2):
                for h in range(2):
                    k(f'ds_read_b128 {vr(m+16*ks+8*kind+4*h,4)}, v8 offset:{L_MOD + ks*9216 + kind*4608 + sg*256 + 16*h}')
    for sg in range(3):
        m = VM + 32*sg
        k(f's_waitcnt lgkmcnt({min(15, 8*(2-sg))})')
        for j in range(0, 16, 2): k(f'v_pk_add_f32 {vr(m+j,2)}, {vr(m+j,2)}, {vr(m+16+j,2)}')
        k(f's_add_u32 s{S_T0}, s{S_G}, {sg*2*128*1024}')
        for rg in range(4):
            n = VN + 24*rg + 8*sg
            o = VXD + 12*rg + 4*sg
            for j in range(0, 8, 2): k(f'v_pk_fma_f32 {vr(n+j,2)}, {vr(n+j,2)}, {vr(m+8+j,2)}, {vr(m+j,2)}')
            for j in range(4): k(f'v_cvt_pk_bf16_f32 v{o+j}, v{n+2*j}, v{n+2*j+1}')
            k(f'buffer_store_dwordx4 {vr(o,4)}, v9, {sr(SRD_A,4)}, s{S_T0} offen offset:{(rg>>1)*1024 + (rg&1)*128}{ST}')
    stamp(k, 3)
    k(f's_add_u32 s85, s73, {FL["H"]}')
    signal(k, 85, 6, 12)
    k.label('pa_hout')
    phase_exit(k, drain=not C.PERSIST)
    k.label('pa_hhelp')
    k(f's_cmp_eq_u32 s{S_WAVE}, 7')
    k('s_cbranch_scc1 pa_hpoll')
    if C.TLBW:
        sh = C.TLBW
        k(f'v_lshlrev_b32 v8, 3, v{VL}')
        k('v_add_u32 v8, s65, v8')
        k(f'v_lshlrev_b32 v8, {sh}, v8')
        span = 512 << sh
        for ptr, nb in [(P_WS, _o), (P_OUT, NR*D*2), (P_WQKV, D*3*D*2), (P_WO, D*D*2), (P_WQC, D*D*2), (P_WKVC, D*2*D*2), (P_WOC, D*D*2), (P_WMOD, D*6*D*2), (P_Y, 2*77*D*2)]:
            make_srd(k, SRD_Y, ptr, nb)
            for i in range(-(-nb // span)):
                k(f's_mov_b32 s{S_T0}, {i*span}')
                k(f'buffer_load_dword v14, v8, {sr(SRD_Y,4)}, s{S_T0} offen sc1')
    if C.HPF2:
        k('s_waitcnt vmcnt(0)')
        if C.HPF2 == 'v':
            make_srd(k, SRD_Y, P_WQKV, D*3*D*2)
            prefetch_cols(k, SRD_Y, 18, 4608, 73, 64, 13, 8, 9, limit=324)
            prefetch_flat(k, P_WO, D*D*2, 73, 64, 13, vtmp=8)
        else:
            prefetch_flat(k, P_WKVC, D*2*D*2, 73, 64, 13, vtmp=8, maxper=C.HPF2N)
    k.label('pa_hidle')
    k('s_waitcnt lgkmcnt(0)')
    k('s_barrier')
    k('s_barrier')
    if C.PERSIST: k('s_barrier')
    k('s_branch pa_hout')
    k.label('pa_hpoll')
    wait_init(k)
    k('s_barrier')
    k(f'v_min_u32 v8, 35, v{VL}')
    k('v_lshlrev_b32 v8, 7, v8')
    k(f's_mov_b32 s{S_T0}, {FL["MOD"]*128}')
    k(f's_mov_b32 s{S_T1}, {(FL["MOD"]+36)*128}')
    k(f's_mov_b32 s{S_CNT}, {SPIN}')
    k('s_mov_b32 exec_hi, 15')
    k.label('pa_mp')
    k(f'buffer_load_dword v9, v8, {sr(SRD_F,4)}, s{S_T0} offen sc1')
    k(f'buffer_load_dword v10, v8, {sr(SRD_F,4)}, s{S_T1} offen sc1')
    k(f's_sub_u32 s{S_CNT}, s{S_CNT}, 1')
    k('s_waitcnt vmcnt(0)')
    k('v_add_u32 v9, v9, v10')
    k('v_cmp_ne_u32 vcc, 2, v9')
    k(f's_cmp_eq_u32 s{S_CNT}, 0')
    k('s_cbranch_scc1 pa_mpd')
    k('s_cmp_eq_u64 vcc, 0')
    k('s_cbranch_scc1 pa_mpd')
    k('s_sleep 2')
    k('s_branch pa_mp')
    k.label('pa_mpd')
    k('s_mov_b64 exec, -1')
    stamp(k, 0)
    ws_srd(k, SRD_O, 'MODP')
    k(f'v_lshlrev_b32 v8, 4, v{VL}')
    k('s_lshr_b32 s79, s73, 5')
    k('s_mul_i32 s79, s79, 9216')
    for ks in range(2):
        for c in range(9):
            if c % 4 == 0:
                k(f's_mov_b32 m0, {L_MOD + ks*9216 + c*1024}')
                k(f's_add_u32 s{S_T0}, s79, {ks*18432 + c*1024}')
            k(f'buffer_load_dwordx4 v8, {sr(SRD_O,4)}, s{S_T0} offen offset:{(c%4)*1024} sc1 lds')
    k('s_waitcnt vmcnt(0)')
    k('s_barrier')
    if C.PERSIST: k('s_barrier')
    k('s_branch pa_hout')
    VMAX[0] = 256

def phase_B(k):
    dispatcher(k)
    k.label('role_T')
    k('s_mul_i32 s66, s67, 9')
    k('s_add_u32 s66, s66, s68')
    k(f's_lshl_b32 s{S_ABASE}, s68, 13')
    k(f's_lshl_b32 s{S_BBASE}, s67, 13')
    k('s_lshl_b32 s75, s68, 2')
    k('s_lshl_b32 s76, s67, 3')
    k(f's_add_u32 s78, s66, {FL["T"]}')
    k('s_lshl_b32 s69, s68, 2')
    div_const(k, 69, 69, 3, 40)
    args_ready(k)
    ws_srd(k, SRD_A, 'WQK'); ws_srd(k, SRD_B, 'H'); ws_srd(k, SRD_O, 'T')
    g1 = Gemm('tt', Opnd('frag', 8, SRD_A, S_ABASE, rbtot=72, aux=LD()), Opnd('frag', 8, SRD_B, S_BBASE, rbtot=128, aux=LD()), 2, 2, 18, C.NS['tt'], rot=R('tt'), win=Wn('tt'))
    def c_pf(k, s_chunk, n, step):
        k(f's_bitcmp1_b32 s{S_WAVE}, 1')
        k(f's_cselect_b32 s{SRD_Y}, s{P_WQC}, s{P_WOC}')
        k(f's_cselect_b32 s{SRD_Y+1}, s{P_WQC+1}, s{P_WOC+1}')
        k(f's_mov_b32 s{SRD_Y+2}, {D*D*2}')
        k(f's_mov_b32 s{SRD_Y+3}, 0x00020000')
        k(f'v_lshlrev_b32 v8, 7, v{VL}')
        k(f's_lshl_b32 s{S_T0}, s{s_chunk}, 13')
        for i in range(n):
            k(f'buffer_load_dword v14, v8, {sr(SRD_Y,4)}, s{S_T0} offen')
            if i + 1 < n: k(f's_add_u32 s{S_T0}, s{S_T0}, {step*8192}')
    def t_pf(k):
        if not C.TPF: return
        if C.TPF == 'c':
            k('s_lshl_b32 s79, s66, 1')
            k(f's_and_b32 s{S_T1}, s{S_WAVE}, 1')
            k(f's_add_u32 s79, s79, s{S_T1}')
            k('s_add_u32 s79, s79, 36')
            c_pf(k, 79, 1, 0)
            return
        nw = C.TPFW
        lt = k.newlabel('tpf')
        k(f's_cmp_ge_u32 s{S_WAVE}, {nw}')
        k(f's_cbranch_scc1 {lt}')
        k(f's_mul_i32 s79, s66, {nw}')
        k(f's_add_u32 s79, s79, s{S_WAVE}')
        k(f's_add_u32 s79, s79, {648 - 144*nw}')
        prefetch_flat(k, P_WKVC, D*2*D*2, 79, 648, 14, vtmp=8)
        k.label(lt)
    gemm_role(k, g1, epi_frag16(128, 75, 76), s_flag=78, cons_first=t_pf, depA=dep((69, 9, FL['WQK'], 18)), depB=dep((67, 4, FL['H'], 4)))
    k.label('role_wvo')
    k('s_mul_i32 s66, s67, 9')
    k('s_add_u32 s66, s66, s68')
    if not Wn('wvo'): k('s_mul_i32 s74, s74, 6')
    k(f's_mul_i32 s{S_ABASE}, s68, {128*6912}')
    k(f's_add_u32 s{S_ABASE}, s{S_ABASE}, {2*D*2}')
    k(f's_lshl_b32 s{S_BBASE}, s67, 8')
    k('s_lshl_b32 s75, s68, 2')
    k('s_lshl_b32 s76, s67, 3')
    k(f's_add_u32 s78, s66, {FL["WVO"]}')
    args_ready(k)
    make_srd(k, SRD_A, P_WQKV, D*3*D*2); make_srd(k, SRD_B, P_WO, D*D*2); ws_srd(k, SRD_O, 'WVO')
    g2 = Gemm('wvo', Opnd('row', 8, SRD_A, S_ABASE, stride=6912, perm=True), Opnd('col', 8, SRD_B, S_BBASE, stride=2304), 2, 2, 18, C.NS['wvo'], rot=R('wvo'), win=Wn('wvo'))
    def wvo_exit(k):
        if not C.PERSIST: return
        k('s_lshl_b32 s79, s66, 2')
        k(f's_and_b32 s{S_T1}, s{S_WAVE}, 3')
        k(f's_add_u32 s79, s79, s{S_T1}')
        k(f's_cmp_ge_u32 s{S_WAVE}, 4')
        k(f's_cselect_b32 s{SRD_Y}, s{P_WQC}, s{P_WOC}')
        k(f's_cselect_b32 s{SRD_Y+1}, s{P_WQC+1}, s{P_WOC+1}')
        k(f's_mov_b32 s{SRD_Y+2}, {D*D*2}')
        k(f's_mov_b32 s{SRD_Y+3}, 0x00020000')
        k(f'v_lshlrev_b32 v8, 7, v{VL}')
        k(f's_lshl_b32 s{S_T0}, s79, 13')
        k(f'buffer_load_dword v14, v8, {sr(SRD_Y,4)}, s{S_T0} offen')
    gemm_role(k, g2, epi_frag16(72, 75, 76, rowperm=True), s_flag=78, exit_hook=(wvo_exit if C.WVOPF == 1 else None), end_hookA=wait_init)
    def kv_pf(k, s_idx):
        k(f's_lshl_b32 s79, s{s_idx}, 3')
        k(f's_add_u32 s79, s79, s{S_WAVE}')
        prefetch_flat(k, P_WKVC, D*2*D*2, 79, 224, 14, vtmp=8, maxper=C.KVPF)
    k.label('role_kvc')
    if C.KVPF:
        k('s_lshl_b32 s66, s68, 1')
        k('s_add_u32 s66, s66, s67')
        kv_pf(k, 66)
    k(f's_mul_i32 s{S_ABASE}, s68, 384')
    k(f's_mul_i32 s{S_BBASE}, s67, {77*2304}')
    k('s_mul_i32 s78, s67, 12')
    k('s_add_u32 s78, s78, s68')
    k(f's_add_u32 s78, s78, {FL["KVC"]}')
    args_ready(k)
    make_srd(k, SRD_A, P_WKVC, D*2*D*2); make_srd(k, SRD_B, P_Y, 2*77*D*2); ws_srd(k, SRD_O, 'KVC')
    g3 = Gemm('kvc', Opnd('col', 12, SRD_A, S_ABASE, stride=4608), Opnd('row', 5, SRD_B, S_BBASE, stride=2304), 4, 1, 18, C.NS['kvc'])
    def epi_kvc(k, g):
        k(f'v_and_b32 v1, 15, v{VL}\nv_lshlrev_b32 v1, 4, v1\nv_lshrrev_b32 v{VT}, 5, v{VL}\nv_lshl_add_u32 v1, v{VT}, 8, v1')
        k(f'v_bfe_u32 v{VT}, v{VL}, 4, 1\nv_lshl_add_u32 v1, v{VT}, 3, v1')
        k('s_mul_i32 s70, s68, 12')
        k(f's_mul_i32 s71, s{S_WA}, 3')
        k('s_add_u32 s70, s70, s71')
        k('s_mul_i32 s72, s67, 5120')
        t = g.VF
        for i in range(3):
            k(f's_add_u32 s71, s70, {i}')
            k(f's_lshr_b32 s{S_T0}, s71, 1')
            k(f's_mul_i32 s{S_T0}, s{S_T0}, 10240')
            k('s_and_b32 s71, s71, 1')
            k('s_lshl_b32 s71, s71, 9')
            k(f's_add_u32 s{S_T0}, s{S_T0}, s71')
            k(f's_add_u32 s{S_T0}, s{S_T0}, s72')
            for b in range(5):
                c0 = acc(g, i, b)
                k(f'v_cvt_pk_bf16_f32 v{t}, v{c0}, v{c0+1}')
                k(f'v_cvt_pk_bf16_f32 v{t+1}, v{c0+2}, v{c0+3}')
                if b == 4: k(f's_add_u32 s{S_T0}, s{S_T0}, 4096')
                k(f'buffer_store_dwordx2 {vr(t,2)}, v1, {sr(SRD_O,4)}, s{S_T0} offen offset:{(b%4)*1024}{ST}')
                t += 2
    gemm_role(k, g3, epi_kvc, s_flag=78, end_hookA=wait_init)
    k.label('role_gate')
    k('s_mov_b32 s73, s67')
    k('s_mov_b32 s72, s68')
    k.label('pb_gate')
    gate_job(k, 73)
    k('s_add_u32 s73, s73, 1')
    k('s_sub_u32 s72, s72, 1')
    k('s_cmp_lg_u32 s72, 0')
    k('s_cbranch_scc1 pb_gate')
    phase_exit(k, drain=False)
    k.label('role_pf')
    if C.TPF == 'c':
        k(f's_and_b32 s79, s{S_WAVE}, 1')
        k(f's_lshr_b32 s78, s{S_WAVE}, 2')
        k('s_lshl_b32 s78, s78, 1')
        k('s_add_u32 s79, s79, s78')
        k('s_lshl_b32 s78, s67, 2')
        k('s_add_u32 s79, s79, s78')
        c_pf(k, 79, 3, 12)
    elif C.TPF or C.MPF:
        k('s_sub_u32 s79, s67, 24')
        k('s_lshl_b32 s79, s79, 3')
        k(f's_add_u32 s79, s79, s{S_WAVE}')
        prefetch_flat(k, P_WKVC, D*2*D*2, 79, 32, 14, vtmp=8, maxper=3)
    else: kv_pf(k, 67)
    phase_exit(k, drain=False)

L_XR, L_GT = 135168, 135168 + 24576
def side_sub(k):
    k.label('side_x')
    k('s_and_b32 s85, s0, 15')
    k('s_bfe_u32 s76, s0, 0x50004')
    k('s_bfe_u32 s77, s0, 0x50009')
    make_srd(k, SRD_Y, P_X, NR*D*2)
    k(f's_cmp_lg_u32 s85, {ROLES.index("PV")}')
    k(f's_cselect_b32 s{SRD_Y+2}, 0, s{SRD_Y+2}')
    quad_voff(k, 1, 2304)
    k(f's_sub_u32 s75, s{S_WAVE}, 4')
    k(f's_lshl_b32 s{S_T0}, s76, 2')
    k(f's_add_u32 s{S_T0}, s{S_T0}, s75')
    k(f's_mul_i32 s{S_G}, s{S_T0}, {32*2304}')
    k(f's_mul_i32 s{S_T1}, s77, 192')
    k(f's_add_u32 s{S_G}, s{S_G}, s{S_T1}')
    k('s_mul_i32 s75, s75, 6144')
    for ap in range(3):
        for b in range(2):
            k(f's_add_u32 m0, s75, {L_XR + (ap*2+b)*1024}')
            k(f's_add_u32 s{S_T0}, s{S_G}, {b*16*2304 + ap*64}')
            k(f'buffer_load_dwordx4 v1, {sr(SRD_Y,4)}, s{S_T0} offen lds')
    k('s_setpc_b64 s[78:79]')
    k.label('side_g')
    k('s_and_b32 s85, s0, 15')
    k(f's_cmp_lg_u32 s85, {ROLES.index("PV")}')
    k('s_cbranch_scc1 side_ret')
    k(f's_cmp_lg_u32 s{S_WAVE}, 4')
    k('s_cbranch_scc1 side_ret')
    k(f's_mov_b32 s85, {FL["GATE"]}')
    poll(k, 85, 18)
    ws_srd(k, SRD_Y, 'GATE')
    k(f'v_lshlrev_b32 v1, 4, v{VL}')
    k('s_lshr_b32 s76, s76, 3')
    k(f's_mul_i32 s{S_T0}, s76, 4608')
    k(f's_mul_i32 s{S_T1}, s77, 384')
    k(f's_add_u32 s{S_T0}, s{S_T0}, s{S_T1}')
    k(f's_mov_b32 m0, {L_GT}')
    k('s_mov_b64 exec, 0xffffff')
    k(f'buffer_load_dwordx4 v1, {sr(SRD_Y,4)}, s{S_T0} offen sc1 lds')
    k('s_mov_b64 exec, -1')
    k.label('side_ret')
    k('s_setpc_b64 s[78:79]')
def side_tail(k):
    k('s_call_b64 s[78:79], side_x')
    return 6
def side_hook(k):
    if not C.STAIL: k('s_call_b64 s[78:79], side_x')
    k('s_call_b64 s[78:79], side_g')
    if C.SEARLY: k('s_waitcnt vmcnt(0)')

def phase_C(k):
    if C.SIDE: side_sub(k)
    k.label('role_S')
    k('s_mov_b32 s70, s67')
    k('s_lshr_b32 s66, s70, 3')
    k('s_and_b32 s67, s70, 7')
    k('s_lshl_b32 s69, s66, 3')
    k('s_add_u32 s71, s69, s68')
    k(f's_lshl_b32 s{S_ABASE}, s71, 13')
    k(f's_lshl_b32 s{S_BBASE}, s70, 13')
    k('s_lshl_b32 s75, s68, 2')
    k('s_lshl_b32 s76, s67, 3')
    k('s_lshl_b32 s77, s66, 21')
    k('s_lshl_b32 s72, s70, 3')
    k('s_add_u32 s72, s72, s68')
    k(f's_add_u32 s72, s72, {FL["P"]}')
    args_ready(k)
    ws_srd(k, SRD_A, 'H'); ws_srd(k, SRD_B, 'T'); ws_srd(k, SRD_O, 'P'); ws_srd(k, SRD_X, 'ST')
    g1 = Gemm('ss', Opnd('frag', 8, SRD_A, S_ABASE, rbtot=128, aux=LD()), Opnd('frag', 8, SRD_B, S_BBASE, rbtot=128, aux=LD()), 1, 4, 18, C.NS['ss'], NSA=C.NSA.get('ss', 0), rot=R('ss'), win=Wn('ss'))
    def epi_s(k, g):
        k(f's_mov_b32 s78, {f32(CSC)}')
        k(f's_mov_b32 s79, 0x3f803f80')
        VM = (g.VX + 3) // 4 * 4
        k(f's_lshl_b32 s{S_T0}, s75, 6')
        k(f's_add_u32 s{S_T0}, s{S_T0}, s76')
        k(f's_lshl_b32 s{S_T1}, s{S_WB}, 1')
        k(f's_add_u32 s{S_T0}, s{S_T0}, s{S_T1}')
        k(f's_lshl_b32 s{S_OBASE}, s{S_T0}, 10')
        k(f's_add_u32 s{S_OBASE}, s{S_OBASE}, s77')
        k(f'v_lshlrev_b32 v1, 4, v{VL}')
        for j in range(4): k(f'v_mov_b32 v{VM+8+j}, s79')
        k(f'v_mov_b32 v{VM+20}, s78\nv_mov_b32 v{VM+21}, s78')
        t = g.VF
        for b in range(2):
            regs = [acc(g, a, b) + r for a in range(8) for r in range(4)]
            m = VM + b; m2 = VM + 4 + b
            k(f'v_max3_f32 v{m}, v{regs[0]}, v{regs[1]}, v{regs[2]}')
            k(f'v_max3_f32 v{m2}, v{regs[3]}, v{regs[4]}, v{regs[5]}')
            i = 6; tog = 0
            while i < 32:
                d = m if tog == 0 else m2
                k(f'v_max3_f32 v{d}, v{d}, v{regs[i]}, v{regs[i+1]}')
                i += 2; tog ^= 1
            k(f'v_max_f32 v{m}, v{m}, v{m2}')
        for sw in ('v_permlane32_swap_b32', 'v_permlane16_swap_b32'):
            k(f'v_mov_b32 v{VM+4}, v{VM}\nv_mov_b32 v{VM+5}, v{VM+1}')
            k('s_nop 0')
            k(f'{sw} v{VM}, v{VM+4}')
            k(f'{sw} v{VM+1}, v{VM+5}')
            k('s_nop 0')
            k(f'v_max_f32 v{VM}, v{VM}, v{VM+4}\nv_max_f32 v{VM+1}, v{VM+1}, v{VM+5}')
        k(f'v_mul_f32 v{VM}, s78, v{VM}\nv_mul_f32 v{VM+1}, s78, v{VM+1}')
        VON, VL0, VC2 = VM + 8, VM + 12, VM + 20
        pend = []
        for ap in range(4):
            for b in range(2):
                regs = [acc(g, 2*ap+h, b) + r for h in range(2) for r in range(4)]
                if C.SPK:
                    sel = 'op_sel:[0,0,0] op_sel_hi:[1,1,0]' if b == 0 else 'op_sel:[0,0,1] op_sel_hi:[1,1,1]'
                    for r in regs[::2]: k(f'v_pk_fma_f32 {vr(r,2)}, {vr(r,2)}, {vr(VC2,2)}, {vr(VM,2)} {sel} neg_lo:[0,0,1] neg_hi:[0,0,1]')
                else:
                    for r in regs: k(f'v_fma_f32 v{r}, v{r}, s78, -v{VM+b}')
                for x in pend: k(x)
                for r in regs: k(f'v_exp_f32 v{r}, v{r}')
                k(f's_add_u32 s{S_T0}, s{S_OBASE}, {ap*64*1024}')
                for j in range(4): k(f'v_cvt_pk_bf16_f32 v{t+j}, v{regs[2*j]}, v{regs[2*j+1]}')
                k(f'buffer_store_dwordx4 {vr(t,4)}, v1, {sr(SRD_O,4)}, s{S_T0} offen offset:{b*1024}{ST}')
                pend = [f'v_mfma_f32_16x16x32_bf16 {vr(VL0+4*b,4)}, {vr(VON,4)}, {vr(t,4)}, ' + ('0' if ap == 0 else vr(VL0+4*b,4))]
                t += 4
        k('s_nop 0')
        for x in pend: k(x)
        k(f's_lshl_b32 s{S_T0}, s70, 2')
        k(f's_add_u32 s{S_T0}, s{S_T0}, s{S_WB}')
        k(f's_lshl_b32 s{S_T0}, s{S_T0}, 3')
        k(f's_add_u32 s{S_T0}, s{S_T0}, s68')
        k(f's_lshl_b32 s{S_T0}, s{S_T0}, 8')
        k(f'v_mov_b32 v{VM+2}, v{VL0}')
        k('s_nop 1')
        k(f'v_mov_b32 v{VM+3}, v{VL0+4}')
        k('s_mov_b64 exec, 0xffff')
        k(f'buffer_store_dwordx4 {vr(VM,4)}, v1, {sr(SRD_X,4)}, s{S_T0} offen{ST}')
        k('s_mov_b64 exec, -1')
        g.vmax = VM + 22
    gemm_role(k, g1, epi_s, s_flag=72, depA=dep((71, 4, FL['H'], 4)), depB=dep((70, 9, FL['T'], 9)), end_hookA=side_hook, end_hookB=side_hook, tail=(side_tail if C.STAIL else None))
    k.label('role_V')
    k('s_mov_b32 s66, s67')
    k('s_mov_b32 s67, s68')
    k(f's_lshl_b32 s{S_ABASE}, s66, 13')
    k(f's_mul_i32 s{S_BBASE}, s67, {9*1024}')
    k('s_lshl_b32 s75, s66, 2')
    k('s_mul_i32 s76, s67, 9')
    k('s_lshr_b32 s72, s66, 3')
    k('s_lshl_b32 s72, s72, 3')
    k('s_add_u32 s72, s72, s67')
    k('s_lshl_b32 s72, s72, 3')
    k('s_and_b32 s73, s66, 7')
    k('s_add_u32 s72, s72, s73')
    k(f's_add_u32 s72, s72, {FL["V"]}')
    args_ready(k)
    ws_srd(k, SRD_A, 'H'); ws_srd(k, SRD_B, 'WVO'); ws_srd(k, SRD_O, 'VT')
    g2 = Gemm('vv', Opnd('frag', 8, SRD_A, S_ABASE, rbtot=128, aux=LD()), Opnd('frag', 9, SRD_B, S_BBASE, rbtot=72, aux=LD()), 4, 1, 18, C.NS['vv'], NSA=C.NSA.get('vv', 0), rot=R('vv'), win=Wn('ss'))
    def v_tail(k):
        k('s_lshr_b32 s79, s66, 3')
        k('s_lshl_b32 s79, s79, 1')
        k('s_sub_u32 s79, s66, s79')
        k('s_lshl_b32 s79, s79, 3')
        k('s_add_u32 s79, s79, s67')
        k('s_lshl_b32 s79, s79, 2')
        k(f's_add_u32 s79, s79, s{S_WAVE}')
        k('s_sub_u32 s79, s79, 4')
        k('s_cmp_ge_u32 s73, 6')
        k('s_cselect_b32 s79, 400, s79')
        prefetch_flat(k, P_WQC, D*D*2, 79, 384, 14, vtmp=8)
        prefetch_flat(k, P_WOC, D*D*2, 79, 384, 14, vtmp=8)
        return 2
    gemm_role(k, g2, epi_frag16(72, 75, 76), s_flag=72, depA=dep((66, 4, FL['H'], 4)), depB=dep((67, 9, FL['WVO'], 18)), tail=(side_tail if C.STAIL else None), end_hookA=side_hook, end_hookB=side_hook)

E_VAT, E_VX, E_VZ = 16, 196, 232
def e_at_loads(k):
    ws_srd(k, SRD_B, 'AT')
    k(f's_sub_u32 s71, s{S_WAVE}, 4')
    k(f's_mul_i32 s72, s71, {9*10}')
    k('s_mul_i32 s73, s66, 5')
    k('s_add_u32 s72, s72, s73')
    k('s_lshl_b32 s72, s72, 10')
    for i in range(9):
        k('s_add_u32 s73, s72, 4096')
        for mb in range(5):
            k(f'buffer_load_dwordx4 {vr(E_VAT+20*i+4*mb,4)}, v1, {sr(SRD_B,4)}, s{72 if mb < 4 else 73} offen offset:{(mb%4)*1024}{LD()}')
        if i < 8: k('s_add_u32 s72, s72, 10240')

def e_preload_hook(k):
    if not C.PERSIST: return
    k(f'v_lshlrev_b32 v8, 7, v{VL}')
    k('s_lshr_b32 s66, s64, 2')
    k(f's_mul_i32 s85, s66, {C.NAT}')
    k(f's_add_u32 s85, s85, {FL["AT"]}')
    k('s_lshl_b32 s85, s85, 7')
    ld = k.newlabel('echk')
    k(f's_mov_b64 exec, {hex((1 << C.NAT) - 1)}')
    for i in range(C.ECHK):
        if i: k(f's_sleep {C.ESLP}')
        k(f'buffer_load_dword v9, v8, {sr(SRD_F,4)}, s85 offen sc1')
        k('s_waitcnt vmcnt(0)')
        k('v_cmp_ne_u32 vcc, 1, v9')
        k('s_nop 0')
        k('s_cmp_eq_u64 vcc, 0')
        k(f's_cbranch_scc1 {ld}')
    k.label(ld)
    k('s_mov_b64 exec, -1')
    k('s_cselect_b32 s81, 3, 0')

def phase_D(k):
    k.label('role_PV')
    k('s_lshr_b32 s66, s67, 3')
    k('s_and_b32 s67, s67, 7')
    k(f's_mul_i32 s{S_ABASE}, s66, {32*72*1024}')
    k('s_mul_i32 s69, s68, 6144')
    k(f's_add_u32 s{S_ABASE}, s{S_ABASE}, s69')
    k(f's_lshl_b32 s{S_BBASE}, s66, 21')
    k('s_lshl_b32 s69, s67, 13')
    k(f's_add_u32 s{S_BBASE}, s{S_BBASE}, s69')
    k('s_lshl_b32 s70, s66, 3')
    k('s_add_u32 s70, s70, s67')
    k('s_mul_i32 s75, s68, 3')
    k('s_lshl_b32 s76, s70, 3')
    k('s_mul_i32 s72, s70, 12')
    k('s_add_u32 s72, s72, s68')
    k(f's_add_u32 s72, s72, {FL["X1"]}')
    k('s_lshl_b32 s71, s68, 1')
    div_const(k, 71, 71, 3, 24)
    k('s_min_u32 s71, s71, 6')
    k('s_lshl_b32 s73, s66, 3')
    k('s_add_u32 s71, s71, s73')
    args_ready(k)
    ws_srd(k, SRD_A, 'VT'); ws_srd(k, SRD_B, 'P'); ws_srd(k, SRD_O, 'X1')
    g1 = Gemm('pv', Opnd('frag', 6, SRD_A, S_ABASE, rbtot=72, aux=LD()), Opnd('frag', 8, SRD_B, S_BBASE, rbtot=64, aux=LD()), 1, 4, 16, C.NS['pv'], lds0=8192, NSA=C.NSA.get('pv', 0), rot=R('pv'), win=Wn('pv'))
    def depB_pv(k):
        dep((70, 8, FL['P'], 8))(k)
        ws_srd(k, SRD_X, 'ST')
        k(f's_lshl_b32 s{S_T1}, s{S_W2}, 12')
        k(f's_mov_b32 m0, s{S_T1}')
        k(f's_lshl_b32 s{S_T0}, s70, 13')
        k(f's_add_u32 s{S_T0}, s{S_T0}, s{S_T1}')
        for i in range(4): k(f'buffer_load_dwordx4 v1, {sr(SRD_X,4)}, s{S_T0} offen offset:{i*1024}{LD()} lds')
    def pv_mids():
        if not C.NBV: return [(st, dep((71, 8, FL['V'], 16, m))) for st, m in C.VM[1:]]
        st, m = C.VM[1]
        def pre(k):
            k(f'v_lshlrev_b32 v8, 7, v{VL}')
            k('s_lshl_b32 s85, s71, 3')
            k(f's_add_u32 s85, s85, {FL["V"]}')
            k(f's_lshl_b32 s{S_T0}, s85, 7')
            k(f's_mov_b64 exec, {hex(m)}')
            k(f'buffer_load_dword v9, v8, {sr(SRD_F,4)}, s{S_T0} offen sc1')
            k('s_mov_b64 exec, -1')
        def chk(k):
            l = k.newlabel('nbv')
            k(f's_mov_b64 exec, {hex(m)}')
            k(f's_waitcnt vmcnt({2*6})')
            k('v_cmp_ne_u32 vcc, 1, v9')
            k('s_mov_b64 exec, -1')
            k('s_cmp_eq_u64 vcc, 0')
            k(f's_cbranch_scc1 {l}')
            poll(k, 85, 16, mask=m)
            k.label(l)
        return [(st - 2, pre), (st, chk)]
    def pv_consumer(k, g):
        ma, nb = 6, 2
        VF, VX = g.VF, g.VX
        VGT, VXR, VXF, VS, VR, VMX, VRF, VLS, VSA, VE, VBP = VX, VX+24, VX+48, VX+72, VX+76, VX+78, VX+80, VX+82, VX+84, VX+85, VX+87
        def side_loads():
            ws_srd(k, SRD_Y, 'GATE')
            k(f'v_lshrrev_b32 v1, 4, v{VL}\nv_lshlrev_b32 v1, 5, v1')
            k(f's_mul_i32 s{S_T0}, s66, 4608')
            k(f's_mul_i32 s{S_T1}, s68, 384')
            k(f's_add_u32 s{S_T0}, s{S_T0}, s{S_T1}')
            for ap in range(3):
                for h in range(2):
                    k(f'buffer_load_dwordx4 {vr(VGT+8*ap+4*h,4)}, v1, {sr(SRD_Y,4)}, s{S_T0} offen offset:{ap*128+16*h}{LD()}')
        def x_loads():
            make_srd(k, SRD_Y, P_X, NR*D*2)
            quad_voff(k, 1, 2304)
            k('s_lshl_b32 s79, s70, 2')
            k(f's_add_u32 s79, s79, s{S_WB}')
            k(f's_mul_i32 s{S_T0}, s79, {32*2304}')
            k(f's_mul_i32 s{S_T1}, s68, 192')
            k(f's_add_u32 s{S_T0}, s{S_T0}, s{S_T1}')
            k(f's_add_u32 s{S_T1}, s{S_T0}, {16*2304}')
            for ap in range(3):
                for b in range(2):
                    k(f'buffer_load_dwordx4 {vr(VXR+(ap*2+b)*4,4)}, v1, {sr(SRD_Y,4)}, s{S_T0 if b == 0 else S_T1} offen offset:{ap*64}')
        if not C.XLATE and not C.SIDE: x_loads()
        if not C.PERSIST: side_loads()
        k(f'v_and_b32 v{VSA}, 15, v{VL}\nv_lshlrev_b32 v{VSA}, 4, v{VSA}')
        k(f's_lshl_b32 s{S_T0}, s{S_WB}, 11')
        k(f'v_add_u32 v{VSA}, s{S_T0}, v{VSA}')
        k('s_mov_b32 s77, 0')
        if g.rot is not None: k('s_lshl_b32 s73, s74, 7')
        else: k('s_mov_b32 s73, 0')
        WM = ((g.win or 16)//2)*256 - 1
        aA = cons_addr_setup(k, g, g.A, ma, S_WA, VL, VA, VT)
        aB = cons_addr_setup(k, g, g.B, nb, S_WB, VL, VA + len(aA), VT)
        addrs = aA + aB
        for i in range(ma*nb*4): k(f'v_mov_b32 v{VACC+i}, 0')
        if C.SIDE:
            k(f'v_and_b32 v{VBP}, 15, v{VL}\nv_lshlrev_b32 v{VBP}, 6, v{VBP}\nv_lshrrev_b32 v{VT}, 4, v{VL}\nv_lshl_add_u32 v{VBP}, v{VT}, 4, v{VBP}')
            k(f's_mul_i32 s{S_T0}, s{S_WB}, 6144')
            k(f's_add_u32 s{S_T0}, s{S_T0}, {L_XR}')
            k(f'v_add_u32 v{VBP}, s{S_T0}, v{VBP}')
            k(f'v_lshlrev_b32 v{VXR}, 5, v{VT}')
            k(f'v_add_u32 v{VXR}, {L_GT}, v{VXR}')
            if C.SEARLY:
                for j in range(6): k(f'ds_read_b128 {vr(VXF+4*j,4)}, v{VBP} offset:{j*1024}')
                for ap in range(3):
                    for h in range(2): k(f'ds_read_b128 {vr(VGT+8*ap+4*h,4)}, v{VXR} offset:{ap*128+16*h}')
                k('s_waitcnt lgkmcnt(0)')
        else: q2f_addr(k, VBP)
        k(f'v_mov_b32 v{VMX}, {f32(-3.0e38)}\nv_mov_b32 v{VMX+1}, {f32(-3.0e38)}')
        k(f'v_mov_b32 v{VRF}, {f32(-3.0e38)}\nv_mov_b32 v{VRF+1}, {f32(-3.0e38)}')
        k(f'v_mov_b32 v{VLS}, 0\nv_mov_b32 v{VLS+1}, 0')
        k(f's_mov_b32 s78, {f32(-64.0)}')
        k(f'v_mov_b32 v{VE}, {L_CNT}')
        k(f'ds_write_b32 v{VE}, v{VLS}')
        k('s_waitcnt lgkmcnt(0)')
        setsz = (ma + nb) * 4
        def fa(st, a): return VF + st*setsz + 4*a
        def fb(st, b): return VF + st*setsz + 4*ma + 4*b
        def reads(s, st):
            return cons_reads(g, g.B, nb, aB, s, fb(st, 0)) + cons_reads(g, g.A, ma, aA, s, fa(st, 0))
        def mf(st):
            return [f'v_mfma_f32_16x16x32_bf16 {vr(acc(g,a,b),4)}, {vr(fa(st,a),4)}, {vr(fb(st,b),4)}, {vr(acc(g,a,b),4)}'
                    for a in range(ma) for b in range(nb)]
        def muls(i):
            a, b = divmod(i, nb)
            c = acc(g, a, b)
            if C.PKMUL == 2: return ['s_nop 0']
            if C.PKMUL:
                sel = 'op_sel:[0,0] op_sel_hi:[1,0]' if b == 0 else 'op_sel:[0,1] op_sel_hi:[1,1]'
                return [f'v_pk_mul_f32 {vr(c+r,2)}, {vr(c+r,2)}, {vr(VR,2)} {sel}' for r in (0, 2)]
            return [f'v_mul_f32 v{c+r}, v{VR+b}, v{c+r}' for r in range(4)]
        def upd():
            o = []
            for b in range(2): o.append(f'v_max_f32 v{VMX+b}, v{VMX+b}, v{VS+b}')
            for b in range(2): o.append(f'v_add_f32 v{VE+b}, s78, v{VMX+b}')
            for b in range(2): o.append(f'v_max_f32 v{VE+b}, v{VE+b}, v{VS+b}')
            for b in range(2): o.append(f'v_sub_f32 v{VR+b}, v{VRF+b}, v{VE+b}')
            for b in range(2): o.append(f'v_exp_f32 v{VR+b}, v{VR+b}')
            for b in range(2): o.append(f'v_mov_b32 v{VRF+b}, v{VE+b}')
            for b in range(2): o.append(f'v_fma_f32 v{VLS+b}, v{VLS+b}, v{VR+b}, v{VS+2+b}')
            return o
        srd_ = [f's_add_u32 s{S_T0}, s77, s73', f's_and_b32 s{S_T0}, s{S_T0}, {WM}', f's_andn2_b32 s{S_T1}, s77, {WM}', f's_add_u32 s{S_T0}, s{S_T0}, s{S_T1}', f'v_add_u32 v{VE}, s{S_T0}, v{VSA}', f'ds_read_b128 {vr(VS,4)}, v{VE}', 's_add_u32 s77, s77, 256']
        adv = cons_adv(g, aA, aB)
        cons_init(k, g)
        k(f's_mov_b32 s{S_CNT}, 8')
        k('s_barrier')
        stamp(k, 0); cstamp(k, 4)
        for x in srd_: k(x)
        for r in reads(0, 0): k(r)
        k('s_waitcnt lgkmcnt(8)')
        for x in upd(): k(x)
        k('s_waitcnt lgkmcnt(0)')
        lp = k.newlabel('pv_mm'); le = k.newlabel('pv_last')
        k.label(lp)
        M = mf(0); fill = reads(1, 1) + adv
        for x in muls(0): k(x)
        for i in range(12):
            if i + 1 < 12:
                for x in muls(i+1): k(x)
            else:
                k('s_nop 1')
            k(M[i])
            if fill: k(fill.pop(0))
        for f in fill: k(f)
        k('s_waitcnt lgkmcnt(0)')
        k('s_barrier')
        interleave(k, mf(1), reads(0, 0) + srd_ + [f's_sub_u32 s{S_CNT}, s{S_CNT}, 1'])
        k('s_waitcnt lgkmcnt(0)')
        interleave(k, mf(0), reads(1, 1) + adv)
        k('s_waitcnt lgkmcnt(0)')
        k(f's_cmp_eq_u32 s{S_CNT}, 0')
        k(f's_cbranch_scc1 {le}')
        k('s_barrier')
        interleave(k, mf(1), reads(0, 0) + upd(), per=2)
        if not C.SIDE:
            k(f's_cmp_eq_u32 s{S_CNT}, 4')
            k('s_cbranch_scc1 pv_g1')
            k(f's_cmp_eq_u32 s{S_CNT}, 2')
            k('s_cbranch_scc1 pv_g2')
            k.label('pv_gback')
        k('s_waitcnt lgkmcnt(0)')
        k(f's_branch {lp}')
        if not C.SIDE:
            k.label('pv_g1')
            k(f'v_lshlrev_b32 v1, 7, v{VL}')
            k(f's_mov_b32 s{S_T0}, {FL["GATE"]*128}')
            k('s_mov_b64 exec, 0x3ffff')
            k(f'buffer_load_dword v{VGT}, v1, {sr(SRD_F,4)}, s{S_T0} offen sc1')
            k('s_mov_b64 exec, -1')
            if C.XLATE: x_loads()
            k('s_branch pv_gback')
            k.label('pv_g2')
            k('s_mov_b64 exec, 0x3ffff')
            k('s_waitcnt vmcnt(0)')
            k(f'v_cmp_ne_u32 vcc, 1, v{VGT}')
            k('s_mov_b64 exec, -1')
            k('s_cmp_eq_u64 vcc, 0')
            k('s_cbranch_scc1 pv_g3')
            k(f's_mov_b32 s85, {FL["GATE"]}')
            poll(k, 85, 18, vt=VGT)
            k(f's_mov_b32 s{S_CNT}, 2')
            k.label('pv_g3')
            side_loads()
            k('s_branch pv_gback')
        k.label(le)
        k('s_waitcnt vmcnt(0)')
        bp = [f'ds_bpermute_b32 v{VXF+j}, v{VBP}, v{VXR+j}' for j in range(24)]
        if C.SIDE:
            bp = [f'ds_read_b128 {vr(VXF+4*j,4)}, v{VBP} offset:{j*1024}' for j in range(6)]
            bp += [f'ds_read_b128 {vr(VGT+8*ap+4*h,4)}, v{VXR} offset:{ap*128+16*h}' for ap in range(3) for h in range(2)]
        if C.SEARLY: bp = []
        interleave(k, mf(1), bp + [f'v_rcp_f32 v{VLS}, v{VLS}', f'v_rcp_f32 v{VLS+1}, v{VLS+1}'], per=2)
        g.VGT, g.VXF, g.VLS, g.VE = VGT, VXF, VLS, VE
        g.vmax = VBP + 1
    def epi_pv(k, g):
        k(f's_lshl_b32 s{S_T0}, s75, 7')
        k(f's_add_u32 s{S_T0}, s{S_T0}, s76')
        k(f's_lshl_b32 s{S_T1}, s{S_WB}, 1')
        k(f's_add_u32 s{S_T0}, s{S_T0}, s{S_T1}')
        k(f's_lshl_b32 s{S_OBASE}, s{S_T0}, 10')
        k(f'v_lshlrev_b32 v1, 4, v{VL}')
        k('s_waitcnt lgkmcnt(0)')
        if C.PVEPI:
            t = g.VF
            U = g.VF + 32
            for ap in range(3):
                for b in range(2):
                    xr = g.VXF + (ap*2+b)*4
                    regs = [acc(g, 2*ap+h, b) + r for h in range(2) for r in (0, 2)]
                    sel = 'op_sel:[0,0] op_sel_hi:[1,0]' if b == 0 else 'op_sel:[0,1] op_sel_hi:[1,1]'
                    for j in range(4):
                        k(f'v_lshlrev_b32 v{U+2*j}, 16, v{xr+j}')
                        k(f'v_and_b32 v{U+2*j+1}, 0xffff0000, v{xr+j}')
                        k(f'v_pk_mul_f32 {vr(regs[j],2)}, {vr(regs[j],2)}, {vr(g.VLS,2)} {sel}')
                    for j in range(4):
                        k(f'v_pk_fma_f32 {vr(regs[j],2)}, {vr(regs[j],2)}, {vr(g.VGT+8*ap+2*j,2)}, {vr(U+2*j,2)}')
                    for j in range(4): k(f'v_cvt_pk_bf16_f32 v{t+j}, v{regs[j]}, v{regs[j]+1}')
                    k(f's_add_u32 s{S_T0}, s{S_OBASE}, {ap*128*1024}')
                    k(f'buffer_store_dwordx4 {vr(t,4)}, v1, {sr(SRD_O,4)}, s{S_T0} offen offset:{b*1024}{ST}')
                    t += 4
            return
        T = g.VE
        t = g.VF
        for ap in range(3):
            for b in range(2):
                xr = g.VXF + (ap*2+b)*4
                regs = [acc(g, 2*ap+h, b) + r for h in range(2) for r in range(4)]
                for e in range(8):
                    k(f'v_mul_f32 v{regs[e]}, v{g.VLS+b}, v{regs[e]}')
                    if e % 2 == 0: k(f'v_lshlrev_b32 v{T}, 16, v{xr+e//2}')
                    else: k(f'v_and_b32 v{T}, 0xffff0000, v{xr+e//2}')
                    k(f'v_fma_f32 v{regs[e]}, v{regs[e]}, v{g.VGT+8*ap+e}, v{T}')
                for j in range(4): k(f'v_cvt_pk_bf16_f32 v{t+j}, v{regs[2*j]}, v{regs[2*j+1]}')
                k(f's_add_u32 s{S_T0}, s{S_OBASE}, {ap*128*1024}')
                k(f'buffer_store_dwordx4 {vr(t,4)}, v1, {sr(SRD_O,4)}, s{S_T0} offen offset:{b*1024}{ST}')
                t += 4
    gemm_role(k, g1, epi_pv, s_flag=72, custom_consumer=pv_consumer, depA=dep((71, 8, FL['V'], 16, C.VM[0][1])), midA=pv_mids(), depB=depB_pv, end_hookA=(e_preload_hook if C.ECHK else None), end_hookB=(e_preload_hook if C.ECHK else None), lds_sig=C.EPRE)
    k.label('role_AT')
    NAT = C.NAT
    k(f's_mul_i32 s{S_ABASE}, s68, {(1152//NAT)*2304}')
    k(f's_mul_i32 s{S_BBASE}, s67, 5120')
    k(f's_mul_i32 s75, s68, {36//NAT}')
    k('s_mul_i32 s76, s67, 5')
    k(f's_mul_i32 s72, s67, {NAT}')
    k('s_add_u32 s72, s72, s68')
    k(f's_add_u32 s72, s72, {FL["AT"]}')
    k('s_mul_i32 s74, s67, 9')
    make_srd(k, SRD_A, P_WQC, D*D*2); ws_srd(k, SRD_B, 'KVC'); ws_srd(k, SRD_O, 'AT')
    if NAT == 18:
        g2 = Gemm('at', Opnd('row', 4, SRD_A, S_ABASE, stride=2304, perm=True), Opnd('frag', 5, SRD_B, S_BBASE, rbtot=10, aux=LD()), 2, 2, 18, C.NS['at'], rot=R('at'), nb_ov=(3, 2))
    else:
        g2 = Gemm('at', Opnd('row', 8, SRD_A, S_ABASE, stride=2304, perm=True), Opnd('frag', 5, SRD_B, S_BBASE, rbtot=10, aux=LD()), 4, 1, 18, C.NS['at'], rot=R('at'))
    gemm_role(k, g2, epi_frag16(10, 75, 76), s_flag=72, depB=dep((67, 12, FL['KVC'], 6)))
    k.label('role_BT')
    k(f's_mul_i32 s{S_ABASE}, s67, 5120')
    k(f's_add_u32 s{S_ABASE}, s{S_ABASE}, {36*10*1024}')
    k(f's_lshl_b32 s{S_BBASE}, s68, 8')
    k('s_mul_i32 s75, s67, 3')
    k('s_lshl_b32 s76, s68, 3')
    k('s_mul_i32 s72, s67, 9')
    k('s_add_u32 s72, s72, s68')
    k(f's_add_u32 s72, s72, {FL["BT"]}')
    k('s_mul_i32 s74, s67, 9')
    args_ready(k)
    ws_srd(k, SRD_A, 'KVC'); make_srd(k, SRD_B, P_WOC, D*D*2); ws_srd(k, SRD_O, 'BT')
    g3 = Gemm('bt', Opnd('frag', 5, SRD_A, S_ABASE, rbtot=10, aux=LD()), Opnd('col', 8, SRD_B, S_BBASE, stride=2304), 1, 4, 18, C.NS['bt'], rot=R('bt'))
    def epi_bt(k, g):
        epi_frag16(72, 75, 76, rowperm=True, npair_max=2)(k, g)
        k(f'v_bfe_u32 v{VT}, v{VL}, 2, 1\nv_lshlrev_b32 v1, 3, v{VT}\nv_bfe_u32 v{VT}, v{VL}, 3, 1\nv_lshl_add_u32 v1, v{VT}, 6, v1')
        k(f'v_and_b32 v{VT}, 0x33, v{VL}\nv_lshl_add_u32 v1, v{VT}, 4, v1')
        k(f's_mul_i32 s{S_T0}, s67, 216')
        k(f's_lshl_b32 s{S_T1}, s68, 2')
        k(f's_add_u32 s{S_T0}, s{S_T0}, s{S_T1}')
        k(f's_add_u32 s{S_T0}, s{S_T0}, s{S_WB}')
        k(f's_add_u32 s{S_T0}, s{S_T0}, 144')
        k(f's_lshl_b32 s{S_T0}, s{S_T0}, 10')
        t = g.VF + 32
        for b in range(2):
            c0 = acc(g, 4, b)
            k(f'v_cvt_pk_bf16_f32 v{t}, v{c0}, v{c0+1}')
            k(f'v_cvt_pk_bf16_f32 v{t+1}, v{c0+2}, v{c0+3}')
            k(f'buffer_store_dwordx2 {vr(t,2)}, v1, {sr(SRD_O,4)}, s{S_T0} offen offset:{b*128}{ST}')
            t += 2
    gemm_role(k, g3, epi_bt, s_flag=72, depA=dep((67, 12, FL['KVC'] + 6, 6)))

def phase_E(k):
    k.label('role_E')
    L_CS, L_Z, L_RS = 0, 2048, 26624
    VAT, VX_, VZ = E_VAT, E_VX, E_VZ
    k('s_lshr_b32 s66, s64, 2')
    k(f'v_lshlrev_b32 v1, 4, v{VL}')
    k('s_and_b32 s67, s65, 1')
    k('s_lshl_b32 s68, s64, 4')
    k('s_lshr_b32 s69, s65, 1')
    k('s_add_u32 s68, s68, s69')
    k('s_lshr_b32 s70, s68, 3')
    k(f's_cmp_lt_u32 s{S_WAVE}, 4')
    k('s_cbranch_scc1 pe_l')
    VQQ = 252
    k('s_cmp_eq_u32 s81, 3')
    k('s_cbranch_scc1 pe_at')
    dep((66, C.NAT, FL['AT'], C.NAT))(k)
    k.label('pe_at')
    ws_srd(k, SRD_B, 'AT')
    k(f's_sub_u32 s71, s{S_WAVE}, 4')
    k(f's_mul_i32 s72, s71, {9*10}')
    k('s_mul_i32 s73, s66, 5')
    k('s_add_u32 s72, s72, s73')
    k('s_lshl_b32 s72, s72, 10')
    XF = C.XF
    LAG = C.LAG
    def cs_mm(i):
        for mb in range(5):
            c = '0' if i == 0 else vr(VZ+4*mb, 4)
            k(f'v_mfma_f32_16x16x32_bf16 {vr(VZ+4*mb,4)}, {vr(VAT+20*i+4*mb,4)}, v[12:15], {c}')
        k('s_mov_b32 exec_lo, 0x80008000\ns_mov_b32 exec_hi, 0x80008000')
        for j in range(4): k(f'v_mov_b32 v{VAT+20*i+16+j}, s77')
        k('s_mov_b64 exec, -1')
    for i in range(9):
        k('s_add_u32 s73, s72, 4096')
        for mb in range(5):
            k(f'buffer_load_dwordx4 {vr(VAT+20*i+4*mb,4)}, v1, {sr(SRD_B,4)}, s{72 if mb < 4 else 73} offen offset:{(mb%4)*1024}{LD()}')
        if i < 8: k('s_add_u32 s72, s72, 10240')
        if i == 0:
            ws_srd(k, SRD_A, 'X1')
            k(f's_mul_i32 s74, s71, {9*128}')
            k('s_add_u32 s74, s74, s68')
            k('s_lshl_b32 s74, s74, 10')
            k('s_mov_b32 s77, 0x3f803f80')
            for j in range(4): k(f'v_mov_b32 v{12+j}, s77')
            k(f's_mul_i32 s{S_T1}, s71, 6144')
            k(f'v_add_u32 v6, s{S_T1}, v1')
            k(f'v_lshlrev_b32 v8, 7, v{VL}')
            k('s_mul_i32 s85, s70, 12')
            k(f's_add_u32 s85, s85, {FL["X1"]}')
            k('s_lshl_b32 s76, s85, 7')
            k(f's_mul_i32 s{S_T0}, s71, 320')
            k(f'v_add_u32 v10, s{S_T0}, v{VL}')
            k('s_and_b32 s75, s71, 1')
            k('s_mul_i32 s75, s75, 9216')
            k('v_add_u32 v11, s75, v1')
        if i == XF:
            k('s_mov_b64 exec, 0xfff')
            k(f'buffer_load_dword v9, v8, {sr(SRD_F,4)}, s76 offen sc1')
            k('s_mov_b64 exec, -1')
        if i >= LAG:
            k(f's_waitcnt vmcnt({5*LAG + (1 if i - LAG <= XF <= i else 0)})')
            cs_mm(i - LAG)
    def load_x():
        for i in range(9):
            k(f'buffer_load_dwordx4 {vr(VX_+4*i,4)}, v1, {sr(SRD_A,4)}, s74 offen{LD()}')
            if i < 8: k(f's_add_u32 s74, s74, {128*1024}')
    k('s_mov_b64 exec, 0xfff')
    k(f's_waitcnt vmcnt({5*(8-XF)})')
    k('v_cmp_ne_u32 vcc, 1, v9')
    k('s_mov_b64 exec, -1')
    k('s_cmp_eq_u64 vcc, 0')
    k('s_cselect_b32 s81, 1, 0')
    k('s_cbranch_scc0 pe_x_late0')
    k.label('pe_x_go')
    stamp(k, 1)
    load_x()
    k('s_cmp_eq_u32 s81, 0')
    k('s_cbranch_scc1 pe_x_done')
    k('s_barrier')
    k('s_waitcnt vmcnt(9)')
    k('s_branch pe_x_late')
    k.label('pe_x_late0')
    k('s_barrier')
    k('s_waitcnt vmcnt(0)')
    k.label('pe_x_late')
    for i in range(9 - LAG, 9): cs_mm(i)
    k('s_mov_b32 exec_lo, 0x00010001\ns_mov_b32 exec_hi, 0x00010001')
    for mb in range(5): k(f'ds_write_b128 v10, {vr(VZ+4*mb,4)} offset:{L_CS + mb*64}')
    k('s_mov_b64 exec, -1')
    stamp(k, 0)
    k('s_waitcnt lgkmcnt(0)')
    k('s_barrier')
    k('s_cmp_eq_u32 s81, 1')
    k('s_cbranch_scc1 pe_x_done')
    poll(k, 85, 12, vt=2)
    k('s_branch pe_x_go')
    k.label('pe_x_done')
    if not C.RSG:
        k('s_lshr_b32 s75, s71, 1')
        k('s_cmp_lg_u32 s75, s67')
        k(f's_cselect_b32 s75, {LDS_MAX}, 0')
        k('v_add_u32 v11, s75, v11')
    for i in range(9):
        k(f's_waitcnt vmcnt({8-i})')
        for mb in range(5):
            c = '0' if i == 0 else vr(VZ+4*mb, 4)
            k(f'v_mfma_f32_16x16x32_bf16 {vr(VZ+4*mb,4)}, {vr(VAT+20*i+4*mb,4)}, {vr(VX_+4*i,4)}, {c}')
            if mb == 0 and not C.RSG: k(f'ds_write_b128 v11, {vr(VX_+4*i,4)} offset:{L_RS + i*1024}')
        c = '0' if i == 0 else vr(VQQ, 4)
        k(f'v_mfma_f32_16x16x32_bf16 {vr(VQQ,4)}, {vr(VX_+4*i,4)}, {vr(VX_+4*i,4)}, {c}')
    k('s_nop 2')
    for mb in range(5): k(f'ds_write_b128 v6, {vr(VZ+4*mb,4)} offset:{L_Z + mb*1024}')
    k('s_nop 0')
    k(f'ds_write_b128 v6, {vr(VQQ,4)} offset:{L_Z + 5*1024}')
    stamp(k, 2)
    k('s_waitcnt lgkmcnt(0)')
    k('s_barrier')
    phase_exit(k)
    k.label('pe_l')
    NPW = 5
    VB, VZ2, VCS, VP, VRS = 16, 136, 196, 216, 116
    VZ3 = 216
    VO, VQ = 156, 16
    ws_srd(k, SRD_X, 'BT'); make_srd(k, SRD_O, P_OUT, NR*D*2)
    k(f's_mul_i32 s75, s{S_WAVE}, 5')
    k('s_min_u32 s75, s75, 14')
    k('s_mul_i32 s73, s67, 18')
    k('s_add_u32 s73, s73, s75')
    k('s_mul_i32 s76, s66, 216')
    k('s_lshl_b32 s77, s73, 1')
    k('s_add_u32 s76, s76, s77')
    k('s_lshl_b32 s76, s76, 10')
    k('s_mul_i32 s72, s66, 216')
    k('s_add_u32 s72, s72, s73')
    k('s_add_u32 s72, s72, 144')
    k('s_lshl_b32 s72, s72, 10')
    k(f'v_lshlrev_b32 v252, 7, v{VL}')
    k('s_mul_i32 s85, s66, 9')
    k(f's_add_u32 s85, s85, {FL["BT"]}')
    k('s_lshl_b32 s77, s85, 7')
    k('s_mov_b64 exec, 0x1ff')
    k(f'buffer_load_dword v253, v252, {sr(SRD_F,4)}, s77 offen sc1')
    k('s_mov_b64 exec, -1')
    f2q_addr(k, 5)
    quad_voff(k, 6, 2304)
    k(f'v_and_b32 v14, 48, v{VL}')
    k(f's_lshl_b32 s{S_T0}, s75, 10')
    k(f'v_add_u32 v15, s{S_T0}, v1')
    ws_srd(k, SRD_A, 'X1')
    k('s_lshl_b32 s74, s73, 7')
    k('s_add_u32 s74, s74, s68')
    k('s_lshl_b32 s74, s74, 10')
    k(f'v_and_b32 v7, 15, v{VL}\nv_lshlrev_b32 v8, 4, v7\nv_lshrrev_b32 v9, 2, v7\nv_lshl_add_u32 v9, v9, 8, v8\nv_and_b32 v7, 3, v7\nv_lshl_add_u32 v9, v7, 2, v9')
    k(f's_mul_i32 s{S_T2}, s68, {16*2304}')
    k(f's_lshl_b32 s{S_T1}, s73, 6')
    k(f's_add_u32 s{S_T2}, s{S_T2}, s{S_T1}')
    k('v_mov_b32 v4, 0xff800000')
    k('s_mov_b64 exec, 0x1ff')
    k('s_waitcnt vmcnt(0)')
    k('v_cmp_ne_u32 vcc, 1, v253')
    k('s_mov_b64 exec, -1')
    k('s_barrier')
    k('s_cmp_eq_u64 vcc, 0')
    k('s_cbranch_scc1 pe_bt_go')
    poll(k, 85, 9)
    k.label('pe_bt_go')
    stamp(k, 0)
    zr = lambda w, mb: (VZ2 + 20*w + 4*mb) if w < 3 else (VZ3 + 4*mb)
    def sum4(base, dst, pre=(), va=1, ws=6144, ms=1024, mid=()):
        for mb in range(5):
            for w in range(4):
                k(f'ds_read_b128 {vr(zr(w,mb),4)}, v{va} offset:{base + w*ws + mb*ms}')
        for x in pre: k(x)
        for mb in range(5):
            k(f's_waitcnt lgkmcnt({min(15, 4*(4-mb))})')
            for j in (0, 2):
                k(f'v_pk_add_f32 {vr(zr(0,mb)+j,2)}, {vr(zr(0,mb)+j,2)}, {vr(zr(1,mb)+j,2)}')
                k(f'v_pk_add_f32 {vr(zr(2,mb)+j,2)}, {vr(zr(2,mb)+j,2)}, {vr(zr(3,mb)+j,2)}')
                k(f'v_pk_add_f32 {vr(dst+4*mb+j,2)}, {vr(zr(0,mb)+j,2)}, {vr(zr(2,mb)+j,2)}')
                while mid:
                    x = mid.pop(0); k(x)
                    if x.startswith('buffer'): break
        for x in mid: k(x)
    VB2 = VB + 80
    ldb = lambda r, sg, off: f'buffer_load_dwordx4 {vr(r,4)}, v1, {sr(SRD_X,4)}, s{sg} offen offset:{off}{LD()}'
    k(f's_cmp_ge_u32 s{S_WAVE}, 2')
    k('s_cbranch_scc1 pe_no5')
    for kb in range(2):
        k(f's_add_u32 s77, s76, {kb*72*1024 + 8192}')
        for i in range(2): k(ldb(VB+(kb*10+8+i)*4, 77, i*1024))
    k('s_add_u32 s77, s72, 4096')
    k(ldb(VB2+16, 77, 0))
    k.label('pe_no5')
    btl = []
    for kb in range(2):
        for g0 in (0, 4):
            btl.append(f's_add_u32 s77, s76, {kb*72*1024 + g0*1024}')
            for i in range(4): btl.append(ldb(VB+(kb*10+g0+i)*4, 77, i*1024))
    for i in range(4): btl.append(ldb(VB2+4*i, 72, i*1024))
    def split(lst, n):
        idx = [i for i, x in enumerate(lst) if x.startswith('buffer')]
        if n >= len(idx): return lst, []
        cut = idx[n]
        if cut and lst[cut-1].startswith('s_add'): cut -= 1
        return lst[:cut], lst[cut:]
    p0, rest = split(btl, C.BT0)
    p1, late = split(rest, C.BT1 - C.BT0)
    for x in p0: k(x)
    k('s_barrier')
    sum4(L_CS, VCS, pre=p1, va=14, ws=320, ms=64)
    k(f'v_cmp_le_u32 vcc, 48, v{VL}')
    k('s_mov_b32 s78, 0x3f803f80')
    stamp(k, 1)
    k('s_barrier')
    stamp(k, 3)
    rsl = []
    for i in range(NPW):
        rsl.append(f'buffer_load_dwordx4 {vr(VRS+4*i,4)}, v1, {sr(SRD_A,4)}, s74 offen{LD()}')
        if i < NPW-1: rsl.append(f's_add_u32 s74, s74, {128*1024}')
    RX = NPW if C.RSG else 0
    for w in range(4):
        k(f'ds_read_b32 v{248+w}, v8 offset:{L_Z + w*6144 + 4*1024 + 48*16 + 12}')
        k(f'ds_read_b32 v{252+w}, v9 offset:{L_Z + w*6144 + 5*1024}')
    st = ['v_add_f32 v248, v248, v249', 'v_add_f32 v250, v250, v251', 'v_add_f32 v252, v252, v253', 'v_add_f32 v254, v254, v255',
          'v_add_f32 v248, v248, v250', 'v_add_f32 v252, v252, v254',
          f'v_mul_f32 v10, {f32(-1.0/D)}, v248', f'v_mul_f32 v12, {f32(1.0/D)}, v252', 'v_fma_f32 v12, -v10, v10, v12', 'v_max_f32 v12, 0, v12',
          f'v_add_f32 v12, {f32(1e-5)}, v12', 'v_rsq_f32 v12, v12', 'v_mov_b32 v11, v10', f'v_mul_f32 v12, {f32(CSC)}, v12']
    assert not (C.RSG and late)
    sum4(L_Z, VZ2, pre=(rsl if C.RSG else []) + ['s_waitcnt lgkmcnt(15)'] + st, mid=late)
    stamp(k, 2)
    if not C.RSG:
        for i in range(NPW): k(f'ds_read_b128 {vr(VRS+4*i,4)}, v15 offset:{L_RS + i*1024}')
    for i in range(0, 20, 2): k(f'v_pk_fma_f32 {vr(VZ2+i,2)}, {vr(VCS+i,2)}, v[10:11], {vr(VZ2+i,2)}')
    for r in (17, 18, 19): k(f'v_cndmask_b32 v{VZ2+r}, v{VZ2+r}, v4, vcc')
    k(f'v_max3_f32 v2, v{VZ2}, v{VZ2+1}, v{VZ2+2}')
    k(f'v_max3_f32 v3, v{VZ2+3}, v{VZ2+4}, v{VZ2+5}')
    for i in range(6, 20, 2): k(f'v_max3_f32 v{2 + (i//2)%2}, v{2 + (i//2)%2}, v{VZ2+i}, v{VZ2+i+1}')
    k('v_max_f32 v2, v2, v3')
    for sw in ('v_permlane32_swap_b32', 'v_permlane16_swap_b32'):
        k(f'v_mov_b32 v3, v2\ns_nop 1\n{sw} v2, v3\ns_nop 0\nv_max_f32 v2, v2, v3')
    k('v_mul_f32 v2, v2, v12')
    for i in range(20): k(f'v_fma_f32 v{VZ2+i}, v{VZ2+i}, v12, -v2')
    for i in range(20): k(f'v_exp_f32 v{VZ2+i}, v{VZ2+i}')
    for i in range(10): k(f'v_cvt_pk_bf16_f32 v{VP+i}, v{VZ2+2*i}, v{VZ2+2*i+1}')
    for j in range(4): k(f'v_mov_b32 v{248+j}, s78')
    mmx = []
    for kb in range(2):
        mmx.append(f's_waitcnt vmcnt({8*(1-kb) + 4 + RX})')
        mmx.append(f'v_mfma_f32_16x16x32_bf16 v[252:255], v[248:251], {vr(VP+4*kb,4)}, ' + ('0' if kb == 0 else 'v[252:255]'))
        for jb in range(10):
            c = '0' if kb == 0 else vr(VO+4*jb, 4)
            mmx.append(f'v_mfma_f32_16x16x32_bf16 {vr(VO+4*jb,4)}, {vr(VB+(kb*10+jb)*4,4)}, {vr(VP+4*kb,4)}, {c}')
    mmx.append(f's_waitcnt vmcnt({RX})')
    mmx.append(f'v_mfma_f32_16x16x16_bf16 v[252:255], v[248:249], {vr(VP+8,2)}, v[252:255]')
    for jb in range(10):
        mmx.append(f'v_mfma_f32_16x16x16_bf16 {vr(VO+4*jb,4)}, {vr(VB2+2*jb,2)}, {vr(VP+8,2)}, {vr(VO+4*jb,4)}')
    k('s_nop 0')
    un = lambda e: (VZ2 + e) if e < 20 else (VCS + e - 20)
    sm = ['s_waitcnt vmcnt(0) lgkmcnt(0)' if C.RSG else 's_waitcnt lgkmcnt(0)']
    stamp(k, 5)
    for j in range(4*NPW):
        sm += [f'v_lshlrev_b32 v{un(2*j)}, 16, v{VRS+j}', f'v_and_b32 v{un(2*j+1)}, 0xffff0000, v{VRS+j}']
    interleave(k, mmx, sm, per=2, start=1)
    k('v_rcp_f32 v2, v252')
    k('s_nop 0')
    k('v_mov_b32 v3, v2')
    for i in range(NPW):
        for e in range(0, 8, 2):
            k(f'v_pk_fma_f32 {vr(VO+8*i+e,2)}, {vr(VO+8*i+e,2)}, v[2:3], {vr(un(8*i+e),2)}')
        for j in range(4): k(f'v_cvt_pk_bf16_f32 v{VRS+4*i+j}, v{VO+8*i+2*j}, v{VO+8*i+2*j+1}')
        for j in range(4): k(f'ds_bpermute_b32 v{VQ+4*i+j}, v5, v{VRS+4*i+j}')
        if i >= 1:
            k('s_waitcnt lgkmcnt(4)')
            k(f'buffer_store_dwordx4 {vr(VQ+4*(i-1),4)}, v6, {sr(SRD_O,4)}, s{S_T2} offen offset:{64*(i-1)}{C.OUTST}')
    k(f's_cmp_ge_u32 s{S_WAVE}, 2')
    k('s_cbranch_scc1 pe_no5s')
    k('s_waitcnt lgkmcnt(0)')
    k(f'buffer_store_dwordx4 {vr(VQ+4*(NPW-1),4)}, v6, {sr(SRD_O,4)}, s{S_T2} offen offset:{64*(NPW-1)}{C.OUTST}')
    k.label('pe_no5s')
    stamp(k, 4)
    phase_exit(k)
    VMAX[0] = 256

def task(role, p1=0, p2=0, rot=0):
    assert p1 < 32 and p2 < 32 and rot < 4
    return (role, p1, p2, rot)

def make_schedule():
    sch = [[] for _ in range(256)]
    W = lambda x, loc: x + 8*loc
    late = []
    for x in range(8):
        for loc in range(18):
            u = x*18 + loc; jg, r = divmod(u, 48); tn, jl = divmod(r, 3)
            sch[W(x, loc)].append(task('T', tn, jg*3 + jl, (2*jl + tn) % 3))
    def wvo(w):
        blk, ins = divmod(w, 9); bj, bi = divmod(blk, 3); tj = bj*3 + ins//3; ti = bi*3 + ins % 3
        return task('wvo', tj, ti, (ti + tj) % 3)
    for x in range(8):
        for loc in range(23, 32): sch[W(x, loc)].append(wvo(x*9 + loc - 23))
    if C.GPLAN == 1:
        sg = []
        for x in (1, 3, 5):
            for loc in (20, 21, 22):
                i = (x >> 1)*3 + loc - 20
                sch[W(x, loc)].append(wvo(72 + i))
        sch[W(5, 22)].append(task('gate', 17, 1))
        g3 = [W(7, loc) for loc in (20, 21, 22)]
        for i, w in enumerate(g3): sch[w].append(task('gate', 3*i, 3))
        kv = [W(x, loc) for x in range(8) for loc in (range(18, 22) if x % 2 == 0 else (18, 19))]
        for v, w in enumerate(kv): sch[w].append(task('kvc', v & 1, v >> 1))
        for i, x in enumerate((0, 2, 4, 6)):
            sch[W(x, 22)].append(task('gate', 9 + 2*i, 2)); sg.append(W(x, 22))
        g3 = g3 + [W(5, 22)]
    else:
        sg = []
        gj = 13
        for x in (1, 3, 5):
            for loc in (20, 21, 22):
                i = (x >> 1)*3 + loc - 20
                if C.GFIRST:
                    if not (C.PFG and i < 4): sch[W(x, loc)].append(task('gate', 9 + i, 1))
                    sch[W(x, loc)].append(wvo(72 + i))
                    continue
                sch[W(x, loc)].append(wvo(72 + i))
                if gj < 18 and (loc < 22 ):
                    sch[W(x, loc)].append(task('gate', gj, 1)); gj += 1; sg.append(W(x, loc))
        g3 = []
        for i, loc in enumerate((20, 21, 22)):
            sch[W(7, loc)].append(task('gate', 3*i, 3)); g3.append(W(7, loc))
        v = 0
        kv = []
        for x in range(8):
            for loc in (range(18, 22) if x % 2 == 0 else (18, 19)):
                sch[W(x, loc)].append(task('kvc', v & 1, v >> 1)); v += 1; kv.append(W(x, loc))
        for i, x in enumerate((0, 2, 4, 6)):
            sch[W(x, 22)].append(task('pf', 24 + i))
            if C.PFG or not C.GFIRST: sch[W(x, 22)].append(task('gate', 9 + i, 1))
        if C.GFIRST: sg = [W(x, 17) for x in (1, 3, 5, 0, 2)]
    for x in range(8):
        for loc in range(16):
            sch[W(x, loc)].append(task('S', (x >> 2)*8 + (x & 1)*4 + (loc >> 2), ((x >> 1) & 1)*4 + (loc & 3), ((loc >> 2) + (loc & 3)) % 3))
    key = lambda w: (w & 7, w)
    lateV = sorted(sg + kv + g3, key=key)
    assert len(lateV) == 32
    lt = [(nt, jh*4 + j) for bb in range(2) for jh in range(2) for nt in (6 + 8*bb, 7 + 8*bb) for j in range(4)]
    for w, (nt, jt) in zip(lateV, lt): sch[w].append(task('V', nt, jt, (nt + jt) % 3))
    rest = sorted([W(x, loc) for x in range(8) for loc in range(16, 32) if W(x, loc) not in lateV], key=key)
    assert len(rest) == 96
    nts = [0, 1, 2, 3, 4, 5, 8, 9, 10, 11, 12, 13]
    if C.VMAP == 0:
        et = [(nts[g*3 + i], jh*4 + j) for g in range(4) for jh in range(2) for i in range(3) for j in range(4)]
    else:
        js = [(5, 6, 0, 1), (7, 4, 2, 3)]
        et = [(nts[g*3 + i], j) for g in range(4) for jh in range(2) for j in js[jh] for i in range(3)]
    vt = {}
    for w, (nt, jt) in zip(rest, et): sch[w].append(task('V', nt, jt, (nt + jt) % 3)); vt[w] = jt
    aux = [task('AT', i & 1, i >> 1) for i in range(2*C.NAT)] + [task('BT', i & 1, i >> 1) for i in range(18)]
    if C.BTLATE == 1:
        bts = aux[2*C.NAT:]; aux = aux[:2*C.NAT]
    if C.BTLATE == 2:
        bts = aux[18:36]; aux = aux[:18] + aux[36:]
    nidle = 64 - len(aux)
    idle = (sg + kv)[:nidle] if not C.GFIRST else (kv + g3 + sg)[:nidle]
    if C.BTLATE:
        first = [w for w in idle if w not in kv]
        if len(first) % 2: first = first[:-1]
        kvs = sorted([w for w in idle if w in kv], key=lambda w: (((w >> 3) - 18) >> 1, w & 7, w))
        for w, t in zip(first + kvs, bts): sch[w].append(t)
    cnt = [sum(1 for w in idle if w & 7 == x) for x in range(8)]
    auxw = []
    cand = {x: [W(x, loc) for loc in range(31, 22, -1) if (C.VMAP == 0 or vt[W(x, loc)] <= 4)] for x in range(8)}
    for ai in range(0, len(aux), 2):
        x = min([x for x in range(8) if len(cand[x]) >= 2], key=lambda x: cnt[x])
        for j in range(2):
            w = cand[x].pop(0); cnt[x] += 1
            sch[w].append(aux[ai + j]); auxw.append(w)
    tiles = {x: [task('PV', (x >> 2)*8 + (x & 1)*4 + (i & 3), ((x >> 1) & 1)*6 + (i >> 2)) for i in range(24)] for x in range(8)}
    left = []
    for x in range(8):
        for loc in range(32):
            w = W(x, loc)
            if w in idle or w in auxw: continue
            if tiles[x]: sch[w].append(tiles[x].pop(0))
            else: left.append(w)
    rem = [t for x in range(8) for t in tiles[x]]
    assert len(rem) == len(left), (len(rem), len(left))
    for w, t in zip(left, rem): sch[w].append(t)
    return sch

def make_schedule2():
    sch = [[] for _ in range(256)]
    W = lambda x, loc: x + 8*loc
    key = lambda w: (w & 7, w)
    for x in range(8):
        for loc in range(18):
            u = x*18 + loc; jg, r = divmod(u, 48); tn, jl = divmod(r, 3)
            sch[W(x, loc)].append(task('T', tn, jg*3 + jl, (2*jl + tn) % 3))
        for loc in range(16):
            sch[W(x, loc)].append(task('S', (x >> 2)*8 + (x & 1)*4 + (loc >> 2), ((x >> 1) & 1)*4 + (loc & 3)))
    def wvo(w):
        blk, ins = divmod(w, 9); bj, bi = divmod(blk, 3); tj = bj*3 + ins//3; ti = bi*3 + ins % 3
        return task('wvo', tj, ti, (ti + tj) % 3)
    kv = []
    for x in range(8):
        for i, loc in enumerate((29, 30, 31)):
            v = x*3 + i
            sch[W(x, loc)].append(task('kvc', v & 1, v >> 1)); kv.append(W(x, loc))
    pool = {x: [W(x, loc) for loc in ((20, 21, 22, 18, 19) if x & 1 else range(18, 23))] for x in range(8)}
    sp = []
    for x in range(8):
        ws_ = [W(x, loc) for loc in range(23, 29)] + [pool[x].pop(0) for _ in range(3)]
        order = [1, 2, 3, 5, 6, 7, 0, 4, 8]
        for w, o in zip(ws_, order): sch[w].append(wvo(x*9 + o))
        if x & 1: sp += ws_[6:]
    rem = [w for x in range(8) for w in pool[x]]
    rem.sort(key=key)
    for i in range(9): sch[rem[i]].append(wvo(72 + i))
    gl = rem[9:]
    for i in range(3): sch[gl[i]].append(task('pf', i))
    gj = 0
    for w in gl[:6]: sch[w].append(task('gate', gj, 1)); gj += 1
    for w in sp: sch[w].append(task('gate', gj, 1)); gj += 1
    assert gj == 18
    aux = [task('AT', i & 1, i >> 1) for i in range(18)] + [task('BT', i & 1, i >> 1) for i in range(18)]
    auxw = []
    for x in range(8): auxw += [W(x, 31), W(x, 30)]
    for x in range(8): auxw += [W(x, 29), W(x, 28)]
    auxw += [W(0, 27), W(0, 26), W(4, 27), W(4, 26)]
    for w, t in zip(auxw, aux): sch[w].append(t)
    lt = [(nt, jh*4 + j) for bb in range(2) for jh in range(2) for nt in (6 + 8*bb, 7 + 8*bb) for j in range(4)]
    l5 = [(5, 0), (5, 1), (13, 0), (13, 1)]
    for w, (nt, jt) in zip(sorted(auxw[:32], key=key), lt): sch[w].append(task('V', nt, jt, (nt + jt) % 3))
    for w, (nt, jt) in zip(auxw[32:], l5): sch[w].append(task('V', nt, jt, (nt + jt) % 3))
    rest = sorted([W(x, loc) for x in range(8) for loc in range(16, 32) if W(x, loc) not in auxw], key=key)
    nts = [0, 1, 2, 3, 4, 5, 8, 9, 10, 11, 12, 13]
    et = [(nts[g*3 + i], jh*4 + j) for g in range(4) for jh in range(2) for i in range(3) for j in range(4)]
    et = [t for t in et if t not in l5]
    assert len(rest) == len(et) == 92
    for w, (nt, jt) in zip(rest, et): sch[w].append(task('V', nt, jt, (nt + jt) % 3))
    skip = set(sp + gl + rem[:9])
    tiles = {x: [task('PV', (x >> 2)*8 + (x & 1)*4 + (i & 3), ((x >> 1) & 1)*6 + (i >> 2)) for i in range(24)] for x in range(8)}
    left = []
    for x in range(8):
        for loc in range(32):
            w = W(x, loc)
            if w in skip or w in auxw: continue
            if tiles[x]: sch[w].append(tiles[x].pop(0))
            else: left.append(w)
    remt = [t for x in range(8) for t in tiles[x]]
    assert len(remt) == len(left), (len(remt), len(left))
    for w, t in zip(left, remt): sch[w].append(t)
    return sch

def build(fn, stampf):
    C.PERSIST, C.STAMP = True, stampf
    k = K()
    k.L.append('.p2align 8'); k.label('code_start')
    for i, f in enumerate((phase_A, phase_B, phase_C, phase_D, phase_E)):
        PH[0] = i
        f(k)
        if i == 0:
            k.label('quit0'); k('s_endpgm')
    sch = make_schedule() if C.SCHED == 1 else make_schedule2()
    k.L.append('.p2align 6')
    k.L.append('.type task_table,@object')
    k.label('task_table')
    for w in range(256):
        val = 0
        assert len(sch[w]) <= 4
        for i, (r, p1, p2, rot) in enumerate(sch[w]):
            val |= (ROLES.index(r) | p1 << 4 | p2 << 9 | rot << 14) << (16*i)
        k.L.append(f'    .quad {hex(val)}')
    k.L.append('.size task_table, 2048')
    k.label('code_end')
    k('s_endpgm')
    json.dump([[t[0] for t in l] for l in sch], open('sched.json', 'w'))
    ref = open('standalone__pixart__diffusion.s.ref').read()
    hdr = ref.split('; Override launch geometry')[0]
    n = 'standalone__pixart__diffusion_kernel'
    hdr += (f'; @launch kernel={n} ' if C.LIST else '; @launch ') + f'grid=(256,1,1) block=(512,1,1) lds={LDS_MAX}\n'
    desc = '.section .rodata,"a"\n.p2align 6\n' + kernel_desc(n, 256, 102)
    hdr += '.amdgcn_target "amdgcn-amd-amdhsa--gfx950"\n.text\n'
    txt = k.text()
    if C.ALIGN:
        import re
        txt = re.sub(r'^(\w+_mm_\d+:)', r'.p2align 6\n\1', txt, flags=re.M)
    open(fn, 'w').write(hdr + txt + desc)

C.ROT = set('wqk tt wvo at bt'.split()); C.WIN = dict(wqk=6, tt=3); C.APRE = False; C.HPRE = True
if __name__ == '__main__':
    build('p4.s', False)
    build('p4_stamped.s', True)
    json.dump(WS, open('ws.json', 'w'))
```
